```python
import torch

def _softmax(x, axis=-1):
    return torch.softmax(x, dim=axis)
def _gelu(x):
    return torch.nn.functional.gelu(x, approximate="tanh")
def _silu(x):
    return torch.nn.functional.silu(x)
def _sigmoid(x):
    return torch.sigmoid(x)
def _layernorm(x, axis=-1, eps=1e-5):
    m = x.mean(dim=axis, keepdim=True)
    v = x.var(dim=axis, keepdim=True, unbiased=False)
    return (x - m) / torch.sqrt(v + eps)
def _scatter_add(tgt, idx, src, axis=0):
    return tgt.clone().index_add_(axis, idx, src)
def _segment_sum(src, seg, n):
    out = torch.zeros((n,) + src.shape[1:], dtype=src.dtype)
    return out.index_add_(0, seg, src)
def _pad(x, pw):
    flat = tuple(v for pair in reversed(pw) for v in pair)
    return torch.nn.functional.pad(x, flat)

kernel_name = 'interleave_layers__linear_attn_block__swiglu_ffn__prompt'

def setup_inputs():

    _w = (lambda a: (lambda t: t.to(torch.bfloat16) if t.is_floating_point() else t)(torch.as_tensor(a)))
    def _A_setup():
        B, S, D = 1, 2048, 640
        return {
            "x": _w((lambda *s: torch.randn(*s, dtype=torch.bfloat16) * 0.05)(B, S, D)),
            "wqkv": _w((lambda *s: torch.randn(*s, dtype=torch.bfloat16) * 0.05)(D, 3 * D)),
            "wo": _w((lambda *s: torch.randn(*s, dtype=torch.bfloat16) * 0.05)(D, D)),
        }
    _A_in = _A_setup()

    def _B_setup():
        B, S, D, F = 1, 2048, 640, 1728
        return {
            "x": _w((lambda *s: torch.randn(*s, dtype=torch.bfloat16) * 0.05)(B, S, D)),
            "w_gate": _w((lambda *s: torch.randn(*s, dtype=torch.bfloat16) * 0.05)(D, F)),
            "w_up": _w((lambda *s: torch.randn(*s, dtype=torch.bfloat16) * 0.05)(D, F)),
            "w_down": _w((lambda *s: torch.randn(*s, dtype=torch.bfloat16) * 0.05)(F, D)),
        }
    _B_in = _B_setup()

    return {
        "A_x": _A_in["x"],
        "A_wqkv": _A_in["wqkv"],
        "A_wo": _A_in["wo"],
        "B_x": _B_in["x"],
        "B_w_gate": _B_in["w_gate"],
        "B_w_up": _B_in["w_up"],
        "B_w_down": _B_in["w_down"],
    }

def reference(A_x, A_wqkv, A_wo, B_x, B_w_gate, B_w_up, B_w_down):
    def _A_ref(x, wqkv, wo):
        B, S, D = x.shape
        H = 32; Dh = D // H
        qkv = (lambda x, *d: x.permute(*d))((x @ wqkv).reshape(B, S, 3, H, Dh), 2, 0, 3, 1, 4)
        q, k, v = qkv[0], qkv[1], qkv[2]
        phi = lambda t: torch.where(t > 0, t + 1, torch.exp(t)) + 1e-6
        pq, pk = phi(q), phi(k)
        kv = torch.einsum("bhsd,bhse->bhde", pk, v)
        z = torch.einsum("bhsd->bhd", pk)
        num = torch.einsum("bhqd,bhde->bhqe", pq, kv)
        den = torch.einsum("bhqd,bhd->bhq", pq, z)[..., None] + 1e-6
        o = num / den
        return (lambda x, *d: x.permute(*d))(o, 0, 2, 1, 3).reshape(B, S, D) @ wo

    def _B_ref(x, w_gate, w_up, w_down):
        g = _silu(x @ w_gate)
        u = x @ w_up
        return (g * u) @ w_down

    x = A_x
    x = x + _A_ref(_layernorm(x, axis=-1), A_wqkv, A_wo)
    x = x + _B_ref(_layernorm(x, axis=-1), B_w_gate, B_w_up, B_w_down)
    x = x + _A_ref(_layernorm(x, axis=-1), A_wqkv, A_wo)
    x = x + _B_ref(_layernorm(x, axis=-1), B_w_gate, B_w_up, B_w_down)
    return x
```

```python
import re

class Op:
    __slots__ = ("text", "vm", "lg", "wvm", "wlg", "cost", "raw")
    def __init__(self, text, vm=None, lg=None, wvm=None, wlg=None, cost=1, raw=False):
        self.text = text; self.vm = vm; self.lg = lg
        self.wvm = wvm or []; self.wlg = wlg or []; self.cost = cost; self.raw = raw

def _regs(tok):
    tok = tok.strip()
    m = re.fullmatch(r"(-|abs\()?([vas])(\d+)\)?", tok)
    if m: return [(m.group(2), int(m.group(3)))]
    m = re.fullmatch(r"-?([vas])\[(\d+):(\d+)\]", tok)
    if m: return [(m.group(1), i) for i in range(int(m.group(2)), int(m.group(3)) + 1)]
    if tok == "vcc": return [("s", "vcc")]
    if tok == "exec": return [("s", "exec")]
    if tok == "m0": return [("s", "m0")]
    return []

TRANS = ("v_exp_f32", "v_log_f32", "v_rcp_f32", "v_rsq_f32", "v_sqrt_f32", "v_sin_f32", "v_cos_f32")

class Ins:
    def __init__(self, text):
        self.text = text
        t = text.split(";")[0].strip()
        self.kind = "other"; self.w = set(); self.r = set(); self.srcC = set(); self.nop = 0
        self.ab = set(); self.store_data = set(); self.wide = False
        if not t or t.endswith(":") or t.startswith("."):
            self.kind = "label" if t.endswith(":") else "none"; return
        parts = t.split(None, 1)
        mn = parts[0]; self.mn = mn
        ops = []
        if len(parts) > 1:
            rest = parts[1]
            ops = [o.strip() for o in rest.split(",")]
            if ops:
                last = ops[-1].split()
                ops[-1] = last[0] if last else ""
                self.mods = last[1:]
        R = [_regs(o) for o in ops]
        if mn == "s_nop":
            self.kind = "nop"; self.nop = int(ops[0], 0) + 1; return
        if mn.startswith("v_mfma"):
            self.kind = "mfma"
            self.w = set(R[0]); self.ab = set(R[1]) | set(R[2]); self.srcC = set(R[3]); self.r = self.ab | self.srcC
            self.passes = 4 if "16x16x32" in mn or "16x16x16" in mn else 8
            return
        if mn.startswith("v_cmp"):
            self.kind = "valu"; self.w = set(R[0])
            for x in R[1:]: self.r |= set(x)
            if mn.startswith("v_cmpx"): self.w.add(("s", "exec"))
            return
        if mn.startswith("v_readfirstlane") or mn.startswith("v_readlane"):
            self.kind = "valu"; self.sub = "readlane"; self.w = set(R[0])
            for x in R[1:]: self.r |= set(x)
            return
        if mn.startswith("v_permlane"):
            self.kind = "valu"; self.sub = "permlane"; self.w = set(R[0]) | set(R[1]); self.r = set(self.w); return
        if mn.startswith("v_"):
            self.kind = "valu"; self.w = set(R[0])
            start = 1
            if mn.startswith(("v_add_co", "v_sub_co", "v_addc_co", "v_subb_co")):
                self.w |= set(R[1]); start = 2
            for x in R[start:]: self.r |= set(x)
            if mn.startswith(("v_fmac", "v_mac", "v_pk_fmac", "v_dot2c")) or "dpp" in t or mn.startswith("v_accvgpr_write") and False:
                self.r |= set(R[0])
            if mn.startswith("v_cndmask") and len(ops) == 3: self.r.add(("s", "vcc"))
            if mn in TRANS or any(mn.startswith(x) for x in TRANS): self.sub = "trans"
            if "dpp" in t or "row_" in t or "quad_perm" in t: self.sub = "dpp"
            return
        if mn.startswith("ds_"):
            self.kind = "ds"
            if mn.startswith(("ds_read", "ds_bpermute", "ds_permute", "ds_swizzle")):
                self.w = set(R[0])
                for x in R[1:]: self.r |= set(x)
            else:
                for x in R: self.r |= set(x)
            return
        if mn.startswith(("buffer_", "global_")):
            self.kind = "vmem"
            islds = " lds" in (" " + t)
            if mn.startswith("buffer_load") and not islds:
                self.w = set(R[0])
                for x in R[1:]: self.r |= set(x)
            elif mn.startswith("buffer_load"):
                for x in R: self.r |= set(x)
                self.r.add(("s", "m0")); self.ldsdma = True
            elif mn.startswith("buffer_store") or mn.startswith("buffer_atomic"):
                for x in R: self.r |= set(x)
                self.store_data = set(R[0]); self.wide = ("x3" in mn or "x4" in mn)
            elif mn.startswith("global_load"):
                self.w = set(R[0])
                for x in R[1:]: self.r |= set(x)
            else:
                for x in R: self.r |= set(x)
                self.store_data = set(R[1]); self.wide = ("x3" in mn or "x4" in mn)
            return
        if mn.startswith("s_"):
            self.kind = "salu"
            if mn.startswith(("s_cmp", "s_cbranch", "s_branch", "s_barrier", "s_waitcnt", "s_endpgm", "s_setprio", "s_sleep", "s_bitcmp")):
                for x in R: self.r |= set(x)
                if mn.startswith(("s_cbranch", "s_branch")): self.kind = "branch"
                return
            if R: self.w = set(R[0])
            for x in R[1:]: self.r |= set(x)
            if "saveexec" in mn: self.w.add(("s", "exec"))
            return

def vga(s):
    return {x for x in s if x[0] in "va"}
def sg(s):
    return {x for x in s if x[0] == "s"}

def need_states(p, c):
    n = 0
    sub_p = getattr(p, "sub", None); sub_c = getattr(c, "sub", None)
    if p.kind == "valu":
        pw = vga(p.w); ps = sg(p.w)
        if c.kind == "mfma" and (pw & c.r): n = max(n, 2)
        if c.kind == "mfma" and ("s", "exec") in ps: n = max(n, 4)
        if c.kind == "valu":
            if sub_c == "permlane" and (pw & c.r): n = max(n, 2)
            if sub_c == "dpp" and (pw & c.r): n = max(n, 2)
            if sub_c == "dpp" and ("s", "exec") in ps: n = max(n, 5)
            if sub_c == "readlane" and (pw & vga(c.r)): n = max(n, 1)
            if sub_c == "readlane" and (ps & sg(c.r)): n = max(n, 4)
            if sub_c in ("readlane", "permlane") and ("s", "exec") in ps: n = max(n, 4)
            if ps & sg(c.r): n = max(n, 2)
            if sub_p == "trans" and sub_c != "trans" and (pw & (c.r | c.w)): n = max(n, 1)
            if sub_p == "trans" and sub_c == "trans" and (pw & c.r): n = max(n, 1)
        if c.kind == "vmem" and (ps & sg(c.r)): n = max(n, 5)
        if c.kind in ("salu", "branch") and (ps & sg(c.r)): n = max(n, 4)
        if c.kind == "branch" and (("s", "vcc") in ps) and "vcc" in c.mn: n = max(n, 5)
        if c.kind == "branch" and (("s", "exec") in ps) and "exec" in c.mn: n = max(n, 5)
    if p.kind == "mfma":
        big = {4: 8, 8: 12}[p.passes]; ov = {4: 6, 8: 10}[p.passes]; war = {4: 3, 8: 7}[p.passes]
        if c.kind == "mfma":
            if p.w & c.ab: n = max(n, big)
            if p.w & c.srcC:
                if not (p.w == c.srcC and p.passes == c.passes): n = max(n, ov)
            if (p.w & c.w) and not (p.w & c.srcC): n = max(n, big)
        elif c.kind == "valu":
            if p.w & (c.r | c.w): n = max(n, big)
            if p.srcC & vga(c.w): n = max(n, war)
        elif c.kind in ("ds", "vmem"):
            if p.w & (c.r | c.w): n = max(n, big)
    if p.kind == "salu":
        if ("s", "m0") in p.w and c.kind == "vmem" and getattr(c, "ldsdma", False): n = max(n, 1)
    if p.kind == "vmem" and p.wide and p.store_data:
        if c.kind == "valu" and (p.store_data & vga(c.w)): n = max(n, 2)
        elif c.kind in ("ds", "vmem", "mfma") and (p.store_data & vga(c.w)): n = max(n, 1)
    return n

def fix_hazards(lines, window=24):
    out = []
    nins = 0
    for ln in lines:
        ins = Ins(ln)
        if ins.kind in ("none", "label"):
            out.append((ln, ins)); continue
        if ins.kind != "nop":
            dist = 0; need = 0
            for (t2, p) in reversed(out):
                if p.kind in ("none", "label"): continue
                if p.kind == "nop":
                    dist += p.nop
                else:
                    k = need_states(p, ins)
                    if k > dist: need = max(need, k - dist)
                    dist += 1
                if dist >= window: break
            while need > 0:
                k = min(need, 16)
                t = f"    s_nop {k-1}"
                out.append((t, Ins(t))); nins += k; need -= k
        out.append((ln, ins))
    return [t for t, _ in out], nins

class Em:
    def __init__(self):
        self.lines = []; self.vm = []; self.lg = []
    def raw(self, s): self.lines.append(s)
    def label(self, s): self.lines.append(s + ":")
    def c(self, s): self.lines.append("    ; " + s)
    def _wait(self, wvm, wlg):
        nv = None; nl = None
        if wvm:
            idx = -1
            for i, t in enumerate(self.vm):
                if t in wvm: idx = i
            if idx >= 0:
                nv = min(len(self.vm) - 1 - idx, 63)
                self.vm = self.vm[len(self.vm) - nv:] if nv > 0 else []
        if wlg:
            idx = -1
            for i, t in enumerate(self.lg):
                if t in wlg: idx = i
            if idx >= 0:
                nl = min(len(self.lg) - 1 - idx, 15)
                self.lg = self.lg[len(self.lg) - nl:] if nl > 0 else []
        if nv is not None or nl is not None:
            s = "    s_waitcnt"
            if nv is not None: s += f" vmcnt({nv})"
            if nl is not None: s += f" lgkmcnt({nl})"
            self.lines.append(s)
    def op(self, o):
        if isinstance(o, str): o = Op(o)
        self._wait(o.wvm, o.wlg)
        self.lines.append(o.text if o.raw else "    " + o.text)
        if o.vm is not None: self.vm.append(o.vm)
        if o.lg is not None: self.lg.append(o.lg)
    def e(self, text, vm=None, lg=None, wvm=None, wlg=None):
        self.op(Op(text, vm=vm, lg=lg, wvm=wvm, wlg=wlg))
    def wait(self, wvm=None, wlg=None):
        self._wait(wvm or [], wlg or [])
    def wait_all_vm(self):
        self.lines.append("    s_waitcnt vmcnt(0)"); self.vm = []
    def wait_all_lg(self):
        self.lines.append("    s_waitcnt lgkmcnt(0)"); self.lg = []
    def wait_all(self):
        self.lines.append("    s_waitcnt vmcnt(0) lgkmcnt(0)"); self.vm = []; self.lg = []
```

```python
from asmlib import *
from layout import *

def magic(d, maxv):
    for sh in range(1, 32):
        m = -(-(1 << sh) // d)
        if m * maxv >= (1 << 32): break
        if all((x * m) >> sh == x // d for x in range(maxv)): return m, sh
    raise Exception("no magic")
def sdiv(em, dst, src, d, maxv):
    m, sh = magic(d, maxv)
    em.e(f"s_mul_i32 {dst}, {src}, {m}")
    em.e(f"s_lshr_b32 {dst}, {dst}, {sh}")

PREP_WGS = 259
PREP_LDS = 65536
CS1_N = 20
CS3_N = 10
def gen_prep(name):
    em = Em()
    em.label(name)
    em.e(f"s_cmp_ge_u32 s2, {PREP_WGS}")
    em.e("s_cbranch_scc1 Lp_done")
    em.e("s_load_dwordx4 s[4:7], s[0:1], 0")
    em.e("s_load_dwordx2 s[8:9], s[0:1], 16")
    em.e("s_load_dwordx4 s[12:15], s[0:1], 32")
    em.e("s_load_dwordx2 s[10:11], s[0:1], 48")
    em.e("s_load_dwordx2 s[16:17], s[0:1], 72")
    em.e("v_lshrrev_b32 v2, 6, v0")
    em.e("v_and_b32 v1, 63, v0")
    em.e("v_readfirstlane_b32 s18, v2")
    em.e("v_lshlrev_b32 v3, 4, v1")
    em.e("v_lshrrev_b32 v4, 2, v1")
    em.e("v_and_b32 v5, 3, v1")
    for i in range(4): em.e(f"v_mov_b32 v{8+i}, 0x3f803f80")
    em.e("s_waitcnt lgkmcnt(0)")
    em.e("s_mov_b32 s20, s16"); em.e("s_mov_b32 s21, s17"); em.e(f"s_mov_b32 s22, {WS_END}"); em.e("s_mov_b32 s23, 0x20000")
    em.e("s_cmp_ge_u32 s2, 258"); em.e("s_cbranch_scc1 Lp_zero")
    em.e("s_cmp_ge_u32 s2, 194"); em.e("s_cbranch_scc1 Lp_x")
    em.e("s_cmp_ge_u32 s2, 140"); em.e("s_cbranch_scc1 Lp_wd")
    em.e("s_cmp_ge_u32 s2, 120"); em.e("s_cbranch_scc1 Lp_wo")
    em.e("s_cmp_ge_u32 s2, 40"); em.e("s_cbranch_scc1 Lp_wgu")

    def src_srd(lo, hi, size):
        em.e(f"s_mov_b32 s24, s{lo}"); em.e(f"s_mov_b32 s25, s{hi}"); em.e(f"s_mov_b32 s26, {size}"); em.e("s_mov_b32 s27, 0x20000")
    def set_exec(nl):
        em.e(f"s_mov_b64 exec, {hex((1 << nl) - 1)}" if nl <= 32 else f"s_mov_b32 exec_lo, -1")
        if nl > 32: em.e(f"s_mov_b32 exec_hi, {hex((1 << (nl - 32)) - 1)}")
    def dma(m0_s, m0_imm, so_s, so_imm):
        em.e(f"s_add_u32 m0, {m0_s}, {m0_imm}")
        em.e(f"s_add_u32 s29, {so_s}, {so_imm}")
        em.e("buffer_load_dwordx4 v3, s[24:27], s29 offen lds", vm="dma")
    def sync():
        em.e("s_mov_b64 exec, -1")
        em.wait_all_vm()
        em.e("s_barrier")
    def xt_half(dst, u_s, half_s):
        em.e(f"s_mov_b32 {dst}, 0x47520"); em.e(f"s_cmp_eq_u32 {half_s}, 0"); em.e(f"s_cselect_b32 {dst}, {dst}, 0x98631")
        em.e(f"s_lshl_b32 s46, {u_s}, 2"); em.e(f"s_lshr_b32 {dst}, {dst}, s46"); em.e(f"s_and_b32 {dst}, {dst}, 15")
    def cs_store(acc, voff, so):
        em.e("s_mov_b64 exec, s[40:41]")
        em.e(f"buffer_store_dwordx4 v[{acc}:{acc+3}], {voff}, s[20:23], {so} offen", vm="st")
        em.e("s_mov_b64 exec, -1")
    def cs_prep():
        em.e("s_mov_b32 s40, 0x00010001"); em.e("s_mov_b32 s41, 0x00010001")
        em.e("v_and_b32 v7, 0x30, v1")

    P = 3840; PIT = 1952
    src_srd(6, 7, 640 * 1920 * 2)
    em.e("s_lshr_b32 s30, s2, 1")
    em.e("s_and_b32 s31, s2, 1")
    sdiv(em, "s32", "s30", 5, 20)
    em.e("s_mul_i32 s33, s32, 5"); em.e("s_sub_u32 s33, s30, s33")
    em.e("s_lshr_b32 s34, s18, 1")
    xt_half("s35", "s33", "s34")
    em.e("s_mul_i32 s36, s32, 10"); em.e("s_add_u32 s35, s35, s36"); em.e("s_lshl_b32 s35, s35, 4")
    em.e("s_and_b32 s36, s18, 1"); em.e("s_lshl_b32 s36, s36, 3"); em.e("s_add_u32 s35, s35, s36")
    em.e(f"s_mul_i32 s35, s35, {P}"); em.e("s_mul_i32 s36, s31, 640"); em.e("s_add_u32 s35, s35, s36")
    em.e(f"s_mul_i32 s37, s18, {8*PIT}")
    set_exec(40)
    for i in range(8):
        for sg_ in range(3):
            dma("s37", i * PIT + sg_ * 640, "s35", i * P + sg_ * 1280)
    sync()
    em.e(f"v_mul_u32_u24 v6, {PIT}, v4"); em.e("s_mul_i32 s36, s18, 160"); em.e("v_add_u32 v6, s36, v6")
    em.e("v_lshlrev_b32 v16, 3, v5"); em.e("v_add_u32 v12, v6, v16")
    em.e("v_and_b32 v16, 1, v5"); em.e("v_mul_u32_u24 v16, 40, v16"); em.e("v_add_u32 v13, v6, v16")
    em.e("v_lshrrev_b32 v16, 1, v5"); em.e("v_mul_u32_u24 v16, 640, v16"); em.e("v_add_u32 v14, v13, v16")
    cs_prep()
    em.e("s_lshl_b32 s36, s31, 3"); em.e("s_lshl_b32 s38, s18, 1"); em.e("s_add_u32 s36, s36, s38")
    em.e(f"s_mul_i32 s38, s36, {PW1_SZ}"); em.e(f"s_add_u32 s38, s38, {PW1}")
    em.e("s_mul_i32 s39, s30, 5120"); em.e("s_add_u32 s39, s39, s38")
    em.e("s_mul_i32 s42, s30, 3072"); em.e("s_add_u32 s42, s42, s38"); em.e("s_add_u32 s42, s42, 102400")
    em.e("s_lshl_b32 s43, s30, 4"); em.e("s_add_u32 s43, s43, s36"); em.e("s_lshl_b32 s43, s43, 9"); em.e(f"s_add_u32 s43, s43, {CS1}")
    tiles = [(12, 640), (12, 680), (12, 1280), (12, 1320), (14, 672), (12, 0), (12, 40), (13, 32)]
    for e in range(2):
        for t, (br, off) in enumerate(tiles):
            r = 16 + 4 * (e * 8 + t)
            for h in range(2):
                em.e(f"ds_read_b64_tr_b16 v[{r+2*h}:{r+2*h+1}], v{br} offset:{h*16*PIT + e*80 + off}", lg=(e, t))
    for e in range(2):
        for t in range(8):
            r = 16 + 4 * (e * 8 + t)
            base = "s39" if t < 5 else "s42"
            imm = (t if t < 5 else t - 5) * 1024 + e * PW1_SZ
            em.e(f"s_add_u32 s29, {base}, {imm}")
            em.e(f"buffer_store_dwordx4 v[{r}:{r+3}], v3, s[20:23], s29 offen", vm="st", wlg=[(e, t)])
            a = 96 + 4 * ((e * 8 + t) % 4)
            em.e(f"v_mfma_f32_16x16x32_bf16 v[{a}:{a+3}], v[{r}:{r+3}], v[8:11], 0")
            if (e * 8 + t) % 4 == 3:
                for q in range(4):
                    tt = t - 3 + q
                    em.e(f"s_add_u32 s29, s43, {(e*8+tt)*64}")
                    cs_store(96 + 4 * q, "v7", "s29")
    em.e("s_endpgm")

    em.label("Lp_wgu")
    em.vm = []; em.lg = []
    P = 3456; PIT = 928
    em.e("s_sub_u32 s30, s2, 40")
    em.e("s_cmp_ge_u32 s30, 40")
    em.e("s_cbranch_scc1 Lp_wu")
    src_srd(12, 13, 640 * 1728 * 2)
    em.e("s_mov_b32 s34, 0")
    em.e("s_branch Lp_wgu2")
    em.label("Lp_wu")
    src_srd(14, 15, 640 * 1728 * 2)
    em.e("s_mov_b32 s34, 1"); em.e("s_sub_u32 s30, s30, 40")
    em.label("Lp_wgu2")
    em.e("s_lshr_b32 s31, s30, 2")
    em.e("s_and_b32 s32, s30, 3")
    em.e("s_lshr_b32 s33, s18, 1"); em.e("s_lshl_b32 s35, s31, 1"); em.e("s_add_u32 s33, s33, s35")
    sdiv(em, "s35", "s33", 5, 20)
    em.e("s_mul_i32 s36, s35, 5"); em.e("s_sub_u32 s36, s33, s36")
    em.e("s_and_b32 s37, s18, 1")
    xt_half("s38", "s36", "s37")
    em.e("s_mul_i32 s35, s35, 10"); em.e("s_add_u32 s38, s38, s35"); em.e("s_lshl_b32 s38, s38, 4")
    em.e(f"s_mul_i32 s38, s38, {P}"); em.e("s_mul_i32 s35, s32, 864"); em.e("s_add_u32 s38, s38, s35")
    em.e(f"s_mul_i32 s37, s18, {16*PIT}")
    set_exec(54)
    for i in range(16):
        dma("s37", i * PIT, "s38", i * P)
    sync()
    em.e(f"v_mul_u32_u24 v6, {PIT}, v4"); em.e("s_mul_i32 s36, s18, 216"); em.e("v_add_u32 v6, s36, v6")
    em.e("v_lshlrev_b32 v16, 3, v5"); em.e("v_add_u32 v12, v6, v16")
    cs_prep()
    em.e("s_lshl_b32 s36, s32, 2"); em.e("s_add_u32 s36, s36, s18")
    em.e(f"s_mul_i32 s38, s36, {PW3_SZ}"); em.e(f"s_add_u32 s38, s38, {PW3}")
    em.e("s_lshl_b32 s39, s34, 10"); em.e("s_add_u32 s38, s38, s39")
    em.e("s_lshl_b32 s39, s31, 13"); em.e("s_add_u32 s43, s38, s39")
    em.e("s_lshl_b32 s39, s31, 12"); em.e("s_add_u32 s44, s38, s39"); em.e(f"s_add_u32 s44, s44, {240*1024}")
    em.e("s_lshl_b32 s45, s31, 4"); em.e("s_add_u32 s45, s45, s36"); em.e("s_mul_i32 s45, s45, 14"); em.e("s_add_u32 s45, s45, s34")
    em.e("s_lshl_b32 s45, s45, 6"); em.e(f"s_add_u32 s45, s45, {CS3}")
    for t in range(7):
        for k in range(2):
            r = 16 + 4 * (t * 2 + k)
            for h in range(2):
                em.e(f"ds_read_b64_tr_b16 v[{r+2*h}:{r+2*h+1}], v12 offset:{k*32*PIT + h*16*PIT + t*32}", lg=(t, k))
    for t in range(7):
        a = 96 + 4 * (t % 4)
        for k in range(2):
            r = 16 + 4 * (t * 2 + k)
            if t < 6: base, imm = "s43", (t >> 1) * 81920 + k * 4096 + 2 * (t & 1) * 1024
            else: base, imm = "s44", k * 2048
            em.e(f"s_add_u32 s29, {base}, {imm}")
            em.e(f"buffer_store_dwordx4 v[{r}:{r+3}], v3, s[20:23], s29 offen", vm="st", wlg=[(t, k)])
            em.e(f"v_mfma_f32_16x16x32_bf16 v[{a}:{a+3}], v[{r}:{r+3}], v[8:11], {'0' if k==0 else f'v[{a}:{a+3}]'}")
        if t in (3, 6):
            for tt in range(t - 3 if t == 3 else 4, t + 1):
                em.e(f"s_add_u32 s29, s45, {2*tt*64}")
                cs_store(96 + 4 * (tt % 4), "v7", "s29")
    em.e("s_endpgm")

    def od_tail(dst_base, dst_sz, b_s):
        PIT = 1312
        sync()
        em.e(f"v_mul_u32_u24 v6, {PIT}, v4"); em.e("s_mul_i32 s36, s18, 320"); em.e("v_add_u32 v6, s36, v6")
        em.e("v_lshlrev_b32 v16, 3, v5"); em.e("v_add_u32 v12, v6, v16")
        em.e("s_lshl_b32 s36, s18, 1")
        em.e(f"s_mul_i32 s38, s36, {dst_sz}"); em.e(f"s_add_u32 s38, s38, {dst_base}")
        em.e(f"s_mul_i32 s39, {b_s}, 5120"); em.e("s_add_u32 s38, s38, s39")
        for e in range(2):
            for t in range(5):
                r = 16 + 4 * (e * 5 + t)
                for h in range(2):
                    em.e(f"ds_read_b64_tr_b16 v[{r+2*h}:{r+2*h+1}], v12 offset:{h*16*PIT + e*160 + t*32}", lg=(e, t))
        for e in range(2):
            for t in range(5):
                r = 16 + 4 * (e * 5 + t)
                em.e(f"s_add_u32 s29, s38, {e*dst_sz + t*1024}")
                em.e(f"buffer_store_dwordx4 v[{r}:{r+3}], v3, s[20:23], s29 offen", vm="st", wlg=[(e, t)])
        em.e("s_endpgm")

    em.label("Lp_wo")
    em.vm = []; em.lg = []
    P = 1280; PIT = 1312
    src_srd(8, 9, 640 * 640 * 2)
    em.e("s_sub_u32 s30, s2, 120")
    em.e(f"s_mul_i32 s37, s18, {8*PIT}")
    set_exec(40)
    em.e("s_cmp_ge_u32 s30, 16"); em.e("s_cbranch_scc1 Lp_wo2")
    em.e("s_mul_i32 s31, s30, 40"); em.e("s_lshr_b32 s32, s18, 1"); em.e("s_mul_i32 s32, s32, 20"); em.e("s_add_u32 s31, s31, s32")
    em.e("s_and_b32 s32, s18, 1"); em.e("s_lshl_b32 s32, s32, 3"); em.e("s_add_u32 s31, s31, s32"); em.e(f"s_mul_i32 s31, s31, {P}")
    for i in range(8):
        for sg_ in range(2): dma("s37", i * PIT + sg_ * 640, "s31", i * P + sg_ * 640)
    em.e("s_branch Lp_wo3")
    em.label("Lp_wo2")
    em.e("s_sub_u32 s31, s30, 16"); em.e("s_mul_i32 s31, s31, 160"); em.e("s_mul_i32 s32, s18, 40"); em.e("s_add_u32 s31, s31, s32")
    em.e(f"s_mul_i32 s31, s31, {P}")
    for i in range(8):
        for sg_ in range(2): dma("s37", i * PIT + sg_ * 640, "s31", (20 * (i >> 2) + 16 + (i & 3)) * P + sg_ * 640)
    em.label("Lp_wo3")
    od_tail(PWO, PWO_SZ, "s30")

    em.label("Lp_wd")
    em.vm = []; em.lg = []
    src_srd(10, 11, 1728 * 640 * 2)
    em.e("s_sub_u32 s30, s2, 140")
    em.e(f"s_mul_i32 s37, s18, {8*PIT}")
    set_exec(40)
    em.e("s_cmp_ge_u32 s30, 48"); em.e("s_cbranch_scc1 Lp_wd2")
    em.e("s_and_b32 s31, s30, 15"); em.e("s_mul_i32 s31, s31, 108"); em.e("s_lshr_b32 s32, s30, 4"); em.e("s_lshl_b32 s32, s32, 5")
    em.e("s_add_u32 s31, s31, s32"); em.e("s_lshl_b32 s32, s18, 3"); em.e("s_add_u32 s31, s31, s32"); em.e(f"s_mul_i32 s31, s31, {P}")
    for i in range(8):
        for sg_ in range(2): dma("s37", i * PIT + sg_ * 640, "s31", i * P + sg_ * 640)
    em.e("s_branch Lp_wd3")
    em.label("Lp_wd2")
    for q in range(2):
        em.e("s_sub_u32 s31, s30, 48"); em.e("s_lshl_b32 s31, s31, 3"); em.e("s_lshl_b32 s32, s18, 1"); em.e("s_add_u32 s31, s31, s32")
        em.e(f"s_add_u32 s31, s31, {q}")
        sdiv(em, "s32", "s31", 3, 48)
        em.e("s_mul_i32 s33, s32, 3"); em.e("s_sub_u32 s33, s31, s33"); em.e("s_lshl_b32 s33, s33, 2")
        em.e("s_mul_i32 s32, s32, 108"); em.e("s_add_u32 s32, s32, s33"); em.e("s_add_u32 s32, s32, 96"); em.e(f"s_mul_i32 s32, s32, {P}")
        for i in range(4):
            for sg_ in range(2): dma("s37", (4 * q + i) * PIT + sg_ * 640, "s32", i * P + sg_ * 640)
    em.label("Lp_wd3")
    od_tail(PWD, PWD_SZ, "s30")

    em.label("Lp_x")
    em.vm = []; em.lg = []
    P = 1280; PIT = 1296
    src_srd(4, 5, 2048 * 640 * 2)
    em.e("s_sub_u32 s30, s2, 194")
    em.e("s_lshl_b32 s31, s30, 5"); em.e("s_lshl_b32 s32, s18, 3"); em.e("s_add_u32 s31, s31, s32"); em.e(f"s_mul_i32 s31, s31, {P}")
    em.e(f"s_mul_i32 s37, s18, {8*PIT}")
    set_exec(40)
    for i in range(8):
        for sg_ in range(2): dma("s37", i * PIT + sg_ * 640, "s31", i * P + sg_ * 640)
    sync()
    em.e("v_and_b32 v16, 15, v1"); em.e(f"v_mul_u32_u24 v12, {PIT}, v16")
    em.e("v_lshrrev_b32 v17, 4, v1"); em.e("v_lshlrev_b32 v18, 3, v17"); em.e("v_add_u32 v12, v12, v18")
    em.e("s_lshr_b32 s33, s18, 1"); em.e("s_and_b32 s34, s18, 1")
    em.e(f"s_mul_i32 s35, s33, {16*PIT}"); em.e("s_mul_i32 s36, s34, 640"); em.e("s_add_u32 s35, s35, s36"); em.e("v_add_u32 v12, s35, v12")
    em.e("s_lshl_b32 s35, s30, 1"); em.e("s_add_u32 s35, s35, s33")
    em.e("s_mul_i32 s36, s35, 20480"); em.e("s_mul_i32 s38, s34, 10240"); em.e("s_add_u32 s36, s36, s38"); em.e(f"s_add_u32 s36, s36, {XB}")
    for i in range(10):
        r = 20 + 4 * i
        cc, u = divmod(i, 5)
        em.e(f"ds_read_b64 v[{r}:{r+1}], v12 offset:{(10*cc+XT0[u])*32}", lg=i)
        em.e(f"ds_read_b64 v[{r+2}:{r+3}], v12 offset:{(10*cc+XT1[u])*32}", lg=i)
    for i in range(10):
        r = 20 + 4 * i
        em.e(f"s_add_u32 s29, s36, {i*1024}")
        em.e(f"buffer_store_dwordx4 v[{r}:{r+3}], v3, s[20:23], s29 offen", vm="st", wlg=[i])
        em.e(f"v_mfma_f32_16x16x32_bf16 v[96:99], v[8:11], v[{r}:{r+3}], {'0' if i==0 else 'v[96:99]'}")
        em.e(f"v_mfma_f32_16x16x32_bf16 v[100:103], v[{r}:{r+3}], v[{r}:{r+3}], {'0' if i==0 else 'v[100:103]'}")
    em.e("v_and_b32 v18, 3, v16")
    em.e("v_cmp_eq_u32 vcc, 1, v18"); em.e("v_cndmask_b32 v104, v100, v101, vcc")
    em.e("v_cmp_eq_u32 vcc, 2, v18"); em.e("v_cndmask_b32 v104, v104, v102, vcc")
    em.e("v_cmp_eq_u32 vcc, 3, v18"); em.e("v_cndmask_b32 v105, v104, v103, vcc")
    em.e("v_mov_b32 v104, v96")
    em.e("v_mov_b32 v106, 0"); em.e("v_mov_b32 v107, 0")
    em.e("s_lshl_b32 s38, s35, 10"); em.e(f"s_add_u32 s38, s38, {ST}")
    em.e("s_lshl_b32 s39, s34, 7"); em.e("s_add_u32 s39, s39, s38")
    em.e("s_mul_i32 s42, s34, 384"); em.e("s_add_u32 s42, s42, s38")
    em.e("v_lshlrev_b32 v19, 3, v16")
    em.e("v_lshrrev_b32 v18, 2, v16")
    em.e("v_cmp_eq_u32 vcc, v17, v18")
    em.e("s_and_saveexec_b64 s[40:41], vcc")
    em.e("buffer_store_dwordx2 v[104:105], v19, s[20:23], s39 offen", vm="st")
    for z in range(3):
        em.e(f"buffer_store_dwordx2 v[106:107], v19, s[20:23], s42 offen offset:{256+128*z}", vm="st")
    em.e("s_mov_b64 exec, s[40:41]")
    em.e("s_endpgm")

    em.label("Lp_zero")
    for i in range(4): em.e(f"v_mov_b32 v{16+i}, 0")
    em.e("v_lshlrev_b32 v20, 4, v0")
    for i in range(FLAGS_BYTES // 4096):
        em.e(f"s_mov_b32 s30, {i*4096}")
        em.e(f"buffer_store_dwordx4 v[16:19], v20, s[20:23], s30 offen")
    em.label("Lp_done")
    em.e("s_endpgm")
    return em.lines

def kdesc(name, vgpr, accum, sgpr=96):
    return f""".section .rodata,"a"
.p2align 6
.amdhsa_kernel {name}
  .amdhsa_next_free_vgpr {vgpr}
  .amdhsa_next_free_sgpr {sgpr}
  .amdhsa_accum_offset {accum}
  .amdhsa_group_segment_fixed_size 0
  .amdhsa_kernarg_size 80
  .amdhsa_user_sgpr_count 2
  .amdhsa_user_sgpr_kernarg_segment_ptr 1
  .amdhsa_system_sgpr_workgroup_id_x 1
.end_amdhsa_kernel
"""

if __name__ == "__main__":
    lines = gen_prep("prep_kernel")
    lines, n = fix_hazards(lines)
    print(f"; @launch kernel=prep_kernel grid=({PREP_WGS},1,1) block=(256,1,1) lds={PREP_LDS}")
    print('.amdgcn_target "amdgcn-amd-amdhsa--gfx950"\n.text\n.globl prep_kernel\n.p2align 8\n.type prep_kernel,@function')
    print("\n".join(lines))
    print(kdesc("prep_kernel", 112, 112))
```

```python
import numpy as np
S=2048; D=640; H=32; DH=20; F=1728
FLG_G=0x0000; FLG_KV=0x1000; FLG_XCC=0x2000; FLAGS_BYTES=0x4000
CS1=0x10000; CS3=0x38000
ST=0x60000; ST_SZ=0x20000
KVP=0x100000; KVP_L=0x100000
XB=0x400000; X_SZ=0x280000
OB=0xE00000; O_SZ=0x280000
ACT=0x1400000; ACT_SZ=0x6C0000
PW1=0x2200000; PW1_SZ=163840
PWO=0x2480000; PWO_SZ=102400
PW3=0x2600000; PW3_SZ=286720
PWD=0x2B00000; PWD_SZ=276480
WS_END=0x3000000

def bf2f(u16):
    return (u16.astype(np.uint32) << 16).view(np.float32)
def f2bf(f):
    f = np.ascontiguousarray(f, dtype=np.float32)
    u = f.view(np.uint32)
    r = (u + 0x7FFF + ((u >> 16) & 1)) >> 16
    return r.astype(np.uint16)

XT0=[0,2,5,7,4]; XT1=[1,3,6,8,9]
def xmap(b):
    c,u = divmod(b,5)
    t0=10*c+XT0[u]; t1=10*c+XT1[u]
    return np.array([16*t0+i for i in range(16)]+[16*t1+i for i in range(16)])
def omap(b):
    if b<16: return np.array([40*b+i for i in range(16)]+[40*b+20+i for i in range(16)])
    return np.array([160*(b-16)+20*(r>>2)+16+(r&3) for r in range(32)])
def amap(b):
    if b<48:
        j=b&15; u=b>>4
        return np.array([108*j+32*u+r for r in range(32)])
    out=[]
    for r in range(32):
        r8=(b-48)*8+(r>>2); j=r8//3; g=r8%3
        out.append(108*j+96+4*g+(r&3))
    return np.array(out)

LANE=np.arange(64); G_=LANE>>4; I_=LANE&15
SLOT=np.zeros((64,8),dtype=np.int64)
for j in range(8):
    SLOT[:,j] = (4*G_+j) if j<4 else (16+4*G_+(j-4))

def wfrag(W, rows, cols):
    r = rows[SLOT]
    c = cols[I_][:,None]
    return W[r, np.maximum(c,0)]
def afrag(X, tok0, rows):
    r = rows[SLOT]
    return X[(tok0+I_)[:,None], r]

def qkv_cols(hp, tile):
    a=40*hp
    if tile==0: return np.arange(640+a,640+a+16)
    if tile==1: return np.arange(660+a,660+a+16)
    if tile==2: return np.arange(1280+a,1280+a+16)
    if tile==3: return np.arange(1300+a,1300+a+16)
    if tile==4: return np.concatenate([np.arange(640+a+16,640+a+20),np.arange(640+a+36,640+a+40),np.arange(1280+a+16,1280+a+20),np.arange(1280+a+36,1280+a+40)])
    if tile==5: return np.arange(a,a+16)
    if tile==6: return np.arange(a+20,a+36)
    if tile==7: return np.concatenate([np.arange(a+16,a+20),np.arange(a+36,a+40),-np.ones(8,dtype=np.int64)])
def pw1_index(b,tile):
    return b*5+tile if tile<5 else 100+3*b+(tile-5)
def pw3_index(b,t,mat):
    if t<6: return 80*(t>>1)+4*b+2*(t&1)+mat
    return 240+2*b+mat
def unpack_act(buf_u16, nblk, fmap, K):
    buf = buf_u16.reshape(128,nblk,64,8)
    out = np.zeros((2048,K),dtype=np.uint16)
    for b in range(nblk):
        rows = fmap(b)[SLOT]
        for tt in range(128):
            out[(tt*16+I_)[:,None], rows] = buf[tt,b]
    return out
```

```python
import sys
from asmlib import *
from layout import *
from gen_prep import gen_prep, kdesc, PREP_WGS, PREP_LDS

KNAME = "interleave_layers__linear_attn_block__swiglu_ffn__prompt_kernel"
NR = 9
MISC = 147456
MB = 131072
L_CS1 = MISC - MB; L_CS3 = MISC + 512 - MB; L_STAT = MISC + 1536 - MB; L_RED = MISC + 4096 - MB; L_KVB = MISC + 8192 - MB
MAIN_LDS = 163840
PH = {"K1": (0, 160), "K2": (10, 100), "K3": (17, 280), "K4": (35, 270)}
TOT_ROUNDS = 54
LOG2E = 0x3fb8aa3b
EPS6 = 0x358637bd
EPS5 = 0x3727c5ac
INV640 = 0x3acccccd

S_WS = "s[4:7]"; S_OUT = "s[8:11]"; S_WSN = "s[12:15]"
sW, sG, sM, sHALF, sC8, sLAYER = "s16", "s17", "s18", "s19", "s20", "s21"
sW4K, sW1K, sW2K = "s22", "s23", "s24"
sPW1, sPWO, sPW3, sPWD, sPWOp, sPW3p = "s25", "s26", "s27", "s28", "s29", "s30"
sDMA = "s31"; sA = "s32"; sT0, sT1, sT2, sT3 = "s33", "s34", "s35", "s36"
sFOWN, sFLINE, sKOWN, sKLINE = "s37", "s38", "s39", "s40"
sSTEP = "s41"; sTT2 = "s42"; sTT1 = "s43"
sFEX = "s[44:45]"
sMODE = "s46"; sSPIN = "s47"
sMK = ["s[48:49]", "s[50:51]", "s[52:53]", "s[54:55]", "s[56:57]", "s[58:59]"]
sXI = "s60"
sE6 = "s61"
sST = "s62"
sST2 = "s63"
sODD = "s64"
sBIT2 = "s[66:67]"
sI8 = "s[68:69]"
sG23 = "s[70:71]"; sG3 = "s[72:73]"; sG012 = "s[74:75]"
sTS = 76

vL16, vR1, vR2, vL16B = "v1", "v2", "v3", "v4"
vI4, vI4W, vG16, vG16W, vL4, vL4W, vL8, vSTO, vACT6, vOREM, vOUT = [f"v{i}" for i in range(5, 16)]
RES = 16
WW = 36; NW = 16
ACC = 100
TMP = 212
CSVB = 140; RLB = 180


class Seg:
    def __init__(s):
        s.mf = []; s.gaps = [[]]; s.cost = [0]
    def n(s): return len(s.mf)
    def mfma(s, text, wvm=None, wlg=None):
        s.mf.append(Op(text, wvm=wvm, wlg=wlg)); s.gaps.append([]); s.cost.append(0)
        if wvm or wlg: s.cost[len(s.mf) - 1] += 1
        return len(s.mf) - 1
    def put(s, gap, op, cost=1):
        if isinstance(op, str): op = Op(op)
        gap = min(gap, len(s.gaps) - 1)
        s.gaps[gap].append(op); s.cost[gap] += cost
        return gap
    def place(s, op, earliest, cost=1, cap=2, latest=None):
        g = max(0, min(earliest, len(s.gaps) - 1))
        last = len(s.gaps) - 1
        while g < last and s.cost[g] + cost > cap:
            if latest is not None and g >= latest: break
            g += 1
        return s.put(g, op, cost)
    def stream(s, ops, earliest, cap=2, spacing=0):
        g = earliest
        for o in ops:
            c = 1
            if isinstance(o, tuple): o, c = o
            g = s.place(o, g, cost=c, cap=cap)
            g += spacing
        return g
    def emit(s, em):
        for i in range(len(s.gaps)):
            for o in s.gaps[i]: em.op(o)
            if i < len(s.mf): em.op(s.mf[i])


class Ring:
    def __init__(s):
        s.issued = -1
        s.filled = -1
    @staticmethod
    def info(r):
        rr = r % TOT_ROUNDS
        nxt = r >= TOT_ROUNDS
        for ph, (r0, nf) in PH.items():
            nrounds = (nf + 15) // 16
            if r0 <= rr < r0 + nrounds:
                k = rr - r0
                return ph, k, min(16, nf - 16 * k), nxt
        return None, 0, 0, nxt
    def dma_ops(s, r):
        ph, k, n, nxt = s.info(r)
        if ph is None: return []
        srd = S_WSN if nxt else S_WS
        pos = (r % NR) * 16384
        tag = ("dma", r)
        ops = []
        if n > 8: c, m0s, base = 4, sW4K, {"K1": sPW1, "K2": sPWO, "K3": sPW3, "K4": sPWD}[ph]
        elif n > 4: c, m0s, base = 2, sW2K, sPW3p; assert ph == "K3" and n == 8
        else: c, m0s, base = 1, sW1K, sPWOp; assert ph == "K2" and n == 4
        ops.append(Op(f"s_add_u32 m0, {m0s}, {pos}"))
        ops.append(Op(f"s_add_u32 {sDMA}, {base}, {k*16384}"))
        for j in range(c):
            ops.append(Op(f"buffer_load_dwordx4 {vL16}, {srd}, {sDMA} offen offset:{j*1024} lds", vm=tag))
        return ops


def wslot_addr(ph, f):
    r0, nf = PH[ph]
    r = r0 + f // 16
    a = (r % NR) * 16384 + (f % 16) * 1024
    if a < 65536: return vL16, a
    if a < 131072: return vR1, a - 65536
    return vR2, a - 131072


class WStream:
    cnt = 0
    def __init__(s, ring, seg, ph, SS=2, LA=10):
        s.ring = ring; s.seg = seg; s.ph = ph; s.SS = SS; s.LA = LA
        s.reg = {}
    def wreg(s, f):
        if f not in s.reg:
            s.reg[f] = WW + 4 * (WStream.cnt % NW); WStream.cnt += 1
        return s.reg[f]
    def schedule(s, frags, first_use, last_use, start_gap=0):
        seg = s.seg; ring = s.ring; r0, nf = PH[s.ph]
        prev = start_gap
        lastuse_slot = {}
        for f in frags:
            reg = s.reg[f]
            e = max(prev, first_use[f] - s.LA, lastuse_slot.get(reg, -1) + 1)
            e = max(0, min(e, first_use[f]))
            r = r0 + f // 16
            va, off = wslot_addr(s.ph, f)
            rd = Op(f"ds_read_b128 v[{reg}:{reg+3}], {va} offset:{off}", lg=("w", s.ph, f))
            need = r > ring.filled
            want = (f % 16 == 0) and (r - 2 + NR >= s.allowed + s.SS)
            if need or want:
                tgt = max(ring.filled, min(r + s.SS - 1, ring.issued))
                assert tgt >= r, (s.ph, f, r, ring.issued)
                g = e
                last = first_use[f]
                while g < last and seg.cost[g] + 1 > 2: g += 1
                wt = [("dma", x) for x in range(ring.filled + 1, tgt + 1)]
                seg.put(g, Op("s_barrier", wvm=wt), 2)
                seg.put(g, rd, 1)
                ring.filled = tgt
                prev = g
                s._flush(g)
                s.allowed = max(s.allowed, r - 2 + NR)
                s.win = (g, s.allowed)
            else:
                prev = seg.place(rd, e, latest=first_use[f])
            lastuse_slot[reg] = last_use[f]
        s._flush(len(seg.gaps) - 1)
    def begin(s, gap, allowed):
        s.win = (gap, allowed); s.allowed = allowed
    def _flush(s, gend):
        if not hasattr(s, "win") or s.win is None: return
        g0, allowed = s.win
        ring = s.ring
        ops = []
        while ring.issued < allowed:
            ring.issued += 1
            ops += ring.dma_ops(ring.issued)
        if ops:
            nd = len(ops)
            span = max(1, gend - g0 - 1)
            g = g0 + 1
            for i, o in enumerate(ops):
                tgt = g0 + 1 + (i * span) // nd
                g = s.seg.place(o, max(g, tgt), latest=max(gend - 1, g0 + 1))
        s.win = None


def gen_main(opt):
    stop = opt.get("stop", 99)
    stamps = opt.get("stamps", False)
    SS = opt.get("SS", 2)
    LD = " sc1"
    STO = " sc1"
    em = Em()
    ring = Ring()
    WStream.cnt = 0
    nstamp = [0]
    def stamp():
        if not stamps: return
        k = nstamp[0]; nstamp[0] += 1
        em.raw(f"    s_waitcnt lgkmcnt(0)")
        em.e(f"s_memtime s[{sTS}:{sTS+1}]")
        em.raw("    s_waitcnt lgkmcnt(0)")
        em.lg = []
        em.e(f"s_mov_b64 exec, s[{sTS+4}:{sTS+5}]")
        em.e(f"v_mov_b32 v250, s{sTS}")
        em.e(f"s_lshl_b32 s{sTS+2}, {sLAYER}, 6")
        em.e(f"s_add_u32 s{sTS+2}, s{sTS+2}, {4*k}")
        em.e(f"s_add_u32 s{sTS+2}, s{sTS+2}, s{sTS+3}")
        em.e(f"v_mov_b32 v251, s{sTS+2}")
        em.e(f"global_store_dword v251, v250, s[{sTS+6}:{sTS+7}]", vm="dbg")
        em.e("s_mov_b64 exec, -1")

    em.label(KNAME)
    em.e("s_cmp_ge_u32 s2, 256")
    em.e("s_cbranch_scc1 Lm_done")
    em.e("s_load_dwordx2 s[8:9], s[0:1], 56"); em.e("s_load_dwordx2 s[10:11], s[0:1], 64")
    em.e("s_load_dwordx2 s[4:5], s[0:1], 72")
    em.e("v_lshrrev_b32 v2, 6, v0")
    em.e("v_and_b32 v0, 63, v0")
    em.e(f"v_readfirstlane_b32 {sW}, v2")
    em.e(f"v_lshlrev_b32 {vL16}, 4, v0")
    em.e("s_and_b32 s33, s2, 7"); em.e("s_lshr_b32 s34, s2, 3")
    em.e("s_and_b32 s35, s34, 1"); em.e(f"s_lshr_b32 {sM}, s34, 1")
    em.e("s_lshl_b32 s33, s33, 1"); em.e(f"s_add_u32 {sG}, s33, s35")
    em.e(f"s_and_b32 {sHALF}, {sM}, 1"); em.e(f"s_lshr_b32 {sC8}, {sM}, 1")
    em.e(f"s_lshl_b32 {sW4K}, {sW}, 12"); em.e(f"s_lshl_b32 {sW1K}, {sW}, 10"); em.e(f"s_lshl_b32 {sW2K}, {sW}, 11")
    def base(dst, reg0, sz, idx, wk, extra=0):
        em.e(f"s_mul_i32 {dst}, {idx}, {sz}"); em.e(f"s_add_u32 {dst}, {dst}, {reg0 + extra}"); em.e(f"s_add_u32 {dst}, {dst}, {wk}")
    base(sPW1, PW1, PW1_SZ, sM, sW4K); base(sPWO, PWO, PWO_SZ, sC8, sW4K)
    base(sPW3, PW3, PW3_SZ, sM, sW4K); base(sPWD, PWD, PWD_SZ, sC8, sW4K)
    base(sPWOp, PWO, PWO_SZ, sC8, sW1K); base(sPW3p, PW3, PW3_SZ, sM, sW2K)
    em.e("s_waitcnt lgkmcnt(0)")
    if stamps:
        em.e(f"s_mov_b32 s{sTS+6}, s10"); em.e(f"s_mov_b32 s{sTS+7}, s11")
    em.e(f"s_mov_b32 s6, {WS_END}"); em.e("s_mov_b32 s7, 0x20000")
    em.e(f"s_mov_b32 s10, {2048*640*2}"); em.e("s_mov_b32 s11, 0x20000")
    em.e("s_mov_b32 s12, s4"); em.e("s_mov_b32 s13, s5"); em.e(f"s_mov_b32 s14, {WS_END}"); em.e("s_mov_b32 s15, 0x20000")
    def dma_now(r0, r1):
        for r in range(r0, r1 + 1):
            for o in ring.dma_ops(r): em.op(o)
    dma_now(0, 2)
    em.e(f"s_lshl_b32 s33, {sG}, 7")
    em.e(f"s_add_u32 {sFLINE}, s33, {FLG_G}"); em.e(f"s_lshl_b32 s34, {sM}, 2"); em.e(f"s_add_u32 {sFOWN}, {sFLINE}, s34")
    em.e(f"s_lshl_b32 s33, {sM}, 7"); em.e(f"s_add_u32 {sKLINE}, s33, {FLG_KV}"); em.e(f"s_lshl_b32 s34, {sG}, 2"); em.e(f"s_add_u32 {sKOWN}, {sKLINE}, s34")
    em.e(f"s_lshl_b32 s33, {sG}, 3")
    em.e(f"s_lshl_b32 s34, {sW}, 1"); em.e(f"s_add_u32 {sTT2}, s33, s34")
    em.e(f"s_lshl_b32 s34, {sHALF}, 2"); em.e(f"s_add_u32 s34, s34, {sW}"); em.e(f"s_add_u32 {sTT1}, s33, s34")
    em.e(f"s_cmp_eq_u32 {sW}, 0"); em.e("s_cselect_b32 s44, 1, 0"); em.e("s_mov_b32 s45, 0")
    em.e(f"s_mov_b32 {sLAYER}, 0"); em.e(f"s_mov_b32 {sSTEP}, 0"); em.e(f"s_mov_b32 {sXI}, 0")
    em.e(f"s_mov_b32 {sE6}, {EPS6}")
    em.e(f"s_and_b32 {sODD}, {sC8}, 1")
    def m64(reg, val):
        a = int(reg[2:].split(":")[0])
        em.e(f"s_mov_b32 s{a}, {hex(val & 0xffffffff)}"); em.e(f"s_mov_b32 s{a+1}, {hex(val >> 32)}")
    m64(sMK[0], 0xFFFF); m64(sMK[1], 0xFFFF0000); m64(sMK[2], 0x0F000F000F000F00); m64(sMK[3], 0xF000F000F000F000)
    m64(sMK[4], 0x0F00); m64(sMK[5], 0xF0000000)
    m64(sBIT2, 0xF0F0F0F0F0F0F0F0); m64(sI8, 0x00FF00FF00FF00FF)
    m64(sG23, 0xFFFFFFFF00000000); m64(sG3, 0xFFFF000000000000); m64(sG012, 0x0000FFFFFFFFFFFF)
    if stamps:
        em.e(f"s_mov_b32 s{sTS+4}, 0"); em.e(f"s_mov_b32 s{sTS+5}, 0"); em.e(f"s_mov_b32 s{sTS+3}, 0")
        em.e("s_cmp_eq_u32 s2, 0"); em.e(f"s_cselect_b32 s{sTS+4}, s44, 0")
        em.e("s_cmp_eq_u32 s2, 255"); em.e(f"s_cselect_b32 s{sTS+4}, s44, s{sTS+4}"); em.e(f"s_cselect_b32 s{sTS+3}, 128, 0")
    em.e("v_and_b32 v212, 15, v0"); em.e("v_lshrrev_b32 v213, 4, v0")
    em.e(f"v_add_u32 {vR1}, 0x10000, {vL16}"); em.e(f"v_add_u32 {vR2}, 0x20000, {vL16}"); em.e(f"v_add_u32 {vL16B}, 20480, {vL16}")
    em.e(f"v_lshlrev_b32 {vI4}, 2, v212"); em.e(f"v_add_u32 {vI4}, 0x20000, {vI4}")
    em.e(f"s_lshl_b32 s33, {sW}, 8")
    em.e(f"v_add_u32 {vI4W}, s33, {vI4}")
    em.e(f"v_lshlrev_b32 {vG16}, 4, v213"); em.e(f"v_add_u32 {vG16}, 0x20000, {vG16}"); em.e(f"v_add_u32 {vG16W}, s33, {vG16}")
    em.e(f"v_lshlrev_b32 {vL4}, 2, v0"); em.e(f"v_add_u32 {vL4}, 0x20000, {vL4}"); em.e(f"v_add_u32 {vL4W}, {sW1K}, {vL4}")
    em.e(f"v_lshlrev_b32 {vL8}, 3, v0"); em.e(f"v_add_u32 {vL8}, 0x20000, {vL8}")
    em.e(f"v_lshlrev_b32 {vSTO}, 8, v213"); em.e("v_lshlrev_b32 v214, 3, v212"); em.e(f"v_add_u32 {vSTO}, {vSTO}, v214")
    em.e(f"s_mul_i32 s33, {sM}, 3"); em.e("v_add_u32 v214, s33, v213")
    em.e("v_lshrrev_b32 v215, 3, v214"); em.e("v_add_u32 v215, 48, v215"); em.e("v_lshlrev_b32 v215, 10, v215")
    em.e("v_and_b32 v216, 3, v214"); em.e("v_lshlrev_b32 v216, 8, v216"); em.e("v_add_u32 v215, v215, v216")
    em.e("v_lshlrev_b32 v216, 4, v212"); em.e("v_add_u32 v215, v215, v216")
    em.e("v_bfe_u32 v216, v214, 2, 1"); em.e("v_lshlrev_b32 v216, 3, v216"); em.e(f"v_add_u32 {vACT6}, v215, v216")
    em.e(f"s_lshr_b32 s33, {sM}, 2"); em.e("s_add_u32 s33, s33, 16"); em.e("s_lshl_b32 s33, s33, 10")
    em.e(f"s_and_b32 s34, {sM}, 1"); em.e("s_lshl_b32 s34, s34, 9"); em.e("s_add_u32 s33, s33, s34")
    em.e(f"s_bfe_u32 s34, {sM}, 0x10001"); em.e("s_lshl_b32 s34, s34, 3"); em.e("s_add_u32 s33, s33, s34")
    em.e("s_sub_u32 s33, s33, 512")
    em.e("v_lshlrev_b32 v215, 8, v213"); em.e("v_lshlrev_b32 v216, 4, v212"); em.e("v_add_u32 v215, v215, v216")
    em.e(f"v_add_u32 {vOREM}, s33, v215")
    em.e("v_mul_u32_u24 v215, 1280, v212"); em.e("v_lshlrev_b32 v216, 3, v213"); em.e(f"v_add_u32 {vOUT}, v215, v216")
    em.e(f"s_mul_i32 s33, {sM}, 512"); em.e(f"s_add_u32 s33, s33, {CS1}")
    em.e(f"s_mul_i32 s34, {sM}, 896"); em.e(f"s_add_u32 s34, s34, {CS3}")
    em.e("v_and_b32 v214, 31, v0"); em.e("v_lshlrev_b32 v214, 4, v214"); em.e("v_lshrrev_b32 v215, 5, v0")
    em.e("v_mul_u32_u24 v215, 81920, v215"); em.e("v_add_u32 v214, v214, v215"); em.e("v_add_u32 v214, s33, v214")
    em.e(f"v_add_u32 v215, s34, {vL16}")
    em.e("v_mov_b32 v216, 0x7ffffff0")
    em.e("v_cmp_gt_u32 vcc, 56, v0"); em.e("v_cndmask_b32 v215, v216, v215, vcc")
    em.e(f"s_cmp_eq_u32 {sW}, 0"); em.e("s_mov_b32 s36, 14336"); em.e("s_cselect_b32 s36, 8192, s36"); em.e("s_cselect_b64 vcc, -1, 0")
    em.e("v_cndmask_b32 v214, v215, v214, vcc")
    em.e(f"s_cmp_ge_u32 {sW}, 2"); em.e("s_cselect_b64 vcc, -1, 0")
    em.e("v_cndmask_b32 v214, v214, v216, vcc")
    for k in range(10):
        em.e(f"buffer_load_dwordx4 v[{CSVB+4*k}:{CSVB+4*k+3}], v214, {S_WS}, 0 offen", vm="cs")
        if k < 9: em.e("v_add_u32 v214, s36, v214")
    RL = RLB
    em.e(f"s_lshr_b32 s33, {sC8}, 1"); em.e("s_mul_i32 s33, s33, 5")
    em.e(f"s_lshl_b32 s34, {sODD}, 1"); em.e("s_add_u32 s34, s34, s33")
    em.e(f"s_mul_i32 s35, {sTT1}, 20480"); em.e(f"s_add_u32 s35, s35, {XB}")
    em.e("s_lshl_b32 s34, s34, 10"); em.e("s_add_u32 s34, s34, s35")
    em.e(f"buffer_load_dwordx4 v[{RL}:{RL+3}], {vL16}, {S_WS}, s34 offen", vm="res")
    em.e(f"buffer_load_dwordx4 v[{RL+4}:{RL+7}], {vL16}, {S_WS}, s34 offen offset:1024", vm="res")
    em.e("s_add_u32 s33, s33, 4"); em.e("s_lshl_b32 s33, s33, 10"); em.e("s_add_u32 s33, s33, s35")
    em.e(f"s_lshl_b32 s34, {sODD}, 3"); em.e("s_add_u32 s33, s33, s34")
    em.e(f"buffer_load_dwordx2 v[{RL+8}:{RL+9}], {vL16}, {S_WS}, s33 offen", vm="res")
    dma_now(3, 8)
    ring.issued = 8
    em.vm = [t for t in em.vm if isinstance(t, tuple) and t[0] == "dma"]
    head_vm = list(em.vm)

    def poll(line, target_expr_sreg, lbl):
        em.e(f"s_mov_b32 {sSPIN}, 0")
        em.e(f"v_subrev_u32 v252, 0x20000, {vI4}")
        em.label(lbl)
        em.e(f"buffer_load_dword v253, v252, {S_WS}, {line} offen sc1")
        em.raw("    s_waitcnt vmcnt(0)")
        em.e(f"v_cmp_gt_u32 vcc, {target_expr_sreg}, v253")
        em.e(f"s_add_u32 {sSPIN}, {sSPIN}, 1")
        em.e(f"s_cmp_gt_u32 {sSPIN}, 20000")
        em.e(f"s_cbranch_scc1 {lbl}_x")
        em.e(f"s_cbranch_vccnz {lbl}")
        em.label(lbl + "_x")
    uid = [0]
    def flag_store(own, val_sreg):
        em.e(f"v_mov_b32 v254, {val_sreg}")
        em.e("v_mov_b32 v255, 0")
        em.e(f"s_mov_b64 exec, {sFEX}")
        em.e(f"buffer_store_dword v254, v255, {S_WS}, {own} offen sc1", vm="flag")
        em.e("s_mov_b64 exec, -1")
    def transition(pub, wait, last_round):
        uid[0] += 1; u = uid[0]
        em.wait_all_vm()
        em.e("s_barrier")
        ring.filled = ring.issued
        em.e(f"s_cmp_lg_u32 {sW}, 0")
        em.e(f"s_cbranch_scc1 Lt{u}_o")
        em.e(f"s_add_u32 {sT0}, {sSTEP}, {pub}")
        flag_store(sFOWN, sT0)
        em.e(f"s_add_u32 {sT0}, {sSTEP}, {wait}")
        poll(sFLINE, sT0, f"Lt{u}_p")
        em.label(f"Lt{u}_o")
        em.vm = []
        while ring.issued < last_round + NR:
            ring.issued += 1
            for o in ring.dma_ops(ring.issued): em.op(o)
        em.e("s_barrier")

    def a_loads(n_tiles, nblk, sbase_setup, tagname, areg):
        ops = []
        for b in range(nblk):
            if b % 4 == 0 and b > 0: ops.append(Op(f"s_add_u32 {sA}, {sA}, 4096"))
            for t in range(n_tiles):
                r = areg(b, t)
                va = vL16 if t == 0 else vL16B
                ops.append(Op(f"buffer_load_dwordx4 a[{r}:{r+3}], {va}, {S_WS}, {sA} offen offset:{(b%4)*1024}{LD}", vm=(tagname, b, t)))
        return ops

    def stats_ops(base):
        ops = []
        for t in range(2):
            a = base + 4 * t; nm = base + 8 + 2 * t; rs = nm + 1; x = base + 12; y = base + 13
            ops.append(Op(f"v_add_f32 v{a}, v{a}, v{a+2}", wvm=[("st", t)]))
            ops.append(f"v_add_f32 v{a+1}, v{a+1}, v{a+3}")
            for sw in ("v_permlane32_swap_b32", "v_permlane16_swap_b32"):
                ops.append(f"v_mov_b32 v{x}, v{a}"); ops.append(f"v_mov_b32 v{y}, v{a+1}")
                ops.append(f"{sw} v{a}, v{x}"); ops.append(f"{sw} v{a+1}, v{y}")
                ops.append(f"v_add_f32 v{a}, v{a}, v{x}"); ops.append(f"v_add_f32 v{a+1}, v{a+1}, v{y}")
            ops.append(f"v_mul_f32 v{nm}, {hex(INV640 | 0x80000000)}, v{a}")
            ops.append(f"v_mul_f32 v{a+1}, {hex(INV640)}, v{a+1}")
            ops.append(f"v_fma_f32 v{a+1}, -v{nm}, v{nm}, v{a+1}")
            ops.append(f"v_max_f32 v{a+1}, 0, v{a+1}")
            ops.append(f"v_add_f32 v{a+1}, {hex(EPS5)}, v{a+1}")
            ops.append((Op(f"v_rsq_f32 v{rs}, v{a+1}"), 2))
        return ops
    def stats_loads(base):
        ops = []
        ops.append(Op(f"s_mul_i32 {sST}, {sXI}, {ST_SZ}"))
        ops.append(Op(f"s_lshl_b32 {sST2}, {sTT2}, 10"))
        ops.append(Op(f"s_add_u32 {sST}, {sST}, {sST2}"))
        ops.append(Op(f"s_add_u32 {sST}, {sST}, {ST}"))
        for t in range(2):
            a = base + 4 * t
            ops.append(Op(f"buffer_load_dwordx2 v[{a}:{a+1}], {vSTO}, {S_WS}, {sST} offen offset:{t*1024}{LD}", vm=("st", t)))
            ops.append(Op(f"buffer_load_dwordx2 v[{a+2}:{a+3}], {vSTO}, {S_WS}, {sST} offen offset:{t*1024+128}{LD}", vm=("st", t)))
        return ops
    def set_sA_x():
        em.e(f"s_mul_i32 {sA}, {sXI}, {X_SZ}"); em.e(f"s_mul_i32 {sT0}, {sTT2}, 20480")
        em.e(f"s_add_u32 {sA}, {sA}, {sT0}"); em.e(f"s_add_u32 {sA}, {sA}, {XB}")

    def phi_ops(acc, cs, nm, rs, rl, t1, t2):
        return [f"v_fmac_f32 v{acc}, v{nm}, v{cs}",
                f"v_mul_f32 v{t1}, v{acc}, v{rl}",
                (Op(f"v_exp_f32 v{t1}, v{t1} clamp"), 2),
                f"v_max_f32 v{acc}, 0, v{acc}",
                f"v_add_f32 v{t1}, {hex(EPS6)}, v{t1}",
                f"v_fma_f32 v{acc}, v{acc}, v{rs}, v{t1}"]
    def il(lists):
        out = []; k = 0
        while any(k < len(l) for l in lists):
            for l in lists:
                if k < len(l): out.append(l[k])
            k += 1
        return out
    def lin(ops):
        for o in ops:
            if isinstance(o, tuple): o = o[0]
            em.op(o)

    def K1():
        AX = lambda b, t: 80 * t + 4 * b
        SB = TMP
        NM4 = 226
        P1 = ACC
        set_sA_x()
        seg = Seg(); ws = WStream(ring, seg, "K1", SS=SS)
        fu = {}; lu = {}
        for b in range(20):
            for t in range(5):
                f = b * 5 + t; wr = ws.wreg(f)
                for tok in range(2):
                    d = P1 + 8 * t + 4 * tok
                    c = "0" if b == 0 else f"v[{d}:{d+3}]"
                    wl = [("w", "K1", b * 5 + 4)] if (t == 0 and tok == 0) else None
                    wv = [("a", b, 1)] if (t == 0 and tok == 0) else None
                    i = seg.mfma(f"v_mfma_f32_16x16x32_bf16 v[{d}:{d+3}], a[{AX(b,tok)}:{AX(b,tok)+3}], v[{wr}:{wr+3}], {c}", wvm=wv, wlg=wl)
                    if t == 0 and tok == 0: g0 = i
                    fu.setdefault(f, g0); lu[f] = i
        al = a_loads(2, 20, None, "a", AX)
        sl = stats_loads(SB)
        NPRE = 6
        pre = [o for o in al if o.vm is None or o.vm[1] < NPRE]
        idx = 0; pre = [];
        for k, o in enumerate(al):
            if o.vm is not None and o.vm[1] >= NPRE: idx = k; break
        if al[idx - 1].vm is None: idx -= 1
        pre = al[:idx]; rest = al[idx:]
        for o in sl: seg.put(0, o, 0)
        for o in pre: seg.put(0, o, 0)
        seg.put(0, "v_mov_b32 v250, 0", 0); seg.put(0, "v_mov_b32 v251, 0", 0); seg.put(0, "v_mov_b32 v252, 0", 0); seg.put(0, "v_mov_b32 v253, 0", 0)
        seg.put(0, f"v_add_u32 v254, {sW1K}, {vR2}", 0)
        seg.put(0, Op(f"ds_write_b128 v254, v[250:253] offset:{L_RED}", lg="z"), 0)
        ws.begin(0, ring.issued)
        fr = list(range(100))
        ws.schedule(fr, fu, lu)
        g = 1
        for o in rest:
            if o.vm is not None: g = max(g, (o.vm[1] - NPRE) * 10 + 1)
            g = seg.place(o, g, latest=(o.vm[1] - 3) * 10 if o.vm is not None else None)
        so = stats_ops(SB)
        for t in range(2):
            nm = SB + 8 + 2 * t
            so.append(Op(f"ds_write_b32 {vI4W}, v{nm} offset:{L_STAT + t*128}", lg="sw"))
            so.append(Op(f"ds_write_b32 {vI4W}, v{nm+1} offset:{L_STAT + t*128 + 64}", lg="sw"))
        for t in range(2):
            so.append(Op(f"ds_read_b128 v[{NM4+8*t}:{NM4+8*t+3}], {vG16W} offset:{L_STAT + t*128}", lg="sr", wlg=["sw"]))
            so.append(Op(f"ds_read_b128 v[{NM4+8*t+4}:{NM4+8*t+7}], {vG16W} offset:{L_STAT + t*128 + 64}", lg="sr"))
        for t in range(2):
            for r in range(4):
                so.append(Op(f"v_mul_f32 v{242+4*t+r}, {hex(LOG2E)}, v{NM4+8*t+4+r}", wlg=["sr"]))
        seg.stream(so, 40)
        seg.emit(em)
        stamp()
        em.e(f"s_cmp_lg_u32 {sLAYER}, 0"); em.e("s_cbranch_scc1 Lk1_nocs")
        svm = list(em.vm); slg = list(em.lg)
        for k in range(1, 10):
            for q in range(4): em.e(f"v_add_f32 v{CSVB+q}, v{CSVB+q}, v{CSVB+4*k+q}")
        for q in range(4):
            em.e(f"v_mov_b32 v{CSVB+4+q}, v{CSVB+q}"); em.e(f"v_mov_b32 v{CSVB+8+q}, v{CSVB+q}")
        for q in range(4):
            em.e(f"v_permlane32_swap_b32 v{CSVB+4+q}, v{CSVB+8+q}")
        em.e(f"s_cmp_eq_u32 {sW}, 0"); em.e("s_cselect_b64 vcc, -1, 0")
        for q in range(4):
            em.e(f"v_add_f32 v{CSVB+4+q}, v{CSVB+4+q}, v{CSVB+8+q}")
            em.e(f"v_cndmask_b32 v{CSVB+q}, v{CSVB+q}, v{CSVB+4+q}, vcc")
        em.e(f"s_cmp_eq_u32 {sW}, 0"); em.e(f"s_mov_b32 {sT0}, {L_CS3}"); em.e(f"s_cselect_b32 {sT0}, {L_CS1}, {sT0}"); em.e(f"s_cselect_b32 {sT1}, 32, 56")
        em.e(f"s_cmp_ge_u32 {sW}, 2"); em.e(f"s_cselect_b32 {sT1}, 0, {sT1}")
        em.e(f"v_add_u32 v254, {sT0}, {vR2}")
        em.e(f"v_lshrrev_b32 v255, 4, {vL16}")
        em.e(f"v_cmp_gt_u32 vcc, {sT1}, v255")
        em.e("s_and_saveexec_b64 s[34:35], vcc")
        em.e(f"ds_write_b128 v254, v[{CSVB}:{CSVB+3}]")
        em.e("s_mov_b64 exec, s[34:35]")
        for q in range(10):
            em.e(f"v_lshlrev_b32 v{RES+2*q}, 16, v{RLB+q}")
            em.e(f"v_and_b32 v{RES+2*q+1}, 0xffff0000, v{RLB+q}")
        em.raw("    s_waitcnt lgkmcnt(0)")
        em.e("s_barrier")
        em.label("Lk1_nocs")
        em.vm = svm; em.lg = []
        em.raw("    s_waitcnt lgkmcnt(0)")
        CS = 140
        for t in range(5):
            em.e(f"ds_read_b32 v{CS+t}, {vI4} offset:{L_CS1 + t*64}", lg="cs")
        KF = 148
        T1, T2 = 172, 173
        def nmr(tok, r): return NM4 + 8 * tok + r
        def rsr(tok, r): return NM4 + 8 * tok + 4 + r
        def rlr(tok, r): return 242 + 4 * tok + r
        em.wait(wlg=["cs"])
        XV = 176
        ops = []
        streams = []
        tmpc = [180]
        for (t, fr_) in ((0, KF), (1, KF + 4), (4, KF + 16)):
            for tok in range(2):
                for r in range(4):
                    a = P1 + 8 * t + 4 * tok + r
                    tt = 184 + (len(streams) % 8)
                    if t == 4:
                        s_ = [f"v_fmac_f32 v{a}, v{nmr(tok,r)}, v{CS+t}",
                              f"v_mul_f32 v{XV+4*tok+r}, v{a}, v{rsr(tok,r)}",
                              f"v_mul_f32 v{tt}, v{a}, v{rlr(tok,r)}",
                              f"v_exp_f32 v{tt}, v{tt} clamp",
                              f"v_max_f32 v{a}, 0, v{a}",
                              f"v_add_f32 v{tt}, {hex(EPS6)}, v{tt}",
                              f"v_fma_f32 v{a}, v{a}, v{rsr(tok,r)}, v{tt}"]
                    else:
                        s_ = [x[0] if isinstance(x, tuple) else x for x in phi_ops(a, CS + t, nmr(tok, r), rsr(tok, r), rlr(tok, r), tt, None)]
                    streams.append(s_)
        for k in range(0, len(streams), 4):
            lin(il(streams[k:k + 4]))
        for t in (2, 3):
            for tok in range(2):
                for r in range(4):
                    a = P1 + 8 * t + 4 * tok + r
                    em.e(f"v_fmac_f32 v{a}, v{nmr(tok,r)}, v{CS+t}")
                for r in range(4):
                    a = P1 + 8 * t + 4 * tok + r
                    em.e(f"v_mul_f32 v{a}, v{a}, v{rsr(tok,r)}")
        for k in range(8):
            em.e(f"v_cndmask_b32 v{XV+k}, v{XV+k}, 1.0, {sI8}")
        def pack(dst, src_tok0, src_tok1):
            em.e(f"v_cvt_pk_bf16_f32 v{dst}, v{src_tok0}, v{src_tok0+1}"); em.e(f"v_cvt_pk_bf16_f32 v{dst+1}, v{src_tok0+2}, v{src_tok0+3}")
            em.e(f"v_cvt_pk_bf16_f32 v{dst+2}, v{src_tok1}, v{src_tok1+1}"); em.e(f"v_cvt_pk_bf16_f32 v{dst+3}, v{src_tok1+2}, v{src_tok1+3}")
        K0f, K1f, V0f, V1f, XKf, XPf = KF, KF + 4, KF + 8, KF + 12, KF + 16, KF + 20
        pack(K0f, P1 + 0, P1 + 4); pack(K1f, P1 + 8, P1 + 12); pack(V0f, P1 + 16, P1 + 20); pack(V1f, P1 + 24, P1 + 28)
        pack(XKf, P1 + 32, P1 + 36); pack(XPf, XV, XV + 4)
        D = 184
        for k, (A_, B_) in enumerate([(K0f, V0f), (K1f, V1f), (XKf, V0f), (XKf, V1f), (K0f, XPf), (K1f, XPf), (XKf, XPf)]):
            em.e(f"v_mfma_f32_16x16x32_bf16 v[{D+4*k}:{D+4*k+3}], v[{A_}:{A_+3}], v[{B_}:{B_+3}], 0")
        D1, D2, D3, D4, D5, D6, D7 = [D + 4 * k for k in range(7)]
        for r in range(4):
            em.e(f"v_cndmask_b32 v{D5+r}, v{D5+r}, v{D6+r}, {sBIT2}")
            em.e(f"v_cndmask_b32 v{D3+r}, v{D3+r}, v{D4+r}, {sMK[1]}")
        for r in range(4):
            em.e(f"v_permlane32_swap_b32 v{D3+r}, v{D7+r}")
        for t, src in enumerate((D1, D2, D5, D3)):
            for r in range(4):
                em.e(f"ds_add_f32 {vL4}, v{src+r} offset:{L_RED + t*1024 + r*256}", lg="red")
        em.wait_all_lg()
        em.e("s_barrier")
        em.e(f"ds_read2st64_b32 v[{D}:{D+1}], {vL4W} offset0:{L_RED//256} offset1:{L_RED//256+1}", lg="rr")
        em.e(f"ds_read2st64_b32 v[{D+2}:{D+3}], {vL4W} offset0:{L_RED//256+2} offset1:{L_RED//256+3}", lg="rr")
        em.e(f"s_mul_i32 {sST}, {sLAYER}, {KVP_L}"); em.e(f"s_lshl_b32 {sST2}, {sM}, 16"); em.e(f"s_add_u32 {sST}, {sST}, {sST2}")
        em.e(f"s_add_u32 {sST}, {sST}, {KVP}"); em.e(f"s_add_u32 {sST}, {sST}, {sW1K}")
        em.e(f"s_lshl_b32 {sST2}, {sG}, 12"); em.e(f"s_add_u32 {sST2}, {sST2}, {sST}")
        em.e(f"buffer_store_dwordx4 v[{D}:{D+3}], {vL16}, {S_WS}, {sST2} offen sc1", vm="kvst", wlg=["rr"])
        stamp()
        P2 = ACC
        seg = Seg(); ws2 = WStream(ring, seg, "K1", SS=SS)
        fu = {}; lu = {}
        for b in range(20):
            for t in range(3):
                f = 100 + 3 * b + t; wr = ws2.wreg(f)
                for tok in range(2):
                    d = P2 + 8 * t + 4 * tok
                    c = "0" if b == 0 else f"v[{d}:{d+3}]"
                    wl = [("w", "K1", 100 + 3 * b + 2)] if (t == 0 and tok == 0) else None
                    i = seg.mfma(f"v_mfma_f32_16x16x32_bf16 v[{d}:{d+3}], v[{wr}:{wr+3}], a[{AX(b,tok)}:{AX(b,tok)+3}], {c}", wlg=wl)
                    if t == 0 and tok == 0: g0 = i
                    fu.setdefault(f, g0); lu[f] = i
        ws2.begin(0, 5 + NR)
        pub = [Op("s_barrier", wvm=["kvst"]),
               Op(f"s_add_u32 {sT0}, {sLAYER}, 1"),
               Op(f"v_mov_b32 v254, {sT0}"), Op("v_mov_b32 v255, 0"),
               Op(f"s_mov_b64 exec, {sFEX}"),
               Op(f"buffer_store_dword v254, v255, {S_WS}, {sKOWN} offen sc1", vm="flag"),
               Op("s_mov_b64 exec, -1")]
        ws2.schedule(list(range(100, 160)), fu, lu)
        seg.stream(pub, 30)
        CS4 = 140
        seg.stream([Op(f"ds_read_b128 v[{CS4+4*t}:{CS4+4*t+3}], {vG16} offset:{L_CS1 + (5+t)*64}", lg="cs4") for t in range(3)], 60)
        RLI = 152
        seg.stream([f"v_mul_f32 v{RLI+t}, {hex(LOG2E)}, v{SB+8+2*t+1}" for t in range(2)], 70)
        seg.emit(em)
        stamp()
        em.wait(wlg=["cs4"])
        streams = []
        for t in range(3):
            for tok in range(2):
                for r in range(4):
                    a = P2 + 8 * t + 4 * tok + r
                    tt = 184 + (len(streams) % 8)
                    streams.append([x[0] if isinstance(x, tuple) else x for x in phi_ops(a, CS4 + 4 * t + r, SB + 8 + 2 * tok, SB + 8 + 2 * tok + 1, RLI + tok, tt, None)])
        for k in range(0, len(streams), 4):
            lin(il(streams[k:k + 4]))
        F = 156
        for tok in range(2):
            qa = P2 + 4 * tok; qb = P2 + 8 + 4 * tok; qx = P2 + 16 + 4 * tok
            fa = F + 8 * tok; fb = fa + 4
            em.e(f"v_cvt_pk_bf16_f32 v{fa}, v{qa}, v{qa+1}"); em.e(f"v_cvt_pk_bf16_f32 v{fa+1}, v{qa+2}, v{qa+3}")
            em.e(f"v_cvt_pk_bf16_f32 v{fa+2}, v{qx}, v{qx+1}"); em.e(f"v_cvt_pk_bf16_f32 v{fa+3}, v{qx+2}, v{qx+3}")
            em.e(f"v_cvt_pk_bf16_f32 v{fb}, v{qb}, v{qb+1}"); em.e(f"v_cvt_pk_bf16_f32 v{fb+1}, v{qb+2}, v{qb+3}")
            em.e(f"v_mov_b32 v{fb+2}, v{fa+2}"); em.e(f"v_mov_b32 v{fb+3}, v{fa+3}")
        uid[0] += 1; u = uid[0]
        em.e(f"s_cmp_lg_u32 {sW}, 0")
        em.e(f"s_cbranch_scc1 Lkv{u}_o")
        em.e(f"s_add_u32 {sT0}, {sLAYER}, 1")
        poll(sKLINE, sT0, f"Lkv{u}_p")
        em.label(f"Lkv{u}_o")
        em.e("s_barrier")
        KL = 172
        for Gp in range(16):
            if Gp % 1 == 0: em.e(f"s_add_u32 {sST2}, {sST}, {Gp*4096}")
            em.e(f"buffer_load_dwordx4 v[{KL+4*Gp}:{KL+4*Gp+3}], {vL16}, {S_WS}, {sST2} offen sc1", vm=("kl", Gp))
        for Gp in range(1, 16):
            for q in range(4):
                em.e(f"v_add_f32 v{KL+q}, v{KL+q}, v{KL+4*Gp+q}", wvm=[("kl", Gp)] if q == 0 else None)
        em.e(f"v_cvt_pk_bf16_f32 v{KL}, v{KL}, v{KL+1}"); em.e(f"v_cvt_pk_bf16_f32 v{KL+1}, v{KL+2}, v{KL+3}")
        em.e(f"s_lshl_b32 {sT0}, {sW}, 9"); em.e(f"v_add_u32 v254, {sT0}, {vL8}")
        em.e(f"ds_write_b64 v254, v[{KL}:{KL+1}] offset:{L_KVB}", lg="kw")
        em.wait_all_lg()
        em.e("s_barrier")
        R_ = 176
        for t in range(4):
            em.e(f"ds_read_b64 v[{R_+2*t}:{R_+2*t+1}], {vL8} offset:{L_KVB + t*512}", lg="kr")
        em.e(f"v_xor_b32 v254, 256, {vL8}")
        em.e(f"ds_read_b64 v[{R_+8}:{R_+9}], v254 offset:{L_KVB + 3*512}", lg="kr")
        em.e(f"v_and_b32 v254, 0xfffffe7f ^ 0, {vL8}" if False else f"v_lshlrev_b32 v254, 3, {vG16}")
        em.e(f"v_and_b32 v254, 0x3ff, v254")
        em.e(f"v_add_u32 v254, 0x20000, v254")
        em.e(f"ds_read_b64 v[{R_+10}:{R_+11}], v254 offset:{L_KVB + 2*512}", lg="kr")
        em.e(f"ds_read_b64 v[{R_+12}:{R_+13}], v254 offset:{L_KVB + 2*512 + 32}", lg="kr")
        em.e("v_mov_b32 v255, 0x20000")
        em.e(f"ds_read_b64 v[{R_+14}:{R_+15}], v255 offset:{L_KVB + 3*512 + 32*8}", lg="kr")
        em.e(f"ds_read_b64 v[{R_+16}:{R_+17}], v255 offset:{L_KVB + 3*512 + 52*8}", lg="kr")
        em.wait_all_lg()
        t1, t2, t3, t4, t4x, za, zb, zxa, zxb = [R_ + 2 * k for k in range(9)]
        AF = 196
        Aa, Ab, Axa, Axb, Aza, Azb = [AF + 4 * k for k in range(6)]
        mg0, mg1, ma, mb, mga, mgb = sMK
        def cp(dst, src):
            em.e(f"v_mov_b32 v{dst}, v{src}"); em.e(f"v_mov_b32 v{dst+1}, v{src+1}")
        def mk(dst, src, m):
            em.e(f"v_cndmask_b32 v{dst}, 0, v{src}, {m}"); em.e(f"v_cndmask_b32 v{dst+1}, 0, v{src+1}, {m}")
        cp(Aa, t1); mk(Aa + 2, t4, mg0)
        cp(Ab, t2); mk(Ab + 2, t4, mg1)
        mk(Axa, t3, ma); mk(Axa + 2, t4x, mga)
        mk(Axb, t3, mb); mk(Axb + 2, t4x, mgb)
        cp(Aza, za); mk(Aza + 2, zxa, mg0)
        cp(Azb, zb); mk(Azb + 2, zxb, mg1)
        O = 100
        for tok in range(2):
            fa = F + 8 * tok; fb = fa + 4; o = O + 20 * tok
            em.e(f"v_mfma_f32_16x16x32_bf16 v[{o+12}:{o+15}], v[{Aza}:{Aza+3}], v[{fa}:{fa+3}], 0")
            em.e(f"v_mfma_f32_16x16x32_bf16 v[{o+16}:{o+19}], v[{Azb}:{Azb+3}], v[{fb}:{fb+3}], 0")
            em.e(f"v_mfma_f32_16x16x32_bf16 v[{o}:{o+3}], v[{Aa}:{Aa+3}], v[{fa}:{fa+3}], 0")
            em.e(f"v_mfma_f32_16x16x32_bf16 v[{o+4}:{o+7}], v[{Ab}:{Ab+3}], v[{fb}:{fb+3}], 0")
            em.e(f"v_mfma_f32_16x16x32_bf16 v[{o+8}:{o+11}], v[{Axa}:{Axa+3}], v[{fa}:{fa+3}], 0")
            em.e(f"v_mfma_f32_16x16x32_bf16 v[{o+8}:{o+11}], v[{Axb}:{Axb+3}], v[{fb}:{fb+3}], v[{o+8}:{o+11}]")
        em.e(f"s_mul_i32 {sST}, {sLAYER}, {O_SZ}"); em.e(f"s_mul_i32 {sST2}, {sTT2}, 20480"); em.e(f"s_add_u32 {sST}, {sST}, {sST2}")
        em.e(f"s_add_u32 {sST}, {sST}, {OB}")
        em.e(f"s_lshl_b32 {sST2}, {sM}, 10"); em.e(f"s_add_u32 {sST2}, {sST2}, {sST}")
        for tok in range(2):
            o = O + 20 * tok
            em.e(f"v_add_f32 v{o+12}, {hex(EPS6)}, v{o+12}"); em.e(f"v_add_f32 v{o+16}, {hex(EPS6)}, v{o+16}")
            em.e(f"v_rcp_f32 v{o+12}, v{o+12}"); em.e(f"v_rcp_f32 v{o+16}, v{o+16}")
            em.e(f"v_cndmask_b32 v{o+13}, v{o+12}, v{o+16}, {sG3}")
            for r in range(4):
                em.e(f"v_mul_f32 v{o+r}, v{o+r}, v{o+12}"); em.e(f"v_mul_f32 v{o+4+r}, v{o+4+r}, v{o+16}")
                em.e(f"v_mul_f32 v{o+8+r}, v{o+8+r}, v{o+13}")
            em.e(f"v_cvt_pk_bf16_f32 v{o}, v{o}, v{o+1}"); em.e(f"v_cvt_pk_bf16_f32 v{o+1}, v{o+2}, v{o+3}")
            em.e(f"v_cvt_pk_bf16_f32 v{o+2}, v{o+4}, v{o+5}"); em.e(f"v_cvt_pk_bf16_f32 v{o+3}, v{o+6}, v{o+7}")
            em.e(f"v_cvt_pk_bf16_f32 v{o+8}, v{o+8}, v{o+9}"); em.e(f"v_cvt_pk_bf16_f32 v{o+9}, v{o+10}, v{o+11}")
            va = vL16 if tok == 0 else vL16B
            em.e(f"buffer_store_dwordx4 v[{o}:{o+3}], {va}, {S_WS}, {sST2} offen{STO}", vm="ost")
            if tok == 1: em.e(f"s_add_u32 {sST}, {sST}, 20480")
            em.e(f"s_mov_b64 exec, {sG23}")
            em.e(f"buffer_store_dwordx2 v[{o+8}:{o+9}], {vOREM}, {S_WS}, {sST} offen{STO}", vm="ost")
            em.e("s_mov_b64 exec, -1")

    def K24(ph, nblk, final_possible):
        AX = lambda b, t: 4 * b
        if ph == "K2":
            em.e(f"s_mul_i32 {sA}, {sLAYER}, {O_SZ}"); em.e(f"s_mul_i32 {sT0}, {sTT1}, 20480"); em.e(f"s_add_u32 {sA}, {sA}, {sT0}"); em.e(f"s_add_u32 {sA}, {sA}, {OB}")
        else:
            em.e(f"s_mul_i32 {sA}, {sLAYER}, {ACT_SZ}"); em.e(f"s_mul_i32 {sT0}, {sTT1}, {54*1024}"); em.e(f"s_add_u32 {sA}, {sA}, {sT0}"); em.e(f"s_add_u32 {sA}, {sA}, {ACT}")
        seg = Seg(); ws = WStream(ring, seg, ph, SS=SS, LA=6)
        fu = {}; lu = {}
        for b in range(nblk):
            for t in range(5):
                f = b * 5 + t; wr = ws.wreg(f); d = RES + 4 * t
                wv = [("a", b, 0)] if t == 0 else None
                i = seg.mfma(f"v_mfma_f32_16x16x32_bf16 v[{d}:{d+3}], v[{wr}:{wr+3}], a[{4*b}:{4*b+3}], v[{d}:{d+3}]", wvm=wv, wlg=[("w", ph, b * 5 + 4)] if t == 0 else None)
                if t == 0: g0 = i
                fu[f] = g0; lu[f] = i
        al = a_loads(1, nblk, None, "a", AX)
        NPRE = 12
        idx = len(al)
        for k, o in enumerate(al):
            if o.vm is not None and o.vm[1] >= NPRE: idx = k; break
        if idx < len(al) and al[idx - 1].vm is None: idx -= 1
        for o in al[:idx]: seg.put(0, o, 0)
        ws.begin(0, ring.issued)
        ws.schedule(list(range(nblk * 5)), fu, lu)
        g = 1
        for o in al[idx:]:
            if o.vm is not None: g = max(g, (o.vm[1] - NPRE) * 5 + 1)
            g = seg.place(o, g, cap=3, latest=(o.vm[1] - 6) * 5 if o.vm is not None else None)
        seg.emit(em)
        stamp()
        P = TMP
        for t in range(5):
            em.e(f"v_cvt_pk_bf16_f32 v{P+2*t}, v{RES+4*t}, v{RES+4*t+1}"); em.e(f"v_cvt_pk_bf16_f32 v{P+2*t+1}, v{RES+4*t+2}, v{RES+4*t+3}")
        uid[0] += 1; u = uid[0]
        if final_possible:
            em.e(f"s_cmp_eq_u32 {sLAYER}, 1"); em.e(f"s_cbranch_scc1 Lfin{u}")
        em.e(f"s_add_u32 {sXI}, {sXI}, 1")
        em.e(f"s_mul_i32 {sST}, {sXI}, {X_SZ}"); em.e(f"s_mul_i32 {sT0}, {sTT1}, 20480"); em.e(f"s_add_u32 {sST}, {sST}, {sT0}"); em.e(f"s_add_u32 {sST}, {sST}, {XB}")
        em.e(f"s_lshr_b32 {sT0}, {sC8}, 1"); em.e(f"s_mul_i32 {sT0}, {sT0}, 5")
        em.e(f"s_lshl_b32 {sT1}, {sODD}, 1"); em.e(f"s_add_u32 {sT1}, {sT1}, {sT0}"); em.e(f"s_lshl_b32 {sT1}, {sT1}, 10"); em.e(f"s_add_u32 {sT1}, {sT1}, {sST}")
        em.e(f"buffer_store_dwordx4 v[{P}:{P+3}], {vL16}, {S_WS}, {sT1} offen{STO}", vm="xst")
        em.e(f"buffer_store_dwordx4 v[{P+4}:{P+7}], {vL16}, {S_WS}, {sT1} offen offset:1024{STO}", vm="xst")
        em.e(f"s_add_u32 {sT0}, {sT0}, 4"); em.e(f"s_lshl_b32 {sT0}, {sT0}, 10"); em.e(f"s_add_u32 {sT0}, {sT0}, {sST}")
        em.e(f"s_lshl_b32 {sT1}, {sODD}, 3"); em.e(f"s_add_u32 {sT0}, {sT0}, {sT1}")
        em.e(f"buffer_store_dwordx2 v[{P+8}:{P+9}], {vL16}, {S_WS}, {sT0} offen{STO}", vm="xst")
        a, b_, x, y = 224, 225, 226, 227
        em.e(f"v_add_f32 v{a}, v{RES}, v{RES+1}"); em.e(f"v_mul_f32 v{b_}, v{RES}, v{RES}"); em.e(f"v_fmac_f32 v{b_}, v{RES+1}, v{RES+1}")
        em.e(f"v_add_f32 v{x}, v{RES+2}, v{RES+3}"); em.e(f"v_mul_f32 v{y}, v{RES+2}, v{RES+2}"); em.e(f"v_fmac_f32 v{y}, v{RES+3}, v{RES+3}")
        for k in range(4, 20, 2):
            em.e(f"v_add_f32 v{a}, v{a}, v{RES+k}"); em.e(f"v_fmac_f32 v{b_}, v{RES+k}, v{RES+k}")
            em.e(f"v_add_f32 v{x}, v{x}, v{RES+k+1}"); em.e(f"v_fmac_f32 v{y}, v{RES+k+1}, v{RES+k+1}")
        em.e(f"v_add_f32 v{a}, v{a}, v{x}"); em.e(f"v_add_f32 v{b_}, v{b_}, v{y}")
        for sw in ("v_permlane32_swap_b32", "v_permlane16_swap_b32"):
            em.e(f"v_mov_b32 v{x}, v{a}"); em.e(f"v_mov_b32 v{y}, v{b_}")
            em.e(f"{sw} v{a}, v{x}"); em.e(f"{sw} v{b_}, v{y}")
            em.e(f"v_add_f32 v{a}, v{a}, v{x}"); em.e(f"v_add_f32 v{b_}, v{b_}, v{y}")
        em.e(f"s_mul_i32 {sST}, {sXI}, {ST_SZ}"); em.e(f"s_lshl_b32 {sT0}, {sTT1}, 10"); em.e(f"s_add_u32 {sST}, {sST}, {sT0}")
        em.e(f"s_lshl_b32 {sT0}, {sC8}, 7"); em.e(f"s_add_u32 {sST}, {sST}, {sT0}"); em.e(f"s_add_u32 {sST}, {sST}, {ST}")
        em.e(f"s_mov_b64 exec, {sMK[0]}")
        em.e(f"buffer_store_dwordx2 v[{a}:{a+1}], {vSTO}, {S_WS}, {sST} offen{STO}", vm="xst")
        em.e("s_mov_b64 exec, -1")
        if final_possible:
            em.e(f"s_branch Lfin{u}_x")
            em.label(f"Lfin{u}")
            em.e(f"s_mul_i32 {sST}, {sTT1}, {16*1280}"); em.e(f"s_mul_i32 {sT0}, {sC8}, 160"); em.e(f"s_add_u32 {sST}, {sST}, {sT0}")
            for t in range(5):
                em.e(f"buffer_store_dwordx2 v[{P+2*t}:{P+2*t+1}], {vOUT}, {S_OUT}, {sST} offen offset:{t*32}")
            em.raw("    s_waitcnt vmcnt(0)")
            em.e("s_endpgm")
            em.label(f"Lfin{u}_x")

    def K3():
        AX = lambda b, t: 80 * t + 4 * b
        SB = TMP
        set_sA_x()
        seg = Seg(); ws = WStream(ring, seg, "K3", SS=SS)
        fu = {}; lu = {}
        pend = []
        def acc(t, mat, tok): return ACC + ((2 * t + mat) * 2 + tok) * 4
        for p in range(4):
            ts = (2 * p, 2 * p + 1) if p < 3 else (6,)
            for b in range(20):
                first = True
                for t in ts:
                    for mat in range(2):
                        f = pw3_index(b, t, mat); wr = ws.wreg(f)
                        for tok in range(2):
                            d = acc(t, mat, tok)
                            c = "0" if b == 0 else f"v[{d}:{d+3}]"
                            wl = [("w", "K3", pw3_index(b, ts[-1], 1))] if first else None
                            wv = [("a", b, 1)] if (p == 0 and first) else None
                            i = seg.mfma(f"v_mfma_f32_16x16x32_bf16 v[{d}:{d+3}], v[{wr}:{wr+3}], a[{AX(b,tok)}:{AX(b,tok)+3}], {c}", wvm=wv, wlg=wl)
                            if first: g0 = i
                            first = False
                            fu.setdefault(f, g0); lu[f] = i
            pend.append(seg.n())
        al = a_loads(2, 20, None, "a", AX)
        sl = stats_loads(SB)
        NPRE = 6
        idx = 0
        for k, o in enumerate(al):
            if o.vm is not None and o.vm[1] >= NPRE: idx = k; break
        if al[idx - 1].vm is None: idx -= 1
        for o in sl: seg.put(0, o, 0)
        for o in al[:idx]: seg.put(0, o, 0)
        ws.begin(0, ring.issued)
        ws.schedule(list(range(280)), fu, lu)
        g = 1
        for o in al[idx:]:
            if o.vm is not None: g = max(g, (o.vm[1] - NPRE) * 8 + 1)
            g = seg.place(o, g, latest=(o.vm[1] - 3) * 8 if o.vm is not None else None)
        so = stats_ops(SB)
        for t in range(2):
            so.append(f"v_mul_f32 v{SB+4*t}, {hex(LOG2E | 0x80000000)}, v{SB+8+2*t+1}")
        seg.stream(so, 40)
        so = [f"s_mul_i32 {sST}, {sLAYER}, {ACT_SZ}", f"s_mul_i32 {sST2}, {sTT2}, {54*1024}", f"s_add_u32 {sST}, {sST}, {sST2}",
              f"s_add_u32 {sST}, {sST}, {ACT}", f"s_lshl_b32 {sST2}, {sM}, 10", f"s_add_u32 {sST2}, {sST2}, {sST}"]
        seg.stream(so, 100)
        CSR = 226
        ET = 242
        def epi(p):
            ts = (2 * p, 2 * p + 1) if p < 3 else (6,)
            ops = []
            for k, t in enumerate(ts):
                for mat in range(2):
                    r = CSR + 8 * k + 4 * mat
                    ops.append(Op(f"ds_read_b128 v[{r}:{r+3}], {vG16} offset:{L_CS3 + (2*t+mat)*64}", lg=("c3", p)))
            for tok in range(2):
                nm = SB + 8 + 2 * tok; c1 = SB + 4 * tok; kk = SB + 4 * tok + 1
                streams = []
                for k, t in enumerate(ts):
                    for r in range(4):
                        g_ = acc(t, 0, tok) + r; u_ = acc(t, 1, tok) + r
                        e_ = ET + (len(streams) % 4)
                        streams.append([Op(f"v_fmac_f32 v{g_}, v{nm}, v{CSR+8*k+r}", wlg=[("c3", p)]),
                                        f"v_fmac_f32 v{u_}, v{nm}, v{CSR+8*k+4+r}",
                                        f"v_mul_f32 v{e_}, v{g_}, v{c1}",
                                        (Op(f"v_exp_f32 v{e_}, v{e_}"), 2),
                                        f"v_mul_f32 v{g_}, v{g_}, v{u_}",
                                        f"v_fma_f32 v{e_}, v{e_}, v{kk}, v{kk}",
                                        (Op(f"v_rcp_f32 v{e_}, v{e_}"), 2),
                                        f"v_mul_f32 v{g_}, v{g_}, v{e_}"])
                for k in range(0, len(streams), 4):
                    ops += il(streams[k:k + 4])
                PK = 250
                if p < 3:
                    a0 = acc(ts[0], 0, tok); a1 = acc(ts[1], 0, tok)
                    PKr = acc(ts[0], 1, tok)
                    ops += [f"v_cvt_pk_bf16_f32 v{PKr}, v{a0}, v{a0+1}", f"v_cvt_pk_bf16_f32 v{PKr+1}, v{a0+2}, v{a0+3}",
                            f"v_cvt_pk_bf16_f32 v{PKr+2}, v{a1}, v{a1+1}", f"v_cvt_pk_bf16_f32 v{PKr+3}, v{a1+2}, v{a1+3}"]
                    va = vL16
                    off = p * 16384 + tok * 54 * 1024
                    ops.append(Op(f"s_add_u32 {sT0}, {sST2}, {off}"))
                    ops.append(Op(f"buffer_store_dwordx4 v[{PKr}:{PKr+3}], {va}, {S_WS}, {sT0} offen{STO}", vm="ast"))
                else:
                    a0 = acc(6, 0, tok); PKr = acc(6, 1, tok)
                    ops += [f"v_cvt_pk_bf16_f32 v{PKr}, v{a0}, v{a0+1}", f"v_cvt_pk_bf16_f32 v{PKr+1}, v{a0+2}, v{a0+3}"]
                    ops.append(Op(f"s_add_u32 {sT0}, {sST}, {tok*54*1024}"))
                    ops.append(Op(f"s_mov_b64 exec, {sG012}"))
                    ops.append(Op(f"buffer_store_dwordx2 v[{PKr}:{PKr+1}], {vACT6}, {S_WS}, {sT0} offen{STO}", vm="ast"))
                    ops.append(Op("s_mov_b64 exec, -1"))
            return ops
        ge = 0
        for p in range(3):
            ge = seg.stream(epi(p), max(pend[p] + 2, ge))
        seg.emit(em)
        stamp()
        lin(epi(3))

    em.label("Lm_layer")
    em.vm = list(head_vm); em.lg = []
    ring.filled = -1
    em.e(f"s_cmp_eq_u32 {sLAYER}, 1"); em.e(f"s_cselect_b32 s14, 0, {WS_END}")
    stamp()
    def finish_if(p):
        if stop <= 8 and (stop - 1) % 4 + 1 == p:
            lay = (stop - 1) // 4
            em.e(f"s_cmp_lg_u32 {sLAYER}, {lay}"); em.e(f"s_cbranch_scc1 Lstop{p}")
            em.raw("    s_waitcnt vmcnt(0) lgkmcnt(0)")
            em.e("s_endpgm")
            em.label(f"Lstop{p}")
    K1(); stamp(); finish_if(1)
    transition(1, 1, 9); stamp()
    K24("K2", 20, False); stamp(); finish_if(2)
    transition(2, 2, 16); stamp()
    K3(); stamp(); finish_if(3)
    transition(4, 4, 34); stamp()
    K24("K4", 54, True); stamp(); finish_if(4)
    transition(5, 5, 53); stamp()
    assert ring.issued == 62
    em.e(f"s_add_u32 {sLAYER}, {sLAYER}, 1"); em.e(f"s_add_u32 {sSTEP}, {sSTEP}, 5")
    em.e("s_branch Lm_layer")
    em.label("Lm_done")
    em.e("s_endpgm")
    return em.lines


def build(opt):
    pl = gen_prep("prep_kernel")
    pl, n1 = fix_hazards(pl)
    ml = gen_main(opt)
    ml, n2 = fix_hazards(ml)
    ref = open("interleave_layers__linear_attn_block__swiglu_ffn__prompt.s.ref").read() if opt.get("hdr", False) else ""
    hdr = [l for l in ref.split("\n") if l.startswith(";") and "@launch" not in l and "Override launch" not in l and "grid=ceil" not in l]
    out = hdr + [f"; @launch kernel=prep_kernel grid=({PREP_WGS},1,1) block=(256,1,1) lds={PREP_LDS}",
           f"; @launch kernel={KNAME} grid=(256,1,1) block=(256,1,1) lds={MAIN_LDS}",
           '.amdgcn_target "amdgcn-amd-amdhsa--gfx950"', ".text",
           ".globl prep_kernel", ".p2align 8", ".type prep_kernel,@function"] + pl + \
          [f".globl {KNAME}", ".p2align 8", f".type {KNAME},@function"] + ml + \
          [kdesc("prep_kernel", 112, 112), kdesc(KNAME, 512, 256, 100)]
    sys.stderr.write(f"nops inserted: prep {n1} main {n2}; main lines {len(ml)}\n")
    return "\n".join(out)


if __name__ == "__main__":
    opt = {}
    for a in sys.argv[1:]:
        k, v = a.split("="); opt[k] = int(v)
    print(build(opt))
```

```python
from asmlib import *
from layout import *

def magic(d, maxv):
    for sh in range(1, 32):
        m = -(-(1 << sh) // d)
        if m * maxv >= (1 << 32): break
        if all((x * m) >> sh == x // d for x in range(maxv)): return m, sh
    raise Exception("no magic")
def sdiv(em, dst, src, d, maxv):
    m, sh = magic(d, maxv)
    em.e(f"s_mul_i32 {dst}, {src}, {m}")
    em.e(f"s_lshr_b32 {dst}, {dst}, {sh}")

PREP_WGS = 259
PREP_LDS = 65536
CS1_N = 20
CS3_N = 10
def gen_prep(name, stamp=False):
    em = Em()
    em.label(name)
    if stamp:
        em.e("s_memrealtime s[60:61]"); em.e("s_load_dwordx2 s[62:63], s[0:1], 64")
        em.raw("    s_waitcnt lgkmcnt(0)")
        em.e("s_cmp_lg_u32 s2, 0"); em.e("s_cbranch_scc1 Lp_ns")
        em.e("v_mov_b32 v110, s60"); em.e("v_mov_b32 v111, 0")
        em.e("global_store_dword v111, v110, s[62:63]")
        em.label("Lp_ns")
    em.e(f"s_cmp_ge_u32 s2, {PREP_WGS}")
    em.e("s_cbranch_scc1 Lp_done")
    em.e("s_load_dwordx4 s[4:7], s[0:1], 0")
    em.e("s_load_dwordx2 s[8:9], s[0:1], 16")
    em.e("s_load_dwordx4 s[12:15], s[0:1], 32")
    em.e("s_load_dwordx2 s[10:11], s[0:1], 48")
    em.e("s_load_dwordx2 s[16:17], s[0:1], 72")
    em.e("v_lshrrev_b32 v2, 6, v0")
    em.e("v_and_b32 v1, 63, v0")
    em.e("v_readfirstlane_b32 s18, v2")
    em.e("v_lshlrev_b32 v3, 4, v1")
    em.e("v_lshrrev_b32 v4, 2, v1")
    em.e("v_and_b32 v5, 3, v1")
    for i in range(4): em.e(f"v_mov_b32 v{8+i}, 0x3f803f80")
    em.e("s_waitcnt lgkmcnt(0)")
    em.e("s_mov_b32 s20, s16"); em.e("s_mov_b32 s21, s17"); em.e(f"s_mov_b32 s22, {WS_END}"); em.e("s_mov_b32 s23, 0x20000")
    em.e("s_cmp_ge_u32 s2, 258"); em.e("s_cbranch_scc1 Lp_zero")
    em.e("s_cmp_ge_u32 s2, 194"); em.e("s_cbranch_scc1 Lp_x")
    em.e("s_cmp_ge_u32 s2, 140"); em.e("s_cbranch_scc1 Lp_wd")
    em.e("s_cmp_ge_u32 s2, 120"); em.e("s_cbranch_scc1 Lp_wo")
    em.e("s_cmp_ge_u32 s2, 40"); em.e("s_cbranch_scc1 Lp_wgu")

    def src_srd(lo, hi, size):
        em.e(f"s_mov_b32 s24, s{lo}"); em.e(f"s_mov_b32 s25, s{hi}"); em.e(f"s_mov_b32 s26, {size}"); em.e("s_mov_b32 s27, 0x20000")
    def set_exec(nl):
        em.e(f"s_mov_b64 exec, {hex((1 << nl) - 1)}" if nl <= 32 else f"s_mov_b32 exec_lo, -1")
        if nl > 32: em.e(f"s_mov_b32 exec_hi, {hex((1 << (nl - 32)) - 1)}")
    def dma(m0_s, m0_imm, so_s, so_imm):
        em.e(f"s_add_u32 m0, {m0_s}, {m0_imm}")
        em.e(f"s_add_u32 s29, {so_s}, {so_imm}")
        em.e("buffer_load_dwordx4 v3, s[24:27], s29 offen lds", vm="dma")
    def sync():
        em.e("s_mov_b64 exec, -1")
        em.wait_all_vm()
        em.e("s_barrier")
    def xt_half(dst, u_s, half_s):
        em.e(f"s_mov_b32 {dst}, 0x47520"); em.e(f"s_cmp_eq_u32 {half_s}, 0"); em.e(f"s_cselect_b32 {dst}, {dst}, 0x98631")
        em.e(f"s_lshl_b32 s46, {u_s}, 2"); em.e(f"s_lshr_b32 {dst}, {dst}, s46"); em.e(f"s_and_b32 {dst}, {dst}, 15")
    def cs_store(acc, voff, so):
        em.e("s_mov_b64 exec, s[40:41]")
        em.e(f"buffer_store_dwordx4 v[{acc}:{acc+3}], {voff}, s[20:23], {so} offen", vm="st")
        em.e("s_mov_b64 exec, -1")
    def cs_prep():
        em.e("s_mov_b32 s40, 0x00010001"); em.e("s_mov_b32 s41, 0x00010001")
        em.e("v_and_b32 v7, 0x30, v1")

    P = 3840; PIT = 1952
    src_srd(6, 7, 640 * 1920 * 2)
    em.e("s_lshr_b32 s30, s2, 1")
    em.e("s_and_b32 s31, s2, 1")
    sdiv(em, "s32", "s30", 5, 20)
    em.e("s_mul_i32 s33, s32, 5"); em.e("s_sub_u32 s33, s30, s33")
    em.e("s_lshr_b32 s34, s18, 1")
    xt_half("s35", "s33", "s34")
    em.e("s_mul_i32 s36, s32, 10"); em.e("s_add_u32 s35, s35, s36"); em.e("s_lshl_b32 s35, s35, 4")
    em.e("s_and_b32 s36, s18, 1"); em.e("s_lshl_b32 s36, s36, 3"); em.e("s_add_u32 s35, s35, s36")
    em.e(f"s_mul_i32 s35, s35, {P}"); em.e("s_mul_i32 s36, s31, 640"); em.e("s_add_u32 s35, s35, s36")
    em.e(f"s_mul_i32 s37, s18, {8*PIT}")
    set_exec(40)
    for i in range(8):
        for sg_ in range(3):
            dma("s37", i * PIT + sg_ * 640, "s35", i * P + sg_ * 1280)
    sync()
    em.e(f"v_mul_u32_u24 v6, {PIT}, v4"); em.e("s_mul_i32 s36, s18, 160"); em.e("v_add_u32 v6, s36, v6")
    em.e("v_lshlrev_b32 v16, 3, v5"); em.e("v_add_u32 v12, v6, v16")
    em.e("v_and_b32 v16, 1, v5"); em.e("v_mul_u32_u24 v16, 40, v16"); em.e("v_add_u32 v13, v6, v16")
    em.e("v_lshrrev_b32 v16, 1, v5"); em.e("v_mul_u32_u24 v16, 640, v16"); em.e("v_add_u32 v14, v13, v16")
    cs_prep()
    em.e("s_lshl_b32 s36, s31, 3"); em.e("s_lshl_b32 s38, s18, 1"); em.e("s_add_u32 s36, s36, s38")
    em.e(f"s_mul_i32 s38, s36, {PW1_SZ}"); em.e(f"s_add_u32 s38, s38, {PW1}")
    em.e("s_mul_i32 s39, s30, 5120"); em.e("s_add_u32 s39, s39, s38")
    em.e("s_mul_i32 s42, s30, 3072"); em.e("s_add_u32 s42, s42, s38"); em.e("s_add_u32 s42, s42, 102400")
    em.e("s_lshl_b32 s43, s30, 4"); em.e("s_add_u32 s43, s43, s36"); em.e("s_lshl_b32 s43, s43, 9"); em.e(f"s_add_u32 s43, s43, {CS1}")
    tiles = [(12, 640), (12, 680), (12, 1280), (12, 1320), (14, 672), (12, 0), (12, 40), (13, 32)]
    for e in range(2):
        for t, (br, off) in enumerate(tiles):
            r = 16 + 4 * (e * 8 + t)
            for h in range(2):
                em.e(f"ds_read_b64_tr_b16 v[{r+2*h}:{r+2*h+1}], v{br} offset:{h*16*PIT + e*80 + off}", lg=(e, t))
    for e in range(2):
        for t in range(8):
            r = 16 + 4 * (e * 8 + t)
            base = "s39" if t < 5 else "s42"
            imm = (t if t < 5 else t - 5) * 1024 + e * PW1_SZ
            em.e(f"s_add_u32 s29, {base}, {imm}")
            em.e(f"buffer_store_dwordx4 v[{r}:{r+3}], v3, s[20:23], s29 offen", vm="st", wlg=[(e, t)])
            a = 96 + 4 * ((e * 8 + t) % 4)
            em.e(f"v_mfma_f32_16x16x32_bf16 v[{a}:{a+3}], v[{r}:{r+3}], v[8:11], 0")
            if (e * 8 + t) % 4 == 3:
                for q in range(4):
                    tt = t - 3 + q
                    em.e(f"s_add_u32 s29, s43, {(e*8+tt)*64}")
                    cs_store(96 + 4 * q, "v7", "s29")
    em.e("s_endpgm")

    em.label("Lp_wgu")
    em.vm = []; em.lg = []
    P = 3456; PIT = 928
    em.e("s_sub_u32 s30, s2, 40")
    em.e("s_cmp_ge_u32 s30, 40")
    em.e("s_cbranch_scc1 Lp_wu")
    src_srd(12, 13, 640 * 1728 * 2)
    em.e("s_mov_b32 s34, 0")
    em.e("s_branch Lp_wgu2")
    em.label("Lp_wu")
    src_srd(14, 15, 640 * 1728 * 2)
    em.e("s_mov_b32 s34, 1"); em.e("s_sub_u32 s30, s30, 40")
    em.label("Lp_wgu2")
    em.e("s_lshr_b32 s31, s30, 2")
    em.e("s_and_b32 s32, s30, 3")
    em.e("s_lshr_b32 s33, s18, 1"); em.e("s_lshl_b32 s35, s31, 1"); em.e("s_add_u32 s33, s33, s35")
    sdiv(em, "s35", "s33", 5, 20)
    em.e("s_mul_i32 s36, s35, 5"); em.e("s_sub_u32 s36, s33, s36")
    em.e("s_and_b32 s37, s18, 1")
    xt_half("s38", "s36", "s37")
    em.e("s_mul_i32 s35, s35, 10"); em.e("s_add_u32 s38, s38, s35"); em.e("s_lshl_b32 s38, s38, 4")
    em.e(f"s_mul_i32 s38, s38, {P}"); em.e("s_mul_i32 s35, s32, 864"); em.e("s_add_u32 s38, s38, s35")
    em.e(f"s_mul_i32 s37, s18, {16*PIT}")
    set_exec(54)
    for i in range(16):
        dma("s37", i * PIT, "s38", i * P)
    sync()
    em.e(f"v_mul_u32_u24 v6, {PIT}, v4"); em.e("s_mul_i32 s36, s18, 216"); em.e("v_add_u32 v6, s36, v6")
    em.e("v_lshlrev_b32 v16, 3, v5"); em.e("v_add_u32 v12, v6, v16")
    cs_prep()
    em.e("s_lshl_b32 s36, s32, 2"); em.e("s_add_u32 s36, s36, s18")
    em.e(f"s_mul_i32 s38, s36, {PW3_SZ}"); em.e(f"s_add_u32 s38, s38, {PW3}")
    em.e("s_lshl_b32 s39, s34, 10"); em.e("s_add_u32 s38, s38, s39")
    em.e("s_lshl_b32 s39, s31, 13"); em.e("s_add_u32 s43, s38, s39")
    em.e("s_lshl_b32 s39, s31, 12"); em.e("s_add_u32 s44, s38, s39"); em.e(f"s_add_u32 s44, s44, {240*1024}")
    em.e("s_lshl_b32 s45, s31, 4"); em.e("s_add_u32 s45, s45, s36"); em.e("s_mul_i32 s45, s45, 14"); em.e("s_add_u32 s45, s45, s34")
    em.e("s_lshl_b32 s45, s45, 6"); em.e(f"s_add_u32 s45, s45, {CS3}")
    for t in range(7):
        for k in range(2):
            r = 16 + 4 * (t * 2 + k)
            for h in range(2):
                em.e(f"ds_read_b64_tr_b16 v[{r+2*h}:{r+2*h+1}], v12 offset:{k*32*PIT + h*16*PIT + t*32}", lg=(t, k))
    for t in range(7):
        a = 96 + 4 * (t % 4)
        for k in range(2):
            r = 16 + 4 * (t * 2 + k)
            if t < 6: base, imm = "s43", (t >> 1) * 81920 + k * 4096 + 2 * (t & 1) * 1024
            else: base, imm = "s44", k * 2048
            em.e(f"s_add_u32 s29, {base}, {imm}")
            em.e(f"buffer_store_dwordx4 v[{r}:{r+3}], v3, s[20:23], s29 offen", vm="st", wlg=[(t, k)])
            em.e(f"v_mfma_f32_16x16x32_bf16 v[{a}:{a+3}], v[{r}:{r+3}], v[8:11], {'0' if k==0 else f'v[{a}:{a+3}]'}")
        if t in (3, 6):
            for tt in range(t - 3 if t == 3 else 4, t + 1):
                em.e(f"s_add_u32 s29, s45, {2*tt*64}")
                cs_store(96 + 4 * (tt % 4), "v7", "s29")
    em.e("s_endpgm")

    def od_tail(dst_base, dst_sz, b_s):
        PIT = 1312
        sync()
        em.e(f"v_mul_u32_u24 v6, {PIT}, v4"); em.e("s_mul_i32 s36, s18, 320"); em.e("v_add_u32 v6, s36, v6")
        em.e("v_lshlrev_b32 v16, 3, v5"); em.e("v_add_u32 v12, v6, v16")
        em.e("s_lshl_b32 s36, s18, 1")
        em.e(f"s_mul_i32 s38, s36, {dst_sz}"); em.e(f"s_add_u32 s38, s38, {dst_base}")
        em.e(f"s_mul_i32 s39, {b_s}, 5120"); em.e("s_add_u32 s38, s38, s39")
        for e in range(2):
            for t in range(5):
                r = 16 + 4 * (e * 5 + t)
                for h in range(2):
                    em.e(f"ds_read_b64_tr_b16 v[{r+2*h}:{r+2*h+1}], v12 offset:{h*16*PIT + e*160 + t*32}", lg=(e, t))
        for e in range(2):
            for t in range(5):
                r = 16 + 4 * (e * 5 + t)
                em.e(f"s_add_u32 s29, s38, {e*dst_sz + t*1024}")
                em.e(f"buffer_store_dwordx4 v[{r}:{r+3}], v3, s[20:23], s29 offen", vm="st", wlg=[(e, t)])
        em.e("s_endpgm")

    em.label("Lp_wo")
    em.vm = []; em.lg = []
    P = 1280; PIT = 1312
    src_srd(8, 9, 640 * 640 * 2)
    em.e("s_sub_u32 s30, s2, 120")
    em.e(f"s_mul_i32 s37, s18, {8*PIT}")
    set_exec(40)
    em.e("s_cmp_ge_u32 s30, 16"); em.e("s_cbranch_scc1 Lp_wo2")
    em.e("s_mul_i32 s31, s30, 40"); em.e("s_lshr_b32 s32, s18, 1"); em.e("s_mul_i32 s32, s32, 20"); em.e("s_add_u32 s31, s31, s32")
    em.e("s_and_b32 s32, s18, 1"); em.e("s_lshl_b32 s32, s32, 3"); em.e("s_add_u32 s31, s31, s32"); em.e(f"s_mul_i32 s31, s31, {P}")
    for i in range(8):
        for sg_ in range(2): dma("s37", i * PIT + sg_ * 640, "s31", i * P + sg_ * 640)
    em.e("s_branch Lp_wo3")
    em.label("Lp_wo2")
    em.e("s_sub_u32 s31, s30, 16"); em.e("s_mul_i32 s31, s31, 160"); em.e("s_mul_i32 s32, s18, 40"); em.e("s_add_u32 s31, s31, s32")
    em.e(f"s_mul_i32 s31, s31, {P}")
    for i in range(8):
        for sg_ in range(2): dma("s37", i * PIT + sg_ * 640, "s31", (20 * (i >> 2) + 16 + (i & 3)) * P + sg_ * 640)
    em.label("Lp_wo3")
    od_tail(PWO, PWO_SZ, "s30")

    em.label("Lp_wd")
    em.vm = []; em.lg = []
    src_srd(10, 11, 1728 * 640 * 2)
    em.e("s_sub_u32 s30, s2, 140")
    em.e(f"s_mul_i32 s37, s18, {8*PIT}")
    set_exec(40)
    em.e("s_cmp_ge_u32 s30, 48"); em.e("s_cbranch_scc1 Lp_wd2")
    em.e("s_and_b32 s31, s30, 15"); em.e("s_mul_i32 s31, s31, 108"); em.e("s_lshr_b32 s32, s30, 4"); em.e("s_lshl_b32 s32, s32, 5")
    em.e("s_add_u32 s31, s31, s32"); em.e("s_lshl_b32 s32, s18, 3"); em.e("s_add_u32 s31, s31, s32"); em.e(f"s_mul_i32 s31, s31, {P}")
    for i in range(8):
        for sg_ in range(2): dma("s37", i * PIT + sg_ * 640, "s31", i * P + sg_ * 640)
    em.e("s_branch Lp_wd3")
    em.label("Lp_wd2")
    for q in range(2):
        em.e("s_sub_u32 s31, s30, 48"); em.e("s_lshl_b32 s31, s31, 3"); em.e("s_lshl_b32 s32, s18, 1"); em.e("s_add_u32 s31, s31, s32")
        em.e(f"s_add_u32 s31, s31, {q}")
        sdiv(em, "s32", "s31", 3, 48)
        em.e("s_mul_i32 s33, s32, 3"); em.e("s_sub_u32 s33, s31, s33"); em.e("s_lshl_b32 s33, s33, 2")
        em.e("s_mul_i32 s32, s32, 108"); em.e("s_add_u32 s32, s32, s33"); em.e("s_add_u32 s32, s32, 96"); em.e(f"s_mul_i32 s32, s32, {P}")
        for i in range(4):
            for sg_ in range(2): dma("s37", (4 * q + i) * PIT + sg_ * 640, "s32", i * P + sg_ * 640)
    em.label("Lp_wd3")
    od_tail(PWD, PWD_SZ, "s30")

    em.label("Lp_x")
    em.vm = []; em.lg = []
    P = 1280; PIT = 1296
    src_srd(4, 5, 2048 * 640 * 2)
    em.e("s_sub_u32 s30, s2, 194")
    em.e("s_lshl_b32 s31, s30, 5"); em.e("s_lshl_b32 s32, s18, 3"); em.e("s_add_u32 s31, s31, s32"); em.e(f"s_mul_i32 s31, s31, {P}")
    em.e(f"s_mul_i32 s37, s18, {8*PIT}")
    set_exec(40)
    for i in range(8):
        for sg_ in range(2): dma("s37", i * PIT + sg_ * 640, "s31", i * P + sg_ * 640)
    sync()
    em.e("v_and_b32 v16, 15, v1"); em.e(f"v_mul_u32_u24 v12, {PIT}, v16")
    em.e("v_lshrrev_b32 v17, 4, v1"); em.e("v_lshlrev_b32 v18, 3, v17"); em.e("v_add_u32 v12, v12, v18")
    em.e("s_lshr_b32 s33, s18, 1"); em.e("s_and_b32 s34, s18, 1")
    em.e(f"s_mul_i32 s35, s33, {16*PIT}"); em.e("s_mul_i32 s36, s34, 640"); em.e("s_add_u32 s35, s35, s36"); em.e("v_add_u32 v12, s35, v12")
    em.e("s_lshl_b32 s35, s30, 1"); em.e("s_add_u32 s35, s35, s33")
    em.e("s_mul_i32 s36, s35, 20480"); em.e("s_mul_i32 s38, s34, 10240"); em.e("s_add_u32 s36, s36, s38"); em.e(f"s_add_u32 s36, s36, {XB}")
    for i in range(10):
        r = 20 + 4 * i
        cc, u = divmod(i, 5)
        em.e(f"ds_read_b64 v[{r}:{r+1}], v12 offset:{(10*cc+XT0[u])*32}", lg=i)
        em.e(f"ds_read_b64 v[{r+2}:{r+3}], v12 offset:{(10*cc+XT1[u])*32}", lg=i)
    for i in range(10):
        r = 20 + 4 * i
        em.e(f"s_add_u32 s29, s36, {i*1024}")
        em.e(f"buffer_store_dwordx4 v[{r}:{r+3}], v3, s[20:23], s29 offen", vm="st", wlg=[i])
        em.e(f"v_mfma_f32_16x16x32_bf16 v[96:99], v[8:11], v[{r}:{r+3}], {'0' if i==0 else 'v[96:99]'}")
        em.e(f"v_mfma_f32_16x16x32_bf16 v[100:103], v[{r}:{r+3}], v[{r}:{r+3}], {'0' if i==0 else 'v[100:103]'}")
    em.e("v_and_b32 v18, 3, v16")
    em.e("v_cmp_eq_u32 vcc, 1, v18"); em.e("v_cndmask_b32 v104, v100, v101, vcc")
    em.e("v_cmp_eq_u32 vcc, 2, v18"); em.e("v_cndmask_b32 v104, v104, v102, vcc")
    em.e("v_cmp_eq_u32 vcc, 3, v18"); em.e("v_cndmask_b32 v105, v104, v103, vcc")
    em.e("v_mov_b32 v104, v96")
    em.e("v_mov_b32 v106, 0"); em.e("v_mov_b32 v107, 0")
    em.e("s_lshl_b32 s38, s35, 10"); em.e(f"s_add_u32 s38, s38, {ST}")
    em.e("s_lshl_b32 s39, s34, 7"); em.e("s_add_u32 s39, s39, s38")
    em.e("s_mul_i32 s42, s34, 384"); em.e("s_add_u32 s42, s42, s38")
    em.e("v_lshlrev_b32 v19, 3, v16")
    em.e("v_lshrrev_b32 v18, 2, v16")
    em.e("v_cmp_eq_u32 vcc, v17, v18")
    em.e("s_and_saveexec_b64 s[40:41], vcc")
    em.e("buffer_store_dwordx2 v[104:105], v19, s[20:23], s39 offen", vm="st")
    for z in range(3):
        em.e(f"buffer_store_dwordx2 v[106:107], v19, s[20:23], s42 offen offset:{256+128*z}", vm="st")
    em.e("s_mov_b64 exec, s[40:41]")
    em.e("s_endpgm")

    em.label("Lp_zero")
    for i in range(4): em.e(f"v_mov_b32 v{16+i}, 0")
    em.e("v_lshlrev_b32 v20, 4, v0")
    for i in range(FLAGS_BYTES // 4096):
        em.e(f"s_mov_b32 s30, {i*4096}")
        em.e(f"buffer_store_dwordx4 v[16:19], v20, s[20:23], s30 offen")
    em.label("Lp_done")
    em.e("s_endpgm")
    if stamp == 2:
        out = []
        for l in em.lines:
            if l.strip() == "s_endpgm": out.append("    s_branch Lp_exit")
            else: out.append(l)
        out += ["Lp_exit:", "    s_waitcnt vmcnt(0)", "    s_memrealtime s[64:65]", "    s_waitcnt lgkmcnt(0)", "    s_mov_b64 exec, 1",
                "    v_mov_b32 v110, s64", "    v_mov_b32 v111, 0", "    global_atomic_umax v111, v110, s[62:63] offset:4",
                "    s_lshr_b32 s66, s2, 3", "    s_lshl_b32 s66, s66, 2", "    v_mov_b32 v111, s66", "    global_atomic_umax v111, v110, s[62:63] offset:16",
                "    s_endpgm"]
        return out
    return em.lines

def kdesc(name, vgpr, accum, sgpr=96):
    return f""".section .rodata,"a"
.p2align 6
.amdhsa_kernel {name}
  .amdhsa_next_free_vgpr {vgpr}
  .amdhsa_next_free_sgpr {sgpr}
  .amdhsa_accum_offset {accum}
  .amdhsa_group_segment_fixed_size 0
  .amdhsa_kernarg_size 80
  .amdhsa_user_sgpr_count 2
  .amdhsa_user_sgpr_kernarg_segment_ptr 1
  .amdhsa_system_sgpr_workgroup_id_x 1
.end_amdhsa_kernel
"""

if __name__ == "__main__":
    lines = gen_prep("prep_kernel")
    lines, n = fix_hazards(lines)
    print(f"; @launch kernel=prep_kernel grid=({PREP_WGS},1,1) block=(256,1,1) lds={PREP_LDS}")
    print('.amdgcn_target "amdgcn-amd-amdhsa--gfx950"\n.text\n.globl prep_kernel\n.p2align 8\n.type prep_kernel,@function')
    print("\n".join(lines))
    print(kdesc("prep_kernel", 112, 112))
```

```python
import sys
from asmlib import *
from layout import *
from gen_prep import gen_prep, kdesc, PREP_WGS, PREP_LDS

KNAME = "interleave_layers__linear_attn_block__swiglu_ffn__prompt_kernel"
NR = 9
MISC = 147456
MB = 131072
L_CS1 = MISC - MB; L_CS3 = MISC + 512 - MB; L_STAT = MISC + 1536 - MB; L_RED = MISC + 4096 - MB; L_KVB = MISC + 8192 - MB
MAIN_LDS = 163840
PH = {"K1": (0, 160), "K2": (10, 100), "K3": (17, 280), "K4": (35, 270)}
TOT_ROUNDS = 54
LOG2E = 0x3fb8aa3b
EPS6 = 0x358637bd
EPS5 = 0x3727c5ac
INV640 = 0x3acccccd

S_WS = "s[4:7]"; S_OUT = "s[8:11]"; S_WSN = "s[12:15]"
sW, sG, sM, sHALF, sC8, sLAYER = "s16", "s17", "s18", "s19", "s20", "s21"
sW4K, sW1K, sW2K = "s22", "s23", "s24"
sPW1, sPWO, sPW3, sPWD, sPWOp, sPW3p = "s25", "s26", "s27", "s28", "s29", "s30"
sDMA = "s31"; sA = "s32"; sT0, sT1, sT2, sT3 = "s33", "s34", "s35", "s36"
sFOWN, sFLINE, sKOWN, sKLINE = "s37", "s38", "s39", "s40"
sSTEP = "s41"; sTT2 = "s42"; sTT1 = "s43"
sFEX = "s[44:45]"
sMODE = "s46"; sSPIN = "s47"
sMK = ["s[48:49]", "s[50:51]", "s[52:53]", "s[54:55]", "s[56:57]", "s[58:59]"]
sXI = "s60"
sE6 = "s61"
sST = "s62"
sST2 = "s63"
sODD = "s64"
sXOFF, sXREM, sSTOFF, sAOFF, sOOFF = "s65", "s91", "s98", "s99", "s3"
sBIT2 = "s[66:67]"
sI8 = "s[68:69]"
sG23 = "s[70:71]"; sG3 = "s[72:73]"; sG012 = "s[74:75]"
sTS = 76
sP0, sP1, sP2 = "s88", "s89", "s90"
PTD = "a255"

vL16, vR1, vR2, vL16B = "v1", "v2", "v3", "v4"
vI4, vI4W, vG16, vG16W, vL4, vL4W, vL8, vSTO, vACT6, vOREM, vOUT = [f"v{i}" for i in range(5, 16)]
RES = 16
WW = 36; NW = 16
ACC = 100
TMP = 212
CSVB = 140; RLB = 180


DBG = {}
S_NULL = "s[84:87]"
class Seg:
    def __init__(s):
        s.mf = []; s.gaps = [[]]; s.cost = [0]
    def n(s): return len(s.mf)
    def mfma(s, text, wvm=None, wlg=None):
        s.mf.append(Op(text, wvm=wvm, wlg=wlg)); s.gaps.append([]); s.cost.append(0)
        if wvm or wlg: s.cost[len(s.mf) - 1] += 1
        return len(s.mf) - 1
    def put(s, gap, op, cost=1):
        if isinstance(op, str): op = Op(op)
        gap = min(gap, len(s.gaps) - 1)
        s.gaps[gap].append(op); s.cost[gap] += cost
        return gap
    def place(s, op, earliest, cost=1, cap=2, latest=None):
        g = max(0, min(earliest, len(s.gaps) - 1))
        last = len(s.gaps) - 1
        while g < last and s.cost[g] + cost > cap:
            if latest is not None and g >= latest: break
            g += 1
        return s.put(g, op, cost)
    def group(s, ops, earliest, maxcost=0):
        g = max(0, min(earliest, len(s.gaps) - 1))
        while g < len(s.gaps) - 1 and s.cost[g] > maxcost: g += 1
        for o in ops: s.put(g, o, 1)
        return g
    def stream(s, ops, earliest, cap=2, spacing=0):
        g = earliest
        for o in ops:
            c = 1
            if isinstance(o, tuple): o, c = o
            g = s.place(o, g, cost=c, cap=cap)
            g += spacing
        return g
    def emit(s, em):
        def keep(o):
            t = o.text
            if DBG.get("skipa") and t.startswith("buffer_load_dwordx4 a["): return False
            if DBG.get("skipw") and t.endswith(" lds"): return False
            if DBG.get("nobar") and t == "s_barrier":
                o.text = "s_nop 0"; return True
            if DBG.get("skipv") and t.startswith("v_") and not t.startswith(("v_mfma", "v_writelane")): return False
            if DBG.get("skipr") and t.startswith("ds_read"): return False
            return True
        for i in range(len(s.gaps)):
            for o in s.gaps[i]:
                if keep(o): em.op(o)
            if i < len(s.mf): em.op(s.mf[i])


class Ring:
    def __init__(s):
        s.issued = -1
        s.filled = -1
        s.allowed = -1
        s.q = []
    @staticmethod
    def info(r):
        rr = r % TOT_ROUNDS
        nxt = r >= TOT_ROUNDS
        for ph, (r0, nf) in PH.items():
            nrounds = (nf + 15) // 16
            if r0 <= rr < r0 + nrounds:
                k = rr - r0
                return ph, k, min(16, nf - 16 * k), nxt
        return None, 0, 0, nxt
    def jobs(s, r):
        ph, k, n, nxt = s.info(r)
        if ph is None: return []
        srd = S_WSN if nxt else S_WS
        if DBG.get('now'): srd = S_NULL
        pos = (r % NR) * 16384
        tag = ("dma", r)
        if n > 8: c, m0s, base = 4, sW4K, {"K1": sPW1, "K2": sPWO, "K3": sPW3, "K4": sPWD}[ph]
        elif n > 4: c, m0s, base = 2, sW2K, sPW3p; assert ph == "K3" and n == 8
        else: c, m0s, base = 1, sW1K, sPWOp; assert ph == "K2" and n == 4
        nt = " nt" if DBG.get("wnt") else ""
        out = []
        for j in range(c):
            ops = []
            if j == 0:
                ops.append(Op(f"s_add_u32 m0, {m0s}, {pos}"))
                ops.append(Op(f"s_add_u32 {sDMA}, {base}, {(k % DBG.get('wmod', 1000))*16384}"))
            ops.append(Op(f"buffer_load_dwordx4 {vL16}, {srd}, {sDMA} offen offset:{j*1024}{nt} lds", vm=tag))
            out.append(ops)
        return out
    def skip_virtual(s):
        while not s.q and s.issued < s.allowed and not s.jobs(s.issued + 1): s.issued += 1
    def next_round(s):
        r = s.issued + 1
        while not s.q and not s.jobs(r): r += 1
        return r
    def take(s):
        if not s.q:
            s.skip_virtual()
            if s.issued + 1 > s.allowed: return None
            s.q = s.jobs(s.issued + 1)
        j = s.q.pop(0)
        if not s.q:
            s.issued += 1
            s.skip_virtual()
        return j
    def emit(s, em, n=10**9, upto=None):
        k = 0
        while k < n:
            if upto is not None and s.next_round() > upto: break
            j = s.take()
            if j is None: break
            for o in j: em.op(o)
            k += 1
        return k


def wslot_addr(ph, f):
    r0, nf = PH[ph]
    r = r0 + f // 16
    a = (r % NR) * 16384 + (f % 16) * 1024
    if a < 65536: return vL16, a
    if a < 131072: return vR1, a - 65536
    return vR2, a - 131072


class WStream:
    cnt = 0
    def __init__(s, ring, seg, ph, SS=2, LA=10):
        s.ring = ring; s.seg = seg; s.ph = ph; s.SS = SS; s.LA = LA
        s.reg = {}; s.events = []
    def wreg(s, f):
        if f not in s.reg:
            s.reg[f] = WW + 4 * (WStream.cnt % NW); WStream.cnt += 1
        return s.reg[f]
    def reads(s, frags, first_use, last_use, force=(), nobar=(), wait_at=None):
        seg = s.seg; ring = s.ring; r0, nf = PH[s.ph]
        prev = 0
        lastuse_slot = {}
        filled = ring.filled
        lastbar = None
        rlast = r0 + frags[-1] // 16
        for f in frags:
            reg = s.reg[f]
            e = max(prev, first_use[f] - s.LA, lastuse_slot.get(reg, -1) + 1)
            lat = first_use[f] if wait_at is None else wait_at[f]
            e = max(0, min(e, lat))
            r = r0 + f // 16
            va, off = wslot_addr(s.ph, f)
            rd = Op(f"ds_read_b128 v[{reg}:{reg+3}], {va} offset:{off}", lg=("w", s.ph, f))
            need = r > filled
            want = (f % 16 == 0) and (r in force or (lastbar is not None and r - lastbar >= s.SS) or (lastbar is None and r - (r0 + frags[0] // 16) >= s.SS)) and r not in nobar
            if need or want:
                tgt = max(filled, min(r + s.SS - 1, rlast))
                g = e
                last = lat
                while g < last and seg.cost[g] + 1 > 2: g += 1
                wt = [("dma", x) for x in range(filled + 1, tgt + 1)]
                seg.put(g, Op("s_barrier", wvm=wt), 2)
                seg.put(g, rd, 1)
                filled = tgt
                prev = g
                lastbar = r
                s.events.append((g, r - 2 + NR, tgt))
            else:
                prev = seg.place(rd, e, latest=lat)
            lastuse_slot[reg] = last_use[f]
        s.lastbar = lastbar
        ring.filled = filled
    def vmem(s, ajobs, policy, rate=4.5, qd=36, backlog=0, margin=48, cap=2):
        seg = s.seg; ring = s.ring
        n = len(seg.gaps)
        path = backlog
        ai = 0
        ev = list(s.events)
        def dma_deadline(r):
            for (g, al, tgt) in ev:
                if tgt >= r: return g
            return None
        evi = 0
        for (g, al, tgt) in ev:
            if g == 0: assert ring.issued >= tgt, ("rounds not issued before seg start", s.ph, tgt, ring.issued)
        for g in range(n):
            placed = 0
            while True:
                cands = []
                if ai < len(ajobs): cands.append((ajobs[ai][1], 0))
                r = ring.next_round()
                hard = dma_deadline(r)
                pe = policy(r)
                ok = (ring.q or r <= ring.allowed)
                if ok and (hard is not None or pe is not None):
                    dl = (hard - margin) if hard is not None else 10**6
                    start = pe if pe is not None else 0
                    if g >= start or (hard is not None and g >= hard - 1): cands.append((dl, 1))
                    harddl = hard
                if not cands: break
                cands.sort()
                def isforced(c):
                    return (c[1] == 1 and hard is not None and g >= hard - 1) or (c[1] == 0 and g >= c[0])
                fc = [c for c in cands if isforced(c)]
                forced = bool(fc)
                dl, which = fc[0] if fc else cands[0]
                if not forced:
                    if path - g > qd: break
                    if g > 0 and (seg.cost[g] + 1 > cap or placed >= 1): break
                if which == 0:
                    ops = ajobs[ai][0]; ai += 1
                else:
                    ops = ring.take(); assert ops is not None
                for o in ops: seg.put(g, o, 1)
                path = max(path, g) + rate
                placed += 1
            while evi < len(ev) and ev[evi][0] <= g:
                (eg, al, tgt) = ev[evi]; evi += 1
                assert ring.issued >= tgt, ("rounds not issued before barrier", s.ph, g, tgt, ring.issued)
                ring.allowed = max(ring.allowed, al)
        assert ai == len(ajobs)
        return path - n


def gen_main(opt):
    stop = opt.get("stop", 99)
    DBG.clear(); DBG.update(opt)
    stamps = opt.get("stamps", False)
    SS = opt.get("SS", 2)
    MARG = opt.get("marg", 72); QD = opt.get("qd", 36); RATE = opt.get("rate10", 45) / 10.0
    cur = {"sfx": "F", "STO": "", "LD": ""}
    em = Em()
    ring = Ring()
    WStream.cnt = 0
    nstamp = [0]
    def stamp():
        if not stamps: return
        k = nstamp[0]; nstamp[0] += 1
        em.raw(f"    s_waitcnt lgkmcnt(0)")
        em.e(f"s_memtime s[{sTS}:{sTS+1}]")
        em.e(f"s_lshl_b32 s{sTS+2}, {sLAYER}, 4")
        em.e(f"s_add_u32 s{sTS+2}, s{sTS+2}, {k}")
        em.raw("    s_waitcnt lgkmcnt(0)")
        em.lg = []
        em.e(f"s_mov_b32 s{sTS+1}, m0")
        em.e(f"s_mov_b32 m0, s{sTS+2}"); em.e("s_nop 3")
        em.e(f"v_writelane_b32 v0, s{sTS}, m0")
        em.e(f"s_mov_b32 m0, s{sTS+1}")
    lsn = [0]
    def lstamp(seg, gap):
        if not opt.get("lst", 0): return
        lane = 32 + lsn[0]; lsn[0] += 1
        assert lane < 64
        seg.put(gap, "s_memtime s[96:97]", 0)
        seg.put(gap + 12, f"v_writelane_b32 v0, s96, {lane}", 0)
    def dump_stamps():
        if not stamps: return
        em.e("s_memrealtime s[96:97]")
        em.raw("    s_waitcnt lgkmcnt(0)")
        em.e("v_writelane_b32 v0, s92, 15"); em.e("v_writelane_b32 v0, s94, 30"); em.e("v_writelane_b32 v0, s96, 31")
        em.e(f"s_mov_b64 exec, s[{sTS+4}:{sTS+5}]")
        em.e(f"v_lshrrev_b32 v251, 2, {vL16}")
        em.e(f"v_add_u32 v251, s{sTS+3}, v251")
        em.e(f"global_store_dword v251, v0, s[{sTS+6}:{sTS+7}]")
        em.e("s_mov_b64 exec, -1")
        em.raw("    s_waitcnt vmcnt(0)")

    em.label(KNAME)
    em.e("s_cmp_ge_u32 s2, 256")
    em.e("s_cbranch_scc1 Lm_done")
    if stamps:
        em.e("s_memtime s[92:93]"); em.e("s_memrealtime s[94:95]")
    em.e("s_load_dwordx2 s[8:9], s[0:1], 56"); em.e("s_load_dwordx2 s[10:11], s[0:1], 64")
    em.e("s_load_dwordx2 s[4:5], s[0:1], 72")
    em.e("v_lshrrev_b32 v2, 6, v0")
    em.e("v_and_b32 v0, 63, v0")
    em.e(f"v_readfirstlane_b32 {sW}, v2")
    em.e(f"v_lshlrev_b32 {vL16}, 4, v0")
    em.e("s_and_b32 s33, s2, 7"); em.e("s_lshr_b32 s34, s2, 3")
    em.e("s_and_b32 s35, s34, 1"); em.e(f"s_lshr_b32 {sM}, s34, 1")
    em.e("s_lshl_b32 s33, s33, 1"); em.e(f"s_add_u32 {sG}, s33, s35")
    em.e(f"s_and_b32 {sHALF}, {sM}, 1"); em.e(f"s_lshr_b32 {sC8}, {sM}, 1")
    em.e(f"s_lshl_b32 {sW4K}, {sW}, 12"); em.e(f"s_lshl_b32 {sW1K}, {sW}, 10"); em.e(f"s_lshl_b32 {sW2K}, {sW}, 11")
    def base(dst, reg0, sz, idx, wk, extra=0):
        em.e(f"s_mul_i32 {dst}, {idx}, {sz}"); em.e(f"s_add_u32 {dst}, {dst}, {reg0 + extra}"); em.e(f"s_add_u32 {dst}, {dst}, {wk}")
    base(sPW1, PW1, PW1_SZ, sM, sW4K); base(sPWO, PWO, PWO_SZ, sC8, sW4K)
    base(sPW3, PW3, PW3_SZ, sM, sW4K); base(sPWD, PWD, PWD_SZ, sC8, sW4K)
    base(sPWOp, PWO, PWO_SZ, sC8, sW1K); base(sPW3p, PW3, PW3_SZ, sM, sW2K)
    em.e("s_waitcnt lgkmcnt(0)")
    if stamps:
        em.e(f"s_mov_b32 s{sTS+6}, s10"); em.e(f"s_mov_b32 s{sTS+7}, s11")
    em.e(f"s_mov_b32 s6, {WS_END}"); em.e("s_mov_b32 s7, 0x20000")
    em.e(f"s_mov_b32 s10, {2048*640*2}"); em.e("s_mov_b32 s11, 0x20000")
    em.e("s_mov_b32 s12, s4"); em.e("s_mov_b32 s13, s5"); em.e(f"s_mov_b32 s14, {WS_END}"); em.e("s_mov_b32 s15, 0x20000")
    em.e("s_mov_b32 s84, s4"); em.e("s_mov_b32 s85, s5"); em.e("s_mov_b32 s86, 0"); em.e("s_mov_b32 s87, 0x20000")
    HEAD = opt.get("head", 4)
    ring.allowed = 8
    ring.emit(em, upto=2)
    em.e(f"s_lshl_b32 s33, {sG}, 7")
    em.e(f"s_add_u32 {sFLINE}, s33, {FLG_G}"); em.e(f"s_lshl_b32 s34, {sM}, 2"); em.e(f"s_add_u32 {sFOWN}, {sFLINE}, s34")
    em.e(f"s_lshl_b32 s33, {sM}, 7"); em.e(f"s_add_u32 {sKLINE}, s33, {FLG_KV}"); em.e(f"s_lshl_b32 s34, {sG}, 2"); em.e(f"s_add_u32 {sKOWN}, {sKLINE}, s34")
    em.e(f"s_lshl_b32 s33, {sG}, 3")
    em.e(f"s_lshl_b32 s34, {sW}, 1"); em.e(f"s_add_u32 {sTT2}, s33, s34")
    em.e(f"s_lshl_b32 s34, {sHALF}, 2"); em.e(f"s_add_u32 s34, s34, {sW}"); em.e(f"s_add_u32 {sTT1}, s33, s34")
    em.e(f"s_cmp_eq_u32 {sW}, 0"); em.e("s_cselect_b32 s44, 1, 0"); em.e("s_mov_b32 s45, 0")
    em.e(f"s_mov_b32 {sLAYER}, 0"); em.e(f"s_mov_b32 {sSTEP}, 0"); em.e(f"s_mov_b32 {sXI}, 0")
    em.e(f"s_mov_b32 {sE6}, {EPS6}")
    em.e(f"s_and_b32 {sODD}, {sC8}, 1")
    em.e(f"s_lshr_b32 s33, {sC8}, 1"); em.e("s_mul_i32 s33, s33, 5")
    em.e(f"s_lshl_b32 s34, {sODD}, 1"); em.e("s_add_u32 s34, s34, s33"); em.e("s_lshl_b32 s34, s34, 10")
    em.e(f"s_add_u32 s33, s33, 4"); em.e("s_lshl_b32 s33, s33, 10"); em.e(f"s_sub_u32 {sXREM}, s33, s34")
    em.e(f"s_mul_i32 s35, {sTT1}, 20480"); em.e(f"s_add_u32 s34, s34, s35"); em.e(f"s_add_u32 {sXOFF}, s34, {XB}")
    em.e(f"s_lshl_b32 s33, {sTT1}, 10"); em.e(f"s_lshl_b32 s34, {sC8}, 7"); em.e("s_add_u32 s33, s33, s34"); em.e(f"s_add_u32 {sSTOFF}, s33, {ST}")
    em.e(f"s_mul_i32 s33, {sTT2}, {54*1024}"); em.e(f"s_add_u32 {sAOFF}, s33, {ACT}")
    em.e(f"s_mul_i32 s33, {sTT2}, 20480"); em.e(f"s_add_u32 {sOOFF}, s33, {OB}")
    def m64(reg, val):
        a = int(reg[2:].split(":")[0])
        em.e(f"s_mov_b32 s{a}, {hex(val & 0xffffffff)}"); em.e(f"s_mov_b32 s{a+1}, {hex(val >> 32)}")
    m64(sMK[0], 0xFFFF); m64(sMK[1], 0xFFFF0000); m64(sMK[2], 0x0F000F000F000F00); m64(sMK[3], 0xF000F000F000F000)
    m64(sMK[4], 0x0F00); m64(sMK[5], 0xF0000000)
    m64(sBIT2, 0xF0F0F0F0F0F0F0F0); m64(sI8, 0x00FF00FF00FF00FF)
    m64(sG23, 0xFFFFFFFF00000000); m64(sG3, 0xFFFF000000000000); m64(sG012, 0x0000FFFFFFFFFFFF)
    if stamps:
        em.e(f"s_mov_b32 s{sTS+4}, 0"); em.e(f"s_mov_b32 s{sTS+5}, 0"); em.e(f"s_mov_b32 s{sTS+3}, 0")
        em.e(f"s_sub_u32 s33, 0, s44")
        if opt.get("lst", 0):
            em.e(f"s_cmp_eq_u32 s2, {opt.get('wg2', 0)}"); em.e(f"s_cselect_b32 s{sTS+4}, s33, 0"); em.e(f"s_mov_b32 s{sTS+5}, s{sTS+4}")
        if not opt.get("lst", 0):
            em.e("s_cmp_eq_u32 s2, 0"); em.e(f"s_cselect_b32 s{sTS+4}, s33, 0")
            em.e(f"s_cmp_eq_u32 s2, {opt.get('wg2', 255)}"); em.e(f"s_cselect_b32 s{sTS+4}, s33, s{sTS+4}"); em.e(f"s_cselect_b32 s{sTS+3}, 128, 0")
    em.e(f"s_getreg_b32 {sMODE}, hwreg(HW_REG_XCC_ID)")
    em.e(f"s_and_b32 {sMODE}, {sMODE}, 0xffff"); em.e(f"s_add_u32 {sMODE}, {sMODE}, 1")
    em.e(f"v_mov_b32 v254, {sMODE}"); em.e("v_mov_b32 v255, 0")
    em.e(f"s_add_u32 s33, {sFOWN}, {FLG_XCC - FLG_G}")
    em.e(f"s_mov_b64 exec, {sFEX}")
    em.e(f"buffer_store_dword v254, v255, {S_WS}, s33 offen sc1")
    em.e("s_mov_b64 exec, -1")
    em.e("v_and_b32 v212, 15, v0"); em.e("v_lshrrev_b32 v213, 4, v0")
    em.e(f"v_add_u32 {vR1}, 0x10000, {vL16}"); em.e(f"v_add_u32 {vR2}, 0x20000, {vL16}"); em.e(f"v_add_u32 {vL16B}, 20480, {vL16}")
    em.e(f"v_lshlrev_b32 {vI4}, 2, v212"); em.e(f"v_add_u32 {vI4}, 0x20000, {vI4}")
    em.e(f"s_lshl_b32 s33, {sW}, 8")
    em.e(f"v_add_u32 {vI4W}, s33, {vI4}")
    em.e(f"v_lshlrev_b32 {vG16}, 4, v213"); em.e(f"v_add_u32 {vG16}, 0x20000, {vG16}"); em.e(f"v_add_u32 {vG16W}, s33, {vG16}")
    em.e(f"v_lshlrev_b32 {vL4}, 2, v0"); em.e(f"v_add_u32 {vL4}, 0x20000, {vL4}"); em.e(f"v_add_u32 {vL4W}, {sW1K}, {vL4}")
    em.e(f"v_lshlrev_b32 {vL8}, 3, v0"); em.e(f"v_add_u32 {vL8}, 0x20000, {vL8}")
    em.e(f"v_lshlrev_b32 {vSTO}, 8, v213"); em.e("v_lshlrev_b32 v214, 3, v212"); em.e(f"v_add_u32 {vSTO}, {vSTO}, v214")
    em.e(f"s_mul_i32 s33, {sM}, 3"); em.e("v_add_u32 v214, s33, v213")
    em.e("v_lshrrev_b32 v215, 3, v214"); em.e("v_add_u32 v215, 48, v215"); em.e("v_lshlrev_b32 v215, 10, v215")
    em.e("v_and_b32 v216, 3, v214"); em.e("v_lshlrev_b32 v216, 8, v216"); em.e("v_add_u32 v215, v215, v216")
    em.e("v_lshlrev_b32 v216, 4, v212"); em.e("v_add_u32 v215, v215, v216")
    em.e("v_bfe_u32 v216, v214, 2, 1"); em.e("v_lshlrev_b32 v216, 3, v216"); em.e(f"v_add_u32 {vACT6}, v215, v216")
    em.e(f"s_lshr_b32 s33, {sM}, 2"); em.e("s_add_u32 s33, s33, 16"); em.e("s_lshl_b32 s33, s33, 10")
    em.e(f"s_and_b32 s34, {sM}, 1"); em.e("s_lshl_b32 s34, s34, 9"); em.e("s_add_u32 s33, s33, s34")
    em.e(f"s_bfe_u32 s34, {sM}, 0x10001"); em.e("s_lshl_b32 s34, s34, 3"); em.e("s_add_u32 s33, s33, s34")
    em.e("s_sub_u32 s33, s33, 512")
    em.e("v_lshlrev_b32 v215, 8, v213"); em.e("v_lshlrev_b32 v216, 4, v212"); em.e("v_add_u32 v215, v215, v216")
    em.e(f"v_add_u32 {vOREM}, s33, v215")
    em.e("v_mul_u32_u24 v215, 1280, v212"); em.e("v_lshlrev_b32 v216, 3, v213"); em.e(f"v_add_u32 {vOUT}, v215, v216")
    em.e(f"s_mul_i32 s33, {sM}, 512"); em.e(f"s_add_u32 s33, s33, {CS1}")
    em.e(f"s_mul_i32 s34, {sM}, 896"); em.e(f"s_add_u32 s34, s34, {CS3}")
    em.e("v_and_b32 v214, 31, v0"); em.e("v_lshlrev_b32 v214, 4, v214"); em.e("v_lshrrev_b32 v215, 5, v0")
    em.e("v_mul_u32_u24 v215, 81920, v215"); em.e("v_add_u32 v214, v214, v215"); em.e("v_add_u32 v214, s33, v214")
    em.e(f"v_add_u32 v215, s34, {vL16}")
    em.e("v_mov_b32 v216, 0x7ffffff0")
    em.e("v_cmp_gt_u32 vcc, 56, v0"); em.e("v_cndmask_b32 v215, v216, v215, vcc")
    em.e(f"s_cmp_eq_u32 {sW}, 0"); em.e("s_mov_b32 s36, 14336"); em.e("s_cselect_b32 s36, 8192, s36"); em.e("s_cselect_b64 vcc, -1, 0")
    em.e("v_cndmask_b32 v214, v215, v214, vcc")
    em.e(f"s_cmp_ge_u32 {sW}, 2"); em.e("s_cselect_b64 vcc, -1, 0")
    em.e("v_cndmask_b32 v214, v214, v216, vcc")
    for k in range(10):
        em.e(f"buffer_load_dwordx4 v[{CSVB+4*k}:{CSVB+4*k+3}], v214, {S_WS}, 0 offen", vm="cs")
        if k < 9: em.e("v_add_u32 v214, s36, v214")
    RL = RLB
    em.e(f"s_lshr_b32 s33, {sC8}, 1"); em.e("s_mul_i32 s33, s33, 5")
    em.e(f"s_lshl_b32 s34, {sODD}, 1"); em.e("s_add_u32 s34, s34, s33")
    em.e(f"s_mul_i32 s35, {sTT1}, 20480"); em.e(f"s_add_u32 s35, s35, {XB}")
    em.e("s_lshl_b32 s34, s34, 10"); em.e("s_add_u32 s34, s34, s35")
    em.e(f"buffer_load_dwordx4 v[{RL}:{RL+3}], {vL16}, {S_WS}, s34 offen", vm="res")
    em.e(f"buffer_load_dwordx4 v[{RL+4}:{RL+7}], {vL16}, {S_WS}, s34 offen offset:1024", vm="res")
    em.e("s_add_u32 s33, s33, 4"); em.e("s_lshl_b32 s33, s33, 10"); em.e("s_add_u32 s33, s33, s35")
    em.e(f"s_lshl_b32 s34, {sODD}, 3"); em.e("s_add_u32 s33, s33, s34")
    em.e(f"buffer_load_dwordx2 v[{RL+8}:{RL+9}], {vL16}, {S_WS}, s33 offen", vm="res")
    ring.emit(em, upto=HEAD)
    assert ring.issued == HEAD and not ring.q
    em.vm = [t for t in em.vm if isinstance(t, tuple) and t[0] == "dma"]
    head_vm = list(em.vm)

    def poll(line, target_expr_sreg, lbl):
        em.e(f"s_mov_b32 {sSPIN}, 0")
        em.e(f"v_subrev_u32 v252, 0x20000, {vI4}")
        em.label(lbl)
        em.e(f"buffer_load_dword v253, v252, {S_WS}, {line} offen sc1")
        em.raw("    s_waitcnt vmcnt(0)")
        em.e(f"v_cmp_gt_u32 vcc, {target_expr_sreg}, v253")
        em.e(f"s_add_u32 {sSPIN}, {sSPIN}, 1")
        em.e(f"s_cmp_gt_u32 {sSPIN}, 20000")
        em.e(f"s_cbranch_scc1 {lbl}_x")
        em.e(f"s_cbranch_vccnz {lbl}")
        em.label(lbl + "_x")
    uid = [0]
    def flag_store(own, val_sreg):
        em.e(f"v_mov_b32 v254, {val_sreg}")
        em.e("v_mov_b32 v255, 0")
        em.e(f"s_mov_b64 exec, {sFEX}")
        em.e(f"buffer_store_dword v254, v255, {S_WS}, {own} offen{cur['STO']}")
        em.e("s_mov_b64 exec, -1")
    def transition(pub, wait, last_round, sttags, need, d1, d2, upto2=None):
        uid[0] += 1; u = uid[0]
        ring.emit(em, d1, upto=upto2)
        em.wait(wvm=sttags)
        em.e("s_barrier")
        ring.allowed = max(ring.allowed, last_round + NR)
        em.e(f"s_add_u32 {sT0}, {sSTEP}, {pub}")
        flag_store(sFOWN, sT0)
        ring.emit(em, d2, upto=upto2)
        ring.emit(em, upto=need)
        assert ring.issued >= need
        em.e(f"s_cmp_lg_u32 {sW}, 0")
        em.e(f"s_cbranch_scc1 Lt{u}_o")
        em.e(f"s_add_u32 {sT0}, {sSTEP}, {wait}")
        poll(sFLINE, sT0, f"Lt{u}_p")
        em.label(f"Lt{u}_o")
        em.wait(wvm=[("dma", x) for x in range(ring.filled + 1, need + 1)])
        ring.filled = max(ring.filled, need)
        em.e("s_barrier")

    def a_loads(n_tiles, nblk, sbase_setup, tagname, areg):
        ops = []
        for b in range(nblk):
            if b % 4 == 0 and b > 0: ops.append(Op(f"s_add_u32 {sA}, {sA}, 4096"))
            for t in range(n_tiles):
                r = areg(b, t)
                va = vL16 if t == 0 else vL16B
                ops.append(Op(f"buffer_load_dwordx4 a[{r}:{r+3}], {va}, {S_NULL if DBG.get('noa') else S_WS}, {sA} offen offset:{(b%4)*1024}{cur['LD']}", vm=(tagname, b, t)))
        return ops

    def a_jobs(al, dl):
        jobs = []; pend = []
        for o in al:
            pend.append(o)
            if o.vm is not None:
                jobs.append((pend, dl(o.vm[1]))); pend = []
        return jobs
    def stats_ops(base):
        ops = []
        for t in range(2):
            a = base + 4 * t; nm = base + 8 + 2 * t; rs = nm + 1; x = base + 12; y = base + 13
            ops.append(Op(f"v_add_f32 v{a}, v{a}, v{a+2}", wvm=[("st", t)]))
            ops.append(f"v_add_f32 v{a+1}, v{a+1}, v{a+3}")
            for sw in ("v_permlane32_swap_b32", "v_permlane16_swap_b32"):
                ops.append(f"v_mov_b32 v{x}, v{a}"); ops.append(f"v_mov_b32 v{y}, v{a+1}")
                ops.append(f"{sw} v{a}, v{x}"); ops.append(f"{sw} v{a+1}, v{y}")
                ops.append(f"v_add_f32 v{a}, v{a}, v{x}"); ops.append(f"v_add_f32 v{a+1}, v{a+1}, v{y}")
            ops.append(f"v_mul_f32 v{nm}, {hex(INV640 | 0x80000000)}, v{a}")
            ops.append(f"v_mul_f32 v{a+1}, {hex(INV640)}, v{a+1}")
            ops.append(f"v_fma_f32 v{a+1}, -v{nm}, v{nm}, v{a+1}")
            ops.append(f"v_max_f32 v{a+1}, 0, v{a+1}")
            ops.append(f"v_add_f32 v{a+1}, {hex(EPS5)}, v{a+1}")
            ops.append((Op(f"v_rsq_f32 v{rs}, v{a+1}"), 2))
        return ops
    def stats_loads(base):
        ops = []
        ops.append(Op(f"s_mul_i32 {sST}, {sXI}, {ST_SZ}"))
        ops.append(Op(f"s_lshl_b32 {sST2}, {sTT2}, 10"))
        ops.append(Op(f"s_add_u32 {sST}, {sST}, {sST2}"))
        ops.append(Op(f"s_add_u32 {sST}, {sST}, {ST}"))
        for t in range(2):
            a = base + 4 * t
            ops.append(Op(f"buffer_load_dwordx2 v[{a}:{a+1}], {vSTO}, {S_WS}, {sST} offen offset:{t*1024}{cur['LD']}", vm=("st", t)))
            ops.append(Op(f"buffer_load_dwordx2 v[{a+2}:{a+3}], {vSTO}, {S_WS}, {sST} offen offset:{t*1024+128}{cur['LD']}", vm=("st", t)))
        return ops
    def set_sA_x():
        em.e(f"s_mul_i32 {sA}, {sXI}, {X_SZ}"); em.e(f"s_mul_i32 {sT0}, {sTT2}, 20480")
        em.e(f"s_add_u32 {sA}, {sA}, {sT0}"); em.e(f"s_add_u32 {sA}, {sA}, {XB}")

    def phi_ops(acc, cs, nm, rs, rl, t1, t2):
        return [f"v_fmac_f32 v{acc}, v{nm}, v{cs}",
                f"v_mul_f32 v{t1}, v{acc}, v{rl}",
                (Op(f"v_exp_f32 v{t1}, v{t1} clamp"), 2),
                f"v_max_f32 v{acc}, 0, v{acc}",
                f"v_add_f32 v{t1}, {hex(EPS6)}, v{t1}",
                f"v_fma_f32 v{acc}, v{acc}, v{rs}, v{t1}"]
    def il(lists):
        out = []; k = 0
        while any(k < len(l) for l in lists):
            for l in lists:
                if k < len(l): out.append(l[k])
            k += 1
        return out
    def lin(ops):
        for o in ops:
            if isinstance(o, tuple): o = o[0]
            em.op(o)

    def reuse(): return cur["sfx"] == "F" and opt.get("reuse", 1)
    def LB(): return "0" if reuse() else sLAYER
    def pt(voff, srd, soff, imm=0):
        if voff is None: return Op(f"buffer_load_dword {PTD}, off, {srd}, {soff} offset:{imm} sc1", vm="pt")
        return Op(f"buffer_load_dword {PTD}, {voff}, {srd}, {soff} offen offset:{imm} sc1", vm="pt")
    def pt_x(srd):
        return [f"s_mov_b32 {sP0}, 1" if reuse() else f"s_add_u32 {sP0}, {sXI}, 1", f"s_mul_i32 {sP1}, {sP0}, {X_SZ}", f"s_add_u32 {sP1}, {sP1}, {sXOFF}",
                pt(vL16, srd, sP1), pt(vL16, srd, sP1, 1024),
                f"s_add_u32 {sP1}, {sP1}, {sXREM}", pt(vL16, srd, sP1),
                f"s_mul_i32 {sP0}, {sP0}, {ST_SZ}", f"s_add_u32 {sP0}, {sP0}, {sSTOFF}", pt(None, srd, sP0)]
    def pt_act(p):
        ops = [f"s_mul_i32 {sP0}, {LB()}, {ACT_SZ}", f"s_add_u32 {sP0}, {sP0}, {sAOFF}"]
        if p < 3:
            ops += [f"s_lshl_b32 {sP1}, {sM}, 10", f"s_add_u32 {sP0}, {sP0}, {sP1}"]
            if p: ops.append(f"s_add_u32 {sP0}, {sP0}, {p*16384}")
            ops += [pt(vL16, S_WS, sP0), f"s_add_u32 {sP0}, {sP0}, {54*1024}", pt(vL16, S_WS, sP0)]
        else:
            ops += [[f"s_mov_b64 exec, {sG012}", pt(vACT6, S_WS, sP0), "s_mov_b64 exec, -1"], f"s_add_u32 {sP0}, {sP0}, {54*1024}",
                    [f"s_mov_b64 exec, {sG012}", pt(vACT6, S_WS, sP0), "s_mov_b64 exec, -1"]]
        return ops
    def pt_o():
        return [f"s_mul_i32 {sP0}, {LB()}, {O_SZ}", f"s_add_u32 {sP0}, {sP0}, {sOOFF}",
                pt(vOREM, S_WS, sP0), f"s_add_u32 {sP0}, {sP0}, 20480", pt(vOREM, S_WS, sP0),
                f"s_lshl_b32 {sP1}, {sM}, 10", f"s_add_u32 {sP0}, {sP0}, {sP1}", pt(vL16, S_WS, sP0), f"s_sub_u32 {sP0}, {sP0}, 20480", pt(vL16, S_WS, sP0)]
    def pt_place(seg, ops, g):
        if cur["sfx"] != "F" or not opt.get("pt", 1): return g
        for o in ops:
            if isinstance(o, list): g = seg.group(o, g, maxcost=1)
            else: g = seg.place(o, g)
        return g
    def K1():
        AX = lambda b, t: 80 * t + 4 * b
        SB = TMP
        NM4 = 226
        P1 = ACC
        set_sA_x()
        seg = Seg(); ws = WStream(ring, seg, "K1", SS=SS)
        fu = {}; lu = {}
        for b in range(20):
            for t in range(5):
                f = b * 5 + t; wr = ws.wreg(f)
                for tok in range(2):
                    d = P1 + 8 * t + 4 * tok
                    c = "0" if b == 0 else f"v[{d}:{d+3}]"
                    wl = [("w", "K1", b * 5 + 4)] if (t == 0 and tok == 0) else None
                    wv = [("a", b, 1)] if (t == 0 and tok == 0) else None
                    i = seg.mfma(f"v_mfma_f32_16x16x32_bf16 v[{d}:{d+3}], a[{AX(b,tok)}:{AX(b,tok)+3}], v[{wr}:{wr+3}], {c}", wvm=wv, wlg=wl)
                    if t == 0 and tok == 0: g0 = i
                    fu.setdefault(f, g0); lu[f] = i
        al = a_loads(2, 20, None, "a", AX)
        sl = stats_loads(SB)
        for o in sl: seg.put(0, o, 0)
        ws.reads(list(range(100)), fu, lu, force=(6,))
        ws.vmem(a_jobs(al, lambda b: 10 * b - 30), lambda r: 0 if r <= 6 else opt.get("k1w", 150), margin=MARG, qd=QD, rate=opt.get("r1", 38) / 10.0)
        so = stats_ops(SB)
        for t in range(2):
            nm = SB + 8 + 2 * t
            so.append(Op(f"ds_write_b32 {vI4W}, v{nm} offset:{L_STAT + t*128}", lg="sw"))
            so.append(Op(f"ds_write_b32 {vI4W}, v{nm+1} offset:{L_STAT + t*128 + 64}", lg="sw"))
        for t in range(2):
            so.append(Op(f"ds_read_b128 v[{NM4+8*t}:{NM4+8*t+3}], {vG16W} offset:{L_STAT + t*128}", lg="sr", wlg=["sw"]))
            so.append(Op(f"ds_read_b128 v[{NM4+8*t+4}:{NM4+8*t+7}], {vG16W} offset:{L_STAT + t*128 + 64}", lg="sr"))
        for t in range(2):
            for r in range(4):
                so.append(Op(f"v_mul_f32 v{242+4*t+r}, {hex(LOG2E)}, v{NM4+8*t+4+r}", wlg=["sr"]))
        seg.stream(so, 40)
        for g in (1, 50, 100, 150): lstamp(seg, g)
        seg.emit(em)
        stamp()
        em.e(f"s_cmp_lg_u32 {sLAYER}, 0"); em.e(f"s_cbranch_scc1 Lk1_nocs{cur['sfx']}")
        svm = list(em.vm); slg = list(em.lg)
        for k in range(1, 10):
            for q in range(4): em.e(f"v_add_f32 v{CSVB+q}, v{CSVB+q}, v{CSVB+4*k+q}")
        for q in range(4):
            em.e(f"v_mov_b32 v{CSVB+4+q}, v{CSVB+q}"); em.e(f"v_mov_b32 v{CSVB+8+q}, v{CSVB+q}")
        for q in range(4):
            em.e(f"v_permlane32_swap_b32 v{CSVB+4+q}, v{CSVB+8+q}")
        em.e(f"s_cmp_eq_u32 {sW}, 0"); em.e("s_cselect_b64 vcc, -1, 0")
        for q in range(4):
            em.e(f"v_add_f32 v{CSVB+4+q}, v{CSVB+4+q}, v{CSVB+8+q}")
            em.e(f"v_cndmask_b32 v{CSVB+q}, v{CSVB+q}, v{CSVB+4+q}, vcc")
        em.e(f"s_cmp_eq_u32 {sW}, 0"); em.e(f"s_mov_b32 {sT0}, {L_CS3}"); em.e(f"s_cselect_b32 {sT0}, {L_CS1}, {sT0}"); em.e(f"s_cselect_b32 {sT1}, 32, 56")
        em.e(f"s_cmp_ge_u32 {sW}, 2"); em.e(f"s_cselect_b32 {sT1}, 0, {sT1}")
        em.e(f"v_add_u32 v254, {sT0}, {vR2}")
        em.e(f"v_lshrrev_b32 v255, 4, {vL16}")
        em.e(f"v_cmp_gt_u32 vcc, {sT1}, v255")
        em.e("s_and_saveexec_b64 s[34:35], vcc")
        em.e(f"ds_write_b128 v254, v[{CSVB}:{CSVB+3}]")
        em.e("s_mov_b64 exec, s[34:35]")
        for q in range(10):
            em.e(f"v_lshlrev_b32 v{RES+2*q}, 16, v{RLB+q}")
            em.e(f"v_and_b32 v{RES+2*q+1}, 0xffff0000, v{RLB+q}")
        em.raw("    s_waitcnt lgkmcnt(0)")
        em.e("s_barrier")
        if cur["sfx"] == "F":
            uid[0] += 1; u = uid[0]
            em.e(f"s_add_u32 {sT1}, {sFLINE}, {FLG_XCC - FLG_G}")
            poll(sT1, "1", f"Lx{u}_p")
            em.e(f"v_cmp_ne_u32 vcc, {sMODE}, v253")
            if opt.get("force_slow", 0): em.e("s_branch Lk1_nocsS")
            em.e("s_cbranch_vccnz Lk1_nocsS")
        em.label(f"Lk1_nocs{cur['sfx']}")
        em.vm = svm; em.lg = []
        em.raw("    s_waitcnt lgkmcnt(0)")
        CS = 140
        for t in range(5):
            em.e(f"ds_read_b32 v{CS+t}, {vI4} offset:{L_CS1 + t*64}", lg="cs")
        KF = 148
        T1, T2 = 172, 173
        def nmr(tok, r): return NM4 + 8 * tok + r
        def rsr(tok, r): return NM4 + 8 * tok + 4 + r
        def rlr(tok, r): return 242 + 4 * tok + r
        em.wait(wlg=["cs"])
        XV = 176
        ops = []
        streams = []
        tmpc = [180]
        for (t, fr_) in ((0, KF), (1, KF + 4), (4, KF + 16)):
            for tok in range(2):
                for r in range(4):
                    a = P1 + 8 * t + 4 * tok + r
                    tt = 184 + (len(streams) % 8)
                    if t == 4:
                        s_ = [f"v_fmac_f32 v{a}, v{nmr(tok,r)}, v{CS+t}",
                              f"v_mul_f32 v{XV+4*tok+r}, v{a}, v{rsr(tok,r)}",
                              f"v_mul_f32 v{tt}, v{a}, v{rlr(tok,r)}",
                              f"v_exp_f32 v{tt}, v{tt} clamp",
                              f"v_max_f32 v{a}, 0, v{a}",
                              f"v_add_f32 v{tt}, {hex(EPS6)}, v{tt}",
                              f"v_fma_f32 v{a}, v{a}, v{rsr(tok,r)}, v{tt}"]
                    else:
                        s_ = [x[0] if isinstance(x, tuple) else x for x in phi_ops(a, CS + t, nmr(tok, r), rsr(tok, r), rlr(tok, r), tt, None)]
                    streams.append(s_)
        for k in range(0, len(streams), 4):
            lin(il(streams[k:k + 4]))
            ring.emit(em, 4)
        for t in (2, 3):
            for tok in range(2):
                for r in range(4):
                    a = P1 + 8 * t + 4 * tok + r
                    em.e(f"v_fmac_f32 v{a}, v{nmr(tok,r)}, v{CS+t}")
                for r in range(4):
                    a = P1 + 8 * t + 4 * tok + r
                    em.e(f"v_mul_f32 v{a}, v{a}, v{rsr(tok,r)}")
        for k in range(8):
            em.e(f"v_cndmask_b32 v{XV+k}, v{XV+k}, 1.0, {sI8}")
        def pack(dst, src_tok0, src_tok1):
            em.e(f"v_cvt_pk_bf16_f32 v{dst}, v{src_tok0}, v{src_tok0+1}"); em.e(f"v_cvt_pk_bf16_f32 v{dst+1}, v{src_tok0+2}, v{src_tok0+3}")
            em.e(f"v_cvt_pk_bf16_f32 v{dst+2}, v{src_tok1}, v{src_tok1+1}"); em.e(f"v_cvt_pk_bf16_f32 v{dst+3}, v{src_tok1+2}, v{src_tok1+3}")
        K0f, K1f, V0f, V1f, XKf, XPf = KF, KF + 4, KF + 8, KF + 12, KF + 16, KF + 20
        pack(K0f, P1 + 0, P1 + 4); pack(K1f, P1 + 8, P1 + 12); pack(V0f, P1 + 16, P1 + 20); pack(V1f, P1 + 24, P1 + 28)
        pack(XKf, P1 + 32, P1 + 36); pack(XPf, XV, XV + 4)
        D = 184
        for k, (A_, B_) in enumerate([(K0f, V0f), (K1f, V1f), (XKf, V0f), (XKf, V1f), (K0f, XPf), (K1f, XPf), (XKf, XPf)]):
            em.e(f"v_mfma_f32_16x16x32_bf16 v[{D+4*k}:{D+4*k+3}], v[{A_}:{A_+3}], v[{B_}:{B_+3}], 0")
        D1, D2, D3, D4, D5, D6, D7 = [D + 4 * k for k in range(7)]
        for r in range(4):
            em.e(f"v_cndmask_b32 v{D5+r}, v{D5+r}, v{D6+r}, {sBIT2}")
            em.e(f"v_cndmask_b32 v{D3+r}, v{D3+r}, v{D4+r}, {sMK[1]}")
        for r in range(4):
            em.e(f"v_permlane32_swap_b32 v{D3+r}, v{D7+r}")
        ring.emit(em, upto=13)
        assert ring.issued <= 13 and ring.next_round() <= 14 and not ring.q and ws.lastbar >= 6, (ring.issued, ws.lastbar)
        RP = (14 % NR) * 16384 - 65536
        em.e(f"v_add_u32 v254, {sW1K}, {vR1}"); em.e(f"v_add_u32 v255, {sW4K}, {vR1}")
        for t, src in enumerate((D1, D2, D5, D3)):
            em.e(f"ds_write_b128 v254, v[{src}:{src+3}] offset:{RP + t*4096}", lg="red")
        em.wait_all_lg()
        em.wait(wvm=[("dma", x) for x in range(ring.filled + 1, 9)])
        ring.filled = 8
        em.e("s_barrier")
        for k in range(4):
            em.e(f"ds_read_b128 v[{D+4*k}:{D+4*k+3}], v255 offset:{RP + k*1024}", lg=("rr", k))
        em.e(f"s_mul_i32 {sST}, {sLAYER}, {KVP_L}"); em.e(f"s_lshl_b32 {sST2}, {sM}, 16"); em.e(f"s_add_u32 {sST}, {sST}, {sST2}")
        em.e(f"s_add_u32 {sST}, {sST}, {KVP}"); em.e(f"s_add_u32 {sST}, {sST}, {sW1K}")
        em.e(f"s_lshl_b32 {sST2}, {sG}, 12"); em.e(f"s_add_u32 {sST2}, {sST2}, {sST}")
        for q in range(4): em.e(f"v_add_f32 v{D+q}, v{D+q}, v{D+4+q}", wlg=[("rr", 1)] if q == 0 else None)
        for q in range(4): em.e(f"v_add_f32 v{D+8+q}, v{D+8+q}, v{D+12+q}", wlg=[("rr", 3)] if q == 0 else None)
        for q in range(4): em.e(f"v_add_f32 v{D+q}, v{D+q}, v{D+8+q}")
        em.e(f"buffer_store_dwordx4 v[{D}:{D+3}], {vL16}, {S_WS}, {sST2} offen sc1", vm="kvst")
        stamp()
        P2 = ACC
        seg = Seg(); ws2 = WStream(ring, seg, "K1", SS=SS)
        fu = {}; lu = {}
        for b in range(20):
            for t in range(3):
                f = 100 + 3 * b + t; wr = ws2.wreg(f)
                for tok in range(2):
                    d = P2 + 8 * t + 4 * tok
                    c = "0" if b == 0 else f"v[{d}:{d+3}]"
                    wl = [("w", "K1", 100 + 3 * b + 2)] if (t == 0 and tok == 0) else None
                    i = seg.mfma(f"v_mfma_f32_16x16x32_bf16 v[{d}:{d+3}], v[{wr}:{wr+3}], a[{AX(b,tok)}:{AX(b,tok)+3}], {c}", wlg=wl)
                    if t == 0 and tok == 0: g0 = i
                    fu.setdefault(f, g0); lu[f] = i
        ws2.reads(list(range(100, 160)), fu, lu, nobar=(7, 8))
        assert len(ws2.events) == 1
        gb = ws2.events[0][0]
        for o in seg.gaps[gb]:
            if o.text == "s_barrier": o.wvm = list(o.wvm) + ["kvst"]
        pub = [Op(f"s_add_u32 {sT0}, {sLAYER}, 1"),
               Op(f"v_mov_b32 v254, {sT0}"), Op("v_mov_b32 v255, 0"),
               Op(f"s_mov_b64 exec, {sFEX}"),
               Op(f"buffer_store_dword v254, v255, {S_WS}, {sKOWN} offen sc1"),
               Op("s_mov_b64 exec, -1")]
        g = seg.stream(pub[:3], gb - 6)
        assert g < gb
        for o in pub[3:]: seg.put(gb + 1, o, 1)
        g = pt_place(seg, pt_o(), 2)
        g = pt_place(seg, pt_x(S_WS), g)
        g = pt_place(seg, pt_act(0), g)
        ws2.vmem([], lambda r: 0, margin=MARG, qd=QD, rate=RATE)
        CS4 = 140
        seg.stream([Op(f"ds_read_b128 v[{CS4+4*t}:{CS4+4*t+3}], {vG16} offset:{L_CS1 + (5+t)*64}", lg="cs4") for t in range(3)], 60)
        RLI = 152
        seg.stream([f"v_mul_f32 v{RLI+t}, {hex(LOG2E)}, v{SB+8+2*t+1}" for t in range(2)], 70)
        seg.emit(em)
        stamp()
        em.wait(wlg=["cs4"])
        streams = []
        for t in range(3):
            for tok in range(2):
                for r in range(4):
                    a = P2 + 8 * t + 4 * tok + r
                    tt = 184 + (len(streams) % 8)
                    streams.append([x[0] if isinstance(x, tuple) else x for x in phi_ops(a, CS4 + 4 * t + r, SB + 8 + 2 * tok, SB + 8 + 2 * tok + 1, RLI + tok, tt, None)])
        for k in range(0, len(streams), 4):
            lin(il(streams[k:k + 4]))
            ring.emit(em, 2)
        F = 156
        for tok in range(2):
            qa = P2 + 4 * tok; qb = P2 + 8 + 4 * tok; qx = P2 + 16 + 4 * tok
            fa = F + 8 * tok; fb = fa + 4
            em.e(f"v_cvt_pk_bf16_f32 v{fa}, v{qa}, v{qa+1}"); em.e(f"v_cvt_pk_bf16_f32 v{fa+1}, v{qa+2}, v{qa+3}")
            em.e(f"v_cvt_pk_bf16_f32 v{fa+2}, v{qx}, v{qx+1}"); em.e(f"v_cvt_pk_bf16_f32 v{fa+3}, v{qx+2}, v{qx+3}")
            em.e(f"v_cvt_pk_bf16_f32 v{fb}, v{qb}, v{qb+1}"); em.e(f"v_cvt_pk_bf16_f32 v{fb+1}, v{qb+2}, v{qb+3}")
            em.e(f"v_mov_b32 v{fb+2}, v{fa+2}"); em.e(f"v_mov_b32 v{fb+3}, v{fa+3}")
        uid[0] += 1; u = uid[0]
        em.e(f"s_cmp_lg_u32 {sW}, 0")
        em.e(f"s_cbranch_scc1 Lkv{u}_o")
        em.e(f"s_add_u32 {sT0}, {sLAYER}, 1")
        poll(sKLINE, sT0, f"Lkv{u}_p")
        em.label(f"Lkv{u}_o")
        em.e("s_barrier")
        ring.allowed = max(ring.allowed, 18)
        KL = 172
        for Gp in range(16):
            if Gp % 1 == 0: em.e(f"s_add_u32 {sST2}, {sST}, {Gp*4096}")
            em.e(f"buffer_load_dwordx4 v[{KL+4*Gp}:{KL+4*Gp+3}], {vL16}, {S_WS}, {sST2} offen sc1", vm=("kl", Gp))
        ring.emit(em, upto=18)
        for Gp in range(1, 16):
            for q in range(4):
                em.e(f"v_add_f32 v{KL+q}, v{KL+q}, v{KL+4*Gp+q}", wvm=[("kl", Gp)] if q == 0 else None)
        em.e(f"v_cvt_pk_bf16_f32 v{KL}, v{KL}, v{KL+1}"); em.e(f"v_cvt_pk_bf16_f32 v{KL+1}, v{KL+2}, v{KL+3}")
        em.e(f"s_lshl_b32 {sT0}, {sW}, 9"); em.e(f"v_add_u32 v254, {sT0}, {vL8}")
        em.e(f"ds_write_b64 v254, v[{KL}:{KL+1}] offset:{L_KVB}", lg="kw")
        em.wait_all_lg()
        em.e("s_barrier")
        R_ = 176
        for t in range(4):
            em.e(f"ds_read_b64 v[{R_+2*t}:{R_+2*t+1}], {vL8} offset:{L_KVB + t*512}", lg="kr")
        em.e(f"v_xor_b32 v254, 256, {vL8}")
        em.e(f"ds_read_b64 v[{R_+8}:{R_+9}], v254 offset:{L_KVB + 3*512}", lg="kr")
        em.e(f"v_and_b32 v254, 0xfffffe7f ^ 0, {vL8}" if False else f"v_lshlrev_b32 v254, 3, {vG16}")
        em.e(f"v_and_b32 v254, 0x3ff, v254")
        em.e(f"v_add_u32 v254, 0x20000, v254")
        em.e(f"ds_read_b64 v[{R_+10}:{R_+11}], v254 offset:{L_KVB + 2*512}", lg="kr")
        em.e(f"ds_read_b64 v[{R_+12}:{R_+13}], v254 offset:{L_KVB + 2*512 + 32}", lg="kr")
        em.e("v_mov_b32 v255, 0x20000")
        em.e(f"ds_read_b64 v[{R_+14}:{R_+15}], v255 offset:{L_KVB + 3*512 + 32*8}", lg="kr")
        em.e(f"ds_read_b64 v[{R_+16}:{R_+17}], v255 offset:{L_KVB + 3*512 + 52*8}", lg="kr")
        em.wait_all_lg()
        t1, t2, t3, t4, t4x, za, zb, zxa, zxb = [R_ + 2 * k for k in range(9)]
        AF = 196
        Aa, Ab, Axa, Axb, Aza, Azb = [AF + 4 * k for k in range(6)]
        mg0, mg1, ma, mb, mga, mgb = sMK
        def cp(dst, src):
            em.e(f"v_mov_b32 v{dst}, v{src}"); em.e(f"v_mov_b32 v{dst+1}, v{src+1}")
        def mk(dst, src, m):
            em.e(f"v_cndmask_b32 v{dst}, 0, v{src}, {m}"); em.e(f"v_cndmask_b32 v{dst+1}, 0, v{src+1}, {m}")
        cp(Aa, t1); mk(Aa + 2, t4, mg0)
        cp(Ab, t2); mk(Ab + 2, t4, mg1)
        mk(Axa, t3, ma); mk(Axa + 2, t4x, mga)
        mk(Axb, t3, mb); mk(Axb + 2, t4x, mgb)
        cp(Aza, za); mk(Aza + 2, zxa, mg0)
        cp(Azb, zb); mk(Azb + 2, zxb, mg1)
        O = 100
        for tok in range(2):
            fa = F + 8 * tok; fb = fa + 4; o = O + 20 * tok
            em.e(f"v_mfma_f32_16x16x32_bf16 v[{o+12}:{o+15}], v[{Aza}:{Aza+3}], v[{fa}:{fa+3}], 0")
            em.e(f"v_mfma_f32_16x16x32_bf16 v[{o+16}:{o+19}], v[{Azb}:{Azb+3}], v[{fb}:{fb+3}], 0")
            em.e(f"v_mfma_f32_16x16x32_bf16 v[{o}:{o+3}], v[{Aa}:{Aa+3}], v[{fa}:{fa+3}], 0")
            em.e(f"v_mfma_f32_16x16x32_bf16 v[{o+4}:{o+7}], v[{Ab}:{Ab+3}], v[{fb}:{fb+3}], 0")
            em.e(f"v_mfma_f32_16x16x32_bf16 v[{o+8}:{o+11}], v[{Axa}:{Axa+3}], v[{fa}:{fa+3}], 0")
            em.e(f"v_mfma_f32_16x16x32_bf16 v[{o+8}:{o+11}], v[{Axb}:{Axb+3}], v[{fb}:{fb+3}], v[{o+8}:{o+11}]")
        em.e(f"s_mul_i32 {sST}, {LB()}, {O_SZ}"); em.e(f"s_mul_i32 {sST2}, {sTT2}, 20480"); em.e(f"s_add_u32 {sST}, {sST}, {sST2}")
        em.e(f"s_add_u32 {sST}, {sST}, {OB}")
        em.e(f"s_lshl_b32 {sST2}, {sM}, 10"); em.e(f"s_add_u32 {sST2}, {sST2}, {sST}")
        for tok in range(2):
            o = O + 20 * tok
            em.e(f"v_add_f32 v{o+12}, {hex(EPS6)}, v{o+12}"); em.e(f"v_add_f32 v{o+16}, {hex(EPS6)}, v{o+16}")
            em.e(f"v_rcp_f32 v{o+12}, v{o+12}"); em.e(f"v_rcp_f32 v{o+16}, v{o+16}")
            em.e(f"v_cndmask_b32 v{o+13}, v{o+12}, v{o+16}, {sG3}")
            for r in range(4):
                em.e(f"v_mul_f32 v{o+r}, v{o+r}, v{o+12}"); em.e(f"v_mul_f32 v{o+4+r}, v{o+4+r}, v{o+16}")
                em.e(f"v_mul_f32 v{o+8+r}, v{o+8+r}, v{o+13}")
            em.e(f"v_cvt_pk_bf16_f32 v{o}, v{o}, v{o+1}"); em.e(f"v_cvt_pk_bf16_f32 v{o+1}, v{o+2}, v{o+3}")
            em.e(f"v_cvt_pk_bf16_f32 v{o+2}, v{o+4}, v{o+5}"); em.e(f"v_cvt_pk_bf16_f32 v{o+3}, v{o+6}, v{o+7}")
            em.e(f"v_cvt_pk_bf16_f32 v{o+8}, v{o+8}, v{o+9}"); em.e(f"v_cvt_pk_bf16_f32 v{o+9}, v{o+10}, v{o+11}")
            va = vL16 if tok == 0 else vL16B
            em.e(f"buffer_store_dwordx4 v[{o}:{o+3}], {va}, {S_WS}, {sST2} offen{cur['STO']}", vm="ost")
            if tok == 1: em.e(f"s_add_u32 {sST}, {sST}, 20480")
            em.e(f"s_mov_b64 exec, {sG23}")
            em.e(f"buffer_store_dwordx2 v[{o+8}:{o+9}], {vOREM}, {S_WS}, {sST} offen{cur['STO']}", vm="ost")
            em.e("s_mov_b64 exec, -1")

    def K24(ph, nblk, final_possible):
        AX = lambda b, t: 4 * b
        if ph == "K2":
            em.e(f"s_mul_i32 {sA}, {LB()}, {O_SZ}"); em.e(f"s_mul_i32 {sT0}, {sTT1}, 20480"); em.e(f"s_add_u32 {sA}, {sA}, {sT0}"); em.e(f"s_add_u32 {sA}, {sA}, {OB}")
        else:
            em.e(f"s_mul_i32 {sA}, {LB()}, {ACT_SZ}"); em.e(f"s_mul_i32 {sT0}, {sTT1}, {54*1024}"); em.e(f"s_add_u32 {sA}, {sA}, {sT0}"); em.e(f"s_add_u32 {sA}, {sA}, {ACT}")
        seg = Seg(); ws = WStream(ring, seg, ph, SS=SS, LA=opt.get("la4", 10))
        fu = {}; lu = {}; wa = {}
        for b in range(nblk):
            for t in range(5):
                f = b * 5 + t; wr = ws.wreg(f); d = RES + 4 * t
                wv = [("a", b, 0)] if t == 0 else None
                i = seg.mfma(f"v_mfma_f32_16x16x32_bf16 v[{d}:{d+3}], v[{wr}:{wr+3}], a[{4*b}:{4*b+3}], v[{d}:{d+3}]", wvm=wv, wlg=[("w", ph, b * 5 + 4)] if t == 0 else None)
                fu[f] = i; lu[f] = i; wa[f] = 5 * b
        al = a_loads(1, nblk, None, "a", AX)
        if ph == "K2":
            ws.reads(list(range(nblk * 5)), fu, lu, nobar=(12, 16), force=(14,), wait_at=wa)
            ws.vmem(a_jobs(al, lambda b: 5 * b - 30), lambda r: opt.get("k2w", 50), margin=MARG, qd=QD, rate=opt.get("r2", 35) / 10.0)
        else:
            ws.reads(list(range(nblk * 5)), fu, lu, wait_at=wa)
            ws.vmem(a_jobs(al, lambda b: 5 * b - 30), lambda r: 0 if r < 52 else opt.get("k4w", 215), margin=MARG, qd=QD, rate=opt.get("r4", 28) / 10.0)
        g = 0
        if ph == "K4": pt_place(seg, pt_x(S_WSN), opt.get("k4pt", 170))
        for g in range(1, nblk * 5 - 13, 30): lstamp(seg, g)
        seg.emit(em)
        stamp()
        P = TMP
        for t in range(5):
            em.e(f"v_cvt_pk_bf16_f32 v{P+2*t}, v{RES+4*t}, v{RES+4*t+1}"); em.e(f"v_cvt_pk_bf16_f32 v{P+2*t+1}, v{RES+4*t+2}, v{RES+4*t+3}")
        uid[0] += 1; u = uid[0]
        if final_possible:
            em.e(f"s_cmp_eq_u32 {sLAYER}, 1"); em.e(f"s_cbranch_scc1 Lfin{u}")
        em.e(f"s_mov_b32 {sXI}, 1" if reuse() else f"s_add_u32 {sXI}, {sXI}, 1")
        em.e(f"s_mul_i32 {sST}, {sXI}, {X_SZ}"); em.e(f"s_mul_i32 {sT0}, {sTT1}, 20480"); em.e(f"s_add_u32 {sST}, {sST}, {sT0}"); em.e(f"s_add_u32 {sST}, {sST}, {XB}")
        em.e(f"s_lshr_b32 {sT0}, {sC8}, 1"); em.e(f"s_mul_i32 {sT0}, {sT0}, 5")
        em.e(f"s_lshl_b32 {sT1}, {sODD}, 1"); em.e(f"s_add_u32 {sT1}, {sT1}, {sT0}"); em.e(f"s_lshl_b32 {sT1}, {sT1}, 10"); em.e(f"s_add_u32 {sT1}, {sT1}, {sST}")
        em.e(f"buffer_store_dwordx4 v[{P}:{P+3}], {vL16}, {S_WS}, {sT1} offen{cur['STO']}", vm="xst")
        em.e(f"buffer_store_dwordx4 v[{P+4}:{P+7}], {vL16}, {S_WS}, {sT1} offen offset:1024{cur['STO']}", vm="xst")
        em.e(f"s_add_u32 {sT0}, {sT0}, 4"); em.e(f"s_lshl_b32 {sT0}, {sT0}, 10"); em.e(f"s_add_u32 {sT0}, {sT0}, {sST}")
        em.e(f"s_lshl_b32 {sT1}, {sODD}, 3"); em.e(f"s_add_u32 {sT0}, {sT0}, {sT1}")
        em.e(f"buffer_store_dwordx2 v[{P+8}:{P+9}], {vL16}, {S_WS}, {sT0} offen{cur['STO']}", vm="xst")
        a, b_, x, y = 224, 225, 226, 227
        em.e(f"v_add_f32 v{a}, v{RES}, v{RES+1}"); em.e(f"v_mul_f32 v{b_}, v{RES}, v{RES}"); em.e(f"v_fmac_f32 v{b_}, v{RES+1}, v{RES+1}")
        em.e(f"v_add_f32 v{x}, v{RES+2}, v{RES+3}"); em.e(f"v_mul_f32 v{y}, v{RES+2}, v{RES+2}"); em.e(f"v_fmac_f32 v{y}, v{RES+3}, v{RES+3}")
        for k in range(4, 20, 2):
            em.e(f"v_add_f32 v{a}, v{a}, v{RES+k}"); em.e(f"v_fmac_f32 v{b_}, v{RES+k}, v{RES+k}")
            em.e(f"v_add_f32 v{x}, v{x}, v{RES+k+1}"); em.e(f"v_fmac_f32 v{y}, v{RES+k+1}, v{RES+k+1}")
        em.e(f"v_add_f32 v{a}, v{a}, v{x}"); em.e(f"v_add_f32 v{b_}, v{b_}, v{y}")
        for sw in ("v_permlane32_swap_b32", "v_permlane16_swap_b32"):
            em.e(f"v_mov_b32 v{x}, v{a}"); em.e(f"v_mov_b32 v{y}, v{b_}")
            em.e(f"{sw} v{a}, v{x}"); em.e(f"{sw} v{b_}, v{y}")
            em.e(f"v_add_f32 v{a}, v{a}, v{x}"); em.e(f"v_add_f32 v{b_}, v{b_}, v{y}")
        em.e(f"s_mul_i32 {sST}, {sXI}, {ST_SZ}"); em.e(f"s_lshl_b32 {sT0}, {sTT1}, 10"); em.e(f"s_add_u32 {sST}, {sST}, {sT0}")
        em.e(f"s_lshl_b32 {sT0}, {sC8}, 7"); em.e(f"s_add_u32 {sST}, {sST}, {sT0}"); em.e(f"s_add_u32 {sST}, {sST}, {ST}")
        em.e(f"s_mov_b64 exec, {sMK[0]}")
        em.e(f"buffer_store_dwordx2 v[{a}:{a+1}], {vSTO}, {S_WS}, {sST} offen{cur['STO']}", vm="xst")
        em.e("s_mov_b64 exec, -1")
        if final_possible:
            em.e(f"s_branch Lfin{u}_x")
            em.label(f"Lfin{u}")
            em.e(f"s_mul_i32 {sST}, {sTT1}, {16*1280}"); em.e(f"s_mul_i32 {sT0}, {sC8}, 160"); em.e(f"s_add_u32 {sST}, {sST}, {sT0}")
            for t in range(5):
                em.e(f"buffer_store_dwordx2 v[{P+2*t}:{P+2*t+1}], {vOUT}, {S_OUT}, {sST} offen offset:{t*32}")
            em.raw("    s_waitcnt vmcnt(0)")
            stamp(); nstamp[0] -= 1
            dump_stamps()
            em.e("s_endpgm")
            em.label(f"Lfin{u}_x")

    def K3():
        AX = lambda b, t: 80 * t + 4 * b
        SB = TMP
        set_sA_x()
        seg = Seg(); ws = WStream(ring, seg, "K3", SS=SS)
        fu = {}; lu = {}
        pend = []
        def acc(t, mat, tok): return ACC + ((2 * t + mat) * 2 + tok) * 4
        for p in range(4):
            ts = (2 * p, 2 * p + 1) if p < 3 else (6,)
            for b in range(20):
                first = True
                for t in ts:
                    for mat in range(2):
                        f = pw3_index(b, t, mat); wr = ws.wreg(f)
                        for tok in range(2):
                            d = acc(t, mat, tok)
                            c = "0" if b == 0 else f"v[{d}:{d+3}]"
                            wl = [("w", "K3", pw3_index(b, ts[-1], 1))] if first else None
                            wv = [("a", b, 1)] if (p == 0 and first) else None
                            i = seg.mfma(f"v_mfma_f32_16x16x32_bf16 v[{d}:{d+3}], v[{wr}:{wr+3}], a[{AX(b,tok)}:{AX(b,tok)+3}], {c}", wvm=wv, wlg=wl)
                            if first: g0 = i
                            first = False
                            fu.setdefault(f, g0); lu[f] = i
            pend.append(seg.n())
        al = a_loads(2, 20, None, "a", AX)
        sl = stats_loads(SB)
        for o in sl: seg.put(0, o, 0)
        ws.reads(list(range(280)), fu, lu)
        ws.vmem(a_jobs(al, lambda b: 8 * b - 24), lambda r: 0, margin=MARG, qd=QD, rate=opt.get("r3", 38) / 10.0)
        so = stats_ops(SB)
        for t in range(2):
            so.append(f"v_mul_f32 v{SB+4*t}, {hex(LOG2E | 0x80000000)}, v{SB+8+2*t+1}")
        seg.stream(so, 40)
        so = [f"s_mul_i32 {sST}, {LB()}, {ACT_SZ}", f"s_mul_i32 {sST2}, {sTT2}, {54*1024}", f"s_add_u32 {sST}, {sST}, {sST2}",
              f"s_add_u32 {sST}, {sST}, {ACT}", f"s_lshl_b32 {sST2}, {sM}, 10", f"s_add_u32 {sST2}, {sST2}, {sST}"]
        seg.stream(so, 100)
        CSR = 226
        ET = 242
        def epi(p):
            ts = (2 * p, 2 * p + 1) if p < 3 else (6,)
            ops = []
            for k, t in enumerate(ts):
                for mat in range(2):
                    r = CSR + 8 * k + 4 * mat
                    ops.append(Op(f"ds_read_b128 v[{r}:{r+3}], {vG16} offset:{L_CS3 + (2*t+mat)*64}", lg=("c3", p)))
            for tok in range(2):
                nm = SB + 8 + 2 * tok; c1 = SB + 4 * tok; kk = SB + 4 * tok + 1
                streams = []
                for k, t in enumerate(ts):
                    for r in range(4):
                        g_ = acc(t, 0, tok) + r; u_ = acc(t, 1, tok) + r
                        e_ = ET + (len(streams) % 4)
                        streams.append([Op(f"v_fmac_f32 v{g_}, v{nm}, v{CSR+8*k+r}", wlg=[("c3", p)]),
                                        f"v_fmac_f32 v{u_}, v{nm}, v{CSR+8*k+4+r}",
                                        f"v_mul_f32 v{e_}, v{g_}, v{c1}",
                                        (Op(f"v_exp_f32 v{e_}, v{e_}"), 2),
                                        f"v_mul_f32 v{g_}, v{g_}, v{u_}",
                                        f"v_fma_f32 v{e_}, v{e_}, v{kk}, v{kk}",
                                        (Op(f"v_rcp_f32 v{e_}, v{e_}"), 2),
                                        f"v_mul_f32 v{g_}, v{g_}, v{e_}"])
                for k in range(0, len(streams), 4):
                    ops += il(streams[k:k + 4])
                PK = 250
                if p < 3:
                    a0 = acc(ts[0], 0, tok); a1 = acc(ts[1], 0, tok)
                    PKr = acc(ts[0], 1, tok)
                    ops += [f"v_cvt_pk_bf16_f32 v{PKr}, v{a0}, v{a0+1}", f"v_cvt_pk_bf16_f32 v{PKr+1}, v{a0+2}, v{a0+3}",
                            f"v_cvt_pk_bf16_f32 v{PKr+2}, v{a1}, v{a1+1}", f"v_cvt_pk_bf16_f32 v{PKr+3}, v{a1+2}, v{a1+3}"]
                    va = vL16
                    off = p * 16384 + tok * 54 * 1024
                    ops.append(Op(f"s_add_u32 {sT0}, {sST2}, {off}"))
                    ops.append(Op(f"buffer_store_dwordx4 v[{PKr}:{PKr+3}], {va}, {S_WS}, {sT0} offen{cur['STO']}", vm="ast"))
                else:
                    a0 = acc(6, 0, tok); PKr = acc(6, 1, tok)
                    ops += [f"v_cvt_pk_bf16_f32 v{PKr}, v{a0}, v{a0+1}", f"v_cvt_pk_bf16_f32 v{PKr+1}, v{a0+2}, v{a0+3}"]
                    ops.append(Op(f"s_add_u32 {sT0}, {sST}, {tok*54*1024}"))
                    ops.append(Op(f"s_mov_b64 exec, {sG012}"))
                    ops.append(Op(f"buffer_store_dwordx2 v[{PKr}:{PKr+1}], {vACT6}, {S_WS}, {sT0} offen{cur['STO']}", vm="ast"))
                    ops.append(Op("s_mov_b64 exec, -1"))
            return ops
        for p in range(1, 4): pt_place(seg, pt_act(p), 160 * p - 50)
        ge = 0
        for p in range(3):
            ge = seg.stream(epi(p), max(pend[p] + 2, ge))
        for g in range(1, 560, 40): lstamp(seg, g)
        seg.emit(em)
        stamp()
        lin(epi(3))

    def finish_if(p):
        if stop <= 8 and (stop - 1) % 4 + 1 == p:
            lay = (stop - 1) // 4
            em.e(f"s_cmp_lg_u32 {sLAYER}, {lay}"); em.e(f"s_cbranch_scc1 Lstop{p}{cur['sfx']}")
            em.raw("    s_waitcnt vmcnt(0) lgkmcnt(0)")
            dump_stamps()
            em.e("s_endpgm")
            em.label(f"Lstop{p}{cur['sfx']}")
    cnt0 = WStream.cnt
    for sfx, sto in (("F", ""), ("S", " sc1")):
        cur["sfx"] = sfx; cur["STO"] = sto; cur["LD"] = sto if not opt.get("ldsc1", 1) else " sc1"
        nstamp[0] = 0; lsn[0] = 0
        WStream.cnt = cnt0
        em.label(f"Lm_layer{sfx}")
        em.vm = list(head_vm); em.lg = []
        ring.filled = -1; ring.issued = HEAD; ring.allowed = 8; ring.q = []
        em.e(f"s_cmp_eq_u32 {sLAYER}, 1"); em.e(f"s_cselect_b32 s14, 0, {WS_END}")
        stamp()
        K1(); stamp(); finish_if(1)
        transition(1, 1, 9, ["ost"], 16, 0, 0); stamp()
        K24("K2", 20, False); stamp(); finish_if(2)
        transition(2, 2, 16, ["xst"], 18, opt.get("d21", 8), opt.get("d22", 8)); stamp()
        K3(); stamp(); finish_if(3)
        transition(4, 4, 34, ["ast"], 36, opt.get("d31", 4), opt.get("d32", 4)); stamp()
        K24("K4", 54, True); stamp(); finish_if(4)
        transition(5, 5, 53, ["xst"], 53, opt.get("d41", 8), 100, upto2=54 + HEAD)
        stamp()
        assert ring.issued == 54 + HEAD and not ring.q, (ring.issued, ring.q)
        em.e(f"s_add_u32 {sLAYER}, {sLAYER}, 1"); em.e(f"s_add_u32 {sSTEP}, {sSTEP}, 5")
        em.e(f"s_branch Lm_layer{sfx}")
    em.label("Lm_done")
    em.e("s_endpgm")
    return em.lines


def build(opt):
    pl = gen_prep("prep_kernel", stamp=opt.get("stamps", 0))
    if opt.get("pst"):
        sfx = {1: " sc1", 2: " nt", 3: " sc0 sc1", 4: " sc1 nt"}[opt["pst"]]
        pl = [l + sfx if "buffer_store" in l else l for l in pl]
    pl, n1 = fix_hazards(pl)
    ml = gen_main(opt)
    ml, n2 = fix_hazards(ml)
    ref = open("interleave_layers__linear_attn_block__swiglu_ffn__prompt.s.ref").read() if opt.get("hdr", False) else ""
    hdr = [l for l in ref.split("\n") if l.startswith(";") and "@launch" not in l and "Override launch" not in l and "grid=ceil" not in l]
    out = hdr + [f"; @launch kernel=prep_kernel grid=({PREP_WGS},1,1) block=(256,1,1) lds={PREP_LDS}",
           f"; @launch kernel={KNAME} grid=(256,1,1) block=(256,1,1) lds={MAIN_LDS}",
           '.amdgcn_target "amdgcn-amd-amdhsa--gfx950"', ".text",
           ".globl prep_kernel", ".p2align 8", ".type prep_kernel,@function"] + pl + \
          [f".globl {KNAME}", ".p2align 8", f".type {KNAME},@function"] + ml + \
          [kdesc("prep_kernel", 112, 112), kdesc(KNAME, 512, 256, 100)]
    sys.stderr.write(f"nops inserted: prep {n1} main {n2}; main lines {len(ml)}\n")
    return "\n".join(out)


if __name__ == "__main__":
    opt = {}
    for a in sys.argv[1:]:
        k, v = a.split("="); opt[k] = int(v)
    print(build(opt))
```

```python
import re

class Op:
    __slots__ = ("text", "vm", "lg", "wvm", "wlg", "cost", "raw")
    def __init__(self, text, vm=None, lg=None, wvm=None, wlg=None, cost=1, raw=False):
        self.text = text; self.vm = vm; self.lg = lg
        self.wvm = wvm or []; self.wlg = wlg or []; self.cost = cost; self.raw = raw

def _regs(tok):
    tok = tok.strip()
    m = re.fullmatch(r"(-|abs\()?([vas])(\d+)\)?", tok)
    if m: return [(m.group(2), int(m.group(3)))]
    m = re.fullmatch(r"-?([vas])\[(\d+):(\d+)\]", tok)
    if m: return [(m.group(1), i) for i in range(int(m.group(2)), int(m.group(3)) + 1)]
    if tok == "vcc": return [("s", "vcc")]
    if tok == "exec": return [("s", "exec")]
    if tok == "m0": return [("s", "m0")]
    return []

TRANS = ("v_exp_f32", "v_log_f32", "v_rcp_f32", "v_rsq_f32", "v_sqrt_f32", "v_sin_f32", "v_cos_f32")

class Ins:
    def __init__(self, text):
        self.text = text
        t = text.split(";")[0].strip()
        self.kind = "other"; self.w = set(); self.r = set(); self.srcC = set(); self.nop = 0
        self.ab = set(); self.store_data = set(); self.wide = False
        if not t or t.endswith(":") or t.startswith("."):
            self.kind = "label" if t.endswith(":") else "none"; return
        parts = t.split(None, 1)
        mn = parts[0]; self.mn = mn
        ops = []
        if len(parts) > 1:
            rest = parts[1]
            ops = [o.strip() for o in rest.split(",")]
            if ops:
                last = ops[-1].split()
                ops[-1] = last[0] if last else ""
                self.mods = last[1:]
        R = [_regs(o) for o in ops]
        if mn == "s_nop":
            self.kind = "nop"; self.nop = int(ops[0], 0) + 1; return
        if mn.startswith("v_mfma"):
            self.kind = "mfma"
            self.w = set(R[0]); self.ab = set(R[1]) | set(R[2]); self.srcC = set(R[3]); self.r = self.ab | self.srcC
            self.passes = 4 if "16x16x32" in mn or "16x16x16" in mn else 8
            return
        if mn.startswith("v_cmp"):
            self.kind = "valu"; self.w = set(R[0])
            for x in R[1:]: self.r |= set(x)
            if mn.startswith("v_cmpx"): self.w.add(("s", "exec"))
            return
        if mn.startswith("v_readfirstlane") or mn.startswith("v_readlane"):
            self.kind = "valu"; self.sub = "readlane"; self.w = set(R[0])
            for x in R[1:]: self.r |= set(x)
            return
        if mn.startswith("v_permlane"):
            self.kind = "valu"; self.sub = "permlane"; self.w = set(R[0]) | set(R[1]); self.r = set(self.w); return
        if mn.startswith("v_"):
            self.kind = "valu"; self.w = set(R[0])
            start = 1
            if mn.startswith(("v_add_co", "v_sub_co", "v_addc_co", "v_subb_co")):
                self.w |= set(R[1]); start = 2
            for x in R[start:]: self.r |= set(x)
            if mn.startswith(("v_fmac", "v_mac", "v_pk_fmac", "v_dot2c")) or "dpp" in t or mn.startswith("v_accvgpr_write") and False:
                self.r |= set(R[0])
            if mn.startswith("v_cndmask") and len(ops) == 3: self.r.add(("s", "vcc"))
            if mn in TRANS or any(mn.startswith(x) for x in TRANS): self.sub = "trans"
            if "dpp" in t or "row_" in t or "quad_perm" in t: self.sub = "dpp"
            return
        if mn.startswith("ds_"):
            self.kind = "ds"
            if mn.startswith(("ds_read", "ds_bpermute", "ds_permute", "ds_swizzle")):
                self.w = set(R[0])
                for x in R[1:]: self.r |= set(x)
            else:
                for x in R: self.r |= set(x)
            return
        if mn.startswith(("buffer_wbl2", "buffer_inv")):
            self.kind = "other"; return
        if mn.startswith(("buffer_", "global_")):
            self.kind = "vmem"
            islds = " lds" in (" " + t)
            if mn.startswith("buffer_load") and not islds:
                self.w = set(R[0])
                for x in R[1:]: self.r |= set(x)
            elif mn.startswith("buffer_load"):
                for x in R: self.r |= set(x)
                self.r.add(("s", "m0")); self.ldsdma = True
            elif mn.startswith("buffer_store") or mn.startswith("buffer_atomic"):
                for x in R: self.r |= set(x)
                self.store_data = set(R[0]); self.wide = ("x3" in mn or "x4" in mn)
            elif mn.startswith("global_load"):
                self.w = set(R[0])
                for x in R[1:]: self.r |= set(x)
            else:
                for x in R: self.r |= set(x)
                self.store_data = set(R[1]); self.wide = ("x3" in mn or "x4" in mn)
            return
        if mn.startswith("s_"):
            self.kind = "salu"
            if mn.startswith(("s_cmp", "s_cbranch", "s_branch", "s_barrier", "s_waitcnt", "s_endpgm", "s_setprio", "s_sleep", "s_bitcmp")):
                for x in R: self.r |= set(x)
                if mn.startswith(("s_cbranch", "s_branch")): self.kind = "branch"
                return
            if R: self.w = set(R[0])
            for x in R[1:]: self.r |= set(x)
            if "saveexec" in mn: self.w.add(("s", "exec"))
            return

def vga(s):
    return {x for x in s if x[0] in "va"}
def sg(s):
    return {x for x in s if x[0] == "s"}

def need_states(p, c):
    n = 0
    sub_p = getattr(p, "sub", None); sub_c = getattr(c, "sub", None)
    if p.kind == "valu":
        pw = vga(p.w); ps = sg(p.w)
        if p.mn.startswith("v_dot"):
            if c.kind == "valu" and c.mn == p.mn:
                srcs = c.r - c.w
                if pw & srcs: n = max(n, 3)
            elif (pw & (c.r | c.w)): n = max(n, 3)
        if c.kind == "mfma" and (pw & c.r): n = max(n, 2)
        if c.kind == "mfma" and ("s", "exec") in ps: n = max(n, 4)
        if c.kind == "valu":
            if sub_c == "permlane" and (pw & c.r): n = max(n, 2)
            if sub_c == "dpp" and (pw & c.r): n = max(n, 2)
            if sub_c == "dpp" and ("s", "exec") in ps: n = max(n, 5)
            if sub_c == "readlane" and (pw & vga(c.r)): n = max(n, 1)
            if sub_c == "readlane" and (ps & sg(c.r)): n = max(n, 4)
            if sub_c in ("readlane", "permlane") and ("s", "exec") in ps: n = max(n, 4)
            if ps & sg(c.r): n = max(n, 2)
            if sub_p == "trans" and sub_c != "trans" and (pw & (c.r | c.w)): n = max(n, 1)
            if sub_p == "trans" and sub_c == "trans" and (pw & c.r): n = max(n, 1)
        if c.kind == "vmem" and (ps & sg(c.r)): n = max(n, 5)
        if c.kind in ("salu", "branch") and (ps & sg(c.r)): n = max(n, 4)
        if c.kind == "branch" and (("s", "vcc") in ps) and "vcc" in c.mn: n = max(n, 5)
        if c.kind == "branch" and (("s", "exec") in ps) and "exec" in c.mn: n = max(n, 5)
    if p.kind == "mfma":
        big = {4: 8, 8: 12}[p.passes]; ov = {4: 6, 8: 10}[p.passes]; war = {4: 3, 8: 7}[p.passes]
        if c.kind == "mfma":
            if p.w & c.ab: n = max(n, big)
            if p.w & c.srcC:
                if not (p.w == c.srcC and p.passes == c.passes): n = max(n, ov)
            if (p.w & c.w) and not (p.w & c.srcC): n = max(n, big)
        elif c.kind == "valu":
            if p.w & (c.r | c.w): n = max(n, big)
            if p.srcC & vga(c.w): n = max(n, war)
        elif c.kind in ("ds", "vmem"):
            if p.w & (c.r | c.w): n = max(n, big)
    if p.kind == "salu":
        if ("s", "m0") in p.w and c.kind == "vmem" and getattr(c, "ldsdma", False): n = max(n, 1)
    if p.kind == "vmem" and p.wide and p.store_data:
        if c.kind == "valu" and (p.store_data & vga(c.w)): n = max(n, 2)
        elif c.kind in ("ds", "vmem", "mfma") and (p.store_data & vga(c.w)): n = max(n, 1)
    return n

def fix_hazards(lines, window=24):
    out = []
    nins = 0
    for ln in lines:
        ins = Ins(ln)
        if ins.kind in ("none", "label"):
            out.append((ln, ins)); continue
        if ins.kind != "nop":
            dist = 0; need = 0
            for (t2, p) in reversed(out):
                if p.kind in ("none", "label"): continue
                if p.kind == "nop":
                    dist += p.nop
                else:
                    k = need_states(p, ins)
                    if k > dist: need = max(need, k - dist)
                    dist += 1
                if dist >= window: break
            while need > 0:
                k = min(need, 16)
                t = f"    s_nop {k-1}"
                out.append((t, Ins(t))); nins += k; need -= k
        out.append((ln, ins))
    return [t for t, _ in out], nins

class Em:
    def __init__(self):
        self.lines = []; self.vm = []; self.lg = []
    def raw(self, s): self.lines.append(s)
    def label(self, s): self.lines.append(s + ":")
    def c(self, s): self.lines.append("    ; " + s)
    def _wait(self, wvm, wlg):
        nv = None; nl = None
        if wvm:
            idx = -1
            for i, t in enumerate(self.vm):
                if t in wvm: idx = i
            if idx >= 0:
                nv = min(len(self.vm) - 1 - idx, 63)
                self.vm = self.vm[len(self.vm) - nv:] if nv > 0 else []
        if wlg:
            idx = -1
            for i, t in enumerate(self.lg):
                if t in wlg: idx = i
            if idx >= 0:
                nl = min(len(self.lg) - 1 - idx, 15)
                self.lg = self.lg[len(self.lg) - nl:] if nl > 0 else []
        if nv is not None or nl is not None:
            s = "    s_waitcnt"
            if nv is not None: s += f" vmcnt({nv})"
            if nl is not None: s += f" lgkmcnt({nl})"
            self.lines.append(s)
    def op(self, o):
        if isinstance(o, str): o = Op(o)
        self._wait(o.wvm, o.wlg)
        self.lines.append(o.text if o.raw else "    " + o.text)
        if o.vm is not None: self.vm.append(o.vm)
        if o.lg is not None: self.lg.append(o.lg)
    def e(self, text, vm=None, lg=None, wvm=None, wlg=None):
        self.op(Op(text, vm=vm, lg=lg, wvm=wvm, wlg=wlg))
    def wait(self, wvm=None, wlg=None):
        self._wait(wvm or [], wlg or [])
    def wait_all_vm(self):
        self.lines.append("    s_waitcnt vmcnt(0)"); self.vm = []
    def wait_all_lg(self):
        self.lines.append("    s_waitcnt lgkmcnt(0)"); self.lg = []
    def wait_all(self):
        self.lines.append("    s_waitcnt vmcnt(0) lgkmcnt(0)"); self.vm = []; self.lg = []
```

```python
from asmlib import *
from layout import *

def magic(d, maxv):
    for sh in range(1, 32):
        m = -(-(1 << sh) // d)
        if m * maxv >= (1 << 32): break
        if all((x * m) >> sh == x // d for x in range(maxv)): return m, sh
    raise Exception("no magic")
def sdiv(em, dst, src, d, maxv):
    m, sh = magic(d, maxv)
    em.e(f"s_mul_i32 {dst}, {src}, {m}")
    em.e(f"s_lshr_b32 {dst}, {dst}, {sh}")

PREP_WGS = 259
PREP_LDS = 65536
CS1_N = 20
CS3_N = 10
def gen_prep(name, stamp=False, mono=False, sfx=" sc1", sx=0, k3b=0, wsoff=0):
    em = Em()
    J = "s47" if mono else "s2"
    if not mono: em.label(name)
    if stamp:
        em.e("s_memrealtime s[60:61]"); em.e("s_load_dwordx2 s[62:63], s[0:1], 64")
        em.raw("    s_waitcnt lgkmcnt(0)")
        em.e("s_cmp_lg_u32 s2, 0"); em.e("s_cbranch_scc1 Lp_ns")
        em.e("v_mov_b32 v110, s60"); em.e("v_mov_b32 v111, 0")
        em.e("global_store_dword v111, v110, s[62:63]")
        em.label("Lp_ns")
    if not mono:
        em.e(f"s_cmp_ge_u32 s2, {PREP_WGS}")
        em.e("s_cbranch_scc1 Lp_done")
    em.e("s_load_dwordx4 s[4:7], s[0:1], 0")
    em.e("s_load_dwordx2 s[8:9], s[0:1], 16")
    em.e("s_load_dwordx4 s[12:15], s[0:1], 32")
    em.e("s_load_dwordx2 s[10:11], s[0:1], 48")
    em.e("s_load_dwordx2 s[16:17], s[0:1], 72")
    em.e("v_lshrrev_b32 v2, 6, v0")
    em.e("v_and_b32 v1, 63, v0")
    em.e("v_readfirstlane_b32 s18, v2")
    em.e("v_lshlrev_b32 v3, 4, v1")
    em.e("v_lshrrev_b32 v4, 2, v1")
    em.e("v_and_b32 v5, 3, v1")
    for i in range(4): em.e(f"v_mov_b32 v{8+i}, 0x3f803f80")
    em.e("s_waitcnt lgkmcnt(0)")
    if sx == 2: em.e("s_memrealtime s[80:81]")
    if wsoff: em.e(f"s_add_u32 s16, s16, {wsoff}"); em.e("s_addc_u32 s17, s17, 0")
    em.e("s_mov_b32 s20, s16"); em.e("s_mov_b32 s21, s17"); em.e(f"s_mov_b32 s22, {WS_END}"); em.e("s_mov_b32 s23, 0x20000")
    def poison_zero(em, sfx):
        for i in range(4): em.e(f"v_mov_b32 v{16+i}, -1")
        em.e("v_lshlrev_b32 v20, 4, v0")
        em.e("s_lshl_b32 s30, s2, 13"); em.e(f"s_add_u32 s30, s30, {KVP}")
        em.e(f"buffer_store_dwordx4 v[16:19], v20, s[20:23], s30 offen{sfx}")
        em.e("s_add_u32 s30, s30, 4096")
        em.e(f"buffer_store_dwordx4 v[16:19], v20, s[20:23], s30 offen{sfx}")
    if not mono:
        em.e("s_cmp_ge_u32 s2, 256"); em.e("s_cbranch_scc1 Lp_nopois")
        poison_zero(em, "")
        em.label("Lp_nopois")
    if mono:
        em.e("s_mov_b32 s47, s2")
        em.e("s_cmp_lt_u32 s2, 40"); em.e("s_cbranch_scc1 Lp_disp")
        em.e("s_add_u32 s47, s2, 154"); em.e("s_cmp_lt_u32 s2, 104"); em.e("s_cbranch_scc1 Lp_disp")
        em.e("s_sub_u32 s47, s2, 64"); em.e("s_cmp_lt_u32 s2, 184"); em.e("s_cbranch_scc1 Lp_disp")
        em.e("s_sub_u32 s47, s2, 44"); em.e("s_cmp_lt_u32 s2, 238"); em.e("s_cbranch_scc1 Lp_disp")
        em.e("s_sub_u32 s47, s2, 118")
        em.label("Lp_disp")
    else:
        em.e("s_cmp_ge_u32 s2, 258"); em.e("s_cbranch_scc1 Lp_zero")
    em.e(f"s_cmp_ge_u32 {J}, 194"); em.e("s_cbranch_scc1 Lp_x")
    em.e(f"s_cmp_ge_u32 {J}, 140"); em.e("s_cbranch_scc1 Lp_wd")
    em.e(f"s_cmp_ge_u32 {J}, 120"); em.e("s_cbranch_scc1 Lp_wo")
    em.e(f"s_cmp_ge_u32 {J}, 40"); em.e("s_cbranch_scc1 Lp_wgu")

    def src_srd(lo, hi, size):
        em.e(f"s_mov_b32 s24, s{lo}"); em.e(f"s_mov_b32 s25, s{hi}"); em.e(f"s_mov_b32 s26, {size}"); em.e("s_mov_b32 s27, 0x20000")
    def set_exec(nl):
        em.e(f"s_mov_b64 exec, {hex((1 << nl) - 1)}" if nl <= 32 else f"s_mov_b32 exec_lo, -1")
        if nl > 32: em.e(f"s_mov_b32 exec_hi, {hex((1 << (nl - 32)) - 1)}")
    def dma(m0_s, m0_imm, so_s, so_imm):
        em.e(f"s_add_u32 m0, {m0_s}, {m0_imm}")
        em.e(f"s_add_u32 s29, {so_s}, {so_imm}")
        em.e("buffer_load_dwordx4 v3, s[24:27], s29 offen lds", vm="dma")
    def sync():
        if sx == 2: em.e("s_memrealtime s[78:79]")
        em.e("s_mov_b64 exec, -1")
        em.wait_all_vm()
        em.e("s_barrier")
        if sx: em.e("s_memrealtime s[96:97]")
    def xt_half(dst, u_s, half_s):
        em.e(f"s_mov_b32 {dst}, 0x47520"); em.e(f"s_cmp_eq_u32 {half_s}, 0"); em.e(f"s_cselect_b32 {dst}, {dst}, 0x98631")
        em.e(f"s_lshl_b32 s46, {u_s}, 2"); em.e(f"s_lshr_b32 {dst}, {dst}, s46"); em.e(f"s_and_b32 {dst}, {dst}, 15")
    def cs_store(acc, voff, so):
        em.e("s_mov_b64 exec, s[40:41]")
        em.e(f"buffer_store_dwordx4 v[{acc}:{acc+3}], {voff}, s[20:23], {so} offen", vm="st")
        em.e("s_mov_b64 exec, -1")
    def cs_prep():
        em.e("s_mov_b32 s40, 0x00010001"); em.e("s_mov_b32 s41, 0x00010001")
        em.e("v_and_b32 v7, 0x30, v1")

    P = 3840; PIT = 1952
    src_srd(6, 7, 640 * 1920 * 2)
    em.e(f"s_lshr_b32 s30, {J}, 1")
    em.e(f"s_and_b32 s31, {J}, 1")
    sdiv(em, "s32", "s30", 5, 20)
    em.e("s_mul_i32 s33, s32, 5"); em.e("s_sub_u32 s33, s30, s33")
    em.e("s_lshr_b32 s34, s18, 1")
    xt_half("s35", "s33", "s34")
    em.e("s_mul_i32 s36, s32, 10"); em.e("s_add_u32 s35, s35, s36"); em.e("s_lshl_b32 s35, s35, 4")
    em.e("s_and_b32 s36, s18, 1"); em.e("s_lshl_b32 s36, s36, 3"); em.e("s_add_u32 s35, s35, s36")
    em.e(f"s_mul_i32 s35, s35, {P}"); em.e("s_mul_i32 s36, s31, 640"); em.e("s_add_u32 s35, s35, s36")
    em.e(f"s_mul_i32 s37, s18, {8*PIT}")
    set_exec(40)
    for i in range(8):
        for sg_ in range(3):
            dma("s37", i * PIT + sg_ * 640, "s35", i * P + sg_ * 1280)
    sync()
    em.e(f"v_mul_u32_u24 v6, {PIT}, v4"); em.e("s_mul_i32 s36, s18, 160"); em.e("v_add_u32 v6, s36, v6")
    em.e("v_lshlrev_b32 v16, 3, v5"); em.e("v_add_u32 v12, v6, v16")
    em.e("v_and_b32 v16, 1, v5"); em.e("v_mul_u32_u24 v16, 40, v16"); em.e("v_add_u32 v13, v6, v16")
    em.e("v_lshrrev_b32 v16, 1, v5"); em.e("v_mul_u32_u24 v16, 640, v16"); em.e("v_add_u32 v14, v13, v16")
    cs_prep()
    em.e("s_lshl_b32 s36, s31, 3"); em.e("s_lshl_b32 s38, s18, 1"); em.e("s_add_u32 s36, s36, s38")
    em.e(f"s_mul_i32 s38, s36, {PW1_SZ}"); em.e(f"s_add_u32 s38, s38, {PW1}")
    em.e("s_mul_i32 s39, s30, 5120"); em.e("s_add_u32 s39, s39, s38")
    em.e("s_mul_i32 s42, s30, 3072"); em.e("s_add_u32 s42, s42, s38"); em.e("s_add_u32 s42, s42, 102400")
    em.e("s_lshl_b32 s43, s30, 4"); em.e("s_add_u32 s43, s43, s36"); em.e("s_lshl_b32 s43, s43, 9"); em.e(f"s_add_u32 s43, s43, {CS1}")
    tiles = [(12, 640), (12, 680), (12, 1280), (12, 1320), (14, 672), (12, 0), (12, 40), (13, 32)]
    for e in range(2):
        for t, (br, off) in enumerate(tiles):
            r = 16 + 4 * (e * 8 + t)
            for h in range(2):
                em.e(f"ds_read_b64_tr_b16 v[{r+2*h}:{r+2*h+1}], v{br} offset:{h*16*PIT + e*80 + off}", lg=(e, t))
    for e in range(2):
        for t in range(8):
            r = 16 + 4 * (e * 8 + t)
            base = "s39" if t < 5 else "s42"
            imm = (t if t < 5 else t - 5) * 1024 + e * PW1_SZ
            em.e(f"s_add_u32 s29, {base}, {imm}")
            em.e(f"buffer_store_dwordx4 v[{r}:{r+3}], v3, s[20:23], s29 offen", vm="st", wlg=[(e, t)])
            a = 96 + 4 * ((e * 8 + t) % 4)
            em.e(f"v_mfma_f32_16x16x32_bf16 v[{a}:{a+3}], v[{r}:{r+3}], v[8:11], 0")
            if (e * 8 + t) % 4 == 3:
                for q in range(4):
                    tt = t - 3 + q
                    em.e(f"s_add_u32 s29, s43, {(e*8+tt)*64}")
                    cs_store(96 + 4 * q, "v7", "s29")
    em.e("s_endpgm")

    em.label("Lp_wgu")
    em.vm = []; em.lg = []
    P = 3456; PIT = 928
    em.e(f"s_sub_u32 s30, {J}, 40")
    em.e("s_cmp_ge_u32 s30, 40")
    em.e("s_cbranch_scc1 Lp_wu")
    src_srd(12, 13, 640 * 1728 * 2)
    em.e("s_mov_b32 s34, 0")
    em.e("s_branch Lp_wgu2")
    em.label("Lp_wu")
    src_srd(14, 15, 640 * 1728 * 2)
    em.e("s_mov_b32 s34, 1"); em.e("s_sub_u32 s30, s30, 40")
    em.label("Lp_wgu2")
    em.e("s_lshr_b32 s31, s30, 2")
    em.e("s_and_b32 s32, s30, 3")
    em.e("s_lshr_b32 s33, s18, 1"); em.e("s_lshl_b32 s35, s31, 1"); em.e("s_add_u32 s33, s33, s35")
    sdiv(em, "s35", "s33", 5, 20)
    em.e("s_mul_i32 s36, s35, 5"); em.e("s_sub_u32 s36, s33, s36")
    em.e("s_and_b32 s37, s18, 1")
    xt_half("s38", "s36", "s37")
    em.e("s_mul_i32 s35, s35, 10"); em.e("s_add_u32 s38, s38, s35"); em.e("s_lshl_b32 s38, s38, 4")
    em.e(f"s_mul_i32 s38, s38, {P}"); em.e("s_mul_i32 s35, s32, 864"); em.e("s_add_u32 s38, s38, s35")
    em.e(f"s_mul_i32 s37, s18, {16*PIT}")
    set_exec(54)
    for i in range(16):
        dma("s37", i * PIT, "s38", i * P)
    sync()
    em.e(f"v_mul_u32_u24 v6, {PIT}, v4"); em.e("s_mul_i32 s36, s18, 216"); em.e("v_add_u32 v6, s36, v6")
    em.e("v_lshlrev_b32 v16, 3, v5"); em.e("v_add_u32 v12, v6, v16")
    cs_prep()
    em.e("s_lshl_b32 s36, s32, 2"); em.e("s_add_u32 s36, s36, s18")
    em.e(f"s_mul_i32 s38, s36, {PW3_SZ}"); em.e(f"s_add_u32 s38, s38, {PW3}")
    em.e("s_lshl_b32 s39, s34, 8"); em.e("s_add_u32 s38, s38, s39")
    em.e("v_lshrrev_b32 v13, 5, v1"); em.e("v_lshlrev_b32 v13, 10, v13"); em.e("v_bfe_u32 v14, v1, 4, 1"); em.e("v_lshlrev_b32 v14, 9, v14")
    em.e("v_add_u32 v13, v13, v14"); em.e("v_and_b32 v14, 15, v1"); em.e("v_lshlrev_b32 v14, 4, v14"); em.e("v_add_u32 v13, v13, v14")
    assert k3b % 2 == 0
    em.e("s_mov_b32 s54, 4096"); em.e(f"s_mov_b32 s55, {4 * (20 - k3b) * 1024}")
    em.e(f"s_mul_i32 s39, s31, 24576")
    em.e(f"s_lshl_b32 s56, s31, 13"); em.e(f"s_add_u32 s56, s56, {(12 * k3b * 1024 - k3b * 4096) & 0xffffffff}")
    em.e(f"s_cmp_lt_u32 s31, {k3b // 2}")
    em.e(f"s_cselect_b32 s54, 12288, s54")
    em.e(f"s_cselect_b32 s55, 4096, s55")
    em.e(f"s_cselect_b32 s39, s39, s56")
    em.e("s_add_u32 s48, s38, s39")
    em.e("s_add_u32 s49, s48, s55"); em.e("s_add_u32 s50, s49, s55")
    for p in range(3): em.e(f"s_add_u32 s{51+p}, s{48+p}, s54")
    em.e("s_lshl_b32 s39, s31, 12"); em.e("s_add_u32 s44, s38, s39"); em.e(f"s_add_u32 s44, s44, {240*1024}")
    em.e("s_lshl_b32 s45, s31, 4"); em.e("s_add_u32 s45, s45, s36"); em.e("s_mul_i32 s45, s45, 14"); em.e("s_add_u32 s45, s45, s34")
    em.e("s_lshl_b32 s45, s45, 6"); em.e(f"s_add_u32 s45, s45, {CS3}")
    for t in range(7):
        for k in range(2):
            r = 16 + 4 * (t * 2 + k)
            for h in range(2):
                em.e(f"ds_read_b64_tr_b16 v[{r+2*h}:{r+2*h+1}], v12 offset:{k*32*PIT + h*16*PIT + t*32}", lg=(t, k))
    for t in range(7):
        a = 96 + 4 * (t % 4)
        for k in range(2):
            r = 16 + 4 * (t * 2 + k)
            if t < 6: base, imm = f"s{48 + 3 * k + (t >> 1)}", 2 * (t & 1) * 1024
            else: base, imm = "s44", k * 2048
            em.e(f"s_add_u32 s29, {base}, {imm}")
            em.e(f"buffer_store_dwordx4 v[{r}:{r+3}], v13, s[20:23], s29 offen", vm="st", wlg=[(t, k)])
            em.e(f"v_mfma_f32_16x16x32_bf16 v[{a}:{a+3}], v[{r}:{r+3}], v[8:11], {'0' if k==0 else f'v[{a}:{a+3}]'}")
        if t in (3, 6):
            for tt in range(t - 3 if t == 3 else 4, t + 1):
                em.e(f"s_add_u32 s29, s45, {2*tt*64}")
                cs_store(96 + 4 * (tt % 4), "v7", "s29")
    em.e("s_endpgm")

    def od_tail(dst_base, dst_sz, b_s):
        PIT = 1312
        sync()
        em.e(f"v_mul_u32_u24 v6, {PIT}, v4"); em.e("s_mul_i32 s36, s18, 320"); em.e("v_add_u32 v6, s36, v6")
        em.e("v_lshlrev_b32 v16, 3, v5"); em.e("v_add_u32 v12, v6, v16")
        em.e("s_lshl_b32 s36, s18, 1")
        em.e(f"s_mul_i32 s38, s36, {dst_sz}"); em.e(f"s_add_u32 s38, s38, {dst_base}")
        em.e(f"s_mul_i32 s39, {b_s}, 5120"); em.e("s_add_u32 s38, s38, s39")
        for e in range(2):
            for t in range(5):
                r = 16 + 4 * (e * 5 + t)
                for h in range(2):
                    em.e(f"ds_read_b64_tr_b16 v[{r+2*h}:{r+2*h+1}], v12 offset:{h*16*PIT + e*160 + t*32}", lg=(e, t))
        for e in range(2):
            for t in range(5):
                r = 16 + 4 * (e * 5 + t)
                em.e(f"s_add_u32 s29, s38, {e*dst_sz + t*1024}")
                em.e(f"buffer_store_dwordx4 v[{r}:{r+3}], v3, s[20:23], s29 offen", vm="st", wlg=[(e, t)])
        em.e("s_endpgm")

    em.label("Lp_wo")
    em.vm = []; em.lg = []
    P = 1280; PIT = 1312
    src_srd(8, 9, 640 * 640 * 2)
    em.e(f"s_sub_u32 s30, {J}, 120")
    em.e(f"s_mul_i32 s37, s18, {8*PIT}")
    set_exec(40)
    em.e("s_cmp_ge_u32 s30, 16"); em.e("s_cbranch_scc1 Lp_wo2")
    em.e("s_mul_i32 s31, s30, 40"); em.e("s_lshr_b32 s32, s18, 1"); em.e("s_mul_i32 s32, s32, 20"); em.e("s_add_u32 s31, s31, s32")
    em.e("s_and_b32 s32, s18, 1"); em.e("s_lshl_b32 s32, s32, 3"); em.e("s_add_u32 s31, s31, s32"); em.e(f"s_mul_i32 s31, s31, {P}")
    for i in range(8):
        for sg_ in range(2): dma("s37", i * PIT + sg_ * 640, "s31", i * P + sg_ * 640)
    em.e("s_branch Lp_wo3")
    em.label("Lp_wo2")
    em.e("s_sub_u32 s31, s30, 16"); em.e("s_mul_i32 s31, s31, 160"); em.e("s_mul_i32 s32, s18, 40"); em.e("s_add_u32 s31, s31, s32")
    em.e(f"s_mul_i32 s31, s31, {P}")
    for i in range(8):
        for sg_ in range(2): dma("s37", i * PIT + sg_ * 640, "s31", (20 * (i >> 2) + 16 + (i & 3)) * P + sg_ * 640)
    em.label("Lp_wo3")
    od_tail(PWO, PWO_SZ, "s30")

    em.label("Lp_wd")
    em.vm = []; em.lg = []
    src_srd(10, 11, 1728 * 640 * 2)
    em.e(f"s_sub_u32 s30, {J}, 140")
    em.e(f"s_mul_i32 s37, s18, {8*PIT}")
    set_exec(40)
    em.e("s_cmp_ge_u32 s30, 48"); em.e("s_cbranch_scc1 Lp_wd2")
    em.e("s_and_b32 s31, s30, 15"); em.e("s_mul_i32 s31, s31, 108"); em.e("s_lshr_b32 s32, s30, 4"); em.e("s_lshl_b32 s32, s32, 5")
    em.e("s_add_u32 s31, s31, s32")
    em.e("s_and_b32 s32, s18, 1"); em.e("s_lshl_b32 s32, s32, 4"); em.e("s_add_u32 s31, s31, s32")
    em.e("s_lshr_b32 s32, s18, 1"); em.e("s_lshl_b32 s32, s32, 3"); em.e("s_add_u32 s31, s31, s32"); em.e(f"s_mul_i32 s31, s31, {P}")
    for i in range(8):
        for sg_ in range(2): dma("s37", i * PIT + sg_ * 640, "s31", i * P + sg_ * 640)
    em.e("s_branch Lp_wd3")
    em.label("Lp_wd2")
    for q in range(2):
        em.e("s_sub_u32 s31, s30, 48"); em.e("s_lshl_b32 s31, s31, 3"); em.e("s_lshl_b32 s32, s18, 1"); em.e("s_add_u32 s31, s31, s32")
        em.e(f"s_add_u32 s31, s31, {q}")
        sdiv(em, "s32", "s31", 3, 48)
        em.e("s_mul_i32 s33, s32, 3"); em.e("s_sub_u32 s33, s31, s33"); em.e("s_lshl_b32 s33, s33, 2")
        em.e("s_mul_i32 s32, s32, 108"); em.e("s_add_u32 s32, s32, s33"); em.e("s_add_u32 s32, s32, 96"); em.e(f"s_mul_i32 s32, s32, {P}")
        for i in range(4):
            for sg_ in range(2): dma("s37", (4 * q + i) * PIT + sg_ * 640, "s32", i * P + sg_ * 640)
    em.label("Lp_wd3")
    od_tail(PWD, PWD_SZ, "s30")

    em.label("Lp_x")
    em.vm = []; em.lg = []
    P = 1280; PIT = 1296
    src_srd(4, 5, 2048 * 640 * 2)
    em.e(f"s_sub_u32 s30, {J}, 194")
    em.e("s_lshl_b32 s31, s30, 5"); em.e("s_lshl_b32 s32, s18, 3"); em.e("s_add_u32 s31, s31, s32"); em.e(f"s_mul_i32 s31, s31, {P}")
    em.e(f"s_mul_i32 s37, s18, {8*PIT}")
    set_exec(40)
    for i in range(8):
        for sg_ in range(2): dma("s37", i * PIT + sg_ * 640, "s31", i * P + sg_ * 640)
    sync()
    em.e("v_and_b32 v16, 15, v1"); em.e(f"v_mul_u32_u24 v12, {PIT}, v16")
    em.e("v_lshrrev_b32 v17, 4, v1"); em.e("v_lshlrev_b32 v18, 3, v17"); em.e("v_add_u32 v12, v12, v18")
    em.e("s_lshr_b32 s33, s18, 1"); em.e("s_and_b32 s34, s18, 1")
    em.e(f"s_mul_i32 s35, s33, {16*PIT}"); em.e("s_mul_i32 s36, s34, 640"); em.e("s_add_u32 s35, s35, s36"); em.e("v_add_u32 v12, s35, v12")
    em.e("s_lshl_b32 s35, s30, 1"); em.e("s_add_u32 s35, s35, s33")
    em.e("s_mul_i32 s36, s35, 20480"); em.e("s_mul_i32 s38, s34, 10240"); em.e("s_add_u32 s36, s36, s38"); em.e(f"s_add_u32 s36, s36, {XB}")
    for i in range(10):
        r = 20 + 4 * i
        cc, u = divmod(i, 5)
        em.e(f"ds_read_b64 v[{r}:{r+1}], v12 offset:{(10*cc+XT0[u])*32}", lg=i)
        em.e(f"ds_read_b64 v[{r+2}:{r+3}], v12 offset:{(10*cc+XT1[u])*32}", lg=i)
    for i in range(10):
        r = 20 + 4 * i
        em.e(f"s_add_u32 s29, s36, {i*1024}")
        em.e(f"buffer_store_dwordx4 v[{r}:{r+3}], v3, s[20:23], s29 offen", vm="st", wlg=[i])
        em.e(f"v_mfma_f32_16x16x32_bf16 v[96:99], v[8:11], v[{r}:{r+3}], {'0' if i==0 else 'v[96:99]'}")
        em.e(f"v_mfma_f32_16x16x32_bf16 v[100:103], v[{r}:{r+3}], v[{r}:{r+3}], {'0' if i==0 else 'v[100:103]'}")
    em.e("v_and_b32 v18, 3, v16")
    em.e("v_cmp_eq_u32 vcc, 1, v18"); em.e("v_cndmask_b32 v104, v100, v101, vcc")
    em.e("v_cmp_eq_u32 vcc, 2, v18"); em.e("v_cndmask_b32 v104, v104, v102, vcc")
    em.e("v_cmp_eq_u32 vcc, 3, v18"); em.e("v_cndmask_b32 v105, v104, v103, vcc")
    em.e("v_mov_b32 v104, v96")
    em.e("v_mov_b32 v106, 0"); em.e("v_mov_b32 v107, 0")
    em.e("s_lshl_b32 s38, s35, 10"); em.e(f"s_add_u32 s38, s38, {ST}")
    em.e("s_lshl_b32 s39, s34, 7"); em.e("s_add_u32 s39, s39, s38")
    em.e("s_mul_i32 s42, s34, 384"); em.e("s_add_u32 s42, s42, s38")
    em.e("v_lshlrev_b32 v19, 3, v16")
    em.e("v_lshrrev_b32 v18, 2, v16")
    em.e("v_cmp_eq_u32 vcc, v17, v18")
    em.e("s_and_saveexec_b64 s[40:41], vcc")
    em.e("buffer_store_dwordx2 v[104:105], v19, s[20:23], s39 offen", vm="st")
    for z in range(3):
        em.e(f"buffer_store_dwordx2 v[106:107], v19, s[20:23], s42 offen offset:{256+128*z}", vm="st")
    em.e("s_mov_b64 exec, s[40:41]")
    em.e("s_endpgm")

    if mono:
        out = []
        for l in em.lines:
            if l.strip() == "s_endpgm": out.append("    s_branch Lp_exit")
            elif "buffer_store" in l: out.append(l + sfx)
            else: out.append(l)
        out += ["Lp_exit:",
                "    s_sub_u32 s30, s47, 120", "    s_cmp_ge_u32 s30, 2", "    s_cbranch_scc1 Lp_fin",
                "    s_add_u32 s47, s47, 18", "    s_waitcnt lgkmcnt(0)", "    s_barrier", "    s_branch Lp_disp",
                "Lp_fin:"]
        e2 = Em()
        poison_zero(e2, sfx)
        e2.e("s_and_b32 s30, s2, 7"); e2.e("s_lshl_b32 s30, s30, 8"); e2.e("s_bfe_u32 s31, s2, 0x10003"); e2.e("s_lshl_b32 s31, s31, 7")
        e2.e("s_add_u32 s30, s30, s31"); e2.e("s_lshr_b32 s31, s2, 4"); e2.e("s_lshl_b32 s31, s31, 2"); e2.e("s_add_u32 s30, s30, s31")
        e2.e(f"s_add_u32 s30, s30, {FLG_G}")
        e2.e("v_mov_b32 v21, 0")
        e2.e("s_cmp_lg_u32 s18, 0"); e2.e("s_cbranch_scc1 Lp_noz")
        e2.e("s_mov_b64 exec, 1")
        e2.e(f"buffer_store_dword v21, off, s[20:23], s30{sfx}")
        e2.e("s_mov_b64 exec, -1")
        e2.label("Lp_noz")
        return out + e2.lines
    em.label("Lp_zero")
    for i in range(4): em.e(f"v_mov_b32 v{16+i}, 0")
    em.e("v_lshlrev_b32 v20, 4, v0")
    for i in range(FLAGS_BYTES // 4096):
        em.e(f"s_mov_b32 s30, {i*4096}")
        em.e(f"buffer_store_dwordx4 v[16:19], v20, s[20:23], s30 offen")
    em.label("Lp_done")
    em.e("s_endpgm")
    if stamp == 2:
        out = []
        for l in em.lines:
            if l.strip() == "s_endpgm": out.append("    s_branch Lp_exit")
            else: out.append(l)
        out += ["Lp_exit:", "    s_waitcnt vmcnt(0)", "    s_memrealtime s[64:65]", "    s_waitcnt lgkmcnt(0)", "    s_mov_b64 exec, 1",
                "    v_mov_b32 v110, s64", "    v_mov_b32 v111, 0", "    global_atomic_umax v111, v110, s[62:63] offset:4",
                "    s_lshr_b32 s66, s2, 3", "    s_lshl_b32 s66, s66, 2", "    v_mov_b32 v111, s66", "    global_atomic_umax v111, v110, s[62:63] offset:16",
                "    s_endpgm"]
        return out
    return em.lines

def kdesc(name, vgpr, accum, sgpr=96):
    return f""".section .rodata,"a"
.p2align 6
.amdhsa_kernel {name}
  .amdhsa_next_free_vgpr {vgpr}
  .amdhsa_next_free_sgpr {sgpr}
  .amdhsa_accum_offset {accum}
  .amdhsa_group_segment_fixed_size 0
  .amdhsa_kernarg_size 80
  .amdhsa_user_sgpr_count 2
  .amdhsa_user_sgpr_kernarg_segment_ptr 1
  .amdhsa_system_sgpr_workgroup_id_x 1
.end_amdhsa_kernel
"""

if __name__ == "__main__":
    lines = gen_prep("prep_kernel")
    lines, n = fix_hazards(lines)
    print(f"; @launch kernel=prep_kernel grid=({PREP_WGS},1,1) block=(256,1,1) lds={PREP_LDS}")
    print('.amdgcn_target "amdgcn-amd-amdhsa--gfx950"\n.text\n.globl prep_kernel\n.p2align 8\n.type prep_kernel,@function')
    print("\n".join(lines))
    print(kdesc("prep_kernel", 112, 112))
```

```python
import numpy as np
S=2048; D=640; H=32; DH=20; F=1728
FLG_G=0x0000; FLG_KV=0x1000; FLG_XCC=0x2000; FLAGS_BYTES=0x4000
CS1=0x10000; CS3=0x38000
ST=0x60000; ST_SZ=0x20000
KVP=0x100000; KVP_L=0x100000
XB=0x400000; X_SZ=0x280000
OB=0xE00000; O_SZ=0x280000
ACT=0x1400000; ACT_SZ=0x6C0000
PW1=0x2200000; PW1_SZ=163840
PWO=0x2480000; PWO_SZ=102400
PW3=0x2600000; PW3_SZ=286720
PWD=0x2B00000; PWD_SZ=276480
WS_END=0x3000000

def bf2f(u16):
    return (u16.astype(np.uint32) << 16).view(np.float32)
def f2bf(f):
    f = np.ascontiguousarray(f, dtype=np.float32)
    u = f.view(np.uint32)
    r = (u + 0x7FFF + ((u >> 16) & 1)) >> 16
    return r.astype(np.uint16)

XT0=[0,2,5,7,4]; XT1=[1,3,6,8,9]
def xmap(b):
    c,u = divmod(b,5)
    t0=10*c+XT0[u]; t1=10*c+XT1[u]
    return np.array([16*t0+i for i in range(16)]+[16*t1+i for i in range(16)])
def omap(b):
    if b<16: return np.array([40*b+i for i in range(16)]+[40*b+20+i for i in range(16)])
    return np.array([160*(b-16)+20*(r>>2)+16+(r&3) for r in range(32)])
def amap(b):
    if b<48:
        j=b&15; u=b>>4
        return np.array([108*j+32*u+16*((r>>3)&1)+8*(r>>4)+(r&7) for r in range(32)])
    out=[]
    for r in range(32):
        r8=(b-48)*8+(r>>2); j=r8//3; g=r8%3
        out.append(108*j+96+4*g+(r&3))
    return np.array(out)

LANE=np.arange(64); G_=LANE>>4; I_=LANE&15
SLOT=np.zeros((64,8),dtype=np.int64)
for j in range(8):
    SLOT[:,j] = (4*G_+j) if j<4 else (16+4*G_+(j-4))

def wfrag(W, rows, cols):
    r = rows[SLOT]
    c = cols[I_][:,None]
    return W[r, np.maximum(c,0)]
def afrag(X, tok0, rows):
    r = rows[SLOT]
    return X[(tok0+I_)[:,None], r]

def qkv_cols(hp, tile):
    a=40*hp
    if tile==0: return np.arange(640+a,640+a+16)
    if tile==1: return np.arange(660+a,660+a+16)
    if tile==2: return np.arange(1280+a,1280+a+16)
    if tile==3: return np.arange(1300+a,1300+a+16)
    if tile==4: return np.concatenate([np.arange(640+a+16,640+a+20),np.arange(640+a+36,640+a+40),np.arange(1280+a+16,1280+a+20),np.arange(1280+a+36,1280+a+40)])
    if tile==5: return np.arange(a,a+16)
    if tile==6: return np.arange(a+20,a+36)
    if tile==7: return np.concatenate([np.arange(a+16,a+20),np.arange(a+36,a+40),-np.ones(8,dtype=np.int64)])
def pw1_index(b,tile):
    return b*5+tile if tile<5 else 100+3*b+(tile-5)
def pw3_index(b,t,mat,B1=0):
    if t<6:
        p=t>>1
        pos = 4*(3*b+p) if b<B1 else 12*B1+4*(20-B1)*p+4*(b-B1)
        return pos+2*(t&1)+mat
    return 240+2*b+mat
def unpack_act(buf_u16, nblk, fmap, K):
    buf = buf_u16.reshape(128,nblk,64,8)
    out = np.zeros((2048,K),dtype=np.uint16)
    for b in range(nblk):
        rows = fmap(b)[SLOT]
        for tt in range(128):
            out[(tt*16+I_)[:,None], rows] = buf[tt,b]
    return out
```

```python
import sys
from asmlib import *
from layout import *
from gen_prep import gen_prep, kdesc, PREP_WGS, PREP_LDS

KNAME = "interleave_layers__linear_attn_block__swiglu_ffn__prompt_kernel"
NR = 9
MISC = 147456
MB = 131072
L_CS1 = MISC - MB; L_CS3 = MISC + 512 - MB; L_STAT = MISC + 1536 - MB; L_RED = MISC + 4096 - MB; L_KVB = MISC + 8192 - MB
MAIN_LDS = 163840
PH = {"K1": (0, 160), "K2": (10, 100), "K3": (17, 280), "K4": (35, 270)}
TOT_ROUNDS = 54
LOG2E = 0x3fb8aa3b
EPS6 = 0x358637bd
EPS5 = 0x3727c5ac
INV640 = 0x3acccccd

S_WS = "s[4:7]"; S_OUT = "s[8:11]"; S_WSN = "s[12:15]"
sW, sG, sM, sHALF, sC8, sLAYER = "s16", "s17", "s18", "s19", "s20", "s21"
sW4K, sW1K, sW2K = "s22", "s23", "s24"
sPW1, sPWO, sPW3, sPWD, sPWOp, sPW3p = "s25", "s26", "s27", "s28", "s29", "s30"
sDMA = "s31"; sA = "s32"; sT0, sT1, sT2, sT3 = "s33", "s34", "s35", "s36"
sFOWN, sFLINE, sKOWN, sKLINE = "s37", "s38", "s39", "s40"
sSTEP = "s41"; sTT2 = "s42"; sTT1 = "s43"
sFEX = "s[44:45]"
sMODE = "s46"; sSPIN = "s47"
sMK = ["s[48:49]", "s[50:51]", "s[52:53]", "s[54:55]", "s[56:57]", "s[58:59]"]
sXI = "s60"
sE6 = "s61"
sST = "s62"
sST2 = "s63"
sODD = "s64"
sXOFF, sXREM, sSTOFF, sAOFF, sOOFF = "s65", "s91", "s98", "s99", "s3"
sBIT2 = "s[66:67]"
sI8 = "s[68:69]"
sG23 = "s[70:71]"; sG3 = "s[72:73]"; sMK32 = "s[74:75]"
sTS = 76
sP0, sP1, sP2 = "s88", "s89", "s90"
PTD = "a255"
sR13, sR4, sRB, sRQ, sRT, sRT2 = "s84", "s85", "s86", "s87", "s100", "s101"
R13 = [4, 8, 12, 16]; R4V = [2, 14, 30, 42]
REGIONS = {"K1": [(0, 5, 20), (100, 3, 20)], "K2": [(0, 5, 20)], "K3": [(0, 4, 20), (80, 4, 20), (160, 4, 20), (240, 2, 20)], "K4": [(0, 5, 54)]}
ROTREG = {"K1": (sR13, R13), "K2": (sR13, R13), "K3": (sR13, R13), "K4": (sR4, R4V)}

vL16, vR1, vR2, vL16B = "v1", "v2", "v3", "v4"
vI4, vI4W, vG16, vG16W, vX3, vA3, vL8, vSTO, vACT6, vOREM, vOUT = [f"v{i}" for i in range(5, 16)]
vH16 = "v250"
RES = 16
WW = 36; NW = 16
ACC = 100
TMP = 212
CSVB = 140; RLB = 180


DBG = {}
class Seg:
    def __init__(s, cap=2):
        s.mf = []; s.gaps = [[]]; s.cost = [0]; s.cap = cap
    def n(s): return len(s.mf)
    def mfma(s, text, wvm=None, wlg=None):
        s.mf.append(Op(text, wvm=wvm, wlg=wlg)); s.gaps.append([]); s.cost.append(0)
        if wvm or wlg: s.cost[len(s.mf) - 1] += 1
        return len(s.mf) - 1
    def put(s, gap, op, cost=1):
        if isinstance(op, str): op = Op(op)
        gap = min(gap, len(s.gaps) - 1)
        s.gaps[gap].append(op); s.cost[gap] += cost
        return gap
    def place(s, op, earliest, cost=1, cap=None, latest=None):
        if cap is None: cap = s.cap
        g = max(0, min(earliest, len(s.gaps) - 1))
        last = len(s.gaps) - 1
        while g < last and s.cost[g] + cost > cap:
            if latest is not None and g >= latest: break
            g += 1
        return s.put(g, op, cost)
    def group(s, ops, earliest, maxcost=0):
        g = max(0, min(earliest, len(s.gaps) - 1))
        while g < len(s.gaps) - 1 and s.cost[g] > maxcost: g += 1
        for o in ops: s.put(g, o, 1)
        return g
    def stream(s, ops, earliest, cap=None, spacing=0):
        g = earliest
        for o in ops:
            c = 1
            if isinstance(o, tuple): o, c = o
            g = s.place(o, g, cost=c, cap=cap)
            g += spacing
        return g
    def emit(s, em):
        def keep(o):
            t = o.text
            if DBG.get("skipa") and t.startswith("buffer_load_dwordx4 a["): return False
            if DBG.get("skipw") and t.endswith(" lds"): return False
            if DBG.get("nobar") and t == "s_barrier":
                o.text = "s_nop 0"; return True
            if DBG.get("skipv") and t.startswith("v_") and not t.startswith(("v_mfma", "v_writelane")): return False
            if DBG.get("skipr") and t.startswith("ds_read"): return False
            return True
        for i in range(len(s.gaps)):
            for o in s.gaps[i]:
                if keep(o): em.op(o)
            if i < len(s.mf): em.op(s.mf[i])


STG0 = 160
vSTG0, vSTG1, vSTG2 = "v200", "v201", "v202"
def staged(r):
    n = DBG.get("stg", 0)
    return n and DBG.get("stg0", 26) <= r < DBG.get("stg0", 26) + n
class Ring:
    def __init__(s):
        s.issued = -1
        s.filled = -1
        s.allowed = -1
        s.q = []
    @staticmethod
    def info(r):
        rr = r % TOT_ROUNDS
        nxt = r >= TOT_ROUNDS
        for ph, (r0, nf) in PH.items():
            nrounds = (nf + 15) // 16
            if r0 <= rr < r0 + nrounds:
                k = rr - r0
                return ph, k, min(16, nf - 16 * k), nxt
        return None, 0, 0, nxt
    def jobs(s, r):
        ph, k, n, nxt = s.info(r)
        if ph is None: return []
        srd = S_WSN if nxt else S_WS
        pos = (r % NR) * 16384
        tag = ("dma", r)
        if staged(r):
            a0 = STG0 + 16 * (r - DBG.get("stg0", 26))
            va, off = (vSTG0, pos) if pos < 65536 else ((vSTG1, pos - 65536) if pos < 131072 else (vSTG2, pos - 131072))
            return [[Op(f"ds_write_b128 {va}, a[{a0+4*j}:{a0+4*j+3}] offset:{off + j*1024}", lg=("dmal", r), wvm=[("stg", r)])] for j in range(4)]
        if n > 8: c, m0s, base = 4, sW4K, {"K1": sPW1, "K2": sPWO, "K3": sPW3, "K4": sPWD}[ph]
        elif n > 4: c, m0s, base = 2, sW2K, sPW3p; assert ph == "K3" and n == 8
        else: c, m0s, base = 1, sW1K, sPWOp; assert ph == "K2" and n == 4
        nt = " nt" if (DBG.get("wnt", 0) >> {"K1": 0, "K2": 1, "K3": 2, "K4": 3}[ph]) & 1 else ""
        base4 = {"K1": sPW1, "K2": sPWO, "K3": sPW3, "K4": sPWD}[ph]
        pre = [Op(f"s_add_u32 m0, {m0s}, {pos}")]
        if not DBG.get("rot", 0):
            pre.append(Op(f"s_add_u32 {sDMA}, {base}, {(k % DBG.get('wmod', 1000))*16384}"))
        else:
            sR, rset = ROTREG[ph]
            regs = REGIONS[ph]
            def region(p):
                for i, (P0, cc, nb) in enumerate(regs):
                    if P0 <= p < P0 + cc * nb: return i
                return len(regs) - 1
            def setup(i):
                P0, cc, nb = regs[i]
                return [Op(f"s_mul_i32 {sRT}, {sR}, {cc}"), Op(f"s_lshl_b32 {sRQ}, {sW}, 2"), Op(f"s_add_u32 {sRQ}, {sRQ}, {sRT}"),
                        Op(f"s_lshl_b32 {sRT}, {sRT}, 10"), Op(f"s_add_u32 {sRB}, {base4}, {sRT}")]
            def addr(i, waves, dst):
                P0, cc, nb = regs[i]
                st = set()
                for w in waves:
                    for R in rset: st.add(16 * k + c * w + cc * R >= P0 + cc * nb)
                size = cc * nb * 1024
                if st == {False}: return [Op(f"s_add_u32 {dst}, {sRB}, {16384*k}")], False
                if st == {True}: return [Op(f"s_add_u32 {dst}, {sRB}, {(16384*k - size) & 0xffffffff}")], True
                assert c == 4
                T = P0 + cc * nb - 16 * k
                return [Op(f"s_add_u32 {dst}, {sRB}, {16384*k}"), Op(f"s_cmp_ge_u32 {sRQ}, {T}"), Op(f"s_cselect_b32 {sRT}, {size}, 0"),
                        Op(f"s_sub_u32 {dst}, {dst}, {sRT}")], None
            rw = [region(16 * k + c * w) for w in range(4)]
            prev_reg = region(16 * k - 4) if k > 0 else None
            if len(set(rw)) == 1:
                i = rw[0]
                if prev_reg != i: pre += setup(i)
                o, _ = addr(i, range(4), sDMA)
                pre += o
                if c != 4:
                    pre += [Op(f"s_sub_u32 {sDMA}, {sDMA}, {base4}"), Op(f"s_add_u32 {sDMA}, {sDMA}, {base}")]
            else:
                assert c == 4 and rw[0] == prev_reg and set(rw[1:]) == {rw[0] + 1}, (ph, k, rw)
                o, _ = addr(rw[0], [0], sRT2); pre += o
                pre += setup(rw[1])
                o, _ = addr(rw[1], [1, 2, 3], sDMA); pre += o
                pre += [Op(f"s_cmp_eq_u32 {sW}, 0"), Op(f"s_cselect_b32 {sDMA}, {sRT2}, {sDMA}")]
        out = []
        for j in range(c):
            ops = list(pre) if j == 0 else []
            ops.append(Op(f"buffer_load_dwordx4 {vL16}, {srd}, {sDMA} offen offset:{j*1024}{nt} lds", vm=tag))
            out.append(ops)
        return out
    def skip_virtual(s):
        while not s.q and s.issued < s.allowed and not s.jobs(s.issued + 1): s.issued += 1
    def next_round(s):
        r = s.issued + 1
        while not s.q and not s.jobs(r): r += 1
        return r
    def take(s):
        if not s.q:
            s.skip_virtual()
            if s.issued + 1 > s.allowed: return None
            s.q = s.jobs(s.issued + 1)
        j = s.q.pop(0)
        if not s.q:
            s.issued += 1
            s.skip_virtual()
        return j
    def emit(s, em, n=10**9, upto=None):
        k = 0
        while k < n:
            if upto is not None and s.next_round() > upto: break
            j = s.take()
            if j is None: break
            for o in j: em.op(o)
            k += 1
        return k


def wslot_addr(ph, f):
    r0, nf = PH[ph]
    r = r0 + f // 16
    a = (r % NR) * 16384 + (f % 16) * 1024
    if a < 65536: return vL16, a
    if a < 131072: return vR1, a - 65536
    return vR2, a - 131072


class WStream:
    cnt = 0
    def __init__(s, ring, seg, ph, SS=2, LA=10):
        s.ring = ring; s.seg = seg; s.ph = ph; s.SS = SS; s.LA = LA
        s.reg = {}; s.events = []
    def wreg(s, f):
        if f not in s.reg:
            s.reg[f] = WW + 4 * (WStream.cnt % NW); WStream.cnt += 1
        return s.reg[f]
    def reads(s, frags, first_use, last_use, force=(), nobar=(), wait_at=None, ming=0):
        seg = s.seg; ring = s.ring; r0, nf = PH[s.ph]
        prev = ming
        lastuse_slot = dict(getattr(s, 'lus', {}))
        filled = ring.filled
        lastbar = None
        rlast = r0 + frags[-1] // 16
        for f in frags:
            reg = s.reg[f]
            e = max(prev, first_use[f] - s.LA, lastuse_slot.get(reg, -1) + 1)
            lat = first_use[f] if wait_at is None else wait_at[f]
            e = max(0, min(e, lat))
            r = r0 + f // 16
            va, off = wslot_addr(s.ph, f)
            rd = Op(f"ds_read_b128 v[{reg}:{reg+3}], {va} offset:{off}", lg=("w", s.ph, f))
            need = r > filled
            want = (f % 16 == 0) and (r in force or (lastbar is not None and r - lastbar >= s.SS) or (lastbar is None and r - (r0 + frags[0] // 16) >= s.SS)) and r not in nobar
            if need or want:
                tgt = max(filled, min(r + s.SS - 1, rlast))
                g = e
                last = lat
                while g < last and seg.cost[g] + 1 > seg.cap: g += 1
                wt = [("dma", x) for x in range(filled + 1, tgt + 1) if not staged(x)]
                wl_ = [("dmal", x) for x in range(filled + 1, tgt + 1) if staged(x)]
                seg.put(g, Op("s_barrier", wvm=wt, wlg=wl_), 2)
                seg.put(g, rd, 1)
                filled = tgt
                prev = g
                lastbar = r
                s.events.append((g, r - 2 + NR, tgt))
            else:
                prev = seg.place(rd, e, latest=lat)
            lastuse_slot[reg] = last_use[f]
        s.lastbar = lastbar
        s.lus = lastuse_slot
        ring.filled = filled
    def vmem(s, ajobs, policy, rate=4.5, qd=36, backlog=0, margin=48, cap=None, burst0=True):
        seg = s.seg; ring = s.ring
        if cap is None: cap = seg.cap
        n = len(seg.gaps)
        path = backlog
        ai = 0
        ev = list(s.events)
        def dma_deadline(r):
            for (g, al, tgt) in ev:
                if tgt >= r: return g
            return None
        evi = 0
        for (g, al, tgt) in ev:
            if g == 0: assert ring.issued >= tgt, ("rounds not issued before seg start", s.ph, tgt, ring.issued)
        for g in range(n):
            placed = 0
            while True:
                cands = []
                if ai < len(ajobs) and (len(ajobs[ai]) < 3 or g >= ajobs[ai][2]): cands.append((ajobs[ai][1], 0))
                r = ring.next_round()
                hard = dma_deadline(r)
                pe = policy(r)
                ok = (ring.q or r <= ring.allowed)
                if ok and (hard is not None or pe is not None):
                    dl = (hard - margin) if hard is not None else 10**6
                    start = pe if pe is not None else 0
                    if g >= start or (hard is not None and g >= hard - 1): cands.append((dl, 1))
                    harddl = hard
                if not cands: break
                cands.sort()
                def isforced(c):
                    return (c[1] == 1 and hard is not None and g >= hard - 1) or (c[1] == 0 and g >= c[0])
                fc = [c for c in cands if isforced(c)]
                forced = bool(fc)
                dl, which = fc[0] if fc else cands[0]
                if not forced:
                    if path - g > qd: break
                    if (g > 0 or not burst0) and (seg.cost[g] + 1 > cap or placed >= 1): break
                if which == 0:
                    ops = ajobs[ai][0]; ai += 1
                else:
                    ops = ring.take(); assert ops is not None
                for o in ops: seg.put(g, o, 1)
                path = max(path, g) + rate
                placed += 1
            while evi < len(ev) and ev[evi][0] <= g:
                (eg, al, tgt) = ev[evi]; evi += 1
                assert ring.issued >= tgt, ("rounds not issued before barrier", s.ph, g, tgt, ring.issued)
                ring.allowed = max(ring.allowed, al)
        assert ai == len(ajobs)
        return path - n


def gen_main(opt):
    stop = opt.get("stop", 99)
    DBG.clear(); DBG.update(opt)
    stamps = opt.get("stamps", False)
    SS = opt.get("SS", 2)
    MARG = opt.get("marg", 72); QD = opt.get("qd", 36); RATE = opt.get("rate10", 45) / 10.0
    cur = {"sfx": "F", "STO": "", "LD": ""}
    em = Em()
    ring = Ring()
    WStream.cnt = 0
    nstamp = [0]
    def stamp():
        if not stamps: return
        k = nstamp[0]; nstamp[0] += 1
        em.raw(f"    s_waitcnt lgkmcnt(0)")
        em.e(f"s_memtime s[{sTS}:{sTS+1}]" if not opt.get("rt") else f"s_memrealtime s[{sTS}:{sTS+1}]")
        em.e(f"s_lshl_b32 s{sTS+2}, {sLAYER}, 4")
        em.e(f"s_add_u32 s{sTS+2}, s{sTS+2}, {k}")
        em.raw("    s_waitcnt lgkmcnt(0)")
        em.lg = []
        em.e(f"s_mov_b32 s{sTS+1}, m0")
        em.e(f"s_mov_b32 m0, s{sTS+2}"); em.e("s_nop 3")
        em.e(f"v_writelane_b32 v0, s{sTS}, m0")
        em.e(f"s_mov_b32 m0, s{sTS+1}")
    lsn = [0]
    def lstamp(seg, gap):
        if not opt.get("lst", 0): return
        lane = 32 + lsn[0]; lsn[0] += 1
        assert lane < 64
        rg = 96 if lane % 2 else 76
        seg.put(gap, f"s_memtime s[{rg}:{rg+1}]", 0)
        seg.put(gap + 12, f"v_writelane_b32 v0, s{rg}, {lane}", 0)
    def dump_stamps():
        if not stamps: return
        em.e("s_memrealtime s[96:97]")
        em.raw("    s_waitcnt lgkmcnt(0)")
        em.e("v_writelane_b32 v0, s92, 15"); em.e("v_writelane_b32 v0, s94, 30"); em.e("v_writelane_b32 v0, s96, 31")
        em.e(f"s_mov_b64 exec, s[{sTS+4}:{sTS+5}]")
        em.e(f"v_lshrrev_b32 v251, 2, {vL16}")
        em.e(f"v_add_u32 v251, s{sTS+3}, v251")
        em.e(f"global_store_dword v251, v0, s[{sTS+6}:{sTS+7}]")
        em.e("s_mov_b64 exec, -1")
        em.raw("    s_waitcnt vmcnt(0)")

    em.label(KNAME)
    em.e("s_cmp_ge_u32 s2, 256")
    em.e("s_cbranch_scc1 Lm_done")
    if stamps:
        em.e("s_memtime s[92:93]"); em.e("s_memrealtime s[94:95]")
    MONO = opt.get("mono", 0)
    if opt.get("sst"):
        em.e("s_memrealtime s[98:99]"); em.raw("    s_waitcnt lgkmcnt(0)"); em.e("s_mov_b32 s101, s98")
    if MONO:
        em.e("s_load_dwordx2 s[82:83], s[0:1], 64")
        MST = opt.get("mst", 0)
        for l in gen_prep("", mono=True, k3b=opt.get("k3b", 12), sfx={0: " sc1", 1: " sc0 sc1", 2: " sc1 nt", 3: "", 4: "", 5: " nt"}[MST], sx=opt.get("sx", 0)): em.raw(l)
        if opt.get("sx"):
            if opt["sx"] == 1: em.e("s_memrealtime s[78:79]")
            em.raw("    s_waitcnt vmcnt(0) lgkmcnt(0)")
            em.e("s_memrealtime s[76:77]"); em.raw("    s_waitcnt lgkmcnt(0)")
            if opt["sx"] == 1:
                em.e("v_mov_b32 v236, s101"); em.e("v_mov_b32 v237, s96"); em.e("v_mov_b32 v238, s78"); em.e("v_mov_b32 v239, s76")
            else:
                em.e("v_mov_b32 v236, s101"); em.e("v_mov_b32 v237, s80"); em.e("v_mov_b32 v238, s78"); em.e("v_mov_b32 v239, s96")
            em.e("s_lshl_b32 s33, s2, 4"); em.e("s_add_u32 s33, s33, 0x3000000"); em.e("v_mov_b32 v240, s33")
            em.e("s_cmp_lg_u32 s18, 0"); em.e("s_cbranch_scc1 Lm_done")
            em.e("s_mov_b64 exec, 1"); em.e("global_store_dwordx4 v240, v[236:239], s[16:17]"); em.e("s_endpgm")
        em.e(f"s_getreg_b32 {sMODE}, hwreg(HW_REG_XCC_ID)")
        em.e(f"s_lshr_b32 s33, {sMODE}, 12"); em.e("s_and_b32 s33, s33, 0x70"); em.e(f"s_and_b32 {sMODE}, {sMODE}, 15")
        em.e(f"s_or_b32 {sMODE}, {sMODE}, s33"); em.e(f"s_or_b32 {sMODE}, {sMODE}, 0x80")
        em.e(f"v_mov_b32 v254, {sMODE}"); em.e("v_mov_b32 v255, s2")
        em.raw("    s_waitcnt vmcnt(0) lgkmcnt(0)")
        em.e("s_barrier")
        em.e("s_cmp_lg_u32 s18, 0"); em.e("s_cbranch_scc1 Lm_nofl")
        if MST in (3, 5):
            em.e("buffer_wbl2 sc1"); em.raw("    s_waitcnt vmcnt(0)")
        em.e("s_mov_b64 exec, 1")
        em.e("global_store_byte v255, v254, s[82:83] sc1")
        em.e("s_mov_b64 exec, -1")
        em.label("Lm_nofl")
        if opt.get("sst"):
            em.e("s_memrealtime s[98:99]"); em.raw("    s_waitcnt lgkmcnt(0)"); em.e("s_mov_b32 s100, s98")
        if stamps:
            em.e("s_memtime s[96:97]"); em.raw("    s_waitcnt lgkmcnt(0)"); em.e("s_sub_u32 s96, s96, s92")
    em.e("s_load_dwordx2 s[8:9], s[0:1], 56"); em.e("s_load_dwordx2 s[10:11], s[0:1], 64")
    em.e("s_load_dwordx2 s[4:5], s[0:1], 72")
    em.e("v_lshrrev_b32 v2, 6, v0")
    em.e("v_and_b32 v0, 63, v0")
    em.e(f"v_readfirstlane_b32 {sW}, v2")
    em.e(f"v_lshlrev_b32 {vL16}, 4, v0")
    em.e("s_and_b32 s33, s2, 7"); em.e("s_lshr_b32 s34, s2, 3")
    em.e("s_and_b32 s35, s34, 1"); em.e(f"s_lshr_b32 {sM}, s34, 1")
    em.e("s_lshl_b32 s33, s33, 1"); em.e(f"s_add_u32 {sG}, s33, s35")
    em.e(f"s_and_b32 {sHALF}, {sM}, 1"); em.e(f"s_lshr_b32 {sC8}, {sM}, 1")
    em.e(f"s_lshl_b32 {sW4K}, {sW}, 12"); em.e(f"s_lshl_b32 {sW1K}, {sW}, 10"); em.e(f"s_lshl_b32 {sW2K}, {sW}, 11")
    def base(dst, reg0, sz, idx, wk, extra=0):
        em.e(f"s_mul_i32 {dst}, {idx}, {sz}"); em.e(f"s_add_u32 {dst}, {dst}, {reg0 + extra}"); em.e(f"s_add_u32 {dst}, {dst}, {wk}")
    base(sPW1, PW1, PW1_SZ, sM, sW4K); base(sPWO, PWO, PWO_SZ, sC8, sW4K)
    base(sPW3, PW3, PW3_SZ, sM, sW4K); base(sPWD, PWD, PWD_SZ, sC8, sW4K)
    base(sPWOp, PWO, PWO_SZ, sC8, sW1K); base(sPW3p, PW3, PW3_SZ, sM, sW2K)
    em.e("s_waitcnt lgkmcnt(0)")
    if stamps and not opt.get("rt") and not MONO:
        em.e(f"s_mov_b32 s{sTS+6}, s10"); em.e(f"s_mov_b32 s{sTS+7}, s11")
    if stamps and opt.get("rt"):
        em.e(f"s_add_u32 s{sTS+6}, s4, 0x3000000"); em.e(f"s_addc_u32 s{sTS+7}, s5, 0")
    if opt.get("wsoff", 0): em.e(f"s_add_u32 s4, s4, {opt['wsoff'] << 20}"); em.e("s_addc_u32 s5, s5, 0")
    em.e(f"s_mov_b32 s6, {WS_END}"); em.e("s_mov_b32 s7, 0x20000")
    em.e(f"s_mov_b32 s10, {2048*640*2}"); em.e("s_mov_b32 s11, 0x20000")
    em.e("s_mov_b32 s12, s4"); em.e("s_mov_b32 s13, s5"); em.e(f"s_mov_b32 s14, {WS_END}"); em.e("s_mov_b32 s15, 0x20000")
    em.e(f"s_and_b32 s33, {sG}, 1"); em.e(f"s_lshl_b32 s33, s33, 1"); em.e(f"s_add_u32 s33, s33, {sHALF}")
    if opt.get("rot", 0) == 2: em.e("s_mov_b32 s33, 0")
    em.e(f"s_lshl_b32 {sR13}, s33, 2"); em.e(f"s_add_u32 {sR13}, {sR13}, 4")
    em.e(f"s_mul_i32 {sR4}, s33, 12"); em.e(f"s_add_u32 {sR4}, {sR4}, 2"); em.e(f"s_cmp_ge_u32 s33, 2"); em.e(f"s_cselect_b32 s33, 4, 0"); em.e(f"s_add_u32 {sR4}, {sR4}, s33")
    HEAD = opt.get("head", 4)
    ring.allowed = 8
    if not MONO: ring.emit(em, upto=2)
    em.e(f"s_lshl_b32 s33, {sG}, 7")
    em.e(f"s_add_u32 {sFLINE}, s33, {FLG_G}"); em.e(f"s_lshl_b32 s34, {sM}, 2"); em.e(f"s_add_u32 {sFOWN}, {sFLINE}, s34")
    em.e(f"s_lshl_b32 s33, {sM}, 7"); em.e(f"s_add_u32 {sKLINE}, s33, {FLG_KV}"); em.e(f"s_lshl_b32 s34, {sG}, 2"); em.e(f"s_add_u32 {sKOWN}, {sKLINE}, s34")
    em.e(f"s_lshl_b32 s33, {sG}, 3")
    em.e(f"s_lshl_b32 s34, {sW}, 1"); em.e(f"s_add_u32 {sTT2}, s33, s34")
    em.e(f"s_lshl_b32 s34, {sHALF}, 2"); em.e(f"s_add_u32 s34, s34, {sW}"); em.e(f"s_add_u32 {sTT1}, s33, s34")
    em.e(f"s_cmp_eq_u32 {sW}, 0"); em.e("s_cselect_b32 s44, 1, 0"); em.e("s_mov_b32 s45, 0")
    em.e(f"s_mov_b32 {sLAYER}, 0"); em.e(f"s_mov_b32 {sSTEP}, 0"); em.e(f"s_mov_b32 {sXI}, 0")
    em.e(f"s_mov_b32 {sE6}, {EPS6}")
    em.e(f"s_and_b32 {sODD}, {sC8}, 1")
    em.e(f"s_lshr_b32 s33, {sC8}, 1"); em.e("s_mul_i32 s33, s33, 5")
    em.e(f"s_lshl_b32 s34, {sODD}, 1"); em.e("s_add_u32 s34, s34, s33"); em.e("s_lshl_b32 s34, s34, 10")
    em.e(f"s_add_u32 s33, s33, 4"); em.e("s_lshl_b32 s33, s33, 10"); em.e(f"s_sub_u32 {sXREM}, s33, s34")
    em.e(f"s_mul_i32 s35, {sTT1}, 20480"); em.e(f"s_add_u32 s34, s34, s35"); em.e(f"s_add_u32 {sXOFF}, s34, {XB}")
    em.e(f"s_lshl_b32 s33, {sTT1}, 10"); em.e(f"s_lshl_b32 s34, {sC8}, 7"); em.e("s_add_u32 s33, s33, s34"); em.e(f"s_add_u32 {sSTOFF}, s33, {ST}")
    em.e(f"s_mul_i32 s33, {sTT2}, {54*1024}"); em.e(f"s_add_u32 {sAOFF}, s33, {ACT}")
    em.e(f"s_mul_i32 s33, {sTT2}, 20480"); em.e(f"s_add_u32 {sOOFF}, s33, {OB}")
    def m64(reg, val):
        a = int(reg[2:].split(":")[0])
        em.e(f"s_mov_b32 s{a}, {hex(val & 0xffffffff)}"); em.e(f"s_mov_b32 s{a+1}, {hex(val >> 32)}")
    m64(sMK[0], 0xFFFF); m64(sMK[1], 0xFFFF0000); m64(sMK[2], 0x0F000F000F000F00); m64(sMK[3], 0xF000F000F000F000)
    m64(sMK[4], 0x0F00); m64(sMK[5], 0xF0000000)
    m64(sBIT2, 0xF0F0F0F0F0F0F0F0); m64(sI8, 0x00FF00FF00FF00FF)
    m64(sG23, 0xFFFFFFFF00000000); m64(sG3, 0xFFFF000000000000); m64(sMK32, 0x00000000FFFFFFFF)
    if stamps:
        em.e(f"s_mov_b32 s{sTS+4}, 0"); em.e(f"s_mov_b32 s{sTS+5}, 0"); em.e(f"s_mov_b32 s{sTS+3}, {256 if MONO else 0}")
        em.e(f"s_sub_u32 s33, 0, s44")
        if opt.get("lst", 0) or MONO:
            em.e(f"s_cmp_eq_u32 s2, {opt.get('wg2', 0)}"); em.e(f"s_cselect_b32 s{sTS+4}, s33, 0"); em.e(f"s_mov_b32 s{sTS+5}, s{sTS+4}")
        if opt.get("rt"):
            em.e(f"s_mov_b32 s{sTS+4}, s33"); em.e(f"s_mov_b32 s{sTS+5}, 0"); em.e(f"s_lshl_b32 s{sTS+3}, s2, 7")
        elif not opt.get("lst", 0) and not MONO:
            em.e("s_cmp_eq_u32 s2, 0"); em.e(f"s_cselect_b32 s{sTS+4}, s33, 0")
            em.e(f"s_cmp_eq_u32 s2, {opt.get('wg2', 255)}"); em.e(f"s_cselect_b32 s{sTS+4}, s33, s{sTS+4}"); em.e(f"s_mov_b32 s34, {256 if MONO else 0}"); em.e(f"s_mov_b32 s35, {384 if MONO else 128}"); em.e(f"s_cselect_b32 s{sTS+3}, s35, s34")
    if not MONO:
        em.e(f"s_getreg_b32 {sMODE}, hwreg(HW_REG_XCC_ID)")
        em.e(f"s_and_b32 {sMODE}, {sMODE}, 0xffff"); em.e(f"s_add_u32 {sMODE}, {sMODE}, 1")
        em.e(f"v_mov_b32 v254, {sMODE}"); em.e("v_mov_b32 v255, 0")
        em.e(f"s_add_u32 s33, {sFOWN}, {FLG_XCC - FLG_G}")
        em.e(f"s_mov_b64 exec, {sFEX}")
        em.e(f"buffer_store_dword v254, v255, {S_WS}, s33 offen sc1")
        em.e("s_mov_b64 exec, -1")
    em.e("v_and_b32 v212, 15, v0"); em.e("v_lshrrev_b32 v213, 4, v0")
    em.e(f"v_add_u32 {vR1}, 0x10000, {vL16}"); em.e(f"v_add_u32 {vR2}, 0x20000, {vL16}"); em.e(f"v_add_u32 {vL16B}, 20480, {vL16}")
    em.e(f"v_lshlrev_b32 {vI4}, 2, v212"); em.e(f"v_add_u32 {vI4}, 0x20000, {vI4}")
    em.e(f"s_lshl_b32 s33, {sW}, 8")
    em.e(f"v_add_u32 {vI4W}, s33, {vI4}")
    em.e(f"v_lshlrev_b32 {vG16}, 4, v213"); em.e(f"v_add_u32 {vG16}, 0x20000, {vG16}"); em.e(f"v_add_u32 {vG16W}, s33, {vG16}")
    em.e("v_lshrrev_b32 v214, 5, v0"); em.e("v_bfe_u32 v215, v0, 4, 1")
    em.e("v_lshlrev_b32 v216, 8, v214"); em.e("v_lshlrev_b32 v217, 4, v212"); em.e("v_add_u32 v216, v216, v217")
    em.e(f"v_mul_u32_u24 v217, 20480, v215"); em.e(f"v_add_u32 {vX3}, v216, v217")
    em.e(f"v_mul_u32_u24 v217, {54*1024}, v215"); em.e(f"v_add_u32 {vA3}, v216, v217")
    em.e(f"v_lshlrev_b32 {vH16}, 4, v214"); em.e(f"v_add_u32 {vH16}, 0x20000, {vH16}")
    em.e(f"v_lshlrev_b32 {vL8}, 3, v0"); em.e(f"v_add_u32 {vL8}, 0x20000, {vL8}")
    em.e(f"v_lshlrev_b32 {vSTO}, 8, v213"); em.e("v_lshlrev_b32 v214, 3, v212"); em.e(f"v_add_u32 {vSTO}, {vSTO}, v214")
    em.e(f"s_mul_i32 s33, {sM}, 3"); em.e("v_lshrrev_b32 v214, 5, v0"); em.e("v_add_u32 v214, s33, v214")
    em.e("v_lshrrev_b32 v215, 3, v214"); em.e("v_add_u32 v215, 48, v215"); em.e("v_lshlrev_b32 v215, 10, v215")
    em.e("v_and_b32 v216, 3, v214"); em.e("v_lshlrev_b32 v216, 8, v216"); em.e("v_add_u32 v215, v215, v216")
    em.e("v_lshlrev_b32 v216, 4, v212"); em.e("v_add_u32 v215, v215, v216")
    em.e("v_bfe_u32 v216, v214, 2, 1"); em.e("v_lshlrev_b32 v216, 3, v216"); em.e(f"v_add_u32 v215, v215, v216")
    em.e("v_bfe_u32 v216, v0, 4, 1"); em.e(f"v_mul_u32_u24 v216, {54*1024}, v216"); em.e(f"v_add_u32 {vACT6}, v215, v216")
    em.e(f"s_lshr_b32 s33, {sM}, 2"); em.e("s_add_u32 s33, s33, 16"); em.e("s_lshl_b32 s33, s33, 10")
    em.e(f"s_and_b32 s34, {sM}, 1"); em.e("s_lshl_b32 s34, s34, 9"); em.e("s_add_u32 s33, s33, s34")
    em.e(f"s_bfe_u32 s34, {sM}, 0x10001"); em.e("s_lshl_b32 s34, s34, 3"); em.e("s_add_u32 s33, s33, s34")
    em.e("s_sub_u32 s33, s33, 512")
    em.e("v_lshlrev_b32 v215, 8, v213"); em.e("v_lshlrev_b32 v216, 4, v212"); em.e("v_add_u32 v215, v215, v216")
    em.e(f"v_add_u32 {vOREM}, s33, v215")
    em.e("v_mul_u32_u24 v215, 1280, v212"); em.e("v_lshlrev_b32 v216, 3, v213"); em.e(f"v_add_u32 {vOUT}, v215, v216")
    if MONO:
        em.e(f"s_cmp_lg_u32 {sW}, 0"); em.e("s_cbranch_scc1 Lm_sb_o")
        em.e("v_lshlrev_b32 v252, 2, v0")
        em.e(f"s_mov_b32 {sSPIN}, 0")
        em.label("Lm_sb_p")
        em.e("global_load_dword v253, v252, s[82:83] sc1")
        em.raw("    s_waitcnt vmcnt(0)")
        em.e("v_and_b32 v254, 0x80808080, v253")
        em.e("v_cmp_ne_u32 vcc, 0x80808080, v254")
        em.e(f"s_add_u32 {sSPIN}, {sSPIN}, 1")
        em.e(f"s_cmp_gt_u32 {sSPIN}, 200000")
        em.e("s_cbranch_scc1 Lm_sb_x")
        em.e("s_cbranch_vccnz Lm_sb_p")
        em.label("Lm_sb_x")
        em.e("s_and_b32 s33, s2, 3"); em.e("s_lshl_b32 s33, s33, 3")
        em.e("v_lshrrev_b32 v253, s33, v253"); em.e("v_and_b32 v253, 0xff, v253")
        em.e(f"v_cmp_ne_u32 vcc, {sMODE}, v253")
        em.e("s_bfe_u32 s33, s2, 0x20002"); em.e("s_mov_b32 s34, 0x11111111"); em.e("s_lshl_b32 s34, s34, s33"); em.e("s_mov_b32 s35, s34")
        em.e("s_and_b64 vcc, vcc, s[34:35]")
        em.e("s_cmp_lg_u64 vcc, 0"); em.e("s_cselect_b32 s33, 1, 0")
        if opt.get("force_slow", 0): em.e("s_mov_b32 s33, 1")
        em.e("v_mov_b32 v253, s33"); em.e(f"v_mov_b32 v252, {MISC + 12288}")
        em.e("ds_write_b32 v252, v253")
        em.raw("    s_waitcnt lgkmcnt(0)")
        em.label("Lm_sb_o")
        em.e("s_barrier")
        em.e(f"v_mov_b32 v252, {MISC + 12288}")
        em.e("ds_read_b32 v253, v252")
        ring.emit(em, upto=2)
        em.raw("    s_waitcnt lgkmcnt(0)")
        em.e(f"v_readfirstlane_b32 {sMODE}, v253")
        if opt.get("sst"):
            em.e("s_memrealtime s[76:77]"); em.raw("    s_waitcnt lgkmcnt(0)")
            em.e("v_mov_b32 v236, s101"); em.e("v_mov_b32 v237, s100"); em.e("v_mov_b32 v238, s76"); em.e("v_mov_b32 v239, 0")
            em.e("s_lshl_b32 s33, s2, 4"); em.e("s_add_u32 s33, s33, 0x3000000"); em.e("v_mov_b32 v240, s33")
            em.e("s_mov_b64 exec, 1"); em.e("global_store_dwordx4 v240, v[236:239], s[4:5]"); em.e("s_mov_b64 exec, -1")
        if stamps:
            em.e("s_memtime s[76:77]"); em.raw("    s_waitcnt lgkmcnt(0)"); em.e("s_sub_u32 s97, s76, s92")
    em.e(f"s_mul_i32 s33, {sM}, 512"); em.e(f"s_add_u32 s33, s33, {CS1}")
    em.e(f"s_mul_i32 s34, {sM}, 896"); em.e(f"s_add_u32 s34, s34, {CS3}")
    em.e("v_and_b32 v214, 31, v0"); em.e("v_lshlrev_b32 v214, 4, v214"); em.e("v_lshrrev_b32 v215, 5, v0")
    em.e("v_mul_u32_u24 v215, 81920, v215"); em.e("v_add_u32 v214, v214, v215"); em.e("v_add_u32 v214, s33, v214")
    em.e(f"v_add_u32 v215, s34, {vL16}")
    em.e("v_mov_b32 v216, 0x7ffffff0")
    em.e("v_cmp_gt_u32 vcc, 56, v0"); em.e("v_cndmask_b32 v215, v216, v215, vcc")
    em.e(f"s_cmp_eq_u32 {sW}, 0"); em.e("s_mov_b32 s36, 14336"); em.e("s_cselect_b32 s36, 8192, s36"); em.e("s_cselect_b64 vcc, -1, 0")
    em.e("v_cndmask_b32 v214, v215, v214, vcc")
    em.e(f"s_cmp_ge_u32 {sW}, 2"); em.e("s_cselect_b64 vcc, -1, 0")
    em.e("v_cndmask_b32 v214, v214, v216, vcc")
    for k in range(10):
        em.e(f"buffer_load_dwordx4 v[{CSVB+4*k}:{CSVB+4*k+3}], v214, {S_WS}, 0 offen", vm="cs")
        if k < 9: em.e("v_add_u32 v214, s36, v214")
    RL = RLB
    em.e(f"s_lshr_b32 s33, {sC8}, 1"); em.e("s_mul_i32 s33, s33, 5")
    em.e(f"s_lshl_b32 s34, {sODD}, 1"); em.e("s_add_u32 s34, s34, s33")
    em.e(f"s_mul_i32 s35, {sTT1}, 20480"); em.e(f"s_add_u32 s35, s35, {XB}")
    em.e("s_lshl_b32 s34, s34, 10"); em.e("s_add_u32 s34, s34, s35")
    em.e(f"buffer_load_dwordx4 v[{RL}:{RL+3}], {vL16}, {S_WS}, s34 offen", vm="res")
    em.e(f"buffer_load_dwordx4 v[{RL+4}:{RL+7}], {vL16}, {S_WS}, s34 offen offset:1024", vm="res")
    em.e("s_add_u32 s33, s33, 4"); em.e("s_lshl_b32 s33, s33, 10"); em.e("s_add_u32 s33, s33, s35")
    em.e(f"s_lshl_b32 s34, {sODD}, 3"); em.e("s_add_u32 s33, s33, s34")
    em.e(f"buffer_load_dwordx2 v[{RL+8}:{RL+9}], {vL16}, {S_WS}, s33 offen", vm="res")

    def poll(line, target_expr_sreg, lbl):
        em.e(f"s_mov_b32 {sSPIN}, 0")
        em.e(f"v_subrev_u32 v252, 0x20000, {vI4}")
        em.label(lbl)
        em.e(f"buffer_load_dword v253, v252, {S_WS}, {line} offen sc1")
        em.raw("    s_waitcnt vmcnt(0)")
        em.e(f"v_cmp_gt_u32 vcc, {target_expr_sreg}, v253")
        em.e(f"s_add_u32 {sSPIN}, {sSPIN}, 1")
        em.e(f"s_cmp_gt_u32 {sSPIN}, 20000")
        em.e(f"s_cbranch_scc1 {lbl}_x")
        em.e(f"s_cbranch_vccnz {lbl}")
        em.label(lbl + "_x")
    uid = [0]
    def flag_store(own, val_sreg):
        em.e(f"v_mov_b32 v254, {val_sreg}")
        em.e("v_mov_b32 v255, 0")
        em.e(f"s_mov_b64 exec, {sFEX}")
        em.e(f"buffer_store_dword v254, v255, {S_WS}, {own} offen{cur['STO']}")
        em.e("s_mov_b64 exec, -1")
    def transition(pub, wait, last_round, sttags, need, d1, d2, upto2=None):
        uid[0] += 1; u = uid[0]
        ring.emit(em, d1, upto=upto2)
        em.wait(wvm=sttags)
        em.e("s_barrier")
        ring.allowed = max(ring.allowed, last_round + NR)
        em.e(f"s_add_u32 {sT0}, {sSTEP}, {pub}")
        flag_store(sFOWN, sT0)
        ring.emit(em, d2, upto=upto2)
        ring.emit(em, upto=need)
        assert ring.issued >= need
        em.e(f"s_cmp_lg_u32 {sW}, 0")
        em.e(f"s_cbranch_scc1 Lt{u}_o")
        em.e(f"s_add_u32 {sT0}, {sSTEP}, {wait}")
        poll(sFLINE, sT0, f"Lt{u}_p")
        em.label(f"Lt{u}_o")
        em.wait(wvm=[("dma", x) for x in range(ring.filled + 1, need + 1)], wlg=[("dmal", x) for x in range(ring.filled + 1, need + 1)])
        ring.filled = max(ring.filled, need)
        em.e("s_barrier")

    def a_loads(n_tiles, nblk, ph, tagname, areg, m32=False):
        ops = []
        sR, rset = ROTREG[ph]
        rot = opt.get("rot", 0)
        for b in range(nblk):
            if b == 0 and rot:
                ops += [Op(f"s_lshl_b32 {sRT}, {sR}, 10"), Op(f"s_add_u32 {sA}, {sA}, {sRT}")]
            if b % 4 == 0 and b > 0:
                ops.append(Op(f"s_add_u32 {sA}, {sA}, 4096"))
                if rot and (nblk - b) in rset:
                    ops += [Op(f"s_cmp_eq_u32 {sR}, {nblk - b}"), Op(f"s_cselect_b32 {sRT}, {nblk*1024}, 0"), Op(f"s_sub_u32 {sA}, {sA}, {sRT}")]
            for t in range(n_tiles):
                r = areg(b, t)
                va = vL16 if t == 0 else vL16B
                off = (b % 4) * 1024
                if m32: va = vX3; off += 512 * t
                ops.append(Op(f"buffer_load_dwordx4 a[{r}:{r+3}], {va}, {S_WS}, {sA} offen offset:{off}{cur['LD']}", vm=(tagname, b, t)))
        return ops

    def a_jobs(al, dl):
        jobs = []; pend = []
        for o in al:
            pend.append(o)
            if o.vm is not None:
                jobs.append((pend, dl(o.vm[1]))); pend = []
        return jobs
    def stats_ops(base):
        ops = []
        for t in range(2):
            a = base + 4 * t; nm = base + 8 + 2 * t; rs = nm + 1; x = base + 12; y = base + 13
            ops.append(Op(f"v_add_f32 v{a}, v{a}, v{a+2}", wvm=[("st", t)]))
            ops.append(f"v_add_f32 v{a+1}, v{a+1}, v{a+3}")
            for sw in ("v_permlane32_swap_b32", "v_permlane16_swap_b32"):
                ops.append(f"v_mov_b32 v{x}, v{a}"); ops.append(f"v_mov_b32 v{y}, v{a+1}")
                ops.append(f"{sw} v{a}, v{x}"); ops.append(f"{sw} v{a+1}, v{y}")
                ops.append(f"v_add_f32 v{a}, v{a}, v{x}"); ops.append(f"v_add_f32 v{a+1}, v{a+1}, v{y}")
            ops.append(f"v_mul_f32 v{nm}, {hex(INV640 | 0x80000000)}, v{a}")
            ops.append(f"v_mul_f32 v{a+1}, {hex(INV640)}, v{a+1}")
            ops.append(f"v_fma_f32 v{a+1}, -v{nm}, v{nm}, v{a+1}")
            ops.append(f"v_max_f32 v{a+1}, 0, v{a+1}")
            ops.append(f"v_add_f32 v{a+1}, {hex(EPS5)}, v{a+1}")
            ops.append((Op(f"v_rsq_f32 v{rs}, v{a+1}"), 2))
        return ops
    def stats_loads(base):
        ops = []
        ops.append(Op(f"s_mul_i32 {sST}, {sXI}, {ST_SZ}"))
        ops.append(Op(f"s_lshl_b32 {sST2}, {sTT2}, 10"))
        ops.append(Op(f"s_add_u32 {sST}, {sST}, {sST2}"))
        ops.append(Op(f"s_add_u32 {sST}, {sST}, {ST}"))
        for t in range(2):
            a = base + 4 * t
            ops.append(Op(f"buffer_load_dwordx2 v[{a}:{a+1}], {vSTO}, {S_WS}, {sST} offen offset:{t*1024}{cur['LD']}", vm=("st", t)))
            ops.append(Op(f"buffer_load_dwordx2 v[{a+2}:{a+3}], {vSTO}, {S_WS}, {sST} offen offset:{t*1024+128}{cur['LD']}", vm=("st", t)))
        return ops
    def set_sA_x():
        em.e(f"s_mul_i32 {sA}, {sXI}, {X_SZ}"); em.e(f"s_mul_i32 {sT0}, {sTT2}, 20480")
        em.e(f"s_add_u32 {sA}, {sA}, {sT0}"); em.e(f"s_add_u32 {sA}, {sA}, {XB}")

    def phi_ops(acc, cs, nm, rs, rl, t1, t2):
        return [f"v_fmac_f32 v{acc}, v{nm}, v{cs}",
                f"v_mul_f32 v{t1}, v{acc}, v{rl}",
                (Op(f"v_exp_f32 v{t1}, v{t1} clamp"), 2),
                f"v_max_f32 v{acc}, 0, v{acc}",
                f"v_add_f32 v{t1}, {hex(EPS6)}, v{t1}",
                f"v_fma_f32 v{acc}, v{acc}, v{rs}, v{t1}"]
    def il(lists):
        out = []; k = 0
        while any(k < len(l) for l in lists):
            for l in lists:
                if k < len(l): out.append(l[k])
            k += 1
        return out
    def lin(ops):
        for o in ops:
            if isinstance(o, tuple): o = o[0]
            em.op(o)

    def reuse(): return cur["sfx"] == "F" and opt.get("reuse", 1)
    def LB(): return "0" if reuse() else sLAYER
    def pt(voff, srd, soff, imm=0):
        sc = {0: "", 1: " sc1", 2: " sc0", 3: " nt", 4: " sc0 sc1"}[opt.get("ptsc", 0)]
        if voff is None: return Op(f"buffer_load_dword {PTD}, off, {srd}, {soff} offset:{imm}{sc}", vm="pt")
        return Op(f"buffer_load_dword {PTD}, {voff}, {srd}, {soff} offen offset:{imm}{sc}", vm="pt")
    PTM = opt.get("ptm", 1); PTK = opt.get("ptk", 31)
    def PS(): return S_WSN if PTM == 2 else S_WS
    def pt_x(srd):
        return [f"s_mov_b32 {sP0}, 1" if reuse() else f"s_add_u32 {sP0}, {sXI}, 1", f"s_mul_i32 {sP1}, {sP0}, {X_SZ}", f"s_add_u32 {sP1}, {sP1}, {sXOFF}",
                pt(vL16, srd, sP1), pt(vL16, srd, sP1, 1024),
                f"s_add_u32 {sP1}, {sP1}, {sXREM}", pt(vL16, srd, sP1),
                f"s_mul_i32 {sP0}, {sP0}, {ST_SZ}", f"s_add_u32 {sP0}, {sP0}, {sSTOFF}", pt(None, srd, sP0)]
    def pt_act(p):
        ops = [f"s_mul_i32 {sP0}, {LB()}, {ACT_SZ}", f"s_add_u32 {sP0}, {sP0}, {sAOFF}"]
        if p < 3:
            ops += [f"s_lshl_b32 {sP1}, {sM}, 10", f"s_add_u32 {sP0}, {sP0}, {sP1}"]
            if p: ops.append(f"s_add_u32 {sP0}, {sP0}, {p*16384}")
            ops += [pt(vL16, PS(), sP0), f"s_add_u32 {sP0}, {sP0}, {54*1024}", pt(vL16, PS(), sP0)]
        else:
            ops += [pt(vACT6, PS(), sP0)]
        return ops
    def pt_o():
        return [f"s_mul_i32 {sP0}, {LB()}, {O_SZ}", f"s_add_u32 {sP0}, {sP0}, {sOOFF}",
                pt(vOREM, PS(), sP0), f"s_add_u32 {sP0}, {sP0}, 20480", pt(vOREM, PS(), sP0),
                f"s_lshl_b32 {sP1}, {sM}, 10", f"s_add_u32 {sP0}, {sP0}, {sP1}", pt(vL16, PS(), sP0), f"s_sub_u32 {sP0}, {sP0}, 20480", pt(vL16, PS(), sP0)]
    def pt_place(seg, ops, g):
        if cur["sfx"] != "F" or not opt.get("pt", 1): return g
        for o in ops:
            if isinstance(o, list): g = seg.group(o, g, maxcost=seg.cap - 1)
            else: g = seg.place(o, g)
        return g
    def pt_jobs(ops, earliest, dl):
        if cur["sfx"] != "F" or not opt.get("pt", 1): return []
        jobs = []; pend = []
        for o in ops:
            if isinstance(o, list):
                jobs.append((pend + [x if isinstance(x, Op) else Op(x) for x in o], dl, earliest)); pend = []
            elif isinstance(o, Op) and o.vm is not None:
                jobs.append((pend + [o], dl, earliest)); pend = []
            else: pend.append(o if isinstance(o, Op) else Op(o))
        assert not pend
        return jobs
    def pf_place(seg, ph, off, key, nxt=False): pass
    def pf_now(ph, off, key, nxt=False): pass
    def prologue_end():
        if PTM == 3 and opt.get("ptpos", 0) == 0: pt_all()
        ring.emit(em, upto=HEAD)
        if PTM == 3 and opt.get("ptpos", 0) == 1: pt_all()
        assert ring.issued == HEAD and not ring.q
    def pt_all():
        ops = (pt_o() if PTK & 1 else []) + (pt_x(S_WS) if PTK & 2 else []) + (pt_act(0) if PTK & 4 else [])
        if PTK & 8: ops += pt_act(1) + pt_act(2) + pt_act(3)
        for o in ops: em.op(o if isinstance(o, Op) else Op(o))
    def K1():
        AX = lambda b, t: 80 * t + 4 * b
        SB = TMP
        NM4 = 226
        P1 = ACC
        set_sA_x()
        seg = Seg(); ws = WStream(ring, seg, "K1", SS=SS)
        fu = {}; lu = {}
        for b in range(20):
            for t in range(5):
                f = b * 5 + t; wr = ws.wreg(f)
                for tok in range(2):
                    d = P1 + 8 * t + 4 * tok
                    c = "0" if b == 0 else f"v[{d}:{d+3}]"
                    wl = [("w", "K1", b * 5 + 4)] if (t == 0 and tok == 0) else None
                    wv = [("a", b, 1)] if (t == 0 and tok == 0) else None
                    i = seg.mfma(f"v_mfma_f32_16x16x32_bf16 v[{d}:{d+3}], a[{AX(b,tok)}:{AX(b,tok)+3}], v[{wr}:{wr+3}], {c}", wvm=wv, wlg=wl)
                    if t == 0 and tok == 0: g0 = i
                    fu.setdefault(f, g0); lu[f] = i
        al = a_loads(2, 20, "K1", "a", AX)
        sl = stats_loads(SB)
        for o in sl: seg.put(0, o, 0)
        ws.reads(list(range(100)), fu, lu, force=(6,))
        ws.vmem(a_jobs(al, lambda b: 10 * b - 30), lambda r: 0 if r <= 6 else opt.get("k1w", 0), margin=MARG, qd=QD, rate=opt.get("r1", 38) / 10.0)
        so = stats_ops(SB)
        for t in range(2):
            nm = SB + 8 + 2 * t
            so.append(Op(f"ds_write_b32 {vI4W}, v{nm} offset:{L_STAT + t*128}", lg="sw"))
            so.append(Op(f"ds_write_b32 {vI4W}, v{nm+1} offset:{L_STAT + t*128 + 64}", lg="sw"))
        for t in range(2):
            so.append(Op(f"ds_read_b128 v[{NM4+8*t}:{NM4+8*t+3}], {vG16W} offset:{L_STAT + t*128}", lg="sr", wlg=["sw"]))
            so.append(Op(f"ds_read_b128 v[{NM4+8*t+4}:{NM4+8*t+7}], {vG16W} offset:{L_STAT + t*128 + 64}", lg="sr"))
        for t in range(2):
            for r in range(4):
                so.append(Op(f"v_mul_f32 v{242+4*t+r}, {hex(LOG2E)}, v{NM4+8*t+4+r}", wlg=["sr"]))
        seg.stream(so, 40)
        pf_place(seg, "K2", 0, "po")
        for g in ((1, 50, 100, 150) if not opt.get('ls2') else range(1, 200, 20)): lstamp(seg, g)
        seg.emit(em)
        stamp()
        em.e(f"s_cmp_lg_u32 {sLAYER}, 0"); em.e(f"s_cbranch_scc1 Lk1_nocs{cur['sfx']}")
        svm = list(em.vm); slg = list(em.lg)
        for k in range(1, 10):
            for q in range(4): em.e(f"v_add_f32 v{CSVB+q}, v{CSVB+q}, v{CSVB+4*k+q}")
        for q in range(4):
            em.e(f"v_mov_b32 v{CSVB+4+q}, v{CSVB+q}"); em.e(f"v_mov_b32 v{CSVB+8+q}, v{CSVB+q}")
        for q in range(4):
            em.e(f"v_permlane32_swap_b32 v{CSVB+4+q}, v{CSVB+8+q}")
        em.e(f"s_cmp_eq_u32 {sW}, 0"); em.e("s_cselect_b64 vcc, -1, 0")
        for q in range(4):
            em.e(f"v_add_f32 v{CSVB+4+q}, v{CSVB+4+q}, v{CSVB+8+q}")
            em.e(f"v_cndmask_b32 v{CSVB+q}, v{CSVB+q}, v{CSVB+4+q}, vcc")
        em.e(f"s_cmp_eq_u32 {sW}, 0"); em.e(f"s_mov_b32 {sT0}, {L_CS3}"); em.e(f"s_cselect_b32 {sT0}, {L_CS1}, {sT0}"); em.e(f"s_cselect_b32 {sT1}, 32, 56")
        em.e(f"s_cmp_ge_u32 {sW}, 2"); em.e(f"s_cselect_b32 {sT1}, 0, {sT1}")
        em.e(f"v_add_u32 v254, {sT0}, {vR2}")
        em.e(f"v_lshrrev_b32 v255, 4, {vL16}")
        em.e(f"v_cmp_gt_u32 vcc, {sT1}, v255")
        em.e("s_and_saveexec_b64 s[34:35], vcc")
        em.e(f"ds_write_b128 v254, v[{CSVB}:{CSVB+3}]")
        em.e("s_mov_b64 exec, s[34:35]")
        for q in range(10):
            em.e(f"v_lshlrev_b32 v{RES+2*q}, 16, v{RLB+q}")
            em.e(f"v_and_b32 v{RES+2*q+1}, 0xffff0000, v{RLB+q}")
        em.raw("    s_waitcnt lgkmcnt(0)")
        em.e("s_barrier")
        if cur["sfx"] == "F" and not MONO:
            uid[0] += 1; u = uid[0]
            em.e(f"s_add_u32 {sT1}, {sFLINE}, {FLG_XCC - FLG_G}")
            poll(sT1, "1", f"Lx{u}_p")
            em.e(f"v_cmp_ne_u32 vcc, {sMODE}, v253")
            if opt.get("force_slow", 0): em.e("s_branch Lk1_nocsS")
            em.e("s_cbranch_vccnz Lk1_nocsS")
        em.label(f"Lk1_nocs{cur['sfx']}")
        em.vm = svm; em.lg = []
        em.raw("    s_waitcnt lgkmcnt(0)")
        if not opt.get('k1n', 1):
            CS = 140
            for t in range(5):
                em.e(f"ds_read_b32 v{CS+t}, {vI4} offset:{L_CS1 + t*64}", lg="cs")
            KF = 148
            T1, T2 = 172, 173
            def nmr(tok, r): return NM4 + 8 * tok + r
            def rsr(tok, r): return NM4 + 8 * tok + 4 + r
            def rlr(tok, r): return 242 + 4 * tok + r
            em.wait(wlg=["cs"])
            XV = 176
            ops = []
            streams = []
            tmpc = [180]
            for (t, fr_) in ((0, KF), (1, KF + 4), (4, KF + 16)):
                for tok in range(2):
                    for r in range(4):
                        a = P1 + 8 * t + 4 * tok + r
                        tt = 184 + (len(streams) % 8)
                        if t == 4:
                            s_ = [f"v_fmac_f32 v{a}, v{nmr(tok,r)}, v{CS+t}",
                                  f"v_mul_f32 v{XV+4*tok+r}, v{a}, v{rsr(tok,r)}",
                                  f"v_mul_f32 v{tt}, v{a}, v{rlr(tok,r)}",
                                  f"v_exp_f32 v{tt}, v{tt} clamp",
                                  f"v_max_f32 v{a}, 0, v{a}",
                                  f"v_add_f32 v{tt}, {hex(EPS6)}, v{tt}",
                                  f"v_fma_f32 v{a}, v{a}, v{rsr(tok,r)}, v{tt}"]
                        else:
                            s_ = [x[0] if isinstance(x, tuple) else x for x in phi_ops(a, CS + t, nmr(tok, r), rsr(tok, r), rlr(tok, r), tt, None)]
                        streams.append(s_)
            for k in range(0, len(streams), 4):
                lin(il(streams[k:k + 4]))
                ring.emit(em, 4)
            for t in (2, 3):
                for tok in range(2):
                    for r in range(4):
                        a = P1 + 8 * t + 4 * tok + r
                        em.e(f"v_fmac_f32 v{a}, v{nmr(tok,r)}, v{CS+t}")
                    for r in range(4):
                        a = P1 + 8 * t + 4 * tok + r
                        em.e(f"v_mul_f32 v{a}, v{a}, v{rsr(tok,r)}")
            for k in range(8):
                em.e(f"v_cndmask_b32 v{XV+k}, v{XV+k}, 1.0, {sI8}")
            def pack(dst, src_tok0, src_tok1):
                em.e(f"v_cvt_pk_bf16_f32 v{dst}, v{src_tok0}, v{src_tok0+1}"); em.e(f"v_cvt_pk_bf16_f32 v{dst+1}, v{src_tok0+2}, v{src_tok0+3}")
                em.e(f"v_cvt_pk_bf16_f32 v{dst+2}, v{src_tok1}, v{src_tok1+1}"); em.e(f"v_cvt_pk_bf16_f32 v{dst+3}, v{src_tok1+2}, v{src_tok1+3}")
            K0f, K1f, V0f, V1f, XKf, XPf = KF, KF + 4, KF + 8, KF + 12, KF + 16, KF + 20
            pack(K0f, P1 + 0, P1 + 4); pack(K1f, P1 + 8, P1 + 12); pack(V0f, P1 + 16, P1 + 20); pack(V1f, P1 + 24, P1 + 28)
            pack(XKf, P1 + 32, P1 + 36); pack(XPf, XV, XV + 4)
            D = 184
            for k, (A_, B_) in enumerate([(K0f, V0f), (K1f, V1f), (XKf, V0f), (XKf, V1f), (K0f, XPf), (K1f, XPf), (XKf, XPf)]):
                em.e(f"v_mfma_f32_16x16x32_bf16 v[{D+4*k}:{D+4*k+3}], v[{A_}:{A_+3}], v[{B_}:{B_+3}], 0")
            D1, D2, D3, D4, D5, D6, D7 = [D + 4 * k for k in range(7)]
            for r in range(4):
                em.e(f"v_cndmask_b32 v{D5+r}, v{D5+r}, v{D6+r}, {sBIT2}")
                em.e(f"v_cndmask_b32 v{D3+r}, v{D3+r}, v{D4+r}, {sMK[1]}")
            for r in range(4):
                em.e(f"v_permlane32_swap_b32 v{D3+r}, v{D7+r}")
            ring.emit(em, upto=13)
            assert ring.issued <= 13 and ring.next_round() <= 14 and not ring.q and ws.lastbar >= 6, (ring.issued, ws.lastbar)
            RP = (14 % NR) * 16384 - 65536
            em.e(f"v_add_u32 v254, {sW1K}, {vR1}"); em.e(f"v_add_u32 v255, {sW4K}, {vR1}")
            for t, src in enumerate((D1, D2, D5, D3)):
                em.e(f"ds_write_b128 v254, v[{src}:{src+3}] offset:{RP + t*4096}", lg="red")
            em.wait_all_lg()
            em.wait(wvm=[("dma", x) for x in range(ring.filled + 1, 9)])
            ring.filled = 8
            em.e("s_barrier")
            for k in range(4):
                em.e(f"ds_read_b128 v[{D+4*k}:{D+4*k+3}], v255 offset:{RP + k*1024}", lg=("rr", k))
            em.e(f"s_mul_i32 {sST}, {sLAYER}, {KVP_L}"); em.e(f"s_lshl_b32 {sST2}, {sM}, 16"); em.e(f"s_add_u32 {sST}, {sST}, {sST2}")
            em.e(f"s_add_u32 {sST}, {sST}, {KVP}"); em.e(f"s_add_u32 {sST}, {sST}, {sW1K}")
            em.e(f"s_lshl_b32 {sST2}, {sG}, 12"); em.e(f"s_add_u32 {sST2}, {sST2}, {sST}")
            for q in range(4): em.e(f"v_add_f32 v{D+q}, v{D+q}, v{D+4+q}", wlg=[("rr", 1)] if q == 0 else None)
            for q in range(4): em.e(f"v_add_f32 v{D+8+q}, v{D+8+q}, v{D+12+q}", wlg=[("rr", 3)] if q == 0 else None)
            for q in range(4): em.e(f"v_add_f32 v{D+q}, v{D+q}, v{D+8+q}")
            em.e(f"buffer_store_dwordx4 v[{D}:{D+3}], {vL16}, {S_WS}, {sST2} offen sc1", vm="kvst")
            stamp()
            P2 = ACC
            seg = Seg(); ws2 = WStream(ring, seg, "K1", SS=SS)
            fu = {}; lu = {}
            for b in range(20):
                for t in range(3):
                    f = 100 + 3 * b + t; wr = ws2.wreg(f)
                    for tok in range(2):
                        d = P2 + 8 * t + 4 * tok
                        c = "0" if b == 0 else f"v[{d}:{d+3}]"
                        wl = [("w", "K1", 100 + 3 * b + 2)] if (t == 0 and tok == 0) else None
                        i = seg.mfma(f"v_mfma_f32_16x16x32_bf16 v[{d}:{d+3}], v[{wr}:{wr+3}], a[{AX(b,tok)}:{AX(b,tok)+3}], {c}", wlg=wl)
                        if t == 0 and tok == 0: g0 = i
                        fu.setdefault(f, g0); lu[f] = i
            ws2.reads(list(range(100, 160)), fu, lu, nobar=(7, 8))
            assert len(ws2.events) == 1
            gb = ws2.events[0][0]
            for o in seg.gaps[gb]:
                if o.text == "s_barrier": o.wvm = list(o.wvm) + ["kvst"]
            pub = [Op(f"s_add_u32 {sT0}, {sLAYER}, 1"),
                   Op(f"v_mov_b32 v254, {sT0}"), Op("v_mov_b32 v255, 0"),
                   Op(f"s_mov_b64 exec, {sFEX}"),
                   Op(f"buffer_store_dword v254, v255, {S_WS}, {sKOWN} offen sc1"),
                   Op("s_mov_b64 exec, -1")]
            g = seg.stream(pub[:3], gb - 6)
            assert g < gb
            for o in pub[3:]: seg.put(gb + 1, o, 1)
            g = pt_place(seg, pt_o(), 2)
            g = pt_place(seg, pt_x(S_WS), g)
            g = pt_place(seg, pt_act(0), g)
            pf_place(seg, "K3", 32768, "pa1"); pf_place(seg, "K3", 32768 + 65536, "pa2"); pf_place(seg, "K3", 32768 + 2*65536, "pa3"); pf_place(seg, "K3", 32768 + 3*65536, "pa4")
            ws2.vmem([], lambda r: 0, margin=MARG, qd=QD, rate=RATE)
            CS4 = 140
            seg.stream([Op(f"ds_read_b128 v[{CS4+4*t}:{CS4+4*t+3}], {vG16} offset:{L_CS1 + (5+t)*64}", lg="cs4") for t in range(3)], 60)
            RLI = 152
            seg.stream([f"v_mul_f32 v{RLI+t}, {hex(LOG2E)}, v{SB+8+2*t+1}" for t in range(2)], 70)
            seg.emit(em)
            stamp()
            em.wait(wlg=["cs4"])
            streams = []
            for t in range(3):
                for tok in range(2):
                    for r in range(4):
                        a = P2 + 8 * t + 4 * tok + r
                        tt = 184 + (len(streams) % 8)
                        streams.append([x[0] if isinstance(x, tuple) else x for x in phi_ops(a, CS4 + 4 * t + r, SB + 8 + 2 * tok, SB + 8 + 2 * tok + 1, RLI + tok, tt, None)])
            for k in range(0, len(streams), 4):
                lin(il(streams[k:k + 4]))
                ring.emit(em, 2)
            F = 156
            for tok in range(2):
                qa = P2 + 4 * tok; qb = P2 + 8 + 4 * tok; qx = P2 + 16 + 4 * tok
                fa = F + 8 * tok; fb = fa + 4
                em.e(f"v_cvt_pk_bf16_f32 v{fa}, v{qa}, v{qa+1}"); em.e(f"v_cvt_pk_bf16_f32 v{fa+1}, v{qa+2}, v{qa+3}")
                em.e(f"v_cvt_pk_bf16_f32 v{fa+2}, v{qx}, v{qx+1}"); em.e(f"v_cvt_pk_bf16_f32 v{fa+3}, v{qx+2}, v{qx+3}")
                em.e(f"v_cvt_pk_bf16_f32 v{fb}, v{qb}, v{qb+1}"); em.e(f"v_cvt_pk_bf16_f32 v{fb+1}, v{qb+2}, v{qb+3}")
                em.e(f"v_mov_b32 v{fb+2}, v{fa+2}"); em.e(f"v_mov_b32 v{fb+3}, v{fa+3}")
            uid[0] += 1; u = uid[0]
            em.e(f"s_cmp_lg_u32 {sW}, 0")
            em.e(f"s_cbranch_scc1 Lkv{u}_o")
            em.e(f"s_add_u32 {sT0}, {sLAYER}, 1")
            poll(sKLINE, sT0, f"Lkv{u}_p")
            em.label(f"Lkv{u}_o")
            em.e("s_barrier")
            ring.allowed = max(ring.allowed, 18)
            KL = 172
            for Gp in range(16):
                if Gp % 1 == 0: em.e(f"s_add_u32 {sST2}, {sST}, {Gp*4096}")
                em.e(f"buffer_load_dwordx4 v[{KL+4*Gp}:{KL+4*Gp+3}], {vL16}, {S_WS}, {sST2} offen sc1", vm=("kl", Gp))
            ring.emit(em, upto=18)
            pf_now("K3", 32768, "pb1"); pf_now("K3", 32768 + 65536, "pb2"); pf_now("K3", 32768 + 2*65536, "pb3"); pf_now("K3", 32768 + 3*65536, "pb4")
            for Gp in range(1, 16):
                for q in range(4):
                    em.e(f"v_add_f32 v{KL+q}, v{KL+q}, v{KL+4*Gp+q}", wvm=[("kl", Gp)] if q == 0 else None)
        else:
            CS = 140
            for t in range(5):
                em.e(f"ds_read_b32 v{CS+t}, {vI4} offset:{L_CS1 + t*64}", lg="cs")
            KF = 148
            def nmr(tok, r): return NM4 + 8 * tok + r
            def rsr(tok, r): return NM4 + 8 * tok + 4 + r
            def rlr(tok, r): return 242 + 4 * tok + r
            XV = 172
            TT = 180
            P2 = 188
            em.e(f"s_mul_i32 {sST}, {sLAYER}, {KVP_L}"); em.e(f"s_lshl_b32 {sST2}, {sM}, 16"); em.e(f"s_add_u32 {sST}, {sST}, {sST2}")
            em.e(f"s_add_u32 {sST}, {sST}, {KVP}"); em.e(f"s_add_u32 {sST}, {sST}, {sW1K}")
            em.e(f"s_lshl_b32 {sST2}, {sG}, 12"); em.e(f"s_add_u32 {sST2}, {sST2}, {sST}")
            em.e(f"v_add_u32 v254, {sW1K}, {vR1}"); em.e(f"v_add_u32 v255, {sW4K}, {vR1}")
            seg = Seg(); ws2 = WStream(ring, seg, "K1", SS=SS)
            fu = {}; lu = {}
            for b in range(20):
                for t in range(3):
                    f = 100 + 3 * b + t; wr = ws2.wreg(f)
                    for tok in range(2):
                        d = P2 + 8 * t + 4 * tok
                        c = "0" if b == 0 else f"v[{d}:{d+3}]"
                        wl = [("w", "K1", 100 + 3 * b + 2)] if (t == 0 and tok == 0) else None
                        i = seg.mfma(f"v_mfma_f32_16x16x32_bf16 v[{d}:{d+3}], v[{wr}:{wr+3}], a[{AX(b,tok)}:{AX(b,tok)+3}], {c}", wlg=wl)
                        if t == 0 and tok == 0: g0 = i
                        fu.setdefault(f, g0); lu[f] = i
            assert ring.filled == 6, ring.filled
            ws2.reads(list(range(100, 144)), fu, lu)
            assert len(ws2.events) == 1 and ws2.events[0][2] == 8, ws2.events
            ws2.events[0] = (ws2.events[0][0], 13, 8)
            streams = []
            def phi_stream(t):
                for tok in range(2):
                    for r in range(4):
                        a = P1 + 8 * t + 4 * tok + r
                        tt = TT + (len(streams) % 8)
                        if t == 4:
                            s_ = [f"v_fmac_f32 v{a}, v{nmr(tok,r)}, v{CS+t}",
                                  f"v_mul_f32 v{XV+4*tok+r}, v{a}, v{rsr(tok,r)}",
                                  f"v_mul_f32 v{tt}, v{a}, v{rlr(tok,r)}",
                                  (Op(f"v_exp_f32 v{tt}, v{tt} clamp"), 2),
                                  f"v_max_f32 v{a}, 0, v{a}",
                                  f"v_add_f32 v{tt}, {hex(EPS6)}, v{tt}",
                                  f"v_fma_f32 v{a}, v{a}, v{rsr(tok,r)}, v{tt}"]
                        else:
                            s_ = phi_ops(a, CS + t, nmr(tok, r), rsr(tok, r), rlr(tok, r), tt, None)
                        streams.append(s_)
            for t in (0, 1, 4): phi_stream(t)
            ko = []
            for k in range(0, len(streams), 4): ko += il(streams[k:k + 4])
            o0 = ko[0]; o0 = Op(o0, wlg=["cs"]); ko[0] = o0
            for t in (2, 3):
                for tok in range(2):
                    for r in range(4):
                        a = P1 + 8 * t + 4 * tok + r
                        ko.append(f"v_fmac_f32 v{a}, v{nmr(tok,r)}, v{CS+t}")
                    for r in range(4):
                        a = P1 + 8 * t + 4 * tok + r
                        ko.append(f"v_mul_f32 v{a}, v{a}, v{rsr(tok,r)}")
            for k in range(8):
                ko.append(f"v_cndmask_b32 v{XV+k}, v{XV+k}, 1.0, {sI8}")
            def pack(dst, src_tok0, src_tok1):
                return [f"v_cvt_pk_bf16_f32 v{dst}, v{src_tok0}, v{src_tok0+1}", f"v_cvt_pk_bf16_f32 v{dst+1}, v{src_tok0+2}, v{src_tok0+3}",
                        f"v_cvt_pk_bf16_f32 v{dst+2}, v{src_tok1}, v{src_tok1+1}", f"v_cvt_pk_bf16_f32 v{dst+3}, v{src_tok1+2}, v{src_tok1+3}"]
            K0f, K1f, V0f, V1f, XKf, XPf = KF, KF + 4, KF + 8, KF + 12, KF + 16, KF + 20
            ko += pack(K0f, P1 + 0, P1 + 4) + pack(K1f, P1 + 8, P1 + 12) + pack(XKf, P1 + 32, P1 + 36) + pack(V0f, P1 + 16, P1 + 20) + pack(V1f, P1 + 24, P1 + 28) + pack(XPf, XV, XV + 4)
            KCAP = opt.get("kcap", 5)
            g = seg.stream(ko, 0, cap=KCAP)
            D = 100
            g += 1
            for k, (A_, B_) in enumerate([(K0f, V0f), (K1f, V1f), (XKf, V0f), (XKf, V1f), (K0f, XPf), (K1f, XPf), (XKf, XPf)]):
                seg.put(g + k // 2, f"v_mfma_f32_16x16x32_bf16 v[{D+4*k}:{D+4*k+3}], v[{A_}:{A_+3}], v[{B_}:{B_+3}], 0", 2)
            g += 5
            D1, D2, D3, D4, D5, D6, D7 = [D + 4 * k for k in range(7)]
            RP = (14 % NR) * 16384 - 65536
            ko = [Op(f"ds_write_b128 v254, v[{D1}:{D1+3}] offset:{RP}", lg="red"), Op(f"ds_write_b128 v254, v[{D2}:{D2+3}] offset:{RP + 4096}", lg="red")]
            for r in range(4):
                ko.append(f"v_cndmask_b32 v{D5+r}, v{D5+r}, v{D6+r}, {sBIT2}")
            for r in range(4):
                ko.append(f"v_cndmask_b32 v{D3+r}, v{D3+r}, v{D4+r}, {sMK[1]}")
            ko.append(Op(f"ds_write_b128 v254, v[{D5}:{D5+3}] offset:{RP + 2*4096}", lg="red"))
            for r in range(4):
                ko.append(f"v_permlane32_swap_b32 v{D3+r}, v{D7+r}")
            g = seg.stream(ko, g, cap=KCAP)
            g = seg.put(g + 1, Op(f"ds_write_b128 v254, v[{D3}:{D3+3}] offset:{RP + 3*4096}", lg="red"), 1)
            gR = g + opt.get("kgb", 3)
            seg.put(gR, Op("s_barrier", wvm=[("dma", 9)], wlg=["red"]), 2)
            for k in range(4):
                seg.put(gR, Op(f"ds_read_b128 v[{D+4*k}:{D+4*k+3}], v255 offset:{RP + k*1024}", lg=("rr", k)), 1)
            assert gR < fu[144] - 1, (gR, fu[144])
            ws2.events.append((gR, 13, 9))
            g = gR + opt.get("kga", 4)
            ko = []
            for q in range(4): ko.append(Op(f"v_add_f32 v{D+q}, v{D+q}, v{D+4+q}", wlg=[("rr", 1)] if q == 0 else None))
            for q in range(4): ko.append(Op(f"v_add_f32 v{D+8+q}, v{D+8+q}, v{D+12+q}", wlg=[("rr", 3)] if q == 0 else None))
            for q in range(4): ko.append(Op(f"v_add_f32 v{D+q}, v{D+q}, v{D+8+q}"))
            KVH = opt.get("kvh", 1)
            if KVH:
                ko.insert(0, Op(f"v_lshrrev_b32 v254, 1, {vL16}"))
                ko += [Op(f"v_cvt_pk_bf16_f32 v{D}, v{D}, v{D+1}"), Op(f"v_cvt_pk_bf16_f32 v{D+1}, v{D+2}, v{D+3}")]
                ko.append(Op(f"buffer_store_dwordx2 v[{D}:{D+1}], v254, {S_WS}, {sST2} offen sc1", vm="kvst"))
            else:
                ko.append(Op(f"buffer_store_dwordx4 v[{D}:{D+3}], {vL16}, {S_WS}, {sST2} offen sc1", vm="kvst"))
            gS = seg.stream(ko, g, cap=4)
            ws2.events.append((g + 4, 14, 9))
            ring.filled = 9
            ev = list(ws2.events)
            ws2.reads(list(range(144, 160)), fu, lu, ming=gR + 1)
            assert ws2.events == ev
            pj = pt_jobs((pt_o() if PTK & 1 else []) + (pt_x(PS()) if PTK & 2 else []) + (pt_act(0) if PTK & 4 else []), opt.get("ptg", 79), 119) if PTM != 3 else []
            ws2.vmem(pj, lambda r: 0, margin=MARG, qd=opt.get("qs2", 4), rate=opt.get("rs2", 35) / 10.0, cap=KCAP + 2, burst0=False)
            CS4 = 140
            seg.stream([Op(f"ds_read_b128 v[{CS4+4*t}:{CS4+4*t+3}], {vG16} offset:{L_CS1 + (5+t)*64}", lg="cs4") for t in range(3)], gS + 1)
            RLI = 152
            seg.stream([f"v_mul_f32 v{RLI+t}, {hex(LOG2E)}, v{SB+8+2*t+1}" for t in range(2)], gS + 4)
            sys.stderr.write(f"S2: gR {gR} gS {gS} ev {ws2.events}\n")
            if opt.get('ls2'):
                for g in range(1, 108, 7): lstamp(seg, g)
            seg.emit(em)
            stamp()
            KL = WW
            NL = 8 if KVH else 16
            KA = WW + 32
            vKV = "v255" if KVH else vL16
            K1SC = "" if opt.get("kvp", 1) else " sc1"
            if KVH:
                em.e(f"v_and_b32 v254, 0x200, {vL16}"); em.e("v_lshlrev_b32 v254, 3, v254"); em.e(f"v_and_b32 v255, 0x1f0, {vL16}"); em.e("v_add_u32 v255, v255, v254")
                em.e(f"s_mov_b32 {sP0}, 0x3f80"); em.e(f"s_mov_b32 {sP1}, 0x3f800000")
            def kl_loads(tag):
                for Gp in range(NL):
                    em.e(f"s_add_u32 {sST2}, {sST}, {Gp*4096*(16//NL)}")
                    em.e(f"buffer_load_dwordx4 v[{KL+4*Gp}:{KL+4*Gp+3}], {vKV}, {S_WS}, {sST2} offen sc1", vm=(tag, Gp) if tag else None)
            streams = []
            for t in range(3):
                for tok in range(2):
                    for r in range(4):
                        a = P2 + 8 * t + 4 * tok + r
                        tt = TT + (len(streams) % 8)
                        streams.append([x[0] if isinstance(x, tuple) else x for x in phi_ops(a, CS4 + 4 * t + r, SB + 8 + 2 * tok, SB + 8 + 2 * tok + 1, RLI + tok, tt, None)])
            qops = []
            for k in range(0, len(streams), 4): qops += il(streams[k:k + 4])
            F = 156
            for tok in range(2):
                qa = P2 + 4 * tok; qb = P2 + 8 + 4 * tok; qx = P2 + 16 + 4 * tok
                fa = F + 8 * tok; fb = fa + 4
                qops += [f"v_cvt_pk_bf16_f32 v{fa}, v{qa}, v{qa+1}", f"v_cvt_pk_bf16_f32 v{fa+1}, v{qa+2}, v{qa+3}",
                         f"v_cvt_pk_bf16_f32 v{fa+2}, v{qx}, v{qx+1}", f"v_cvt_pk_bf16_f32 v{fa+3}, v{qx+2}, v{qx+3}",
                         f"v_cvt_pk_bf16_f32 v{fb}, v{qb}, v{qb+1}", f"v_cvt_pk_bf16_f32 v{fb+1}, v{qb+2}, v{qb+3}",
                         f"v_mov_b32 v{fb+2}, v{fa+2}", f"v_mov_b32 v{fb+3}, v{fa+3}"]
            KLS = opt.get("kls", 6)
            first = True
            for k, o in enumerate(qops):
                if k % KLS == 0 and k // KLS < NL:
                    Gp = k // KLS
                    em.e(f"s_add_u32 {sST2}, {sST}, {Gp*4096*(16//NL)}")
                    em.e(f"buffer_load_dwordx4 v[{KL+4*Gp}:{KL+4*Gp+3}], {vKV}, {S_WS}, {sST2} offen{K1SC}", vm=("kl", Gp))
                elif k % KLS == 0: ring.emit(em, 1)
                if first: em.wait(wlg=["cs4"]); first = False
                em.op(o)
            stamp()
            uid[0] += 1; u = uid[0]
            em.e(f"s_mov_b32 {sSPIN}, 0")
            if KVH:
                em.wait(wvm=[("kl", 0)])
                em.label(f"Lkv{u}_s")
                for q in range(8): em.e(f"v_mov_b32 v{KA+q}, 0")
                for Gp in range(8):
                    for q in range(4):
                        em.e(f"v_dot2c_f32_bf16 v{KA+2*q}, {sP0}, v{KL+4*Gp+q}", wvm=[("kl", Gp)] if q == 0 else None)
                        em.e(f"v_dot2c_f32_bf16 v{KA+2*q+1}, {sP1}, v{KL+4*Gp+q}")
                em.e(f"v_cmp_u_f32 vcc, v{KA}, v{KA+2}"); em.e(f"v_cmp_u_f32 s[34:35], v{KA+4}, v{KA+6}")
            else:
                for Gp in range(1, 16):
                    if Gp == 1:
                        em.wait(wvm=[("kl", 1)])
                        em.label(f"Lkv{u}_s")
                    for q in range(4):
                        em.e(f"v_add_f32 v{KL+q}, v{KL+q}, v{KL+4*Gp+q}", wvm=[("kl", Gp)] if q == 0 else None)
                em.e(f"v_cmp_u_f32 vcc, v{KL}, v{KL+1}"); em.e(f"v_cmp_u_f32 s[34:35], v{KL+2}, v{KL+3}")
            em.e(f"s_or_b64 vcc, vcc, s[34:35]")
            em.e(f"s_cbranch_vccz Lkv{u}_o")
            em.e(f"s_add_u32 {sSPIN}, {sSPIN}, 1"); em.e(f"s_cmp_gt_u32 {sSPIN}, 20000"); em.e(f"s_cbranch_scc1 Lkv{u}_o")
            kl_loads(None)
            em.raw("    s_waitcnt vmcnt(0)")
            em.e(f"s_branch Lkv{u}_s")
            em.label(f"Lkv{u}_o")
        if opt.get('k1n', 1) and KVH:
            for q in range(4): em.e(f"v_permlane32_swap_b32 v{KA+q}, v{KA+4+q}")
            for q in range(4): em.e(f"v_add_f32 v{KA+q}, v{KA+q}, v{KA+4+q}")
            em.e(f"v_cvt_pk_bf16_f32 v{KL}, v{KA}, v{KA+1}"); em.e(f"v_cvt_pk_bf16_f32 v{KL+1}, v{KA+2}, v{KA+3}")
            em.e(f"v_and_b32 v254, 0x1f0, {vL16}"); em.e(f"v_lshrrev_b32 v255, 6, {vL16}"); em.e("v_and_b32 v255, 8, v255"); em.e("v_add_u32 v254, v254, v255")
            em.e(f"s_lshl_b32 {sT0}, {sW}, 9"); em.e(f"s_add_u32 {sT0}, {sT0}, 0x20000"); em.e(f"v_add_u32 v254, {sT0}, v254")
        else:
            em.e(f"v_cvt_pk_bf16_f32 v{KL}, v{KL}, v{KL+1}"); em.e(f"v_cvt_pk_bf16_f32 v{KL+1}, v{KL+2}, v{KL+3}")
            em.e(f"s_lshl_b32 {sT0}, {sW}, 9"); em.e(f"v_add_u32 v254, {sT0}, {vL8}")
        em.e(f"ds_write_b64 v254, v[{KL}:{KL+1}] offset:{L_KVB}", lg="kw")
        em.wait_all_lg()
        em.e("s_barrier")
        if opt.get('k1n', 1):
            ring.allowed = max(ring.allowed, 18)
            ring.emit(em, upto=18)
            pf_now("K3", 32768, "pb1"); pf_now("K3", 32768 + 65536, "pb2")
        R_ = 176
        for t in range(4):
            em.e(f"ds_read_b64 v[{R_+2*t}:{R_+2*t+1}], {vL8} offset:{L_KVB + t*512}", lg="kr")
        em.e(f"v_xor_b32 v254, 256, {vL8}")
        em.e(f"ds_read_b64 v[{R_+8}:{R_+9}], v254 offset:{L_KVB + 3*512}", lg="kr")
        em.e(f"v_and_b32 v254, 0xfffffe7f ^ 0, {vL8}" if False else f"v_lshlrev_b32 v254, 3, {vG16}")
        em.e(f"v_and_b32 v254, 0x3ff, v254")
        em.e(f"v_add_u32 v254, 0x20000, v254")
        em.e(f"ds_read_b64 v[{R_+10}:{R_+11}], v254 offset:{L_KVB + 2*512}", lg="kr")
        em.e(f"ds_read_b64 v[{R_+12}:{R_+13}], v254 offset:{L_KVB + 2*512 + 32}", lg="kr")
        em.e("v_mov_b32 v255, 0x20000")
        em.e(f"ds_read_b64 v[{R_+14}:{R_+15}], v255 offset:{L_KVB + 3*512 + 32*8}", lg="kr")
        em.e(f"ds_read_b64 v[{R_+16}:{R_+17}], v255 offset:{L_KVB + 3*512 + 52*8}", lg="kr")
        em.wait_all_lg()
        t1, t2, t3, t4, t4x, za, zb, zxa, zxb = [R_ + 2 * k for k in range(9)]
        AF = 196
        Aa, Ab, Axa, Axb, Aza, Azb = [AF + 4 * k for k in range(6)]
        mg0, mg1, ma, mb, mga, mgb = sMK
        def cp(dst, src):
            em.e(f"v_mov_b32 v{dst}, v{src}"); em.e(f"v_mov_b32 v{dst+1}, v{src+1}")
        def mk(dst, src, m):
            em.e(f"v_cndmask_b32 v{dst}, 0, v{src}, {m}"); em.e(f"v_cndmask_b32 v{dst+1}, 0, v{src+1}, {m}")
        cp(Aa, t1); mk(Aa + 2, t4, mg0)
        cp(Ab, t2); mk(Ab + 2, t4, mg1)
        mk(Axa, t3, ma); mk(Axa + 2, t4x, mga)
        mk(Axb, t3, mb); mk(Axb + 2, t4x, mgb)
        cp(Aza, za); mk(Aza + 2, zxa, mg0)
        cp(Azb, zb); mk(Azb + 2, zxb, mg1)
        O = 100
        for tok in range(2):
            fa = F + 8 * tok; fb = fa + 4; o = O + 20 * tok
            em.e(f"v_mfma_f32_16x16x32_bf16 v[{o+12}:{o+15}], v[{Aza}:{Aza+3}], v[{fa}:{fa+3}], 0")
            em.e(f"v_mfma_f32_16x16x32_bf16 v[{o+16}:{o+19}], v[{Azb}:{Azb+3}], v[{fb}:{fb+3}], 0")
            em.e(f"v_mfma_f32_16x16x32_bf16 v[{o}:{o+3}], v[{Aa}:{Aa+3}], v[{fa}:{fa+3}], 0")
            em.e(f"v_mfma_f32_16x16x32_bf16 v[{o+4}:{o+7}], v[{Ab}:{Ab+3}], v[{fb}:{fb+3}], 0")
            em.e(f"v_mfma_f32_16x16x32_bf16 v[{o+8}:{o+11}], v[{Axa}:{Axa+3}], v[{fa}:{fa+3}], 0")
            em.e(f"v_mfma_f32_16x16x32_bf16 v[{o+8}:{o+11}], v[{Axb}:{Axb+3}], v[{fb}:{fb+3}], v[{o+8}:{o+11}]")
        em.e(f"s_mul_i32 {sST}, {LB()}, {O_SZ}"); em.e(f"s_mul_i32 {sST2}, {sTT2}, 20480"); em.e(f"s_add_u32 {sST}, {sST}, {sST2}")
        em.e(f"s_add_u32 {sST}, {sST}, {OB}")
        em.e(f"s_lshl_b32 {sST2}, {sM}, 10"); em.e(f"s_add_u32 {sST2}, {sST2}, {sST}")
        for tok in range(2):
            o = O + 20 * tok
            em.e(f"v_add_f32 v{o+12}, {hex(EPS6)}, v{o+12}"); em.e(f"v_add_f32 v{o+16}, {hex(EPS6)}, v{o+16}")
            em.e(f"v_rcp_f32 v{o+12}, v{o+12}"); em.e(f"v_rcp_f32 v{o+16}, v{o+16}")
            em.e(f"v_cndmask_b32 v{o+13}, v{o+12}, v{o+16}, {sG3}")
            for r in range(4):
                em.e(f"v_mul_f32 v{o+r}, v{o+r}, v{o+12}"); em.e(f"v_mul_f32 v{o+4+r}, v{o+4+r}, v{o+16}")
                em.e(f"v_mul_f32 v{o+8+r}, v{o+8+r}, v{o+13}")
            em.e(f"v_cvt_pk_bf16_f32 v{o}, v{o}, v{o+1}"); em.e(f"v_cvt_pk_bf16_f32 v{o+1}, v{o+2}, v{o+3}")
            em.e(f"v_cvt_pk_bf16_f32 v{o+2}, v{o+4}, v{o+5}"); em.e(f"v_cvt_pk_bf16_f32 v{o+3}, v{o+6}, v{o+7}")
            em.e(f"v_cvt_pk_bf16_f32 v{o+8}, v{o+8}, v{o+9}"); em.e(f"v_cvt_pk_bf16_f32 v{o+9}, v{o+10}, v{o+11}")
            va = vL16 if tok == 0 else vL16B
            em.e(f"buffer_store_dwordx4 v[{o}:{o+3}], {va}, {S_WS}, {sST2} offen{cur['STO']}", vm="ost")
            if tok == 1: em.e(f"s_add_u32 {sST}, {sST}, 20480")
            em.e(f"s_mov_b64 exec, {sG23}")
            em.e(f"buffer_store_dwordx2 v[{o+8}:{o+9}], {vOREM}, {S_WS}, {sST} offen{cur['STO']}", vm="ost")
            em.e("s_mov_b64 exec, -1")

    def K24(ph, nblk, final_possible):
        AX = lambda b, t: 4 * b
        if ph == "K2":
            em.e(f"s_mul_i32 {sA}, {LB()}, {O_SZ}"); em.e(f"s_mul_i32 {sT0}, {sTT1}, 20480"); em.e(f"s_add_u32 {sA}, {sA}, {sT0}"); em.e(f"s_add_u32 {sA}, {sA}, {OB}")
        else:
            em.e(f"s_mul_i32 {sA}, {LB()}, {ACT_SZ}"); em.e(f"s_mul_i32 {sT0}, {sTT1}, {54*1024}"); em.e(f"s_add_u32 {sA}, {sA}, {sT0}"); em.e(f"s_add_u32 {sA}, {sA}, {ACT}")
        seg = Seg(); ws = WStream(ring, seg, ph, SS=SS, LA=opt.get("la4", 10))
        fu = {}; lu = {}; wa = {}
        for b in range(nblk):
            for t in range(5):
                f = b * 5 + t; wr = ws.wreg(f); d = RES + 4 * t
                wv = [("a", b, 0)] if t == 0 else None
                i = seg.mfma(f"v_mfma_f32_16x16x32_bf16 v[{d}:{d+3}], v[{wr}:{wr+3}], a[{4*b}:{4*b+3}], v[{d}:{d+3}]", wvm=wv, wlg=[("w", ph, b * 5 + 4)] if t == 0 else None)
                fu[f] = i; lu[f] = i; wa[f] = 5 * b
        al = a_loads(1, nblk, ph, "a", AX)
        if ph == "K2" and DBG.get("stg", 0):
            for o in (f"v_add_u32 {vSTG0}, {sW4K}, {vL16}", f"v_add_u32 {vSTG1}, {sW4K}, {vR1}", f"v_add_u32 {vSTG2}, {sW4K}, {vR2}"): seg.put(0, o, 1)
        if ph == "K2":
            ws.reads(list(range(nblk * 5)), fu, lu, nobar=(12, 16), force=(14,), wait_at=wa)
            ws.vmem(a_jobs(al, lambda b: 5 * b - 30), lambda r: opt.get("k2w", 0), margin=MARG, qd=QD, rate=opt.get("r2", 35) / 10.0)
        else:
            ws.reads(list(range(nblk * 5)), fu, lu, wait_at=wa)
            ws.vmem(a_jobs(al, lambda b: 5 * b - 30), lambda r: 0 if r < 52 else opt.get("k4w", 0), margin=MARG, qd=QD, rate=opt.get("r4", 28) / 10.0)
        g = 0
        if ph == "K4":
            if PTK & 16 and PTM != 3: pt_place(seg, pt_x(S_WSN), opt.get("k4pt", 170))
            pf_place(seg, "K1", 0, "pf1", True); pf_place(seg, "K1", 65536, "pf2", True); pf_place(seg, "K1", 131072, "pf3", True)
        else:
            pf_place(seg, "K3", 32768 + 2*65536, "pg3"); pf_place(seg, "K3", 32768 + 3*65536, "pg4")
        if not opt.get('ls2'):
            for g in range(1, nblk * 5 - 13, 30): lstamp(seg, g)
        seg.emit(em)
        stamp()
        P = TMP
        for t in range(5):
            em.e(f"v_cvt_pk_bf16_f32 v{P+2*t}, v{RES+4*t}, v{RES+4*t+1}"); em.e(f"v_cvt_pk_bf16_f32 v{P+2*t+1}, v{RES+4*t+2}, v{RES+4*t+3}")
        uid[0] += 1; u = uid[0]
        if final_possible:
            em.e(f"s_cmp_eq_u32 {sLAYER}, 1"); em.e(f"s_cbranch_scc1 Lfin{u}")
        em.e(f"s_mov_b32 {sXI}, 1" if reuse() else f"s_add_u32 {sXI}, {sXI}, 1")
        em.e(f"s_mul_i32 {sST}, {sXI}, {X_SZ}"); em.e(f"s_mul_i32 {sT0}, {sTT1}, 20480"); em.e(f"s_add_u32 {sST}, {sST}, {sT0}"); em.e(f"s_add_u32 {sST}, {sST}, {XB}")
        em.e(f"s_lshr_b32 {sT0}, {sC8}, 1"); em.e(f"s_mul_i32 {sT0}, {sT0}, 5")
        em.e(f"s_lshl_b32 {sT1}, {sODD}, 1"); em.e(f"s_add_u32 {sT1}, {sT1}, {sT0}"); em.e(f"s_lshl_b32 {sT1}, {sT1}, 10"); em.e(f"s_add_u32 {sT1}, {sT1}, {sST}")
        em.e(f"buffer_store_dwordx4 v[{P}:{P+3}], {vL16}, {S_WS}, {sT1} offen{cur['STO']}", vm="xst")
        em.e(f"buffer_store_dwordx4 v[{P+4}:{P+7}], {vL16}, {S_WS}, {sT1} offen offset:1024{cur['STO']}", vm="xst")
        em.e(f"s_add_u32 {sT0}, {sT0}, 4"); em.e(f"s_lshl_b32 {sT0}, {sT0}, 10"); em.e(f"s_add_u32 {sT0}, {sT0}, {sST}")
        em.e(f"s_lshl_b32 {sT1}, {sODD}, 3"); em.e(f"s_add_u32 {sT0}, {sT0}, {sT1}")
        em.e(f"buffer_store_dwordx2 v[{P+8}:{P+9}], {vL16}, {S_WS}, {sT0} offen{cur['STO']}", vm="xst")
        a, b_, x, y = 224, 225, 226, 227
        em.e(f"v_add_f32 v{a}, v{RES}, v{RES+1}"); em.e(f"v_mul_f32 v{b_}, v{RES}, v{RES}"); em.e(f"v_fmac_f32 v{b_}, v{RES+1}, v{RES+1}")
        em.e(f"v_add_f32 v{x}, v{RES+2}, v{RES+3}"); em.e(f"v_mul_f32 v{y}, v{RES+2}, v{RES+2}"); em.e(f"v_fmac_f32 v{y}, v{RES+3}, v{RES+3}")
        for k in range(4, 20, 2):
            em.e(f"v_add_f32 v{a}, v{a}, v{RES+k}"); em.e(f"v_fmac_f32 v{b_}, v{RES+k}, v{RES+k}")
            em.e(f"v_add_f32 v{x}, v{x}, v{RES+k+1}"); em.e(f"v_fmac_f32 v{y}, v{RES+k+1}, v{RES+k+1}")
        em.e(f"v_add_f32 v{a}, v{a}, v{x}"); em.e(f"v_add_f32 v{b_}, v{b_}, v{y}")
        for sw in ("v_permlane32_swap_b32", "v_permlane16_swap_b32"):
            em.e(f"v_mov_b32 v{x}, v{a}"); em.e(f"v_mov_b32 v{y}, v{b_}")
            em.e(f"{sw} v{a}, v{x}"); em.e(f"{sw} v{b_}, v{y}")
            em.e(f"v_add_f32 v{a}, v{a}, v{x}"); em.e(f"v_add_f32 v{b_}, v{b_}, v{y}")
        em.e(f"s_mul_i32 {sST}, {sXI}, {ST_SZ}"); em.e(f"s_lshl_b32 {sT0}, {sTT1}, 10"); em.e(f"s_add_u32 {sST}, {sST}, {sT0}")
        em.e(f"s_lshl_b32 {sT0}, {sC8}, 7"); em.e(f"s_add_u32 {sST}, {sST}, {sT0}"); em.e(f"s_add_u32 {sST}, {sST}, {ST}")
        em.e(f"s_mov_b64 exec, {sMK[0]}")
        em.e(f"buffer_store_dwordx2 v[{a}:{a+1}], {vSTO}, {S_WS}, {sST} offen{cur['STO']}", vm="xst")
        em.e("s_mov_b64 exec, -1")
        if final_possible:
            em.e(f"s_branch Lfin{u}_x")
            em.label(f"Lfin{u}")
            em.e(f"s_mul_i32 {sST}, {sTT1}, {16*1280}"); em.e(f"s_mul_i32 {sT0}, {sC8}, 160"); em.e(f"s_add_u32 {sST}, {sST}, {sT0}")
            for t in range(5):
                em.e(f"buffer_store_dwordx2 v[{P+2*t}:{P+2*t+1}], {vOUT}, {S_OUT}, {sST} offen offset:{t*32}")
            em.raw("    s_waitcnt vmcnt(0)")
            stamp(); nstamp[0] -= 1
            dump_stamps()
            em.e("s_endpgm")
            em.label(f"Lfin{u}_x")

    def K3():
        AX = lambda b, s_: 8 * b + 4 * s_
        SB = TMP
        NM, C1, KK, VST = 220, 221, 222, 223
        set_sA_x()
        seg = Seg(cap=opt.get("k3cap", 6)); ws = WStream(ring, seg, "K3", SS=SS, LA=opt.get("la3", 5))
        fu = {}; lu = {}
        pend = []
        for f in range(280): ws.wreg(f)
        def acc(t): return ACC + 16 * t
        B1 = opt.get("k3b", 12)
        groups = [(b, p) for b in range(B1) for p in range(3)] + [(b, p) for p in range(3) for b in range(B1, 20)] + [(b, 3) for b in range(20)]
        afirst = {}
        seen_a = set()
        pend = [0, 0, 0, 0]
        for (b, p) in groups:
            ts = (2 * p, 2 * p + 1) if p < 3 else (6,)
            first = True
            for s_ in range(2):
                for t in ts:
                    f = pw3_index(b, t, s_, B1); wr = ws.wreg(f)
                    d = acc(t)
                    c = "0" if (b == 0 and s_ == 0) else f"v[{d}:{d+15}]"
                    wl = [("w", "K3", pw3_index(b, ts[-1], 1, B1))] if first else None
                    wv = [("a", b, 1)] if (b not in seen_a and first) else None
                    i = seg.mfma(f"v_mfma_f32_32x32x16_bf16 v[{d}:{d+15}], v[{wr}:{wr+3}], a[{AX(b,s_)}:{AX(b,s_)+3}], {c}", wvm=wv, wlg=wl)
                    if first: g0 = i
                    if b not in seen_a: seen_a.add(b); afirst[b] = i
                    first = False
                    fu.setdefault(f, g0); lu[f] = i
            pend[p] = seg.n()
        al = a_loads(2, 20, "K3", "a", AX, m32=True)
        ws.reads(list(range(280)), fu, lu)
        ws.vmem(a_jobs(al, lambda b: afirst[b] - opt.get("a3l", 12)), lambda r: opt.get("k3w", 0), margin=opt.get("m3", 70), qd=opt.get("q3", QD // 2), rate=opt.get("r3", 38) / 20.0)
        so = [f"v_and_b32 v{VST}, 0xf0, {vL16}", f"v_lshrrev_b32 v{VST}, 1, v{VST}", f"v_and_b32 v{NM}, 0x200, {vL16}", f"v_add_u32 v{VST}, v{VST}, v{NM}",
              f"v_and_b32 v{NM}, 0x100, {vL16}", f"v_lshlrev_b32 v{NM}, 2, v{NM}", f"v_add_u32 v{VST}, v{VST}, v{NM}",
              f"s_mul_i32 {sST}, {sXI}, {ST_SZ}", f"s_lshl_b32 {sST2}, {sTT2}, 10", f"s_add_u32 {sST}, {sST}, {sST2}", f"s_add_u32 {sST}, {sST}, {ST}"]
        for q in range(4):
            so.append(Op(f"buffer_load_dwordx2 v[{SB+2*q}:{SB+2*q+1}], v{VST}, {S_WS}, {sST} offen offset:{q*128}{cur['LD']}", vm=("st", q)))
        g = seg.stream(so, 2)
        a, b_, x, y = SB, SB + 1, SB + 2, SB + 3
        so = [Op(f"v_add_f32 v{a}, v{a}, v{SB+2}", wvm=[("st", 3)]), f"v_add_f32 v{b_}, v{b_}, v{SB+3}",
              f"v_add_f32 v{SB+4}, v{SB+4}, v{SB+6}", f"v_add_f32 v{SB+5}, v{SB+5}, v{SB+7}",
              f"v_add_f32 v{a}, v{a}, v{SB+4}", f"v_add_f32 v{b_}, v{b_}, v{SB+5}",
              f"v_mov_b32 v{x}, v{a}", f"v_mov_b32 v{y}, v{b_}",
              f"v_permlane32_swap_b32 v{a}, v{x}", f"v_permlane32_swap_b32 v{b_}, v{y}",
              f"v_add_f32 v{a}, v{a}, v{x}", f"v_add_f32 v{b_}, v{b_}, v{y}",
              f"v_mul_f32 v{NM}, {hex(INV640 | 0x80000000)}, v{a}", f"v_mul_f32 v{KK}, {hex(INV640)}, v{b_}",
              f"v_fma_f32 v{KK}, -v{NM}, v{NM}, v{KK}", f"v_max_f32 v{KK}, 0, v{KK}", f"v_add_f32 v{KK}, {hex(EPS5)}, v{KK}",
              (Op(f"v_rsq_f32 v{C1}, v{KK}"), 2), f"v_mul_f32 v{C1}, {hex(LOG2E | 0x80000000)}, v{C1}"]
        g = seg.stream(so, max(g, 30))
        so = [f"s_mul_i32 {sST}, {LB()}, {ACT_SZ}", f"s_mul_i32 {sST2}, {sTT2}, {54*1024}", f"s_add_u32 {sST}, {sST}, {sST2}",
              f"s_add_u32 {sST}, {sST}, {ACT}", f"s_lshl_b32 {sST2}, {sM}, 10", f"s_add_u32 {sST2}, {sST2}, {sST}"]
        g = seg.stream(so, max(g, 50))
        CSR = 226
        ET = 242
        def epi(t):
            ops = []
            for mat in range(2):
                for hh in range(2):
                    r = CSR + 8 * mat + 4 * hh
                    ops.append(Op(f"ds_read_b128 v[{r}:{r+3}], {vH16} offset:{L_CS3 + (2*t+mat)*64 + 32*hh}", lg=("c3", t)))
            d = acc(t)
            first = True
            for e in range(8):
                ops.append(Op(f"v_fmac_f32 v{d+e}, v{NM}, v{CSR+e}", wlg=[("c3", t)] if first else None)); first = False
                ops.append(f"v_fmac_f32 v{d+8+e}, v{NM}, v{CSR+8+e}")
            for k in range(0, 8, 4):
                streams = []
                for e in range(k, k + 4):
                    g_ = d + e; u_ = d + 8 + e; e_ = ET + e
                    streams.append([f"v_mul_f32 v{e_}, v{g_}, v{C1}",
                                    (Op(f"v_exp_f32 v{e_}, v{e_}"), 2),
                                    f"v_mul_f32 v{g_}, v{g_}, v{u_}",
                                    f"v_fma_f32 v{e_}, v{e_}, v{KK}, v{KK}",
                                    (Op(f"v_rcp_f32 v{e_}, v{e_}"), 2),
                                    f"v_mul_f32 v{g_}, v{g_}, v{e_}"])
                ops += il(streams)
            PK = d + 8
            for q in range(4): ops.append(f"v_cvt_pk_bf16_f32 v{PK+q}, v{d+2*q}, v{d+2*q+1}")
            if t < 6:
                ops.append(Op(f"s_add_u32 {sT0}, {sST2}, {(t >> 1) * 16384 + (t & 1) * 512}"))
                ops.append(Op(f"buffer_store_dwordx4 v[{PK}:{PK+3}], {vA3}, {S_WS}, {sT0} offen{cur['STO']}", vm="ast"))
            else:
                ops.append(Op(f"buffer_store_dwordx2 v[{PK}:{PK+1}], {vACT6}, {S_WS}, {sST} offen{cur['STO']}", vm="ast"))
                ops.append(Op(f"s_mov_b64 exec, {sMK32}"))
                ops.append(Op(f"buffer_store_dwordx2 v[{PK+2}:{PK+3}], {vA3}, {S_WS}, {sP2} offen{cur['STO']}", vm="ast"))
                ops.append(Op("s_mov_b64 exec, -1"))
            return ops
        if PTK & 8 and PTM != 3:
            for p in range(1, 4): pt_place(seg, pt_act(p), max(20, pend[p - 1] - opt.get("pt3", 25)))
        ge = 0
        for p in range(3):
            for t in (2 * p, 2 * p + 1):
                ge = seg.stream(epi(t), max(pend[p] + 3, ge))
        so = [f"s_mul_i32 {sP0}, {sM}, 3", f"s_add_u32 {sP0}, {sP0}, 2", f"s_lshr_b32 {sP1}, {sP0}, 3", f"s_add_u32 {sP1}, {sP1}, 48", f"s_lshl_b32 {sP1}, {sP1}, 10",
              f"s_add_u32 {sP2}, {sST}, {sP1}", f"s_and_b32 {sP1}, {sP0}, 3", f"s_lshl_b32 {sP1}, {sP1}, 8", f"s_add_u32 {sP2}, {sP2}, {sP1}",
              f"s_bfe_u32 {sP1}, {sP0}, 0x10002", f"s_lshl_b32 {sP1}, {sP1}, 3", f"s_add_u32 {sP2}, {sP2}, {sP1}"]
        seg.stream(so, 225)
        if not opt.get('ls2'):
            for g in range(1, 268, 20): lstamp(seg, g)
        sys.stderr.write(f"K3: epilogue stream ends at gap {ge}; cost hist {[sum(1 for c in seg.cost if c == k) for k in range(12)]}\n")
        seg.emit(em)
        stamp()
        lin(epi(6))

    def finish_if(p):
        if stop <= 8 and (stop - 1) % 4 + 1 == p:
            lay = (stop - 1) // 4
            em.e(f"s_cmp_lg_u32 {sLAYER}, {lay}"); em.e(f"s_cbranch_scc1 Lstop{p}{cur['sfx']}")
            em.raw("    s_waitcnt vmcnt(0) lgkmcnt(0)")
            dump_stamps()
            em.e("s_endpgm")
            em.label(f"Lstop{p}{cur['sfx']}")
    prologue_end()
    em.vm = [t for t in em.vm if isinstance(t, tuple) and t[0] == "dma"]
    head_vm = list(em.vm)
    cnt0 = WStream.cnt
    if MONO and stamps and not opt.get("lst", 0):
        em.e("v_writelane_b32 v0, s96, 62"); em.e("v_writelane_b32 v0, s97, 63")
    if MONO:
        em.e(f"s_cmp_lg_u32 {sMODE}, 0"); em.e("s_cbranch_scc1 Lm_layerS")
    for sfx, sto in (("F", ""), ("S", " sc1")):
        cur["sfx"] = sfx; cur["STO"] = sto; cur["LD"] = sto if not opt.get("ldsc1", 1) else " sc1"
        nstamp[0] = 0; lsn[0] = 0
        WStream.cnt = cnt0
        em.label(f"Lm_layer{sfx}")
        em.vm = list(head_vm); em.lg = []
        ring.filled = -1; ring.issued = HEAD; ring.allowed = 8; ring.q = []
        em.e(f"s_cmp_eq_u32 {sLAYER}, 1"); em.e(f"s_cselect_b32 s14, 0, {WS_END}")
        stamp()
        K1(); stamp(); finish_if(1)
        transition(1, 1, 9, ["ost"], 16, 0, 0); stamp()
        K24("K2", 20, False); stamp(); finish_if(2)
        transition(2, 2, 16, ["xst"], 18, opt.get("d21", 40), opt.get("d22", 0)); stamp()
        K3(); stamp(); finish_if(3)
        transition(4, 4, 34, ["ast"], 36, opt.get("d31", 40), opt.get("d32", 0)); stamp()
        K24("K4", 54, True); stamp(); finish_if(4)
        transition(5, 5, 53, ["xst"], 53, opt.get("d41", 40), 100, upto2=54 + HEAD)
        stamp()
        assert ring.issued == 54 + HEAD and not ring.q, (ring.issued, ring.q)
        em.e(f"s_add_u32 {sLAYER}, {sLAYER}, 1"); em.e(f"s_add_u32 {sSTEP}, {sSTEP}, 5")
        em.e(f"s_branch Lm_layer{sfx}")
    em.label("Lm_done")
    em.e("s_endpgm")
    return em.lines


def build(opt):
    if opt.get("mono", 0):
        ml = gen_main(opt)
        ml, n2 = fix_hazards(ml)
        ref = open("interleave_layers__linear_attn_block__swiglu_ffn__prompt.s.ref").read() if opt.get("hdr", False) else ""
        hdr = [l for l in ref.split("\n") if l.startswith(";") and "@launch" not in l and "Override launch" not in l and "grid=ceil" not in l]
        out = hdr + [f"; @launch grid=(256,1,1) block=(256,1,1) lds={MAIN_LDS}",
               '.amdgcn_target "amdgcn-amd-amdhsa--gfx950"', ".text",
               f".globl {KNAME}", ".p2align 8", f".type {KNAME},@function"] + ml + [kdesc(KNAME, 512, 256, 102)]
        sys.stderr.write(f"nops inserted: main {n2}; main lines {len(ml)}\n")
        return "\n".join(out)
    pl = gen_prep("prep_kernel", stamp=opt.get("stamps", 0), k3b=opt.get("k3b", 12), wsoff=opt.get("wsoff", 0) << 20)
    if opt.get("pst"):
        sfx = {1: " sc1", 2: " nt", 3: " sc0 sc1", 4: " sc1 nt"}[opt["pst"]]
        pl = [l + sfx if "buffer_store" in l else l for l in pl]
    pl, n1 = fix_hazards(pl)
    ml = gen_main(opt)
    ml, n2 = fix_hazards(ml)
    ref = open("interleave_layers__linear_attn_block__swiglu_ffn__prompt.s.ref").read() if opt.get("hdr", False) else ""
    hdr = [l for l in ref.split("\n") if l.startswith(";") and "@launch" not in l and "Override launch" not in l and "grid=ceil" not in l]
    out = hdr + [f"; @launch kernel=prep_kernel grid=({PREP_WGS},1,1) block=(256,1,1) lds={PREP_LDS}",
           f"; @launch kernel={KNAME} grid=(256,1,1) block=(256,1,1) lds={MAIN_LDS}",
           '.amdgcn_target "amdgcn-amd-amdhsa--gfx950"', ".text",
           ".globl prep_kernel", ".p2align 8", ".type prep_kernel,@function"] + pl + \
          [f".globl {KNAME}", ".p2align 8", f".type {KNAME},@function"] + ml + \
          [kdesc("prep_kernel", 112, 112), kdesc(KNAME, 512, 256, 102)]
    sys.stderr.write(f"nops inserted: prep {n1} main {n2}; main lines {len(ml)}\n")
    return "\n".join(out)


if __name__ == "__main__":
    opt = {}
    for a in sys.argv[1:]:
        k, v = a.split("="); opt[k] = int(v)
    print(build(opt))
```

```python
from asmlib import *
from layout import *

def magic(d, maxv):
    for sh in range(1, 32):
        m = -(-(1 << sh) // d)
        if m * maxv >= (1 << 32): break
        if all((x * m) >> sh == x // d for x in range(maxv)): return m, sh
    raise Exception("no magic")
def sdiv(em, dst, src, d, maxv):
    m, sh = magic(d, maxv)
    em.e(f"s_mul_i32 {dst}, {src}, {m}")
    em.e(f"s_lshr_b32 {dst}, {dst}, {sh}")

PREP_WGS = 259
PREP_LDS = 65536
CS1_N = 20
CS3_N = 10
def gen_prep(name, stamp=False, mono=False, sfx=" sc1", sx=0, k3b=0, wsoff=0, zf=0, skipj=0):
    em = Em()
    J = "s47" if mono else "s2"
    if not mono: em.label(name)
    if stamp:
        em.e("s_memrealtime s[60:61]"); em.e("s_load_dwordx2 s[62:63], s[0:1], 64")
        em.raw("    s_waitcnt lgkmcnt(0)")
        em.e("s_cmp_lg_u32 s2, 0"); em.e("s_cbranch_scc1 Lp_ns")
        em.e("v_mov_b32 v110, s60"); em.e("v_mov_b32 v111, 0")
        em.e("global_store_dword v111, v110, s[62:63]")
        em.label("Lp_ns")
    if not mono:
        em.e(f"s_cmp_ge_u32 s2, {PREP_WGS}")
        em.e("s_cbranch_scc1 Lp_done")
    em.e("s_load_dwordx4 s[4:7], s[0:1], 0")
    em.e("s_load_dwordx2 s[8:9], s[0:1], 16")
    em.e("s_load_dwordx4 s[12:15], s[0:1], 32")
    em.e("s_load_dwordx2 s[10:11], s[0:1], 48")
    em.e("s_load_dwordx2 s[16:17], s[0:1], 72")
    em.e("v_lshrrev_b32 v2, 6, v0")
    em.e("v_and_b32 v1, 63, v0")
    em.e("v_readfirstlane_b32 s18, v2")
    em.e("v_lshlrev_b32 v3, 4, v1")
    em.e("v_lshrrev_b32 v4, 2, v1")
    em.e("v_and_b32 v5, 3, v1")
    for i in range(4): em.e(f"v_mov_b32 v{8+i}, 0x3f803f80")
    em.e("s_waitcnt lgkmcnt(0)")
    if sx == 2: em.e("s_memrealtime s[80:81]")
    if wsoff: em.e(f"s_add_u32 s16, s16, {wsoff}"); em.e("s_addc_u32 s17, s17, 0")
    em.e("s_mov_b32 s20, s16"); em.e("s_mov_b32 s21, s17"); em.e(f"s_mov_b32 s22, {WS_END}"); em.e("s_mov_b32 s23, 0x20000")
    def poison_zero(em, sfx):
        for i in range(4): em.e(f"v_mov_b32 v{16+i}, -1")
        em.e("v_lshlrev_b32 v20, 4, v0")
        em.e("s_lshl_b32 s30, s2, 13"); em.e(f"s_add_u32 s30, s30, {KVP}")
        em.e(f"buffer_store_dwordx4 v[16:19], v20, s[20:23], s30 offen{sfx}")
        em.e("s_add_u32 s30, s30, 4096")
        em.e(f"buffer_store_dwordx4 v[16:19], v20, s[20:23], s30 offen{sfx}")
    if not mono:
        em.e("s_cmp_ge_u32 s2, 256"); em.e("s_cbranch_scc1 Lp_nopois")
        poison_zero(em, "")
        if zf:
            zs = {1: "", 2: " sc1", 3: " nt", 4: " sc1 nt"}[zf & 7]
            regs = [(OB, 10240), (XB + X_SZ, 10240)] + ([(ACT, 27648)] if zf & 8 else [])
            em.e("v_mov_b32 v16, 0"); em.e("v_mov_b32 v17, 0"); em.e("v_mov_b32 v18, 0"); em.e("v_mov_b32 v19, 0")
            for (base, per) in regs:
                em.e(f"s_mul_i32 s30, s2, {per}"); em.e(f"s_add_u32 s30, s30, {base}")
                k = 0
                while k < per:
                    n = min(4096, per - k)
                    if n < 4096:
                        em.e(f"v_cmp_gt_u32 vcc, {n}, v20"); em.e("s_and_saveexec_b64 s[40:41], vcc")
                    em.e(f"buffer_store_dwordx4 v[16:19], v20, s[20:23], s30 offen{zs}")
                    if n < 4096: em.e("s_mov_b64 exec, s[40:41]")
                    k += n
                    if k < per: em.e("s_add_u32 s30, s30, 4096")
        em.label("Lp_nopois")
    if mono:
        em.e("s_mov_b32 s47, s2")
        em.e("s_cmp_lt_u32 s2, 40"); em.e("s_cbranch_scc1 Lp_disp")
        em.e("s_add_u32 s47, s2, 154"); em.e("s_cmp_lt_u32 s2, 104"); em.e("s_cbranch_scc1 Lp_disp")
        em.e("s_sub_u32 s47, s2, 64"); em.e("s_cmp_lt_u32 s2, 184"); em.e("s_cbranch_scc1 Lp_disp")
        em.e("s_sub_u32 s47, s2, 44"); em.e("s_cmp_lt_u32 s2, 238"); em.e("s_cbranch_scc1 Lp_disp")
        em.e("s_sub_u32 s47, s2, 118")
        em.label("Lp_disp")
    else:
        em.e("s_cmp_ge_u32 s2, 258"); em.e("s_cbranch_scc1 Lp_zero")
    if skipj & 1:
        em.e(f"s_cmp_lt_u32 {J}, 120"); em.e("s_cbranch_scc1 Lp_fin")
    if skipj & 2:
        em.e(f"s_cmp_ge_u32 {J}, 120"); em.e("s_cbranch_scc1 Lp_fin")
    em.e(f"s_cmp_ge_u32 {J}, 194"); em.e("s_cbranch_scc1 Lp_x")
    em.e(f"s_cmp_ge_u32 {J}, 140"); em.e("s_cbranch_scc1 Lp_wd")
    em.e(f"s_cmp_ge_u32 {J}, 120"); em.e("s_cbranch_scc1 Lp_wo")
    em.e(f"s_cmp_ge_u32 {J}, 40"); em.e("s_cbranch_scc1 Lp_wgu")

    def src_srd(lo, hi, size):
        em.e(f"s_mov_b32 s24, s{lo}"); em.e(f"s_mov_b32 s25, s{hi}"); em.e(f"s_mov_b32 s26, {size}"); em.e("s_mov_b32 s27, 0x20000")
    def set_exec(nl):
        em.e(f"s_mov_b64 exec, {hex((1 << nl) - 1)}" if nl <= 32 else f"s_mov_b32 exec_lo, -1")
        if nl > 32: em.e(f"s_mov_b32 exec_hi, {hex((1 << (nl - 32)) - 1)}")
    def dma(m0_s, m0_imm, so_s, so_imm):
        em.e(f"s_add_u32 m0, {m0_s}, {m0_imm}")
        em.e(f"s_add_u32 s29, {so_s}, {so_imm}")
        em.e("buffer_load_dwordx4 v3, s[24:27], s29 offen lds", vm="dma")
    def sync():
        if sx == 2: em.e("s_memrealtime s[78:79]")
        em.e("s_mov_b64 exec, -1")
        em.wait_all_vm()
        em.e("s_barrier")
        if sx: em.e("s_memrealtime s[96:97]")
    def xt_half(dst, u_s, half_s):
        em.e(f"s_mov_b32 {dst}, 0x47520"); em.e(f"s_cmp_eq_u32 {half_s}, 0"); em.e(f"s_cselect_b32 {dst}, {dst}, 0x98631")
        em.e(f"s_lshl_b32 s46, {u_s}, 2"); em.e(f"s_lshr_b32 {dst}, {dst}, s46"); em.e(f"s_and_b32 {dst}, {dst}, 15")
    def cs_store(acc, voff, so):
        em.e("s_mov_b64 exec, s[40:41]")
        em.e(f"buffer_store_dwordx4 v[{acc}:{acc+3}], {voff}, s[20:23], {so} offen", vm="st")
        em.e("s_mov_b64 exec, -1")
    def cs_prep():
        em.e("s_mov_b32 s40, 0x00010001"); em.e("s_mov_b32 s41, 0x00010001")
        em.e("v_and_b32 v7, 0x30, v1")

    P = 3840; PIT = 1952
    src_srd(6, 7, 640 * 1920 * 2)
    em.e(f"s_lshr_b32 s30, {J}, 1")
    em.e(f"s_and_b32 s31, {J}, 1")
    sdiv(em, "s32", "s30", 5, 20)
    em.e("s_mul_i32 s33, s32, 5"); em.e("s_sub_u32 s33, s30, s33")
    em.e("s_lshr_b32 s34, s18, 1")
    xt_half("s35", "s33", "s34")
    em.e("s_mul_i32 s36, s32, 10"); em.e("s_add_u32 s35, s35, s36"); em.e("s_lshl_b32 s35, s35, 4")
    em.e("s_and_b32 s36, s18, 1"); em.e("s_lshl_b32 s36, s36, 3"); em.e("s_add_u32 s35, s35, s36")
    em.e(f"s_mul_i32 s35, s35, {P}"); em.e("s_mul_i32 s36, s31, 640"); em.e("s_add_u32 s35, s35, s36")
    em.e(f"s_mul_i32 s37, s18, {8*PIT}")
    set_exec(40)
    for i in range(8):
        for sg_ in range(3):
            dma("s37", i * PIT + sg_ * 640, "s35", i * P + sg_ * 1280)
    sync()
    em.e(f"v_mul_u32_u24 v6, {PIT}, v4"); em.e("s_mul_i32 s36, s18, 160"); em.e("v_add_u32 v6, s36, v6")
    em.e("v_lshlrev_b32 v16, 3, v5"); em.e("v_add_u32 v12, v6, v16")
    em.e("v_and_b32 v16, 1, v5"); em.e("v_mul_u32_u24 v16, 40, v16"); em.e("v_add_u32 v13, v6, v16")
    em.e("v_lshrrev_b32 v16, 1, v5"); em.e("v_mul_u32_u24 v16, 640, v16"); em.e("v_add_u32 v14, v13, v16")
    cs_prep()
    em.e("s_lshl_b32 s36, s31, 3"); em.e("s_lshl_b32 s38, s18, 1"); em.e("s_add_u32 s36, s36, s38")
    em.e(f"s_mul_i32 s38, s36, {PW1_SZ}"); em.e(f"s_add_u32 s38, s38, {PW1}")
    em.e("s_mul_i32 s39, s30, 5120"); em.e("s_add_u32 s39, s39, s38")
    em.e("s_mul_i32 s42, s30, 3072"); em.e("s_add_u32 s42, s42, s38"); em.e("s_add_u32 s42, s42, 102400")
    em.e("s_lshl_b32 s43, s30, 4"); em.e("s_add_u32 s43, s43, s36"); em.e("s_lshl_b32 s43, s43, 9"); em.e(f"s_add_u32 s43, s43, {CS1}")
    tiles = [(12, 640), (12, 680), (12, 1280), (12, 1320), (14, 672), (12, 0), (12, 40), (13, 32)]
    for e in range(2):
        for t, (br, off) in enumerate(tiles):
            r = 16 + 4 * (e * 8 + t)
            for h in range(2):
                em.e(f"ds_read_b64_tr_b16 v[{r+2*h}:{r+2*h+1}], v{br} offset:{h*16*PIT + e*80 + off}", lg=(e, t))
    for e in range(2):
        for t in range(8):
            r = 16 + 4 * (e * 8 + t)
            base = "s39" if t < 5 else "s42"
            imm = (t if t < 5 else t - 5) * 1024 + e * PW1_SZ
            em.e(f"s_add_u32 s29, {base}, {imm}")
            em.e(f"buffer_store_dwordx4 v[{r}:{r+3}], v3, s[20:23], s29 offen", vm="st", wlg=[(e, t)])
            a = 96 + 4 * ((e * 8 + t) % 4)
            em.e(f"v_mfma_f32_16x16x32_bf16 v[{a}:{a+3}], v[{r}:{r+3}], v[8:11], 0")
            if (e * 8 + t) % 4 == 3:
                for q in range(4):
                    tt = t - 3 + q
                    em.e(f"s_add_u32 s29, s43, {(e*8+tt)*64}")
                    cs_store(96 + 4 * q, "v7", "s29")
    em.e("s_endpgm")

    em.label("Lp_wgu")
    em.vm = []; em.lg = []
    P = 3456; PIT = 928
    em.e(f"s_sub_u32 s30, {J}, 40")
    em.e("s_cmp_ge_u32 s30, 40")
    em.e("s_cbranch_scc1 Lp_wu")
    src_srd(12, 13, 640 * 1728 * 2)
    em.e("s_mov_b32 s34, 0")
    em.e("s_branch Lp_wgu2")
    em.label("Lp_wu")
    src_srd(14, 15, 640 * 1728 * 2)
    em.e("s_mov_b32 s34, 1"); em.e("s_sub_u32 s30, s30, 40")
    em.label("Lp_wgu2")
    em.e("s_lshr_b32 s31, s30, 2")
    em.e("s_and_b32 s32, s30, 3")
    em.e("s_lshr_b32 s33, s18, 1"); em.e("s_lshl_b32 s35, s31, 1"); em.e("s_add_u32 s33, s33, s35")
    sdiv(em, "s35", "s33", 5, 20)
    em.e("s_mul_i32 s36, s35, 5"); em.e("s_sub_u32 s36, s33, s36")
    em.e("s_and_b32 s37, s18, 1")
    xt_half("s38", "s36", "s37")
    em.e("s_mul_i32 s35, s35, 10"); em.e("s_add_u32 s38, s38, s35"); em.e("s_lshl_b32 s38, s38, 4")
    em.e(f"s_mul_i32 s38, s38, {P}"); em.e("s_mul_i32 s35, s32, 864"); em.e("s_add_u32 s38, s38, s35")
    em.e(f"s_mul_i32 s37, s18, {16*PIT}")
    set_exec(54)
    for i in range(16):
        dma("s37", i * PIT, "s38", i * P)
    sync()
    em.e(f"v_mul_u32_u24 v6, {PIT}, v4"); em.e("s_mul_i32 s36, s18, 216"); em.e("v_add_u32 v6, s36, v6")
    em.e("v_lshlrev_b32 v16, 3, v5"); em.e("v_add_u32 v12, v6, v16")
    cs_prep()
    em.e("s_lshl_b32 s36, s32, 2"); em.e("s_add_u32 s36, s36, s18")
    em.e(f"s_mul_i32 s38, s36, {PW3_SZ}"); em.e(f"s_add_u32 s38, s38, {PW3}")
    em.e("s_lshl_b32 s39, s34, 8"); em.e("s_add_u32 s38, s38, s39")
    em.e("v_lshrrev_b32 v13, 5, v1"); em.e("v_lshlrev_b32 v13, 10, v13"); em.e("v_bfe_u32 v14, v1, 4, 1"); em.e("v_lshlrev_b32 v14, 9, v14")
    em.e("v_add_u32 v13, v13, v14"); em.e("v_and_b32 v14, 15, v1"); em.e("v_lshlrev_b32 v14, 4, v14"); em.e("v_add_u32 v13, v13, v14")
    assert k3b % 2 == 0
    em.e("s_mov_b32 s54, 4096"); em.e(f"s_mov_b32 s55, {4 * (20 - k3b) * 1024}")
    em.e(f"s_mul_i32 s39, s31, 24576")
    em.e(f"s_lshl_b32 s56, s31, 13"); em.e(f"s_add_u32 s56, s56, {(12 * k3b * 1024 - k3b * 4096) & 0xffffffff}")
    em.e(f"s_cmp_lt_u32 s31, {k3b // 2}")
    em.e(f"s_cselect_b32 s54, 12288, s54")
    em.e(f"s_cselect_b32 s55, 4096, s55")
    em.e(f"s_cselect_b32 s39, s39, s56")
    em.e("s_add_u32 s48, s38, s39")
    em.e("s_add_u32 s49, s48, s55"); em.e("s_add_u32 s50, s49, s55")
    for p in range(3): em.e(f"s_add_u32 s{51+p}, s{48+p}, s54")
    em.e("s_lshl_b32 s39, s31, 12"); em.e("s_add_u32 s44, s38, s39"); em.e(f"s_add_u32 s44, s44, {240*1024}")
    em.e("s_lshl_b32 s45, s31, 4"); em.e("s_add_u32 s45, s45, s36"); em.e("s_mul_i32 s45, s45, 14"); em.e("s_add_u32 s45, s45, s34")
    em.e("s_lshl_b32 s45, s45, 6"); em.e(f"s_add_u32 s45, s45, {CS3}")
    for t in range(7):
        for k in range(2):
            r = 16 + 4 * (t * 2 + k)
            for h in range(2):
                em.e(f"ds_read_b64_tr_b16 v[{r+2*h}:{r+2*h+1}], v12 offset:{k*32*PIT + h*16*PIT + t*32}", lg=(t, k))
    for t in range(7):
        a = 96 + 4 * (t % 4)
        for k in range(2):
            r = 16 + 4 * (t * 2 + k)
            if t < 6: base, imm = f"s{48 + 3 * k + (t >> 1)}", 2 * (t & 1) * 1024
            else: base, imm = "s44", k * 2048
            em.e(f"s_add_u32 s29, {base}, {imm}")
            em.e(f"buffer_store_dwordx4 v[{r}:{r+3}], v13, s[20:23], s29 offen", vm="st", wlg=[(t, k)])
            em.e(f"v_mfma_f32_16x16x32_bf16 v[{a}:{a+3}], v[{r}:{r+3}], v[8:11], {'0' if k==0 else f'v[{a}:{a+3}]'}")
        if t in (3, 6):
            for tt in range(t - 3 if t == 3 else 4, t + 1):
                em.e(f"s_add_u32 s29, s45, {2*tt*64}")
                cs_store(96 + 4 * (tt % 4), "v7", "s29")
    em.e("s_endpgm")

    def od_tail(dst_base, dst_sz, b_s):
        PIT = 1312
        sync()
        em.e(f"v_mul_u32_u24 v6, {PIT}, v4"); em.e("s_mul_i32 s36, s18, 320"); em.e("v_add_u32 v6, s36, v6")
        em.e("v_lshlrev_b32 v16, 3, v5"); em.e("v_add_u32 v12, v6, v16")
        em.e("s_lshl_b32 s36, s18, 1")
        em.e(f"s_mul_i32 s38, s36, {dst_sz}"); em.e(f"s_add_u32 s38, s38, {dst_base}")
        em.e(f"s_mul_i32 s39, {b_s}, 5120"); em.e("s_add_u32 s38, s38, s39")
        for e in range(2):
            for t in range(5):
                r = 16 + 4 * (e * 5 + t)
                for h in range(2):
                    em.e(f"ds_read_b64_tr_b16 v[{r+2*h}:{r+2*h+1}], v12 offset:{h*16*PIT + e*160 + t*32}", lg=(e, t))
        for e in range(2):
            for t in range(5):
                r = 16 + 4 * (e * 5 + t)
                em.e(f"s_add_u32 s29, s38, {e*dst_sz + t*1024}")
                em.e(f"buffer_store_dwordx4 v[{r}:{r+3}], v3, s[20:23], s29 offen", vm="st", wlg=[(e, t)])
        em.e("s_endpgm")

    em.label("Lp_wo")
    em.vm = []; em.lg = []
    P = 1280; PIT = 1312
    src_srd(8, 9, 640 * 640 * 2)
    em.e(f"s_sub_u32 s30, {J}, 120")
    em.e(f"s_mul_i32 s37, s18, {8*PIT}")
    set_exec(40)
    em.e("s_cmp_ge_u32 s30, 16"); em.e("s_cbranch_scc1 Lp_wo2")
    em.e("s_mul_i32 s31, s30, 40"); em.e("s_lshr_b32 s32, s18, 1"); em.e("s_mul_i32 s32, s32, 20"); em.e("s_add_u32 s31, s31, s32")
    em.e("s_and_b32 s32, s18, 1"); em.e("s_lshl_b32 s32, s32, 3"); em.e("s_add_u32 s31, s31, s32"); em.e(f"s_mul_i32 s31, s31, {P}")
    for i in range(8):
        for sg_ in range(2): dma("s37", i * PIT + sg_ * 640, "s31", i * P + sg_ * 640)
    em.e("s_branch Lp_wo3")
    em.label("Lp_wo2")
    em.e("s_sub_u32 s31, s30, 16"); em.e("s_mul_i32 s31, s31, 160"); em.e("s_mul_i32 s32, s18, 40"); em.e("s_add_u32 s31, s31, s32")
    em.e(f"s_mul_i32 s31, s31, {P}")
    for i in range(8):
        for sg_ in range(2): dma("s37", i * PIT + sg_ * 640, "s31", (20 * (i >> 2) + 16 + (i & 3)) * P + sg_ * 640)
    em.label("Lp_wo3")
    od_tail(PWO, PWO_SZ, "s30")

    em.label("Lp_wd")
    em.vm = []; em.lg = []
    src_srd(10, 11, 1728 * 640 * 2)
    em.e(f"s_sub_u32 s30, {J}, 140")
    em.e(f"s_mul_i32 s37, s18, {8*PIT}")
    set_exec(40)
    em.e("s_cmp_ge_u32 s30, 48"); em.e("s_cbranch_scc1 Lp_wd2")
    em.e("s_and_b32 s31, s30, 15"); em.e("s_mul_i32 s31, s31, 108"); em.e("s_lshr_b32 s32, s30, 4"); em.e("s_lshl_b32 s32, s32, 5")
    em.e("s_add_u32 s31, s31, s32")
    em.e("s_and_b32 s32, s18, 1"); em.e("s_lshl_b32 s32, s32, 4"); em.e("s_add_u32 s31, s31, s32")
    em.e("s_lshr_b32 s32, s18, 1"); em.e("s_lshl_b32 s32, s32, 3"); em.e("s_add_u32 s31, s31, s32"); em.e(f"s_mul_i32 s31, s31, {P}")
    for i in range(8):
        for sg_ in range(2): dma("s37", i * PIT + sg_ * 640, "s31", i * P + sg_ * 640)
    em.e("s_branch Lp_wd3")
    em.label("Lp_wd2")
    for q in range(2):
        em.e("s_sub_u32 s31, s30, 48"); em.e("s_lshl_b32 s31, s31, 3"); em.e("s_lshl_b32 s32, s18, 1"); em.e("s_add_u32 s31, s31, s32")
        em.e(f"s_add_u32 s31, s31, {q}")
        sdiv(em, "s32", "s31", 3, 48)
        em.e("s_mul_i32 s33, s32, 3"); em.e("s_sub_u32 s33, s31, s33"); em.e("s_lshl_b32 s33, s33, 2")
        em.e("s_mul_i32 s32, s32, 108"); em.e("s_add_u32 s32, s32, s33"); em.e("s_add_u32 s32, s32, 96"); em.e(f"s_mul_i32 s32, s32, {P}")
        for i in range(4):
            for sg_ in range(2): dma("s37", (4 * q + i) * PIT + sg_ * 640, "s32", i * P + sg_ * 640)
    em.label("Lp_wd3")
    od_tail(PWD, PWD_SZ, "s30")

    em.label("Lp_x")
    em.vm = []; em.lg = []
    P = 1280; PIT = 1296
    src_srd(4, 5, 2048 * 640 * 2)
    em.e(f"s_sub_u32 s30, {J}, 194")
    em.e("s_lshl_b32 s31, s30, 5"); em.e("s_lshl_b32 s32, s18, 3"); em.e("s_add_u32 s31, s31, s32"); em.e(f"s_mul_i32 s31, s31, {P}")
    em.e(f"s_mul_i32 s37, s18, {8*PIT}")
    set_exec(40)
    for i in range(8):
        for sg_ in range(2): dma("s37", i * PIT + sg_ * 640, "s31", i * P + sg_ * 640)
    sync()
    em.e("v_and_b32 v16, 15, v1"); em.e(f"v_mul_u32_u24 v12, {PIT}, v16")
    em.e("v_lshrrev_b32 v17, 4, v1"); em.e("v_lshlrev_b32 v18, 3, v17"); em.e("v_add_u32 v12, v12, v18")
    em.e("s_lshr_b32 s33, s18, 1"); em.e("s_and_b32 s34, s18, 1")
    em.e(f"s_mul_i32 s35, s33, {16*PIT}"); em.e("s_mul_i32 s36, s34, 640"); em.e("s_add_u32 s35, s35, s36"); em.e("v_add_u32 v12, s35, v12")
    em.e("s_lshl_b32 s35, s30, 1"); em.e("s_add_u32 s35, s35, s33")
    em.e("s_mul_i32 s36, s35, 20480"); em.e("s_mul_i32 s38, s34, 10240"); em.e("s_add_u32 s36, s36, s38"); em.e(f"s_add_u32 s36, s36, {XB}")
    for i in range(10):
        r = 20 + 4 * i
        cc, u = divmod(i, 5)
        em.e(f"ds_read_b64 v[{r}:{r+1}], v12 offset:{(10*cc+XT0[u])*32}", lg=i)
        em.e(f"ds_read_b64 v[{r+2}:{r+3}], v12 offset:{(10*cc+XT1[u])*32}", lg=i)
    for i in range(10):
        r = 20 + 4 * i
        em.e(f"s_add_u32 s29, s36, {i*1024}")
        em.e(f"buffer_store_dwordx4 v[{r}:{r+3}], v3, s[20:23], s29 offen", vm="st", wlg=[i])
        em.e(f"v_mfma_f32_16x16x32_bf16 v[96:99], v[8:11], v[{r}:{r+3}], {'0' if i==0 else 'v[96:99]'}")
        em.e(f"v_mfma_f32_16x16x32_bf16 v[100:103], v[{r}:{r+3}], v[{r}:{r+3}], {'0' if i==0 else 'v[100:103]'}")
    em.e("v_and_b32 v18, 3, v16")
    em.e("v_cmp_eq_u32 vcc, 1, v18"); em.e("v_cndmask_b32 v104, v100, v101, vcc")
    em.e("v_cmp_eq_u32 vcc, 2, v18"); em.e("v_cndmask_b32 v104, v104, v102, vcc")
    em.e("v_cmp_eq_u32 vcc, 3, v18"); em.e("v_cndmask_b32 v105, v104, v103, vcc")
    em.e("v_mov_b32 v104, v96")
    em.e("v_mov_b32 v106, 0"); em.e("v_mov_b32 v107, 0")
    em.e("s_lshl_b32 s38, s35, 10"); em.e(f"s_add_u32 s38, s38, {ST}")
    em.e("s_lshl_b32 s39, s34, 7"); em.e("s_add_u32 s39, s39, s38")
    em.e("s_mul_i32 s42, s34, 384"); em.e("s_add_u32 s42, s42, s38")
    em.e("v_lshlrev_b32 v19, 3, v16")
    em.e("v_lshrrev_b32 v18, 2, v16")
    em.e("v_cmp_eq_u32 vcc, v17, v18")
    em.e("s_and_saveexec_b64 s[40:41], vcc")
    em.e("buffer_store_dwordx2 v[104:105], v19, s[20:23], s39 offen", vm="st")
    for z in range(3):
        em.e(f"buffer_store_dwordx2 v[106:107], v19, s[20:23], s42 offen offset:{256+128*z}", vm="st")
    em.e("s_mov_b64 exec, s[40:41]")
    em.e("s_endpgm")

    if mono:
        out = []
        for l in em.lines:
            if l.strip() == "s_endpgm": out.append("    s_branch Lp_exit")
            elif "buffer_store" in l: out.append(l + sfx)
            else: out.append(l)
        out += ["Lp_exit:",
                "    s_sub_u32 s30, s47, 120", "    s_cmp_ge_u32 s30, 2", "    s_cbranch_scc1 Lp_fin",
                "    s_add_u32 s47, s47, 18", "    s_waitcnt lgkmcnt(0)", "    s_barrier", "    s_branch Lp_disp",
                "Lp_fin:"]
        e2 = Em()
        poison_zero(e2, sfx)
        e2.e("s_and_b32 s30, s2, 7"); e2.e("s_lshl_b32 s30, s30, 8"); e2.e("s_bfe_u32 s31, s2, 0x10003"); e2.e("s_lshl_b32 s31, s31, 7")
        e2.e("s_add_u32 s30, s30, s31"); e2.e("s_lshr_b32 s31, s2, 4"); e2.e("s_lshl_b32 s31, s31, 2"); e2.e("s_add_u32 s30, s30, s31")
        e2.e(f"s_add_u32 s30, s30, {FLG_G}")
        e2.e("v_mov_b32 v21, 0")
        e2.e("s_cmp_lg_u32 s18, 0"); e2.e("s_cbranch_scc1 Lp_noz")
        e2.e("s_mov_b64 exec, 1")
        e2.e(f"buffer_store_dword v21, off, s[20:23], s30{sfx}")
        e2.e("s_mov_b64 exec, -1")
        e2.label("Lp_noz")
        return out + e2.lines
    em.label("Lp_zero")
    for i in range(4): em.e(f"v_mov_b32 v{16+i}, 0")
    em.e("v_lshlrev_b32 v20, 4, v0")
    for i in range(FLAGS_BYTES // 4096):
        em.e(f"s_mov_b32 s30, {i*4096}")
        em.e(f"buffer_store_dwordx4 v[16:19], v20, s[20:23], s30 offen")
    em.label("Lp_done")
    em.e("s_endpgm")
    if stamp == 2:
        out = []
        for l in em.lines:
            if l.strip() == "s_endpgm": out.append("    s_branch Lp_exit")
            else: out.append(l)
        out += ["Lp_exit:", "    s_waitcnt vmcnt(0)", "    s_memrealtime s[64:65]", "    s_waitcnt lgkmcnt(0)", "    s_mov_b64 exec, 1",
                "    v_mov_b32 v110, s64", "    v_mov_b32 v111, 0", "    global_atomic_umax v111, v110, s[62:63] offset:4",
                "    s_lshr_b32 s66, s2, 3", "    s_lshl_b32 s66, s66, 2", "    v_mov_b32 v111, s66", "    global_atomic_umax v111, v110, s[62:63] offset:16",
                "    s_endpgm"]
        return out
    return em.lines

def kdesc(name, vgpr, accum, sgpr=96):
    return f""".section .rodata,"a"
.p2align 6
.amdhsa_kernel {name}
  .amdhsa_next_free_vgpr {vgpr}
  .amdhsa_next_free_sgpr {sgpr}
  .amdhsa_accum_offset {accum}
  .amdhsa_group_segment_fixed_size 0
  .amdhsa_kernarg_size 80
  .amdhsa_user_sgpr_count 2
  .amdhsa_user_sgpr_kernarg_segment_ptr 1
  .amdhsa_system_sgpr_workgroup_id_x 1
.end_amdhsa_kernel
"""

if __name__ == "__main__":
    lines = gen_prep("prep_kernel")
    lines, n = fix_hazards(lines)
    print(f"; @launch kernel=prep_kernel grid=({PREP_WGS},1,1) block=(256,1,1) lds={PREP_LDS}")
    print('.amdgcn_target "amdgcn-amd-amdhsa--gfx950"\n.text\n.globl prep_kernel\n.p2align 8\n.type prep_kernel,@function')
    print("\n".join(lines))
    print(kdesc("prep_kernel", 112, 112))
```

```python
import sys
from asmlib import *
from layout import *
from gen_prep import gen_prep, kdesc, PREP_WGS, PREP_LDS

KNAME = "interleave_layers__linear_attn_block__swiglu_ffn__prompt_kernel"
NR = 9
MISC = 147456
MB = 131072
L_CS1 = MISC - MB; L_CS3 = MISC + 512 - MB; L_STAT = MISC + 1536 - MB; L_RED = MISC + 4096 - MB; L_KVB = MISC + 8192 - MB
MAIN_LDS = 163840
PH = {"K1": (0, 160), "K2": (10, 100), "K3": (17, 280), "K4": (35, 270)}
TOT_ROUNDS = 54
LOG2E = 0x3fb8aa3b
EPS6 = 0x358637bd
EPS5 = 0x3727c5ac
INV640 = 0x3acccccd

S_WS = "s[4:7]"; S_OUT = "s[8:11]"; S_WSN = "s[12:15]"
sW, sG, sM, sHALF, sC8, sLAYER = "s16", "s17", "s18", "s19", "s20", "s21"
sW4K, sW1K, sW2K = "s22", "s23", "s24"
sPW1, sPWO, sPW3, sPWD, sPWOp, sPW3p = "s25", "s26", "s27", "s28", "s29", "s30"
sDMA = "s31"; sA = "s32"; sT0, sT1, sT2, sT3 = "s33", "s34", "s35", "s36"
sFOWN, sFLINE, sKOWN, sKLINE = "s37", "s38", "s39", "s40"
sSTEP = "s41"; sTT2 = "s42"; sTT1 = "s43"
sFEX = "s[44:45]"
sMODE = "s46"; sSPIN = "s47"
sMK = ["s[48:49]", "s[50:51]", "s[52:53]", "s[54:55]", "s[56:57]", "s[58:59]"]
sXI = "s60"
sE6 = "s61"
sST = "s62"
sST2 = "s63"
sODD = "s64"
sXOFF, sXREM, sSTOFF, sAOFF, sOOFF = "s65", "s91", "s98", "s99", "s3"
sBIT2 = "s[66:67]"
sI8 = "s[68:69]"
sG23 = "s[70:71]"; sG3 = "s[72:73]"; sMK32 = "s[74:75]"
sTS = 76
sP0, sP1, sP2 = "s88", "s89", "s90"
PTD = "a255"
sR13, sR4, sRB, sRQ, sRT, sRT2 = "s84", "s85", "s86", "s87", "s100", "s101"
R13 = [4, 8, 12, 16]; R4V = [2, 14, 30, 42]
REGIONS = {"K1": [(0, 5, 20), (100, 3, 20)], "K2": [(0, 5, 20)], "K3": [(0, 4, 20), (80, 4, 20), (160, 4, 20), (240, 2, 20)], "K4": [(0, 5, 54)]}
ROTREG = {"K1": (sR13, R13), "K2": (sR13, R13), "K3": (sR13, R13), "K4": (sR4, R4V)}

vL16, vR1, vR2, vL16B = "v1", "v2", "v3", "v4"
vI4, vI4W, vG16, vG16W, vX3, vA3, vL8, vSTO, vACT6, vOREM, vOUT = [f"v{i}" for i in range(5, 16)]
vH16 = "v250"
RES = 16
WW = 36; NW = 16
ACC = 100
TMP = 212
CSVB = 140; RLB = 180


DBG = {}
class Seg:
    def __init__(s, cap=2):
        s.mf = []; s.gaps = [[]]; s.cost = [0]; s.cap = cap
    def n(s): return len(s.mf)
    def mfma(s, text, wvm=None, wlg=None):
        s.mf.append(Op(text, wvm=wvm, wlg=wlg)); s.gaps.append([]); s.cost.append(0)
        if wvm or wlg: s.cost[len(s.mf) - 1] += 1
        return len(s.mf) - 1
    def put(s, gap, op, cost=1):
        if isinstance(op, str): op = Op(op)
        gap = min(gap, len(s.gaps) - 1)
        s.gaps[gap].append(op); s.cost[gap] += cost
        return gap
    def place(s, op, earliest, cost=1, cap=None, latest=None):
        if cap is None: cap = s.cap
        g = max(0, min(earliest, len(s.gaps) - 1))
        last = len(s.gaps) - 1
        while g < last and s.cost[g] + cost > cap:
            if latest is not None and g >= latest: break
            g += 1
        return s.put(g, op, cost)
    def group(s, ops, earliest, maxcost=0):
        g = max(0, min(earliest, len(s.gaps) - 1))
        while g < len(s.gaps) - 1 and s.cost[g] > maxcost: g += 1
        for o in ops: s.put(g, o, 1)
        return g
    def stream(s, ops, earliest, cap=None, spacing=0):
        g = earliest
        for o in ops:
            c = 1
            if isinstance(o, tuple): o, c = o
            g = s.place(o, g, cost=c, cap=cap)
            g += spacing
        return g
    def emit(s, em):
        def keep(o):
            t = o.text
            if DBG.get("skipa") and t.startswith("buffer_load_dwordx4 a["): return False
            if DBG.get("skipw") and t.endswith(" lds"): return False
            if DBG.get("nobar") and t == "s_barrier":
                o.text = "s_nop 0"; return True
            if DBG.get("skipv") and t.startswith("v_") and not t.startswith(("v_mfma", "v_writelane")): return False
            if DBG.get("skipr") and t.startswith("ds_read"): return False
            return True
        for i in range(len(s.gaps)):
            for o in s.gaps[i]:
                if keep(o): em.op(o)
            if i < len(s.mf): em.op(s.mf[i])


STG0 = 160
vSTG0, vSTG1, vSTG2 = "v200", "v201", "v202"
def staged(r):
    n = DBG.get("stg", 0)
    return n and DBG.get("stg0", 26) <= r < DBG.get("stg0", 26) + n
class Ring:
    def __init__(s):
        s.issued = -1
        s.filled = -1
        s.allowed = -1
        s.q = []
    @staticmethod
    def info(r):
        rr = r % TOT_ROUNDS
        nxt = r >= TOT_ROUNDS
        for ph, (r0, nf) in PH.items():
            nrounds = (nf + 15) // 16
            if r0 <= rr < r0 + nrounds:
                k = rr - r0
                return ph, k, min(16, nf - 16 * k), nxt
        return None, 0, 0, nxt
    def jobs(s, r):
        ph, k, n, nxt = s.info(r)
        if ph is None: return []
        srd = S_WSN if nxt else S_WS
        pos = (r % NR) * 16384
        tag = ("dma", r)
        if staged(r):
            a0 = STG0 + 16 * (r - DBG.get("stg0", 26))
            va, off = (vSTG0, pos) if pos < 65536 else ((vSTG1, pos - 65536) if pos < 131072 else (vSTG2, pos - 131072))
            return [[Op(f"ds_write_b128 {va}, a[{a0+4*j}:{a0+4*j+3}] offset:{off + j*1024}", lg=("dmal", r), wvm=[("stg", r)])] for j in range(4)]
        if n > 8: c, m0s, base = 4, sW4K, {"K1": sPW1, "K2": sPWO, "K3": sPW3, "K4": sPWD}[ph]
        elif n > 4: c, m0s, base = 2, sW2K, sPW3p; assert ph == "K3" and n == 8
        else: c, m0s, base = 1, sW1K, sPWOp; assert ph == "K2" and n == 4
        nt = " nt" if (DBG.get("wnt", 0) >> {"K1": 0, "K2": 1, "K3": 2, "K4": 3}[ph]) & 1 else ""
        base4 = {"K1": sPW1, "K2": sPWO, "K3": sPW3, "K4": sPWD}[ph]
        pre = [Op(f"s_add_u32 m0, {m0s}, {pos}")]
        if not DBG.get("rot", 0):
            pre.append(Op(f"s_add_u32 {sDMA}, {base}, {(k % DBG.get('wmod', 1000))*16384}"))
        else:
            sR, rset = ROTREG[ph]
            regs = REGIONS[ph]
            def region(p):
                for i, (P0, cc, nb) in enumerate(regs):
                    if P0 <= p < P0 + cc * nb: return i
                return len(regs) - 1
            def setup(i):
                P0, cc, nb = regs[i]
                return [Op(f"s_mul_i32 {sRT}, {sR}, {cc}"), Op(f"s_lshl_b32 {sRQ}, {sW}, 2"), Op(f"s_add_u32 {sRQ}, {sRQ}, {sRT}"),
                        Op(f"s_lshl_b32 {sRT}, {sRT}, 10"), Op(f"s_add_u32 {sRB}, {base4}, {sRT}")]
            def addr(i, waves, dst):
                P0, cc, nb = regs[i]
                st = set()
                for w in waves:
                    for R in rset: st.add(16 * k + c * w + cc * R >= P0 + cc * nb)
                size = cc * nb * 1024
                if st == {False}: return [Op(f"s_add_u32 {dst}, {sRB}, {16384*k}")], False
                if st == {True}: return [Op(f"s_add_u32 {dst}, {sRB}, {(16384*k - size) & 0xffffffff}")], True
                assert c == 4
                T = P0 + cc * nb - 16 * k
                return [Op(f"s_add_u32 {dst}, {sRB}, {16384*k}"), Op(f"s_cmp_ge_u32 {sRQ}, {T}"), Op(f"s_cselect_b32 {sRT}, {size}, 0"),
                        Op(f"s_sub_u32 {dst}, {dst}, {sRT}")], None
            rw = [region(16 * k + c * w) for w in range(4)]
            prev_reg = region(16 * k - 4) if k > 0 else None
            if len(set(rw)) == 1:
                i = rw[0]
                if prev_reg != i: pre += setup(i)
                o, _ = addr(i, range(4), sDMA)
                pre += o
                if c != 4:
                    pre += [Op(f"s_sub_u32 {sDMA}, {sDMA}, {base4}"), Op(f"s_add_u32 {sDMA}, {sDMA}, {base}")]
            else:
                assert c == 4 and rw[0] == prev_reg and set(rw[1:]) == {rw[0] + 1}, (ph, k, rw)
                o, _ = addr(rw[0], [0], sRT2); pre += o
                pre += setup(rw[1])
                o, _ = addr(rw[1], [1, 2, 3], sDMA); pre += o
                pre += [Op(f"s_cmp_eq_u32 {sW}, 0"), Op(f"s_cselect_b32 {sDMA}, {sRT2}, {sDMA}")]
        out = []
        for j in range(c):
            ops = list(pre) if j == 0 else []
            ops.append(Op(f"buffer_load_dwordx4 {vL16}, {srd}, {sDMA} offen offset:{j*1024}{nt} lds", vm=tag))
            out.append(ops)
        return out
    def skip_virtual(s):
        while not s.q and s.issued < s.allowed and not s.jobs(s.issued + 1): s.issued += 1
    def next_round(s):
        r = s.issued + 1
        while not s.q and not s.jobs(r): r += 1
        return r
    def take(s):
        if not s.q:
            s.skip_virtual()
            if s.issued + 1 > s.allowed: return None
            s.q = s.jobs(s.issued + 1)
        j = s.q.pop(0)
        if not s.q:
            s.issued += 1
            s.skip_virtual()
        return j
    def emit(s, em, n=10**9, upto=None):
        k = 0
        while k < n:
            if upto is not None and s.next_round() > upto: break
            j = s.take()
            if j is None: break
            for o in j: em.op(o)
            k += 1
        return k


def wslot_addr(ph, f):
    r0, nf = PH[ph]
    r = r0 + f // 16
    a = (r % NR) * 16384 + (f % 16) * 1024
    if a < 65536: return vL16, a
    if a < 131072: return vR1, a - 65536
    return vR2, a - 131072


class WStream:
    cnt = 0
    def __init__(s, ring, seg, ph, SS=2, LA=10):
        s.ring = ring; s.seg = seg; s.ph = ph; s.SS = SS; s.LA = LA
        s.reg = {}; s.events = []
    def wreg(s, f):
        if f not in s.reg:
            s.reg[f] = WW + 4 * (WStream.cnt % NW); WStream.cnt += 1
        return s.reg[f]
    def reads(s, frags, first_use, last_use, force=(), nobar=(), wait_at=None, ming=0):
        seg = s.seg; ring = s.ring; r0, nf = PH[s.ph]
        prev = ming
        lastuse_slot = dict(getattr(s, 'lus', {}))
        filled = ring.filled
        lastbar = None
        rlast = r0 + frags[-1] // 16
        for f in frags:
            reg = s.reg[f]
            e = max(prev, first_use[f] - s.LA, lastuse_slot.get(reg, -1) + 1)
            lat = first_use[f] if wait_at is None else wait_at[f]
            e = max(0, min(e, lat))
            r = r0 + f // 16
            va, off = wslot_addr(s.ph, f)
            rd = Op(f"ds_read_b128 v[{reg}:{reg+3}], {va} offset:{off}", lg=("w", s.ph, f))
            need = r > filled
            want = (f % 16 == 0) and (r in force or (lastbar is not None and r - lastbar >= s.SS) or (lastbar is None and r - (r0 + frags[0] // 16) >= s.SS)) and r not in nobar
            if need or want:
                tgt = max(filled, min(r + s.SS - 1, rlast))
                g = e
                last = lat
                while g < last and seg.cost[g] + 1 > seg.cap: g += 1
                wt = [("dma", x) for x in range(filled + 1, tgt + 1) if not staged(x)]
                wl_ = [("dmal", x) for x in range(filled + 1, tgt + 1) if staged(x)]
                seg.put(g, Op("s_barrier", wvm=wt, wlg=wl_), 2)
                seg.put(g, rd, 1)
                filled = tgt
                prev = g
                lastbar = r
                s.events.append((g, r - 2 + NR, tgt))
            else:
                prev = seg.place(rd, e, latest=lat)
            lastuse_slot[reg] = last_use[f]
        s.lastbar = lastbar
        s.lus = lastuse_slot
        ring.filled = filled
    def vmem(s, ajobs, policy, rate=4.5, qd=36, backlog=0, margin=48, cap=None, burst0=True):
        seg = s.seg; ring = s.ring
        if cap is None: cap = seg.cap
        n = len(seg.gaps)
        path = backlog
        ai = 0
        ev = list(s.events)
        def dma_deadline(r):
            for (g, al, tgt) in ev:
                if tgt >= r: return g
            return None
        evi = 0
        for (g, al, tgt) in ev:
            if g == 0: assert ring.issued >= tgt, ("rounds not issued before seg start", s.ph, tgt, ring.issued)
        for g in range(n):
            placed = 0
            while True:
                cands = []
                if ai < len(ajobs) and (len(ajobs[ai]) < 3 or g >= ajobs[ai][2]): cands.append((ajobs[ai][1], 0))
                r = ring.next_round()
                hard = dma_deadline(r)
                pe = policy(r)
                ok = (ring.q or r <= ring.allowed)
                if ok and (hard is not None or pe is not None):
                    dl = (hard - margin) if hard is not None else 10**6
                    start = pe if pe is not None else 0
                    if g >= start or (hard is not None and g >= hard - 1): cands.append((dl, 1))
                    harddl = hard
                if not cands: break
                cands.sort()
                def isforced(c):
                    return (c[1] == 1 and hard is not None and g >= hard - 1) or (c[1] == 0 and g >= c[0])
                fc = [c for c in cands if isforced(c)]
                forced = bool(fc)
                dl, which = fc[0] if fc else cands[0]
                if not forced:
                    if path - g > qd: break
                    if (g > 0 or not burst0) and (seg.cost[g] + 1 > cap or placed >= 1): break
                if which == 0:
                    ops = ajobs[ai][0]; ai += 1
                else:
                    ops = ring.take(); assert ops is not None
                for o in ops: seg.put(g, o, 1)
                path = max(path, g) + rate
                placed += 1
            while evi < len(ev) and ev[evi][0] <= g:
                (eg, al, tgt) = ev[evi]; evi += 1
                assert ring.issued >= tgt, ("rounds not issued before barrier", s.ph, g, tgt, ring.issued)
                ring.allowed = max(ring.allowed, al)
        assert ai == len(ajobs)
        return path - n


def gen_main(opt):
    stop = opt.get("stop", 99)
    DBG.clear(); DBG.update(opt)
    stamps = opt.get("stamps", False)
    SS = opt.get("SS", 2)
    MARG = opt.get("marg", 72); QD = opt.get("qd", 36); RATE = opt.get("rate10", 45) / 10.0
    cur = {"sfx": "F", "STO": "", "LD": ""}
    em = Em()
    ring = Ring()
    WStream.cnt = 0
    nstamp = [0]
    def stamp():
        if not stamps: return
        k = nstamp[0]; nstamp[0] += 1
        em.raw(f"    s_waitcnt lgkmcnt(0)")
        em.e(f"s_memtime s[{sTS}:{sTS+1}]" if not opt.get("rt") else f"s_memrealtime s[{sTS}:{sTS+1}]")
        em.e(f"s_lshl_b32 s{sTS+2}, {sLAYER}, 4")
        em.e(f"s_add_u32 s{sTS+2}, s{sTS+2}, {k}")
        em.raw("    s_waitcnt lgkmcnt(0)")
        em.lg = []
        em.e(f"s_mov_b32 s{sTS+1}, m0")
        em.e(f"s_mov_b32 m0, s{sTS+2}"); em.e("s_nop 3")
        em.e(f"v_writelane_b32 v0, s{sTS}, m0")
        em.e(f"s_mov_b32 m0, s{sTS+1}")
    lsn = [0]
    def lstamp(seg, gap):
        if not opt.get("lst", 0): return
        lane = 32 + lsn[0]; lsn[0] += 1
        assert lane < 64
        rg = 96 if lane % 2 else 76
        seg.put(gap, f"s_memtime s[{rg}:{rg+1}]", 0)
        seg.put(gap + 12, f"v_writelane_b32 v0, s{rg}, {lane}", 0)
    def dump_stamps():
        if not stamps: return
        em.e("s_memrealtime s[96:97]")
        em.raw("    s_waitcnt lgkmcnt(0)")
        em.e("v_writelane_b32 v0, s92, 15"); em.e("v_writelane_b32 v0, s94, 30"); em.e("v_writelane_b32 v0, s96, 31")
        em.e(f"s_mov_b64 exec, s[{sTS+4}:{sTS+5}]")
        em.e(f"v_lshrrev_b32 v251, 2, {vL16}")
        em.e(f"v_add_u32 v251, s{sTS+3}, v251")
        em.e(f"global_store_dword v251, v0, s[{sTS+6}:{sTS+7}]")
        em.e("s_mov_b64 exec, -1")
        em.raw("    s_waitcnt vmcnt(0)")

    em.label(KNAME)
    em.e("s_cmp_ge_u32 s2, 256")
    em.e("s_cbranch_scc1 Lm_done")
    if stamps:
        em.e("s_memtime s[92:93]"); em.e("s_memrealtime s[94:95]")
    MONO = opt.get("mono", 0)
    if opt.get("sst"):
        em.e("s_memrealtime s[98:99]"); em.raw("    s_waitcnt lgkmcnt(0)"); em.e("s_mov_b32 s101, s98")
    if MONO:
        em.e("s_load_dwordx2 s[82:83], s[0:1], 64")
        MST = opt.get("mst", 0)
        for l in gen_prep("", mono=True, k3b=opt.get("k3b", 12), sfx={0: " sc1", 1: " sc0 sc1", 2: " sc1 nt", 3: "", 4: "", 5: " nt"}[MST], sx=opt.get("sx", 0), skipj=opt.get("skipj", 0)): em.raw(l)
        if opt.get("sx"):
            if opt["sx"] == 1: em.e("s_memrealtime s[78:79]")
            em.raw("    s_waitcnt vmcnt(0) lgkmcnt(0)")
            em.e("s_memrealtime s[76:77]"); em.raw("    s_waitcnt lgkmcnt(0)")
            if opt["sx"] == 1:
                em.e("v_mov_b32 v236, s101"); em.e("v_mov_b32 v237, s96"); em.e("v_mov_b32 v238, s78"); em.e("v_mov_b32 v239, s76")
            else:
                em.e("v_mov_b32 v236, s101"); em.e("v_mov_b32 v237, s80"); em.e("v_mov_b32 v238, s78"); em.e("v_mov_b32 v239, s96")
            em.e("s_lshl_b32 s33, s2, 4"); em.e("s_add_u32 s33, s33, 0x3000000"); em.e("v_mov_b32 v240, s33")
            em.e("s_cmp_lg_u32 s18, 0"); em.e("s_cbranch_scc1 Lm_done")
            em.e("s_mov_b64 exec, 1"); em.e("global_store_dwordx4 v240, v[236:239], s[16:17]"); em.e("s_endpgm")
        em.e(f"s_getreg_b32 {sMODE}, hwreg(HW_REG_XCC_ID)")
        em.e(f"s_lshr_b32 s33, {sMODE}, 12"); em.e("s_and_b32 s33, s33, 0x70"); em.e(f"s_and_b32 {sMODE}, {sMODE}, 15")
        em.e(f"s_or_b32 {sMODE}, {sMODE}, s33"); em.e(f"s_or_b32 {sMODE}, {sMODE}, 0x80")
        em.e(f"v_mov_b32 v254, {sMODE}"); em.e("v_mov_b32 v255, s2")
        em.raw("    s_waitcnt vmcnt(0) lgkmcnt(0)")
        em.e("s_barrier")
        em.e("s_cmp_lg_u32 s18, 0"); em.e("s_cbranch_scc1 Lm_nofl")
        if MST in (3, 5):
            em.e("buffer_wbl2 sc1"); em.raw("    s_waitcnt vmcnt(0)")
        em.e("s_mov_b64 exec, 1")
        em.e("global_store_byte v255, v254, s[82:83] sc1")
        em.e("s_mov_b64 exec, -1")
        em.label("Lm_nofl")
        if opt.get("sst"):
            em.e("s_memrealtime s[98:99]"); em.raw("    s_waitcnt lgkmcnt(0)"); em.e("s_mov_b32 s100, s98")
        if stamps:
            em.e("s_memtime s[96:97]"); em.raw("    s_waitcnt lgkmcnt(0)"); em.e("s_sub_u32 s96, s96, s92")
    em.e("s_load_dwordx2 s[8:9], s[0:1], 56"); em.e("s_load_dwordx2 s[10:11], s[0:1], 64")
    em.e("s_load_dwordx2 s[4:5], s[0:1], 72")
    em.e("v_lshrrev_b32 v2, 6, v0")
    em.e("v_and_b32 v0, 63, v0")
    em.e(f"v_readfirstlane_b32 {sW}, v2")
    em.e(f"v_lshlrev_b32 {vL16}, 4, v0")
    em.e("s_and_b32 s33, s2, 7"); em.e("s_lshr_b32 s34, s2, 3")
    em.e("s_and_b32 s35, s34, 1"); em.e(f"s_lshr_b32 {sM}, s34, 1")
    em.e("s_lshl_b32 s33, s33, 1"); em.e(f"s_add_u32 {sG}, s33, s35")
    em.e(f"s_and_b32 {sHALF}, {sM}, 1"); em.e(f"s_lshr_b32 {sC8}, {sM}, 1")
    em.e(f"s_lshl_b32 {sW4K}, {sW}, 12"); em.e(f"s_lshl_b32 {sW1K}, {sW}, 10"); em.e(f"s_lshl_b32 {sW2K}, {sW}, 11")
    def base(dst, reg0, sz, idx, wk, extra=0):
        em.e(f"s_mul_i32 {dst}, {idx}, {sz}"); em.e(f"s_add_u32 {dst}, {dst}, {reg0 + extra}"); em.e(f"s_add_u32 {dst}, {dst}, {wk}")
    base(sPW1, PW1, PW1_SZ, sM, sW4K); base(sPWO, PWO, PWO_SZ, sC8, sW4K)
    base(sPW3, PW3, PW3_SZ, sM, sW4K); base(sPWD, PWD, PWD_SZ, sC8, sW4K)
    base(sPWOp, PWO, PWO_SZ, sC8, sW1K); base(sPW3p, PW3, PW3_SZ, sM, sW2K)
    em.e("s_waitcnt lgkmcnt(0)")
    if stamps and not opt.get("rt") and not MONO:
        em.e(f"s_mov_b32 s{sTS+6}, s10"); em.e(f"s_mov_b32 s{sTS+7}, s11")
    if stamps and opt.get("rt"):
        em.e(f"s_add_u32 s{sTS+6}, s4, 0x3000000"); em.e(f"s_addc_u32 s{sTS+7}, s5, 0")
    if opt.get("wsoff", 0): em.e(f"s_add_u32 s4, s4, {opt['wsoff'] << 20}"); em.e("s_addc_u32 s5, s5, 0")
    em.e(f"s_mov_b32 s6, {WS_END}"); em.e("s_mov_b32 s7, 0x20000")
    em.e(f"s_mov_b32 s10, {2048*640*2}"); em.e("s_mov_b32 s11, 0x20000")
    em.e("s_mov_b32 s12, s4"); em.e("s_mov_b32 s13, s5"); em.e(f"s_mov_b32 s14, {WS_END}"); em.e("s_mov_b32 s15, 0x20000")
    em.e(f"s_and_b32 s33, {sG}, 1"); em.e(f"s_lshl_b32 s33, s33, 1"); em.e(f"s_add_u32 s33, s33, {sHALF}")
    if opt.get("rot", 0) == 2: em.e("s_mov_b32 s33, 0")
    em.e(f"s_lshl_b32 {sR13}, s33, 2"); em.e(f"s_add_u32 {sR13}, {sR13}, 4")
    em.e(f"s_mul_i32 {sR4}, s33, 12"); em.e(f"s_add_u32 {sR4}, {sR4}, 2"); em.e(f"s_cmp_ge_u32 s33, 2"); em.e(f"s_cselect_b32 s33, 4, 0"); em.e(f"s_add_u32 {sR4}, {sR4}, s33")
    HEAD = opt.get("head", 4)
    ring.allowed = 8
    if not MONO: ring.emit(em, upto=2)
    em.e(f"s_lshl_b32 s33, {sG}, 7")
    em.e(f"s_add_u32 {sFLINE}, s33, {FLG_G}"); em.e(f"s_lshl_b32 s34, {sM}, 2"); em.e(f"s_add_u32 {sFOWN}, {sFLINE}, s34")
    em.e(f"s_lshl_b32 s33, {sM}, 7"); em.e(f"s_add_u32 {sKLINE}, s33, {FLG_KV}"); em.e(f"s_lshl_b32 s34, {sG}, 2"); em.e(f"s_add_u32 {sKOWN}, {sKLINE}, s34")
    em.e(f"s_lshl_b32 s33, {sG}, 3")
    em.e(f"s_lshl_b32 s34, {sW}, 1"); em.e(f"s_add_u32 {sTT2}, s33, s34")
    em.e(f"s_lshl_b32 s34, {sHALF}, 2"); em.e(f"s_add_u32 s34, s34, {sW}"); em.e(f"s_add_u32 {sTT1}, s33, s34")
    em.e(f"s_cmp_eq_u32 {sW}, 0"); em.e("s_cselect_b32 s44, 1, 0"); em.e("s_mov_b32 s45, 0")
    em.e(f"s_mov_b32 {sLAYER}, 0"); em.e(f"s_mov_b32 {sSTEP}, 0"); em.e(f"s_mov_b32 {sXI}, 0")
    em.e(f"s_mov_b32 {sE6}, {EPS6}")
    em.e(f"s_and_b32 {sODD}, {sC8}, 1")
    em.e(f"s_lshr_b32 s33, {sC8}, 1"); em.e("s_mul_i32 s33, s33, 5")
    em.e(f"s_lshl_b32 s34, {sODD}, 1"); em.e("s_add_u32 s34, s34, s33"); em.e("s_lshl_b32 s34, s34, 10")
    em.e(f"s_add_u32 s33, s33, 4"); em.e("s_lshl_b32 s33, s33, 10"); em.e(f"s_sub_u32 {sXREM}, s33, s34")
    em.e(f"s_mul_i32 s35, {sTT1}, 20480"); em.e(f"s_add_u32 s34, s34, s35"); em.e(f"s_add_u32 {sXOFF}, s34, {XB}")
    em.e(f"s_lshl_b32 s33, {sTT1}, 10"); em.e(f"s_lshl_b32 s34, {sC8}, 7"); em.e("s_add_u32 s33, s33, s34"); em.e(f"s_add_u32 {sSTOFF}, s33, {ST}")
    em.e(f"s_mul_i32 s33, {sTT2}, {54*1024}"); em.e(f"s_add_u32 {sAOFF}, s33, {ACT}")
    em.e(f"s_mul_i32 s33, {sTT2}, 20480"); em.e(f"s_add_u32 {sOOFF}, s33, {OB}")
    def m64(reg, val):
        a = int(reg[2:].split(":")[0])
        em.e(f"s_mov_b32 s{a}, {hex(val & 0xffffffff)}"); em.e(f"s_mov_b32 s{a+1}, {hex(val >> 32)}")
    m64(sMK[0], 0xFFFF); m64(sMK[1], 0xFFFF0000); m64(sMK[2], 0x0F000F000F000F00); m64(sMK[3], 0xF000F000F000F000)
    m64(sMK[4], 0x0F00); m64(sMK[5], 0xF0000000)
    m64(sBIT2, 0xF0F0F0F0F0F0F0F0); m64(sI8, 0x00FF00FF00FF00FF)
    m64(sG23, 0xFFFFFFFF00000000); m64(sG3, 0xFFFF000000000000); m64(sMK32, 0x00000000FFFFFFFF)
    if stamps:
        em.e(f"s_mov_b32 s{sTS+4}, 0"); em.e(f"s_mov_b32 s{sTS+5}, 0"); em.e(f"s_mov_b32 s{sTS+3}, {256 if MONO else 0}")
        em.e(f"s_sub_u32 s33, 0, s44")
        if opt.get("lst", 0) or MONO:
            em.e(f"s_cmp_eq_u32 s2, {opt.get('wg2', 0)}"); em.e(f"s_cselect_b32 s{sTS+4}, s33, 0"); em.e(f"s_mov_b32 s{sTS+5}, s{sTS+4}")
        if opt.get("rt"):
            em.e(f"s_mov_b32 s{sTS+4}, s33"); em.e(f"s_mov_b32 s{sTS+5}, 0"); em.e(f"s_lshl_b32 s{sTS+3}, s2, 7")
        elif not opt.get("lst", 0) and not MONO:
            em.e("s_cmp_eq_u32 s2, 0"); em.e(f"s_cselect_b32 s{sTS+4}, s33, 0")
            em.e(f"s_cmp_eq_u32 s2, {opt.get('wg2', 255)}"); em.e(f"s_cselect_b32 s{sTS+4}, s33, s{sTS+4}"); em.e(f"s_mov_b32 s34, {256 if MONO else 0}"); em.e(f"s_mov_b32 s35, {384 if MONO else 128}"); em.e(f"s_cselect_b32 s{sTS+3}, s35, s34")
    if not MONO:
        em.e(f"s_getreg_b32 {sMODE}, hwreg(HW_REG_XCC_ID)")
        em.e(f"s_and_b32 {sMODE}, {sMODE}, 0xffff"); em.e(f"s_add_u32 {sMODE}, {sMODE}, 1")
        em.e(f"v_mov_b32 v254, {sMODE}"); em.e("v_mov_b32 v255, 0")
        em.e(f"s_add_u32 s33, {sFOWN}, {FLG_XCC - FLG_G}")
        em.e(f"s_mov_b64 exec, {sFEX}")
        em.e(f"buffer_store_dword v254, v255, {S_WS}, s33 offen sc1")
        em.e("s_mov_b64 exec, -1")
    em.e("v_and_b32 v212, 15, v0"); em.e("v_lshrrev_b32 v213, 4, v0")
    em.e(f"v_add_u32 {vR1}, 0x10000, {vL16}"); em.e(f"v_add_u32 {vR2}, 0x20000, {vL16}"); em.e(f"v_add_u32 {vL16B}, 20480, {vL16}")
    em.e(f"v_lshlrev_b32 {vI4}, 2, v212"); em.e(f"v_add_u32 {vI4}, 0x20000, {vI4}")
    em.e(f"s_lshl_b32 s33, {sW}, 8")
    em.e(f"v_add_u32 {vI4W}, s33, {vI4}")
    em.e(f"v_lshlrev_b32 {vG16}, 4, v213"); em.e(f"v_add_u32 {vG16}, 0x20000, {vG16}"); em.e(f"v_add_u32 {vG16W}, s33, {vG16}")
    em.e("v_lshrrev_b32 v214, 5, v0"); em.e("v_bfe_u32 v215, v0, 4, 1")
    em.e("v_lshlrev_b32 v216, 8, v214"); em.e("v_lshlrev_b32 v217, 4, v212"); em.e("v_add_u32 v216, v216, v217")
    em.e(f"v_mul_u32_u24 v217, 20480, v215"); em.e(f"v_add_u32 {vX3}, v216, v217")
    em.e(f"v_mul_u32_u24 v217, {54*1024}, v215"); em.e(f"v_add_u32 {vA3}, v216, v217")
    em.e(f"v_lshlrev_b32 {vH16}, 4, v214"); em.e(f"v_add_u32 {vH16}, 0x20000, {vH16}")
    em.e(f"v_lshlrev_b32 {vL8}, 3, v0"); em.e(f"v_add_u32 {vL8}, 0x20000, {vL8}")
    em.e(f"v_lshlrev_b32 {vSTO}, 8, v213"); em.e("v_lshlrev_b32 v214, 3, v212"); em.e(f"v_add_u32 {vSTO}, {vSTO}, v214")
    em.e(f"s_mul_i32 s33, {sM}, 3"); em.e("v_lshrrev_b32 v214, 5, v0"); em.e("v_add_u32 v214, s33, v214")
    em.e("v_lshrrev_b32 v215, 3, v214"); em.e("v_add_u32 v215, 48, v215"); em.e("v_lshlrev_b32 v215, 10, v215")
    em.e("v_and_b32 v216, 3, v214"); em.e("v_lshlrev_b32 v216, 8, v216"); em.e("v_add_u32 v215, v215, v216")
    em.e("v_lshlrev_b32 v216, 4, v212"); em.e("v_add_u32 v215, v215, v216")
    em.e("v_bfe_u32 v216, v214, 2, 1"); em.e("v_lshlrev_b32 v216, 3, v216"); em.e(f"v_add_u32 v215, v215, v216")
    em.e("v_bfe_u32 v216, v0, 4, 1"); em.e(f"v_mul_u32_u24 v216, {54*1024}, v216"); em.e(f"v_add_u32 {vACT6}, v215, v216")
    em.e(f"s_lshr_b32 s33, {sM}, 2"); em.e("s_add_u32 s33, s33, 16"); em.e("s_lshl_b32 s33, s33, 10")
    em.e(f"s_and_b32 s34, {sM}, 1"); em.e("s_lshl_b32 s34, s34, 9"); em.e("s_add_u32 s33, s33, s34")
    em.e(f"s_bfe_u32 s34, {sM}, 0x10001"); em.e("s_lshl_b32 s34, s34, 3"); em.e("s_add_u32 s33, s33, s34")
    em.e("s_sub_u32 s33, s33, 512")
    em.e("v_lshlrev_b32 v215, 8, v213"); em.e("v_lshlrev_b32 v216, 4, v212"); em.e("v_add_u32 v215, v215, v216")
    em.e(f"v_add_u32 {vOREM}, s33, v215")
    em.e("v_mul_u32_u24 v215, 1280, v212"); em.e("v_lshlrev_b32 v216, 3, v213"); em.e(f"v_add_u32 {vOUT}, v215, v216")
    if MONO:
        em.e(f"s_cmp_lg_u32 {sW}, 0"); em.e("s_cbranch_scc1 Lm_sb_o")
        em.e("v_lshlrev_b32 v252, 2, v0")
        em.e(f"s_mov_b32 {sSPIN}, 0")
        em.label("Lm_sb_p")
        em.e("global_load_dword v253, v252, s[82:83] sc1")
        em.raw("    s_waitcnt vmcnt(0)")
        em.e("v_and_b32 v254, 0x80808080, v253")
        em.e("v_cmp_ne_u32 vcc, 0x80808080, v254")
        em.e(f"s_add_u32 {sSPIN}, {sSPIN}, 1")
        em.e(f"s_cmp_gt_u32 {sSPIN}, 200000")
        em.e("s_cbranch_scc1 Lm_sb_x")
        em.e("s_cbranch_vccnz Lm_sb_p")
        em.label("Lm_sb_x")
        em.e("s_and_b32 s33, s2, 3"); em.e("s_lshl_b32 s33, s33, 3")
        em.e("v_lshrrev_b32 v253, s33, v253"); em.e("v_and_b32 v253, 0xff, v253")
        em.e(f"v_cmp_ne_u32 vcc, {sMODE}, v253")
        em.e("s_bfe_u32 s33, s2, 0x20002"); em.e("s_mov_b32 s34, 0x11111111"); em.e("s_lshl_b32 s34, s34, s33"); em.e("s_mov_b32 s35, s34")
        em.e("s_and_b64 vcc, vcc, s[34:35]")
        em.e("s_cmp_lg_u64 vcc, 0"); em.e("s_cselect_b32 s33, 1, 0")
        if opt.get("force_slow", 0): em.e("s_mov_b32 s33, 1")
        em.e("v_mov_b32 v253, s33"); em.e(f"v_mov_b32 v252, {MISC + 12288}")
        em.e("ds_write_b32 v252, v253")
        em.raw("    s_waitcnt lgkmcnt(0)")
        em.label("Lm_sb_o")
        em.e("s_barrier")
        em.e(f"v_mov_b32 v252, {MISC + 12288}")
        em.e("ds_read_b32 v253, v252")
        ring.emit(em, upto=2)
        em.raw("    s_waitcnt lgkmcnt(0)")
        em.e(f"v_readfirstlane_b32 {sMODE}, v253")
        if opt.get("sst"):
            em.e("s_memrealtime s[76:77]"); em.raw("    s_waitcnt lgkmcnt(0)")
            em.e("v_mov_b32 v236, s101"); em.e("v_mov_b32 v237, s100"); em.e("v_mov_b32 v238, s76"); em.e("v_mov_b32 v239, 0")
            em.e("s_lshl_b32 s33, s2, 4"); em.e("s_add_u32 s33, s33, 0x3000000"); em.e("v_mov_b32 v240, s33")
            em.e("s_mov_b64 exec, 1"); em.e("global_store_dwordx4 v240, v[236:239], s[4:5]"); em.e("s_mov_b64 exec, -1")
        if stamps:
            em.e("s_memtime s[76:77]"); em.raw("    s_waitcnt lgkmcnt(0)"); em.e("s_sub_u32 s97, s76, s92")
    em.e(f"s_mul_i32 s33, {sM}, 512"); em.e(f"s_add_u32 s33, s33, {CS1}")
    em.e(f"s_mul_i32 s34, {sM}, 896"); em.e(f"s_add_u32 s34, s34, {CS3}")
    em.e("v_and_b32 v214, 31, v0"); em.e("v_lshlrev_b32 v214, 4, v214"); em.e("v_lshrrev_b32 v215, 5, v0")
    em.e("v_mul_u32_u24 v215, 81920, v215"); em.e("v_add_u32 v214, v214, v215"); em.e("v_add_u32 v214, s33, v214")
    em.e(f"v_add_u32 v215, s34, {vL16}")
    em.e("v_mov_b32 v216, 0x7ffffff0")
    em.e("v_cmp_gt_u32 vcc, 56, v0"); em.e("v_cndmask_b32 v215, v216, v215, vcc")
    em.e(f"s_cmp_eq_u32 {sW}, 0"); em.e("s_mov_b32 s36, 14336"); em.e("s_cselect_b32 s36, 8192, s36"); em.e("s_cselect_b64 vcc, -1, 0")
    em.e("v_cndmask_b32 v214, v215, v214, vcc")
    em.e(f"s_cmp_ge_u32 {sW}, 2"); em.e("s_cselect_b64 vcc, -1, 0")
    em.e("v_cndmask_b32 v214, v214, v216, vcc")
    for k in range(10):
        em.e(f"buffer_load_dwordx4 v[{CSVB+4*k}:{CSVB+4*k+3}], v214, {S_WS}, 0 offen", vm="cs")
        if k < 9: em.e("v_add_u32 v214, s36, v214")
    RL = RLB
    em.e(f"s_lshr_b32 s33, {sC8}, 1"); em.e("s_mul_i32 s33, s33, 5")
    em.e(f"s_lshl_b32 s34, {sODD}, 1"); em.e("s_add_u32 s34, s34, s33")
    em.e(f"s_mul_i32 s35, {sTT1}, 20480"); em.e(f"s_add_u32 s35, s35, {XB}")
    em.e("s_lshl_b32 s34, s34, 10"); em.e("s_add_u32 s34, s34, s35")
    em.e(f"buffer_load_dwordx4 v[{RL}:{RL+3}], {vL16}, {S_WS}, s34 offen", vm="res")
    em.e(f"buffer_load_dwordx4 v[{RL+4}:{RL+7}], {vL16}, {S_WS}, s34 offen offset:1024", vm="res")
    em.e("s_add_u32 s33, s33, 4"); em.e("s_lshl_b32 s33, s33, 10"); em.e("s_add_u32 s33, s33, s35")
    em.e(f"s_lshl_b32 s34, {sODD}, 3"); em.e("s_add_u32 s33, s33, s34")
    em.e(f"buffer_load_dwordx2 v[{RL+8}:{RL+9}], {vL16}, {S_WS}, s33 offen", vm="res")

    def poll(line, target_expr_sreg, lbl):
        em.e(f"s_mov_b32 {sSPIN}, 0")
        em.e(f"v_subrev_u32 v252, 0x20000, {vI4}")
        em.label(lbl)
        em.e(f"buffer_load_dword v253, v252, {S_WS}, {line} offen sc1")
        em.raw("    s_waitcnt vmcnt(0)")
        em.e(f"v_cmp_gt_u32 vcc, {target_expr_sreg}, v253")
        em.e(f"s_add_u32 {sSPIN}, {sSPIN}, 1")
        em.e(f"s_cmp_gt_u32 {sSPIN}, 20000")
        em.e(f"s_cbranch_scc1 {lbl}_x")
        em.e(f"s_cbranch_vccnz {lbl}")
        em.label(lbl + "_x")
    uid = [0]
    def flag_store(own, val_sreg):
        em.e(f"v_mov_b32 v254, {val_sreg}")
        em.e("v_mov_b32 v255, 0")
        em.e(f"s_mov_b64 exec, {sFEX}")
        em.e(f"buffer_store_dword v254, v255, {S_WS}, {own} offen{cur['STO']}")
        em.e("s_mov_b64 exec, -1")
    def transition(pub, wait, last_round, sttags, need, d1, d2, upto2=None):
        uid[0] += 1; u = uid[0]
        ring.emit(em, d1, upto=upto2)
        em.wait(wvm=sttags)
        em.e("s_barrier")
        ring.allowed = max(ring.allowed, last_round + NR)
        em.e(f"s_add_u32 {sT0}, {sSTEP}, {pub}")
        flag_store(sFOWN, sT0)
        ring.emit(em, d2, upto=upto2)
        ring.emit(em, upto=need)
        assert ring.issued >= need
        em.e(f"s_cmp_lg_u32 {sW}, 0")
        em.e(f"s_cbranch_scc1 Lt{u}_o")
        em.e(f"s_add_u32 {sT0}, {sSTEP}, {wait}")
        poll(sFLINE, sT0, f"Lt{u}_p")
        em.label(f"Lt{u}_o")
        em.wait(wvm=[("dma", x) for x in range(ring.filled + 1, need + 1)], wlg=[("dmal", x) for x in range(ring.filled + 1, need + 1)])
        ring.filled = max(ring.filled, need)
        em.e("s_barrier")

    def a_loads(n_tiles, nblk, ph, tagname, areg, m32=False):
        ops = []
        sR, rset = ROTREG[ph]
        rot = opt.get("rot", 0)
        for b in range(nblk):
            if b == 0 and rot:
                ops += [Op(f"s_lshl_b32 {sRT}, {sR}, 10"), Op(f"s_add_u32 {sA}, {sA}, {sRT}")]
            if b % 4 == 0 and b > 0:
                ops.append(Op(f"s_add_u32 {sA}, {sA}, 4096"))
                if rot and (nblk - b) in rset:
                    ops += [Op(f"s_cmp_eq_u32 {sR}, {nblk - b}"), Op(f"s_cselect_b32 {sRT}, {nblk*1024}, 0"), Op(f"s_sub_u32 {sA}, {sA}, {sRT}")]
            for t in range(n_tiles):
                r = areg(b, t)
                va = vL16 if t == 0 else vL16B
                off = (b % 4) * 1024
                if m32: va = vX3; off += 512 * t
                ops.append(Op(f"buffer_load_dwordx4 a[{r}:{r+3}], {va}, {S_WS}, {sA} offen offset:{off}{cur['LD']}", vm=(tagname, b, t)))
        return ops

    def a_jobs(al, dl):
        jobs = []; pend = []
        for o in al:
            pend.append(o)
            if o.vm is not None:
                jobs.append((pend, dl(o.vm[1]))); pend = []
        return jobs
    def stats_ops(base):
        ops = []
        for t in range(2):
            a = base + 4 * t; nm = base + 8 + 2 * t; rs = nm + 1; x = base + 12; y = base + 13
            ops.append(Op(f"v_add_f32 v{a}, v{a}, v{a+2}", wvm=[("st", t)]))
            ops.append(f"v_add_f32 v{a+1}, v{a+1}, v{a+3}")
            for sw in ("v_permlane32_swap_b32", "v_permlane16_swap_b32"):
                ops.append(f"v_mov_b32 v{x}, v{a}"); ops.append(f"v_mov_b32 v{y}, v{a+1}")
                ops.append(f"{sw} v{a}, v{x}"); ops.append(f"{sw} v{a+1}, v{y}")
                ops.append(f"v_add_f32 v{a}, v{a}, v{x}"); ops.append(f"v_add_f32 v{a+1}, v{a+1}, v{y}")
            ops.append(f"v_mul_f32 v{nm}, {hex(INV640 | 0x80000000)}, v{a}")
            ops.append(f"v_mul_f32 v{a+1}, {hex(INV640)}, v{a+1}")
            ops.append(f"v_fma_f32 v{a+1}, -v{nm}, v{nm}, v{a+1}")
            ops.append(f"v_max_f32 v{a+1}, 0, v{a+1}")
            ops.append(f"v_add_f32 v{a+1}, {hex(EPS5)}, v{a+1}")
            ops.append((Op(f"v_rsq_f32 v{rs}, v{a+1}"), 2))
        return ops
    def stats_loads(base):
        ops = []
        ops.append(Op(f"s_mul_i32 {sST}, {sXI}, {ST_SZ}"))
        ops.append(Op(f"s_lshl_b32 {sST2}, {sTT2}, 10"))
        ops.append(Op(f"s_add_u32 {sST}, {sST}, {sST2}"))
        ops.append(Op(f"s_add_u32 {sST}, {sST}, {ST}"))
        for t in range(2):
            a = base + 4 * t
            ops.append(Op(f"buffer_load_dwordx2 v[{a}:{a+1}], {vSTO}, {S_WS}, {sST} offen offset:{t*1024}{cur['LD']}", vm=("st", t)))
            ops.append(Op(f"buffer_load_dwordx2 v[{a+2}:{a+3}], {vSTO}, {S_WS}, {sST} offen offset:{t*1024+128}{cur['LD']}", vm=("st", t)))
        return ops
    def set_sA_x():
        em.e(f"s_mul_i32 {sA}, {sXI}, {X_SZ}"); em.e(f"s_mul_i32 {sT0}, {sTT2}, 20480")
        em.e(f"s_add_u32 {sA}, {sA}, {sT0}"); em.e(f"s_add_u32 {sA}, {sA}, {XB}")

    def phi_ops(acc, cs, nm, rs, rl, t1, t2):
        return [f"v_fmac_f32 v{acc}, v{nm}, v{cs}",
                f"v_mul_f32 v{t1}, v{acc}, v{rl}",
                (Op(f"v_exp_f32 v{t1}, v{t1} clamp"), 2),
                f"v_max_f32 v{acc}, 0, v{acc}",
                f"v_add_f32 v{t1}, {hex(EPS6)}, v{t1}",
                f"v_fma_f32 v{acc}, v{acc}, v{rs}, v{t1}"]
    def il(lists):
        out = []; k = 0
        while any(k < len(l) for l in lists):
            for l in lists:
                if k < len(l): out.append(l[k])
            k += 1
        return out
    def lin(ops):
        for o in ops:
            if isinstance(o, tuple): o = o[0]
            em.op(o)

    def reuse(): return cur["sfx"] == "F" and opt.get("reuse", 1)
    def LB(): return "0" if reuse() else sLAYER
    def pt(voff, srd, soff, imm=0):
        sc = {0: "", 1: " sc1", 2: " sc0", 3: " nt", 4: " sc0 sc1"}[opt.get("ptsc", 0)]
        if voff is None: return Op(f"buffer_load_dword {PTD}, off, {srd}, {soff} offset:{imm}{sc}", vm="pt")
        return Op(f"buffer_load_dword {PTD}, {voff}, {srd}, {soff} offen offset:{imm}{sc}", vm="pt")
    PTM = opt.get("ptm", 1); PTK = opt.get("ptk", 31)
    def PS(): return S_WSN if PTM == 2 else S_WS
    def pt_x(srd):
        return [f"s_mov_b32 {sP0}, 1" if reuse() else f"s_add_u32 {sP0}, {sXI}, 1", f"s_mul_i32 {sP1}, {sP0}, {X_SZ}", f"s_add_u32 {sP1}, {sP1}, {sXOFF}",
                pt(vL16, srd, sP1), pt(vL16, srd, sP1, 1024),
                f"s_add_u32 {sP1}, {sP1}, {sXREM}", pt(vL16, srd, sP1),
                f"s_mul_i32 {sP0}, {sP0}, {ST_SZ}", f"s_add_u32 {sP0}, {sP0}, {sSTOFF}", pt(None, srd, sP0)]
    def pt_act(p):
        ops = [f"s_mul_i32 {sP0}, {LB()}, {ACT_SZ}", f"s_add_u32 {sP0}, {sP0}, {sAOFF}"]
        if p < 3:
            ops += [f"s_lshl_b32 {sP1}, {sM}, 10", f"s_add_u32 {sP0}, {sP0}, {sP1}"]
            if p: ops.append(f"s_add_u32 {sP0}, {sP0}, {p*16384}")
            ops += [pt(vL16, PS(), sP0), f"s_add_u32 {sP0}, {sP0}, {54*1024}", pt(vL16, PS(), sP0)]
        else:
            ops += [pt(vACT6, PS(), sP0)]
        return ops
    def pt_o():
        return [f"s_mul_i32 {sP0}, {LB()}, {O_SZ}", f"s_add_u32 {sP0}, {sP0}, {sOOFF}",
                pt(vOREM, PS(), sP0), f"s_add_u32 {sP0}, {sP0}, 20480", pt(vOREM, PS(), sP0),
                f"s_lshl_b32 {sP1}, {sM}, 10", f"s_add_u32 {sP0}, {sP0}, {sP1}", pt(vL16, PS(), sP0), f"s_sub_u32 {sP0}, {sP0}, 20480", pt(vL16, PS(), sP0)]
    def pt_place(seg, ops, g):
        if cur["sfx"] != "F" or not opt.get("pt", 1): return g
        for o in ops:
            if isinstance(o, list): g = seg.group(o, g, maxcost=seg.cap - 1)
            else: g = seg.place(o, g)
        return g
    def pt_jobs(ops, earliest, dl):
        if cur["sfx"] != "F" or not opt.get("pt", 1): return []
        jobs = []; pend = []
        for o in ops:
            if isinstance(o, list):
                jobs.append((pend + [x if isinstance(x, Op) else Op(x) for x in o], dl, earliest)); pend = []
            elif isinstance(o, Op) and o.vm is not None:
                jobs.append((pend + [o], dl, earliest)); pend = []
            else: pend.append(o if isinstance(o, Op) else Op(o))
        assert not pend
        return jobs
    def pf_place(seg, ph, off, key, nxt=False): pass
    def pf_now(ph, off, key, nxt=False): pass
    def prologue_end():
        if opt.get("xh", 1) and not MONO:
            em.e(f"s_add_u32 s33, {sFLINE}, {FLG_XCC - FLG_G}")
            em.e(f"v_subrev_u32 v252, 0x20000, {vI4}")
            em.e(f"buffer_load_dword v251, v252, {S_WS}, s33 offen sc1")
        if PTM == 3 and opt.get("ptpos", 0) == 0: pt_all()
        ring.emit(em, upto=HEAD)
        if PTM == 3 and opt.get("ptpos", 0) == 1: pt_all()
        assert ring.issued == HEAD and not ring.q
    def pt_all():
        ops = (pt_o() if PTK & 1 else []) + (pt_x(S_WS) if PTK & 2 else []) + (pt_act(0) if PTK & 4 else [])
        if PTK & 8: ops += pt_act(1) + pt_act(2) + pt_act(3)
        for o in ops: em.op(o if isinstance(o, Op) else Op(o))
    def K1():
        AX = lambda b, t: 80 * t + 4 * b
        SB = TMP
        NM4 = 226
        P1 = ACC
        set_sA_x()
        seg = Seg(); ws = WStream(ring, seg, "K1", SS=SS)
        fu = {}; lu = {}
        for b in range(20):
            for t in range(5):
                f = b * 5 + t; wr = ws.wreg(f)
                for tok in range(2):
                    d = P1 + 8 * t + 4 * tok
                    c = "0" if b == 0 else f"v[{d}:{d+3}]"
                    wl = [("w", "K1", b * 5 + 4)] if (t == 0 and tok == 0) else None
                    wv = [("a", b, 1)] if (t == 0 and tok == 0) else None
                    i = seg.mfma(f"v_mfma_f32_16x16x32_bf16 v[{d}:{d+3}], a[{AX(b,tok)}:{AX(b,tok)+3}], v[{wr}:{wr+3}], {c}", wvm=wv, wlg=wl)
                    if t == 0 and tok == 0: g0 = i
                    fu.setdefault(f, g0); lu[f] = i
        al = a_loads(2, 20, "K1", "a", AX)
        sl = stats_loads(SB)
        for o in sl: seg.put(0, o, 0)
        ws.reads(list(range(100)), fu, lu, force=(6,))
        ws.vmem(a_jobs(al, lambda b: 10 * b - 30), lambda r: 0 if r <= 6 else opt.get("k1w", 0), margin=MARG, qd=QD, rate=opt.get("r1", 38) / 10.0)
        so = stats_ops(SB)
        for t in range(2):
            nm = SB + 8 + 2 * t
            so.append(Op(f"ds_write_b32 {vI4W}, v{nm} offset:{L_STAT + t*128}", lg="sw"))
            so.append(Op(f"ds_write_b32 {vI4W}, v{nm+1} offset:{L_STAT + t*128 + 64}", lg="sw"))
        for t in range(2):
            so.append(Op(f"ds_read_b128 v[{NM4+8*t}:{NM4+8*t+3}], {vG16W} offset:{L_STAT + t*128}", lg="sr", wlg=["sw"]))
            so.append(Op(f"ds_read_b128 v[{NM4+8*t+4}:{NM4+8*t+7}], {vG16W} offset:{L_STAT + t*128 + 64}", lg="sr"))
        for t in range(2):
            for r in range(4):
                so.append(Op(f"v_mul_f32 v{242+4*t+r}, {hex(LOG2E)}, v{NM4+8*t+4+r}", wlg=["sr"]))
        seg.stream(so, 40)
        pf_place(seg, "K2", 0, "po")
        for g in ((1, 50, 100, 150) if not opt.get('ls2') else range(1, 200, 20)): lstamp(seg, g)
        seg.emit(em)
        stamp()
        em.e(f"s_cmp_lg_u32 {sLAYER}, 0"); em.e(f"s_cbranch_scc1 Lk1_nocs{cur['sfx']}")
        svm = list(em.vm); slg = list(em.lg)
        for k in range(1, 10):
            for q in range(4): em.e(f"v_add_f32 v{CSVB+q}, v{CSVB+q}, v{CSVB+4*k+q}")
        for q in range(4):
            em.e(f"v_mov_b32 v{CSVB+4+q}, v{CSVB+q}"); em.e(f"v_mov_b32 v{CSVB+8+q}, v{CSVB+q}")
        for q in range(4):
            em.e(f"v_permlane32_swap_b32 v{CSVB+4+q}, v{CSVB+8+q}")
        em.e(f"s_cmp_eq_u32 {sW}, 0"); em.e("s_cselect_b64 vcc, -1, 0")
        for q in range(4):
            em.e(f"v_add_f32 v{CSVB+4+q}, v{CSVB+4+q}, v{CSVB+8+q}")
            em.e(f"v_cndmask_b32 v{CSVB+q}, v{CSVB+q}, v{CSVB+4+q}, vcc")
        em.e(f"s_cmp_eq_u32 {sW}, 0"); em.e(f"s_mov_b32 {sT0}, {L_CS3}"); em.e(f"s_cselect_b32 {sT0}, {L_CS1}, {sT0}"); em.e(f"s_cselect_b32 {sT1}, 32, 56")
        em.e(f"s_cmp_ge_u32 {sW}, 2"); em.e(f"s_cselect_b32 {sT1}, 0, {sT1}")
        em.e(f"v_add_u32 v254, {sT0}, {vR2}")
        em.e(f"v_lshrrev_b32 v255, 4, {vL16}")
        em.e(f"v_cmp_gt_u32 vcc, {sT1}, v255")
        em.e("s_and_saveexec_b64 s[34:35], vcc")
        em.e(f"ds_write_b128 v254, v[{CSVB}:{CSVB+3}]")
        em.e("s_mov_b64 exec, s[34:35]")
        for q in range(10):
            em.e(f"v_lshlrev_b32 v{RES+2*q}, 16, v{RLB+q}")
            em.e(f"v_and_b32 v{RES+2*q+1}, 0xffff0000, v{RLB+q}")
        em.raw("    s_waitcnt lgkmcnt(0)")
        em.e("s_barrier")
        if cur["sfx"] == "F" and not MONO:
            uid[0] += 1; u = uid[0]
            em.e(f"s_add_u32 {sT1}, {sFLINE}, {FLG_XCC - FLG_G}")
            if opt.get("xh", 1):
                em.e(f"v_mov_b32 v253, v251")
                em.e(f"v_cmp_gt_u32 vcc, 1, v253")
                em.e(f"s_cbranch_vccz Lx{u}_p_x")
            poll(sT1, "1", f"Lx{u}_p")
            em.e(f"v_cmp_ne_u32 vcc, {sMODE}, v253")
            if opt.get("force_slow", 0): em.e("s_branch Lk1_nocsS")
            em.e("s_cbranch_vccnz Lk1_nocsS")
        em.label(f"Lk1_nocs{cur['sfx']}")
        em.vm = svm; em.lg = []
        em.raw("    s_waitcnt lgkmcnt(0)")
        if not opt.get('k1n', 1):
            CS = 140
            for t in range(5):
                em.e(f"ds_read_b32 v{CS+t}, {vI4} offset:{L_CS1 + t*64}", lg="cs")
            KF = 148
            T1, T2 = 172, 173
            def nmr(tok, r): return NM4 + 8 * tok + r
            def rsr(tok, r): return NM4 + 8 * tok + 4 + r
            def rlr(tok, r): return 242 + 4 * tok + r
            em.wait(wlg=["cs"])
            XV = 176
            ops = []
            streams = []
            tmpc = [180]
            for (t, fr_) in ((0, KF), (1, KF + 4), (4, KF + 16)):
                for tok in range(2):
                    for r in range(4):
                        a = P1 + 8 * t + 4 * tok + r
                        tt = 184 + (len(streams) % 8)
                        if t == 4:
                            s_ = [f"v_fmac_f32 v{a}, v{nmr(tok,r)}, v{CS+t}",
                                  f"v_mul_f32 v{XV+4*tok+r}, v{a}, v{rsr(tok,r)}",
                                  f"v_mul_f32 v{tt}, v{a}, v{rlr(tok,r)}",
                                  f"v_exp_f32 v{tt}, v{tt} clamp",
                                  f"v_max_f32 v{a}, 0, v{a}",
                                  f"v_add_f32 v{tt}, {hex(EPS6)}, v{tt}",
                                  f"v_fma_f32 v{a}, v{a}, v{rsr(tok,r)}, v{tt}"]
                        else:
                            s_ = [x[0] if isinstance(x, tuple) else x for x in phi_ops(a, CS + t, nmr(tok, r), rsr(tok, r), rlr(tok, r), tt, None)]
                        streams.append(s_)
            for k in range(0, len(streams), 4):
                lin(il(streams[k:k + 4]))
                ring.emit(em, 4)
            for t in (2, 3):
                for tok in range(2):
                    for r in range(4):
                        a = P1 + 8 * t + 4 * tok + r
                        em.e(f"v_fmac_f32 v{a}, v{nmr(tok,r)}, v{CS+t}")
                    for r in range(4):
                        a = P1 + 8 * t + 4 * tok + r
                        em.e(f"v_mul_f32 v{a}, v{a}, v{rsr(tok,r)}")
            for k in range(8):
                em.e(f"v_cndmask_b32 v{XV+k}, v{XV+k}, 1.0, {sI8}")
            def pack(dst, src_tok0, src_tok1):
                em.e(f"v_cvt_pk_bf16_f32 v{dst}, v{src_tok0}, v{src_tok0+1}"); em.e(f"v_cvt_pk_bf16_f32 v{dst+1}, v{src_tok0+2}, v{src_tok0+3}")
                em.e(f"v_cvt_pk_bf16_f32 v{dst+2}, v{src_tok1}, v{src_tok1+1}"); em.e(f"v_cvt_pk_bf16_f32 v{dst+3}, v{src_tok1+2}, v{src_tok1+3}")
            K0f, K1f, V0f, V1f, XKf, XPf = KF, KF + 4, KF + 8, KF + 12, KF + 16, KF + 20
            pack(K0f, P1 + 0, P1 + 4); pack(K1f, P1 + 8, P1 + 12); pack(V0f, P1 + 16, P1 + 20); pack(V1f, P1 + 24, P1 + 28)
            pack(XKf, P1 + 32, P1 + 36); pack(XPf, XV, XV + 4)
            D = 184
            for k, (A_, B_) in enumerate([(K0f, V0f), (K1f, V1f), (XKf, V0f), (XKf, V1f), (K0f, XPf), (K1f, XPf), (XKf, XPf)]):
                em.e(f"v_mfma_f32_16x16x32_bf16 v[{D+4*k}:{D+4*k+3}], v[{A_}:{A_+3}], v[{B_}:{B_+3}], 0")
            D1, D2, D3, D4, D5, D6, D7 = [D + 4 * k for k in range(7)]
            for r in range(4):
                em.e(f"v_cndmask_b32 v{D5+r}, v{D5+r}, v{D6+r}, {sBIT2}")
                em.e(f"v_cndmask_b32 v{D3+r}, v{D3+r}, v{D4+r}, {sMK[1]}")
            for r in range(4):
                em.e(f"v_permlane32_swap_b32 v{D3+r}, v{D7+r}")
            ring.emit(em, upto=13)
            assert ring.issued <= 13 and ring.next_round() <= 14 and not ring.q and ws.lastbar >= 6, (ring.issued, ws.lastbar)
            RP = (14 % NR) * 16384 - 65536
            em.e(f"v_add_u32 v254, {sW1K}, {vR1}"); em.e(f"v_add_u32 v255, {sW4K}, {vR1}")
            for t, src in enumerate((D1, D2, D5, D3)):
                em.e(f"ds_write_b128 v254, v[{src}:{src+3}] offset:{RP + t*4096}", lg="red")
            em.wait_all_lg()
            em.wait(wvm=[("dma", x) for x in range(ring.filled + 1, 9)])
            ring.filled = 8
            em.e("s_barrier")
            for k in range(4):
                em.e(f"ds_read_b128 v[{D+4*k}:{D+4*k+3}], v255 offset:{RP + k*1024}", lg=("rr", k))
            em.e(f"s_mul_i32 {sST}, {sLAYER}, {KVP_L}"); em.e(f"s_lshl_b32 {sST2}, {sM}, 16"); em.e(f"s_add_u32 {sST}, {sST}, {sST2}")
            em.e(f"s_add_u32 {sST}, {sST}, {KVP}"); em.e(f"s_add_u32 {sST}, {sST}, {sW1K}")
            em.e(f"s_lshl_b32 {sST2}, {sG}, 12"); em.e(f"s_add_u32 {sST2}, {sST2}, {sST}")
            for q in range(4): em.e(f"v_add_f32 v{D+q}, v{D+q}, v{D+4+q}", wlg=[("rr", 1)] if q == 0 else None)
            for q in range(4): em.e(f"v_add_f32 v{D+8+q}, v{D+8+q}, v{D+12+q}", wlg=[("rr", 3)] if q == 0 else None)
            for q in range(4): em.e(f"v_add_f32 v{D+q}, v{D+q}, v{D+8+q}")
            em.e(f"buffer_store_dwordx4 v[{D}:{D+3}], {vL16}, {S_WS}, {sST2} offen sc1", vm="kvst")
            stamp()
            P2 = ACC
            seg = Seg(); ws2 = WStream(ring, seg, "K1", SS=SS)
            fu = {}; lu = {}
            for b in range(20):
                for t in range(3):
                    f = 100 + 3 * b + t; wr = ws2.wreg(f)
                    for tok in range(2):
                        d = P2 + 8 * t + 4 * tok
                        c = "0" if b == 0 else f"v[{d}:{d+3}]"
                        wl = [("w", "K1", 100 + 3 * b + 2)] if (t == 0 and tok == 0) else None
                        i = seg.mfma(f"v_mfma_f32_16x16x32_bf16 v[{d}:{d+3}], v[{wr}:{wr+3}], a[{AX(b,tok)}:{AX(b,tok)+3}], {c}", wlg=wl)
                        if t == 0 and tok == 0: g0 = i
                        fu.setdefault(f, g0); lu[f] = i
            ws2.reads(list(range(100, 160)), fu, lu, nobar=(7, 8))
            assert len(ws2.events) == 1
            gb = ws2.events[0][0]
            for o in seg.gaps[gb]:
                if o.text == "s_barrier": o.wvm = list(o.wvm) + ["kvst"]
            pub = [Op(f"s_add_u32 {sT0}, {sLAYER}, 1"),
                   Op(f"v_mov_b32 v254, {sT0}"), Op("v_mov_b32 v255, 0"),
                   Op(f"s_mov_b64 exec, {sFEX}"),
                   Op(f"buffer_store_dword v254, v255, {S_WS}, {sKOWN} offen sc1"),
                   Op("s_mov_b64 exec, -1")]
            g = seg.stream(pub[:3], gb - 6)
            assert g < gb
            for o in pub[3:]: seg.put(gb + 1, o, 1)
            g = pt_place(seg, pt_o(), 2)
            g = pt_place(seg, pt_x(S_WS), g)
            g = pt_place(seg, pt_act(0), g)
            pf_place(seg, "K3", 32768, "pa1"); pf_place(seg, "K3", 32768 + 65536, "pa2"); pf_place(seg, "K3", 32768 + 2*65536, "pa3"); pf_place(seg, "K3", 32768 + 3*65536, "pa4")
            ws2.vmem([], lambda r: 0, margin=MARG, qd=QD, rate=RATE)
            CS4 = 140
            seg.stream([Op(f"ds_read_b128 v[{CS4+4*t}:{CS4+4*t+3}], {vG16} offset:{L_CS1 + (5+t)*64}", lg="cs4") for t in range(3)], 60)
            RLI = 152
            seg.stream([f"v_mul_f32 v{RLI+t}, {hex(LOG2E)}, v{SB+8+2*t+1}" for t in range(2)], 70)
            seg.emit(em)
            stamp()
            em.wait(wlg=["cs4"])
            streams = []
            for t in range(3):
                for tok in range(2):
                    for r in range(4):
                        a = P2 + 8 * t + 4 * tok + r
                        tt = 184 + (len(streams) % 8)
                        streams.append([x[0] if isinstance(x, tuple) else x for x in phi_ops(a, CS4 + 4 * t + r, SB + 8 + 2 * tok, SB + 8 + 2 * tok + 1, RLI + tok, tt, None)])
            for k in range(0, len(streams), 4):
                lin(il(streams[k:k + 4]))
                ring.emit(em, 2)
            F = 156
            for tok in range(2):
                qa = P2 + 4 * tok; qb = P2 + 8 + 4 * tok; qx = P2 + 16 + 4 * tok
                fa = F + 8 * tok; fb = fa + 4
                em.e(f"v_cvt_pk_bf16_f32 v{fa}, v{qa}, v{qa+1}"); em.e(f"v_cvt_pk_bf16_f32 v{fa+1}, v{qa+2}, v{qa+3}")
                em.e(f"v_cvt_pk_bf16_f32 v{fa+2}, v{qx}, v{qx+1}"); em.e(f"v_cvt_pk_bf16_f32 v{fa+3}, v{qx+2}, v{qx+3}")
                em.e(f"v_cvt_pk_bf16_f32 v{fb}, v{qb}, v{qb+1}"); em.e(f"v_cvt_pk_bf16_f32 v{fb+1}, v{qb+2}, v{qb+3}")
                em.e(f"v_mov_b32 v{fb+2}, v{fa+2}"); em.e(f"v_mov_b32 v{fb+3}, v{fa+3}")
            uid[0] += 1; u = uid[0]
            em.e(f"s_cmp_lg_u32 {sW}, 0")
            em.e(f"s_cbranch_scc1 Lkv{u}_o")
            em.e(f"s_add_u32 {sT0}, {sLAYER}, 1")
            poll(sKLINE, sT0, f"Lkv{u}_p")
            em.label(f"Lkv{u}_o")
            em.e("s_barrier")
            ring.allowed = max(ring.allowed, 18)
            KL = 172
            for Gp in range(16):
                if Gp % 1 == 0: em.e(f"s_add_u32 {sST2}, {sST}, {Gp*4096}")
                em.e(f"buffer_load_dwordx4 v[{KL+4*Gp}:{KL+4*Gp+3}], {vL16}, {S_WS}, {sST2} offen sc1", vm=("kl", Gp))
            ring.emit(em, upto=18)
            pf_now("K3", 32768, "pb1"); pf_now("K3", 32768 + 65536, "pb2"); pf_now("K3", 32768 + 2*65536, "pb3"); pf_now("K3", 32768 + 3*65536, "pb4")
            for Gp in range(1, 16):
                for q in range(4):
                    em.e(f"v_add_f32 v{KL+q}, v{KL+q}, v{KL+4*Gp+q}", wvm=[("kl", Gp)] if q == 0 else None)
        else:
            CS = 140
            for t in range(5):
                em.e(f"ds_read_b32 v{CS+t}, {vI4} offset:{L_CS1 + t*64}", lg="cs")
            KF = 148
            def nmr(tok, r): return NM4 + 8 * tok + r
            def rsr(tok, r): return NM4 + 8 * tok + 4 + r
            def rlr(tok, r): return 242 + 4 * tok + r
            XV = 172
            TT = 180
            P2 = 188
            em.e(f"s_mul_i32 {sST}, {sLAYER}, {KVP_L}"); em.e(f"s_lshl_b32 {sST2}, {sM}, 16"); em.e(f"s_add_u32 {sST}, {sST}, {sST2}")
            em.e(f"s_add_u32 {sST}, {sST}, {KVP}"); em.e(f"s_add_u32 {sST}, {sST}, {sW1K}")
            em.e(f"s_lshl_b32 {sST2}, {sG}, 12"); em.e(f"s_add_u32 {sST2}, {sST2}, {sST}")
            em.e(f"v_add_u32 v254, {sW1K}, {vR1}"); em.e(f"v_add_u32 v255, {sW4K}, {vR1}")
            seg = Seg(); ws2 = WStream(ring, seg, "K1", SS=SS)
            fu = {}; lu = {}
            for b in range(20):
                for t in range(3):
                    f = 100 + 3 * b + t; wr = ws2.wreg(f)
                    for tok in range(2):
                        d = P2 + 8 * t + 4 * tok
                        c = "0" if b == 0 else f"v[{d}:{d+3}]"
                        wl = [("w", "K1", 100 + 3 * b + 2)] if (t == 0 and tok == 0) else None
                        i = seg.mfma(f"v_mfma_f32_16x16x32_bf16 v[{d}:{d+3}], v[{wr}:{wr+3}], a[{AX(b,tok)}:{AX(b,tok)+3}], {c}", wlg=wl)
                        if t == 0 and tok == 0: g0 = i
                        fu.setdefault(f, g0); lu[f] = i
            assert ring.filled == 6, ring.filled
            ws2.reads(list(range(100, 144)), fu, lu)
            assert len(ws2.events) == 1 and ws2.events[0][2] == 8, ws2.events
            ws2.events[0] = (ws2.events[0][0], 13, 8)
            streams = []
            def phi_stream(t):
                for tok in range(2):
                    for r in range(4):
                        a = P1 + 8 * t + 4 * tok + r
                        tt = TT + (len(streams) % 8)
                        if t == 4:
                            s_ = [f"v_fmac_f32 v{a}, v{nmr(tok,r)}, v{CS+t}",
                                  f"v_mul_f32 v{XV+4*tok+r}, v{a}, v{rsr(tok,r)}",
                                  f"v_mul_f32 v{tt}, v{a}, v{rlr(tok,r)}",
                                  (Op(f"v_exp_f32 v{tt}, v{tt} clamp"), 2),
                                  f"v_max_f32 v{a}, 0, v{a}",
                                  f"v_add_f32 v{tt}, {hex(EPS6)}, v{tt}",
                                  f"v_fma_f32 v{a}, v{a}, v{rsr(tok,r)}, v{tt}"]
                        else:
                            s_ = phi_ops(a, CS + t, nmr(tok, r), rsr(tok, r), rlr(tok, r), tt, None)
                        streams.append(s_)
            for t in (0, 1, 4): phi_stream(t)
            ko = []
            for k in range(0, len(streams), 4): ko += il(streams[k:k + 4])
            o0 = ko[0]; o0 = Op(o0, wlg=["cs"]); ko[0] = o0
            for t in (2, 3):
                for tok in range(2):
                    for r in range(4):
                        a = P1 + 8 * t + 4 * tok + r
                        ko.append(f"v_fmac_f32 v{a}, v{nmr(tok,r)}, v{CS+t}")
                    for r in range(4):
                        a = P1 + 8 * t + 4 * tok + r
                        ko.append(f"v_mul_f32 v{a}, v{a}, v{rsr(tok,r)}")
            for k in range(8):
                ko.append(f"v_cndmask_b32 v{XV+k}, v{XV+k}, 1.0, {sI8}")
            def pack(dst, src_tok0, src_tok1):
                return [f"v_cvt_pk_bf16_f32 v{dst}, v{src_tok0}, v{src_tok0+1}", f"v_cvt_pk_bf16_f32 v{dst+1}, v{src_tok0+2}, v{src_tok0+3}",
                        f"v_cvt_pk_bf16_f32 v{dst+2}, v{src_tok1}, v{src_tok1+1}", f"v_cvt_pk_bf16_f32 v{dst+3}, v{src_tok1+2}, v{src_tok1+3}"]
            K0f, K1f, V0f, V1f, XKf, XPf = KF, KF + 4, KF + 8, KF + 12, KF + 16, KF + 20
            ko += pack(K0f, P1 + 0, P1 + 4) + pack(K1f, P1 + 8, P1 + 12) + pack(XKf, P1 + 32, P1 + 36) + pack(V0f, P1 + 16, P1 + 20) + pack(V1f, P1 + 24, P1 + 28) + pack(XPf, XV, XV + 4)
            KCAP = opt.get("kcap", 5)
            g = seg.stream(ko, 0, cap=KCAP)
            D = 100
            g += 1
            for k, (A_, B_) in enumerate([(K0f, V0f), (K1f, V1f), (XKf, V0f), (XKf, V1f), (K0f, XPf), (K1f, XPf), (XKf, XPf)]):
                seg.put(g + k // 2, f"v_mfma_f32_16x16x32_bf16 v[{D+4*k}:{D+4*k+3}], v[{A_}:{A_+3}], v[{B_}:{B_+3}], 0", 2)
            g += 5
            D1, D2, D3, D4, D5, D6, D7 = [D + 4 * k for k in range(7)]
            RP = (14 % NR) * 16384 - 65536
            ko = [Op(f"ds_write_b128 v254, v[{D1}:{D1+3}] offset:{RP}", lg="red"), Op(f"ds_write_b128 v254, v[{D2}:{D2+3}] offset:{RP + 4096}", lg="red")]
            for r in range(4):
                ko.append(f"v_cndmask_b32 v{D5+r}, v{D5+r}, v{D6+r}, {sBIT2}")
            for r in range(4):
                ko.append(f"v_cndmask_b32 v{D3+r}, v{D3+r}, v{D4+r}, {sMK[1]}")
            ko.append(Op(f"ds_write_b128 v254, v[{D5}:{D5+3}] offset:{RP + 2*4096}", lg="red"))
            for r in range(4):
                ko.append(f"v_permlane32_swap_b32 v{D3+r}, v{D7+r}")
            g = seg.stream(ko, g, cap=KCAP)
            g = seg.put(g + 1, Op(f"ds_write_b128 v254, v[{D3}:{D3+3}] offset:{RP + 3*4096}", lg="red"), 1)
            gR = g + opt.get("kgb", 3)
            seg.put(gR, Op("s_barrier", wvm=[("dma", 9)], wlg=["red"]), 2)
            for k in range(4):
                seg.put(gR, Op(f"ds_read_b128 v[{D+4*k}:{D+4*k+3}], v255 offset:{RP + k*1024}", lg=("rr", k)), 1)
            assert gR < fu[144] - 1, (gR, fu[144])
            ws2.events.append((gR, 13, 9))
            g = gR + opt.get("kga", 4)
            ko = []
            for q in range(4): ko.append(Op(f"v_add_f32 v{D+q}, v{D+q}, v{D+4+q}", wlg=[("rr", 1)] if q == 0 else None))
            for q in range(4): ko.append(Op(f"v_add_f32 v{D+8+q}, v{D+8+q}, v{D+12+q}", wlg=[("rr", 3)] if q == 0 else None))
            for q in range(4): ko.append(Op(f"v_add_f32 v{D+q}, v{D+q}, v{D+8+q}"))
            KVH = opt.get("kvh", 1)
            if KVH:
                ko.insert(0, Op(f"v_lshrrev_b32 v254, 1, {vL16}"))
                ko += [Op(f"v_cvt_pk_bf16_f32 v{D}, v{D}, v{D+1}"), Op(f"v_cvt_pk_bf16_f32 v{D+1}, v{D+2}, v{D+3}")]
                ko.append(Op(f"buffer_store_dwordx2 v[{D}:{D+1}], v254, {S_WS}, {sST2} offen sc1", vm="kvst"))
            else:
                ko.append(Op(f"buffer_store_dwordx4 v[{D}:{D+3}], {vL16}, {S_WS}, {sST2} offen sc1", vm="kvst"))
            gS = seg.stream(ko, g, cap=4)
            ws2.events.append((g + 4, 14, 9))
            ring.filled = 9
            ev = list(ws2.events)
            ws2.reads(list(range(144, 160)), fu, lu, ming=gR + 1)
            assert ws2.events == ev
            pj = pt_jobs((pt_o() if PTK & 1 else []) + (pt_x(PS()) if PTK & 2 else []) + (pt_act(0) if PTK & 4 else []), opt.get("ptg", 40), 119) if PTM != 3 else []
            pq = []
            if opt.get("ptq", 0): pq = pj; pj = []
            ws2.vmem(pj, lambda r: 0, margin=MARG, qd=opt.get("qs2", 4), rate=opt.get("rs2", 35) / 10.0, cap=KCAP + 2, burst0=False)
            CS4 = 140
            seg.stream([Op(f"ds_read_b128 v[{CS4+4*t}:{CS4+4*t+3}], {vG16} offset:{L_CS1 + (5+t)*64}", lg="cs4") for t in range(3)], gS + 1)
            RLI = 152
            seg.stream([f"v_mul_f32 v{RLI+t}, {hex(LOG2E)}, v{SB+8+2*t+1}" for t in range(2)], gS + 4)
            sys.stderr.write(f"S2: gR {gR} gS {gS} ev {ws2.events}\n")
            if opt.get('ls2'):
                for g in range(1, 108, 7): lstamp(seg, g)
            seg.emit(em)
            stamp()
            KL = WW
            NL = 8 if KVH else 16
            KA = WW + 32
            vKV = "v255" if KVH else vL16
            K1SC = "" if opt.get("kvp", 1) else " sc1"
            if KVH:
                em.e(f"v_and_b32 v254, 0x200, {vL16}"); em.e("v_lshlrev_b32 v254, 3, v254"); em.e(f"v_and_b32 v255, 0x1f0, {vL16}"); em.e("v_add_u32 v255, v255, v254")
            def kl_loads(tag):
                for Gp in range(NL):
                    em.e(f"s_add_u32 {sST2}, {sST}, {Gp*4096*(16//NL)}")
                    em.e(f"buffer_load_dwordx4 v[{KL+4*Gp}:{KL+4*Gp+3}], {vKV}, {S_WS}, {sST2} offen sc1", vm=(tag, Gp) if tag else None)
            streams = []
            for t in range(3):
                for tok in range(2):
                    for r in range(4):
                        a = P2 + 8 * t + 4 * tok + r
                        tt = TT + (len(streams) % 8)
                        streams.append([x[0] if isinstance(x, tuple) else x for x in phi_ops(a, CS4 + 4 * t + r, SB + 8 + 2 * tok, SB + 8 + 2 * tok + 1, RLI + tok, tt, None)])
            qops = []
            for k in range(0, len(streams), 4): qops += il(streams[k:k + 4])
            F = 156
            for tok in range(2):
                qa = P2 + 4 * tok; qb = P2 + 8 + 4 * tok; qx = P2 + 16 + 4 * tok
                fa = F + 8 * tok; fb = fa + 4
                qops += [f"v_cvt_pk_bf16_f32 v{fa}, v{qa}, v{qa+1}", f"v_cvt_pk_bf16_f32 v{fa+1}, v{qa+2}, v{qa+3}",
                         f"v_cvt_pk_bf16_f32 v{fa+2}, v{qx}, v{qx+1}", f"v_cvt_pk_bf16_f32 v{fa+3}, v{qx+2}, v{qx+3}",
                         f"v_cvt_pk_bf16_f32 v{fb}, v{qb}, v{qb+1}", f"v_cvt_pk_bf16_f32 v{fb+1}, v{qb+2}, v{qb+3}",
                         f"v_mov_b32 v{fb+2}, v{fa+2}", f"v_mov_b32 v{fb+3}, v{fa+3}"]
            KLS = opt.get("kls", 6)
            first = True
            for k, o in enumerate(qops):
                if k % KLS == 0 and k // KLS < NL:
                    Gp = k // KLS
                    em.e(f"s_add_u32 {sST2}, {sST}, {Gp*4096*(16//NL)}")
                    em.e(f"buffer_load_dwordx4 v[{KL+4*Gp}:{KL+4*Gp+3}], {vKV}, {S_WS}, {sST2} offen{K1SC}", vm=("kl", Gp))
                elif k % (KLS if not pq else opt.get("ptqs", 3)) == 0 and k // KLS >= NL and pq:
                    for o2 in pq.pop(0)[0]: em.op(o2)
                elif k % KLS == 0: ring.emit(em, 1)
                if first: em.wait(wlg=["cs4"]); first = False
                em.op(o)
            for j in pq:
                for o2 in j[0]: em.op(o2)
            stamp()
            uid[0] += 1; u = uid[0]
            em.e(f"s_mov_b32 {sSPIN}, 0")
            if KVH:
                em.e(f"s_mov_b32 {sP0}, 0x3f80"); em.e(f"s_mov_b32 {sP1}, 0x3f800000")
                em.wait(wvm=[("kl", 0)])
                em.label(f"Lkv{u}_s")
                for q in range(8): em.e(f"v_mov_b32 v{KA+q}, 0")
                for Gp in range(8):
                    for q in range(4):
                        em.e(f"v_dot2c_f32_bf16 v{KA+2*q}, {sP0}, v{KL+4*Gp+q}", wvm=[("kl", Gp)] if q == 0 else None)
                        em.e(f"v_dot2c_f32_bf16 v{KA+2*q+1}, {sP1}, v{KL+4*Gp+q}")
                em.e(f"v_cmp_u_f32 vcc, v{KA}, v{KA+2}"); em.e(f"v_cmp_u_f32 s[34:35], v{KA+4}, v{KA+6}")
            else:
                for Gp in range(1, 16):
                    if Gp == 1:
                        em.wait(wvm=[("kl", 1)])
                        em.label(f"Lkv{u}_s")
                    for q in range(4):
                        em.e(f"v_add_f32 v{KL+q}, v{KL+q}, v{KL+4*Gp+q}", wvm=[("kl", Gp)] if q == 0 else None)
                em.e(f"v_cmp_u_f32 vcc, v{KL}, v{KL+1}"); em.e(f"v_cmp_u_f32 s[34:35], v{KL+2}, v{KL+3}")
            em.e(f"s_or_b64 vcc, vcc, s[34:35]")
            em.e(f"s_cbranch_vccz Lkv{u}_o")
            em.e(f"s_add_u32 {sSPIN}, {sSPIN}, 1"); em.e(f"s_cmp_gt_u32 {sSPIN}, 20000"); em.e(f"s_cbranch_scc1 Lkv{u}_o")
            kl_loads(None)
            em.raw("    s_waitcnt vmcnt(0)")
            em.e(f"s_branch Lkv{u}_s")
            em.label(f"Lkv{u}_o")
        if opt.get('k1n', 1) and KVH:
            for q in range(4): em.e(f"v_permlane32_swap_b32 v{KA+q}, v{KA+4+q}")
            for q in range(4): em.e(f"v_add_f32 v{KA+q}, v{KA+q}, v{KA+4+q}")
            em.e(f"v_cvt_pk_bf16_f32 v{KL}, v{KA}, v{KA+1}"); em.e(f"v_cvt_pk_bf16_f32 v{KL+1}, v{KA+2}, v{KA+3}")
            em.e(f"v_and_b32 v254, 0x1f0, {vL16}"); em.e(f"v_lshrrev_b32 v255, 6, {vL16}"); em.e("v_and_b32 v255, 8, v255"); em.e("v_add_u32 v254, v254, v255")
            em.e(f"s_lshl_b32 {sT0}, {sW}, 9"); em.e(f"s_add_u32 {sT0}, {sT0}, 0x20000"); em.e(f"v_add_u32 v254, {sT0}, v254")
        else:
            em.e(f"v_cvt_pk_bf16_f32 v{KL}, v{KL}, v{KL+1}"); em.e(f"v_cvt_pk_bf16_f32 v{KL+1}, v{KL+2}, v{KL+3}")
            em.e(f"s_lshl_b32 {sT0}, {sW}, 9"); em.e(f"v_add_u32 v254, {sT0}, {vL8}")
        em.e(f"ds_write_b64 v254, v[{KL}:{KL+1}] offset:{L_KVB}", lg="kw")
        em.wait_all_lg()
        em.e("s_barrier")
        if opt.get('k1n', 1):
            ring.allowed = max(ring.allowed, 18)
            ring.emit(em, upto=18)
            pf_now("K3", 32768, "pb1"); pf_now("K3", 32768 + 65536, "pb2")
        R_ = 176
        for t in range(4):
            em.e(f"ds_read_b64 v[{R_+2*t}:{R_+2*t+1}], {vL8} offset:{L_KVB + t*512}", lg="kr")
        em.e(f"v_xor_b32 v254, 256, {vL8}")
        em.e(f"ds_read_b64 v[{R_+8}:{R_+9}], v254 offset:{L_KVB + 3*512}", lg="kr")
        em.e(f"v_and_b32 v254, 0xfffffe7f ^ 0, {vL8}" if False else f"v_lshlrev_b32 v254, 3, {vG16}")
        em.e(f"v_and_b32 v254, 0x3ff, v254")
        em.e(f"v_add_u32 v254, 0x20000, v254")
        em.e(f"ds_read_b64 v[{R_+10}:{R_+11}], v254 offset:{L_KVB + 2*512}", lg="kr")
        em.e(f"ds_read_b64 v[{R_+12}:{R_+13}], v254 offset:{L_KVB + 2*512 + 32}", lg="kr")
        em.e("v_mov_b32 v255, 0x20000")
        em.e(f"ds_read_b64 v[{R_+14}:{R_+15}], v255 offset:{L_KVB + 3*512 + 32*8}", lg="kr")
        em.e(f"ds_read_b64 v[{R_+16}:{R_+17}], v255 offset:{L_KVB + 3*512 + 52*8}", lg="kr")
        em.wait_all_lg()
        t1, t2, t3, t4, t4x, za, zb, zxa, zxb = [R_ + 2 * k for k in range(9)]
        AF = 196
        Aa, Ab, Axa, Axb, Aza, Azb = [AF + 4 * k for k in range(6)]
        mg0, mg1, ma, mb, mga, mgb = sMK
        def cp(dst, src):
            em.e(f"v_mov_b32 v{dst}, v{src}"); em.e(f"v_mov_b32 v{dst+1}, v{src+1}")
        def mk(dst, src, m):
            em.e(f"v_cndmask_b32 v{dst}, 0, v{src}, {m}"); em.e(f"v_cndmask_b32 v{dst+1}, 0, v{src+1}, {m}")
        cp(Aa, t1); mk(Aa + 2, t4, mg0)
        cp(Ab, t2); mk(Ab + 2, t4, mg1)
        mk(Axa, t3, ma); mk(Axa + 2, t4x, mga)
        mk(Axb, t3, mb); mk(Axb + 2, t4x, mgb)
        cp(Aza, za); mk(Aza + 2, zxa, mg0)
        cp(Azb, zb); mk(Azb + 2, zxb, mg1)
        O = 100
        for tok in range(2):
            fa = F + 8 * tok; fb = fa + 4; o = O + 20 * tok
            em.e(f"v_mfma_f32_16x16x32_bf16 v[{o+12}:{o+15}], v[{Aza}:{Aza+3}], v[{fa}:{fa+3}], 0")
            em.e(f"v_mfma_f32_16x16x32_bf16 v[{o+16}:{o+19}], v[{Azb}:{Azb+3}], v[{fb}:{fb+3}], 0")
            em.e(f"v_mfma_f32_16x16x32_bf16 v[{o}:{o+3}], v[{Aa}:{Aa+3}], v[{fa}:{fa+3}], 0")
            em.e(f"v_mfma_f32_16x16x32_bf16 v[{o+4}:{o+7}], v[{Ab}:{Ab+3}], v[{fb}:{fb+3}], 0")
            em.e(f"v_mfma_f32_16x16x32_bf16 v[{o+8}:{o+11}], v[{Axa}:{Axa+3}], v[{fa}:{fa+3}], 0")
            em.e(f"v_mfma_f32_16x16x32_bf16 v[{o+8}:{o+11}], v[{Axb}:{Axb+3}], v[{fb}:{fb+3}], v[{o+8}:{o+11}]")
        em.e(f"s_mul_i32 {sST}, {LB()}, {O_SZ}"); em.e(f"s_mul_i32 {sST2}, {sTT2}, 20480"); em.e(f"s_add_u32 {sST}, {sST}, {sST2}")
        em.e(f"s_add_u32 {sST}, {sST}, {OB}")
        em.e(f"s_lshl_b32 {sST2}, {sM}, 10"); em.e(f"s_add_u32 {sST2}, {sST2}, {sST}")
        for tok in range(2):
            o = O + 20 * tok
            em.e(f"v_add_f32 v{o+12}, {hex(EPS6)}, v{o+12}"); em.e(f"v_add_f32 v{o+16}, {hex(EPS6)}, v{o+16}")
            em.e(f"v_rcp_f32 v{o+12}, v{o+12}"); em.e(f"v_rcp_f32 v{o+16}, v{o+16}")
            em.e(f"v_cndmask_b32 v{o+13}, v{o+12}, v{o+16}, {sG3}")
            for r in range(4):
                em.e(f"v_mul_f32 v{o+r}, v{o+r}, v{o+12}"); em.e(f"v_mul_f32 v{o+4+r}, v{o+4+r}, v{o+16}")
                em.e(f"v_mul_f32 v{o+8+r}, v{o+8+r}, v{o+13}")
            em.e(f"v_cvt_pk_bf16_f32 v{o}, v{o}, v{o+1}"); em.e(f"v_cvt_pk_bf16_f32 v{o+1}, v{o+2}, v{o+3}")
            em.e(f"v_cvt_pk_bf16_f32 v{o+2}, v{o+4}, v{o+5}"); em.e(f"v_cvt_pk_bf16_f32 v{o+3}, v{o+6}, v{o+7}")
            em.e(f"v_cvt_pk_bf16_f32 v{o+8}, v{o+8}, v{o+9}"); em.e(f"v_cvt_pk_bf16_f32 v{o+9}, v{o+10}, v{o+11}")
            va = vL16 if tok == 0 else vL16B
            em.e(f"buffer_store_dwordx4 v[{o}:{o+3}], {va}, {S_WS}, {sST2} offen{cur['STO']}", vm="ost")
            if tok == 1: em.e(f"s_add_u32 {sST}, {sST}, 20480")
            em.e(f"s_mov_b64 exec, {sG23}")
            em.e(f"buffer_store_dwordx2 v[{o+8}:{o+9}], {vOREM}, {S_WS}, {sST} offen{cur['STO']}", vm="ost")
            em.e("s_mov_b64 exec, -1")

    def K24(ph, nblk, final_possible):
        AX = lambda b, t: 4 * b
        if ph == "K2":
            em.e(f"s_mul_i32 {sA}, {LB()}, {O_SZ}"); em.e(f"s_mul_i32 {sT0}, {sTT1}, 20480"); em.e(f"s_add_u32 {sA}, {sA}, {sT0}"); em.e(f"s_add_u32 {sA}, {sA}, {OB}")
        else:
            em.e(f"s_mul_i32 {sA}, {LB()}, {ACT_SZ}"); em.e(f"s_mul_i32 {sT0}, {sTT1}, {54*1024}"); em.e(f"s_add_u32 {sA}, {sA}, {sT0}"); em.e(f"s_add_u32 {sA}, {sA}, {ACT}")
        seg = Seg(); ws = WStream(ring, seg, ph, SS=SS, LA=opt.get("la4", 10))
        fu = {}; lu = {}; wa = {}
        for b in range(nblk):
            for t in range(5):
                f = b * 5 + t; wr = ws.wreg(f); d = RES + 4 * t
                wv = [("a", b, 0)] if t == 0 else None
                i = seg.mfma(f"v_mfma_f32_16x16x32_bf16 v[{d}:{d+3}], v[{wr}:{wr+3}], a[{4*b}:{4*b+3}], v[{d}:{d+3}]", wvm=wv, wlg=[("w", ph, b * 5 + 4)] if t == 0 else None)
                fu[f] = i; lu[f] = i; wa[f] = 5 * b
        al = a_loads(1, nblk, ph, "a", AX)
        if ph == "K2" and DBG.get("stg", 0):
            for o in (f"v_add_u32 {vSTG0}, {sW4K}, {vL16}", f"v_add_u32 {vSTG1}, {sW4K}, {vR1}", f"v_add_u32 {vSTG2}, {sW4K}, {vR2}"): seg.put(0, o, 1)
        if ph == "K2":
            ws.reads(list(range(nblk * 5)), fu, lu, nobar=(12, 16), force=(14,), wait_at=wa)
            ws.vmem(a_jobs(al, lambda b: 5 * b - 30), lambda r: opt.get("k2w", 0), margin=MARG, qd=QD, rate=opt.get("r2", 35) / 10.0)
        else:
            ws.reads(list(range(nblk * 5)), fu, lu, wait_at=wa)
            ws.vmem(a_jobs(al, lambda b: 5 * b - 30), lambda r: 0 if r < 52 else opt.get("k4w", 0), margin=MARG, qd=QD, rate=opt.get("r4", 28) / 10.0)
        g = 0
        if ph == "K4":
            if PTK & 16 and PTM != 3: pt_place(seg, pt_x(S_WSN), opt.get("k4pt", 170))
            pf_place(seg, "K1", 0, "pf1", True); pf_place(seg, "K1", 65536, "pf2", True); pf_place(seg, "K1", 131072, "pf3", True)
        else:
            pf_place(seg, "K3", 32768 + 2*65536, "pg3"); pf_place(seg, "K3", 32768 + 3*65536, "pg4")
        if not opt.get('ls2'):
            for g in range(1, nblk * 5 - 13, 30): lstamp(seg, g)
        seg.emit(em)
        stamp()
        P = TMP
        for t in range(5):
            em.e(f"v_cvt_pk_bf16_f32 v{P+2*t}, v{RES+4*t}, v{RES+4*t+1}"); em.e(f"v_cvt_pk_bf16_f32 v{P+2*t+1}, v{RES+4*t+2}, v{RES+4*t+3}")
        uid[0] += 1; u = uid[0]
        if final_possible:
            em.e(f"s_cmp_eq_u32 {sLAYER}, 1"); em.e(f"s_cbranch_scc1 Lfin{u}")
        em.e(f"s_mov_b32 {sXI}, 1" if reuse() else f"s_add_u32 {sXI}, {sXI}, 1")
        em.e(f"s_mul_i32 {sST}, {sXI}, {X_SZ}"); em.e(f"s_mul_i32 {sT0}, {sTT1}, 20480"); em.e(f"s_add_u32 {sST}, {sST}, {sT0}"); em.e(f"s_add_u32 {sST}, {sST}, {XB}")
        em.e(f"s_lshr_b32 {sT0}, {sC8}, 1"); em.e(f"s_mul_i32 {sT0}, {sT0}, 5")
        em.e(f"s_lshl_b32 {sT1}, {sODD}, 1"); em.e(f"s_add_u32 {sT1}, {sT1}, {sT0}"); em.e(f"s_lshl_b32 {sT1}, {sT1}, 10"); em.e(f"s_add_u32 {sT1}, {sT1}, {sST}")
        em.e(f"buffer_store_dwordx4 v[{P}:{P+3}], {vL16}, {S_WS}, {sT1} offen{cur['STO']}", vm="xst")
        em.e(f"buffer_store_dwordx4 v[{P+4}:{P+7}], {vL16}, {S_WS}, {sT1} offen offset:1024{cur['STO']}", vm="xst")
        em.e(f"s_add_u32 {sT0}, {sT0}, 4"); em.e(f"s_lshl_b32 {sT0}, {sT0}, 10"); em.e(f"s_add_u32 {sT0}, {sT0}, {sST}")
        em.e(f"s_lshl_b32 {sT1}, {sODD}, 3"); em.e(f"s_add_u32 {sT0}, {sT0}, {sT1}")
        em.e(f"buffer_store_dwordx2 v[{P+8}:{P+9}], {vL16}, {S_WS}, {sT0} offen{cur['STO']}", vm="xst")
        a, b_, x, y = 224, 225, 226, 227
        em.e(f"v_add_f32 v{a}, v{RES}, v{RES+1}"); em.e(f"v_mul_f32 v{b_}, v{RES}, v{RES}"); em.e(f"v_fmac_f32 v{b_}, v{RES+1}, v{RES+1}")
        em.e(f"v_add_f32 v{x}, v{RES+2}, v{RES+3}"); em.e(f"v_mul_f32 v{y}, v{RES+2}, v{RES+2}"); em.e(f"v_fmac_f32 v{y}, v{RES+3}, v{RES+3}")
        for k in range(4, 20, 2):
            em.e(f"v_add_f32 v{a}, v{a}, v{RES+k}"); em.e(f"v_fmac_f32 v{b_}, v{RES+k}, v{RES+k}")
            em.e(f"v_add_f32 v{x}, v{x}, v{RES+k+1}"); em.e(f"v_fmac_f32 v{y}, v{RES+k+1}, v{RES+k+1}")
        em.e(f"v_add_f32 v{a}, v{a}, v{x}"); em.e(f"v_add_f32 v{b_}, v{b_}, v{y}")
        for sw in ("v_permlane32_swap_b32", "v_permlane16_swap_b32"):
            em.e(f"v_mov_b32 v{x}, v{a}"); em.e(f"v_mov_b32 v{y}, v{b_}")
            em.e(f"{sw} v{a}, v{x}"); em.e(f"{sw} v{b_}, v{y}")
            em.e(f"v_add_f32 v{a}, v{a}, v{x}"); em.e(f"v_add_f32 v{b_}, v{b_}, v{y}")
        em.e(f"s_mul_i32 {sST}, {sXI}, {ST_SZ}"); em.e(f"s_lshl_b32 {sT0}, {sTT1}, 10"); em.e(f"s_add_u32 {sST}, {sST}, {sT0}")
        em.e(f"s_lshl_b32 {sT0}, {sC8}, 7"); em.e(f"s_add_u32 {sST}, {sST}, {sT0}"); em.e(f"s_add_u32 {sST}, {sST}, {ST}")
        em.e(f"s_mov_b64 exec, {sMK[0]}")
        em.e(f"buffer_store_dwordx2 v[{a}:{a+1}], {vSTO}, {S_WS}, {sST} offen{cur['STO']}", vm="xst")
        em.e("s_mov_b64 exec, -1")
        if final_possible:
            em.e(f"s_branch Lfin{u}_x")
            em.label(f"Lfin{u}")
            em.e(f"s_mul_i32 {sST}, {sTT1}, {16*1280}"); em.e(f"s_mul_i32 {sT0}, {sC8}, 160"); em.e(f"s_add_u32 {sST}, {sST}, {sT0}")
            for t in range(5):
                em.e(f"buffer_store_dwordx2 v[{P+2*t}:{P+2*t+1}], {vOUT}, {S_OUT}, {sST} offen offset:{t*32}")
            em.raw("    s_waitcnt vmcnt(0)")
            stamp(); nstamp[0] -= 1
            dump_stamps()
            em.e("s_endpgm")
            em.label(f"Lfin{u}_x")

    def K3():
        AX = lambda b, s_: 8 * b + 4 * s_
        SB = TMP
        NM, C1, KK, VST = 220, 221, 222, 223
        set_sA_x()
        seg = Seg(cap=opt.get("k3cap", 6)); ws = WStream(ring, seg, "K3", SS=SS, LA=opt.get("la3", 5))
        fu = {}; lu = {}
        pend = []
        for f in range(280): ws.wreg(f)
        def acc(t): return ACC + 16 * t
        B1 = opt.get("k3b", 12)
        groups = [(b, p) for b in range(B1) for p in range(3)] + [(b, p) for p in range(3) for b in range(B1, 20)] + [(b, 3) for b in range(20)]
        afirst = {}
        seen_a = set()
        pend = [0, 0, 0, 0]
        for (b, p) in groups:
            ts = (2 * p, 2 * p + 1) if p < 3 else (6,)
            first = True
            for s_ in range(2):
                for t in ts:
                    f = pw3_index(b, t, s_, B1); wr = ws.wreg(f)
                    d = acc(t)
                    c = "0" if (b == 0 and s_ == 0) else f"v[{d}:{d+15}]"
                    wl = [("w", "K3", pw3_index(b, ts[-1], 1, B1))] if first else None
                    wv = [("a", b, 1)] if (b not in seen_a and first) else None
                    i = seg.mfma(f"v_mfma_f32_32x32x16_bf16 v[{d}:{d+15}], v[{wr}:{wr+3}], a[{AX(b,s_)}:{AX(b,s_)+3}], {c}", wvm=wv, wlg=wl)
                    if first: g0 = i
                    if b not in seen_a: seen_a.add(b); afirst[b] = i
                    first = False
                    fu.setdefault(f, g0); lu[f] = i
            pend[p] = seg.n()
        al = a_loads(2, 20, "K3", "a", AX, m32=True)
        ws.reads(list(range(280)), fu, lu)
        ws.vmem(a_jobs(al, lambda b: afirst[b] - opt.get("a3l", 12)), lambda r: opt.get("k3w", 0), margin=opt.get("m3", 70), qd=opt.get("q3", QD // 2), rate=opt.get("r3", 38) / 20.0)
        so = [f"v_and_b32 v{VST}, 0xf0, {vL16}", f"v_lshrrev_b32 v{VST}, 1, v{VST}", f"v_and_b32 v{NM}, 0x200, {vL16}", f"v_add_u32 v{VST}, v{VST}, v{NM}",
              f"v_and_b32 v{NM}, 0x100, {vL16}", f"v_lshlrev_b32 v{NM}, 2, v{NM}", f"v_add_u32 v{VST}, v{VST}, v{NM}",
              f"s_mul_i32 {sST}, {sXI}, {ST_SZ}", f"s_lshl_b32 {sST2}, {sTT2}, 10", f"s_add_u32 {sST}, {sST}, {sST2}", f"s_add_u32 {sST}, {sST}, {ST}"]
        for q in range(4):
            so.append(Op(f"buffer_load_dwordx2 v[{SB+2*q}:{SB+2*q+1}], v{VST}, {S_WS}, {sST} offen offset:{q*128}{cur['LD']}", vm=("st", q)))
        g = seg.stream(so, 2)
        a, b_, x, y = SB, SB + 1, SB + 2, SB + 3
        so = [Op(f"v_add_f32 v{a}, v{a}, v{SB+2}", wvm=[("st", 3)]), f"v_add_f32 v{b_}, v{b_}, v{SB+3}",
              f"v_add_f32 v{SB+4}, v{SB+4}, v{SB+6}", f"v_add_f32 v{SB+5}, v{SB+5}, v{SB+7}",
              f"v_add_f32 v{a}, v{a}, v{SB+4}", f"v_add_f32 v{b_}, v{b_}, v{SB+5}",
              f"v_mov_b32 v{x}, v{a}", f"v_mov_b32 v{y}, v{b_}",
              f"v_permlane32_swap_b32 v{a}, v{x}", f"v_permlane32_swap_b32 v{b_}, v{y}",
              f"v_add_f32 v{a}, v{a}, v{x}", f"v_add_f32 v{b_}, v{b_}, v{y}",
              f"v_mul_f32 v{NM}, {hex(INV640 | 0x80000000)}, v{a}", f"v_mul_f32 v{KK}, {hex(INV640)}, v{b_}",
              f"v_fma_f32 v{KK}, -v{NM}, v{NM}, v{KK}", f"v_max_f32 v{KK}, 0, v{KK}", f"v_add_f32 v{KK}, {hex(EPS5)}, v{KK}",
              (Op(f"v_rsq_f32 v{C1}, v{KK}"), 2), f"v_mul_f32 v{C1}, {hex(LOG2E | 0x80000000)}, v{C1}"]
        g = seg.stream(so, max(g, 30))
        so = [f"s_mul_i32 {sST}, {LB()}, {ACT_SZ}", f"s_mul_i32 {sST2}, {sTT2}, {54*1024}", f"s_add_u32 {sST}, {sST}, {sST2}",
              f"s_add_u32 {sST}, {sST}, {ACT}", f"s_lshl_b32 {sST2}, {sM}, 10", f"s_add_u32 {sST2}, {sST2}, {sST}"]
        g = seg.stream(so, max(g, 50))
        CSR = 226
        ET = 242
        def epi(t):
            ops = []
            for mat in range(2):
                for hh in range(2):
                    r = CSR + 8 * mat + 4 * hh
                    ops.append(Op(f"ds_read_b128 v[{r}:{r+3}], {vH16} offset:{L_CS3 + (2*t+mat)*64 + 32*hh}", lg=("c3", t)))
            d = acc(t)
            first = True
            for e in range(8):
                ops.append(Op(f"v_fmac_f32 v{d+e}, v{NM}, v{CSR+e}", wlg=[("c3", t)] if first else None)); first = False
                ops.append(f"v_fmac_f32 v{d+8+e}, v{NM}, v{CSR+8+e}")
            for k in range(0, 8, 4):
                streams = []
                for e in range(k, k + 4):
                    g_ = d + e; u_ = d + 8 + e; e_ = ET + e
                    streams.append([f"v_mul_f32 v{e_}, v{g_}, v{C1}",
                                    (Op(f"v_exp_f32 v{e_}, v{e_}"), 2),
                                    f"v_mul_f32 v{g_}, v{g_}, v{u_}",
                                    f"v_fma_f32 v{e_}, v{e_}, v{KK}, v{KK}",
                                    (Op(f"v_rcp_f32 v{e_}, v{e_}"), 2),
                                    f"v_mul_f32 v{g_}, v{g_}, v{e_}"])
                ops += il(streams)
            PK = d + 8
            for q in range(4): ops.append(f"v_cvt_pk_bf16_f32 v{PK+q}, v{d+2*q}, v{d+2*q+1}")
            if t < 6:
                ops.append(Op(f"s_add_u32 {sT0}, {sST2}, {(t >> 1) * 16384 + (t & 1) * 512}"))
                ops.append(Op(f"buffer_store_dwordx4 v[{PK}:{PK+3}], {vA3}, {S_WS}, {sT0} offen{cur['STO']}", vm="ast"))
            else:
                ops.append(Op(f"buffer_store_dwordx2 v[{PK}:{PK+1}], {vACT6}, {S_WS}, {sST} offen{cur['STO']}", vm="ast"))
                ops.append(Op(f"s_mov_b64 exec, {sMK32}"))
                ops.append(Op(f"buffer_store_dwordx2 v[{PK+2}:{PK+3}], {vA3}, {S_WS}, {sP2} offen{cur['STO']}", vm="ast"))
                ops.append(Op("s_mov_b64 exec, -1"))
            return ops
        if PTK & 8 and PTM != 3:
            for p in range(1, 4): pt_place(seg, pt_act(p), max(20, pend[p - 1] - opt.get("pt3", 25)))
        ge = 0
        for p in range(3):
            for t in (2 * p, 2 * p + 1):
                ge = seg.stream(epi(t), max(pend[p] + 3, ge))
        so = [f"s_mul_i32 {sP0}, {sM}, 3", f"s_add_u32 {sP0}, {sP0}, 2", f"s_lshr_b32 {sP1}, {sP0}, 3", f"s_add_u32 {sP1}, {sP1}, 48", f"s_lshl_b32 {sP1}, {sP1}, 10",
              f"s_add_u32 {sP2}, {sST}, {sP1}", f"s_and_b32 {sP1}, {sP0}, 3", f"s_lshl_b32 {sP1}, {sP1}, 8", f"s_add_u32 {sP2}, {sP2}, {sP1}",
              f"s_bfe_u32 {sP1}, {sP0}, 0x10002", f"s_lshl_b32 {sP1}, {sP1}, 3", f"s_add_u32 {sP2}, {sP2}, {sP1}"]
        seg.stream(so, 225)
        if not opt.get('ls2'):
            for g in range(1, 268, 20): lstamp(seg, g)
        sys.stderr.write(f"K3: epilogue stream ends at gap {ge}; cost hist {[sum(1 for c in seg.cost if c == k) for k in range(12)]}\n")
        seg.emit(em)
        stamp()
        lin(epi(6))

    def finish_if(p):
        if stop <= 8 and (stop - 1) % 4 + 1 == p:
            lay = (stop - 1) // 4
            em.e(f"s_cmp_lg_u32 {sLAYER}, {lay}"); em.e(f"s_cbranch_scc1 Lstop{p}{cur['sfx']}")
            em.raw("    s_waitcnt vmcnt(0) lgkmcnt(0)")
            dump_stamps()
            em.e("s_endpgm")
            em.label(f"Lstop{p}{cur['sfx']}")
    prologue_end()
    em.vm = [t for t in em.vm if isinstance(t, tuple) and t[0] == "dma"]
    head_vm = list(em.vm)
    cnt0 = WStream.cnt
    if MONO and stamps and not opt.get("lst", 0):
        em.e("v_writelane_b32 v0, s96, 62"); em.e("v_writelane_b32 v0, s97, 63")
    if MONO:
        em.e(f"s_cmp_lg_u32 {sMODE}, 0"); em.e("s_cbranch_scc1 Lm_layerS")
    for sfx, sto in (("F", ""), ("S", " sc1")):
        cur["sfx"] = sfx; cur["STO"] = sto; cur["LD"] = sto if not opt.get("ldsc1", 1) else " sc1"
        nstamp[0] = 0; lsn[0] = 0
        WStream.cnt = cnt0
        em.label(f"Lm_layer{sfx}")
        em.vm = list(head_vm); em.lg = []
        ring.filled = -1; ring.issued = HEAD; ring.allowed = 8; ring.q = []
        em.e(f"s_cmp_eq_u32 {sLAYER}, 1"); em.e(f"s_cselect_b32 s14, 0, {WS_END}")
        stamp()
        K1(); stamp(); finish_if(1)
        transition(1, 1, 9, ["ost"], 16, 0, 0); stamp()
        K24("K2", 20, False); stamp(); finish_if(2)
        transition(2, 2, 16, ["xst"], 18, opt.get("d21", 40), opt.get("d22", 0)); stamp()
        K3(); stamp(); finish_if(3)
        transition(4, 4, 34, ["ast"], 36, opt.get("d31", 40), opt.get("d32", 0)); stamp()
        K24("K4", 54, True); stamp(); finish_if(4)
        transition(5, 5, 53, ["xst"], 53, opt.get("d41", 40), 100, upto2=54 + HEAD)
        stamp()
        assert ring.issued == 54 + HEAD and not ring.q, (ring.issued, ring.q)
        em.e(f"s_add_u32 {sLAYER}, {sLAYER}, 1"); em.e(f"s_add_u32 {sSTEP}, {sSTEP}, 5")
        em.e(f"s_branch Lm_layer{sfx}")
    em.label("Lm_done")
    em.e("s_endpgm")
    return em.lines


def build(opt):
    if opt.get("mono", 0):
        ml = gen_main(opt)
        ml, n2 = fix_hazards(ml)
        ref = open("interleave_layers__linear_attn_block__swiglu_ffn__prompt.s.ref").read() if opt.get("hdr", False) else ""
        hdr = [l for l in ref.split("\n") if l.startswith(";") and "@launch" not in l and "Override launch" not in l and "grid=ceil" not in l]
        out = hdr + [f"; @launch grid=(256,1,1) block=(256,1,1) lds={MAIN_LDS}",
               '.amdgcn_target "amdgcn-amd-amdhsa--gfx950"', ".text",
               f".globl {KNAME}", ".p2align 8", f".type {KNAME},@function"] + ml + [kdesc(KNAME, 512, 256, 102)]
        sys.stderr.write(f"nops inserted: main {n2}; main lines {len(ml)}\n")
        return "\n".join(out)
    pl = gen_prep("prep_kernel", stamp=opt.get("stamps", 0), k3b=opt.get("k3b", 12), wsoff=opt.get("wsoff", 0) << 20, zf=opt.get("zf", 0))
    if opt.get("pst"):
        sfx = {1: " sc1", 2: " nt", 3: " sc0 sc1", 4: " sc1 nt"}[opt["pst"]]
        pl = [l + sfx if "buffer_store" in l else l for l in pl]
    pl, n1 = fix_hazards(pl)
    ml = gen_main(opt)
    ml, n2 = fix_hazards(ml)
    ref = open("interleave_layers__linear_attn_block__swiglu_ffn__prompt.s.ref").read() if opt.get("hdr", False) else ""
    hdr = [l for l in ref.split("\n") if l.startswith(";") and "@launch" not in l and "Override launch" not in l and "grid=ceil" not in l]
    out = hdr + [f"; @launch kernel=prep_kernel grid=({PREP_WGS},1,1) block=(256,1,1) lds={PREP_LDS}",
           f"; @launch kernel={KNAME} grid=(256,1,1) block=(256,1,1) lds={MAIN_LDS}",
           '.amdgcn_target "amdgcn-amd-amdhsa--gfx950"', ".text",
           ".globl prep_kernel", ".p2align 8", ".type prep_kernel,@function"] + pl + \
          [f".globl {KNAME}", ".p2align 8", f".type {KNAME},@function"] + ml + \
          [kdesc("prep_kernel", 112, 112), kdesc(KNAME, 512, 256, 102)]
    sys.stderr.write(f"nops inserted: prep {n1} main {n2}; main lines {len(ml)}\n")
    return "\n".join(out)


if __name__ == "__main__":
    opt = {}
    for a in sys.argv[1:]:
        k, v = a.split("="); opt[k] = int(v)
    print(build(opt))
```

```python
import sys
from asmlib import *
from layout import *
from gen_prep import gen_prep, kdesc, PREP_WGS, PREP_LDS

KNAME = "interleave_layers__linear_attn_block__swiglu_ffn__prompt_kernel"
NR = 9
MISC = 147456
MB = 131072
L_CS1 = MISC - MB; L_CS3 = MISC + 512 - MB; L_STAT = MISC + 1536 - MB; L_RED = MISC + 4096 - MB; L_KVB = MISC + 8192 - MB
MAIN_LDS = 163840
PH = {"K1": (0, 160), "K2": (10, 100), "K3": (17, 280), "K4": (35, 270)}
TOT_ROUNDS = 54
LOG2E = 0x3fb8aa3b
EPS6 = 0x358637bd
EPS5 = 0x3727c5ac
INV640 = 0x3acccccd

S_WS = "s[4:7]"; S_OUT = "s[8:11]"; S_WSN = "s[12:15]"
sW, sG, sM, sHALF, sC8, sLAYER = "s16", "s17", "s18", "s19", "s20", "s21"
sW4K, sW1K, sW2K = "s22", "s23", "s24"
sPW1, sPWO, sPW3, sPWD, sPWOp, sPW3p = "s25", "s26", "s27", "s28", "s29", "s30"
sDMA = "s31"; sA = "s32"; sT0, sT1, sT2, sT3 = "s33", "s34", "s35", "s36"
sFOWN, sFLINE, sKOWN, sKLINE = "s37", "s38", "s39", "s40"
sSTEP = "s41"; sTT2 = "s42"; sTT1 = "s43"
sFEX = "s[44:45]"
sMODE = "s46"; sSPIN = "s47"
sMK = ["s[48:49]", "s[50:51]", "s[52:53]", "s[54:55]", "s[56:57]", "s[58:59]"]
sXI = "s60"
sE6 = "s61"
sST = "s62"
sST2 = "s63"
sODD = "s64"
sXOFF, sXREM, sSTOFF, sAOFF, sOOFF = "s65", "s91", "s98", "s99", "s3"
sBIT2 = "s[66:67]"
sI8 = "s[68:69]"
sG23 = "s[70:71]"; sG3 = "s[72:73]"; sMK32 = "s[74:75]"
sTS = 76
sP0, sP1, sP2 = "s88", "s89", "s90"
PTD = "a255"
sR13, sR4, sRB, sRQ, sRT, sRT2 = "s84", "s85", "s86", "s87", "s100", "s101"
R13 = [4, 8, 12, 16]; R4V = [2, 14, 30, 42]
REGIONS = {"K1": [(0, 5, 20), (100, 3, 20)], "K2": [(0, 5, 20)], "K3": [(0, 4, 20), (80, 4, 20), (160, 4, 20), (240, 2, 20)], "K4": [(0, 5, 54)]}
ROTREG = {"K1": (sR13, R13), "K2": (sR13, R13), "K3": (sR13, R13), "K4": (sR4, R4V)}

vL16, vR1, vR2, vL16B = "v1", "v2", "v3", "v4"
vI4, vI4W, vG16, vG16W, vX3, vA3, vL8, vSTO, vACT6, vOREM, vOUT = [f"v{i}" for i in range(5, 16)]
vH16 = "v250"
RES = 16
WW = 36; NW = 16
ACC = 100
TMP = 212
CSVB = 140; RLB = 180


DBG = {}
class Seg:
    def __init__(s, cap=2):
        s.mf = []; s.gaps = [[]]; s.cost = [0]; s.cap = cap
    def n(s): return len(s.mf)
    def mfma(s, text, wvm=None, wlg=None):
        s.mf.append(Op(text, wvm=wvm, wlg=wlg)); s.gaps.append([]); s.cost.append(0)
        if wvm or wlg: s.cost[len(s.mf) - 1] += 1
        return len(s.mf) - 1
    def put(s, gap, op, cost=1):
        if isinstance(op, str): op = Op(op)
        gap = min(gap, len(s.gaps) - 1)
        s.gaps[gap].append(op); s.cost[gap] += cost
        return gap
    def place(s, op, earliest, cost=1, cap=None, latest=None):
        if cap is None: cap = s.cap
        g = max(0, min(earliest, len(s.gaps) - 1))
        last = len(s.gaps) - 1
        while g < last and s.cost[g] + cost > cap:
            if latest is not None and g >= latest: break
            g += 1
        return s.put(g, op, cost)
    def group(s, ops, earliest, maxcost=0):
        g = max(0, min(earliest, len(s.gaps) - 1))
        while g < len(s.gaps) - 1 and s.cost[g] > maxcost: g += 1
        for o in ops: s.put(g, o, 1)
        return g
    def stream(s, ops, earliest, cap=None, spacing=0):
        g = earliest
        for o in ops:
            c = 1
            if isinstance(o, tuple): o, c = o
            g = s.place(o, g, cost=c, cap=cap)
            g += spacing
        return g
    def emit(s, em):
        def keep(o):
            t = o.text
            if DBG.get("skipa") and t.startswith("buffer_load_dwordx4 a["): return False
            if DBG.get("skipw") and t.endswith(" lds"): return False
            if DBG.get("nobar") and t == "s_barrier":
                o.text = "s_nop 0"; return True
            if DBG.get("skipv") and t.startswith("v_") and not t.startswith(("v_mfma", "v_writelane")): return False
            if DBG.get("skipr") and t.startswith("ds_read"): return False
            return True
        for i in range(len(s.gaps)):
            for o in s.gaps[i]:
                if keep(o): em.op(o)
            if i < len(s.mf): em.op(s.mf[i])


STG0 = 160
vSTG0, vSTG1, vSTG2 = "v200", "v201", "v202"
def staged(r):
    n = DBG.get("stg", 0)
    return n and DBG.get("stg0", 26) <= r < DBG.get("stg0", 26) + n
class Ring:
    def __init__(s):
        s.issued = -1
        s.filled = -1
        s.allowed = -1
        s.q = []
    @staticmethod
    def info(r):
        rr = r % TOT_ROUNDS
        nxt = r >= TOT_ROUNDS
        for ph, (r0, nf) in PH.items():
            nrounds = (nf + 15) // 16
            if r0 <= rr < r0 + nrounds:
                k = rr - r0
                return ph, k, min(16, nf - 16 * k), nxt
        return None, 0, 0, nxt
    def jobs(s, r):
        ph, k, n, nxt = s.info(r)
        if ph is None: return []
        srd = S_WSN if nxt else S_WS
        pos = (r % NR) * 16384
        tag = ("dma", r)
        if staged(r):
            a0 = STG0 + 16 * (r - DBG.get("stg0", 26))
            va, off = (vSTG0, pos) if pos < 65536 else ((vSTG1, pos - 65536) if pos < 131072 else (vSTG2, pos - 131072))
            return [[Op(f"ds_write_b128 {va}, a[{a0+4*j}:{a0+4*j+3}] offset:{off + j*1024}", lg=("dmal", r), wvm=[("stg", r)])] for j in range(4)]
        if n > 8: c, m0s, base = 4, sW4K, {"K1": sPW1, "K2": sPWO, "K3": sPW3, "K4": sPWD}[ph]
        elif n > 4: c, m0s, base = 2, sW2K, sPW3p; assert ph == "K3" and n == 8
        else: c, m0s, base = 1, sW1K, sPWOp; assert ph == "K2" and n == 4
        nt = " nt" if (DBG.get("wnt", 0) >> {"K1": 0, "K2": 1, "K3": 2, "K4": 3}[ph]) & 1 else ""
        base4 = {"K1": sPW1, "K2": sPWO, "K3": sPW3, "K4": sPWD}[ph]
        pre = [Op(f"s_add_u32 m0, {m0s}, {pos}")]
        if not DBG.get("rot", 0):
            pre.append(Op(f"s_add_u32 {sDMA}, {base}, {(k % DBG.get('wmod', 1000))*16384}"))
        else:
            sR, rset = ROTREG[ph]
            regs = REGIONS[ph]
            def region(p):
                for i, (P0, cc, nb) in enumerate(regs):
                    if P0 <= p < P0 + cc * nb: return i
                return len(regs) - 1
            def setup(i):
                P0, cc, nb = regs[i]
                return [Op(f"s_mul_i32 {sRT}, {sR}, {cc}"), Op(f"s_lshl_b32 {sRQ}, {sW}, 2"), Op(f"s_add_u32 {sRQ}, {sRQ}, {sRT}"),
                        Op(f"s_lshl_b32 {sRT}, {sRT}, 10"), Op(f"s_add_u32 {sRB}, {base4}, {sRT}")]
            def addr(i, waves, dst):
                P0, cc, nb = regs[i]
                st = set()
                for w in waves:
                    for R in rset: st.add(16 * k + c * w + cc * R >= P0 + cc * nb)
                size = cc * nb * 1024
                if st == {False}: return [Op(f"s_add_u32 {dst}, {sRB}, {16384*k}")], False
                if st == {True}: return [Op(f"s_add_u32 {dst}, {sRB}, {(16384*k - size) & 0xffffffff}")], True
                assert c == 4
                T = P0 + cc * nb - 16 * k
                return [Op(f"s_add_u32 {dst}, {sRB}, {16384*k}"), Op(f"s_cmp_ge_u32 {sRQ}, {T}"), Op(f"s_cselect_b32 {sRT}, {size}, 0"),
                        Op(f"s_sub_u32 {dst}, {dst}, {sRT}")], None
            rw = [region(16 * k + c * w) for w in range(4)]
            prev_reg = region(16 * k - 4) if k > 0 else None
            if len(set(rw)) == 1:
                i = rw[0]
                if prev_reg != i: pre += setup(i)
                o, _ = addr(i, range(4), sDMA)
                pre += o
                if c != 4:
                    pre += [Op(f"s_sub_u32 {sDMA}, {sDMA}, {base4}"), Op(f"s_add_u32 {sDMA}, {sDMA}, {base}")]
            else:
                assert c == 4 and rw[0] == prev_reg and set(rw[1:]) == {rw[0] + 1}, (ph, k, rw)
                o, _ = addr(rw[0], [0], sRT2); pre += o
                pre += setup(rw[1])
                o, _ = addr(rw[1], [1, 2, 3], sDMA); pre += o
                pre += [Op(f"s_cmp_eq_u32 {sW}, 0"), Op(f"s_cselect_b32 {sDMA}, {sRT2}, {sDMA}")]
        out = []
        for j in range(c):
            ops = list(pre) if j == 0 else []
            ops.append(Op(f"buffer_load_dwordx4 {vL16}, {srd}, {sDMA} offen offset:{j*1024}{nt} lds", vm=tag))
            out.append(ops)
        return out
    def skip_virtual(s):
        while not s.q and s.issued < s.allowed and not s.jobs(s.issued + 1): s.issued += 1
    def next_round(s):
        r = s.issued + 1
        while not s.q and not s.jobs(r): r += 1
        return r
    def take(s):
        if not s.q:
            s.skip_virtual()
            if s.issued + 1 > s.allowed: return None
            s.q = s.jobs(s.issued + 1)
        j = s.q.pop(0)
        if not s.q:
            s.issued += 1
            s.skip_virtual()
        return j
    def emit(s, em, n=10**9, upto=None):
        k = 0
        while k < n:
            if upto is not None and s.next_round() > upto: break
            j = s.take()
            if j is None: break
            for o in j: em.op(o)
            k += 1
        return k


def wslot_addr(ph, f):
    r0, nf = PH[ph]
    r = r0 + f // 16
    a = (r % NR) * 16384 + (f % 16) * 1024
    if a < 65536: return vL16, a
    if a < 131072: return vR1, a - 65536
    return vR2, a - 131072


class WStream:
    cnt = 0
    def __init__(s, ring, seg, ph, SS=2, LA=10):
        s.ring = ring; s.seg = seg; s.ph = ph; s.SS = SS; s.LA = LA
        s.reg = {}; s.events = []
    def wreg(s, f):
        if f not in s.reg:
            s.reg[f] = WW + 4 * (WStream.cnt % NW); WStream.cnt += 1
        return s.reg[f]
    def reads(s, frags, first_use, last_use, force=(), nobar=(), wait_at=None, ming=0):
        seg = s.seg; ring = s.ring; r0, nf = PH[s.ph]
        prev = ming
        lastuse_slot = dict(getattr(s, 'lus', {}))
        filled = ring.filled
        lastbar = None
        rlast = r0 + frags[-1] // 16
        for f in frags:
            reg = s.reg[f]
            e = max(prev, first_use[f] - s.LA, lastuse_slot.get(reg, -1) + 1)
            lat = first_use[f] if wait_at is None else wait_at[f]
            e = max(0, min(e, lat))
            r = r0 + f // 16
            va, off = wslot_addr(s.ph, f)
            rd = Op(f"ds_read_b128 v[{reg}:{reg+3}], {va} offset:{off}", lg=("w", s.ph, f))
            need = r > filled
            want = (f % 16 == 0) and (r in force or (lastbar is not None and r - lastbar >= s.SS) or (lastbar is None and r - (r0 + frags[0] // 16) >= s.SS)) and r not in nobar
            if need or want:
                tgt = max(filled, min(r + s.SS - 1, rlast))
                g = e
                last = lat
                while g < last and seg.cost[g] + 1 > seg.cap: g += 1
                wt = [("dma", x) for x in range(filled + 1, tgt + 1) if not staged(x)]
                wl_ = [("dmal", x) for x in range(filled + 1, tgt + 1) if staged(x)]
                seg.put(g, Op("s_barrier", wvm=wt, wlg=wl_), 2)
                seg.put(g, rd, 1)
                filled = tgt
                prev = g
                lastbar = r
                s.events.append((g, r - 2 + NR, tgt))
            else:
                prev = seg.place(rd, e, latest=lat)
            lastuse_slot[reg] = last_use[f]
        s.lastbar = lastbar
        s.lus = lastuse_slot
        ring.filled = filled
    def vmem(s, ajobs, policy, rate=4.5, qd=36, backlog=0, margin=48, cap=None, burst0=True):
        seg = s.seg; ring = s.ring
        if cap is None: cap = seg.cap
        n = len(seg.gaps)
        path = backlog
        ai = 0
        ev = list(s.events)
        def dma_deadline(r):
            for (g, al, tgt) in ev:
                if tgt >= r: return g
            return None
        evi = 0
        for (g, al, tgt) in ev:
            if g == 0: assert ring.issued >= tgt, ("rounds not issued before seg start", s.ph, tgt, ring.issued)
        for g in range(n):
            placed = 0
            while True:
                cands = []
                if ai < len(ajobs) and (len(ajobs[ai]) < 3 or g >= ajobs[ai][2]): cands.append((ajobs[ai][1], 0))
                r = ring.next_round()
                hard = dma_deadline(r)
                pe = policy(r)
                ok = (ring.q or r <= ring.allowed)
                if ok and (hard is not None or pe is not None):
                    dl = (hard - margin) if hard is not None else 10**6
                    start = pe if pe is not None else 0
                    if g >= start or (hard is not None and g >= hard - 1): cands.append((dl, 1))
                    harddl = hard
                if not cands: break
                cands.sort()
                def isforced(c):
                    return (c[1] == 1 and hard is not None and g >= hard - 1) or (c[1] == 0 and g >= c[0])
                fc = [c for c in cands if isforced(c)]
                forced = bool(fc)
                dl, which = fc[0] if fc else cands[0]
                if not forced:
                    if path - g > qd: break
                    if (g > 0 or not burst0) and (seg.cost[g] + 1 > cap or placed >= 1): break
                if which == 0:
                    ops = ajobs[ai][0]; ai += 1
                else:
                    ops = ring.take(); assert ops is not None
                for o in ops: seg.put(g, o, 1)
                path = max(path, g) + rate
                placed += 1
            while evi < len(ev) and ev[evi][0] <= g:
                (eg, al, tgt) = ev[evi]; evi += 1
                assert ring.issued >= tgt, ("rounds not issued before barrier", s.ph, g, tgt, ring.issued)
                ring.allowed = max(ring.allowed, al)
        assert ai == len(ajobs)
        return path - n


def gen_main(opt):
    stop = opt.get("stop", 99)
    DBG.clear(); DBG.update(opt)
    stamps = opt.get("stamps", False)
    SS = opt.get("SS", 2)
    MARG = opt.get("marg", 72); QD = opt.get("qd", 36); RATE = opt.get("rate10", 45) / 10.0
    cur = {"sfx": "F", "STO": "", "LD": ""}
    em = Em()
    ring = Ring()
    WStream.cnt = 0
    nstamp = [0]
    def stamp():
        if not stamps: return
        k = nstamp[0]; nstamp[0] += 1
        em.raw(f"    s_waitcnt lgkmcnt(0)")
        em.e(f"s_memtime s[{sTS}:{sTS+1}]" if not opt.get("rt") else f"s_memrealtime s[{sTS}:{sTS+1}]")
        em.e(f"s_lshl_b32 s{sTS+2}, {sLAYER}, 4")
        em.e(f"s_add_u32 s{sTS+2}, s{sTS+2}, {k}")
        em.raw("    s_waitcnt lgkmcnt(0)")
        em.lg = []
        em.e(f"s_mov_b32 s{sTS+1}, m0")
        em.e(f"s_mov_b32 m0, s{sTS+2}"); em.e("s_nop 3")
        em.e(f"v_writelane_b32 v0, s{sTS}, m0")
        em.e(f"s_mov_b32 m0, s{sTS+1}")
    lsn = [0]
    def lstamp(seg, gap):
        if not opt.get("lst", 0): return
        lane = 32 + lsn[0]; lsn[0] += 1
        assert lane < 64
        rg = 96 if lane % 2 else 76
        seg.put(gap, f"s_memtime s[{rg}:{rg+1}]", 0)
        seg.put(gap + 12, f"v_writelane_b32 v0, s{rg}, {lane}", 0)
    def dump_stamps():
        if not stamps: return
        em.e("s_memrealtime s[96:97]")
        em.raw("    s_waitcnt lgkmcnt(0)")
        em.e("v_writelane_b32 v0, s92, 15"); em.e("v_writelane_b32 v0, s94, 30"); em.e("v_writelane_b32 v0, s96, 31")
        em.e(f"s_mov_b64 exec, s[{sTS+4}:{sTS+5}]")
        em.e(f"v_lshrrev_b32 v251, 2, {vL16}")
        em.e(f"v_add_u32 v251, s{sTS+3}, v251")
        em.e(f"global_store_dword v251, v0, s[{sTS+6}:{sTS+7}]")
        em.e("s_mov_b64 exec, -1")
        em.raw("    s_waitcnt vmcnt(0)")

    em.label(KNAME)
    em.e("s_cmp_ge_u32 s2, 256")
    em.e("s_cbranch_scc1 Lm_done")
    if stamps:
        em.e("s_memtime s[92:93]"); em.e("s_memrealtime s[94:95]")
    MONO = opt.get("mono", 0)
    if opt.get("sst"):
        em.e("s_memrealtime s[98:99]"); em.raw("    s_waitcnt lgkmcnt(0)"); em.e("s_mov_b32 s101, s98")
    if MONO:
        em.e("s_load_dwordx2 s[82:83], s[0:1], 64")
        MST = opt.get("mst", 0)
        for l in gen_prep("", mono=True, k3b=opt.get("k3b", 12), sfx={0: " sc1", 1: " sc0 sc1", 2: " sc1 nt", 3: "", 4: "", 5: " nt"}[MST], sx=opt.get("sx", 0), skipj=opt.get("skipj", 0)): em.raw(l)
        if opt.get("sx"):
            if opt["sx"] == 1: em.e("s_memrealtime s[78:79]")
            em.raw("    s_waitcnt vmcnt(0) lgkmcnt(0)")
            em.e("s_memrealtime s[76:77]"); em.raw("    s_waitcnt lgkmcnt(0)")
            if opt["sx"] == 1:
                em.e("v_mov_b32 v236, s101"); em.e("v_mov_b32 v237, s96"); em.e("v_mov_b32 v238, s78"); em.e("v_mov_b32 v239, s76")
            else:
                em.e("v_mov_b32 v236, s101"); em.e("v_mov_b32 v237, s80"); em.e("v_mov_b32 v238, s78"); em.e("v_mov_b32 v239, s96")
            em.e("s_lshl_b32 s33, s2, 4"); em.e("s_add_u32 s33, s33, 0x3000000"); em.e("v_mov_b32 v240, s33")
            em.e("s_cmp_lg_u32 s18, 0"); em.e("s_cbranch_scc1 Lm_done")
            em.e("s_mov_b64 exec, 1"); em.e("global_store_dwordx4 v240, v[236:239], s[16:17]"); em.e("s_endpgm")
        em.e(f"s_getreg_b32 {sMODE}, hwreg(HW_REG_XCC_ID)")
        em.e(f"s_lshr_b32 s33, {sMODE}, 12"); em.e("s_and_b32 s33, s33, 0x70"); em.e(f"s_and_b32 {sMODE}, {sMODE}, 15")
        em.e(f"s_or_b32 {sMODE}, {sMODE}, s33"); em.e(f"s_or_b32 {sMODE}, {sMODE}, 0x80")
        em.e(f"v_mov_b32 v254, {sMODE}"); em.e("v_mov_b32 v255, s2")
        em.raw("    s_waitcnt vmcnt(0) lgkmcnt(0)")
        em.e("s_barrier")
        em.e("s_cmp_lg_u32 s18, 0"); em.e("s_cbranch_scc1 Lm_nofl")
        if MST in (3, 5):
            em.e("buffer_wbl2 sc1"); em.raw("    s_waitcnt vmcnt(0)")
        em.e("s_mov_b64 exec, 1")
        em.e("global_store_byte v255, v254, s[82:83] sc1")
        em.e("s_mov_b64 exec, -1")
        em.label("Lm_nofl")
        if opt.get("sst"):
            em.e("s_memrealtime s[98:99]"); em.raw("    s_waitcnt lgkmcnt(0)"); em.e("s_mov_b32 s100, s98")
        if stamps:
            em.e("s_memtime s[96:97]"); em.raw("    s_waitcnt lgkmcnt(0)"); em.e("s_sub_u32 s96, s96, s92")
    pln = [0]
    def pls():
        if opt.get("pls") != 1: return
        em.e("s_memtime s[96:97]"); em.raw("    s_waitcnt lgkmcnt(0)"); em.e(f"v_mov_b32 v{236 + pln[0]}, s96"); pln[0] += 1
    em.e("s_load_dwordx2 s[8:9], s[0:1], 56"); em.e("s_load_dwordx2 s[10:11], s[0:1], 64")
    em.e("s_load_dwordx2 s[4:5], s[0:1], 72")
    em.e("v_lshrrev_b32 v2, 6, v0")
    em.e("v_and_b32 v0, 63, v0")
    em.e(f"v_readfirstlane_b32 {sW}, v2")
    em.e(f"v_lshlrev_b32 {vL16}, 4, v0")
    em.e("s_and_b32 s33, s2, 7"); em.e("s_lshr_b32 s34, s2, 3")
    em.e("s_and_b32 s35, s34, 1"); em.e(f"s_lshr_b32 {sM}, s34, 1")
    em.e("s_lshl_b32 s33, s33, 1"); em.e(f"s_add_u32 {sG}, s33, s35")
    em.e(f"s_and_b32 {sHALF}, {sM}, 1"); em.e(f"s_lshr_b32 {sC8}, {sM}, 1")
    em.e(f"s_lshl_b32 {sW4K}, {sW}, 12"); em.e(f"s_lshl_b32 {sW1K}, {sW}, 10"); em.e(f"s_lshl_b32 {sW2K}, {sW}, 11")
    def base(dst, reg0, sz, idx, wk, extra=0):
        em.e(f"s_mul_i32 {dst}, {idx}, {sz}"); em.e(f"s_add_u32 {dst}, {dst}, {reg0 + extra}"); em.e(f"s_add_u32 {dst}, {dst}, {wk}")
    base(sPW1, PW1, PW1_SZ, sM, sW4K); base(sPWO, PWO, PWO_SZ, sC8, sW4K)
    base(sPW3, PW3, PW3_SZ, sM, sW4K); base(sPWD, PWD, PWD_SZ, sC8, sW4K)
    base(sPWOp, PWO, PWO_SZ, sC8, sW1K); base(sPW3p, PW3, PW3_SZ, sM, sW2K)
    em.e("s_waitcnt lgkmcnt(0)")
    pls()
    if stamps and not opt.get("rt") and not MONO:
        em.e(f"s_mov_b32 s{sTS+6}, s10"); em.e(f"s_mov_b32 s{sTS+7}, s11")
    if stamps and opt.get("rt"):
        em.e(f"s_add_u32 s{sTS+6}, s4, 0x3000000"); em.e(f"s_addc_u32 s{sTS+7}, s5, 0")
    if opt.get("wsoff", 0): em.e(f"s_add_u32 s4, s4, {opt['wsoff'] << 20}"); em.e("s_addc_u32 s5, s5, 0")
    em.e(f"s_mov_b32 s6, {WS_END}"); em.e("s_mov_b32 s7, 0x20000")
    em.e(f"s_mov_b32 s10, {2048*640*2}"); em.e("s_mov_b32 s11, 0x20000")
    em.e("s_mov_b32 s12, s4"); em.e("s_mov_b32 s13, s5"); em.e(f"s_mov_b32 s14, {WS_END}"); em.e("s_mov_b32 s15, 0x20000")
    em.e(f"s_and_b32 s33, {sG}, 1"); em.e(f"s_lshl_b32 s33, s33, 1"); em.e(f"s_add_u32 s33, s33, {sHALF}")
    if opt.get("rot", 0) == 2: em.e("s_mov_b32 s33, 0")
    em.e(f"s_lshl_b32 {sR13}, s33, 2"); em.e(f"s_add_u32 {sR13}, {sR13}, 4")
    em.e(f"s_mul_i32 {sR4}, s33, 12"); em.e(f"s_add_u32 {sR4}, {sR4}, 2"); em.e(f"s_cmp_ge_u32 s33, 2"); em.e(f"s_cselect_b32 s33, 4, 0"); em.e(f"s_add_u32 {sR4}, {sR4}, s33")
    HEAD = opt.get("head", 4)
    ring.allowed = 8
    if opt.get("probe"):
        pr = {1: [(sPW1, 0), (sPW1, 65536), (sOOFF, XB + 4096), (sPW1, 65536 + 64)],
              2: [(sOOFF, XB + 4096), (sOOFF, XB + 8192), (sPW3, 0), (sPWD, 0)],
              3: [(sOOFF, FLG_XCC), (sOOFF, ST), (sPW1, 0), (sPW1, 65536)]}[opt["probe"]]
        em.e(f"s_mul_i32 {sOOFF}, s2, 0")
        if opt["probe"] != 3: em.e(f"s_mul_i32 {sOOFF}, {sG}, {8*20480}")
        for (sr, off) in pr:
            em.e(f"s_add_u32 s33, {sr}, {off}")
            em.e(f"buffer_load_dword v241, off, {S_WS}, s33")
            em.raw("    s_waitcnt vmcnt(0)")
            pls()
        opt["pls"] = 2
    PEEL = opt.get("peel", 0) if not MONO else 0
    P1J = opt.get("p1j", 10)
    PA = opt.get("pa", 3)
    PBLK = [3, 6, 9, 12, 16, 19, 20]
    if PEEL:
        em.e(f"s_lshl_b32 s33, {sG}, 3"); em.e(f"s_lshl_b32 s34, {sW}, 1"); em.e(f"s_add_u32 {sTT2}, s33, s34")
        em.e(f"v_add_u32 {vL16B}, 20480, {vL16}")
        em.e(f"s_mul_i32 {sA}, {sTT2}, 20480"); em.e(f"s_add_u32 {sA}, {sA}, {XB}")
        b0 = 0
        for r in range(PA):
            if opt.get("pao", 0) == 0: ring.emit(em, upto=r)
            for b in range(b0, PBLK[r]):
                if b % 4 == 0 and b > 0: em.e(f"s_add_u32 {sA}, {sA}, 4096")
                for t in range(2):
                    rg = 80 * t + 4 * b
                    em.e(f"buffer_load_dwordx4 a[{rg}:{rg+3}], {vL16 if t == 0 else vL16B}, {S_WS}, {sA} offen offset:{(b % 4) * 1024}", vm=("a", b, t))
            b0 = PBLK[r]
            if opt.get("pao", 0) == 1: ring.emit(em, upto=r)
        ring.emit(em, upto=opt.get("pb", PA - 1))
    elif not MONO: ring.emit(em, upto=2)
    pls()
    AH = opt.get("ah", 0) if not MONO and not PEEL else 0
    def k1_hoist(ld):
        em.e(f"s_mul_i32 {sA}, {sXI}, {X_SZ}"); em.e(f"s_mul_i32 {sT0}, {sTT2}, 20480")
        em.e(f"s_add_u32 {sA}, {sA}, {sT0}"); em.e(f"s_add_u32 {sA}, {sA}, {XB}")
        for b in range(AH):
            if b % 4 == 0 and b > 0: em.e(f"s_add_u32 {sA}, {sA}, 4096")
            for t in range(2):
                r = 80 * t + 4 * b
                em.e(f"buffer_load_dwordx4 a[{r}:{r+3}], {vL16 if t == 0 else vL16B}, {S_WS}, {sA} offen offset:{(b % 4) * 1024}{ld}", vm=("a", b, t))
    if AH:
        assert not opt.get("rot", 0)
        if opt.get("aho", 0) == 0: ring.emit(em, upto=HEAD)
        em.e(f"s_lshl_b32 s33, {sG}, 3"); em.e(f"s_lshl_b32 s34, {sW}, 1"); em.e(f"s_add_u32 {sTT2}, s33, s34")
        em.e(f"s_mov_b32 {sXI}, 0"); em.e(f"v_add_u32 {vL16B}, 20480, {vL16}")
        k1_hoist("")
    em.e(f"s_lshl_b32 s33, {sG}, 7")
    em.e(f"s_add_u32 {sFLINE}, s33, {FLG_G}"); em.e(f"s_lshl_b32 s34, {sM}, 2"); em.e(f"s_add_u32 {sFOWN}, {sFLINE}, s34")
    em.e(f"s_lshl_b32 s33, {sM}, 7"); em.e(f"s_add_u32 {sKLINE}, s33, {FLG_KV}"); em.e(f"s_lshl_b32 s34, {sG}, 2"); em.e(f"s_add_u32 {sKOWN}, {sKLINE}, s34")
    em.e(f"s_lshl_b32 s33, {sG}, 3")
    em.e(f"s_lshl_b32 s34, {sW}, 1"); em.e(f"s_add_u32 {sTT2}, s33, s34")
    em.e(f"s_lshl_b32 s34, {sHALF}, 2"); em.e(f"s_add_u32 s34, s34, {sW}"); em.e(f"s_add_u32 {sTT1}, s33, s34")
    em.e(f"s_cmp_eq_u32 {sW}, 0"); em.e("s_cselect_b32 s44, 1, 0"); em.e("s_mov_b32 s45, 0")
    em.e(f"s_mov_b32 {sLAYER}, 0"); em.e(f"s_mov_b32 {sSTEP}, 0"); em.e(f"s_mov_b32 {sXI}, 0")
    em.e(f"s_mov_b32 {sE6}, {EPS6}")
    em.e(f"s_and_b32 {sODD}, {sC8}, 1")
    em.e(f"s_lshr_b32 s33, {sC8}, 1"); em.e("s_mul_i32 s33, s33, 5")
    em.e(f"s_lshl_b32 s34, {sODD}, 1"); em.e("s_add_u32 s34, s34, s33"); em.e("s_lshl_b32 s34, s34, 10")
    em.e(f"s_add_u32 s33, s33, 4"); em.e("s_lshl_b32 s33, s33, 10"); em.e(f"s_sub_u32 {sXREM}, s33, s34")
    em.e(f"s_mul_i32 s35, {sTT1}, 20480"); em.e(f"s_add_u32 s34, s34, s35"); em.e(f"s_add_u32 {sXOFF}, s34, {XB}")
    em.e(f"s_lshl_b32 s33, {sTT1}, 10"); em.e(f"s_lshl_b32 s34, {sC8}, 7"); em.e("s_add_u32 s33, s33, s34"); em.e(f"s_add_u32 {sSTOFF}, s33, {ST}")
    em.e(f"s_mul_i32 s33, {sTT2}, {54*1024}"); em.e(f"s_add_u32 {sAOFF}, s33, {ACT}")
    em.e(f"s_mul_i32 s33, {sTT2}, 20480"); em.e(f"s_add_u32 {sOOFF}, s33, {OB}")
    def m64(reg, val):
        a = int(reg[2:].split(":")[0])
        em.e(f"s_mov_b32 s{a}, {hex(val & 0xffffffff)}"); em.e(f"s_mov_b32 s{a+1}, {hex(val >> 32)}")
    m64(sMK[0], 0xFFFF); m64(sMK[1], 0xFFFF0000); m64(sMK[2], 0x0F000F000F000F00); m64(sMK[3], 0xF000F000F000F000)
    m64(sMK[4], 0x0F00); m64(sMK[5], 0xF0000000)
    m64(sBIT2, 0xF0F0F0F0F0F0F0F0); m64(sI8, 0x00FF00FF00FF00FF)
    m64(sG23, 0xFFFFFFFF00000000); m64(sG3, 0xFFFF000000000000); m64(sMK32, 0x00000000FFFFFFFF)
    if stamps:
        em.e(f"s_mov_b32 s{sTS+4}, 0"); em.e(f"s_mov_b32 s{sTS+5}, 0"); em.e(f"s_mov_b32 s{sTS+3}, {256 if MONO else 0}")
        em.e(f"s_sub_u32 s33, 0, s44")
        if opt.get("lst", 0) or MONO:
            em.e(f"s_cmp_eq_u32 s2, {opt.get('wg2', 0)}"); em.e(f"s_cselect_b32 s{sTS+4}, s33, 0"); em.e(f"s_mov_b32 s{sTS+5}, s{sTS+4}")
        if opt.get("rt"):
            em.e(f"s_mov_b32 s{sTS+4}, s33"); em.e(f"s_mov_b32 s{sTS+5}, 0"); em.e(f"s_lshl_b32 s{sTS+3}, s2, 7")
        elif not opt.get("lst", 0) and not MONO:
            em.e("s_cmp_eq_u32 s2, 0"); em.e(f"s_cselect_b32 s{sTS+4}, s33, 0")
            em.e(f"s_cmp_eq_u32 s2, {opt.get('wg2', 255)}"); em.e(f"s_cselect_b32 s{sTS+4}, s33, s{sTS+4}"); em.e(f"s_mov_b32 s34, {256 if MONO else 0}"); em.e(f"s_mov_b32 s35, {384 if MONO else 128}"); em.e(f"s_cselect_b32 s{sTS+3}, s35, s34")
    if not MONO:
        em.e(f"s_getreg_b32 {sMODE}, hwreg(HW_REG_XCC_ID)")
        em.e(f"s_and_b32 {sMODE}, {sMODE}, 0xffff"); em.e(f"s_add_u32 {sMODE}, {sMODE}, 1")
        em.e(f"v_mov_b32 v254, {sMODE}"); em.e("v_mov_b32 v255, 0")
        em.e(f"s_add_u32 s33, {sFOWN}, {FLG_XCC - FLG_G}")
        em.e(f"s_mov_b64 exec, {sFEX}")
        em.e(f"buffer_store_dword v254, v255, {S_WS}, s33 offen sc1")
        em.e("s_mov_b64 exec, -1")
    em.e("v_and_b32 v212, 15, v0"); em.e("v_lshrrev_b32 v213, 4, v0")
    em.e(f"v_add_u32 {vR1}, 0x10000, {vL16}"); em.e(f"v_add_u32 {vR2}, 0x20000, {vL16}"); em.e(f"v_add_u32 {vL16B}, 20480, {vL16}")
    em.e(f"v_lshlrev_b32 {vI4}, 2, v212"); em.e(f"v_add_u32 {vI4}, 0x20000, {vI4}")
    em.e(f"s_lshl_b32 s33, {sW}, 8")
    em.e(f"v_add_u32 {vI4W}, s33, {vI4}")
    em.e(f"v_lshlrev_b32 {vG16}, 4, v213"); em.e(f"v_add_u32 {vG16}, 0x20000, {vG16}"); em.e(f"v_add_u32 {vG16W}, s33, {vG16}")
    em.e("v_lshrrev_b32 v214, 5, v0"); em.e("v_bfe_u32 v215, v0, 4, 1")
    em.e("v_lshlrev_b32 v216, 8, v214"); em.e("v_lshlrev_b32 v217, 4, v212"); em.e("v_add_u32 v216, v216, v217")
    em.e(f"v_mul_u32_u24 v217, 20480, v215"); em.e(f"v_add_u32 {vX3}, v216, v217")
    em.e(f"v_mul_u32_u24 v217, {54*1024}, v215"); em.e(f"v_add_u32 {vA3}, v216, v217")
    em.e(f"v_lshlrev_b32 {vH16}, 4, v214"); em.e(f"v_add_u32 {vH16}, 0x20000, {vH16}")
    em.e(f"v_lshlrev_b32 {vL8}, 3, v0"); em.e(f"v_add_u32 {vL8}, 0x20000, {vL8}")
    em.e(f"v_lshlrev_b32 {vSTO}, 8, v213"); em.e("v_lshlrev_b32 v214, 3, v212"); em.e(f"v_add_u32 {vSTO}, {vSTO}, v214")
    em.e(f"s_mul_i32 s33, {sM}, 3"); em.e("v_lshrrev_b32 v214, 5, v0"); em.e("v_add_u32 v214, s33, v214")
    em.e("v_lshrrev_b32 v215, 3, v214"); em.e("v_add_u32 v215, 48, v215"); em.e("v_lshlrev_b32 v215, 10, v215")
    em.e("v_and_b32 v216, 3, v214"); em.e("v_lshlrev_b32 v216, 8, v216"); em.e("v_add_u32 v215, v215, v216")
    em.e("v_lshlrev_b32 v216, 4, v212"); em.e("v_add_u32 v215, v215, v216")
    em.e("v_bfe_u32 v216, v214, 2, 1"); em.e("v_lshlrev_b32 v216, 3, v216"); em.e(f"v_add_u32 v215, v215, v216")
    em.e("v_bfe_u32 v216, v0, 4, 1"); em.e(f"v_mul_u32_u24 v216, {54*1024}, v216"); em.e(f"v_add_u32 {vACT6}, v215, v216")
    em.e(f"s_lshr_b32 s33, {sM}, 2"); em.e("s_add_u32 s33, s33, 16"); em.e("s_lshl_b32 s33, s33, 10")
    em.e(f"s_and_b32 s34, {sM}, 1"); em.e("s_lshl_b32 s34, s34, 9"); em.e("s_add_u32 s33, s33, s34")
    em.e(f"s_bfe_u32 s34, {sM}, 0x10001"); em.e("s_lshl_b32 s34, s34, 3"); em.e("s_add_u32 s33, s33, s34")
    em.e("s_sub_u32 s33, s33, 512")
    em.e("v_lshlrev_b32 v215, 8, v213"); em.e("v_lshlrev_b32 v216, 4, v212"); em.e("v_add_u32 v215, v215, v216")
    em.e(f"v_add_u32 {vOREM}, s33, v215")
    em.e("v_mul_u32_u24 v215, 1280, v212"); em.e("v_lshlrev_b32 v216, 3, v213"); em.e(f"v_add_u32 {vOUT}, v215, v216")
    if MONO:
        em.e(f"s_cmp_lg_u32 {sW}, 0"); em.e("s_cbranch_scc1 Lm_sb_o")
        em.e("v_lshlrev_b32 v252, 2, v0")
        em.e(f"s_mov_b32 {sSPIN}, 0")
        em.label("Lm_sb_p")
        em.e("global_load_dword v253, v252, s[82:83] sc1")
        em.raw("    s_waitcnt vmcnt(0)")
        em.e("v_and_b32 v254, 0x80808080, v253")
        em.e("v_cmp_ne_u32 vcc, 0x80808080, v254")
        em.e(f"s_add_u32 {sSPIN}, {sSPIN}, 1")
        em.e(f"s_cmp_gt_u32 {sSPIN}, 200000")
        em.e("s_cbranch_scc1 Lm_sb_x")
        em.e("s_cbranch_vccnz Lm_sb_p")
        em.label("Lm_sb_x")
        em.e("s_and_b32 s33, s2, 3"); em.e("s_lshl_b32 s33, s33, 3")
        em.e("v_lshrrev_b32 v253, s33, v253"); em.e("v_and_b32 v253, 0xff, v253")
        em.e(f"v_cmp_ne_u32 vcc, {sMODE}, v253")
        em.e("s_bfe_u32 s33, s2, 0x20002"); em.e("s_mov_b32 s34, 0x11111111"); em.e("s_lshl_b32 s34, s34, s33"); em.e("s_mov_b32 s35, s34")
        em.e("s_and_b64 vcc, vcc, s[34:35]")
        em.e("s_cmp_lg_u64 vcc, 0"); em.e("s_cselect_b32 s33, 1, 0")
        if opt.get("force_slow", 0): em.e("s_mov_b32 s33, 1")
        em.e("v_mov_b32 v253, s33"); em.e(f"v_mov_b32 v252, {MISC + 12288}")
        em.e("ds_write_b32 v252, v253")
        em.raw("    s_waitcnt lgkmcnt(0)")
        em.label("Lm_sb_o")
        em.e("s_barrier")
        em.e(f"v_mov_b32 v252, {MISC + 12288}")
        em.e("ds_read_b32 v253, v252")
        ring.emit(em, upto=2)
        em.raw("    s_waitcnt lgkmcnt(0)")
        em.e(f"v_readfirstlane_b32 {sMODE}, v253")
        if opt.get("sst"):
            em.e("s_memrealtime s[76:77]"); em.raw("    s_waitcnt lgkmcnt(0)")
            em.e("v_mov_b32 v236, s101"); em.e("v_mov_b32 v237, s100"); em.e("v_mov_b32 v238, s76"); em.e("v_mov_b32 v239, 0")
            em.e("s_lshl_b32 s33, s2, 4"); em.e("s_add_u32 s33, s33, 0x3000000"); em.e("v_mov_b32 v240, s33")
            em.e("s_mov_b64 exec, 1"); em.e("global_store_dwordx4 v240, v[236:239], s[4:5]"); em.e("s_mov_b64 exec, -1")
        if stamps:
            em.e("s_memtime s[76:77]"); em.raw("    s_waitcnt lgkmcnt(0)"); em.e("s_sub_u32 s97, s76, s92")
    pls()
    em.e(f"s_mul_i32 s33, {sM}, 512"); em.e(f"s_add_u32 s33, s33, {CS1}")
    em.e(f"s_mul_i32 s34, {sM}, 896"); em.e(f"s_add_u32 s34, s34, {CS3}")
    em.e("v_and_b32 v214, 31, v0"); em.e("v_lshlrev_b32 v214, 4, v214"); em.e("v_lshrrev_b32 v215, 5, v0")
    em.e("v_mul_u32_u24 v215, 81920, v215"); em.e("v_add_u32 v214, v214, v215"); em.e("v_add_u32 v214, s33, v214")
    em.e(f"v_add_u32 v215, s34, {vL16}")
    em.e("v_mov_b32 v216, 0x7ffffff0")
    em.e("v_cmp_gt_u32 vcc, 56, v0"); em.e("v_cndmask_b32 v215, v216, v215, vcc")
    em.e(f"s_cmp_eq_u32 {sW}, 0"); em.e("s_mov_b32 s36, 14336"); em.e("s_cselect_b32 s36, 8192, s36"); em.e("s_cselect_b64 vcc, -1, 0")
    em.e("v_cndmask_b32 v214, v215, v214, vcc")
    em.e(f"s_cmp_ge_u32 {sW}, 2"); em.e("s_cselect_b64 vcc, -1, 0")
    em.e("v_cndmask_b32 v214, v214, v216, vcc")
    for k in range(10):
        em.e(f"buffer_load_dwordx4 v[{CSVB+4*k}:{CSVB+4*k+3}], v214, {S_WS}, 0 offen", vm="cs")
        if k < 9: em.e("v_add_u32 v214, s36, v214")
    RL = RLB
    em.e(f"s_lshr_b32 s33, {sC8}, 1"); em.e("s_mul_i32 s33, s33, 5")
    em.e(f"s_lshl_b32 s34, {sODD}, 1"); em.e("s_add_u32 s34, s34, s33")
    em.e(f"s_mul_i32 s35, {sTT1}, 20480"); em.e(f"s_add_u32 s35, s35, {XB}")
    em.e("s_lshl_b32 s34, s34, 10"); em.e("s_add_u32 s34, s34, s35")
    em.e(f"buffer_load_dwordx4 v[{RL}:{RL+3}], {vL16}, {S_WS}, s34 offen", vm="res")
    em.e(f"buffer_load_dwordx4 v[{RL+4}:{RL+7}], {vL16}, {S_WS}, s34 offen offset:1024", vm="res")
    em.e("s_add_u32 s33, s33, 4"); em.e("s_lshl_b32 s33, s33, 10"); em.e("s_add_u32 s33, s33, s35")
    em.e(f"s_lshl_b32 s34, {sODD}, 3"); em.e("s_add_u32 s33, s33, s34")
    em.e(f"buffer_load_dwordx2 v[{RL+8}:{RL+9}], {vL16}, {S_WS}, s33 offen", vm="res")

    def poll(line, target_expr_sreg, lbl):
        em.e(f"s_mov_b32 {sSPIN}, 0")
        em.e(f"v_subrev_u32 v252, 0x20000, {vI4}")
        em.label(lbl)
        em.e(f"buffer_load_dword v253, v252, {S_WS}, {line} offen sc1")
        em.raw("    s_waitcnt vmcnt(0)")
        em.e(f"v_cmp_gt_u32 vcc, {target_expr_sreg}, v253")
        em.e(f"s_add_u32 {sSPIN}, {sSPIN}, 1")
        em.e(f"s_cmp_gt_u32 {sSPIN}, 20000")
        em.e(f"s_cbranch_scc1 {lbl}_x")
        em.e(f"s_cbranch_vccnz {lbl}")
        em.label(lbl + "_x")
    uid = [0]
    def flag_store(own, val_sreg):
        em.e(f"v_mov_b32 v254, {val_sreg}")
        em.e("v_mov_b32 v255, 0")
        em.e(f"s_mov_b64 exec, {sFEX}")
        em.e(f"buffer_store_dword v254, v255, {S_WS}, {own} offen{cur['STO']}")
        em.e("s_mov_b64 exec, -1")
    def transition(pub, wait, last_round, sttags, need, d1, d2, upto2=None):
        uid[0] += 1; u = uid[0]
        ring.emit(em, d1, upto=upto2)
        em.wait(wvm=sttags)
        em.e("s_barrier")
        ring.allowed = max(ring.allowed, last_round + NR)
        em.e(f"s_add_u32 {sT0}, {sSTEP}, {pub}")
        flag_store(sFOWN, sT0)
        ring.emit(em, d2, upto=upto2)
        ring.emit(em, upto=need)
        assert ring.issued >= need
        em.e(f"s_cmp_lg_u32 {sW}, 0")
        em.e(f"s_cbranch_scc1 Lt{u}_o")
        em.e(f"s_add_u32 {sT0}, {sSTEP}, {wait}")
        poll(sFLINE, sT0, f"Lt{u}_p")
        em.label(f"Lt{u}_o")
        em.wait(wvm=[("dma", x) for x in range(ring.filled + 1, need + 1)], wlg=[("dmal", x) for x in range(ring.filled + 1, need + 1)])
        ring.filled = max(ring.filled, need)
        em.e("s_barrier")

    def a_loads(n_tiles, nblk, ph, tagname, areg, m32=False):
        ops = []
        sR, rset = ROTREG[ph]
        rot = opt.get("rot", 0)
        for b in range(nblk):
            if b == 0 and rot:
                ops += [Op(f"s_lshl_b32 {sRT}, {sR}, 10"), Op(f"s_add_u32 {sA}, {sA}, {sRT}")]
            if b % 4 == 0 and b > 0:
                ops.append(Op(f"s_add_u32 {sA}, {sA}, 4096"))
                if rot and (nblk - b) in rset:
                    ops += [Op(f"s_cmp_eq_u32 {sR}, {nblk - b}"), Op(f"s_cselect_b32 {sRT}, {nblk*1024}, 0"), Op(f"s_sub_u32 {sA}, {sA}, {sRT}")]
            for t in range(n_tiles):
                r = areg(b, t)
                va = vL16 if t == 0 else vL16B
                off = (b % 4) * 1024
                if m32: va = vX3; off += 512 * t
                ops.append(Op(f"buffer_load_dwordx4 a[{r}:{r+3}], {va}, {S_WS}, {sA} offen offset:{off}{cur['LD']}", vm=(tagname, b, t)))
        return ops

    def a_jobs(al, dl):
        jobs = []; pend = []
        for o in al:
            pend.append(o)
            if o.vm is not None:
                jobs.append((pend, dl(o.vm[1]))); pend = []
        return jobs
    def stats_ops(base):
        ops = []
        for t in range(2):
            a = base + 4 * t; nm = base + 8 + 2 * t; rs = nm + 1; x = base + 12; y = base + 13
            ops.append(Op(f"v_add_f32 v{a}, v{a}, v{a+2}", wvm=[("st", t)]))
            ops.append(f"v_add_f32 v{a+1}, v{a+1}, v{a+3}")
            for sw in ("v_permlane32_swap_b32", "v_permlane16_swap_b32"):
                ops.append(f"v_mov_b32 v{x}, v{a}"); ops.append(f"v_mov_b32 v{y}, v{a+1}")
                ops.append(f"{sw} v{a}, v{x}"); ops.append(f"{sw} v{a+1}, v{y}")
                ops.append(f"v_add_f32 v{a}, v{a}, v{x}"); ops.append(f"v_add_f32 v{a+1}, v{a+1}, v{y}")
            ops.append(f"v_mul_f32 v{nm}, {hex(INV640 | 0x80000000)}, v{a}")
            ops.append(f"v_mul_f32 v{a+1}, {hex(INV640)}, v{a+1}")
            ops.append(f"v_fma_f32 v{a+1}, -v{nm}, v{nm}, v{a+1}")
            ops.append(f"v_max_f32 v{a+1}, 0, v{a+1}")
            ops.append(f"v_add_f32 v{a+1}, {hex(EPS5)}, v{a+1}")
            ops.append((Op(f"v_rsq_f32 v{rs}, v{a+1}"), 2))
        return ops
    def stats_loads(base):
        ops = []
        ops.append(Op(f"s_mul_i32 {sST}, {sXI}, {ST_SZ}"))
        ops.append(Op(f"s_lshl_b32 {sST2}, {sTT2}, 10"))
        ops.append(Op(f"s_add_u32 {sST}, {sST}, {sST2}"))
        ops.append(Op(f"s_add_u32 {sST}, {sST}, {ST}"))
        for t in range(2):
            a = base + 4 * t
            ops.append(Op(f"buffer_load_dwordx2 v[{a}:{a+1}], {vSTO}, {S_WS}, {sST} offen offset:{t*1024}{cur['LD']}", vm=("st", t)))
            ops.append(Op(f"buffer_load_dwordx2 v[{a+2}:{a+3}], {vSTO}, {S_WS}, {sST} offen offset:{t*1024+128}{cur['LD']}", vm=("st", t)))
        return ops
    def set_sA_x():
        em.e(f"s_mul_i32 {sA}, {sXI}, {X_SZ}"); em.e(f"s_mul_i32 {sT0}, {sTT2}, 20480")
        em.e(f"s_add_u32 {sA}, {sA}, {sT0}"); em.e(f"s_add_u32 {sA}, {sA}, {XB}")

    def phi_ops(acc, cs, nm, rs, rl, t1, t2):
        return [f"v_fmac_f32 v{acc}, v{nm}, v{cs}",
                f"v_mul_f32 v{t1}, v{acc}, v{rl}",
                (Op(f"v_exp_f32 v{t1}, v{t1} clamp"), 2),
                f"v_max_f32 v{acc}, 0, v{acc}",
                f"v_add_f32 v{t1}, {hex(EPS6)}, v{t1}",
                f"v_fma_f32 v{acc}, v{acc}, v{rs}, v{t1}"]
    def il(lists):
        out = []; k = 0
        while any(k < len(l) for l in lists):
            for l in lists:
                if k < len(l): out.append(l[k])
            k += 1
        return out
    def lin(ops):
        for o in ops:
            if isinstance(o, tuple): o = o[0]
            em.op(o)

    def reuse(): return cur["sfx"] == "F" and opt.get("reuse", 1)
    def LB(): return "0" if reuse() else sLAYER
    def pt(voff, srd, soff, imm=0):
        sc = {0: "", 1: " sc1", 2: " sc0", 3: " nt", 4: " sc0 sc1"}[opt.get("ptsc", 0)]
        if voff is None: return Op(f"buffer_load_dword {PTD}, off, {srd}, {soff} offset:{imm}{sc}", vm="pt")
        return Op(f"buffer_load_dword {PTD}, {voff}, {srd}, {soff} offen offset:{imm}{sc}", vm="pt")
    PTM = opt.get("ptm", 1); PTK = opt.get("ptk", 31)
    def PS(): return S_WSN if PTM == 2 else S_WS
    def pt_x(srd):
        return [f"s_mov_b32 {sP0}, 1" if reuse() else f"s_add_u32 {sP0}, {sXI}, 1", f"s_mul_i32 {sP1}, {sP0}, {X_SZ}", f"s_add_u32 {sP1}, {sP1}, {sXOFF}",
                pt(vL16, srd, sP1), pt(vL16, srd, sP1, 1024),
                f"s_add_u32 {sP1}, {sP1}, {sXREM}", pt(vL16, srd, sP1),
                f"s_mul_i32 {sP0}, {sP0}, {ST_SZ}", f"s_add_u32 {sP0}, {sP0}, {sSTOFF}", pt(None, srd, sP0)]
    def pt_act(p):
        ops = [f"s_mul_i32 {sP0}, {LB()}, {ACT_SZ}", f"s_add_u32 {sP0}, {sP0}, {sAOFF}"]
        if p < 3:
            ops += [f"s_lshl_b32 {sP1}, {sM}, 10", f"s_add_u32 {sP0}, {sP0}, {sP1}"]
            if p: ops.append(f"s_add_u32 {sP0}, {sP0}, {p*16384}")
            ops += [pt(vL16, PS(), sP0), f"s_add_u32 {sP0}, {sP0}, {54*1024}", pt(vL16, PS(), sP0)]
        else:
            ops += [pt(vACT6, PS(), sP0)]
        return ops
    def pt_o():
        return [f"s_mul_i32 {sP0}, {LB()}, {O_SZ}", f"s_add_u32 {sP0}, {sP0}, {sOOFF}",
                pt(vOREM, PS(), sP0), f"s_add_u32 {sP0}, {sP0}, 20480", pt(vOREM, PS(), sP0),
                f"s_lshl_b32 {sP1}, {sM}, 10", f"s_add_u32 {sP0}, {sP0}, {sP1}", pt(vL16, PS(), sP0), f"s_sub_u32 {sP0}, {sP0}, 20480", pt(vL16, PS(), sP0)]
    def pt_place(seg, ops, g):
        if cur["sfx"] != "F" or not opt.get("pt", 1): return g
        for o in ops:
            if isinstance(o, list): g = seg.group(o, g, maxcost=seg.cap - 1)
            else: g = seg.place(o, g)
        return g
    def pt_jobs(ops, earliest, dl):
        if cur["sfx"] != "F" or not opt.get("pt", 1): return []
        jobs = []; pend = []
        for o in ops:
            if isinstance(o, list):
                jobs.append((pend + [x if isinstance(x, Op) else Op(x) for x in o], dl, earliest)); pend = []
            elif isinstance(o, Op) and o.vm is not None:
                jobs.append((pend + [o], dl, earliest)); pend = []
            else: pend.append(o if isinstance(o, Op) else Op(o))
        assert not pend
        return jobs
    def pf_place(seg, ph, off, key, nxt=False): pass
    def pf_now(ph, off, key, nxt=False): pass
    def prologue_end():
        if opt.get("xh", 1) and not MONO:
            em.e(f"s_add_u32 s33, {sFLINE}, {FLG_XCC - FLG_G}")
            em.e(f"v_subrev_u32 v252, 0x20000, {vI4}")
            em.e(f"buffer_load_dword v251, v252, {S_WS}, s33 offen sc1")
        if PEEL: return
        if PTM == 3 and opt.get("ptpos", 0) == 0: pt_all()
        ring.emit(em, upto=HEAD)
        if PTM == 3 and opt.get("ptpos", 0) == 1: pt_all()
        assert ring.issued == HEAD and not ring.q
    def pt_all():
        ops = (pt_o() if PTK & 1 else []) + (pt_x(S_WS) if PTK & 2 else []) + (pt_act(0) if PTK & 4 else [])
        if PTK & 8: ops += pt_act(1) + pt_act(2) + pt_act(3)
        for o in ops: em.op(o if isinstance(o, Op) else Op(o))
    join_state = [None]
    def K1_p1(peel):
        AX = lambda b, t: 80 * t + 4 * b
        SB = TMP
        NM4 = 226
        P1 = ACC
        nh = PBLK[PA - 1] if peel else AH
        if not nh: set_sA_x()
        seg = Seg(); ws = WStream(ring, seg, "K1", SS=(opt.get("pss", SS) if peel else SS))
        fu = {}; lu = {}
        for b in range(20):
            for t in range(5):
                f = b * 5 + t; wr = ws.wreg(f)
                for tok in range(2):
                    d = P1 + 8 * t + 4 * tok
                    c = "0" if b == 0 else f"v[{d}:{d+3}]"
                    wl = [("w", "K1", b * 5 + 4)] if (t == 0 and tok == 0) else None
                    wv = [("a", b, 1)] if (t == 0 and tok == 0) else None
                    i = seg.mfma(f"v_mfma_f32_16x16x32_bf16 v[{d}:{d+3}], a[{AX(b,tok)}:{AX(b,tok)+3}], v[{wr}:{wr+3}], {c}", wvm=wv, wlg=wl)
                    if t == 0 and tok == 0: g0 = i
                    fu.setdefault(f, g0); lu[f] = i
        if peel: cur["LD"] = ""
        al = a_loads(2, 20, "K1", "a", AX)
        sl = stats_loads(SB)
        for o in sl: seg.put(0, o, 0)
        ws.reads(list(range(100)), fu, lu, force=(6,))
        if peel:
            ws.vmem(a_jobs(al, lambda b: 10 * b - opt.get("pal", 60))[2 * nh:], lambda r: (0 if r <= 6 else opt.get("p7", 0)) if r <= P1J else None, margin=opt.get("pmarg", MARG), qd=opt.get("pqd", QD), rate=opt.get("pr1", 38) / 10.0)
        else:
            ws.vmem(a_jobs(al, lambda b: 10 * b - 30)[2 * nh:], lambda r: 0 if r <= 6 else (opt.get("k1w", 0) if r <= P1J or not PEEL else None), margin=MARG, qd=QD, rate=opt.get("r1", 38) / 10.0)
        so = stats_ops(SB)
        for t in range(2):
            nm = SB + 8 + 2 * t
            so.append(Op(f"ds_write_b32 {vI4W}, v{nm} offset:{L_STAT + t*128}", lg="sw"))
            so.append(Op(f"ds_write_b32 {vI4W}, v{nm+1} offset:{L_STAT + t*128 + 64}", lg="sw"))
        for t in range(2):
            so.append(Op(f"ds_read_b128 v[{NM4+8*t}:{NM4+8*t+3}], {vG16W} offset:{L_STAT + t*128}", lg="sr", wlg=["sw"]))
            so.append(Op(f"ds_read_b128 v[{NM4+8*t+4}:{NM4+8*t+7}], {vG16W} offset:{L_STAT + t*128 + 64}", lg="sr"))
        for t in range(2):
            for r in range(4):
                so.append(Op(f"v_mul_f32 v{242+4*t+r}, {hex(LOG2E)}, v{NM4+8*t+4+r}", wlg=["sr"]))
        seg.stream(so, opt.get("pst0", 100) if peel else 40)
        if peel and opt.get("pcs", 0):
            co = []
            for k in range(1, 10):
                for q in range(4): co.append(Op(f"v_add_f32 v{CSVB+q}, v{CSVB+q}, v{CSVB+4*k+q}", wvm=["cs"] if (k == 1 and q == 0) else None))
            for q in range(4):
                co.append(f"v_mov_b32 v{CSVB+4+q}, v{CSVB+q}"); co.append(f"v_mov_b32 v{CSVB+8+q}, v{CSVB+q}")
            for q in range(4): co.append(f"v_permlane32_swap_b32 v{CSVB+4+q}, v{CSVB+8+q}")
            g = seg.stream(co, opt["pcs"], cap=4); co = []
            g = seg.group([Op(f"s_cmp_eq_u32 {sW}, 0"), Op("s_cselect_b64 vcc, -1, 0")], g, maxcost=10)
            for q in range(4):
                co.append(f"v_add_f32 v{CSVB+4+q}, v{CSVB+4+q}, v{CSVB+8+q}")
                co.append(f"v_cndmask_b32 v{CSVB+q}, v{CSVB+q}, v{CSVB+4+q}, vcc")
            for q in range(10):
                co.append(Op(f"v_lshlrev_b32 v{RES+2*q}, 16, v{RLB+q}", wvm=["res"] if q == 0 else None))
                co.append(f"v_and_b32 v{RES+2*q+1}, 0xffff0000, v{RLB+q}")
            g = seg.stream(co, g, cap=4)
            grp = [f"s_cmp_eq_u32 {sW}, 0", f"s_mov_b32 {sT0}, {L_CS3}", f"s_cselect_b32 {sT0}, {L_CS1}, {sT0}", f"s_cselect_b32 {sT1}, 32, 56",
                   f"s_cmp_ge_u32 {sW}, 2", f"s_cselect_b32 {sT1}, 0, {sT1}", f"v_add_u32 v254, {sT0}, {vR2}", f"v_lshrrev_b32 v255, 4, {vL16}",
                   f"v_cmp_gt_u32 vcc, {sT1}, v255", "s_and_saveexec_b64 s[34:35], vcc", Op(f"ds_write_b128 v254, v[{CSVB}:{CSVB+3}]", lg="csw"), "s_mov_b64 exec, s[34:35]"]
            g = seg.group([o if isinstance(o, Op) else Op(o) for o in grp], g + 1, maxcost=10)
            gl = ws.events[-1][0]
            assert g < gl, (g, gl)
            nb = 0
            for o in seg.gaps[gl]:
                if o.text == "s_barrier": o.wlg = list(o.wlg or []) + ["csw"]; nb += 1
            assert nb == 1
        for g in ((1, 50, 100, 150) if not opt.get('ls2') else range(1, 200, 20)): lstamp(seg, g)
        seg.emit(em)
        if PEEL: ring.emit(em, upto=P1J)
        sys.stderr.write(f"p1 end: issued {ring.issued} q {len(ring.q)} filled {ring.filled} allowed {ring.allowed} vm {em.vm} ev {ws.events}\n")
        return ws
    def K1_first(peel):
        if peel and opt.get("pcs", 0): K1_sel(peel); return
        for k in range(1, 10):
            for q in range(4): em.e(f"v_add_f32 v{CSVB+q}, v{CSVB+q}, v{CSVB+4*k+q}")
        for q in range(4):
            em.e(f"v_mov_b32 v{CSVB+4+q}, v{CSVB+q}"); em.e(f"v_mov_b32 v{CSVB+8+q}, v{CSVB+q}")
        for q in range(4):
            em.e(f"v_permlane32_swap_b32 v{CSVB+4+q}, v{CSVB+8+q}")
        em.e(f"s_cmp_eq_u32 {sW}, 0"); em.e("s_cselect_b64 vcc, -1, 0")
        for q in range(4):
            em.e(f"v_add_f32 v{CSVB+4+q}, v{CSVB+4+q}, v{CSVB+8+q}")
            em.e(f"v_cndmask_b32 v{CSVB+q}, v{CSVB+q}, v{CSVB+4+q}, vcc")
        em.e(f"s_cmp_eq_u32 {sW}, 0"); em.e(f"s_mov_b32 {sT0}, {L_CS3}"); em.e(f"s_cselect_b32 {sT0}, {L_CS1}, {sT0}"); em.e(f"s_cselect_b32 {sT1}, 32, 56")
        em.e(f"s_cmp_ge_u32 {sW}, 2"); em.e(f"s_cselect_b32 {sT1}, 0, {sT1}")
        em.e(f"v_add_u32 v254, {sT0}, {vR2}")
        em.e(f"v_lshrrev_b32 v255, 4, {vL16}")
        em.e(f"v_cmp_gt_u32 vcc, {sT1}, v255")
        em.e("s_and_saveexec_b64 s[34:35], vcc")
        em.e(f"ds_write_b128 v254, v[{CSVB}:{CSVB+3}]")
        em.e("s_mov_b64 exec, s[34:35]")
        for q in range(10):
            em.e(f"v_lshlrev_b32 v{RES+2*q}, 16, v{RLB+q}")
            em.e(f"v_and_b32 v{RES+2*q+1}, 0xffff0000, v{RLB+q}")
        em.raw("    s_waitcnt lgkmcnt(0)")
        em.e("s_barrier")
        K1_sel(peel)
    def K1_sel(peel):
        if cur["sfx"] == "F" and not MONO:
            uid[0] += 1; u = uid[0]
            em.e(f"s_add_u32 {sT1}, {sFLINE}, {FLG_XCC - FLG_G}")
            if opt.get("xh", 1):
                em.e(f"v_mov_b32 v253, v251")
                em.e(f"v_cmp_gt_u32 vcc, 1, v253")
                em.e(f"s_cbranch_vccz Lx{u}_p_x")
            poll(sT1, "1", f"Lx{u}_p")
            em.e(f"v_cmp_ne_u32 vcc, {sMODE}, v253")
            if opt.get("force_slow", 0): em.e("s_branch Lk1_nocsS")
            em.e("s_cbranch_vccnz Lk1_nocsS")
        if peel: em.e("s_branch Lk1_nocsF")
    def K1():
        AX = lambda b, t: 80 * t + 4 * b
        SB = TMP; NM4 = 226; P1 = ACC
        ws = K1_p1(False)
        stamp()
        svm = list(em.vm)
        if PEEL:
            svm = [t for t in svm if isinstance(t, tuple) and t[0] == "dma"]
            assert (ring.issued, ring.filled, ring.allowed, svm, WStream.cnt) == join_state[0], ((ring.issued, ring.filled, ring.allowed, svm, WStream.cnt), join_state[0])
        else:
            em.e(f"s_cmp_lg_u32 {sLAYER}, 0"); em.e(f"s_cbranch_scc1 Lk1_nocs{cur['sfx']}")
            K1_first(False)
        em.label(f"Lk1_nocs{cur['sfx']}")
        em.vm = svm; em.lg = []
        em.raw("    s_waitcnt lgkmcnt(0)")
        if not opt.get('k1n', 1):
            CS = 140
            for t in range(5):
                em.e(f"ds_read_b32 v{CS+t}, {vI4} offset:{L_CS1 + t*64}", lg="cs")
            KF = 148
            T1, T2 = 172, 173
            def nmr(tok, r): return NM4 + 8 * tok + r
            def rsr(tok, r): return NM4 + 8 * tok + 4 + r
            def rlr(tok, r): return 242 + 4 * tok + r
            em.wait(wlg=["cs"])
            XV = 176
            ops = []
            streams = []
            tmpc = [180]
            for (t, fr_) in ((0, KF), (1, KF + 4), (4, KF + 16)):
                for tok in range(2):
                    for r in range(4):
                        a = P1 + 8 * t + 4 * tok + r
                        tt = 184 + (len(streams) % 8)
                        if t == 4:
                            s_ = [f"v_fmac_f32 v{a}, v{nmr(tok,r)}, v{CS+t}",
                                  f"v_mul_f32 v{XV+4*tok+r}, v{a}, v{rsr(tok,r)}",
                                  f"v_mul_f32 v{tt}, v{a}, v{rlr(tok,r)}",
                                  f"v_exp_f32 v{tt}, v{tt} clamp",
                                  f"v_max_f32 v{a}, 0, v{a}",
                                  f"v_add_f32 v{tt}, {hex(EPS6)}, v{tt}",
                                  f"v_fma_f32 v{a}, v{a}, v{rsr(tok,r)}, v{tt}"]
                        else:
                            s_ = [x[0] if isinstance(x, tuple) else x for x in phi_ops(a, CS + t, nmr(tok, r), rsr(tok, r), rlr(tok, r), tt, None)]
                        streams.append(s_)
            for k in range(0, len(streams), 4):
                lin(il(streams[k:k + 4]))
                ring.emit(em, 4)
            for t in (2, 3):
                for tok in range(2):
                    for r in range(4):
                        a = P1 + 8 * t + 4 * tok + r
                        em.e(f"v_fmac_f32 v{a}, v{nmr(tok,r)}, v{CS+t}")
                    for r in range(4):
                        a = P1 + 8 * t + 4 * tok + r
                        em.e(f"v_mul_f32 v{a}, v{a}, v{rsr(tok,r)}")
            for k in range(8):
                em.e(f"v_cndmask_b32 v{XV+k}, v{XV+k}, 1.0, {sI8}")
            def pack(dst, src_tok0, src_tok1):
                em.e(f"v_cvt_pk_bf16_f32 v{dst}, v{src_tok0}, v{src_tok0+1}"); em.e(f"v_cvt_pk_bf16_f32 v{dst+1}, v{src_tok0+2}, v{src_tok0+3}")
                em.e(f"v_cvt_pk_bf16_f32 v{dst+2}, v{src_tok1}, v{src_tok1+1}"); em.e(f"v_cvt_pk_bf16_f32 v{dst+3}, v{src_tok1+2}, v{src_tok1+3}")
            K0f, K1f, V0f, V1f, XKf, XPf = KF, KF + 4, KF + 8, KF + 12, KF + 16, KF + 20
            pack(K0f, P1 + 0, P1 + 4); pack(K1f, P1 + 8, P1 + 12); pack(V0f, P1 + 16, P1 + 20); pack(V1f, P1 + 24, P1 + 28)
            pack(XKf, P1 + 32, P1 + 36); pack(XPf, XV, XV + 4)
            D = 184
            for k, (A_, B_) in enumerate([(K0f, V0f), (K1f, V1f), (XKf, V0f), (XKf, V1f), (K0f, XPf), (K1f, XPf), (XKf, XPf)]):
                em.e(f"v_mfma_f32_16x16x32_bf16 v[{D+4*k}:{D+4*k+3}], v[{A_}:{A_+3}], v[{B_}:{B_+3}], 0")
            D1, D2, D3, D4, D5, D6, D7 = [D + 4 * k for k in range(7)]
            for r in range(4):
                em.e(f"v_cndmask_b32 v{D5+r}, v{D5+r}, v{D6+r}, {sBIT2}")
                em.e(f"v_cndmask_b32 v{D3+r}, v{D3+r}, v{D4+r}, {sMK[1]}")
            for r in range(4):
                em.e(f"v_permlane32_swap_b32 v{D3+r}, v{D7+r}")
            ring.emit(em, upto=13)
            assert ring.issued <= 13 and ring.next_round() <= 14 and not ring.q and ws.lastbar >= 6, (ring.issued, ws.lastbar)
            RP = (14 % NR) * 16384 - 65536
            em.e(f"v_add_u32 v254, {sW1K}, {vR1}"); em.e(f"v_add_u32 v255, {sW4K}, {vR1}")
            for t, src in enumerate((D1, D2, D5, D3)):
                em.e(f"ds_write_b128 v254, v[{src}:{src+3}] offset:{RP + t*4096}", lg="red")
            em.wait_all_lg()
            em.wait(wvm=[("dma", x) for x in range(ring.filled + 1, 9)])
            ring.filled = 8
            em.e("s_barrier")
            for k in range(4):
                em.e(f"ds_read_b128 v[{D+4*k}:{D+4*k+3}], v255 offset:{RP + k*1024}", lg=("rr", k))
            em.e(f"s_mul_i32 {sST}, {sLAYER}, {KVP_L}"); em.e(f"s_lshl_b32 {sST2}, {sM}, 16"); em.e(f"s_add_u32 {sST}, {sST}, {sST2}")
            em.e(f"s_add_u32 {sST}, {sST}, {KVP}"); em.e(f"s_add_u32 {sST}, {sST}, {sW1K}")
            em.e(f"s_lshl_b32 {sST2}, {sG}, 12"); em.e(f"s_add_u32 {sST2}, {sST2}, {sST}")
            for q in range(4): em.e(f"v_add_f32 v{D+q}, v{D+q}, v{D+4+q}", wlg=[("rr", 1)] if q == 0 else None)
            for q in range(4): em.e(f"v_add_f32 v{D+8+q}, v{D+8+q}, v{D+12+q}", wlg=[("rr", 3)] if q == 0 else None)
            for q in range(4): em.e(f"v_add_f32 v{D+q}, v{D+q}, v{D+8+q}")
            em.e(f"buffer_store_dwordx4 v[{D}:{D+3}], {vL16}, {S_WS}, {sST2} offen sc1", vm="kvst")
            stamp()
            P2 = ACC
            seg = Seg(); ws2 = WStream(ring, seg, "K1", SS=SS)
            fu = {}; lu = {}
            for b in range(20):
                for t in range(3):
                    f = 100 + 3 * b + t; wr = ws2.wreg(f)
                    for tok in range(2):
                        d = P2 + 8 * t + 4 * tok
                        c = "0" if b == 0 else f"v[{d}:{d+3}]"
                        wl = [("w", "K1", 100 + 3 * b + 2)] if (t == 0 and tok == 0) else None
                        i = seg.mfma(f"v_mfma_f32_16x16x32_bf16 v[{d}:{d+3}], v[{wr}:{wr+3}], a[{AX(b,tok)}:{AX(b,tok)+3}], {c}", wlg=wl)
                        if t == 0 and tok == 0: g0 = i
                        fu.setdefault(f, g0); lu[f] = i
            ws2.reads(list(range(100, 160)), fu, lu, nobar=(7, 8))
            assert len(ws2.events) == 1
            gb = ws2.events[0][0]
            for o in seg.gaps[gb]:
                if o.text == "s_barrier": o.wvm = list(o.wvm) + ["kvst"]
            pub = [Op(f"s_add_u32 {sT0}, {sLAYER}, 1"),
                   Op(f"v_mov_b32 v254, {sT0}"), Op("v_mov_b32 v255, 0"),
                   Op(f"s_mov_b64 exec, {sFEX}"),
                   Op(f"buffer_store_dword v254, v255, {S_WS}, {sKOWN} offen sc1"),
                   Op("s_mov_b64 exec, -1")]
            g = seg.stream(pub[:3], gb - 6)
            assert g < gb
            for o in pub[3:]: seg.put(gb + 1, o, 1)
            g = pt_place(seg, pt_o(), 2)
            g = pt_place(seg, pt_x(S_WS), g)
            g = pt_place(seg, pt_act(0), g)
            pf_place(seg, "K3", 32768, "pa1"); pf_place(seg, "K3", 32768 + 65536, "pa2"); pf_place(seg, "K3", 32768 + 2*65536, "pa3"); pf_place(seg, "K3", 32768 + 3*65536, "pa4")
            ws2.vmem([], lambda r: 0, margin=MARG, qd=QD, rate=RATE)
            CS4 = 140
            seg.stream([Op(f"ds_read_b128 v[{CS4+4*t}:{CS4+4*t+3}], {vG16} offset:{L_CS1 + (5+t)*64}", lg="cs4") for t in range(3)], 60)
            RLI = 152
            seg.stream([f"v_mul_f32 v{RLI+t}, {hex(LOG2E)}, v{SB+8+2*t+1}" for t in range(2)], 70)
            seg.emit(em)
            stamp()
            em.wait(wlg=["cs4"])
            streams = []
            for t in range(3):
                for tok in range(2):
                    for r in range(4):
                        a = P2 + 8 * t + 4 * tok + r
                        tt = 184 + (len(streams) % 8)
                        streams.append([x[0] if isinstance(x, tuple) else x for x in phi_ops(a, CS4 + 4 * t + r, SB + 8 + 2 * tok, SB + 8 + 2 * tok + 1, RLI + tok, tt, None)])
            for k in range(0, len(streams), 4):
                lin(il(streams[k:k + 4]))
                ring.emit(em, 2)
            F = 156
            for tok in range(2):
                qa = P2 + 4 * tok; qb = P2 + 8 + 4 * tok; qx = P2 + 16 + 4 * tok
                fa = F + 8 * tok; fb = fa + 4
                em.e(f"v_cvt_pk_bf16_f32 v{fa}, v{qa}, v{qa+1}"); em.e(f"v_cvt_pk_bf16_f32 v{fa+1}, v{qa+2}, v{qa+3}")
                em.e(f"v_cvt_pk_bf16_f32 v{fa+2}, v{qx}, v{qx+1}"); em.e(f"v_cvt_pk_bf16_f32 v{fa+3}, v{qx+2}, v{qx+3}")
                em.e(f"v_cvt_pk_bf16_f32 v{fb}, v{qb}, v{qb+1}"); em.e(f"v_cvt_pk_bf16_f32 v{fb+1}, v{qb+2}, v{qb+3}")
                em.e(f"v_mov_b32 v{fb+2}, v{fa+2}"); em.e(f"v_mov_b32 v{fb+3}, v{fa+3}")
            uid[0] += 1; u = uid[0]
            em.e(f"s_cmp_lg_u32 {sW}, 0")
            em.e(f"s_cbranch_scc1 Lkv{u}_o")
            em.e(f"s_add_u32 {sT0}, {sLAYER}, 1")
            poll(sKLINE, sT0, f"Lkv{u}_p")
            em.label(f"Lkv{u}_o")
            em.e("s_barrier")
            ring.allowed = max(ring.allowed, 18)
            KL = 172
            for Gp in range(16):
                if Gp % 1 == 0: em.e(f"s_add_u32 {sST2}, {sST}, {Gp*4096}")
                em.e(f"buffer_load_dwordx4 v[{KL+4*Gp}:{KL+4*Gp+3}], {vL16}, {S_WS}, {sST2} offen sc1", vm=("kl", Gp))
            ring.emit(em, upto=18)
            pf_now("K3", 32768, "pb1"); pf_now("K3", 32768 + 65536, "pb2"); pf_now("K3", 32768 + 2*65536, "pb3"); pf_now("K3", 32768 + 3*65536, "pb4")
            for Gp in range(1, 16):
                for q in range(4):
                    em.e(f"v_add_f32 v{KL+q}, v{KL+q}, v{KL+4*Gp+q}", wvm=[("kl", Gp)] if q == 0 else None)
        else:
            CS = 140
            for t in range(5):
                em.e(f"ds_read_b32 v{CS+t}, {vI4} offset:{L_CS1 + t*64}", lg="cs")
            KF = 148
            def nmr(tok, r): return NM4 + 8 * tok + r
            def rsr(tok, r): return NM4 + 8 * tok + 4 + r
            def rlr(tok, r): return 242 + 4 * tok + r
            XV = 172
            TT = 180
            P2 = 188
            em.e(f"s_mul_i32 {sST}, {sLAYER}, {KVP_L}"); em.e(f"s_lshl_b32 {sST2}, {sM}, 16"); em.e(f"s_add_u32 {sST}, {sST}, {sST2}")
            em.e(f"s_add_u32 {sST}, {sST}, {KVP}"); em.e(f"s_add_u32 {sST}, {sST}, {sW1K}")
            em.e(f"s_lshl_b32 {sST2}, {sG}, 12"); em.e(f"s_add_u32 {sST2}, {sST2}, {sST}")
            em.e(f"v_add_u32 v254, {sW1K}, {vR1}"); em.e(f"v_add_u32 v255, {sW4K}, {vR1}")
            seg = Seg(); ws2 = WStream(ring, seg, "K1", SS=SS)
            fu = {}; lu = {}
            for b in range(20):
                for t in range(3):
                    f = 100 + 3 * b + t; wr = ws2.wreg(f)
                    for tok in range(2):
                        d = P2 + 8 * t + 4 * tok
                        c = "0" if b == 0 else f"v[{d}:{d+3}]"
                        wl = [("w", "K1", 100 + 3 * b + 2)] if (t == 0 and tok == 0) else None
                        i = seg.mfma(f"v_mfma_f32_16x16x32_bf16 v[{d}:{d+3}], v[{wr}:{wr+3}], a[{AX(b,tok)}:{AX(b,tok)+3}], {c}", wlg=wl)
                        if t == 0 and tok == 0: g0 = i
                        fu.setdefault(f, g0); lu[f] = i
            assert ring.filled == 6, ring.filled
            ws2.reads(list(range(100, 144)), fu, lu)
            assert len(ws2.events) == 1 and ws2.events[0][2] == 8, ws2.events
            ws2.events[0] = (ws2.events[0][0], 13, 8)
            streams = []
            def phi_stream(t):
                for tok in range(2):
                    for r in range(4):
                        a = P1 + 8 * t + 4 * tok + r
                        tt = TT + (len(streams) % 8)
                        if t == 4:
                            s_ = [f"v_fmac_f32 v{a}, v{nmr(tok,r)}, v{CS+t}",
                                  f"v_mul_f32 v{XV+4*tok+r}, v{a}, v{rsr(tok,r)}",
                                  f"v_mul_f32 v{tt}, v{a}, v{rlr(tok,r)}",
                                  (Op(f"v_exp_f32 v{tt}, v{tt} clamp"), 2),
                                  f"v_max_f32 v{a}, 0, v{a}",
                                  f"v_add_f32 v{tt}, {hex(EPS6)}, v{tt}",
                                  f"v_fma_f32 v{a}, v{a}, v{rsr(tok,r)}, v{tt}"]
                        else:
                            s_ = phi_ops(a, CS + t, nmr(tok, r), rsr(tok, r), rlr(tok, r), tt, None)
                        streams.append(s_)
            for t in (0, 1, 4): phi_stream(t)
            ko = []
            for k in range(0, len(streams), 4): ko += il(streams[k:k + 4])
            o0 = ko[0]; o0 = Op(o0, wlg=["cs"]); ko[0] = o0
            for t in (2, 3):
                for tok in range(2):
                    for r in range(4):
                        a = P1 + 8 * t + 4 * tok + r
                        ko.append(f"v_fmac_f32 v{a}, v{nmr(tok,r)}, v{CS+t}")
                    for r in range(4):
                        a = P1 + 8 * t + 4 * tok + r
                        ko.append(f"v_mul_f32 v{a}, v{a}, v{rsr(tok,r)}")
            for k in range(8):
                ko.append(f"v_cndmask_b32 v{XV+k}, v{XV+k}, 1.0, {sI8}")
            def pack(dst, src_tok0, src_tok1):
                return [f"v_cvt_pk_bf16_f32 v{dst}, v{src_tok0}, v{src_tok0+1}", f"v_cvt_pk_bf16_f32 v{dst+1}, v{src_tok0+2}, v{src_tok0+3}",
                        f"v_cvt_pk_bf16_f32 v{dst+2}, v{src_tok1}, v{src_tok1+1}", f"v_cvt_pk_bf16_f32 v{dst+3}, v{src_tok1+2}, v{src_tok1+3}"]
            K0f, K1f, V0f, V1f, XKf, XPf = KF, KF + 4, KF + 8, KF + 12, KF + 16, KF + 20
            ko += pack(K0f, P1 + 0, P1 + 4) + pack(K1f, P1 + 8, P1 + 12) + pack(XKf, P1 + 32, P1 + 36) + pack(V0f, P1 + 16, P1 + 20) + pack(V1f, P1 + 24, P1 + 28) + pack(XPf, XV, XV + 4)
            KCAP = opt.get("kcap", 5)
            g = seg.stream(ko, 0, cap=KCAP)
            D = 100
            g += 1
            for k, (A_, B_) in enumerate([(K0f, V0f), (K1f, V1f), (XKf, V0f), (XKf, V1f), (K0f, XPf), (K1f, XPf), (XKf, XPf)]):
                seg.put(g + k // 2, f"v_mfma_f32_16x16x32_bf16 v[{D+4*k}:{D+4*k+3}], v[{A_}:{A_+3}], v[{B_}:{B_+3}], 0", 2)
            g += 5
            D1, D2, D3, D4, D5, D6, D7 = [D + 4 * k for k in range(7)]
            RP = (14 % NR) * 16384 - 65536
            ko = [Op(f"ds_write_b128 v254, v[{D1}:{D1+3}] offset:{RP}", lg="red"), Op(f"ds_write_b128 v254, v[{D2}:{D2+3}] offset:{RP + 4096}", lg="red")]
            for r in range(4):
                ko.append(f"v_cndmask_b32 v{D5+r}, v{D5+r}, v{D6+r}, {sBIT2}")
            for r in range(4):
                ko.append(f"v_cndmask_b32 v{D3+r}, v{D3+r}, v{D4+r}, {sMK[1]}")
            ko.append(Op(f"ds_write_b128 v254, v[{D5}:{D5+3}] offset:{RP + 2*4096}", lg="red"))
            for r in range(4):
                ko.append(f"v_permlane32_swap_b32 v{D3+r}, v{D7+r}")
            g = seg.stream(ko, g, cap=KCAP)
            g = seg.put(g + 1, Op(f"ds_write_b128 v254, v[{D3}:{D3+3}] offset:{RP + 3*4096}", lg="red"), 1)
            gR = g + opt.get("kgb", 3)
            seg.put(gR, Op("s_barrier", wvm=[("dma", 9)], wlg=["red"]), 2)
            for k in range(4):
                seg.put(gR, Op(f"ds_read_b128 v[{D+4*k}:{D+4*k+3}], v255 offset:{RP + k*1024}", lg=("rr", k)), 1)
            assert gR < fu[144] - 1, (gR, fu[144])
            ws2.events.append((gR, 13, 9))
            g = gR + opt.get("kga", 4)
            ko = []
            for q in range(4): ko.append(Op(f"v_add_f32 v{D+q}, v{D+q}, v{D+4+q}", wlg=[("rr", 1)] if q == 0 else None))
            for q in range(4): ko.append(Op(f"v_add_f32 v{D+8+q}, v{D+8+q}, v{D+12+q}", wlg=[("rr", 3)] if q == 0 else None))
            for q in range(4): ko.append(Op(f"v_add_f32 v{D+q}, v{D+q}, v{D+8+q}"))
            KVH = opt.get("kvh", 1)
            if KVH:
                ko.insert(0, Op(f"v_lshrrev_b32 v254, 1, {vL16}"))
                ko += [Op(f"v_cvt_pk_bf16_f32 v{D}, v{D}, v{D+1}"), Op(f"v_cvt_pk_bf16_f32 v{D+1}, v{D+2}, v{D+3}")]
                ko.append(Op(f"buffer_store_dwordx2 v[{D}:{D+1}], v254, {S_WS}, {sST2} offen sc1", vm="kvst"))
            else:
                ko.append(Op(f"buffer_store_dwordx4 v[{D}:{D+3}], {vL16}, {S_WS}, {sST2} offen sc1", vm="kvst"))
            gS = seg.stream(ko, g, cap=4)
            ws2.events.append((g + 4, 14, 9))
            ring.filled = 9
            ev = list(ws2.events)
            ws2.reads(list(range(144, 160)), fu, lu, ming=gR + 1)
            assert ws2.events == ev
            pj = pt_jobs((pt_o() if PTK & 1 else []) + (pt_x(PS()) if PTK & 2 else []) + (pt_act(0) if PTK & 4 else []), opt.get("ptg", 40), 119) if PTM != 3 else []
            pq = []
            if opt.get("ptq", 0): pq = pj; pj = []
            ws2.vmem(pj, lambda r: 0, margin=MARG, qd=opt.get("qs2", 4), rate=opt.get("rs2", 35) / 10.0, cap=KCAP + 2, burst0=False)
            CS4 = 140
            seg.stream([Op(f"ds_read_b128 v[{CS4+4*t}:{CS4+4*t+3}], {vG16} offset:{L_CS1 + (5+t)*64}", lg="cs4") for t in range(3)], gS + 1)
            RLI = 152
            seg.stream([f"v_mul_f32 v{RLI+t}, {hex(LOG2E)}, v{SB+8+2*t+1}" for t in range(2)], gS + 4)
            sys.stderr.write(f"S2: gR {gR} gS {gS} ev {ws2.events}\n")
            if opt.get('ls2'):
                for g in range(1, 108, 7): lstamp(seg, g)
            seg.emit(em)
            stamp()
            KL = WW
            NL = 8 if KVH else 16
            KA = WW + 32
            vKV = "v255" if KVH else vL16
            K1SC = "" if opt.get("kvp", 1) else " sc1"
            if KVH:
                em.e(f"v_and_b32 v254, 0x200, {vL16}"); em.e("v_lshlrev_b32 v254, 3, v254"); em.e(f"v_and_b32 v255, 0x1f0, {vL16}"); em.e("v_add_u32 v255, v255, v254")
            def kl_loads(tag):
                for Gp in range(NL):
                    em.e(f"s_add_u32 {sST2}, {sST}, {Gp*4096*(16//NL)}")
                    em.e(f"buffer_load_dwordx4 v[{KL+4*Gp}:{KL+4*Gp+3}], {vKV}, {S_WS}, {sST2} offen sc1", vm=(tag, Gp) if tag else None)
            streams = []
            for t in range(3):
                for tok in range(2):
                    for r in range(4):
                        a = P2 + 8 * t + 4 * tok + r
                        tt = TT + (len(streams) % 8)
                        streams.append([x[0] if isinstance(x, tuple) else x for x in phi_ops(a, CS4 + 4 * t + r, SB + 8 + 2 * tok, SB + 8 + 2 * tok + 1, RLI + tok, tt, None)])
            qops = []
            for k in range(0, len(streams), 4): qops += il(streams[k:k + 4])
            F = 156
            for tok in range(2):
                qa = P2 + 4 * tok; qb = P2 + 8 + 4 * tok; qx = P2 + 16 + 4 * tok
                fa = F + 8 * tok; fb = fa + 4
                qops += [f"v_cvt_pk_bf16_f32 v{fa}, v{qa}, v{qa+1}", f"v_cvt_pk_bf16_f32 v{fa+1}, v{qa+2}, v{qa+3}",
                         f"v_cvt_pk_bf16_f32 v{fa+2}, v{qx}, v{qx+1}", f"v_cvt_pk_bf16_f32 v{fa+3}, v{qx+2}, v{qx+3}",
                         f"v_cvt_pk_bf16_f32 v{fb}, v{qb}, v{qb+1}", f"v_cvt_pk_bf16_f32 v{fb+1}, v{qb+2}, v{qb+3}",
                         f"v_mov_b32 v{fb+2}, v{fa+2}", f"v_mov_b32 v{fb+3}, v{fa+3}"]
            KLS = opt.get("kls", 6)
            first = True
            for k, o in enumerate(qops):
                if k % KLS == 0 and k // KLS < NL:
                    Gp = k // KLS
                    em.e(f"s_add_u32 {sST2}, {sST}, {Gp*4096*(16//NL)}")
                    em.e(f"buffer_load_dwordx4 v[{KL+4*Gp}:{KL+4*Gp+3}], {vKV}, {S_WS}, {sST2} offen{K1SC}", vm=("kl", Gp))
                elif k % (KLS if not pq else opt.get("ptqs", 3)) == 0 and k // KLS >= NL and pq:
                    for o2 in pq.pop(0)[0]: em.op(o2)
                elif k % KLS == 0: ring.emit(em, 1)
                if first: em.wait(wlg=["cs4"]); first = False
                em.op(o)
            for j in pq:
                for o2 in j[0]: em.op(o2)
            stamp()
            uid[0] += 1; u = uid[0]
            em.e(f"s_mov_b32 {sSPIN}, 0")
            if KVH:
                em.e(f"s_mov_b32 {sP0}, 0x3f80"); em.e(f"s_mov_b32 {sP1}, 0x3f800000")
                em.wait(wvm=[("kl", 0)])
                em.label(f"Lkv{u}_s")
                for q in range(8): em.e(f"v_mov_b32 v{KA+q}, 0")
                for Gp in range(8):
                    for q in range(4):
                        em.e(f"v_dot2c_f32_bf16 v{KA+2*q}, {sP0}, v{KL+4*Gp+q}", wvm=[("kl", Gp)] if q == 0 else None)
                        em.e(f"v_dot2c_f32_bf16 v{KA+2*q+1}, {sP1}, v{KL+4*Gp+q}")
                em.e(f"v_cmp_u_f32 vcc, v{KA}, v{KA+2}"); em.e(f"v_cmp_u_f32 s[34:35], v{KA+4}, v{KA+6}")
            else:
                for Gp in range(1, 16):
                    if Gp == 1:
                        em.wait(wvm=[("kl", 1)])
                        em.label(f"Lkv{u}_s")
                    for q in range(4):
                        em.e(f"v_add_f32 v{KL+q}, v{KL+q}, v{KL+4*Gp+q}", wvm=[("kl", Gp)] if q == 0 else None)
                em.e(f"v_cmp_u_f32 vcc, v{KL}, v{KL+1}"); em.e(f"v_cmp_u_f32 s[34:35], v{KL+2}, v{KL+3}")
            em.e(f"s_or_b64 vcc, vcc, s[34:35]")
            em.e(f"s_cbranch_vccz Lkv{u}_o")
            em.e(f"s_add_u32 {sSPIN}, {sSPIN}, 1"); em.e(f"s_cmp_gt_u32 {sSPIN}, 20000"); em.e(f"s_cbranch_scc1 Lkv{u}_o")
            kl_loads(None)
            em.raw("    s_waitcnt vmcnt(0)")
            em.e(f"s_branch Lkv{u}_s")
            em.label(f"Lkv{u}_o")
        if opt.get('k1n', 1) and KVH:
            for q in range(4): em.e(f"v_permlane32_swap_b32 v{KA+q}, v{KA+4+q}")
            for q in range(4): em.e(f"v_add_f32 v{KA+q}, v{KA+q}, v{KA+4+q}")
            em.e(f"v_cvt_pk_bf16_f32 v{KL}, v{KA}, v{KA+1}"); em.e(f"v_cvt_pk_bf16_f32 v{KL+1}, v{KA+2}, v{KA+3}")
            em.e(f"v_and_b32 v254, 0x1f0, {vL16}"); em.e(f"v_lshrrev_b32 v255, 6, {vL16}"); em.e("v_and_b32 v255, 8, v255"); em.e("v_add_u32 v254, v254, v255")
            em.e(f"s_lshl_b32 {sT0}, {sW}, 9"); em.e(f"s_add_u32 {sT0}, {sT0}, 0x20000"); em.e(f"v_add_u32 v254, {sT0}, v254")
        else:
            em.e(f"v_cvt_pk_bf16_f32 v{KL}, v{KL}, v{KL+1}"); em.e(f"v_cvt_pk_bf16_f32 v{KL+1}, v{KL+2}, v{KL+3}")
            em.e(f"s_lshl_b32 {sT0}, {sW}, 9"); em.e(f"v_add_u32 v254, {sT0}, {vL8}")
        em.e(f"ds_write_b64 v254, v[{KL}:{KL+1}] offset:{L_KVB}", lg="kw")
        em.wait_all_lg()
        em.e("s_barrier")
        if opt.get('k1n', 1):
            ring.allowed = max(ring.allowed, 18)
            ring.emit(em, upto=18)
            pf_now("K3", 32768, "pb1"); pf_now("K3", 32768 + 65536, "pb2")
        R_ = 176
        for t in range(4):
            em.e(f"ds_read_b64 v[{R_+2*t}:{R_+2*t+1}], {vL8} offset:{L_KVB + t*512}", lg="kr")
        em.e(f"v_xor_b32 v254, 256, {vL8}")
        em.e(f"ds_read_b64 v[{R_+8}:{R_+9}], v254 offset:{L_KVB + 3*512}", lg="kr")
        em.e(f"v_and_b32 v254, 0xfffffe7f ^ 0, {vL8}" if False else f"v_lshlrev_b32 v254, 3, {vG16}")
        em.e(f"v_and_b32 v254, 0x3ff, v254")
        em.e(f"v_add_u32 v254, 0x20000, v254")
        em.e(f"ds_read_b64 v[{R_+10}:{R_+11}], v254 offset:{L_KVB + 2*512}", lg="kr")
        em.e(f"ds_read_b64 v[{R_+12}:{R_+13}], v254 offset:{L_KVB + 2*512 + 32}", lg="kr")
        em.e("v_mov_b32 v255, 0x20000")
        em.e(f"ds_read_b64 v[{R_+14}:{R_+15}], v255 offset:{L_KVB + 3*512 + 32*8}", lg="kr")
        em.e(f"ds_read_b64 v[{R_+16}:{R_+17}], v255 offset:{L_KVB + 3*512 + 52*8}", lg="kr")
        em.wait_all_lg()
        t1, t2, t3, t4, t4x, za, zb, zxa, zxb = [R_ + 2 * k for k in range(9)]
        AF = 196
        Aa, Ab, Axa, Axb, Aza, Azb = [AF + 4 * k for k in range(6)]
        mg0, mg1, ma, mb, mga, mgb = sMK
        def cp(dst, src):
            em.e(f"v_mov_b32 v{dst}, v{src}"); em.e(f"v_mov_b32 v{dst+1}, v{src+1}")
        def mk(dst, src, m):
            em.e(f"v_cndmask_b32 v{dst}, 0, v{src}, {m}"); em.e(f"v_cndmask_b32 v{dst+1}, 0, v{src+1}, {m}")
        cp(Aa, t1); mk(Aa + 2, t4, mg0)
        cp(Ab, t2); mk(Ab + 2, t4, mg1)
        mk(Axa, t3, ma); mk(Axa + 2, t4x, mga)
        mk(Axb, t3, mb); mk(Axb + 2, t4x, mgb)
        cp(Aza, za); mk(Aza + 2, zxa, mg0)
        cp(Azb, zb); mk(Azb + 2, zxb, mg1)
        O = 100
        for tok in range(2):
            fa = F + 8 * tok; fb = fa + 4; o = O + 20 * tok
            em.e(f"v_mfma_f32_16x16x32_bf16 v[{o+12}:{o+15}], v[{Aza}:{Aza+3}], v[{fa}:{fa+3}], 0")
            em.e(f"v_mfma_f32_16x16x32_bf16 v[{o+16}:{o+19}], v[{Azb}:{Azb+3}], v[{fb}:{fb+3}], 0")
            em.e(f"v_mfma_f32_16x16x32_bf16 v[{o}:{o+3}], v[{Aa}:{Aa+3}], v[{fa}:{fa+3}], 0")
            em.e(f"v_mfma_f32_16x16x32_bf16 v[{o+4}:{o+7}], v[{Ab}:{Ab+3}], v[{fb}:{fb+3}], 0")
            em.e(f"v_mfma_f32_16x16x32_bf16 v[{o+8}:{o+11}], v[{Axa}:{Axa+3}], v[{fa}:{fa+3}], 0")
            em.e(f"v_mfma_f32_16x16x32_bf16 v[{o+8}:{o+11}], v[{Axb}:{Axb+3}], v[{fb}:{fb+3}], v[{o+8}:{o+11}]")
        em.e(f"s_mul_i32 {sST}, {LB()}, {O_SZ}"); em.e(f"s_mul_i32 {sST2}, {sTT2}, 20480"); em.e(f"s_add_u32 {sST}, {sST}, {sST2}")
        em.e(f"s_add_u32 {sST}, {sST}, {OB}")
        em.e(f"s_lshl_b32 {sST2}, {sM}, 10"); em.e(f"s_add_u32 {sST2}, {sST2}, {sST}")
        for tok in range(2):
            o = O + 20 * tok
            em.e(f"v_add_f32 v{o+12}, {hex(EPS6)}, v{o+12}"); em.e(f"v_add_f32 v{o+16}, {hex(EPS6)}, v{o+16}")
            em.e(f"v_rcp_f32 v{o+12}, v{o+12}"); em.e(f"v_rcp_f32 v{o+16}, v{o+16}")
            em.e(f"v_cndmask_b32 v{o+13}, v{o+12}, v{o+16}, {sG3}")
            for r in range(4):
                em.e(f"v_mul_f32 v{o+r}, v{o+r}, v{o+12}"); em.e(f"v_mul_f32 v{o+4+r}, v{o+4+r}, v{o+16}")
                em.e(f"v_mul_f32 v{o+8+r}, v{o+8+r}, v{o+13}")
            em.e(f"v_cvt_pk_bf16_f32 v{o}, v{o}, v{o+1}"); em.e(f"v_cvt_pk_bf16_f32 v{o+1}, v{o+2}, v{o+3}")
            em.e(f"v_cvt_pk_bf16_f32 v{o+2}, v{o+4}, v{o+5}"); em.e(f"v_cvt_pk_bf16_f32 v{o+3}, v{o+6}, v{o+7}")
            em.e(f"v_cvt_pk_bf16_f32 v{o+8}, v{o+8}, v{o+9}"); em.e(f"v_cvt_pk_bf16_f32 v{o+9}, v{o+10}, v{o+11}")
            va = vL16 if tok == 0 else vL16B
            em.e(f"buffer_store_dwordx4 v[{o}:{o+3}], {va}, {S_WS}, {sST2} offen{cur['STO']}", vm="ost")
            if tok == 1: em.e(f"s_add_u32 {sST}, {sST}, 20480")
            em.e(f"s_mov_b64 exec, {sG23}")
            em.e(f"buffer_store_dwordx2 v[{o+8}:{o+9}], {vOREM}, {S_WS}, {sST} offen{cur['STO']}", vm="ost")
            em.e("s_mov_b64 exec, -1")

    def K24(ph, nblk, final_possible):
        AX = lambda b, t: 4 * b
        if ph == "K2":
            em.e(f"s_mul_i32 {sA}, {LB()}, {O_SZ}"); em.e(f"s_mul_i32 {sT0}, {sTT1}, 20480"); em.e(f"s_add_u32 {sA}, {sA}, {sT0}"); em.e(f"s_add_u32 {sA}, {sA}, {OB}")
        else:
            em.e(f"s_mul_i32 {sA}, {LB()}, {ACT_SZ}"); em.e(f"s_mul_i32 {sT0}, {sTT1}, {54*1024}"); em.e(f"s_add_u32 {sA}, {sA}, {sT0}"); em.e(f"s_add_u32 {sA}, {sA}, {ACT}")
        seg = Seg(); ws = WStream(ring, seg, ph, SS=SS, LA=opt.get("la4", 10))
        fu = {}; lu = {}; wa = {}
        for b in range(nblk):
            for t in range(5):
                f = b * 5 + t; wr = ws.wreg(f); d = RES + 4 * t
                wv = [("a", b, 0)] if t == 0 else None
                i = seg.mfma(f"v_mfma_f32_16x16x32_bf16 v[{d}:{d+3}], v[{wr}:{wr+3}], a[{4*b}:{4*b+3}], v[{d}:{d+3}]", wvm=wv, wlg=[("w", ph, b * 5 + 4)] if t == 0 else None)
                fu[f] = i; lu[f] = i; wa[f] = 5 * b
        al = a_loads(1, nblk, ph, "a", AX)
        if ph == "K2" and DBG.get("stg", 0):
            for o in (f"v_add_u32 {vSTG0}, {sW4K}, {vL16}", f"v_add_u32 {vSTG1}, {sW4K}, {vR1}", f"v_add_u32 {vSTG2}, {sW4K}, {vR2}"): seg.put(0, o, 1)
        if ph == "K2":
            ws.reads(list(range(nblk * 5)), fu, lu, nobar=(12, 16), force=(14,), wait_at=wa)
            ws.vmem(a_jobs(al, lambda b: 5 * b - 30), lambda r: opt.get("k2w", 0), margin=MARG, qd=QD, rate=opt.get("r2", 35) / 10.0)
        else:
            ws.reads(list(range(nblk * 5)), fu, lu, wait_at=wa)
            ws.vmem(a_jobs(al, lambda b: 5 * b - 30), lambda r: 0 if r < 52 else opt.get("k4w", 0), margin=MARG, qd=QD, rate=opt.get("r4", 28) / 10.0)
        g = 0
        if ph == "K4":
            if PTK & 16 and PTM != 3: pt_place(seg, pt_x(S_WSN), opt.get("k4pt", 170))
            pf_place(seg, "K1", 0, "pf1", True); pf_place(seg, "K1", 65536, "pf2", True); pf_place(seg, "K1", 131072, "pf3", True)
        else:
            pf_place(seg, "K3", 32768 + 2*65536, "pg3"); pf_place(seg, "K3", 32768 + 3*65536, "pg4")
        if not opt.get('ls2'):
            for g in range(1, nblk * 5 - 13, 30): lstamp(seg, g)
        seg.emit(em)
        stamp()
        P = TMP
        for t in range(5):
            em.e(f"v_cvt_pk_bf16_f32 v{P+2*t}, v{RES+4*t}, v{RES+4*t+1}"); em.e(f"v_cvt_pk_bf16_f32 v{P+2*t+1}, v{RES+4*t+2}, v{RES+4*t+3}")
        uid[0] += 1; u = uid[0]
        if final_possible:
            em.e(f"s_cmp_eq_u32 {sLAYER}, 1"); em.e(f"s_cbranch_scc1 Lfin{u}")
        em.e(f"s_mov_b32 {sXI}, 1" if reuse() else f"s_add_u32 {sXI}, {sXI}, 1")
        em.e(f"s_mul_i32 {sST}, {sXI}, {X_SZ}"); em.e(f"s_mul_i32 {sT0}, {sTT1}, 20480"); em.e(f"s_add_u32 {sST}, {sST}, {sT0}"); em.e(f"s_add_u32 {sST}, {sST}, {XB}")
        em.e(f"s_lshr_b32 {sT0}, {sC8}, 1"); em.e(f"s_mul_i32 {sT0}, {sT0}, 5")
        em.e(f"s_lshl_b32 {sT1}, {sODD}, 1"); em.e(f"s_add_u32 {sT1}, {sT1}, {sT0}"); em.e(f"s_lshl_b32 {sT1}, {sT1}, 10"); em.e(f"s_add_u32 {sT1}, {sT1}, {sST}")
        em.e(f"buffer_store_dwordx4 v[{P}:{P+3}], {vL16}, {S_WS}, {sT1} offen{cur['STO']}", vm="xst")
        em.e(f"buffer_store_dwordx4 v[{P+4}:{P+7}], {vL16}, {S_WS}, {sT1} offen offset:1024{cur['STO']}", vm="xst")
        em.e(f"s_add_u32 {sT0}, {sT0}, 4"); em.e(f"s_lshl_b32 {sT0}, {sT0}, 10"); em.e(f"s_add_u32 {sT0}, {sT0}, {sST}")
        em.e(f"s_lshl_b32 {sT1}, {sODD}, 3"); em.e(f"s_add_u32 {sT0}, {sT0}, {sT1}")
        em.e(f"buffer_store_dwordx2 v[{P+8}:{P+9}], {vL16}, {S_WS}, {sT0} offen{cur['STO']}", vm="xst")
        a, b_, x, y = 224, 225, 226, 227
        em.e(f"v_add_f32 v{a}, v{RES}, v{RES+1}"); em.e(f"v_mul_f32 v{b_}, v{RES}, v{RES}"); em.e(f"v_fmac_f32 v{b_}, v{RES+1}, v{RES+1}")
        em.e(f"v_add_f32 v{x}, v{RES+2}, v{RES+3}"); em.e(f"v_mul_f32 v{y}, v{RES+2}, v{RES+2}"); em.e(f"v_fmac_f32 v{y}, v{RES+3}, v{RES+3}")
        for k in range(4, 20, 2):
            em.e(f"v_add_f32 v{a}, v{a}, v{RES+k}"); em.e(f"v_fmac_f32 v{b_}, v{RES+k}, v{RES+k}")
            em.e(f"v_add_f32 v{x}, v{x}, v{RES+k+1}"); em.e(f"v_fmac_f32 v{y}, v{RES+k+1}, v{RES+k+1}")
        em.e(f"v_add_f32 v{a}, v{a}, v{x}"); em.e(f"v_add_f32 v{b_}, v{b_}, v{y}")
        for sw in ("v_permlane32_swap_b32", "v_permlane16_swap_b32"):
            em.e(f"v_mov_b32 v{x}, v{a}"); em.e(f"v_mov_b32 v{y}, v{b_}")
            em.e(f"{sw} v{a}, v{x}"); em.e(f"{sw} v{b_}, v{y}")
            em.e(f"v_add_f32 v{a}, v{a}, v{x}"); em.e(f"v_add_f32 v{b_}, v{b_}, v{y}")
        em.e(f"s_mul_i32 {sST}, {sXI}, {ST_SZ}"); em.e(f"s_lshl_b32 {sT0}, {sTT1}, 10"); em.e(f"s_add_u32 {sST}, {sST}, {sT0}")
        em.e(f"s_lshl_b32 {sT0}, {sC8}, 7"); em.e(f"s_add_u32 {sST}, {sST}, {sT0}"); em.e(f"s_add_u32 {sST}, {sST}, {ST}")
        em.e(f"s_mov_b64 exec, {sMK[0]}")
        em.e(f"buffer_store_dwordx2 v[{a}:{a+1}], {vSTO}, {S_WS}, {sST} offen{cur['STO']}", vm="xst")
        em.e("s_mov_b64 exec, -1")
        if final_possible:
            em.e(f"s_branch Lfin{u}_x")
            em.label(f"Lfin{u}")
            em.e(f"s_mul_i32 {sST}, {sTT1}, {16*1280}"); em.e(f"s_mul_i32 {sT0}, {sC8}, 160"); em.e(f"s_add_u32 {sST}, {sST}, {sT0}")
            for t in range(5):
                em.e(f"buffer_store_dwordx2 v[{P+2*t}:{P+2*t+1}], {vOUT}, {S_OUT}, {sST} offen offset:{t*32}")
            em.raw("    s_waitcnt vmcnt(0)")
            stamp(); nstamp[0] -= 1
            dump_stamps()
            em.e("s_endpgm")
            em.label(f"Lfin{u}_x")

    def K3():
        AX = lambda b, s_: 8 * b + 4 * s_
        SB = TMP
        NM, C1, KK, VST = 220, 221, 222, 223
        set_sA_x()
        seg = Seg(cap=opt.get("k3cap", 6)); ws = WStream(ring, seg, "K3", SS=SS, LA=opt.get("la3", 5))
        fu = {}; lu = {}
        pend = []
        for f in range(280): ws.wreg(f)
        def acc(t): return ACC + 16 * t
        B1 = opt.get("k3b", 12)
        groups = [(b, p) for b in range(B1) for p in range(3)] + [(b, p) for p in range(3) for b in range(B1, 20)] + [(b, 3) for b in range(20)]
        afirst = {}
        seen_a = set()
        pend = [0, 0, 0, 0]
        for (b, p) in groups:
            ts = (2 * p, 2 * p + 1) if p < 3 else (6,)
            first = True
            for s_ in range(2):
                for t in ts:
                    f = pw3_index(b, t, s_, B1); wr = ws.wreg(f)
                    d = acc(t)
                    c = "0" if (b == 0 and s_ == 0) else f"v[{d}:{d+15}]"
                    wl = [("w", "K3", pw3_index(b, ts[-1], 1, B1))] if first else None
                    wv = [("a", b, 1)] if (b not in seen_a and first) else None
                    i = seg.mfma(f"v_mfma_f32_32x32x16_bf16 v[{d}:{d+15}], v[{wr}:{wr+3}], a[{AX(b,s_)}:{AX(b,s_)+3}], {c}", wvm=wv, wlg=wl)
                    if first: g0 = i
                    if b not in seen_a: seen_a.add(b); afirst[b] = i
                    first = False
                    fu.setdefault(f, g0); lu[f] = i
            pend[p] = seg.n()
        al = a_loads(2, 20, "K3", "a", AX, m32=True)
        ws.reads(list(range(280)), fu, lu)
        ws.vmem(a_jobs(al, lambda b: afirst[b] - opt.get("a3l", 12)), lambda r: opt.get("k3w", 0), margin=opt.get("m3", 70), qd=opt.get("q3", QD // 2), rate=opt.get("r3", 38) / 20.0)
        so = [f"v_and_b32 v{VST}, 0xf0, {vL16}", f"v_lshrrev_b32 v{VST}, 1, v{VST}", f"v_and_b32 v{NM}, 0x200, {vL16}", f"v_add_u32 v{VST}, v{VST}, v{NM}",
              f"v_and_b32 v{NM}, 0x100, {vL16}", f"v_lshlrev_b32 v{NM}, 2, v{NM}", f"v_add_u32 v{VST}, v{VST}, v{NM}",
              f"s_mul_i32 {sST}, {sXI}, {ST_SZ}", f"s_lshl_b32 {sST2}, {sTT2}, 10", f"s_add_u32 {sST}, {sST}, {sST2}", f"s_add_u32 {sST}, {sST}, {ST}"]
        for q in range(4):
            so.append(Op(f"buffer_load_dwordx2 v[{SB+2*q}:{SB+2*q+1}], v{VST}, {S_WS}, {sST} offen offset:{q*128}{cur['LD']}", vm=("st", q)))
        g = seg.stream(so, 2)
        a, b_, x, y = SB, SB + 1, SB + 2, SB + 3
        so = [Op(f"v_add_f32 v{a}, v{a}, v{SB+2}", wvm=[("st", 3)]), f"v_add_f32 v{b_}, v{b_}, v{SB+3}",
              f"v_add_f32 v{SB+4}, v{SB+4}, v{SB+6}", f"v_add_f32 v{SB+5}, v{SB+5}, v{SB+7}",
              f"v_add_f32 v{a}, v{a}, v{SB+4}", f"v_add_f32 v{b_}, v{b_}, v{SB+5}",
              f"v_mov_b32 v{x}, v{a}", f"v_mov_b32 v{y}, v{b_}",
              f"v_permlane32_swap_b32 v{a}, v{x}", f"v_permlane32_swap_b32 v{b_}, v{y}",
              f"v_add_f32 v{a}, v{a}, v{x}", f"v_add_f32 v{b_}, v{b_}, v{y}",
              f"v_mul_f32 v{NM}, {hex(INV640 | 0x80000000)}, v{a}", f"v_mul_f32 v{KK}, {hex(INV640)}, v{b_}",
              f"v_fma_f32 v{KK}, -v{NM}, v{NM}, v{KK}", f"v_max_f32 v{KK}, 0, v{KK}", f"v_add_f32 v{KK}, {hex(EPS5)}, v{KK}",
              (Op(f"v_rsq_f32 v{C1}, v{KK}"), 2), f"v_mul_f32 v{C1}, {hex(LOG2E | 0x80000000)}, v{C1}"]
        g = seg.stream(so, max(g, 30))
        so = [f"s_mul_i32 {sST}, {LB()}, {ACT_SZ}", f"s_mul_i32 {sST2}, {sTT2}, {54*1024}", f"s_add_u32 {sST}, {sST}, {sST2}",
              f"s_add_u32 {sST}, {sST}, {ACT}", f"s_lshl_b32 {sST2}, {sM}, 10", f"s_add_u32 {sST2}, {sST2}, {sST}"]
        g = seg.stream(so, max(g, 50))
        CSR = 226
        ET = 242
        def epi(t):
            ops = []
            for mat in range(2):
                for hh in range(2):
                    r = CSR + 8 * mat + 4 * hh
                    ops.append(Op(f"ds_read_b128 v[{r}:{r+3}], {vH16} offset:{L_CS3 + (2*t+mat)*64 + 32*hh}", lg=("c3", t)))
            d = acc(t)
            first = True
            for e in range(8):
                ops.append(Op(f"v_fmac_f32 v{d+e}, v{NM}, v{CSR+e}", wlg=[("c3", t)] if first else None)); first = False
                ops.append(f"v_fmac_f32 v{d+8+e}, v{NM}, v{CSR+8+e}")
            for k in range(0, 8, 4):
                streams = []
                for e in range(k, k + 4):
                    g_ = d + e; u_ = d + 8 + e; e_ = ET + e
                    streams.append([f"v_mul_f32 v{e_}, v{g_}, v{C1}",
                                    (Op(f"v_exp_f32 v{e_}, v{e_}"), 2),
                                    f"v_mul_f32 v{g_}, v{g_}, v{u_}",
                                    f"v_fma_f32 v{e_}, v{e_}, v{KK}, v{KK}",
                                    (Op(f"v_rcp_f32 v{e_}, v{e_}"), 2),
                                    f"v_mul_f32 v{g_}, v{g_}, v{e_}"])
                ops += il(streams)
            PK = d + 8
            for q in range(4): ops.append(f"v_cvt_pk_bf16_f32 v{PK+q}, v{d+2*q}, v{d+2*q+1}")
            if t < 6:
                ops.append(Op(f"s_add_u32 {sT0}, {sST2}, {(t >> 1) * 16384 + (t & 1) * 512}"))
                ops.append(Op(f"buffer_store_dwordx4 v[{PK}:{PK+3}], {vA3}, {S_WS}, {sT0} offen{cur['STO']}", vm="ast"))
            else:
                ops.append(Op(f"buffer_store_dwordx2 v[{PK}:{PK+1}], {vACT6}, {S_WS}, {sST} offen{cur['STO']}", vm="ast"))
                ops.append(Op(f"s_mov_b64 exec, {sMK32}"))
                ops.append(Op(f"buffer_store_dwordx2 v[{PK+2}:{PK+3}], {vA3}, {S_WS}, {sP2} offen{cur['STO']}", vm="ast"))
                ops.append(Op("s_mov_b64 exec, -1"))
            return ops
        if PTK & 8 and PTM != 3:
            for p in range(1, 4): pt_place(seg, pt_act(p), max(20, pend[p - 1] - opt.get("pt3", 25)))
        ge = 0
        for p in range(3):
            for t in (2 * p, 2 * p + 1):
                ge = seg.stream(epi(t), max(pend[p] + 3, ge))
        so = [f"s_mul_i32 {sP0}, {sM}, 3", f"s_add_u32 {sP0}, {sP0}, 2", f"s_lshr_b32 {sP1}, {sP0}, 3", f"s_add_u32 {sP1}, {sP1}, 48", f"s_lshl_b32 {sP1}, {sP1}, 10",
              f"s_add_u32 {sP2}, {sST}, {sP1}", f"s_and_b32 {sP1}, {sP0}, 3", f"s_lshl_b32 {sP1}, {sP1}, 8", f"s_add_u32 {sP2}, {sP2}, {sP1}",
              f"s_bfe_u32 {sP1}, {sP0}, 0x10002", f"s_lshl_b32 {sP1}, {sP1}, 3", f"s_add_u32 {sP2}, {sP2}, {sP1}"]
        seg.stream(so, 225)
        if not opt.get('ls2'):
            for g in range(1, 268, 20): lstamp(seg, g)
        sys.stderr.write(f"K3: epilogue stream ends at gap {ge}; cost hist {[sum(1 for c in seg.cost if c == k) for k in range(12)]}\n")
        seg.emit(em)
        stamp()
        lin(epi(6))

    def finish_if(p):
        if stop <= 8 and (stop - 1) % 4 + 1 == p:
            lay = (stop - 1) // 4
            em.e(f"s_cmp_lg_u32 {sLAYER}, {lay}"); em.e(f"s_cbranch_scc1 Lstop{p}{cur['sfx']}")
            em.raw("    s_waitcnt vmcnt(0) lgkmcnt(0)")
            dump_stamps()
            em.e("s_endpgm")
            em.label(f"Lstop{p}{cur['sfx']}")
    prologue_end()
    pls()
    if opt.get("pls"):
        for k in range(pln[0]):
            if k > 5: break
            em.e(f"v_readfirstlane_b32 s96, v{236+k}"); em.e("s_nop 3"); em.e(f"v_writelane_b32 v0, s96, {58+k}")
    if PEEL:
        cnt_save = WStream.cnt
        ring.filled = -1
        nstamp[0] = 0; lsn[0] = 0
        stamp()
        K1_p1(True)
        stamp()
        join_state[0] = (ring.issued, ring.filled, ring.allowed, [t for t in em.vm if isinstance(t, tuple) and t[0] == "dma"], WStream.cnt)
        K1_first(True)
        WStream.cnt = cnt_save
        em.vm = [("dma", r) for r in range(HEAD + 1) for _ in range(4)]
    em.vm = [t for t in em.vm if isinstance(t, tuple) and t[0] == "dma"] + [t for t in em.vm if isinstance(t, tuple) and t[0] == "a"]
    head_vm = list(em.vm)
    cnt0 = WStream.cnt
    if MONO and stamps and not opt.get("lst", 0):
        em.e("v_writelane_b32 v0, s96, 62"); em.e("v_writelane_b32 v0, s97, 63")
    if MONO:
        em.e(f"s_cmp_lg_u32 {sMODE}, 0"); em.e("s_cbranch_scc1 Lm_layerS")
    for sfx, sto in (("F", ""), ("S", " sc1")):
        cur["sfx"] = sfx; cur["STO"] = sto; cur["LD"] = sto if not opt.get("ldsc1", 1) else " sc1"
        nstamp[0] = 0; lsn[0] = 0
        WStream.cnt = cnt0
        em.label(f"Lm_layer{sfx}")
        em.vm = list(head_vm); em.lg = []
        ring.filled = -1; ring.issued = HEAD; ring.allowed = 8; ring.q = []
        em.e(f"s_cmp_eq_u32 {sLAYER}, 1"); em.e(f"s_cselect_b32 s14, 0, {WS_END}")
        stamp()
        K1(); stamp(); finish_if(1)
        transition(1, 1, 9, ["ost"], 16, 0, 0); stamp()
        K24("K2", 20, False); stamp(); finish_if(2)
        transition(2, 2, 16, ["xst"], 18, opt.get("d21", 40), opt.get("d22", 0)); stamp()
        K3(); stamp(); finish_if(3)
        transition(4, 4, 34, ["ast"], 36, opt.get("d31", 40), opt.get("d32", 0)); stamp()
        K24("K4", 54, True); stamp(); finish_if(4)
        transition(5, 5, 53, ["xst"], 53, opt.get("d41", 40), 100, upto2=54 + HEAD)
        if AH: k1_hoist(cur["LD"])
        stamp()
        assert ring.issued == 54 + HEAD and not ring.q, (ring.issued, ring.q)
        em.e(f"s_add_u32 {sLAYER}, {sLAYER}, 1"); em.e(f"s_add_u32 {sSTEP}, {sSTEP}, 5")
        em.e(f"s_branch Lm_layer{sfx}")
    em.label("Lm_done")
    em.e("s_endpgm")
    return em.lines


def build(opt):
    if opt.get("mono", 0):
        ml = gen_main(opt)
        ml, n2 = fix_hazards(ml)
        ref = open("interleave_layers__linear_attn_block__swiglu_ffn__prompt.s.ref").read() if opt.get("hdr", False) else ""
        hdr = [l for l in ref.split("\n") if l.startswith(";") and "@launch" not in l and "Override launch" not in l and "grid=ceil" not in l]
        out = hdr + [f"; @launch grid=(256,1,1) block=(256,1,1) lds={MAIN_LDS}",
               '.amdgcn_target "amdgcn-amd-amdhsa--gfx950"', ".text",
               f".globl {KNAME}", ".p2align 8", f".type {KNAME},@function"] + ml + [kdesc(KNAME, 512, 256, 102)]
        sys.stderr.write(f"nops inserted: main {n2}; main lines {len(ml)}\n")
        return "\n".join(out)
    pl = gen_prep("prep_kernel", stamp=opt.get("stamps", 0), k3b=opt.get("k3b", 12), wsoff=opt.get("wsoff", 0) << 20, zf=opt.get("zf", 0))
    if opt.get("pst"):
        sfx = {1: " sc1", 2: " nt", 3: " sc0 sc1", 4: " sc1 nt"}[opt["pst"]]
        pl = [l + sfx if "buffer_store" in l else l for l in pl]
    pl, n1 = fix_hazards(pl)
    ml = gen_main(opt)
    ml, n2 = fix_hazards(ml)
    ref = open("interleave_layers__linear_attn_block__swiglu_ffn__prompt.s.ref").read() if opt.get("hdr", False) else ""
    hdr = [l for l in ref.split("\n") if l.startswith(";") and "@launch" not in l and "Override launch" not in l and "grid=ceil" not in l]
    out = hdr + [f"; @launch kernel=prep_kernel grid=({PREP_WGS},1,1) block=(256,1,1) lds={PREP_LDS}",
           f"; @launch kernel={KNAME} grid=(256,1,1) block=(256,1,1) lds={MAIN_LDS}",
           '.amdgcn_target "amdgcn-amd-amdhsa--gfx950"', ".text",
           ".globl prep_kernel", ".p2align 8", ".type prep_kernel,@function"] + pl + \
          [f".globl {KNAME}", ".p2align 8", f".type {KNAME},@function"] + ml + \
          [kdesc("prep_kernel", 112, 112), kdesc(KNAME, 512, 256, 102)]
    sys.stderr.write(f"nops inserted: prep {n1} main {n2}; main lines {len(ml)}\n")
    return "\n".join(out)


if __name__ == "__main__":
    opt = {}
    for a in sys.argv[1:]:
        k, v = a.split("="); opt[k] = int(v)
    print(build(opt))
```

```python
from asmlib import *
from layout import *

def magic(d, maxv):
    for sh in range(1, 32):
        m = -(-(1 << sh) // d)
        if m * maxv >= (1 << 32): break
        if all((x * m) >> sh == x // d for x in range(maxv)): return m, sh
    raise Exception("no magic")
def sdiv(em, dst, src, d, maxv):
    m, sh = magic(d, maxv)
    em.e(f"s_mul_i32 {dst}, {src}, {m}")
    em.e(f"s_lshr_b32 {dst}, {dst}, {sh}")

PREP_WGS = 259
PREP_LDS = 65536
CS1_N = 20
CS3_N = 10
def gen_prep(name, stamp=False, mono=False, sfx=" sc1", sx=0, k3b=0, wsoff=0, zf=0, skipj=0, hp=0):
    em = Em()
    J = "s47" if mono else "s2"
    if not mono: em.label(name)
    if stamp:
        em.e("s_memrealtime s[60:61]"); em.e("s_load_dwordx2 s[62:63], s[0:1], 64")
        em.raw("    s_waitcnt lgkmcnt(0)")
        em.e("s_cmp_lg_u32 s2, 0"); em.e("s_cbranch_scc1 Lp_ns")
        em.e("v_mov_b32 v110, s60"); em.e("v_mov_b32 v111, 0")
        em.e("global_store_dword v111, v110, s[62:63]")
        em.label("Lp_ns")
    if not mono:
        em.e(f"s_cmp_ge_u32 s2, {PREP_WGS}")
        em.e("s_cbranch_scc1 Lp_done")
    em.e("s_load_dwordx4 s[4:7], s[0:1], 0")
    em.e("s_load_dwordx2 s[8:9], s[0:1], 16")
    em.e("s_load_dwordx4 s[12:15], s[0:1], 32")
    em.e("s_load_dwordx2 s[10:11], s[0:1], 48")
    em.e("s_load_dwordx2 s[16:17], s[0:1], 72")
    em.e("v_lshrrev_b32 v2, 6, v0")
    em.e("v_and_b32 v1, 63, v0")
    em.e("v_readfirstlane_b32 s18, v2")
    em.e("v_lshlrev_b32 v3, 4, v1")
    em.e("v_lshrrev_b32 v4, 2, v1")
    em.e("v_and_b32 v5, 3, v1")
    for i in range(4): em.e(f"v_mov_b32 v{8+i}, 0x3f803f80")
    em.e("s_waitcnt lgkmcnt(0)")
    if sx == 2: em.e("s_memrealtime s[80:81]")
    if wsoff: em.e(f"s_add_u32 s16, s16, {wsoff}"); em.e("s_addc_u32 s17, s17, 0")
    em.e("s_mov_b32 s20, s16"); em.e("s_mov_b32 s21, s17"); em.e(f"s_mov_b32 s22, {WS_END}"); em.e("s_mov_b32 s23, 0x20000")
    def poison_zero(em, sfx):
        for i in range(4): em.e(f"v_mov_b32 v{16+i}, -1")
        em.e("v_lshlrev_b32 v20, 4, v0")
        em.e("s_lshl_b32 s30, s2, 13"); em.e(f"s_add_u32 s30, s30, {KVP}")
        if hp:
            em.e("v_lshrrev_b32 v21, 5, v0"); em.e("v_lshlrev_b32 v21, 10, v21"); em.e("v_and_b32 v22, 31, v0"); em.e("v_lshlrev_b32 v22, 4, v22")
            em.e("v_add_u32 v21, v21, v22")
            em.e(f"buffer_store_dwordx4 v[16:19], v21, s[20:23], s30 offen{sfx}")
            return
        em.e(f"buffer_store_dwordx4 v[16:19], v20, s[20:23], s30 offen{sfx}")
        em.e("s_add_u32 s30, s30, 4096")
        em.e(f"buffer_store_dwordx4 v[16:19], v20, s[20:23], s30 offen{sfx}")
    if not mono:
        em.e("s_cmp_ge_u32 s2, 256"); em.e("s_cbranch_scc1 Lp_nopois")
        poison_zero(em, "")
        if zf:
            zs = {1: "", 2: " sc1", 3: " nt", 4: " sc1 nt"}[zf & 7]
            regs = [(OB, 10240), (XB + X_SZ, 10240)] + ([(ACT, 27648)] if zf & 8 else [])
            em.e("v_mov_b32 v16, 0"); em.e("v_mov_b32 v17, 0"); em.e("v_mov_b32 v18, 0"); em.e("v_mov_b32 v19, 0")
            for (base, per) in regs:
                em.e(f"s_mul_i32 s30, s2, {per}"); em.e(f"s_add_u32 s30, s30, {base}")
                k = 0
                while k < per:
                    n = min(4096, per - k)
                    if n < 4096:
                        em.e(f"v_cmp_gt_u32 vcc, {n}, v20"); em.e("s_and_saveexec_b64 s[40:41], vcc")
                    em.e(f"buffer_store_dwordx4 v[16:19], v20, s[20:23], s30 offen{zs}")
                    if n < 4096: em.e("s_mov_b64 exec, s[40:41]")
                    k += n
                    if k < per: em.e("s_add_u32 s30, s30, 4096")
        em.label("Lp_nopois")
    if mono:
        em.e("s_mov_b32 s47, s2")
        em.e("s_cmp_lt_u32 s2, 40"); em.e("s_cbranch_scc1 Lp_disp")
        em.e("s_add_u32 s47, s2, 154"); em.e("s_cmp_lt_u32 s2, 104"); em.e("s_cbranch_scc1 Lp_disp")
        em.e("s_sub_u32 s47, s2, 64"); em.e("s_cmp_lt_u32 s2, 184"); em.e("s_cbranch_scc1 Lp_disp")
        em.e("s_sub_u32 s47, s2, 44"); em.e("s_cmp_lt_u32 s2, 238"); em.e("s_cbranch_scc1 Lp_disp")
        em.e("s_sub_u32 s47, s2, 118")
        em.label("Lp_disp")
    else:
        em.e("s_cmp_ge_u32 s2, 258"); em.e("s_cbranch_scc1 Lp_zero")
    if skipj & 1:
        em.e(f"s_cmp_lt_u32 {J}, 120"); em.e("s_cbranch_scc1 Lp_fin")
    if skipj & 2:
        em.e(f"s_cmp_ge_u32 {J}, 120"); em.e("s_cbranch_scc1 Lp_fin")
    em.e(f"s_cmp_ge_u32 {J}, 194"); em.e("s_cbranch_scc1 Lp_x")
    em.e(f"s_cmp_ge_u32 {J}, 140"); em.e("s_cbranch_scc1 Lp_wd")
    em.e(f"s_cmp_ge_u32 {J}, 120"); em.e("s_cbranch_scc1 Lp_wo")
    em.e(f"s_cmp_ge_u32 {J}, 40"); em.e("s_cbranch_scc1 Lp_wgu")

    def src_srd(lo, hi, size):
        em.e(f"s_mov_b32 s24, s{lo}"); em.e(f"s_mov_b32 s25, s{hi}"); em.e(f"s_mov_b32 s26, {size}"); em.e("s_mov_b32 s27, 0x20000")
    def set_exec(nl):
        em.e(f"s_mov_b64 exec, {hex((1 << nl) - 1)}" if nl <= 32 else f"s_mov_b32 exec_lo, -1")
        if nl > 32: em.e(f"s_mov_b32 exec_hi, {hex((1 << (nl - 32)) - 1)}")
    def dma(m0_s, m0_imm, so_s, so_imm):
        em.e(f"s_add_u32 m0, {m0_s}, {m0_imm}")
        em.e(f"s_add_u32 s29, {so_s}, {so_imm}")
        em.e("buffer_load_dwordx4 v3, s[24:27], s29 offen lds", vm="dma")
    def sync():
        if sx == 2: em.e("s_memrealtime s[78:79]")
        em.e("s_mov_b64 exec, -1")
        em.wait_all_vm()
        em.e("s_barrier")
        if sx: em.e("s_memrealtime s[96:97]")
    def xt_half(dst, u_s, half_s):
        em.e(f"s_mov_b32 {dst}, 0x47520"); em.e(f"s_cmp_eq_u32 {half_s}, 0"); em.e(f"s_cselect_b32 {dst}, {dst}, 0x98631")
        em.e(f"s_lshl_b32 s46, {u_s}, 2"); em.e(f"s_lshr_b32 {dst}, {dst}, s46"); em.e(f"s_and_b32 {dst}, {dst}, 15")
    def cs_store(acc, voff, so):
        em.e("s_mov_b64 exec, s[40:41]")
        em.e(f"buffer_store_dwordx4 v[{acc}:{acc+3}], {voff}, s[20:23], {so} offen", vm="st")
        em.e("s_mov_b64 exec, -1")
    def cs_prep():
        em.e("s_mov_b32 s40, 0x00010001"); em.e("s_mov_b32 s41, 0x00010001")
        em.e("v_and_b32 v7, 0x30, v1")

    P = 3840; PIT = 1952
    src_srd(6, 7, 640 * 1920 * 2)
    em.e(f"s_lshr_b32 s30, {J}, 1")
    em.e(f"s_and_b32 s31, {J}, 1")
    sdiv(em, "s32", "s30", 5, 20)
    em.e("s_mul_i32 s33, s32, 5"); em.e("s_sub_u32 s33, s30, s33")
    em.e("s_lshr_b32 s34, s18, 1")
    xt_half("s35", "s33", "s34")
    em.e("s_mul_i32 s36, s32, 10"); em.e("s_add_u32 s35, s35, s36"); em.e("s_lshl_b32 s35, s35, 4")
    em.e("s_and_b32 s36, s18, 1"); em.e("s_lshl_b32 s36, s36, 3"); em.e("s_add_u32 s35, s35, s36")
    em.e(f"s_mul_i32 s35, s35, {P}"); em.e("s_mul_i32 s36, s31, 640"); em.e("s_add_u32 s35, s35, s36")
    em.e(f"s_mul_i32 s37, s18, {8*PIT}")
    set_exec(40)
    for i in range(8):
        for sg_ in range(3):
            dma("s37", i * PIT + sg_ * 640, "s35", i * P + sg_ * 1280)
    sync()
    em.e(f"v_mul_u32_u24 v6, {PIT}, v4"); em.e("s_mul_i32 s36, s18, 160"); em.e("v_add_u32 v6, s36, v6")
    em.e("v_lshlrev_b32 v16, 3, v5"); em.e("v_add_u32 v12, v6, v16")
    em.e("v_and_b32 v16, 1, v5"); em.e("v_mul_u32_u24 v16, 40, v16"); em.e("v_add_u32 v13, v6, v16")
    em.e("v_lshrrev_b32 v16, 1, v5"); em.e("v_mul_u32_u24 v16, 640, v16"); em.e("v_add_u32 v14, v13, v16")
    cs_prep()
    em.e("s_lshl_b32 s36, s31, 3"); em.e("s_lshl_b32 s38, s18, 1"); em.e("s_add_u32 s36, s36, s38")
    em.e(f"s_mul_i32 s38, s36, {PW1_SZ}"); em.e(f"s_add_u32 s38, s38, {PW1}")
    em.e("s_mul_i32 s39, s30, 5120"); em.e("s_add_u32 s39, s39, s38")
    em.e("s_mul_i32 s42, s30, 3072"); em.e("s_add_u32 s42, s42, s38"); em.e("s_add_u32 s42, s42, 102400")
    em.e("s_lshl_b32 s43, s30, 4"); em.e("s_add_u32 s43, s43, s36"); em.e("s_lshl_b32 s43, s43, 9"); em.e(f"s_add_u32 s43, s43, {CS1}")
    tiles = [(12, 640), (12, 680), (12, 1280), (12, 1320), (14, 672), (12, 0), (12, 40), (13, 32)]
    for e in range(2):
        for t, (br, off) in enumerate(tiles):
            r = 16 + 4 * (e * 8 + t)
            for h in range(2):
                em.e(f"ds_read_b64_tr_b16 v[{r+2*h}:{r+2*h+1}], v{br} offset:{h*16*PIT + e*80 + off}", lg=(e, t))
    for e in range(2):
        for t in range(8):
            r = 16 + 4 * (e * 8 + t)
            base = "s39" if t < 5 else "s42"
            imm = (t if t < 5 else t - 5) * 1024 + e * PW1_SZ
            em.e(f"s_add_u32 s29, {base}, {imm}")
            em.e(f"buffer_store_dwordx4 v[{r}:{r+3}], v3, s[20:23], s29 offen", vm="st", wlg=[(e, t)])
            a = 96 + 4 * ((e * 8 + t) % 4)
            em.e(f"v_mfma_f32_16x16x32_bf16 v[{a}:{a+3}], v[{r}:{r+3}], v[8:11], 0")
            if (e * 8 + t) % 4 == 3:
                for q in range(4):
                    tt = t - 3 + q
                    em.e(f"s_add_u32 s29, s43, {(e*8+tt)*64}")
                    cs_store(96 + 4 * q, "v7", "s29")
    em.e("s_endpgm")

    em.label("Lp_wgu")
    em.vm = []; em.lg = []
    P = 3456; PIT = 928
    em.e(f"s_sub_u32 s30, {J}, 40")
    em.e("s_cmp_ge_u32 s30, 40")
    em.e("s_cbranch_scc1 Lp_wu")
    src_srd(12, 13, 640 * 1728 * 2)
    em.e("s_mov_b32 s34, 0")
    em.e("s_branch Lp_wgu2")
    em.label("Lp_wu")
    src_srd(14, 15, 640 * 1728 * 2)
    em.e("s_mov_b32 s34, 1"); em.e("s_sub_u32 s30, s30, 40")
    em.label("Lp_wgu2")
    em.e("s_lshr_b32 s31, s30, 2")
    em.e("s_and_b32 s32, s30, 3")
    em.e("s_lshr_b32 s33, s18, 1"); em.e("s_lshl_b32 s35, s31, 1"); em.e("s_add_u32 s33, s33, s35")
    sdiv(em, "s35", "s33", 5, 20)
    em.e("s_mul_i32 s36, s35, 5"); em.e("s_sub_u32 s36, s33, s36")
    em.e("s_and_b32 s37, s18, 1")
    xt_half("s38", "s36", "s37")
    em.e("s_mul_i32 s35, s35, 10"); em.e("s_add_u32 s38, s38, s35"); em.e("s_lshl_b32 s38, s38, 4")
    em.e(f"s_mul_i32 s38, s38, {P}"); em.e("s_mul_i32 s35, s32, 864"); em.e("s_add_u32 s38, s38, s35")
    em.e(f"s_mul_i32 s37, s18, {16*PIT}")
    set_exec(54)
    for i in range(16):
        dma("s37", i * PIT, "s38", i * P)
    sync()
    em.e(f"v_mul_u32_u24 v6, {PIT}, v4"); em.e("s_mul_i32 s36, s18, 216"); em.e("v_add_u32 v6, s36, v6")
    em.e("v_lshlrev_b32 v16, 3, v5"); em.e("v_add_u32 v12, v6, v16")
    cs_prep()
    em.e("s_lshl_b32 s36, s32, 2"); em.e("s_add_u32 s36, s36, s18")
    em.e(f"s_mul_i32 s38, s36, {PW3_SZ}"); em.e(f"s_add_u32 s38, s38, {PW3}")
    em.e("s_lshl_b32 s39, s34, 8"); em.e("s_add_u32 s38, s38, s39")
    em.e("v_lshrrev_b32 v13, 5, v1"); em.e("v_lshlrev_b32 v13, 10, v13"); em.e("v_bfe_u32 v14, v1, 4, 1"); em.e("v_lshlrev_b32 v14, 9, v14")
    em.e("v_add_u32 v13, v13, v14"); em.e("v_and_b32 v14, 15, v1"); em.e("v_lshlrev_b32 v14, 4, v14"); em.e("v_add_u32 v13, v13, v14")
    assert k3b % 2 == 0
    em.e("s_mov_b32 s54, 4096"); em.e(f"s_mov_b32 s55, {4 * (20 - k3b) * 1024}")
    em.e(f"s_mul_i32 s39, s31, 24576")
    em.e(f"s_lshl_b32 s56, s31, 13"); em.e(f"s_add_u32 s56, s56, {(12 * k3b * 1024 - k3b * 4096) & 0xffffffff}")
    em.e(f"s_cmp_lt_u32 s31, {k3b // 2}")
    em.e(f"s_cselect_b32 s54, 12288, s54")
    em.e(f"s_cselect_b32 s55, 4096, s55")
    em.e(f"s_cselect_b32 s39, s39, s56")
    em.e("s_add_u32 s48, s38, s39")
    em.e("s_add_u32 s49, s48, s55"); em.e("s_add_u32 s50, s49, s55")
    for p in range(3): em.e(f"s_add_u32 s{51+p}, s{48+p}, s54")
    em.e("s_lshl_b32 s39, s31, 12"); em.e("s_add_u32 s44, s38, s39"); em.e(f"s_add_u32 s44, s44, {240*1024}")
    em.e("s_lshl_b32 s45, s31, 4"); em.e("s_add_u32 s45, s45, s36"); em.e("s_mul_i32 s45, s45, 14"); em.e("s_add_u32 s45, s45, s34")
    em.e("s_lshl_b32 s45, s45, 6"); em.e(f"s_add_u32 s45, s45, {CS3}")
    for t in range(7):
        for k in range(2):
            r = 16 + 4 * (t * 2 + k)
            for h in range(2):
                em.e(f"ds_read_b64_tr_b16 v[{r+2*h}:{r+2*h+1}], v12 offset:{k*32*PIT + h*16*PIT + t*32}", lg=(t, k))
    for t in range(7):
        a = 96 + 4 * (t % 4)
        for k in range(2):
            r = 16 + 4 * (t * 2 + k)
            if t < 6: base, imm = f"s{48 + 3 * k + (t >> 1)}", 2 * (t & 1) * 1024
            else: base, imm = "s44", k * 2048
            em.e(f"s_add_u32 s29, {base}, {imm}")
            em.e(f"buffer_store_dwordx4 v[{r}:{r+3}], v13, s[20:23], s29 offen", vm="st", wlg=[(t, k)])
            em.e(f"v_mfma_f32_16x16x32_bf16 v[{a}:{a+3}], v[{r}:{r+3}], v[8:11], {'0' if k==0 else f'v[{a}:{a+3}]'}")
        if t in (3, 6):
            for tt in range(t - 3 if t == 3 else 4, t + 1):
                em.e(f"s_add_u32 s29, s45, {2*tt*64}")
                cs_store(96 + 4 * (tt % 4), "v7", "s29")
    em.e("s_endpgm")

    def od_tail(dst_base, dst_sz, b_s):
        PIT = 1312
        sync()
        em.e(f"v_mul_u32_u24 v6, {PIT}, v4"); em.e("s_mul_i32 s36, s18, 320"); em.e("v_add_u32 v6, s36, v6")
        em.e("v_lshlrev_b32 v16, 3, v5"); em.e("v_add_u32 v12, v6, v16")
        em.e("s_lshl_b32 s36, s18, 1")
        em.e(f"s_mul_i32 s38, s36, {dst_sz}"); em.e(f"s_add_u32 s38, s38, {dst_base}")
        em.e(f"s_mul_i32 s39, {b_s}, 5120"); em.e("s_add_u32 s38, s38, s39")
        for e in range(2):
            for t in range(5):
                r = 16 + 4 * (e * 5 + t)
                for h in range(2):
                    em.e(f"ds_read_b64_tr_b16 v[{r+2*h}:{r+2*h+1}], v12 offset:{h*16*PIT + e*160 + t*32}", lg=(e, t))
        for e in range(2):
            for t in range(5):
                r = 16 + 4 * (e * 5 + t)
                em.e(f"s_add_u32 s29, s38, {e*dst_sz + t*1024}")
                em.e(f"buffer_store_dwordx4 v[{r}:{r+3}], v3, s[20:23], s29 offen", vm="st", wlg=[(e, t)])
        em.e("s_endpgm")

    em.label("Lp_wo")
    em.vm = []; em.lg = []
    P = 1280; PIT = 1312
    src_srd(8, 9, 640 * 640 * 2)
    em.e(f"s_sub_u32 s30, {J}, 120")
    em.e(f"s_mul_i32 s37, s18, {8*PIT}")
    set_exec(40)
    em.e("s_cmp_ge_u32 s30, 16"); em.e("s_cbranch_scc1 Lp_wo2")
    em.e("s_mul_i32 s31, s30, 40"); em.e("s_lshr_b32 s32, s18, 1"); em.e("s_mul_i32 s32, s32, 20"); em.e("s_add_u32 s31, s31, s32")
    em.e("s_and_b32 s32, s18, 1"); em.e("s_lshl_b32 s32, s32, 3"); em.e("s_add_u32 s31, s31, s32"); em.e(f"s_mul_i32 s31, s31, {P}")
    for i in range(8):
        for sg_ in range(2): dma("s37", i * PIT + sg_ * 640, "s31", i * P + sg_ * 640)
    em.e("s_branch Lp_wo3")
    em.label("Lp_wo2")
    em.e("s_sub_u32 s31, s30, 16"); em.e("s_mul_i32 s31, s31, 160"); em.e("s_mul_i32 s32, s18, 40"); em.e("s_add_u32 s31, s31, s32")
    em.e(f"s_mul_i32 s31, s31, {P}")
    for i in range(8):
        for sg_ in range(2): dma("s37", i * PIT + sg_ * 640, "s31", (20 * (i >> 2) + 16 + (i & 3)) * P + sg_ * 640)
    em.label("Lp_wo3")
    od_tail(PWO, PWO_SZ, "s30")

    em.label("Lp_wd")
    em.vm = []; em.lg = []
    src_srd(10, 11, 1728 * 640 * 2)
    em.e(f"s_sub_u32 s30, {J}, 140")
    em.e(f"s_mul_i32 s37, s18, {8*PIT}")
    set_exec(40)
    em.e("s_cmp_ge_u32 s30, 48"); em.e("s_cbranch_scc1 Lp_wd2")
    em.e("s_and_b32 s31, s30, 15"); em.e("s_mul_i32 s31, s31, 108"); em.e("s_lshr_b32 s32, s30, 4"); em.e("s_lshl_b32 s32, s32, 5")
    em.e("s_add_u32 s31, s31, s32")
    em.e("s_and_b32 s32, s18, 1"); em.e("s_lshl_b32 s32, s32, 4"); em.e("s_add_u32 s31, s31, s32")
    em.e("s_lshr_b32 s32, s18, 1"); em.e("s_lshl_b32 s32, s32, 3"); em.e("s_add_u32 s31, s31, s32"); em.e(f"s_mul_i32 s31, s31, {P}")
    for i in range(8):
        for sg_ in range(2): dma("s37", i * PIT + sg_ * 640, "s31", i * P + sg_ * 640)
    em.e("s_branch Lp_wd3")
    em.label("Lp_wd2")
    for q in range(2):
        em.e("s_sub_u32 s31, s30, 48"); em.e("s_lshl_b32 s31, s31, 3"); em.e("s_lshl_b32 s32, s18, 1"); em.e("s_add_u32 s31, s31, s32")
        em.e(f"s_add_u32 s31, s31, {q}")
        sdiv(em, "s32", "s31", 3, 48)
        em.e("s_mul_i32 s33, s32, 3"); em.e("s_sub_u32 s33, s31, s33"); em.e("s_lshl_b32 s33, s33, 2")
        em.e("s_mul_i32 s32, s32, 108"); em.e("s_add_u32 s32, s32, s33"); em.e("s_add_u32 s32, s32, 96"); em.e(f"s_mul_i32 s32, s32, {P}")
        for i in range(4):
            for sg_ in range(2): dma("s37", (4 * q + i) * PIT + sg_ * 640, "s32", i * P + sg_ * 640)
    em.label("Lp_wd3")
    od_tail(PWD, PWD_SZ, "s30")

    em.label("Lp_x")
    em.vm = []; em.lg = []
    P = 1280; PIT = 1296
    src_srd(4, 5, 2048 * 640 * 2)
    em.e(f"s_sub_u32 s30, {J}, 194")
    em.e("s_lshl_b32 s31, s30, 5"); em.e("s_lshl_b32 s32, s18, 3"); em.e("s_add_u32 s31, s31, s32"); em.e(f"s_mul_i32 s31, s31, {P}")
    em.e(f"s_mul_i32 s37, s18, {8*PIT}")
    set_exec(40)
    for i in range(8):
        for sg_ in range(2): dma("s37", i * PIT + sg_ * 640, "s31", i * P + sg_ * 640)
    sync()
    em.e("v_and_b32 v16, 15, v1"); em.e(f"v_mul_u32_u24 v12, {PIT}, v16")
    em.e("v_lshrrev_b32 v17, 4, v1"); em.e("v_lshlrev_b32 v18, 3, v17"); em.e("v_add_u32 v12, v12, v18")
    em.e("s_lshr_b32 s33, s18, 1"); em.e("s_and_b32 s34, s18, 1")
    em.e(f"s_mul_i32 s35, s33, {16*PIT}"); em.e("s_mul_i32 s36, s34, 640"); em.e("s_add_u32 s35, s35, s36"); em.e("v_add_u32 v12, s35, v12")
    em.e("s_lshl_b32 s35, s30, 1"); em.e("s_add_u32 s35, s35, s33")
    em.e("s_mul_i32 s36, s35, 20480"); em.e("s_mul_i32 s38, s34, 10240"); em.e("s_add_u32 s36, s36, s38"); em.e(f"s_add_u32 s36, s36, {XB}")
    for i in range(10):
        r = 20 + 4 * i
        cc, u = divmod(i, 5)
        em.e(f"ds_read_b64 v[{r}:{r+1}], v12 offset:{(10*cc+XT0[u])*32}", lg=i)
        em.e(f"ds_read_b64 v[{r+2}:{r+3}], v12 offset:{(10*cc+XT1[u])*32}", lg=i)
    for i in range(10):
        r = 20 + 4 * i
        em.e(f"s_add_u32 s29, s36, {i*1024}")
        em.e(f"buffer_store_dwordx4 v[{r}:{r+3}], v3, s[20:23], s29 offen", vm="st", wlg=[i])
        em.e(f"v_mfma_f32_16x16x32_bf16 v[96:99], v[8:11], v[{r}:{r+3}], {'0' if i==0 else 'v[96:99]'}")
        em.e(f"v_mfma_f32_16x16x32_bf16 v[100:103], v[{r}:{r+3}], v[{r}:{r+3}], {'0' if i==0 else 'v[100:103]'}")
    em.e("v_and_b32 v18, 3, v16")
    em.e("v_cmp_eq_u32 vcc, 1, v18"); em.e("v_cndmask_b32 v104, v100, v101, vcc")
    em.e("v_cmp_eq_u32 vcc, 2, v18"); em.e("v_cndmask_b32 v104, v104, v102, vcc")
    em.e("v_cmp_eq_u32 vcc, 3, v18"); em.e("v_cndmask_b32 v105, v104, v103, vcc")
    em.e("v_mov_b32 v104, v96")
    em.e("v_mov_b32 v106, 0"); em.e("v_mov_b32 v107, 0")
    em.e("s_lshl_b32 s38, s35, 10"); em.e(f"s_add_u32 s38, s38, {ST}")
    em.e("s_lshl_b32 s39, s34, 7"); em.e("s_add_u32 s39, s39, s38")
    em.e("s_mul_i32 s42, s34, 384"); em.e("s_add_u32 s42, s42, s38")
    em.e("v_lshlrev_b32 v19, 3, v16")
    em.e("v_lshrrev_b32 v18, 2, v16")
    em.e("v_cmp_eq_u32 vcc, v17, v18")
    em.e("s_and_saveexec_b64 s[40:41], vcc")
    em.e("buffer_store_dwordx2 v[104:105], v19, s[20:23], s39 offen", vm="st")
    for z in range(3):
        em.e(f"buffer_store_dwordx2 v[106:107], v19, s[20:23], s42 offen offset:{256+128*z}", vm="st")
    em.e("s_mov_b64 exec, s[40:41]")
    em.e("s_endpgm")

    if mono:
        out = []
        for l in em.lines:
            if l.strip() == "s_endpgm": out.append("    s_branch Lp_exit")
            elif "buffer_store" in l: out.append(l + sfx)
            else: out.append(l)
        out += ["Lp_exit:",
                "    s_sub_u32 s30, s47, 120", "    s_cmp_ge_u32 s30, 2", "    s_cbranch_scc1 Lp_fin",
                "    s_add_u32 s47, s47, 18", "    s_waitcnt lgkmcnt(0)", "    s_barrier", "    s_branch Lp_disp",
                "Lp_fin:"]
        e2 = Em()
        poison_zero(e2, sfx)
        e2.e("s_and_b32 s30, s2, 7"); e2.e("s_lshl_b32 s30, s30, 8"); e2.e("s_bfe_u32 s31, s2, 0x10003"); e2.e("s_lshl_b32 s31, s31, 7")
        e2.e("s_add_u32 s30, s30, s31"); e2.e("s_lshr_b32 s31, s2, 4"); e2.e("s_lshl_b32 s31, s31, 2"); e2.e("s_add_u32 s30, s30, s31")
        e2.e(f"s_add_u32 s30, s30, {FLG_G}")
        e2.e("v_mov_b32 v21, 0")
        e2.e("s_cmp_lg_u32 s18, 0"); e2.e("s_cbranch_scc1 Lp_noz")
        e2.e("s_mov_b64 exec, 1")
        e2.e(f"buffer_store_dword v21, off, s[20:23], s30{sfx}")
        e2.e("s_mov_b64 exec, -1")
        e2.label("Lp_noz")
        return out + e2.lines
    em.label("Lp_zero")
    for i in range(4): em.e(f"v_mov_b32 v{16+i}, 0")
    em.e("v_lshlrev_b32 v20, 4, v0")
    for i in range(FLAGS_BYTES // 4096):
        em.e(f"s_mov_b32 s30, {i*4096}")
        em.e(f"buffer_store_dwordx4 v[16:19], v20, s[20:23], s30 offen")
    em.label("Lp_done")
    em.e("s_endpgm")
    if stamp == 2:
        out = []
        for l in em.lines:
            if l.strip() == "s_endpgm": out.append("    s_branch Lp_exit")
            else: out.append(l)
        out += ["Lp_exit:", "    s_waitcnt vmcnt(0)", "    s_memrealtime s[64:65]", "    s_waitcnt lgkmcnt(0)", "    s_mov_b64 exec, 1",
                "    v_mov_b32 v110, s64", "    v_mov_b32 v111, 0", "    global_atomic_umax v111, v110, s[62:63] offset:4",
                "    s_lshr_b32 s66, s2, 3", "    s_lshl_b32 s66, s66, 2", "    v_mov_b32 v111, s66", "    global_atomic_umax v111, v110, s[62:63] offset:16",
                "    s_endpgm"]
        return out
    return em.lines

def kdesc(name, vgpr, accum, sgpr=96):
    return f""".section .rodata,"a"
.p2align 6
.amdhsa_kernel {name}
  .amdhsa_next_free_vgpr {vgpr}
  .amdhsa_next_free_sgpr {sgpr}
  .amdhsa_accum_offset {accum}
  .amdhsa_group_segment_fixed_size 0
  .amdhsa_kernarg_size 80
  .amdhsa_user_sgpr_count 2
  .amdhsa_user_sgpr_kernarg_segment_ptr 1
  .amdhsa_system_sgpr_workgroup_id_x 1
.end_amdhsa_kernel
"""

if __name__ == "__main__":
    lines = gen_prep("prep_kernel")
    lines, n = fix_hazards(lines)
    print(f"; @launch kernel=prep_kernel grid=({PREP_WGS},1,1) block=(256,1,1) lds={PREP_LDS}")
    print('.amdgcn_target "amdgcn-amd-amdhsa--gfx950"\n.text\n.globl prep_kernel\n.p2align 8\n.type prep_kernel,@function')
    print("\n".join(lines))
    print(kdesc("prep_kernel", 112, 112))
```

```python
import sys
from asmlib import *
from layout import *
from gen_prep import gen_prep, kdesc, PREP_WGS, PREP_LDS

KNAME = "interleave_layers__linear_attn_block__swiglu_ffn__prompt_kernel"
NR = 9
MISC = 147456
MB = 131072
L_CS1 = MISC - MB; L_CS3 = MISC + 512 - MB; L_STAT = MISC + 1536 - MB; L_RED = MISC + 4096 - MB; L_KVB = MISC + 8192 - MB
MAIN_LDS = 163840
PH = {"K1": (0, 160), "K2": (10, 100), "K3": (17, 280), "K4": (35, 270)}
TOT_ROUNDS = 54
LOG2E = 0x3fb8aa3b
EPS6 = 0x358637bd
EPS5 = 0x3727c5ac
INV640 = 0x3acccccd

S_WS = "s[4:7]"; S_OUT = "s[8:11]"; S_WSN = "s[12:15]"
sW, sG, sM, sHALF, sC8, sLAYER = "s16", "s17", "s18", "s19", "s20", "s21"
sW4K, sW1K, sW2K = "s22", "s23", "s24"
sPW1, sPWO, sPW3, sPWD, sPWOp, sPW3p = "s25", "s26", "s27", "s28", "s29", "s30"
sDMA = "s31"; sA = "s32"; sT0, sT1, sT2, sT3 = "s33", "s34", "s35", "s36"
sFOWN, sFLINE, sKOWN, sKLINE = "s37", "s38", "s39", "s40"
sSTEP = "s41"; sTT2 = "s42"; sTT1 = "s43"
sFEX = "s[44:45]"
sMODE = "s46"; sSPIN = "s47"
sMK = ["s[48:49]", "s[50:51]", "s[52:53]", "s[54:55]", "s[56:57]", "s[58:59]"]
sXI = "s60"
sE6 = "s61"
sST = "s62"
sST2 = "s63"
sODD = "s64"
sXOFF, sXREM, sSTOFF, sAOFF, sOOFF = "s65", "s91", "s98", "s99", "s3"
sBIT2 = "s[66:67]"
sI8 = "s[68:69]"
sG23 = "s[70:71]"; sG3 = "s[72:73]"; sMK32 = "s[74:75]"
sTS = 76
sP0, sP1, sP2 = "s88", "s89", "s90"
PTD = "a255"
sR13, sR4, sRB, sRQ, sRT, sRT2 = "s84", "s85", "s86", "s87", "s100", "s101"
R13 = [4, 8, 12, 16]; R4V = [2, 14, 30, 42]
REGIONS = {"K1": [(0, 5, 20), (100, 3, 20)], "K2": [(0, 5, 20)], "K3": [(0, 4, 20), (80, 4, 20), (160, 4, 20), (240, 2, 20)], "K4": [(0, 5, 54)]}
ROTREG = {"K1": (sR13, R13), "K2": (sR13, R13), "K3": (sR13, R13), "K4": (sR4, R4V)}

vL16, vR1, vR2, vL16B = "v1", "v2", "v3", "v4"
vI4, vI4W, vG16, vG16W, vX3, vA3, vL8, vSTO, vACT6, vOREM, vOUT = [f"v{i}" for i in range(5, 16)]
vH16 = "v250"
RES = 16
WW = 36; NW = 16
ACC = 100
TMP = 212
CSVB = 140; RLB = 180


DBG = {}
class Seg:
    def __init__(s, cap=2):
        s.mf = []; s.gaps = [[]]; s.cost = [0]; s.cap = cap
    def n(s): return len(s.mf)
    def mfma(s, text, wvm=None, wlg=None):
        s.mf.append(Op(text, wvm=wvm, wlg=wlg)); s.gaps.append([]); s.cost.append(0)
        if wvm or wlg: s.cost[len(s.mf) - 1] += 1
        return len(s.mf) - 1
    def put(s, gap, op, cost=1):
        if isinstance(op, str): op = Op(op)
        gap = min(gap, len(s.gaps) - 1)
        s.gaps[gap].append(op); s.cost[gap] += cost
        return gap
    def place(s, op, earliest, cost=1, cap=None, latest=None):
        if cap is None: cap = s.cap
        g = max(0, min(earliest, len(s.gaps) - 1))
        last = len(s.gaps) - 1
        while g < last and s.cost[g] + cost > cap:
            if latest is not None and g >= latest: break
            g += 1
        return s.put(g, op, cost)
    def group(s, ops, earliest, maxcost=0):
        g = max(0, min(earliest, len(s.gaps) - 1))
        while g < len(s.gaps) - 1 and s.cost[g] > maxcost: g += 1
        for o in ops: s.put(g, o, 1)
        return g
    def stream(s, ops, earliest, cap=None, spacing=0):
        g = earliest
        for o in ops:
            c = 1
            if isinstance(o, tuple): o, c = o
            g = s.place(o, g, cost=c, cap=cap)
            g += spacing
        return g
    def emit(s, em):
        def keep(o):
            t = o.text
            if DBG.get("skipa") and t.startswith("buffer_load_dwordx4 a["): return False
            if DBG.get("skipw") and t.endswith(" lds"): return False
            if DBG.get("nobar") and t == "s_barrier":
                o.text = "s_nop 0"; return True
            if DBG.get("skipv") and t.startswith("v_") and not t.startswith(("v_mfma", "v_writelane")): return False
            if DBG.get("skipr") and t.startswith("ds_read"): return False
            return True
        for i in range(len(s.gaps)):
            for o in s.gaps[i]:
                if keep(o): em.op(o)
            if i < len(s.mf): em.op(s.mf[i])


STG0 = 160
vSTG0, vSTG1, vSTG2 = "v200", "v201", "v202"
def staged(r):
    n = DBG.get("stg", 0)
    return n and DBG.get("stg0", 26) <= r < DBG.get("stg0", 26) + n
class Ring:
    def __init__(s):
        s.issued = -1
        s.filled = -1
        s.allowed = -1
        s.q = []
    @staticmethod
    def info(r):
        rr = r % TOT_ROUNDS
        nxt = r >= TOT_ROUNDS
        for ph, (r0, nf) in PH.items():
            nrounds = (nf + 15) // 16
            if r0 <= rr < r0 + nrounds:
                k = rr - r0
                return ph, k, min(16, nf - 16 * k), nxt
        return None, 0, 0, nxt
    def jobs(s, r):
        ph, k, n, nxt = s.info(r)
        if ph is None: return []
        srd = S_WSN if nxt else S_WS
        pos = (r % NR) * 16384
        tag = ("dma", r)
        if staged(r):
            a0 = STG0 + 16 * (r - DBG.get("stg0", 26))
            va, off = (vSTG0, pos) if pos < 65536 else ((vSTG1, pos - 65536) if pos < 131072 else (vSTG2, pos - 131072))
            return [[Op(f"ds_write_b128 {va}, a[{a0+4*j}:{a0+4*j+3}] offset:{off + j*1024}", lg=("dmal", r), wvm=[("stg", r)])] for j in range(4)]
        if n > 8: c, m0s, base = 4, sW4K, {"K1": sPW1, "K2": sPWO, "K3": sPW3, "K4": sPWD}[ph]
        elif n > 4: c, m0s, base = 2, sW2K, sPW3p; assert ph == "K3" and n == 8
        else: c, m0s, base = 1, sW1K, sPWOp; assert ph == "K2" and n == 4
        nt = " nt" if (DBG.get("wnt", 0) >> {"K1": 0, "K2": 1, "K3": 2, "K4": 3}[ph]) & 1 else ""
        base4 = {"K1": sPW1, "K2": sPWO, "K3": sPW3, "K4": sPWD}[ph]
        pre = [Op(f"s_add_u32 m0, {m0s}, {pos}")]
        if not DBG.get("rot", 0):
            pre.append(Op(f"s_add_u32 {sDMA}, {base}, {(k % DBG.get('wmod', 1000))*16384}"))
        else:
            sR, rset = ROTREG[ph]
            regs = REGIONS[ph]
            def region(p):
                for i, (P0, cc, nb) in enumerate(regs):
                    if P0 <= p < P0 + cc * nb: return i
                return len(regs) - 1
            def setup(i):
                P0, cc, nb = regs[i]
                return [Op(f"s_mul_i32 {sRT}, {sR}, {cc}"), Op(f"s_lshl_b32 {sRQ}, {sW}, 2"), Op(f"s_add_u32 {sRQ}, {sRQ}, {sRT}"),
                        Op(f"s_lshl_b32 {sRT}, {sRT}, 10"), Op(f"s_add_u32 {sRB}, {base4}, {sRT}")]
            def addr(i, waves, dst):
                P0, cc, nb = regs[i]
                st = set()
                for w in waves:
                    for R in rset: st.add(16 * k + c * w + cc * R >= P0 + cc * nb)
                size = cc * nb * 1024
                if st == {False}: return [Op(f"s_add_u32 {dst}, {sRB}, {16384*k}")], False
                if st == {True}: return [Op(f"s_add_u32 {dst}, {sRB}, {(16384*k - size) & 0xffffffff}")], True
                assert c == 4
                T = P0 + cc * nb - 16 * k
                return [Op(f"s_add_u32 {dst}, {sRB}, {16384*k}"), Op(f"s_cmp_ge_u32 {sRQ}, {T}"), Op(f"s_cselect_b32 {sRT}, {size}, 0"),
                        Op(f"s_sub_u32 {dst}, {dst}, {sRT}")], None
            rw = [region(16 * k + c * w) for w in range(4)]
            prev_reg = region(16 * k - 4) if k > 0 else None
            if len(set(rw)) == 1:
                i = rw[0]
                if prev_reg != i: pre += setup(i)
                o, _ = addr(i, range(4), sDMA)
                pre += o
                if c != 4:
                    pre += [Op(f"s_sub_u32 {sDMA}, {sDMA}, {base4}"), Op(f"s_add_u32 {sDMA}, {sDMA}, {base}")]
            else:
                assert c == 4 and rw[0] == prev_reg and set(rw[1:]) == {rw[0] + 1}, (ph, k, rw)
                o, _ = addr(rw[0], [0], sRT2); pre += o
                pre += setup(rw[1])
                o, _ = addr(rw[1], [1, 2, 3], sDMA); pre += o
                pre += [Op(f"s_cmp_eq_u32 {sW}, 0"), Op(f"s_cselect_b32 {sDMA}, {sRT2}, {sDMA}")]
        out = []
        for j in range(c):
            ops = list(pre) if j == 0 else []
            ops.append(Op(f"buffer_load_dwordx4 {vL16}, {srd}, {sDMA} offen offset:{j*1024}{nt} lds", vm=tag))
            out.append(ops)
        return out
    def skip_virtual(s):
        while not s.q and s.issued < s.allowed and not s.jobs(s.issued + 1): s.issued += 1
    def next_round(s):
        r = s.issued + 1
        while not s.q and not s.jobs(r): r += 1
        return r
    def take(s):
        if not s.q:
            s.skip_virtual()
            if s.issued + 1 > s.allowed: return None
            s.q = s.jobs(s.issued + 1)
        j = s.q.pop(0)
        if not s.q:
            s.issued += 1
            s.skip_virtual()
        return j
    def emit(s, em, n=10**9, upto=None):
        k = 0
        while k < n:
            if upto is not None and s.next_round() > upto: break
            j = s.take()
            if j is None: break
            for o in j: em.op(o)
            k += 1
        return k


def wslot_addr(ph, f):
    r0, nf = PH[ph]
    r = r0 + f // 16
    a = (r % NR) * 16384 + (f % 16) * 1024
    if a < 65536: return vL16, a
    if a < 131072: return vR1, a - 65536
    return vR2, a - 131072


class WStream:
    cnt = 0
    def __init__(s, ring, seg, ph, SS=2, LA=10):
        s.ring = ring; s.seg = seg; s.ph = ph; s.SS = SS; s.LA = LA
        s.reg = {}; s.events = []
    def wreg(s, f):
        if f not in s.reg:
            s.reg[f] = WW + 4 * (WStream.cnt % NW); WStream.cnt += 1
        return s.reg[f]
    def reads(s, frags, first_use, last_use, force=(), nobar=(), wait_at=None, ming=0):
        seg = s.seg; ring = s.ring; r0, nf = PH[s.ph]
        prev = ming
        lastuse_slot = dict(getattr(s, 'lus', {}))
        filled = ring.filled
        lastbar = None
        rlast = r0 + frags[-1] // 16
        for f in frags:
            reg = s.reg[f]
            e = max(prev, first_use[f] - s.LA, lastuse_slot.get(reg, -1) + 1)
            lat = first_use[f] if wait_at is None else wait_at[f]
            e = max(0, min(e, lat))
            r = r0 + f // 16
            va, off = wslot_addr(s.ph, f)
            rd = Op(f"ds_read_b128 v[{reg}:{reg+3}], {va} offset:{off}", lg=("w", s.ph, f))
            need = r > filled
            want = (f % 16 == 0) and (r in force or (lastbar is not None and r - lastbar >= s.SS) or (lastbar is None and r - (r0 + frags[0] // 16) >= s.SS)) and r not in nobar
            if need or want:
                tgt = max(filled, min(r + s.SS - 1, rlast))
                g = e
                last = lat
                while g < last and seg.cost[g] + 1 > seg.cap: g += 1
                wt = [("dma", x) for x in range(filled + 1, tgt + 1) if not staged(x)]
                wl_ = [("dmal", x) for x in range(filled + 1, tgt + 1) if staged(x)]
                seg.put(g, Op("s_barrier", wvm=wt, wlg=wl_), 2)
                seg.put(g, rd, 1)
                filled = tgt
                prev = g
                lastbar = r
                s.events.append((g, r - 2 + NR, tgt))
            else:
                prev = seg.place(rd, e, latest=lat)
            lastuse_slot[reg] = last_use[f]
        s.lastbar = lastbar
        s.lus = lastuse_slot
        ring.filled = filled
    def vmem(s, ajobs, policy, rate=4.5, qd=36, backlog=0, margin=48, cap=None, burst0=True):
        seg = s.seg; ring = s.ring
        if cap is None: cap = seg.cap
        n = len(seg.gaps)
        path = backlog
        ai = 0
        ev = list(s.events)
        def dma_deadline(r):
            for (g, al, tgt) in ev:
                if tgt >= r: return g
            return None
        evi = 0
        for (g, al, tgt) in ev:
            if g == 0: assert ring.issued >= tgt, ("rounds not issued before seg start", s.ph, tgt, ring.issued)
        for g in range(n):
            placed = 0
            while True:
                cands = []
                if ai < len(ajobs) and (len(ajobs[ai]) < 3 or g >= ajobs[ai][2]): cands.append((ajobs[ai][1], 0))
                r = ring.next_round()
                hard = dma_deadline(r)
                pe = policy(r)
                ok = (ring.q or r <= ring.allowed)
                if ok and (hard is not None or pe is not None):
                    dl = (hard - margin) if hard is not None else 10**6
                    start = pe if pe is not None else 0
                    if g >= start or (hard is not None and g >= hard - 1): cands.append((dl, 1))
                    harddl = hard
                if not cands: break
                cands.sort()
                def isforced(c):
                    return (c[1] == 1 and hard is not None and g >= hard - 1) or (c[1] == 0 and g >= c[0])
                fc = [c for c in cands if isforced(c)]
                forced = bool(fc)
                dl, which = fc[0] if fc else cands[0]
                if not forced:
                    if path - g > qd: break
                    if (g > 0 or not burst0) and (seg.cost[g] + 1 > cap or placed >= 1): break
                if which == 0:
                    ops = ajobs[ai][0]; ai += 1
                else:
                    ops = ring.take(); assert ops is not None
                for o in ops: seg.put(g, o, 1)
                path = max(path, g) + rate
                placed += 1
            while evi < len(ev) and ev[evi][0] <= g:
                (eg, al, tgt) = ev[evi]; evi += 1
                assert ring.issued >= tgt, ("rounds not issued before barrier", s.ph, g, tgt, ring.issued)
                ring.allowed = max(ring.allowed, al)
        assert ai == len(ajobs)
        return path - n


def gen_main(opt):
    stop = opt.get("stop", 99)
    DBG.clear(); DBG.update(opt)
    stamps = opt.get("stamps", False)
    SS = opt.get("SS", 2)
    MARG = opt.get("marg", 72); QD = opt.get("qd", 36); RATE = opt.get("rate10", 45) / 10.0
    cur = {"sfx": "F", "STO": "", "LD": ""}
    em = Em()
    ring = Ring()
    WStream.cnt = 0
    nstamp = [0]
    def stamp():
        if not stamps: return
        k = nstamp[0]; nstamp[0] += 1
        em.raw(f"    s_waitcnt lgkmcnt(0)")
        em.e(f"s_memtime s[{sTS}:{sTS+1}]" if not opt.get("rt") else f"s_memrealtime s[{sTS}:{sTS+1}]")
        em.e(f"s_lshl_b32 s{sTS+2}, {sLAYER}, 4")
        em.e(f"s_add_u32 s{sTS+2}, s{sTS+2}, {k}")
        em.raw("    s_waitcnt lgkmcnt(0)")
        em.lg = []
        em.e(f"s_mov_b32 s{sTS+1}, m0")
        em.e(f"s_mov_b32 m0, s{sTS+2}"); em.e("s_nop 3")
        em.e(f"v_writelane_b32 v0, s{sTS}, m0")
        em.e(f"s_mov_b32 m0, s{sTS+1}")
    lsn = [0]
    def lstamp(seg, gap):
        if not opt.get("lst", 0): return
        lane = 32 + lsn[0]; lsn[0] += 1
        assert lane < 64
        rg = 96 if lane % 2 else 76
        seg.put(gap, f"s_memtime s[{rg}:{rg+1}]", 0)
        seg.put(gap + 12, f"v_writelane_b32 v0, s{rg}, {lane}", 0)
    def dump_stamps():
        if not stamps: return
        em.e("s_memrealtime s[96:97]")
        em.raw("    s_waitcnt lgkmcnt(0)")
        em.e("v_writelane_b32 v0, s92, 15"); em.e("v_writelane_b32 v0, s94, 30"); em.e("v_writelane_b32 v0, s96, 31")
        em.e(f"s_mov_b64 exec, s[{sTS+4}:{sTS+5}]")
        em.e(f"v_lshrrev_b32 v251, 2, {vL16}")
        em.e(f"v_add_u32 v251, s{sTS+3}, v251")
        em.e(f"global_store_dword v251, v0, s[{sTS+6}:{sTS+7}]")
        em.e("s_mov_b64 exec, -1")
        em.raw("    s_waitcnt vmcnt(0)")

    em.label(KNAME)
    em.e("s_cmp_ge_u32 s2, 256")
    em.e("s_cbranch_scc1 Lm_done")
    if stamps:
        em.e("s_memtime s[92:93]"); em.e("s_memrealtime s[94:95]")
    MONO = opt.get("mono", 0)
    if opt.get("sst"):
        em.e("s_memrealtime s[98:99]"); em.raw("    s_waitcnt lgkmcnt(0)"); em.e("s_mov_b32 s101, s98")
    if MONO:
        em.e("s_load_dwordx2 s[82:83], s[0:1], 64")
        MST = opt.get("mst", 0)
        for l in gen_prep("", mono=True, k3b=opt.get("k3b", 12), sfx={0: " sc1", 1: " sc0 sc1", 2: " sc1 nt", 3: "", 4: "", 5: " nt"}[MST], sx=opt.get("sx", 0), skipj=opt.get("skipj", 0)): em.raw(l)
        if opt.get("sx"):
            if opt["sx"] == 1: em.e("s_memrealtime s[78:79]")
            em.raw("    s_waitcnt vmcnt(0) lgkmcnt(0)")
            em.e("s_memrealtime s[76:77]"); em.raw("    s_waitcnt lgkmcnt(0)")
            if opt["sx"] == 1:
                em.e("v_mov_b32 v236, s101"); em.e("v_mov_b32 v237, s96"); em.e("v_mov_b32 v238, s78"); em.e("v_mov_b32 v239, s76")
            else:
                em.e("v_mov_b32 v236, s101"); em.e("v_mov_b32 v237, s80"); em.e("v_mov_b32 v238, s78"); em.e("v_mov_b32 v239, s96")
            em.e("s_lshl_b32 s33, s2, 4"); em.e("s_add_u32 s33, s33, 0x3000000"); em.e("v_mov_b32 v240, s33")
            em.e("s_cmp_lg_u32 s18, 0"); em.e("s_cbranch_scc1 Lm_done")
            em.e("s_mov_b64 exec, 1"); em.e("global_store_dwordx4 v240, v[236:239], s[16:17]"); em.e("s_endpgm")
        em.e(f"s_getreg_b32 {sMODE}, hwreg(HW_REG_XCC_ID)")
        em.e(f"s_lshr_b32 s33, {sMODE}, 12"); em.e("s_and_b32 s33, s33, 0x70"); em.e(f"s_and_b32 {sMODE}, {sMODE}, 15")
        em.e(f"s_or_b32 {sMODE}, {sMODE}, s33"); em.e(f"s_or_b32 {sMODE}, {sMODE}, 0x80")
        em.e(f"v_mov_b32 v254, {sMODE}"); em.e("v_mov_b32 v255, s2")
        em.raw("    s_waitcnt vmcnt(0) lgkmcnt(0)")
        em.e("s_barrier")
        em.e("s_cmp_lg_u32 s18, 0"); em.e("s_cbranch_scc1 Lm_nofl")
        if MST in (3, 5):
            em.e("buffer_wbl2 sc1"); em.raw("    s_waitcnt vmcnt(0)")
        em.e("s_mov_b64 exec, 1")
        em.e("global_store_byte v255, v254, s[82:83] sc1")
        em.e("s_mov_b64 exec, -1")
        em.label("Lm_nofl")
        if opt.get("sst"):
            em.e("s_memrealtime s[98:99]"); em.raw("    s_waitcnt lgkmcnt(0)"); em.e("s_mov_b32 s100, s98")
        if stamps:
            em.e("s_memtime s[96:97]"); em.raw("    s_waitcnt lgkmcnt(0)"); em.e("s_sub_u32 s96, s96, s92")
    pln = [0]
    def pls():
        if opt.get("pls") != 1: return
        em.e("s_memtime s[96:97]"); em.raw("    s_waitcnt lgkmcnt(0)"); em.e(f"v_mov_b32 v{236 + pln[0]}, s96"); pln[0] += 1
    em.e("s_load_dwordx2 s[8:9], s[0:1], 56"); em.e("s_load_dwordx2 s[10:11], s[0:1], 64")
    em.e("s_load_dwordx2 s[4:5], s[0:1], 72")
    em.e("v_lshrrev_b32 v2, 6, v0")
    em.e("v_and_b32 v0, 63, v0")
    em.e(f"v_readfirstlane_b32 {sW}, v2")
    em.e(f"v_lshlrev_b32 {vL16}, 4, v0")
    em.e("s_and_b32 s33, s2, 7"); em.e("s_lshr_b32 s34, s2, 3")
    em.e("s_and_b32 s35, s34, 1"); em.e(f"s_lshr_b32 {sM}, s34, 1")
    em.e("s_lshl_b32 s33, s33, 1"); em.e(f"s_add_u32 {sG}, s33, s35")
    em.e(f"s_and_b32 {sHALF}, {sM}, 1"); em.e(f"s_lshr_b32 {sC8}, {sM}, 1")
    em.e(f"s_lshl_b32 {sW4K}, {sW}, 12"); em.e(f"s_lshl_b32 {sW1K}, {sW}, 10"); em.e(f"s_lshl_b32 {sW2K}, {sW}, 11")
    def base(dst, reg0, sz, idx, wk, extra=0):
        em.e(f"s_mul_i32 {dst}, {idx}, {sz}"); em.e(f"s_add_u32 {dst}, {dst}, {reg0 + extra}"); em.e(f"s_add_u32 {dst}, {dst}, {wk}")
    base(sPW1, PW1, PW1_SZ, sM, sW4K); base(sPWO, PWO, PWO_SZ, sC8, sW4K)
    base(sPW3, PW3, PW3_SZ, sM, sW4K); base(sPWD, PWD, PWD_SZ, sC8, sW4K)
    base(sPWOp, PWO, PWO_SZ, sC8, sW1K); base(sPW3p, PW3, PW3_SZ, sM, sW2K)
    if opt.get("same", 0) & 1: base(sPW1, PW1, 0, sM, sW4K)
    if opt.get("same", 0) & 4: base(sPW3, PW3, 0, sM, sW4K); base(sPW3p, PW3, 0, sM, sW2K)
    if opt.get("same", 0) & 8: base(sPWD, PWD, 0, sC8, sW4K)
    em.e("s_waitcnt lgkmcnt(0)")
    pls()
    if stamps and not opt.get("rt") and not MONO:
        em.e(f"s_mov_b32 s{sTS+6}, s10"); em.e(f"s_mov_b32 s{sTS+7}, s11")
    if stamps and opt.get("rt"):
        em.e(f"s_add_u32 s{sTS+6}, s4, 0x3000000"); em.e(f"s_addc_u32 s{sTS+7}, s5, 0")
    if opt.get("wsoff", 0): em.e(f"s_add_u32 s4, s4, {opt['wsoff'] << 20}"); em.e("s_addc_u32 s5, s5, 0")
    em.e(f"s_mov_b32 s6, {WS_END}"); em.e("s_mov_b32 s7, 0x20000")
    em.e(f"s_mov_b32 s10, {2048*640*2}"); em.e("s_mov_b32 s11, 0x20000")
    em.e("s_mov_b32 s12, s4"); em.e("s_mov_b32 s13, s5"); em.e(f"s_mov_b32 s14, {WS_END}"); em.e("s_mov_b32 s15, 0x20000")
    em.e(f"s_and_b32 s33, {sG}, 1"); em.e(f"s_lshl_b32 s33, s33, 1"); em.e(f"s_add_u32 s33, s33, {sHALF}")
    if opt.get("rot", 0) == 2: em.e("s_mov_b32 s33, 0")
    em.e(f"s_lshl_b32 {sR13}, s33, 2"); em.e(f"s_add_u32 {sR13}, {sR13}, 4")
    em.e(f"s_mul_i32 {sR4}, s33, 12"); em.e(f"s_add_u32 {sR4}, {sR4}, 2"); em.e(f"s_cmp_ge_u32 s33, 2"); em.e(f"s_cselect_b32 s33, 4, 0"); em.e(f"s_add_u32 {sR4}, {sR4}, s33")
    HEAD = opt.get("head", 4)
    ring.allowed = 8
    if opt.get("probe"):
        pr = {1: [(sPW1, 0), (sPW1, 65536), (sOOFF, XB + 4096), (sPW1, 65536 + 64)],
              2: [(sOOFF, XB + 4096), (sOOFF, XB + 8192), (sPW3, 0), (sPWD, 0)],
              3: [(sOOFF, FLG_XCC), (sOOFF, ST), (sPW1, 0), (sPW1, 65536)]}[opt["probe"]]
        em.e(f"s_mul_i32 {sOOFF}, s2, 0")
        if opt["probe"] != 3: em.e(f"s_mul_i32 {sOOFF}, {sG}, {8*20480}")
        for (sr, off) in pr:
            em.e(f"s_add_u32 s33, {sr}, {off}")
            em.e(f"buffer_load_dword v241, off, {S_WS}, s33")
            em.raw("    s_waitcnt vmcnt(0)")
            pls()
        opt["pls"] = 2
    PEEL = opt.get("peel", 0) if not MONO else 0
    P1J = opt.get("p1j", 10)
    PA = opt.get("pa", 3)
    PBLK = [3, 6, 9, 12, 16, 19, 20]
    if PEEL:
        em.e(f"s_lshl_b32 s33, {sG}, 3"); em.e(f"s_lshl_b32 s34, {sW}, 1"); em.e(f"s_add_u32 {sTT2}, s33, s34")
        em.e(f"v_add_u32 {vL16B}, 20480, {vL16}")
        em.e(f"s_mul_i32 {sA}, {sTT2}, 20480"); em.e(f"s_add_u32 {sA}, {sA}, {XB}")
        b0 = 0
        for r in range(PA):
            if opt.get("pao", 0) == 0: ring.emit(em, upto=r)
            for b in range(b0, PBLK[r]):
                if b % 4 == 0 and b > 0: em.e(f"s_add_u32 {sA}, {sA}, 4096")
                for t in range(2):
                    rg = 80 * t + 4 * b
                    em.e(f"buffer_load_dwordx4 a[{rg}:{rg+3}], {vL16 if t == 0 else vL16B}, {S_WS}, {sA} offen offset:{(b % 4) * 1024}", vm=("a", b, t))
            b0 = PBLK[r]
            if opt.get("pao", 0) == 1: ring.emit(em, upto=r)
        ring.emit(em, upto=opt.get("pb", PA - 1))
    elif not MONO: ring.emit(em, upto=2)
    pls()
    AH = opt.get("ah", 0) if not MONO and not PEEL else 0
    def k1_hoist(ld):
        em.e(f"s_mul_i32 {sA}, {sXI}, {X_SZ}"); em.e(f"s_mul_i32 {sT0}, {sTT2}, 20480")
        em.e(f"s_add_u32 {sA}, {sA}, {sT0}"); em.e(f"s_add_u32 {sA}, {sA}, {XB}")
        for b in range(AH):
            if b % 4 == 0 and b > 0: em.e(f"s_add_u32 {sA}, {sA}, 4096")
            for t in range(2):
                r = 80 * t + 4 * b
                em.e(f"buffer_load_dwordx4 a[{r}:{r+3}], {vL16 if t == 0 else vL16B}, {S_WS}, {sA} offen offset:{(b % 4) * 1024}{ld}", vm=("a", b, t))
    if AH:
        assert not opt.get("rot", 0)
        if opt.get("aho", 0) == 0: ring.emit(em, upto=HEAD)
        em.e(f"s_lshl_b32 s33, {sG}, 3"); em.e(f"s_lshl_b32 s34, {sW}, 1"); em.e(f"s_add_u32 {sTT2}, s33, s34")
        em.e(f"s_mov_b32 {sXI}, 0"); em.e(f"v_add_u32 {vL16B}, 20480, {vL16}")
        k1_hoist("")
    em.e(f"s_lshl_b32 s33, {sG}, 7")
    em.e(f"s_add_u32 {sFLINE}, s33, {FLG_G}"); em.e(f"s_lshl_b32 s34, {sM}, 2"); em.e(f"s_add_u32 {sFOWN}, {sFLINE}, s34")
    em.e(f"s_lshl_b32 s33, {sM}, 7"); em.e(f"s_add_u32 {sKLINE}, s33, {FLG_KV}"); em.e(f"s_lshl_b32 s34, {sG}, 2"); em.e(f"s_add_u32 {sKOWN}, {sKLINE}, s34")
    em.e(f"s_lshl_b32 s33, {sG}, 3")
    em.e(f"s_lshl_b32 s34, {sW}, 1"); em.e(f"s_add_u32 {sTT2}, s33, s34")
    em.e(f"s_lshl_b32 s34, {sHALF}, 2"); em.e(f"s_add_u32 s34, s34, {sW}"); em.e(f"s_add_u32 {sTT1}, s33, s34")
    em.e(f"s_cmp_eq_u32 {sW}, 0"); em.e("s_cselect_b32 s44, 1, 0"); em.e("s_mov_b32 s45, 0")
    em.e(f"s_mov_b32 {sLAYER}, 0"); em.e(f"s_mov_b32 {sSTEP}, 0"); em.e(f"s_mov_b32 {sXI}, 0")
    em.e(f"s_mov_b32 {sE6}, {EPS6}")
    em.e(f"s_and_b32 {sODD}, {sC8}, 1")
    em.e(f"s_lshr_b32 s33, {sC8}, 1"); em.e("s_mul_i32 s33, s33, 5")
    em.e(f"s_lshl_b32 s34, {sODD}, 1"); em.e("s_add_u32 s34, s34, s33"); em.e("s_lshl_b32 s34, s34, 10")
    em.e(f"s_add_u32 s33, s33, 4"); em.e("s_lshl_b32 s33, s33, 10"); em.e(f"s_sub_u32 {sXREM}, s33, s34")
    em.e(f"s_mul_i32 s35, {sTT1}, 20480"); em.e(f"s_add_u32 s34, s34, s35"); em.e(f"s_add_u32 {sXOFF}, s34, {XB}")
    em.e(f"s_lshl_b32 s33, {sTT1}, 10"); em.e(f"s_lshl_b32 s34, {sC8}, 7"); em.e("s_add_u32 s33, s33, s34"); em.e(f"s_add_u32 {sSTOFF}, s33, {ST}")
    em.e(f"s_mul_i32 s33, {sTT2}, {54*1024}"); em.e(f"s_add_u32 {sAOFF}, s33, {ACT}")
    em.e(f"s_mul_i32 s33, {sTT2}, 20480"); em.e(f"s_add_u32 {sOOFF}, s33, {OB}")
    def m64(reg, val):
        a = int(reg[2:].split(":")[0])
        em.e(f"s_mov_b32 s{a}, {hex(val & 0xffffffff)}"); em.e(f"s_mov_b32 s{a+1}, {hex(val >> 32)}")
    m64(sMK[0], 0xFFFF); m64(sMK[1], 0xFFFF0000); m64(sMK[2], 0x0F000F000F000F00); m64(sMK[3], 0xF000F000F000F000)
    m64(sMK[4], 0x0F00); m64(sMK[5], 0xF0000000)
    m64(sBIT2, 0xF0F0F0F0F0F0F0F0); m64(sI8, 0x00FF00FF00FF00FF)
    m64(sG23, 0xFFFFFFFF00000000); m64(sG3, 0xFFFF000000000000); m64(sMK32, 0x00000000FFFFFFFF)
    if stamps:
        em.e(f"s_mov_b32 s{sTS+4}, 0"); em.e(f"s_mov_b32 s{sTS+5}, 0"); em.e(f"s_mov_b32 s{sTS+3}, {256 if MONO else 0}")
        em.e(f"s_sub_u32 s33, 0, s44")
        if opt.get("lst", 0) or MONO:
            em.e(f"s_cmp_eq_u32 s2, {opt.get('wg2', 0)}"); em.e(f"s_cselect_b32 s{sTS+4}, s33, 0"); em.e(f"s_mov_b32 s{sTS+5}, s{sTS+4}")
        if opt.get("rt"):
            em.e(f"s_mov_b32 s{sTS+4}, s33"); em.e(f"s_mov_b32 s{sTS+5}, 0"); em.e(f"s_lshl_b32 s{sTS+3}, s2, 7")
        elif not opt.get("lst", 0) and not MONO:
            em.e("s_cmp_eq_u32 s2, 0"); em.e(f"s_cselect_b32 s{sTS+4}, s33, 0")
            em.e(f"s_cmp_eq_u32 s2, {opt.get('wg2', 255)}"); em.e(f"s_cselect_b32 s{sTS+4}, s33, s{sTS+4}"); em.e(f"s_mov_b32 s34, {256 if MONO else 0}"); em.e(f"s_mov_b32 s35, {384 if MONO else 128}"); em.e(f"s_cselect_b32 s{sTS+3}, s35, s34")
    if not MONO:
        em.e(f"s_getreg_b32 {sMODE}, hwreg(HW_REG_XCC_ID)")
        em.e(f"s_and_b32 {sMODE}, {sMODE}, 0xffff"); em.e(f"s_add_u32 {sMODE}, {sMODE}, 1")
        em.e(f"v_mov_b32 v254, {sMODE}"); em.e("v_mov_b32 v255, 0")
        em.e(f"s_add_u32 s33, {sFOWN}, {FLG_XCC - FLG_G}")
        em.e(f"s_mov_b64 exec, {sFEX}")
        em.e(f"buffer_store_dword v254, v255, {S_WS}, s33 offen sc1")
        em.e("s_mov_b64 exec, -1")
    em.e("v_and_b32 v212, 15, v0"); em.e("v_lshrrev_b32 v213, 4, v0")
    em.e(f"v_add_u32 {vR1}, 0x10000, {vL16}"); em.e(f"v_add_u32 {vR2}, 0x20000, {vL16}"); em.e(f"v_add_u32 {vL16B}, 20480, {vL16}")
    em.e(f"v_lshlrev_b32 {vI4}, 2, v212"); em.e(f"v_add_u32 {vI4}, 0x20000, {vI4}")
    em.e(f"s_lshl_b32 s33, {sW}, 8")
    em.e(f"v_add_u32 {vI4W}, s33, {vI4}")
    em.e(f"v_lshlrev_b32 {vG16}, 4, v213"); em.e(f"v_add_u32 {vG16}, 0x20000, {vG16}"); em.e(f"v_add_u32 {vG16W}, s33, {vG16}")
    em.e("v_lshrrev_b32 v214, 5, v0"); em.e("v_bfe_u32 v215, v0, 4, 1")
    em.e("v_lshlrev_b32 v216, 8, v214"); em.e("v_lshlrev_b32 v217, 4, v212"); em.e("v_add_u32 v216, v216, v217")
    em.e(f"v_mul_u32_u24 v217, 20480, v215"); em.e(f"v_add_u32 {vX3}, v216, v217")
    em.e(f"v_mul_u32_u24 v217, {54*1024}, v215"); em.e(f"v_add_u32 {vA3}, v216, v217")
    em.e(f"v_lshlrev_b32 {vH16}, 4, v214"); em.e(f"v_add_u32 {vH16}, 0x20000, {vH16}")
    em.e(f"v_lshlrev_b32 {vL8}, 3, v0"); em.e(f"v_add_u32 {vL8}, 0x20000, {vL8}")
    em.e(f"v_lshlrev_b32 {vSTO}, 8, v213"); em.e("v_lshlrev_b32 v214, 3, v212"); em.e(f"v_add_u32 {vSTO}, {vSTO}, v214")
    em.e(f"s_mul_i32 s33, {sM}, 3"); em.e("v_lshrrev_b32 v214, 5, v0"); em.e("v_add_u32 v214, s33, v214")
    em.e("v_lshrrev_b32 v215, 3, v214"); em.e("v_add_u32 v215, 48, v215"); em.e("v_lshlrev_b32 v215, 10, v215")
    em.e("v_and_b32 v216, 3, v214"); em.e("v_lshlrev_b32 v216, 8, v216"); em.e("v_add_u32 v215, v215, v216")
    em.e("v_lshlrev_b32 v216, 4, v212"); em.e("v_add_u32 v215, v215, v216")
    em.e("v_bfe_u32 v216, v214, 2, 1"); em.e("v_lshlrev_b32 v216, 3, v216"); em.e(f"v_add_u32 v215, v215, v216")
    em.e("v_bfe_u32 v216, v0, 4, 1"); em.e(f"v_mul_u32_u24 v216, {54*1024}, v216"); em.e(f"v_add_u32 {vACT6}, v215, v216")
    em.e(f"s_lshr_b32 s33, {sM}, 2"); em.e("s_add_u32 s33, s33, 16"); em.e("s_lshl_b32 s33, s33, 10")
    em.e(f"s_and_b32 s34, {sM}, 1"); em.e("s_lshl_b32 s34, s34, 9"); em.e("s_add_u32 s33, s33, s34")
    em.e(f"s_bfe_u32 s34, {sM}, 0x10001"); em.e("s_lshl_b32 s34, s34, 3"); em.e("s_add_u32 s33, s33, s34")
    em.e("s_sub_u32 s33, s33, 512")
    em.e("v_lshlrev_b32 v215, 8, v213"); em.e("v_lshlrev_b32 v216, 4, v212"); em.e("v_add_u32 v215, v215, v216")
    em.e(f"v_add_u32 {vOREM}, s33, v215")
    em.e("v_mul_u32_u24 v215, 1280, v212"); em.e("v_lshlrev_b32 v216, 3, v213"); em.e(f"v_add_u32 {vOUT}, v215, v216")
    if MONO:
        em.e(f"s_cmp_lg_u32 {sW}, 0"); em.e("s_cbranch_scc1 Lm_sb_o")
        em.e("v_lshlrev_b32 v252, 2, v0")
        em.e(f"s_mov_b32 {sSPIN}, 0")
        em.label("Lm_sb_p")
        em.e("global_load_dword v253, v252, s[82:83] sc1")
        em.raw("    s_waitcnt vmcnt(0)")
        em.e("v_and_b32 v254, 0x80808080, v253")
        em.e("v_cmp_ne_u32 vcc, 0x80808080, v254")
        em.e(f"s_add_u32 {sSPIN}, {sSPIN}, 1")
        em.e(f"s_cmp_gt_u32 {sSPIN}, 200000")
        em.e("s_cbranch_scc1 Lm_sb_x")
        em.e("s_cbranch_vccnz Lm_sb_p")
        em.label("Lm_sb_x")
        em.e("s_and_b32 s33, s2, 3"); em.e("s_lshl_b32 s33, s33, 3")
        em.e("v_lshrrev_b32 v253, s33, v253"); em.e("v_and_b32 v253, 0xff, v253")
        em.e(f"v_cmp_ne_u32 vcc, {sMODE}, v253")
        em.e("s_bfe_u32 s33, s2, 0x20002"); em.e("s_mov_b32 s34, 0x11111111"); em.e("s_lshl_b32 s34, s34, s33"); em.e("s_mov_b32 s35, s34")
        em.e("s_and_b64 vcc, vcc, s[34:35]")
        em.e("s_cmp_lg_u64 vcc, 0"); em.e("s_cselect_b32 s33, 1, 0")
        if opt.get("force_slow", 0): em.e("s_mov_b32 s33, 1")
        em.e("v_mov_b32 v253, s33"); em.e(f"v_mov_b32 v252, {MISC + 12288}")
        em.e("ds_write_b32 v252, v253")
        em.raw("    s_waitcnt lgkmcnt(0)")
        em.label("Lm_sb_o")
        em.e("s_barrier")
        em.e(f"v_mov_b32 v252, {MISC + 12288}")
        em.e("ds_read_b32 v253, v252")
        ring.emit(em, upto=2)
        em.raw("    s_waitcnt lgkmcnt(0)")
        em.e(f"v_readfirstlane_b32 {sMODE}, v253")
        if opt.get("sst"):
            em.e("s_memrealtime s[76:77]"); em.raw("    s_waitcnt lgkmcnt(0)")
            em.e("v_mov_b32 v236, s101"); em.e("v_mov_b32 v237, s100"); em.e("v_mov_b32 v238, s76"); em.e("v_mov_b32 v239, 0")
            em.e("s_lshl_b32 s33, s2, 4"); em.e("s_add_u32 s33, s33, 0x3000000"); em.e("v_mov_b32 v240, s33")
            em.e("s_mov_b64 exec, 1"); em.e("global_store_dwordx4 v240, v[236:239], s[4:5]"); em.e("s_mov_b64 exec, -1")
        if stamps:
            em.e("s_memtime s[76:77]"); em.raw("    s_waitcnt lgkmcnt(0)"); em.e("s_sub_u32 s97, s76, s92")
    pls()
    em.e(f"s_mul_i32 s33, {sM}, 512"); em.e(f"s_add_u32 s33, s33, {CS1}")
    em.e(f"s_mul_i32 s34, {sM}, 896"); em.e(f"s_add_u32 s34, s34, {CS3}")
    em.e("v_and_b32 v214, 31, v0"); em.e("v_lshlrev_b32 v214, 4, v214"); em.e("v_lshrrev_b32 v215, 5, v0")
    em.e("v_mul_u32_u24 v215, 81920, v215"); em.e("v_add_u32 v214, v214, v215"); em.e("v_add_u32 v214, s33, v214")
    em.e(f"v_add_u32 v215, s34, {vL16}")
    em.e("v_mov_b32 v216, 0x7ffffff0")
    em.e("v_cmp_gt_u32 vcc, 56, v0"); em.e("v_cndmask_b32 v215, v216, v215, vcc")
    em.e(f"s_cmp_eq_u32 {sW}, 0"); em.e("s_mov_b32 s36, 14336"); em.e("s_cselect_b32 s36, 8192, s36"); em.e("s_cselect_b64 vcc, -1, 0")
    em.e("v_cndmask_b32 v214, v215, v214, vcc")
    em.e(f"s_cmp_ge_u32 {sW}, 2"); em.e("s_cselect_b64 vcc, -1, 0")
    em.e("v_cndmask_b32 v214, v214, v216, vcc")
    for k in range(10):
        em.e(f"buffer_load_dwordx4 v[{CSVB+4*k}:{CSVB+4*k+3}], v214, {S_WS}, 0 offen", vm="cs")
        if k < 9: em.e("v_add_u32 v214, s36, v214")
    RL = RLB
    em.e(f"s_lshr_b32 s33, {sC8}, 1"); em.e("s_mul_i32 s33, s33, 5")
    em.e(f"s_lshl_b32 s34, {sODD}, 1"); em.e("s_add_u32 s34, s34, s33")
    em.e(f"s_mul_i32 s35, {sTT1}, 20480"); em.e(f"s_add_u32 s35, s35, {XB}")
    em.e("s_lshl_b32 s34, s34, 10"); em.e("s_add_u32 s34, s34, s35")
    em.e(f"buffer_load_dwordx4 v[{RL}:{RL+3}], {vL16}, {S_WS}, s34 offen", vm="res")
    em.e(f"buffer_load_dwordx4 v[{RL+4}:{RL+7}], {vL16}, {S_WS}, s34 offen offset:1024", vm="res")
    em.e("s_add_u32 s33, s33, 4"); em.e("s_lshl_b32 s33, s33, 10"); em.e("s_add_u32 s33, s33, s35")
    em.e(f"s_lshl_b32 s34, {sODD}, 3"); em.e("s_add_u32 s33, s33, s34")
    em.e(f"buffer_load_dwordx2 v[{RL+8}:{RL+9}], {vL16}, {S_WS}, s33 offen", vm="res")

    def poll(line, target_expr_sreg, lbl):
        em.e(f"s_mov_b32 {sSPIN}, 0")
        em.e(f"v_subrev_u32 v252, 0x20000, {vI4}")
        em.label(lbl)
        em.e(f"buffer_load_dword v253, v252, {S_WS}, {line} offen sc1")
        em.raw("    s_waitcnt vmcnt(0)")
        em.e(f"v_cmp_gt_u32 vcc, {target_expr_sreg}, v253")
        em.e(f"s_add_u32 {sSPIN}, {sSPIN}, 1")
        em.e(f"s_cmp_gt_u32 {sSPIN}, 20000")
        em.e(f"s_cbranch_scc1 {lbl}_x")
        em.e(f"s_cbranch_vccnz {lbl}")
        em.label(lbl + "_x")
    uid = [0]
    def flag_store(own, val_sreg):
        em.e(f"v_mov_b32 v254, {val_sreg}")
        em.e("v_mov_b32 v255, 0")
        em.e(f"s_mov_b64 exec, {sFEX}")
        em.e(f"buffer_store_dword v254, v255, {S_WS}, {own} offen{cur['STO']}")
        em.e("s_mov_b64 exec, -1")
    def transition(pub, wait, last_round, sttags, need, d1, d2, upto2=None, defer0=False):
        uid[0] += 1; u = uid[0]
        if defer0:
            class Rec:
                def __init__(s_): s_.ops = []
                def op(s_, o): s_.ops.append(o)
            c1 = Rec(); ring.emit(c1, d1, upto=upto2)
            em.e(f"s_cmp_lg_u32 {sW}, 0"); em.e(f"s_cbranch_scc1 Lt{u}_a")
            vm0 = list(em.vm)
            em.wait(wvm=sttags)
            em.e(f"s_branch Lt{u}_b")
            em.label(f"Lt{u}_a")
            em.vm = vm0
            for o in c1.ops: em.op(o)
            em.wait(wvm=sttags)
            em.label(f"Lt{u}_b")
            em.e("s_barrier")
            ring.allowed = max(ring.allowed, last_round + NR)
            em.e(f"s_add_u32 {sT0}, {sSTEP}, {pub}")
            flag_store(sFOWN, sT0)
            c2 = Rec(); ring.emit(c2, d2, upto=upto2); ring.emit(c2, upto=need)
            assert ring.issued >= need
            em.e(f"s_cmp_lg_u32 {sW}, 0")
            em.e(f"s_cbranch_scc1 Lt{u}_c")
            em.e(f"s_add_u32 {sT0}, {sSTEP}, {wait}")
            poll(sFLINE, sT0, f"Lt{u}_p")
            for o in c1.ops + c2.ops: em.raw("    " + o.text)
            em.e(f"s_branch Lt{u}_o")
            em.label(f"Lt{u}_c")
            for o in c2.ops: em.op(o)
            em.label(f"Lt{u}_o")
            em.wait(wvm=[("dma", x) for x in range(ring.filled + 1, need + 1)])
            ring.filled = max(ring.filled, need)
            em.e("s_barrier")
            return
        ring.emit(em, d1, upto=upto2)
        em.wait(wvm=sttags)
        em.e("s_barrier")
        ring.allowed = max(ring.allowed, last_round + NR)
        em.e(f"s_add_u32 {sT0}, {sSTEP}, {pub}")
        flag_store(sFOWN, sT0)
        ring.emit(em, d2, upto=upto2)
        ring.emit(em, upto=need)
        assert ring.issued >= need
        em.e(f"s_cmp_lg_u32 {sW}, 0")
        em.e(f"s_cbranch_scc1 Lt{u}_o")
        em.e(f"s_add_u32 {sT0}, {sSTEP}, {wait}")
        poll(sFLINE, sT0, f"Lt{u}_p")
        em.label(f"Lt{u}_o")
        em.wait(wvm=[("dma", x) for x in range(ring.filled + 1, need + 1)], wlg=[("dmal", x) for x in range(ring.filled + 1, need + 1)])
        ring.filled = max(ring.filled, need)
        em.e("s_barrier")

    def a_loads(n_tiles, nblk, ph, tagname, areg, m32=False):
        ops = []
        sR, rset = ROTREG[ph]
        rot = opt.get("rot", 0)
        for b in range(nblk):
            if b == 0 and rot:
                ops += [Op(f"s_lshl_b32 {sRT}, {sR}, 10"), Op(f"s_add_u32 {sA}, {sA}, {sRT}")]
            if b % 4 == 0 and b > 0:
                ops.append(Op(f"s_add_u32 {sA}, {sA}, 4096"))
                if rot and (nblk - b) in rset:
                    ops += [Op(f"s_cmp_eq_u32 {sR}, {nblk - b}"), Op(f"s_cselect_b32 {sRT}, {nblk*1024}, 0"), Op(f"s_sub_u32 {sA}, {sA}, {sRT}")]
            for t in range(n_tiles):
                r = areg(b, t)
                va = vL16 if t == 0 else vL16B
                off = (b % 4) * 1024
                if m32: va = vX3; off += 512 * t
                ops.append(Op(f"buffer_load_dwordx4 a[{r}:{r+3}], {va}, {S_WS}, {sA} offen offset:{off}{cur['LD']}", vm=(tagname, b, t)))
        return ops

    def a_jobs(al, dl):
        jobs = []; pend = []
        for o in al:
            pend.append(o)
            if o.vm is not None:
                jobs.append((pend, dl(o.vm[1]))); pend = []
        return jobs
    def stats_ops(base):
        ops = []
        for t in range(2):
            a = base + 4 * t; nm = base + 8 + 2 * t; rs = nm + 1; x = base + 12; y = base + 13
            ops.append(Op(f"v_add_f32 v{a}, v{a}, v{a+2}", wvm=[("st", t)]))
            ops.append(f"v_add_f32 v{a+1}, v{a+1}, v{a+3}")
            for sw in ("v_permlane32_swap_b32", "v_permlane16_swap_b32"):
                ops.append(f"v_mov_b32 v{x}, v{a}"); ops.append(f"v_mov_b32 v{y}, v{a+1}")
                ops.append(f"{sw} v{a}, v{x}"); ops.append(f"{sw} v{a+1}, v{y}")
                ops.append(f"v_add_f32 v{a}, v{a}, v{x}"); ops.append(f"v_add_f32 v{a+1}, v{a+1}, v{y}")
            ops.append(f"v_mul_f32 v{nm}, {hex(INV640 | 0x80000000)}, v{a}")
            ops.append(f"v_mul_f32 v{a+1}, {hex(INV640)}, v{a+1}")
            ops.append(f"v_fma_f32 v{a+1}, -v{nm}, v{nm}, v{a+1}")
            ops.append(f"v_max_f32 v{a+1}, 0, v{a+1}")
            ops.append(f"v_add_f32 v{a+1}, {hex(EPS5)}, v{a+1}")
            ops.append((Op(f"v_rsq_f32 v{rs}, v{a+1}"), 2))
        return ops
    def stats_loads(base):
        ops = []
        ops.append(Op(f"s_mul_i32 {sST}, {sXI}, {ST_SZ}"))
        ops.append(Op(f"s_lshl_b32 {sST2}, {sTT2}, 10"))
        ops.append(Op(f"s_add_u32 {sST}, {sST}, {sST2}"))
        ops.append(Op(f"s_add_u32 {sST}, {sST}, {ST}"))
        for t in range(2):
            a = base + 4 * t
            ops.append(Op(f"buffer_load_dwordx2 v[{a}:{a+1}], {vSTO}, {S_WS}, {sST} offen offset:{t*1024}{cur['LD']}", vm=("st", t)))
            ops.append(Op(f"buffer_load_dwordx2 v[{a+2}:{a+3}], {vSTO}, {S_WS}, {sST} offen offset:{t*1024+128}{cur['LD']}", vm=("st", t)))
        return ops
    def set_sA_x():
        em.e(f"s_mul_i32 {sA}, {sXI}, {X_SZ}"); em.e(f"s_mul_i32 {sT0}, {sTT2}, 20480")
        em.e(f"s_add_u32 {sA}, {sA}, {sT0}"); em.e(f"s_add_u32 {sA}, {sA}, {XB}")

    def phi_ops(acc, cs, nm, rs, rl, t1, t2):
        return [f"v_fmac_f32 v{acc}, v{nm}, v{cs}",
                f"v_mul_f32 v{t1}, v{acc}, v{rl}",
                (Op(f"v_exp_f32 v{t1}, v{t1} clamp"), 2),
                f"v_max_f32 v{acc}, 0, v{acc}",
                f"v_add_f32 v{t1}, {hex(EPS6)}, v{t1}",
                f"v_fma_f32 v{acc}, v{acc}, v{rs}, v{t1}"]
    def il(lists):
        out = []; k = 0
        while any(k < len(l) for l in lists):
            for l in lists:
                if k < len(l): out.append(l[k])
            k += 1
        return out
    def lin(ops):
        for o in ops:
            if isinstance(o, tuple): o = o[0]
            em.op(o)

    def reuse(): return cur["sfx"] == "F" and opt.get("reuse", 1)
    def LB(): return "0" if reuse() else sLAYER
    def pt(voff, srd, soff, imm=0):
        sc = {0: "", 1: " sc1", 2: " sc0", 3: " nt", 4: " sc0 sc1"}[opt.get("ptsc", 0)]
        if voff is None: return Op(f"buffer_load_dword {PTD}, off, {srd}, {soff} offset:{imm}{sc}", vm="pt")
        return Op(f"buffer_load_dword {PTD}, {voff}, {srd}, {soff} offen offset:{imm}{sc}", vm="pt")
    PTM = opt.get("ptm", 1); PTK = opt.get("ptk", 31)
    def PS(): return S_WSN if PTM == 2 else S_WS
    def pt_x(srd):
        return [f"s_mov_b32 {sP0}, 1" if reuse() else f"s_add_u32 {sP0}, {sXI}, 1", f"s_mul_i32 {sP1}, {sP0}, {X_SZ}", f"s_add_u32 {sP1}, {sP1}, {sXOFF}",
                pt(vL16, srd, sP1), pt(vL16, srd, sP1, 1024),
                f"s_add_u32 {sP1}, {sP1}, {sXREM}", pt(vL16, srd, sP1),
                f"s_mul_i32 {sP0}, {sP0}, {ST_SZ}", f"s_add_u32 {sP0}, {sP0}, {sSTOFF}", pt(None, srd, sP0)]
    def pt_act(p):
        ops = [f"s_mul_i32 {sP0}, {LB()}, {ACT_SZ}", f"s_add_u32 {sP0}, {sP0}, {sAOFF}"]
        if p < 3:
            ops += [f"s_lshl_b32 {sP1}, {sM}, 10", f"s_add_u32 {sP0}, {sP0}, {sP1}"]
            if p: ops.append(f"s_add_u32 {sP0}, {sP0}, {p*16384}")
            ops += [pt(vL16, PS(), sP0), f"s_add_u32 {sP0}, {sP0}, {54*1024}", pt(vL16, PS(), sP0)]
        else:
            ops += [pt(vACT6, PS(), sP0)]
        return ops
    def pt_o():
        return [f"s_mul_i32 {sP0}, {LB()}, {O_SZ}", f"s_add_u32 {sP0}, {sP0}, {sOOFF}",
                pt(vOREM, PS(), sP0), f"s_add_u32 {sP0}, {sP0}, 20480", pt(vOREM, PS(), sP0),
                f"s_lshl_b32 {sP1}, {sM}, 10", f"s_add_u32 {sP0}, {sP0}, {sP1}", pt(vL16, PS(), sP0), f"s_sub_u32 {sP0}, {sP0}, 20480", pt(vL16, PS(), sP0)]
    def pt_place(seg, ops, g):
        if cur["sfx"] != "F" or not opt.get("pt", 1): return g
        for o in ops:
            if isinstance(o, list): g = seg.group(o, g, maxcost=seg.cap - 1)
            else: g = seg.place(o, g)
        return g
    def pt_jobs(ops, earliest, dl):
        if cur["sfx"] != "F" or not opt.get("pt", 1): return []
        jobs = []; pend = []
        for o in ops:
            if isinstance(o, list):
                jobs.append((pend + [x if isinstance(x, Op) else Op(x) for x in o], dl, earliest)); pend = []
            elif isinstance(o, Op) and o.vm is not None:
                jobs.append((pend + [o], dl, earliest)); pend = []
            else: pend.append(o if isinstance(o, Op) else Op(o))
        assert not pend
        return jobs
    def pf_place(seg, ph, off, key, nxt=False): pass
    def pf_now(ph, off, key, nxt=False): pass
    def prologue_end():
        if opt.get("xh", 1) and not MONO:
            em.e(f"s_add_u32 s33, {sFLINE}, {FLG_XCC - FLG_G}")
            em.e(f"v_subrev_u32 v252, 0x20000, {vI4}")
            em.e(f"buffer_load_dword v251, v252, {S_WS}, s33 offen sc1")
        if PEEL: return
        if PTM == 3 and opt.get("ptpos", 0) == 0: pt_all()
        ring.emit(em, upto=HEAD)
        if PTM == 3 and opt.get("ptpos", 0) == 1: pt_all()
        assert ring.issued == HEAD and not ring.q
    def pt_all():
        ops = (pt_o() if PTK & 1 else []) + (pt_x(S_WS) if PTK & 2 else []) + (pt_act(0) if PTK & 4 else [])
        if PTK & 8: ops += pt_act(1) + pt_act(2) + pt_act(3)
        for o in ops: em.op(o if isinstance(o, Op) else Op(o))
    join_state = [None]
    def K1_p1(peel):
        AX = lambda b, t: 80 * t + 4 * b
        SB = TMP
        NM4 = 226
        P1 = ACC
        nh = PBLK[PA - 1] if peel else AH
        if not nh: set_sA_x()
        seg = Seg(); ws = WStream(ring, seg, "K1", SS=(opt.get("pss", SS) if peel else SS))
        fu = {}; lu = {}
        for b in range(20):
            for t in range(5):
                f = b * 5 + t; wr = ws.wreg(f)
                for tok in range(2):
                    d = P1 + 8 * t + 4 * tok
                    c = "0" if b == 0 else f"v[{d}:{d+3}]"
                    wl = [("w", "K1", b * 5 + 4)] if (t == 0 and tok == 0) else None
                    wv = [("a", b, 1)] if (t == 0 and tok == 0) else None
                    i = seg.mfma(f"v_mfma_f32_16x16x32_bf16 v[{d}:{d+3}], a[{AX(b,tok)}:{AX(b,tok)+3}], v[{wr}:{wr+3}], {c}", wvm=wv, wlg=wl)
                    if t == 0 and tok == 0: g0 = i
                    fu.setdefault(f, g0); lu[f] = i
        if peel: cur["LD"] = ""
        al = a_loads(2, 20, "K1", "a", AX)
        sl = stats_loads(SB)
        for o in sl: seg.put(0, o, 0)
        ws.reads(list(range(100)), fu, lu, force=(6,))
        if peel:
            ws.vmem(a_jobs(al, lambda b: 10 * b - opt.get("pal", 60))[2 * nh:], lambda r: (0 if r <= 6 else opt.get("p7", 0)) if r <= P1J else None, margin=opt.get("pmarg", MARG), qd=opt.get("pqd", QD), rate=opt.get("pr1", 38) / 10.0)
        else:
            ws.vmem(a_jobs(al, lambda b: 10 * b - 30)[2 * nh:], lambda r: 0 if r <= 6 else (opt.get("k1w", 0) if r <= P1J or not PEEL else None), margin=MARG, qd=QD, rate=opt.get("r1", 38) / 10.0)
        so = stats_ops(SB)
        for t in range(2):
            nm = SB + 8 + 2 * t
            so.append(Op(f"ds_write_b32 {vI4W}, v{nm} offset:{L_STAT + t*128}", lg="sw"))
            so.append(Op(f"ds_write_b32 {vI4W}, v{nm+1} offset:{L_STAT + t*128 + 64}", lg="sw"))
        for t in range(2):
            so.append(Op(f"ds_read_b128 v[{NM4+8*t}:{NM4+8*t+3}], {vG16W} offset:{L_STAT + t*128}", lg="sr", wlg=["sw"]))
            so.append(Op(f"ds_read_b128 v[{NM4+8*t+4}:{NM4+8*t+7}], {vG16W} offset:{L_STAT + t*128 + 64}", lg="sr"))
        for t in range(2):
            for r in range(4):
                so.append(Op(f"v_mul_f32 v{242+4*t+r}, {hex(LOG2E)}, v{NM4+8*t+4+r}", wlg=["sr"]))
        seg.stream(so, opt.get("pst0", 100) if peel else 40)
        if peel and opt.get("pcs", 0):
            co = []
            for k in range(1, 10):
                for q in range(4): co.append(Op(f"v_add_f32 v{CSVB+q}, v{CSVB+q}, v{CSVB+4*k+q}", wvm=["cs"] if (k == 1 and q == 0) else None))
            for q in range(4):
                co.append(f"v_mov_b32 v{CSVB+4+q}, v{CSVB+q}"); co.append(f"v_mov_b32 v{CSVB+8+q}, v{CSVB+q}")
            for q in range(4): co.append(f"v_permlane32_swap_b32 v{CSVB+4+q}, v{CSVB+8+q}")
            g = seg.stream(co, opt["pcs"], cap=4); co = []
            g = seg.group([Op(f"s_cmp_eq_u32 {sW}, 0"), Op("s_cselect_b64 vcc, -1, 0")], g, maxcost=10)
            for q in range(4):
                co.append(f"v_add_f32 v{CSVB+4+q}, v{CSVB+4+q}, v{CSVB+8+q}")
                co.append(f"v_cndmask_b32 v{CSVB+q}, v{CSVB+q}, v{CSVB+4+q}, vcc")
            for q in range(10):
                co.append(Op(f"v_lshlrev_b32 v{RES+2*q}, 16, v{RLB+q}", wvm=["res"] if q == 0 else None))
                co.append(f"v_and_b32 v{RES+2*q+1}, 0xffff0000, v{RLB+q}")
            g = seg.stream(co, g, cap=4)
            grp = [f"s_cmp_eq_u32 {sW}, 0", f"s_mov_b32 {sT0}, {L_CS3}", f"s_cselect_b32 {sT0}, {L_CS1}, {sT0}", f"s_cselect_b32 {sT1}, 32, 56",
                   f"s_cmp_ge_u32 {sW}, 2", f"s_cselect_b32 {sT1}, 0, {sT1}", f"v_add_u32 v254, {sT0}, {vR2}", f"v_lshrrev_b32 v255, 4, {vL16}",
                   f"v_cmp_gt_u32 vcc, {sT1}, v255", "s_and_saveexec_b64 s[34:35], vcc", Op(f"ds_write_b128 v254, v[{CSVB}:{CSVB+3}]", lg="csw"), "s_mov_b64 exec, s[34:35]"]
            g = seg.group([o if isinstance(o, Op) else Op(o) for o in grp], g + 1, maxcost=10)
            gl = ws.events[-1][0]
            assert g < gl, (g, gl)
            nb = 0
            for o in seg.gaps[gl]:
                if o.text == "s_barrier": o.wlg = list(o.wlg or []) + ["csw"]; nb += 1
            assert nb == 1
        for g in ((1, 50, 100, 150) if not opt.get('ls2') else range(1, 200, 20)): lstamp(seg, g)
        seg.emit(em)
        if PEEL: ring.emit(em, upto=P1J)
        sys.stderr.write(f"p1 end: issued {ring.issued} q {len(ring.q)} filled {ring.filled} allowed {ring.allowed} vm {em.vm} ev {ws.events}\n")
        return ws
    def K1_first(peel):
        if peel and opt.get("pcs", 0): K1_sel(peel); return
        for k in range(1, 10):
            for q in range(4): em.e(f"v_add_f32 v{CSVB+q}, v{CSVB+q}, v{CSVB+4*k+q}")
        for q in range(4):
            em.e(f"v_mov_b32 v{CSVB+4+q}, v{CSVB+q}"); em.e(f"v_mov_b32 v{CSVB+8+q}, v{CSVB+q}")
        for q in range(4):
            em.e(f"v_permlane32_swap_b32 v{CSVB+4+q}, v{CSVB+8+q}")
        em.e(f"s_cmp_eq_u32 {sW}, 0"); em.e("s_cselect_b64 vcc, -1, 0")
        for q in range(4):
            em.e(f"v_add_f32 v{CSVB+4+q}, v{CSVB+4+q}, v{CSVB+8+q}")
            em.e(f"v_cndmask_b32 v{CSVB+q}, v{CSVB+q}, v{CSVB+4+q}, vcc")
        em.e(f"s_cmp_eq_u32 {sW}, 0"); em.e(f"s_mov_b32 {sT0}, {L_CS3}"); em.e(f"s_cselect_b32 {sT0}, {L_CS1}, {sT0}"); em.e(f"s_cselect_b32 {sT1}, 32, 56")
        em.e(f"s_cmp_ge_u32 {sW}, 2"); em.e(f"s_cselect_b32 {sT1}, 0, {sT1}")
        em.e(f"v_add_u32 v254, {sT0}, {vR2}")
        em.e(f"v_lshrrev_b32 v255, 4, {vL16}")
        em.e(f"v_cmp_gt_u32 vcc, {sT1}, v255")
        em.e("s_and_saveexec_b64 s[34:35], vcc")
        em.e(f"ds_write_b128 v254, v[{CSVB}:{CSVB+3}]")
        em.e("s_mov_b64 exec, s[34:35]")
        for q in range(10):
            em.e(f"v_lshlrev_b32 v{RES+2*q}, 16, v{RLB+q}")
            em.e(f"v_and_b32 v{RES+2*q+1}, 0xffff0000, v{RLB+q}")
        em.raw("    s_waitcnt lgkmcnt(0)")
        em.e("s_barrier")
        K1_sel(peel)
    def K1_sel(peel):
        if cur["sfx"] == "F" and not MONO:
            uid[0] += 1; u = uid[0]
            em.e(f"s_add_u32 {sT1}, {sFLINE}, {FLG_XCC - FLG_G}")
            if opt.get("xh", 1):
                em.e(f"v_mov_b32 v253, v251")
                em.e(f"v_cmp_gt_u32 vcc, 1, v253")
                em.e(f"s_cbranch_vccz Lx{u}_p_x")
            poll(sT1, "1", f"Lx{u}_p")
            em.e(f"v_cmp_ne_u32 vcc, {sMODE}, v253")
            if opt.get("force_slow", 0): em.e("s_branch Lk1_nocsS")
            em.e("s_cbranch_vccnz Lk1_nocsS")
        if peel: em.e("s_branch Lk1_nocsF")
    def K1():
        AX = lambda b, t: 80 * t + 4 * b
        SB = TMP; NM4 = 226; P1 = ACC
        ws = K1_p1(False)
        stamp()
        svm = list(em.vm)
        if PEEL:
            svm = [t for t in svm if isinstance(t, tuple) and t[0] == "dma"]
            assert (ring.issued, ring.filled, ring.allowed, svm, WStream.cnt) == join_state[0], ((ring.issued, ring.filled, ring.allowed, svm, WStream.cnt), join_state[0])
        else:
            em.e(f"s_cmp_lg_u32 {sLAYER}, 0"); em.e(f"s_cbranch_scc1 Lk1_nocs{cur['sfx']}")
            K1_first(False)
        em.label(f"Lk1_nocs{cur['sfx']}")
        em.vm = svm; em.lg = []
        em.raw("    s_waitcnt lgkmcnt(0)")
        if not opt.get('k1n', 1):
            CS = 140
            for t in range(5):
                em.e(f"ds_read_b32 v{CS+t}, {vI4} offset:{L_CS1 + t*64}", lg="cs")
            KF = 148
            T1, T2 = 172, 173
            def nmr(tok, r): return NM4 + 8 * tok + r
            def rsr(tok, r): return NM4 + 8 * tok + 4 + r
            def rlr(tok, r): return 242 + 4 * tok + r
            em.wait(wlg=["cs"])
            XV = 176
            ops = []
            streams = []
            tmpc = [180]
            for (t, fr_) in ((0, KF), (1, KF + 4), (4, KF + 16)):
                for tok in range(2):
                    for r in range(4):
                        a = P1 + 8 * t + 4 * tok + r
                        tt = 184 + (len(streams) % 8)
                        if t == 4:
                            s_ = [f"v_fmac_f32 v{a}, v{nmr(tok,r)}, v{CS+t}",
                                  f"v_mul_f32 v{XV+4*tok+r}, v{a}, v{rsr(tok,r)}",
                                  f"v_mul_f32 v{tt}, v{a}, v{rlr(tok,r)}",
                                  f"v_exp_f32 v{tt}, v{tt} clamp",
                                  f"v_max_f32 v{a}, 0, v{a}",
                                  f"v_add_f32 v{tt}, {hex(EPS6)}, v{tt}",
                                  f"v_fma_f32 v{a}, v{a}, v{rsr(tok,r)}, v{tt}"]
                        else:
                            s_ = [x[0] if isinstance(x, tuple) else x for x in phi_ops(a, CS + t, nmr(tok, r), rsr(tok, r), rlr(tok, r), tt, None)]
                        streams.append(s_)
            for k in range(0, len(streams), 4):
                lin(il(streams[k:k + 4]))
                ring.emit(em, 4)
            for t in (2, 3):
                for tok in range(2):
                    for r in range(4):
                        a = P1 + 8 * t + 4 * tok + r
                        em.e(f"v_fmac_f32 v{a}, v{nmr(tok,r)}, v{CS+t}")
                    for r in range(4):
                        a = P1 + 8 * t + 4 * tok + r
                        em.e(f"v_mul_f32 v{a}, v{a}, v{rsr(tok,r)}")
            for k in range(8):
                em.e(f"v_cndmask_b32 v{XV+k}, v{XV+k}, 1.0, {sI8}")
            def pack(dst, src_tok0, src_tok1):
                em.e(f"v_cvt_pk_bf16_f32 v{dst}, v{src_tok0}, v{src_tok0+1}"); em.e(f"v_cvt_pk_bf16_f32 v{dst+1}, v{src_tok0+2}, v{src_tok0+3}")
                em.e(f"v_cvt_pk_bf16_f32 v{dst+2}, v{src_tok1}, v{src_tok1+1}"); em.e(f"v_cvt_pk_bf16_f32 v{dst+3}, v{src_tok1+2}, v{src_tok1+3}")
            K0f, K1f, V0f, V1f, XKf, XPf = KF, KF + 4, KF + 8, KF + 12, KF + 16, KF + 20
            pack(K0f, P1 + 0, P1 + 4); pack(K1f, P1 + 8, P1 + 12); pack(V0f, P1 + 16, P1 + 20); pack(V1f, P1 + 24, P1 + 28)
            pack(XKf, P1 + 32, P1 + 36); pack(XPf, XV, XV + 4)
            D = 184
            for k, (A_, B_) in enumerate([(K0f, V0f), (K1f, V1f), (XKf, V0f), (XKf, V1f), (K0f, XPf), (K1f, XPf), (XKf, XPf)]):
                em.e(f"v_mfma_f32_16x16x32_bf16 v[{D+4*k}:{D+4*k+3}], v[{A_}:{A_+3}], v[{B_}:{B_+3}], 0")
            D1, D2, D3, D4, D5, D6, D7 = [D + 4 * k for k in range(7)]
            for r in range(4):
                em.e(f"v_cndmask_b32 v{D5+r}, v{D5+r}, v{D6+r}, {sBIT2}")
                em.e(f"v_cndmask_b32 v{D3+r}, v{D3+r}, v{D4+r}, {sMK[1]}")
            for r in range(4):
                em.e(f"v_permlane32_swap_b32 v{D3+r}, v{D7+r}")
            ring.emit(em, upto=13)
            assert ring.issued <= 13 and ring.next_round() <= 14 and not ring.q and ws.lastbar >= 6, (ring.issued, ws.lastbar)
            RP = (14 % NR) * 16384 - 65536
            em.e(f"v_add_u32 v254, {sW1K}, {vR1}"); em.e(f"v_add_u32 v255, {sW4K}, {vR1}")
            for t, src in enumerate((D1, D2, D5, D3)):
                em.e(f"ds_write_b128 v254, v[{src}:{src+3}] offset:{RP + t*4096}", lg="red")
            em.wait_all_lg()
            em.wait(wvm=[("dma", x) for x in range(ring.filled + 1, 9)])
            ring.filled = 8
            em.e("s_barrier")
            for k in range(4):
                em.e(f"ds_read_b128 v[{D+4*k}:{D+4*k+3}], v255 offset:{RP + k*1024}", lg=("rr", k))
            em.e(f"s_mul_i32 {sST}, {sLAYER}, {KVP_L}"); em.e(f"s_lshl_b32 {sST2}, {sM}, 16"); em.e(f"s_add_u32 {sST}, {sST}, {sST2}")
            em.e(f"s_add_u32 {sST}, {sST}, {KVP}"); em.e(f"s_add_u32 {sST}, {sST}, {sW1K}")
            em.e(f"s_lshl_b32 {sST2}, {sG}, 12"); em.e(f"s_add_u32 {sST2}, {sST2}, {sST}")
            for q in range(4): em.e(f"v_add_f32 v{D+q}, v{D+q}, v{D+4+q}", wlg=[("rr", 1)] if q == 0 else None)
            for q in range(4): em.e(f"v_add_f32 v{D+8+q}, v{D+8+q}, v{D+12+q}", wlg=[("rr", 3)] if q == 0 else None)
            for q in range(4): em.e(f"v_add_f32 v{D+q}, v{D+q}, v{D+8+q}")
            em.e(f"buffer_store_dwordx4 v[{D}:{D+3}], {vL16}, {S_WS}, {sST2} offen sc1", vm="kvst")
            stamp()
            P2 = ACC
            seg = Seg(); ws2 = WStream(ring, seg, "K1", SS=SS)
            fu = {}; lu = {}
            for b in range(20):
                for t in range(3):
                    f = 100 + 3 * b + t; wr = ws2.wreg(f)
                    for tok in range(2):
                        d = P2 + 8 * t + 4 * tok
                        c = "0" if b == 0 else f"v[{d}:{d+3}]"
                        wl = [("w", "K1", 100 + 3 * b + 2)] if (t == 0 and tok == 0) else None
                        i = seg.mfma(f"v_mfma_f32_16x16x32_bf16 v[{d}:{d+3}], v[{wr}:{wr+3}], a[{AX(b,tok)}:{AX(b,tok)+3}], {c}", wlg=wl)
                        if t == 0 and tok == 0: g0 = i
                        fu.setdefault(f, g0); lu[f] = i
            ws2.reads(list(range(100, 160)), fu, lu, nobar=(7, 8))
            assert len(ws2.events) == 1
            gb = ws2.events[0][0]
            for o in seg.gaps[gb]:
                if o.text == "s_barrier": o.wvm = list(o.wvm) + ["kvst"]
            pub = [Op(f"s_add_u32 {sT0}, {sLAYER}, 1"),
                   Op(f"v_mov_b32 v254, {sT0}"), Op("v_mov_b32 v255, 0"),
                   Op(f"s_mov_b64 exec, {sFEX}"),
                   Op(f"buffer_store_dword v254, v255, {S_WS}, {sKOWN} offen sc1"),
                   Op("s_mov_b64 exec, -1")]
            g = seg.stream(pub[:3], gb - 6)
            assert g < gb
            for o in pub[3:]: seg.put(gb + 1, o, 1)
            g = pt_place(seg, pt_o(), 2)
            g = pt_place(seg, pt_x(S_WS), g)
            g = pt_place(seg, pt_act(0), g)
            pf_place(seg, "K3", 32768, "pa1"); pf_place(seg, "K3", 32768 + 65536, "pa2"); pf_place(seg, "K3", 32768 + 2*65536, "pa3"); pf_place(seg, "K3", 32768 + 3*65536, "pa4")
            ws2.vmem([], lambda r: 0, margin=MARG, qd=QD, rate=RATE)
            CS4 = 140
            seg.stream([Op(f"ds_read_b128 v[{CS4+4*t}:{CS4+4*t+3}], {vG16} offset:{L_CS1 + (5+t)*64}", lg="cs4") for t in range(3)], 60)
            RLI = 152
            seg.stream([f"v_mul_f32 v{RLI+t}, {hex(LOG2E)}, v{SB+8+2*t+1}" for t in range(2)], 70)
            seg.emit(em)
            stamp()
            em.wait(wlg=["cs4"])
            streams = []
            for t in range(3):
                for tok in range(2):
                    for r in range(4):
                        a = P2 + 8 * t + 4 * tok + r
                        tt = 184 + (len(streams) % 8)
                        streams.append([x[0] if isinstance(x, tuple) else x for x in phi_ops(a, CS4 + 4 * t + r, SB + 8 + 2 * tok, SB + 8 + 2 * tok + 1, RLI + tok, tt, None)])
            for k in range(0, len(streams), 4):
                lin(il(streams[k:k + 4]))
                ring.emit(em, 2)
            F = 156
            for tok in range(2):
                qa = P2 + 4 * tok; qb = P2 + 8 + 4 * tok; qx = P2 + 16 + 4 * tok
                fa = F + 8 * tok; fb = fa + 4
                em.e(f"v_cvt_pk_bf16_f32 v{fa}, v{qa}, v{qa+1}"); em.e(f"v_cvt_pk_bf16_f32 v{fa+1}, v{qa+2}, v{qa+3}")
                em.e(f"v_cvt_pk_bf16_f32 v{fa+2}, v{qx}, v{qx+1}"); em.e(f"v_cvt_pk_bf16_f32 v{fa+3}, v{qx+2}, v{qx+3}")
                em.e(f"v_cvt_pk_bf16_f32 v{fb}, v{qb}, v{qb+1}"); em.e(f"v_cvt_pk_bf16_f32 v{fb+1}, v{qb+2}, v{qb+3}")
                em.e(f"v_mov_b32 v{fb+2}, v{fa+2}"); em.e(f"v_mov_b32 v{fb+3}, v{fa+3}")
            uid[0] += 1; u = uid[0]
            em.e(f"s_cmp_lg_u32 {sW}, 0")
            em.e(f"s_cbranch_scc1 Lkv{u}_o")
            em.e(f"s_add_u32 {sT0}, {sLAYER}, 1")
            poll(sKLINE, sT0, f"Lkv{u}_p")
            em.label(f"Lkv{u}_o")
            em.e("s_barrier")
            ring.allowed = max(ring.allowed, 18)
            KL = 172
            for Gp in range(16):
                if Gp % 1 == 0: em.e(f"s_add_u32 {sST2}, {sST}, {Gp*4096}")
                em.e(f"buffer_load_dwordx4 v[{KL+4*Gp}:{KL+4*Gp+3}], {vL16}, {S_WS}, {sST2} offen sc1", vm=("kl", Gp))
            ring.emit(em, upto=18)
            pf_now("K3", 32768, "pb1"); pf_now("K3", 32768 + 65536, "pb2"); pf_now("K3", 32768 + 2*65536, "pb3"); pf_now("K3", 32768 + 3*65536, "pb4")
            for Gp in range(1, 16):
                for q in range(4):
                    em.e(f"v_add_f32 v{KL+q}, v{KL+q}, v{KL+4*Gp+q}", wvm=[("kl", Gp)] if q == 0 else None)
        else:
            CS = 140
            for t in range(5):
                em.e(f"ds_read_b32 v{CS+t}, {vI4} offset:{L_CS1 + t*64}", lg="cs")
            KF = 148
            def nmr(tok, r): return NM4 + 8 * tok + r
            def rsr(tok, r): return NM4 + 8 * tok + 4 + r
            def rlr(tok, r): return 242 + 4 * tok + r
            XV = 172
            TT = 180
            P2 = 188
            em.e(f"s_mul_i32 {sST}, {sLAYER}, {KVP_L}"); em.e(f"s_lshl_b32 {sST2}, {sM}, 16"); em.e(f"s_add_u32 {sST}, {sST}, {sST2}")
            em.e(f"s_add_u32 {sST}, {sST}, {KVP}"); em.e(f"s_add_u32 {sST}, {sST}, {sW1K}")
            em.e(f"s_lshl_b32 {sST2}, {sG}, 12"); em.e(f"s_add_u32 {sST2}, {sST2}, {sST}")
            em.e(f"v_add_u32 v254, {sW1K}, {vR1}"); em.e(f"v_add_u32 v255, {sW4K}, {vR1}")
            seg = Seg(); ws2 = WStream(ring, seg, "K1", SS=SS)
            fu = {}; lu = {}
            for b in range(20):
                for t in range(3):
                    f = 100 + 3 * b + t; wr = ws2.wreg(f)
                    for tok in range(2):
                        d = P2 + 8 * t + 4 * tok
                        c = "0" if b == 0 else f"v[{d}:{d+3}]"
                        wl = [("w", "K1", 100 + 3 * b + 2)] if (t == 0 and tok == 0) else None
                        i = seg.mfma(f"v_mfma_f32_16x16x32_bf16 v[{d}:{d+3}], v[{wr}:{wr+3}], a[{AX(b,tok)}:{AX(b,tok)+3}], {c}", wlg=wl)
                        if t == 0 and tok == 0: g0 = i
                        fu.setdefault(f, g0); lu[f] = i
            assert ring.filled == 6, ring.filled
            ws2.reads(list(range(100, 144)), fu, lu)
            assert len(ws2.events) == 1 and ws2.events[0][2] == 8, ws2.events
            ws2.events[0] = (ws2.events[0][0], 13, 8)
            streams = []
            def phi_stream(t):
                for tok in range(2):
                    for r in range(4):
                        a = P1 + 8 * t + 4 * tok + r
                        tt = TT + (len(streams) % 8)
                        if t == 4:
                            s_ = [f"v_fmac_f32 v{a}, v{nmr(tok,r)}, v{CS+t}",
                                  f"v_mul_f32 v{XV+4*tok+r}, v{a}, v{rsr(tok,r)}",
                                  f"v_mul_f32 v{tt}, v{a}, v{rlr(tok,r)}",
                                  (Op(f"v_exp_f32 v{tt}, v{tt} clamp"), 2),
                                  f"v_max_f32 v{a}, 0, v{a}",
                                  f"v_add_f32 v{tt}, {hex(EPS6)}, v{tt}",
                                  f"v_fma_f32 v{a}, v{a}, v{rsr(tok,r)}, v{tt}"]
                        else:
                            s_ = phi_ops(a, CS + t, nmr(tok, r), rsr(tok, r), rlr(tok, r), tt, None)
                        streams.append(s_)
            for t in (0, 1, 4): phi_stream(t)
            ko = []
            for k in range(0, len(streams), 4): ko += il(streams[k:k + 4])
            o0 = ko[0]; o0 = Op(o0, wlg=["cs"]); ko[0] = o0
            for t in (2, 3):
                for tok in range(2):
                    for r in range(4):
                        a = P1 + 8 * t + 4 * tok + r
                        ko.append(f"v_fmac_f32 v{a}, v{nmr(tok,r)}, v{CS+t}")
                    for r in range(4):
                        a = P1 + 8 * t + 4 * tok + r
                        ko.append(f"v_mul_f32 v{a}, v{a}, v{rsr(tok,r)}")
            for k in range(8):
                ko.append(f"v_cndmask_b32 v{XV+k}, v{XV+k}, 1.0, {sI8}")
            def pack(dst, src_tok0, src_tok1):
                return [f"v_cvt_pk_bf16_f32 v{dst}, v{src_tok0}, v{src_tok0+1}", f"v_cvt_pk_bf16_f32 v{dst+1}, v{src_tok0+2}, v{src_tok0+3}",
                        f"v_cvt_pk_bf16_f32 v{dst+2}, v{src_tok1}, v{src_tok1+1}", f"v_cvt_pk_bf16_f32 v{dst+3}, v{src_tok1+2}, v{src_tok1+3}"]
            K0f, K1f, V0f, V1f, XKf, XPf = KF, KF + 4, KF + 8, KF + 12, KF + 16, KF + 20
            ko += pack(K0f, P1 + 0, P1 + 4) + pack(K1f, P1 + 8, P1 + 12) + pack(XKf, P1 + 32, P1 + 36) + pack(V0f, P1 + 16, P1 + 20) + pack(V1f, P1 + 24, P1 + 28) + pack(XPf, XV, XV + 4)
            KCAP = opt.get("kcap", 5)
            g = seg.stream(ko, 0, cap=KCAP)
            D = 100
            g += 1
            for k, (A_, B_) in enumerate([(K0f, V0f), (K1f, V1f), (XKf, V0f), (XKf, V1f), (K0f, XPf), (K1f, XPf), (XKf, XPf)]):
                seg.put(g + k // 2, f"v_mfma_f32_16x16x32_bf16 v[{D+4*k}:{D+4*k+3}], v[{A_}:{A_+3}], v[{B_}:{B_+3}], 0", 2)
            g += 5
            D1, D2, D3, D4, D5, D6, D7 = [D + 4 * k for k in range(7)]
            RP = (14 % NR) * 16384 - 65536
            ko = [Op(f"ds_write_b128 v254, v[{D1}:{D1+3}] offset:{RP}", lg="red"), Op(f"ds_write_b128 v254, v[{D2}:{D2+3}] offset:{RP + 4096}", lg="red")]
            for r in range(4):
                ko.append(f"v_cndmask_b32 v{D5+r}, v{D5+r}, v{D6+r}, {sBIT2}")
            for r in range(4):
                ko.append(f"v_cndmask_b32 v{D3+r}, v{D3+r}, v{D4+r}, {sMK[1]}")
            ko.append(Op(f"ds_write_b128 v254, v[{D5}:{D5+3}] offset:{RP + 2*4096}", lg="red"))
            for r in range(4):
                ko.append(f"v_permlane32_swap_b32 v{D3+r}, v{D7+r}")
            g = seg.stream(ko, g, cap=KCAP)
            g = seg.put(g + 1, Op(f"ds_write_b128 v254, v[{D3}:{D3+3}] offset:{RP + 3*4096}", lg="red"), 1)
            gR = g + opt.get("kgb", 3)
            seg.put(gR, Op("s_barrier", wvm=[("dma", 9)], wlg=["red"]), 2)
            for k in range(4):
                seg.put(gR, Op(f"ds_read_b128 v[{D+4*k}:{D+4*k+3}], v255 offset:{RP + k*1024}", lg=("rr", k)), 1)
            assert gR < fu[144] - 1, (gR, fu[144])
            ws2.events.append((gR, 13, 9))
            g = gR + opt.get("kga", 4)
            ko = []
            for q in range(4): ko.append(Op(f"v_add_f32 v{D+q}, v{D+q}, v{D+4+q}", wlg=[("rr", 1)] if q == 0 else None))
            for q in range(4): ko.append(Op(f"v_add_f32 v{D+8+q}, v{D+8+q}, v{D+12+q}", wlg=[("rr", 3)] if q == 0 else None))
            for q in range(4): ko.append(Op(f"v_add_f32 v{D+q}, v{D+q}, v{D+8+q}"))
            KVH = opt.get("kvh", 1)
            if KVH:
                ko.insert(0, Op(f"v_lshrrev_b32 v254, 1, {vL16}"))
                ko += [Op(f"v_cvt_pk_bf16_f32 v{D}, v{D}, v{D+1}"), Op(f"v_cvt_pk_bf16_f32 v{D+1}, v{D+2}, v{D+3}")]
                ko.append(Op(f"buffer_store_dwordx2 v[{D}:{D+1}], v254, {S_WS}, {sST2} offen sc1", vm="kvst"))
            else:
                ko.append(Op(f"buffer_store_dwordx4 v[{D}:{D+3}], {vL16}, {S_WS}, {sST2} offen sc1", vm="kvst"))
            gS = seg.stream(ko, g, cap=4)
            ws2.events.append((g + 4, 14, 9))
            ring.filled = 9
            ev = list(ws2.events)
            ws2.reads(list(range(144, 160)), fu, lu, ming=gR + 1)
            assert ws2.events == ev
            pj = pt_jobs((pt_o() if PTK & 1 else []) + (pt_x(PS()) if PTK & 2 else []) + (pt_act(0) if PTK & 4 else []), opt.get("ptg", 40), 119) if PTM != 3 else []
            pq = []
            if opt.get("ptq", 0): pq = pj; pj = []
            ws2.vmem(pj, lambda r: 0, margin=MARG, qd=opt.get("qs2", 4), rate=opt.get("rs2", 35) / 10.0, cap=KCAP + 2, burst0=False)
            CS4 = 140
            seg.stream([Op(f"ds_read_b128 v[{CS4+4*t}:{CS4+4*t+3}], {vG16} offset:{L_CS1 + (5+t)*64}", lg="cs4") for t in range(3)], gS + 1)
            RLI = 152
            seg.stream([f"v_mul_f32 v{RLI+t}, {hex(LOG2E)}, v{SB+8+2*t+1}" for t in range(2)], gS + 4)
            sys.stderr.write(f"S2: gR {gR} gS {gS} ev {ws2.events}\n")
            if opt.get('ls2'):
                for g in range(1, 108, 7): lstamp(seg, g)
            seg.emit(em)
            stamp()
            KL = WW
            NL = 8 if KVH else 16
            KA = WW + 32
            vKV = "v255" if KVH else vL16
            K1SC = "" if opt.get("kvp", 1) else " sc1"
            if KVH:
                em.e(f"v_and_b32 v254, 0x200, {vL16}"); em.e("v_lshlrev_b32 v254, 3, v254"); em.e(f"v_and_b32 v255, 0x1f0, {vL16}"); em.e("v_add_u32 v255, v255, v254")
            def kl_loads(tag):
                for Gp in range(NL):
                    em.e(f"s_add_u32 {sST2}, {sST}, {Gp*4096*(16//NL)}")
                    em.e(f"buffer_load_dwordx4 v[{KL+4*Gp}:{KL+4*Gp+3}], {vKV}, {S_WS}, {sST2} offen sc1", vm=(tag, Gp) if tag else None)
            streams = []
            for t in range(3):
                for tok in range(2):
                    for r in range(4):
                        a = P2 + 8 * t + 4 * tok + r
                        tt = TT + (len(streams) % 8)
                        streams.append([x[0] if isinstance(x, tuple) else x for x in phi_ops(a, CS4 + 4 * t + r, SB + 8 + 2 * tok, SB + 8 + 2 * tok + 1, RLI + tok, tt, None)])
            qops = []
            for k in range(0, len(streams), 4): qops += il(streams[k:k + 4])
            F = 156
            for tok in range(2):
                qa = P2 + 4 * tok; qb = P2 + 8 + 4 * tok; qx = P2 + 16 + 4 * tok
                fa = F + 8 * tok; fb = fa + 4
                qops += [f"v_cvt_pk_bf16_f32 v{fa}, v{qa}, v{qa+1}", f"v_cvt_pk_bf16_f32 v{fa+1}, v{qa+2}, v{qa+3}",
                         f"v_cvt_pk_bf16_f32 v{fa+2}, v{qx}, v{qx+1}", f"v_cvt_pk_bf16_f32 v{fa+3}, v{qx+2}, v{qx+3}",
                         f"v_cvt_pk_bf16_f32 v{fb}, v{qb}, v{qb+1}", f"v_cvt_pk_bf16_f32 v{fb+1}, v{qb+2}, v{qb+3}",
                         f"v_mov_b32 v{fb+2}, v{fa+2}", f"v_mov_b32 v{fb+3}, v{fa+3}"]
            KLS = opt.get("kls", 6)
            first = True
            for k, o in enumerate(qops):
                if k % KLS == 0 and k // KLS < NL:
                    Gp = k // KLS
                    em.e(f"s_add_u32 {sST2}, {sST}, {Gp*4096*(16//NL)}")
                    em.e(f"buffer_load_dwordx4 v[{KL+4*Gp}:{KL+4*Gp+3}], {vKV}, {S_WS}, {sST2} offen{K1SC}", vm=("kl", Gp))
                elif k % (KLS if not pq else opt.get("ptqs", 3)) == 0 and k // KLS >= NL and pq:
                    for o2 in pq.pop(0)[0]: em.op(o2)
                elif k % KLS == 0: ring.emit(em, 1)
                if first: em.wait(wlg=["cs4"]); first = False
                em.op(o)
            for j in pq:
                for o2 in j[0]: em.op(o2)
            stamp()
            uid[0] += 1; u = uid[0]
            em.e(f"s_mov_b32 {sSPIN}, 0")
            if KVH:
                em.e(f"s_mov_b32 {sP0}, 0x3f80"); em.e(f"s_mov_b32 {sP1}, 0x3f800000")
                em.wait(wvm=[("kl", 0)])
                em.label(f"Lkv{u}_s")
                for q in range(8): em.e(f"v_mov_b32 v{KA+q}, 0")
                for Gp in range(8):
                    for q in range(4):
                        em.e(f"v_dot2c_f32_bf16 v{KA+2*q}, {sP0}, v{KL+4*Gp+q}", wvm=[("kl", Gp)] if q == 0 else None)
                        em.e(f"v_dot2c_f32_bf16 v{KA+2*q+1}, {sP1}, v{KL+4*Gp+q}")
                em.e(f"v_cmp_u_f32 vcc, v{KA}, v{KA+2}"); em.e(f"v_cmp_u_f32 s[34:35], v{KA+4}, v{KA+6}")
            else:
                for Gp in range(1, 16):
                    if Gp == 1:
                        em.wait(wvm=[("kl", 1)])
                        em.label(f"Lkv{u}_s")
                    for q in range(4):
                        em.e(f"v_add_f32 v{KL+q}, v{KL+q}, v{KL+4*Gp+q}", wvm=[("kl", Gp)] if q == 0 else None)
                em.e(f"v_cmp_u_f32 vcc, v{KL}, v{KL+1}"); em.e(f"v_cmp_u_f32 s[34:35], v{KL+2}, v{KL+3}")
            em.e(f"s_or_b64 vcc, vcc, s[34:35]")
            em.e(f"s_cbranch_vccz Lkv{u}_o")
            em.e(f"s_add_u32 {sSPIN}, {sSPIN}, 1"); em.e(f"s_cmp_gt_u32 {sSPIN}, 20000"); em.e(f"s_cbranch_scc1 Lkv{u}_o")
            kl_loads(None)
            em.raw("    s_waitcnt vmcnt(0)")
            em.e(f"s_branch Lkv{u}_s")
            em.label(f"Lkv{u}_o")
        if opt.get('k1n', 1) and KVH:
            for q in range(4): em.e(f"v_permlane32_swap_b32 v{KA+q}, v{KA+4+q}")
            for q in range(4): em.e(f"v_add_f32 v{KA+q}, v{KA+q}, v{KA+4+q}")
            em.e(f"v_cvt_pk_bf16_f32 v{KL}, v{KA}, v{KA+1}"); em.e(f"v_cvt_pk_bf16_f32 v{KL+1}, v{KA+2}, v{KA+3}")
            em.e(f"v_and_b32 v254, 0x1f0, {vL16}"); em.e(f"v_lshrrev_b32 v255, 6, {vL16}"); em.e("v_and_b32 v255, 8, v255"); em.e("v_add_u32 v254, v254, v255")
            em.e(f"s_lshl_b32 {sT0}, {sW}, 9"); em.e(f"s_add_u32 {sT0}, {sT0}, 0x20000"); em.e(f"v_add_u32 v254, {sT0}, v254")
        else:
            em.e(f"v_cvt_pk_bf16_f32 v{KL}, v{KL}, v{KL+1}"); em.e(f"v_cvt_pk_bf16_f32 v{KL+1}, v{KL+2}, v{KL+3}")
            em.e(f"s_lshl_b32 {sT0}, {sW}, 9"); em.e(f"v_add_u32 v254, {sT0}, {vL8}")
        em.e(f"ds_write_b64 v254, v[{KL}:{KL+1}] offset:{L_KVB}", lg="kw")
        em.wait_all_lg()
        em.e("s_barrier")
        if opt.get('k1n', 1):
            ring.allowed = max(ring.allowed, 18)
            ring.emit(em, upto=18)
            pf_now("K3", 32768, "pb1"); pf_now("K3", 32768 + 65536, "pb2")
        R_ = 176
        for t in range(4):
            em.e(f"ds_read_b64 v[{R_+2*t}:{R_+2*t+1}], {vL8} offset:{L_KVB + t*512}", lg="kr")
        em.e(f"v_xor_b32 v254, 256, {vL8}")
        em.e(f"ds_read_b64 v[{R_+8}:{R_+9}], v254 offset:{L_KVB + 3*512}", lg="kr")
        em.e(f"v_and_b32 v254, 0xfffffe7f ^ 0, {vL8}" if False else f"v_lshlrev_b32 v254, 3, {vG16}")
        em.e(f"v_and_b32 v254, 0x3ff, v254")
        em.e(f"v_add_u32 v254, 0x20000, v254")
        em.e(f"ds_read_b64 v[{R_+10}:{R_+11}], v254 offset:{L_KVB + 2*512}", lg="kr")
        em.e(f"ds_read_b64 v[{R_+12}:{R_+13}], v254 offset:{L_KVB + 2*512 + 32}", lg="kr")
        em.e("v_mov_b32 v255, 0x20000")
        em.e(f"ds_read_b64 v[{R_+14}:{R_+15}], v255 offset:{L_KVB + 3*512 + 32*8}", lg="kr")
        em.e(f"ds_read_b64 v[{R_+16}:{R_+17}], v255 offset:{L_KVB + 3*512 + 52*8}", lg="kr")
        em.wait_all_lg()
        t1, t2, t3, t4, t4x, za, zb, zxa, zxb = [R_ + 2 * k for k in range(9)]
        AF = 196
        Aa, Ab, Axa, Axb, Aza, Azb = [AF + 4 * k for k in range(6)]
        mg0, mg1, ma, mb, mga, mgb = sMK
        def cp(dst, src):
            em.e(f"v_mov_b32 v{dst}, v{src}"); em.e(f"v_mov_b32 v{dst+1}, v{src+1}")
        def mk(dst, src, m):
            em.e(f"v_cndmask_b32 v{dst}, 0, v{src}, {m}"); em.e(f"v_cndmask_b32 v{dst+1}, 0, v{src+1}, {m}")
        cp(Aa, t1); mk(Aa + 2, t4, mg0)
        cp(Ab, t2); mk(Ab + 2, t4, mg1)
        mk(Axa, t3, ma); mk(Axa + 2, t4x, mga)
        mk(Axb, t3, mb); mk(Axb + 2, t4x, mgb)
        cp(Aza, za); mk(Aza + 2, zxa, mg0)
        cp(Azb, zb); mk(Azb + 2, zxb, mg1)
        O = 100
        for tok in range(2):
            fa = F + 8 * tok; fb = fa + 4; o = O + 20 * tok
            em.e(f"v_mfma_f32_16x16x32_bf16 v[{o+12}:{o+15}], v[{Aza}:{Aza+3}], v[{fa}:{fa+3}], 0")
            em.e(f"v_mfma_f32_16x16x32_bf16 v[{o+16}:{o+19}], v[{Azb}:{Azb+3}], v[{fb}:{fb+3}], 0")
            em.e(f"v_mfma_f32_16x16x32_bf16 v[{o}:{o+3}], v[{Aa}:{Aa+3}], v[{fa}:{fa+3}], 0")
            em.e(f"v_mfma_f32_16x16x32_bf16 v[{o+4}:{o+7}], v[{Ab}:{Ab+3}], v[{fb}:{fb+3}], 0")
            em.e(f"v_mfma_f32_16x16x32_bf16 v[{o+8}:{o+11}], v[{Axa}:{Axa+3}], v[{fa}:{fa+3}], 0")
            em.e(f"v_mfma_f32_16x16x32_bf16 v[{o+8}:{o+11}], v[{Axb}:{Axb+3}], v[{fb}:{fb+3}], v[{o+8}:{o+11}]")
        em.e(f"s_mul_i32 {sST}, {LB()}, {O_SZ}"); em.e(f"s_mul_i32 {sST2}, {sTT2}, 20480"); em.e(f"s_add_u32 {sST}, {sST}, {sST2}")
        em.e(f"s_add_u32 {sST}, {sST}, {OB}")
        em.e(f"s_lshl_b32 {sST2}, {sM}, 10"); em.e(f"s_add_u32 {sST2}, {sST2}, {sST}")
        for tok in range(2):
            o = O + 20 * tok
            em.e(f"v_add_f32 v{o+12}, {hex(EPS6)}, v{o+12}"); em.e(f"v_add_f32 v{o+16}, {hex(EPS6)}, v{o+16}")
            em.e(f"v_rcp_f32 v{o+12}, v{o+12}"); em.e(f"v_rcp_f32 v{o+16}, v{o+16}")
            em.e(f"v_cndmask_b32 v{o+13}, v{o+12}, v{o+16}, {sG3}")
            for r in range(4):
                em.e(f"v_mul_f32 v{o+r}, v{o+r}, v{o+12}"); em.e(f"v_mul_f32 v{o+4+r}, v{o+4+r}, v{o+16}")
                em.e(f"v_mul_f32 v{o+8+r}, v{o+8+r}, v{o+13}")
            em.e(f"v_cvt_pk_bf16_f32 v{o}, v{o}, v{o+1}"); em.e(f"v_cvt_pk_bf16_f32 v{o+1}, v{o+2}, v{o+3}")
            em.e(f"v_cvt_pk_bf16_f32 v{o+2}, v{o+4}, v{o+5}"); em.e(f"v_cvt_pk_bf16_f32 v{o+3}, v{o+6}, v{o+7}")
            em.e(f"v_cvt_pk_bf16_f32 v{o+8}, v{o+8}, v{o+9}"); em.e(f"v_cvt_pk_bf16_f32 v{o+9}, v{o+10}, v{o+11}")
            va = vL16 if tok == 0 else vL16B
            em.e(f"buffer_store_dwordx4 v[{o}:{o+3}], {va}, {S_WS}, {sST2} offen{cur['STO']}", vm="ost")
            if tok == 1: em.e(f"s_add_u32 {sST}, {sST}, 20480")
            em.e(f"s_mov_b64 exec, {sG23}")
            em.e(f"buffer_store_dwordx2 v[{o+8}:{o+9}], {vOREM}, {S_WS}, {sST} offen{cur['STO']}", vm="ost")
            em.e("s_mov_b64 exec, -1")

    def K24(ph, nblk, final_possible):
        AX = lambda b, t: 4 * b
        if ph == "K2":
            em.e(f"s_mul_i32 {sA}, {LB()}, {O_SZ}"); em.e(f"s_mul_i32 {sT0}, {sTT1}, 20480"); em.e(f"s_add_u32 {sA}, {sA}, {sT0}"); em.e(f"s_add_u32 {sA}, {sA}, {OB}")
        else:
            em.e(f"s_mul_i32 {sA}, {LB()}, {ACT_SZ}"); em.e(f"s_mul_i32 {sT0}, {sTT1}, {54*1024}"); em.e(f"s_add_u32 {sA}, {sA}, {sT0}"); em.e(f"s_add_u32 {sA}, {sA}, {ACT}")
        seg = Seg(); ws = WStream(ring, seg, ph, SS=SS, LA=opt.get("la4", 10))
        fu = {}; lu = {}; wa = {}
        for b in range(nblk):
            for t in range(5):
                f = b * 5 + t; wr = ws.wreg(f); d = RES + 4 * t
                wv = [("a", b, 0)] if t == 0 else None
                i = seg.mfma(f"v_mfma_f32_16x16x32_bf16 v[{d}:{d+3}], v[{wr}:{wr+3}], a[{4*b}:{4*b+3}], v[{d}:{d+3}]", wvm=wv, wlg=[("w", ph, b * 5 + 4)] if t == 0 else None)
                fu[f] = i; lu[f] = i; wa[f] = 5 * b
        al = a_loads(1, nblk, ph, "a", AX)
        if ph == "K2" and DBG.get("stg", 0):
            for o in (f"v_add_u32 {vSTG0}, {sW4K}, {vL16}", f"v_add_u32 {vSTG1}, {sW4K}, {vR1}", f"v_add_u32 {vSTG2}, {sW4K}, {vR2}"): seg.put(0, o, 1)
        if ph == "K2":
            ws.reads(list(range(nblk * 5)), fu, lu, nobar=(12, 16), force=(14,), wait_at=wa)
            ws.vmem(a_jobs(al, lambda b: 5 * b - 30), lambda r: opt.get("k2w", 0), margin=MARG, qd=QD, rate=opt.get("r2", 35) / 10.0)
        else:
            ws.reads(list(range(nblk * 5)), fu, lu, wait_at=wa)
            ws.vmem(a_jobs(al, lambda b: 5 * b - 30), lambda r: 0 if r < 52 else opt.get("k4w", 0), margin=MARG, qd=QD, rate=opt.get("r4", 28) / 10.0)
        g = 0
        if ph == "K4":
            if PTK & 16 and PTM != 3: pt_place(seg, pt_x(S_WSN), opt.get("k4pt", 170))
            pf_place(seg, "K1", 0, "pf1", True); pf_place(seg, "K1", 65536, "pf2", True); pf_place(seg, "K1", 131072, "pf3", True)
        else:
            pf_place(seg, "K3", 32768 + 2*65536, "pg3"); pf_place(seg, "K3", 32768 + 3*65536, "pg4")
        if not opt.get('ls2'):
            for g in range(1, nblk * 5 - 13, 30): lstamp(seg, g)
        seg.emit(em)
        stamp()
        P = TMP
        for t in range(5):
            em.e(f"v_cvt_pk_bf16_f32 v{P+2*t}, v{RES+4*t}, v{RES+4*t+1}"); em.e(f"v_cvt_pk_bf16_f32 v{P+2*t+1}, v{RES+4*t+2}, v{RES+4*t+3}")
        uid[0] += 1; u = uid[0]
        if final_possible:
            em.e(f"s_cmp_eq_u32 {sLAYER}, 1"); em.e(f"s_cbranch_scc1 Lfin{u}")
        em.e(f"s_mov_b32 {sXI}, 1" if reuse() else f"s_add_u32 {sXI}, {sXI}, 1")
        em.e(f"s_mul_i32 {sST}, {sXI}, {X_SZ}"); em.e(f"s_mul_i32 {sT0}, {sTT1}, 20480"); em.e(f"s_add_u32 {sST}, {sST}, {sT0}"); em.e(f"s_add_u32 {sST}, {sST}, {XB}")
        em.e(f"s_lshr_b32 {sT0}, {sC8}, 1"); em.e(f"s_mul_i32 {sT0}, {sT0}, 5")
        em.e(f"s_lshl_b32 {sT1}, {sODD}, 1"); em.e(f"s_add_u32 {sT1}, {sT1}, {sT0}"); em.e(f"s_lshl_b32 {sT1}, {sT1}, 10"); em.e(f"s_add_u32 {sT1}, {sT1}, {sST}")
        em.e(f"buffer_store_dwordx4 v[{P}:{P+3}], {vL16}, {S_WS}, {sT1} offen{cur['STO']}", vm="xst")
        em.e(f"buffer_store_dwordx4 v[{P+4}:{P+7}], {vL16}, {S_WS}, {sT1} offen offset:1024{cur['STO']}", vm="xst")
        em.e(f"s_add_u32 {sT0}, {sT0}, 4"); em.e(f"s_lshl_b32 {sT0}, {sT0}, 10"); em.e(f"s_add_u32 {sT0}, {sT0}, {sST}")
        em.e(f"s_lshl_b32 {sT1}, {sODD}, 3"); em.e(f"s_add_u32 {sT0}, {sT0}, {sT1}")
        em.e(f"buffer_store_dwordx2 v[{P+8}:{P+9}], {vL16}, {S_WS}, {sT0} offen{cur['STO']}", vm="xst")
        a, b_, x, y = 224, 225, 226, 227
        em.e(f"v_add_f32 v{a}, v{RES}, v{RES+1}"); em.e(f"v_mul_f32 v{b_}, v{RES}, v{RES}"); em.e(f"v_fmac_f32 v{b_}, v{RES+1}, v{RES+1}")
        em.e(f"v_add_f32 v{x}, v{RES+2}, v{RES+3}"); em.e(f"v_mul_f32 v{y}, v{RES+2}, v{RES+2}"); em.e(f"v_fmac_f32 v{y}, v{RES+3}, v{RES+3}")
        for k in range(4, 20, 2):
            em.e(f"v_add_f32 v{a}, v{a}, v{RES+k}"); em.e(f"v_fmac_f32 v{b_}, v{RES+k}, v{RES+k}")
            em.e(f"v_add_f32 v{x}, v{x}, v{RES+k+1}"); em.e(f"v_fmac_f32 v{y}, v{RES+k+1}, v{RES+k+1}")
        em.e(f"v_add_f32 v{a}, v{a}, v{x}"); em.e(f"v_add_f32 v{b_}, v{b_}, v{y}")
        for sw in ("v_permlane32_swap_b32", "v_permlane16_swap_b32"):
            em.e(f"v_mov_b32 v{x}, v{a}"); em.e(f"v_mov_b32 v{y}, v{b_}")
            em.e(f"{sw} v{a}, v{x}"); em.e(f"{sw} v{b_}, v{y}")
            em.e(f"v_add_f32 v{a}, v{a}, v{x}"); em.e(f"v_add_f32 v{b_}, v{b_}, v{y}")
        em.e(f"s_mul_i32 {sST}, {sXI}, {ST_SZ}"); em.e(f"s_lshl_b32 {sT0}, {sTT1}, 10"); em.e(f"s_add_u32 {sST}, {sST}, {sT0}")
        em.e(f"s_lshl_b32 {sT0}, {sC8}, 7"); em.e(f"s_add_u32 {sST}, {sST}, {sT0}"); em.e(f"s_add_u32 {sST}, {sST}, {ST}")
        em.e(f"s_mov_b64 exec, {sMK[0]}")
        em.e(f"buffer_store_dwordx2 v[{a}:{a+1}], {vSTO}, {S_WS}, {sST} offen{cur['STO']}", vm="xst")
        em.e("s_mov_b64 exec, -1")
        if final_possible:
            em.e(f"s_branch Lfin{u}_x")
            em.label(f"Lfin{u}")
            em.e(f"s_mul_i32 {sST}, {sTT1}, {16*1280}"); em.e(f"s_mul_i32 {sT0}, {sC8}, 160"); em.e(f"s_add_u32 {sST}, {sST}, {sT0}")
            for t in range(5):
                em.e(f"buffer_store_dwordx2 v[{P+2*t}:{P+2*t+1}], {vOUT}, {S_OUT}, {sST} offen offset:{t*32}")
            em.raw("    s_waitcnt vmcnt(0)")
            stamp(); nstamp[0] -= 1
            dump_stamps()
            em.e("s_endpgm")
            em.label(f"Lfin{u}_x")

    def K3():
        AX = lambda b, s_: 8 * b + 4 * s_
        SB = TMP
        NM, C1, KK, VST = 220, 221, 222, 223
        set_sA_x()
        seg = Seg(cap=opt.get("k3cap", 6)); ws = WStream(ring, seg, "K3", SS=SS, LA=opt.get("la3", 5))
        fu = {}; lu = {}
        pend = []
        for f in range(280): ws.wreg(f)
        def acc(t): return ACC + 16 * t
        B1 = opt.get("k3b", 12)
        groups = [(b, p) for b in range(B1) for p in range(3)] + [(b, p) for p in range(3) for b in range(B1, 20)] + [(b, 3) for b in range(20)]
        afirst = {}
        seen_a = set()
        pend = [0, 0, 0, 0]
        for (b, p) in groups:
            ts = (2 * p, 2 * p + 1) if p < 3 else (6,)
            first = True
            for s_ in range(2):
                for t in ts:
                    f = pw3_index(b, t, s_, B1); wr = ws.wreg(f)
                    d = acc(t)
                    c = "0" if (b == 0 and s_ == 0) else f"v[{d}:{d+15}]"
                    wl = [("w", "K3", pw3_index(b, ts[-1], 1, B1))] if first else None
                    wv = [("a", b, 1)] if (b not in seen_a and first) else None
                    i = seg.mfma(f"v_mfma_f32_32x32x16_bf16 v[{d}:{d+15}], v[{wr}:{wr+3}], a[{AX(b,s_)}:{AX(b,s_)+3}], {c}", wvm=wv, wlg=wl)
                    if first: g0 = i
                    if b not in seen_a: seen_a.add(b); afirst[b] = i
                    first = False
                    fu.setdefault(f, g0); lu[f] = i
            pend[p] = seg.n()
        al = a_loads(2, 20, "K3", "a", AX, m32=True)
        ws.reads(list(range(280)), fu, lu)
        ws.vmem(a_jobs(al, lambda b: afirst[b] - opt.get("a3l", 12)), lambda r: opt.get("k3w", 0), margin=opt.get("m3", 70), qd=opt.get("q3", QD // 2), rate=opt.get("r3", 38) / 20.0)
        so = [f"v_and_b32 v{VST}, 0xf0, {vL16}", f"v_lshrrev_b32 v{VST}, 1, v{VST}", f"v_and_b32 v{NM}, 0x200, {vL16}", f"v_add_u32 v{VST}, v{VST}, v{NM}",
              f"v_and_b32 v{NM}, 0x100, {vL16}", f"v_lshlrev_b32 v{NM}, 2, v{NM}", f"v_add_u32 v{VST}, v{VST}, v{NM}",
              f"s_mul_i32 {sST}, {sXI}, {ST_SZ}", f"s_lshl_b32 {sST2}, {sTT2}, 10", f"s_add_u32 {sST}, {sST}, {sST2}", f"s_add_u32 {sST}, {sST}, {ST}"]
        for q in range(4):
            so.append(Op(f"buffer_load_dwordx2 v[{SB+2*q}:{SB+2*q+1}], v{VST}, {S_WS}, {sST} offen offset:{q*128}{cur['LD']}", vm=("st", q)))
        g = seg.stream(so, 2)
        a, b_, x, y = SB, SB + 1, SB + 2, SB + 3
        so = [Op(f"v_add_f32 v{a}, v{a}, v{SB+2}", wvm=[("st", 3)]), f"v_add_f32 v{b_}, v{b_}, v{SB+3}",
              f"v_add_f32 v{SB+4}, v{SB+4}, v{SB+6}", f"v_add_f32 v{SB+5}, v{SB+5}, v{SB+7}",
              f"v_add_f32 v{a}, v{a}, v{SB+4}", f"v_add_f32 v{b_}, v{b_}, v{SB+5}",
              f"v_mov_b32 v{x}, v{a}", f"v_mov_b32 v{y}, v{b_}",
              f"v_permlane32_swap_b32 v{a}, v{x}", f"v_permlane32_swap_b32 v{b_}, v{y}",
              f"v_add_f32 v{a}, v{a}, v{x}", f"v_add_f32 v{b_}, v{b_}, v{y}",
              f"v_mul_f32 v{NM}, {hex(INV640 | 0x80000000)}, v{a}", f"v_mul_f32 v{KK}, {hex(INV640)}, v{b_}",
              f"v_fma_f32 v{KK}, -v{NM}, v{NM}, v{KK}", f"v_max_f32 v{KK}, 0, v{KK}", f"v_add_f32 v{KK}, {hex(EPS5)}, v{KK}",
              (Op(f"v_rsq_f32 v{C1}, v{KK}"), 2), f"v_mul_f32 v{C1}, {hex(LOG2E | 0x80000000)}, v{C1}"]
        g = seg.stream(so, max(g, 30))
        so = [f"s_mul_i32 {sST}, {LB()}, {ACT_SZ}", f"s_mul_i32 {sST2}, {sTT2}, {54*1024}", f"s_add_u32 {sST}, {sST}, {sST2}",
              f"s_add_u32 {sST}, {sST}, {ACT}", f"s_lshl_b32 {sST2}, {sM}, 10", f"s_add_u32 {sST2}, {sST2}, {sST}"]
        g = seg.stream(so, max(g, 50))
        CSR = 226
        ET = 242
        def epi(t):
            ops = []
            for mat in range(2):
                for hh in range(2):
                    r = CSR + 8 * mat + 4 * hh
                    ops.append(Op(f"ds_read_b128 v[{r}:{r+3}], {vH16} offset:{L_CS3 + (2*t+mat)*64 + 32*hh}", lg=("c3", t)))
            d = acc(t)
            first = True
            for e in range(8):
                ops.append(Op(f"v_fmac_f32 v{d+e}, v{NM}, v{CSR+e}", wlg=[("c3", t)] if first else None)); first = False
                ops.append(f"v_fmac_f32 v{d+8+e}, v{NM}, v{CSR+8+e}")
            for k in range(0, 8, 4):
                streams = []
                for e in range(k, k + 4):
                    g_ = d + e; u_ = d + 8 + e; e_ = ET + e
                    streams.append([f"v_mul_f32 v{e_}, v{g_}, v{C1}",
                                    (Op(f"v_exp_f32 v{e_}, v{e_}"), 2),
                                    f"v_mul_f32 v{g_}, v{g_}, v{u_}",
                                    f"v_fma_f32 v{e_}, v{e_}, v{KK}, v{KK}",
                                    (Op(f"v_rcp_f32 v{e_}, v{e_}"), 2),
                                    f"v_mul_f32 v{g_}, v{g_}, v{e_}"])
                ops += il(streams)
            PK = d + 8
            for q in range(4): ops.append(f"v_cvt_pk_bf16_f32 v{PK+q}, v{d+2*q}, v{d+2*q+1}")
            if t < 6:
                ops.append(Op(f"s_add_u32 {sT0}, {sST2}, {(t >> 1) * 16384 + (t & 1) * 512}"))
                ops.append(Op(f"buffer_store_dwordx4 v[{PK}:{PK+3}], {vA3}, {S_WS}, {sT0} offen{cur['STO']}", vm="ast"))
            else:
                ops.append(Op(f"buffer_store_dwordx2 v[{PK}:{PK+1}], {vACT6}, {S_WS}, {sST} offen{cur['STO']}", vm="ast"))
                ops.append(Op(f"s_mov_b64 exec, {sMK32}"))
                ops.append(Op(f"buffer_store_dwordx2 v[{PK+2}:{PK+3}], {vA3}, {S_WS}, {sP2} offen{cur['STO']}", vm="ast"))
                ops.append(Op("s_mov_b64 exec, -1"))
            return ops
        if PTK & 8 and PTM != 3:
            for p in range(1, 4): pt_place(seg, pt_act(p), max(20, pend[p - 1] - opt.get("pt3", 25)))
        ge = 0
        for p in range(3):
            for t in (2 * p, 2 * p + 1):
                ge = seg.stream(epi(t), max(pend[p] + 3, ge))
        so = [f"s_mul_i32 {sP0}, {sM}, 3", f"s_add_u32 {sP0}, {sP0}, 2", f"s_lshr_b32 {sP1}, {sP0}, 3", f"s_add_u32 {sP1}, {sP1}, 48", f"s_lshl_b32 {sP1}, {sP1}, 10",
              f"s_add_u32 {sP2}, {sST}, {sP1}", f"s_and_b32 {sP1}, {sP0}, 3", f"s_lshl_b32 {sP1}, {sP1}, 8", f"s_add_u32 {sP2}, {sP2}, {sP1}",
              f"s_bfe_u32 {sP1}, {sP0}, 0x10002", f"s_lshl_b32 {sP1}, {sP1}, 3", f"s_add_u32 {sP2}, {sP2}, {sP1}"]
        seg.stream(so, 225)
        if not opt.get('ls2'):
            for g in range(1, 268, 20): lstamp(seg, g)
        sys.stderr.write(f"K3: epilogue stream ends at gap {ge}; cost hist {[sum(1 for c in seg.cost if c == k) for k in range(12)]}\n")
        seg.emit(em)
        stamp()
        lin(epi(6))

    def finish_if(p):
        if stop <= 8 and (stop - 1) % 4 + 1 == p:
            lay = (stop - 1) // 4
            em.e(f"s_cmp_lg_u32 {sLAYER}, {lay}"); em.e(f"s_cbranch_scc1 Lstop{p}{cur['sfx']}")
            em.raw("    s_waitcnt vmcnt(0) lgkmcnt(0)")
            dump_stamps()
            em.e("s_endpgm")
            em.label(f"Lstop{p}{cur['sfx']}")
    prologue_end()
    pls()
    if opt.get("pls"):
        for k in range(pln[0]):
            if k > 5: break
            em.e(f"v_readfirstlane_b32 s96, v{236+k}"); em.e("s_nop 3"); em.e(f"v_writelane_b32 v0, s96, {58+k}")
    if PEEL:
        cnt_save = WStream.cnt
        ring.filled = -1
        nstamp[0] = 0; lsn[0] = 0
        stamp()
        K1_p1(True)
        stamp()
        join_state[0] = (ring.issued, ring.filled, ring.allowed, [t for t in em.vm if isinstance(t, tuple) and t[0] == "dma"], WStream.cnt)
        K1_first(True)
        WStream.cnt = cnt_save
        em.vm = [("dma", r) for r in range(HEAD + 1) for _ in range(4)]
    em.vm = [t for t in em.vm if isinstance(t, tuple) and t[0] == "dma"] + [t for t in em.vm if isinstance(t, tuple) and t[0] == "a"]
    head_vm = list(em.vm)
    cnt0 = WStream.cnt
    if MONO and stamps and not opt.get("lst", 0):
        em.e("v_writelane_b32 v0, s96, 62"); em.e("v_writelane_b32 v0, s97, 63")
    if MONO:
        em.e(f"s_cmp_lg_u32 {sMODE}, 0"); em.e("s_cbranch_scc1 Lm_layerS")
    for sfx, sto in (("F", ""), ("S", " sc1")):
        cur["sfx"] = sfx; cur["STO"] = sto; cur["LD"] = sto if not opt.get("ldsc1", 1) else " sc1"
        nstamp[0] = 0; lsn[0] = 0
        WStream.cnt = cnt0
        em.label(f"Lm_layer{sfx}")
        em.vm = list(head_vm); em.lg = []
        ring.filled = -1; ring.issued = HEAD; ring.allowed = 8; ring.q = []
        em.e(f"s_cmp_eq_u32 {sLAYER}, 1"); em.e(f"s_cselect_b32 s14, 0, {WS_END}")
        stamp()
        K1(); stamp(); finish_if(1)
        transition(1, 1, 9, ["ost"], 16, 0, 0); stamp()
        K24("K2", 20, False); stamp(); finish_if(2)
        transition(2, 2, 16, ["xst"], 18, opt.get("d21", 40), opt.get("d22", 0)); stamp()
        K3(); stamp(); finish_if(3)
        transition(4, 4, 34, ["ast"], 36, opt.get("d31", 40), opt.get("d32", 0)); stamp()
        K24("K4", 54, True); stamp(); finish_if(4)
        transition(5, 5, 53, ["xst"], 53, opt.get("d41", 40), 100, upto2=54 + HEAD, defer0=opt.get("df4", 0))
        if AH: k1_hoist(cur["LD"])
        stamp()
        assert ring.issued == 54 + HEAD and not ring.q, (ring.issued, ring.q)
        em.e(f"s_add_u32 {sLAYER}, {sLAYER}, 1"); em.e(f"s_add_u32 {sSTEP}, {sSTEP}, 5")
        em.e(f"s_branch Lm_layer{sfx}")
    em.label("Lm_done")
    em.e("s_endpgm")
    return em.lines


def build(opt):
    if opt.get("mono", 0):
        ml = gen_main(opt)
        ml, n2 = fix_hazards(ml)
        ref = open("interleave_layers__linear_attn_block__swiglu_ffn__prompt.s.ref").read() if opt.get("hdr", False) else ""
        hdr = [l for l in ref.split("\n") if l.startswith(";") and "@launch" not in l and "Override launch" not in l and "grid=ceil" not in l]
        out = hdr + [f"; @launch grid=(256,1,1) block=(256,1,1) lds={MAIN_LDS}",
               '.amdgcn_target "amdgcn-amd-amdhsa--gfx950"', ".text",
               f".globl {KNAME}", ".p2align 8", f".type {KNAME},@function"] + ml + [kdesc(KNAME, 512, 256, 102)]
        sys.stderr.write(f"nops inserted: main {n2}; main lines {len(ml)}\n")
        return "\n".join(out)
    pl = gen_prep("prep_kernel", stamp=opt.get("stamps", 0), k3b=opt.get("k3b", 12), wsoff=opt.get("wsoff", 0) << 20, zf=opt.get("zf", 0), hp=opt.get("hp", 0) and opt.get("kvh", 1))
    if opt.get("pst"):
        sfx = {1: " sc1", 2: " nt", 3: " sc0 sc1", 4: " sc1 nt"}[opt["pst"]]
        pl = [l + sfx if "buffer_store" in l else l for l in pl]
    pl, n1 = fix_hazards(pl)
    ml = gen_main(opt)
    ml, n2 = fix_hazards(ml)
    ref = open("interleave_layers__linear_attn_block__swiglu_ffn__prompt.s.ref").read() if opt.get("hdr", False) else ""
    hdr = [l for l in ref.split("\n") if l.startswith(";") and "@launch" not in l and "Override launch" not in l and "grid=ceil" not in l]
    out = hdr + [f"; @launch kernel=prep_kernel grid=({PREP_WGS},1,1) block=(256,1,1) lds={PREP_LDS}",
           f"; @launch kernel={KNAME} grid=(256,1,1) block=(256,1,1) lds={MAIN_LDS}",
           '.amdgcn_target "amdgcn-amd-amdhsa--gfx950"', ".text",
           ".globl prep_kernel", ".p2align 8", ".type prep_kernel,@function"] + pl + \
          [f".globl {KNAME}", ".p2align 8", f".type {KNAME},@function"] + ml + \
          [kdesc("prep_kernel", 112, 112), kdesc(KNAME, 512, 256, 102)]
    sys.stderr.write(f"nops inserted: prep {n1} main {n2}; main lines {len(ml)}\n")
    return "\n".join(out)


if __name__ == "__main__":
    opt = {}
    for a in sys.argv[1:]:
        k, v = a.split("="); opt[k] = int(v)
    print(build(opt))
```

```python
import sys
from asmlib import *
from layout import *
from gen_prep import gen_prep, kdesc, PREP_WGS, PREP_LDS

KNAME = "interleave_layers__linear_attn_block__swiglu_ffn__prompt_kernel"
NR = 9
MISC = 147456
MB = 131072
L_CS1 = MISC - MB; L_CS3 = MISC + 512 - MB; L_STAT = MISC + 1536 - MB; L_RED = MISC + 4096 - MB; L_KVB = MISC + 8192 - MB
MAIN_LDS = 163840
PH = {"K1": (0, 160), "K2": (10, 100), "K3": (17, 280), "K4": (35, 270)}
TOT_ROUNDS = 54
LOG2E = 0x3fb8aa3b
EPS6 = 0x358637bd
EPS5 = 0x3727c5ac
INV640 = 0x3acccccd

S_WS = "s[4:7]"; S_OUT = "s[8:11]"; S_WSN = "s[12:15]"
sW, sG, sM, sHALF, sC8, sLAYER = "s16", "s17", "s18", "s19", "s20", "s21"
sW4K, sW1K, sW2K = "s22", "s23", "s24"
sPW1, sPWO, sPW3, sPWD, sPWOp, sPW3p = "s25", "s26", "s27", "s28", "s29", "s30"
sDMA = "s31"; sA = "s32"; sT0, sT1, sT2, sT3 = "s33", "s34", "s35", "s36"
sFOWN, sFLINE, sKOWN, sKLINE = "s37", "s38", "s39", "s40"
sSTEP = "s41"; sTT2 = "s42"; sTT1 = "s43"
sFEX = "s[44:45]"
sMODE = "s46"; sSPIN = "s47"
sMK = ["s[48:49]", "s[50:51]", "s[52:53]", "s[54:55]", "s[56:57]", "s[58:59]"]
sXI = "s60"
sE6 = "s61"
sST = "s62"
sST2 = "s63"
sODD = "s64"
sXOFF, sXREM, sSTOFF, sAOFF, sOOFF = "s65", "s91", "s98", "s99", "s3"
sBIT2 = "s[66:67]"
sI8 = "s[68:69]"
sG23 = "s[70:71]"; sG3 = "s[72:73]"; sMK32 = "s[74:75]"
sTS = 76
sP0, sP1, sP2 = "s88", "s89", "s90"
PTD = "a255"
sR13, sR4, sRB, sRQ, sRT, sRT2 = "s84", "s85", "s86", "s87", "s100", "s101"
R13 = [4, 8, 12, 16]; R4V = [2, 14, 30, 42]
REGIONS = {"K1": [(0, 5, 20), (100, 3, 20)], "K2": [(0, 5, 20)], "K3": [(0, 4, 20), (80, 4, 20), (160, 4, 20), (240, 2, 20)], "K4": [(0, 5, 54)]}
ROTREG = {"K1": (sR13, R13), "K2": (sR13, R13), "K3": (sR13, R13), "K4": (sR4, R4V)}

vL16, vR1, vR2, vL16B = "v1", "v2", "v3", "v4"
vI4, vI4W, vG16, vG16W, vX3, vA3, vL8, vSTO, vACT6, vOREM, vOUT = [f"v{i}" for i in range(5, 16)]
vH16 = "v250"
RES = 16
WW = 36; NW = 16
ACC = 100
TMP = 212
CSVB = 140; RLB = 180


DBG = {}
class Seg:
    def __init__(s, cap=2):
        s.mf = []; s.gaps = [[]]; s.cost = [0]; s.cap = cap
    def n(s): return len(s.mf)
    def mfma(s, text, wvm=None, wlg=None):
        s.mf.append(Op(text, wvm=wvm, wlg=wlg)); s.gaps.append([]); s.cost.append(0)
        if wvm or wlg: s.cost[len(s.mf) - 1] += 1
        return len(s.mf) - 1
    def put(s, gap, op, cost=1):
        if isinstance(op, str): op = Op(op)
        gap = min(gap, len(s.gaps) - 1)
        s.gaps[gap].append(op); s.cost[gap] += cost
        return gap
    def place(s, op, earliest, cost=1, cap=None, latest=None):
        if cap is None: cap = s.cap
        g = max(0, min(earliest, len(s.gaps) - 1))
        last = len(s.gaps) - 1
        while g < last and s.cost[g] + cost > cap:
            if latest is not None and g >= latest: break
            g += 1
        return s.put(g, op, cost)
    def group(s, ops, earliest, maxcost=0):
        g = max(0, min(earliest, len(s.gaps) - 1))
        while g < len(s.gaps) - 1 and s.cost[g] > maxcost: g += 1
        for o in ops: s.put(g, o, 1)
        return g
    def stream(s, ops, earliest, cap=None, spacing=0):
        g = earliest
        for o in ops:
            c = 1
            if isinstance(o, tuple): o, c = o
            g = s.place(o, g, cost=c, cap=cap)
            g += spacing
        return g
    def emit(s, em):
        def keep(o):
            t = o.text
            if DBG.get("skipa") and t.startswith("buffer_load_dwordx4 a["): return False
            if DBG.get("skipw") and t.endswith(" lds"): return False
            if DBG.get("nobar") and t == "s_barrier":
                o.text = "s_nop 0"; return True
            if DBG.get("skipv") and t.startswith("v_") and not t.startswith(("v_mfma", "v_writelane")): return False
            if DBG.get("skipr") and t.startswith("ds_read"): return False
            return True
        for i in range(len(s.gaps)):
            for o in s.gaps[i]:
                if keep(o): em.op(o)
            if i < len(s.mf): em.op(s.mf[i])


STG0 = 160
vSTG0, vSTG1, vSTG2 = "v200", "v201", "v202"
def staged(r):
    n = DBG.get("stg", 0)
    return n and DBG.get("stg0", 26) <= r < DBG.get("stg0", 26) + n
class Ring:
    def __init__(s):
        s.issued = -1
        s.filled = -1
        s.allowed = -1
        s.q = []
    @staticmethod
    def info(r):
        rr = r % TOT_ROUNDS
        nxt = r >= TOT_ROUNDS
        for ph, (r0, nf) in PH.items():
            nrounds = (nf + 15) // 16
            if r0 <= rr < r0 + nrounds:
                k = rr - r0
                return ph, k, min(16, nf - 16 * k), nxt
        return None, 0, 0, nxt
    def jobs(s, r):
        ph, k, n, nxt = s.info(r)
        if ph is None: return []
        srd = S_WSN if nxt else S_WS
        pos = (r % NR) * 16384
        tag = ("dma", r)
        if staged(r):
            a0 = STG0 + 16 * (r - DBG.get("stg0", 26))
            va, off = (vSTG0, pos) if pos < 65536 else ((vSTG1, pos - 65536) if pos < 131072 else (vSTG2, pos - 131072))
            return [[Op(f"ds_write_b128 {va}, a[{a0+4*j}:{a0+4*j+3}] offset:{off + j*1024}", lg=("dmal", r), wvm=[("stg", r)])] for j in range(4)]
        if n > 8: c, m0s, base = 4, sW4K, {"K1": sPW1, "K2": sPWO, "K3": sPW3, "K4": sPWD}[ph]
        elif n > 4: c, m0s, base = 2, sW2K, sPW3p; assert ph == "K3" and n == 8
        else: c, m0s, base = 1, sW1K, sPWOp; assert ph == "K2" and n == 4
        nt = " nt" if (DBG.get("wnt", 0) >> {"K1": 0, "K2": 1, "K3": 2, "K4": 3}[ph]) & 1 else ""
        base4 = {"K1": sPW1, "K2": sPWO, "K3": sPW3, "K4": sPWD}[ph]
        pre = [Op(f"s_add_u32 m0, {m0s}, {pos}")]
        if not DBG.get("rot", 0):
            pre.append(Op(f"s_add_u32 {sDMA}, {base}, {(k % DBG.get('wmod', 1000))*16384}"))
        else:
            sR, rset = ROTREG[ph]
            regs = REGIONS[ph]
            def region(p):
                for i, (P0, cc, nb) in enumerate(regs):
                    if P0 <= p < P0 + cc * nb: return i
                return len(regs) - 1
            def setup(i):
                P0, cc, nb = regs[i]
                return [Op(f"s_mul_i32 {sRT}, {sR}, {cc}"), Op(f"s_lshl_b32 {sRQ}, {sW}, 2"), Op(f"s_add_u32 {sRQ}, {sRQ}, {sRT}"),
                        Op(f"s_lshl_b32 {sRT}, {sRT}, 10"), Op(f"s_add_u32 {sRB}, {base4}, {sRT}")]
            def addr(i, waves, dst):
                P0, cc, nb = regs[i]
                st = set()
                for w in waves:
                    for R in rset: st.add(16 * k + c * w + cc * R >= P0 + cc * nb)
                size = cc * nb * 1024
                if st == {False}: return [Op(f"s_add_u32 {dst}, {sRB}, {16384*k}")], False
                if st == {True}: return [Op(f"s_add_u32 {dst}, {sRB}, {(16384*k - size) & 0xffffffff}")], True
                assert c == 4
                T = P0 + cc * nb - 16 * k
                return [Op(f"s_add_u32 {dst}, {sRB}, {16384*k}"), Op(f"s_cmp_ge_u32 {sRQ}, {T}"), Op(f"s_cselect_b32 {sRT}, {size}, 0"),
                        Op(f"s_sub_u32 {dst}, {dst}, {sRT}")], None
            rw = [region(16 * k + c * w) for w in range(4)]
            prev_reg = region(16 * k - 4) if k > 0 else None
            if len(set(rw)) == 1:
                i = rw[0]
                if prev_reg != i: pre += setup(i)
                o, _ = addr(i, range(4), sDMA)
                pre += o
                if c != 4:
                    pre += [Op(f"s_sub_u32 {sDMA}, {sDMA}, {base4}"), Op(f"s_add_u32 {sDMA}, {sDMA}, {base}")]
            else:
                assert c == 4 and rw[0] == prev_reg and set(rw[1:]) == {rw[0] + 1}, (ph, k, rw)
                o, _ = addr(rw[0], [0], sRT2); pre += o
                pre += setup(rw[1])
                o, _ = addr(rw[1], [1, 2, 3], sDMA); pre += o
                pre += [Op(f"s_cmp_eq_u32 {sW}, 0"), Op(f"s_cselect_b32 {sDMA}, {sRT2}, {sDMA}")]
        out = []
        for j in range(c):
            ops = list(pre) if j == 0 else []
            ops.append(Op(f"buffer_load_dwordx4 {vL16}, {srd}, {sDMA} offen offset:{j*1024}{nt} lds", vm=tag))
            out.append(ops)
        return out
    def skip_virtual(s):
        while not s.q and s.issued < s.allowed and not s.jobs(s.issued + 1): s.issued += 1
    def next_round(s):
        r = s.issued + 1
        while not s.q and not s.jobs(r): r += 1
        return r
    def take(s):
        if not s.q:
            s.skip_virtual()
            if s.issued + 1 > s.allowed: return None
            s.q = s.jobs(s.issued + 1)
        j = s.q.pop(0)
        if not s.q:
            s.issued += 1
            s.skip_virtual()
        return j
    def emit(s, em, n=10**9, upto=None):
        k = 0
        while k < n:
            if upto is not None and s.next_round() > upto: break
            j = s.take()
            if j is None: break
            for o in j: em.op(o)
            k += 1
        return k


def wslot_addr(ph, f):
    r0, nf = PH[ph]
    r = r0 + f // 16
    a = (r % NR) * 16384 + (f % 16) * 1024
    if a < 65536: return vL16, a
    if a < 131072: return vR1, a - 65536
    return vR2, a - 131072


class WStream:
    cnt = 0
    def __init__(s, ring, seg, ph, SS=2, LA=10):
        s.ring = ring; s.seg = seg; s.ph = ph; s.SS = SS; s.LA = LA
        s.reg = {}; s.events = []
    def wreg(s, f):
        if f not in s.reg:
            s.reg[f] = WW + 4 * (WStream.cnt % NW); WStream.cnt += 1
        return s.reg[f]
    def reads(s, frags, first_use, last_use, force=(), nobar=(), wait_at=None, ming=0):
        seg = s.seg; ring = s.ring; r0, nf = PH[s.ph]
        prev = ming
        lastuse_slot = dict(getattr(s, 'lus', {}))
        filled = ring.filled
        lastbar = None
        rlast = r0 + frags[-1] // 16
        for f in frags:
            reg = s.reg[f]
            e = max(prev, first_use[f] - s.LA, lastuse_slot.get(reg, -1) + 1)
            lat = first_use[f] if wait_at is None else wait_at[f]
            e = max(0, min(e, lat))
            r = r0 + f // 16
            va, off = wslot_addr(s.ph, f)
            rd = Op(f"ds_read_b128 v[{reg}:{reg+3}], {va} offset:{off}", lg=("w", s.ph, f))
            need = r > filled
            want = (f % 16 == 0) and (r in force or (lastbar is not None and r - lastbar >= s.SS) or (lastbar is None and r - (r0 + frags[0] // 16) >= s.SS)) and r not in nobar
            if need or want:
                tgt = max(filled, min(r + s.SS - 1, rlast))
                g = e
                last = lat
                while g < last and seg.cost[g] + 1 > seg.cap: g += 1
                wt = [("dma", x) for x in range(filled + 1, tgt + 1) if not staged(x)]
                wl_ = [("dmal", x) for x in range(filled + 1, tgt + 1) if staged(x)]
                seg.put(g, Op("s_barrier", wvm=wt, wlg=wl_), 2)
                seg.put(g, rd, 1)
                filled = tgt
                prev = g
                lastbar = r
                s.events.append((g, r - 2 + NR, tgt))
            else:
                prev = seg.place(rd, e, latest=lat)
            lastuse_slot[reg] = last_use[f]
        s.lastbar = lastbar
        s.lus = lastuse_slot
        ring.filled = filled
    def vmem(s, ajobs, policy, rate=4.5, qd=36, backlog=0, margin=48, cap=None, burst0=True):
        seg = s.seg; ring = s.ring
        if cap is None: cap = seg.cap
        n = len(seg.gaps)
        path = backlog
        ai = 0
        ev = list(s.events)
        def dma_deadline(r):
            for (g, al, tgt) in ev:
                if tgt >= r: return g
            return None
        evi = 0
        for (g, al, tgt) in ev:
            if g == 0: assert ring.issued >= tgt, ("rounds not issued before seg start", s.ph, tgt, ring.issued)
        for g in range(n):
            placed = 0
            while True:
                cands = []
                if ai < len(ajobs) and (len(ajobs[ai]) < 3 or g >= ajobs[ai][2]): cands.append((ajobs[ai][1], 0))
                r = ring.next_round()
                hard = dma_deadline(r)
                pe = policy(r)
                ok = (ring.q or r <= ring.allowed)
                if ok and (hard is not None or pe is not None):
                    dl = (hard - margin) if hard is not None else 10**6
                    start = pe if pe is not None else 0
                    if g >= start or (hard is not None and g >= hard - 1): cands.append((dl, 1))
                    harddl = hard
                if not cands: break
                cands.sort()
                def isforced(c):
                    return (c[1] == 1 and hard is not None and g >= hard - 1) or (c[1] == 0 and g >= c[0])
                fc = [c for c in cands if isforced(c)]
                forced = bool(fc)
                dl, which = fc[0] if fc else cands[0]
                if not forced:
                    if path - g > qd: break
                    if (g > 0 or not burst0) and (seg.cost[g] + 1 > cap or placed >= 1): break
                if which == 0:
                    ops = ajobs[ai][0]; ai += 1
                else:
                    ops = ring.take(); assert ops is not None
                for o in ops: seg.put(g, o, 1)
                path = max(path, g) + rate
                placed += 1
            while evi < len(ev) and ev[evi][0] <= g:
                (eg, al, tgt) = ev[evi]; evi += 1
                assert ring.issued >= tgt, ("rounds not issued before barrier", s.ph, g, tgt, ring.issued)
                ring.allowed = max(ring.allowed, al)
        assert ai == len(ajobs)
        return path - n


def gen_main(opt):
    stop = opt.get("stop", 99)
    DBG.clear(); DBG.update(opt)
    stamps = opt.get("stamps", False)
    SS = opt.get("SS", 2)
    MARG = opt.get("marg", 72); QD = opt.get("qd", 36); RATE = opt.get("rate10", 45) / 10.0
    cur = {"sfx": "F", "STO": "", "LD": ""}
    em = Em()
    ring = Ring()
    WStream.cnt = 0
    nstamp = [0]
    def stamp():
        if not stamps: return
        k = nstamp[0]; nstamp[0] += 1
        em.raw(f"    s_waitcnt lgkmcnt(0)")
        em.e(f"s_memtime s[{sTS}:{sTS+1}]" if not opt.get("rt") else f"s_memrealtime s[{sTS}:{sTS+1}]")
        em.e(f"s_lshl_b32 s{sTS+2}, {sLAYER}, 4")
        em.e(f"s_add_u32 s{sTS+2}, s{sTS+2}, {k}")
        em.raw("    s_waitcnt lgkmcnt(0)")
        em.lg = []
        em.e(f"s_mov_b32 s{sTS+1}, m0")
        em.e(f"s_mov_b32 m0, s{sTS+2}"); em.e("s_nop 3")
        em.e(f"v_writelane_b32 v0, s{sTS}, m0")
        em.e(f"s_mov_b32 m0, s{sTS+1}")
    lsn = [0]
    def lstamp(seg, gap):
        if not opt.get("lst", 0): return
        lane = 32 + lsn[0]; lsn[0] += 1
        assert lane < 64
        rg = 96 if lane % 2 else 76
        seg.put(gap, f"s_memtime s[{rg}:{rg+1}]", 0)
        seg.put(gap + 12, f"v_writelane_b32 v0, s{rg}, {lane}", 0)
    def dump_stamps():
        if not stamps: return
        em.e("s_memrealtime s[96:97]")
        em.raw("    s_waitcnt lgkmcnt(0)")
        em.e("v_writelane_b32 v0, s92, 15"); em.e("v_writelane_b32 v0, s94, 30"); em.e("v_writelane_b32 v0, s96, 31")
        em.e(f"s_mov_b64 exec, s[{sTS+4}:{sTS+5}]")
        em.e(f"v_lshrrev_b32 v251, 2, {vL16}")
        em.e(f"v_add_u32 v251, s{sTS+3}, v251")
        em.e(f"global_store_dword v251, v0, s[{sTS+6}:{sTS+7}]")
        em.e("s_mov_b64 exec, -1")
        em.raw("    s_waitcnt vmcnt(0)")

    em.label(KNAME)
    em.e("s_cmp_ge_u32 s2, 256")
    em.e("s_cbranch_scc1 Lm_done")
    if stamps:
        em.e("s_memtime s[92:93]"); em.e("s_memrealtime s[94:95]")
    MONO = opt.get("mono", 0)
    if opt.get("sst"):
        em.e("s_memrealtime s[98:99]"); em.raw("    s_waitcnt lgkmcnt(0)"); em.e("s_mov_b32 s101, s98")
    if MONO:
        em.e("s_load_dwordx2 s[82:83], s[0:1], 64")
        MST = opt.get("mst", 0)
        for l in gen_prep("", mono=True, k3b=opt.get("k3b", 12), sfx={0: " sc1", 1: " sc0 sc1", 2: " sc1 nt", 3: "", 4: "", 5: " nt"}[MST], sx=opt.get("sx", 0), skipj=opt.get("skipj", 0)): em.raw(l)
        if opt.get("sx"):
            if opt["sx"] == 1: em.e("s_memrealtime s[78:79]")
            em.raw("    s_waitcnt vmcnt(0) lgkmcnt(0)")
            em.e("s_memrealtime s[76:77]"); em.raw("    s_waitcnt lgkmcnt(0)")
            if opt["sx"] == 1:
                em.e("v_mov_b32 v236, s101"); em.e("v_mov_b32 v237, s96"); em.e("v_mov_b32 v238, s78"); em.e("v_mov_b32 v239, s76")
            else:
                em.e("v_mov_b32 v236, s101"); em.e("v_mov_b32 v237, s80"); em.e("v_mov_b32 v238, s78"); em.e("v_mov_b32 v239, s96")
            em.e("s_lshl_b32 s33, s2, 4"); em.e("s_add_u32 s33, s33, 0x3000000"); em.e("v_mov_b32 v240, s33")
            em.e("s_cmp_lg_u32 s18, 0"); em.e("s_cbranch_scc1 Lm_done")
            em.e("s_mov_b64 exec, 1"); em.e("global_store_dwordx4 v240, v[236:239], s[16:17]"); em.e("s_endpgm")
        em.e(f"s_getreg_b32 {sMODE}, hwreg(HW_REG_XCC_ID)")
        em.e(f"s_lshr_b32 s33, {sMODE}, 12"); em.e("s_and_b32 s33, s33, 0x70"); em.e(f"s_and_b32 {sMODE}, {sMODE}, 15")
        em.e(f"s_or_b32 {sMODE}, {sMODE}, s33"); em.e(f"s_or_b32 {sMODE}, {sMODE}, 0x80")
        em.e(f"v_mov_b32 v254, {sMODE}"); em.e("v_mov_b32 v255, s2")
        em.raw("    s_waitcnt vmcnt(0) lgkmcnt(0)")
        em.e("s_barrier")
        em.e("s_cmp_lg_u32 s18, 0"); em.e("s_cbranch_scc1 Lm_nofl")
        if MST in (3, 5):
            em.e("buffer_wbl2 sc1"); em.raw("    s_waitcnt vmcnt(0)")
        em.e("s_mov_b64 exec, 1")
        em.e("global_store_byte v255, v254, s[82:83] sc1")
        em.e("s_mov_b64 exec, -1")
        em.label("Lm_nofl")
        if opt.get("sst"):
            em.e("s_memrealtime s[98:99]"); em.raw("    s_waitcnt lgkmcnt(0)"); em.e("s_mov_b32 s100, s98")
        if stamps:
            em.e("s_memtime s[96:97]"); em.raw("    s_waitcnt lgkmcnt(0)"); em.e("s_sub_u32 s96, s96, s92")
    pln = [0]
    def pls():
        if opt.get("pls") != 1: return
        em.e("s_memtime s[96:97]"); em.raw("    s_waitcnt lgkmcnt(0)"); em.e(f"v_mov_b32 v{236 + pln[0]}, s96"); pln[0] += 1
    em.e("s_load_dwordx2 s[8:9], s[0:1], 56"); em.e("s_load_dwordx2 s[10:11], s[0:1], 64")
    em.e("s_load_dwordx2 s[4:5], s[0:1], 72")
    em.e("v_lshrrev_b32 v2, 6, v0")
    em.e("v_and_b32 v0, 63, v0")
    em.e(f"v_readfirstlane_b32 {sW}, v2")
    em.e(f"v_lshlrev_b32 {vL16}, 4, v0")
    em.e("s_and_b32 s33, s2, 7"); em.e("s_lshr_b32 s34, s2, 3")
    em.e("s_and_b32 s35, s34, 1"); em.e(f"s_lshr_b32 {sM}, s34, 1")
    em.e("s_lshl_b32 s33, s33, 1"); em.e(f"s_add_u32 {sG}, s33, s35")
    em.e(f"s_and_b32 {sHALF}, {sM}, 1"); em.e(f"s_lshr_b32 {sC8}, {sM}, 1")
    em.e(f"s_lshl_b32 {sW4K}, {sW}, 12"); em.e(f"s_lshl_b32 {sW1K}, {sW}, 10"); em.e(f"s_lshl_b32 {sW2K}, {sW}, 11")
    def base(dst, reg0, sz, idx, wk, extra=0):
        em.e(f"s_mul_i32 {dst}, {idx}, {sz}"); em.e(f"s_add_u32 {dst}, {dst}, {reg0 + extra}"); em.e(f"s_add_u32 {dst}, {dst}, {wk}")
    base(sPW1, PW1, PW1_SZ, sM, sW4K); base(sPWO, PWO, PWO_SZ, sC8, sW4K)
    base(sPW3, PW3, PW3_SZ, sM, sW4K); base(sPWD, PWD, PWD_SZ, sC8, sW4K)
    base(sPWOp, PWO, PWO_SZ, sC8, sW1K); base(sPW3p, PW3, PW3_SZ, sM, sW2K)
    if opt.get("same", 0) & 1: base(sPW1, PW1, 0, sM, sW4K)
    if opt.get("same", 0) & 4: base(sPW3, PW3, 0, sM, sW4K); base(sPW3p, PW3, 0, sM, sW2K)
    if opt.get("same", 0) & 8: base(sPWD, PWD, 0, sC8, sW4K)
    em.e("s_waitcnt lgkmcnt(0)")
    pls()
    if stamps and not opt.get("rt") and not MONO:
        em.e(f"s_mov_b32 s{sTS+6}, s10"); em.e(f"s_mov_b32 s{sTS+7}, s11")
    if stamps and opt.get("rt"):
        em.e(f"s_add_u32 s{sTS+6}, s4, 0x3000000"); em.e(f"s_addc_u32 s{sTS+7}, s5, 0")
    if opt.get("wsoff", 0): em.e(f"s_add_u32 s4, s4, {opt['wsoff'] << 20}"); em.e("s_addc_u32 s5, s5, 0")
    em.e(f"s_mov_b32 s6, {WS_END}"); em.e("s_mov_b32 s7, 0x20000")
    em.e(f"s_mov_b32 s10, {2048*640*2}"); em.e("s_mov_b32 s11, 0x20000")
    em.e("s_mov_b32 s12, s4"); em.e("s_mov_b32 s13, s5"); em.e(f"s_mov_b32 s14, {WS_END}"); em.e("s_mov_b32 s15, 0x20000")
    em.e(f"s_and_b32 s33, {sG}, 1"); em.e(f"s_lshl_b32 s33, s33, 1"); em.e(f"s_add_u32 s33, s33, {sHALF}")
    if opt.get("rot", 0) == 2: em.e("s_mov_b32 s33, 0")
    em.e(f"s_lshl_b32 {sR13}, s33, 2"); em.e(f"s_add_u32 {sR13}, {sR13}, 4")
    em.e(f"s_mul_i32 {sR4}, s33, 12"); em.e(f"s_add_u32 {sR4}, {sR4}, 2"); em.e(f"s_cmp_ge_u32 s33, 2"); em.e(f"s_cselect_b32 s33, 4, 0"); em.e(f"s_add_u32 {sR4}, {sR4}, s33")
    HEAD = opt.get("head", 4)
    ring.allowed = 8
    if opt.get("probe"):
        pr = {1: [(sPW1, 0), (sPW1, 65536), (sOOFF, XB + 4096), (sPW1, 65536 + 64)],
              2: [(sOOFF, XB + 4096), (sOOFF, XB + 8192), (sPW3, 0), (sPWD, 0)],
              3: [(sOOFF, FLG_XCC), (sOOFF, ST), (sPW1, 0), (sPW1, 65536)]}[opt["probe"]]
        em.e(f"s_mul_i32 {sOOFF}, s2, 0")
        if opt["probe"] != 3: em.e(f"s_mul_i32 {sOOFF}, {sG}, {8*20480}")
        for (sr, off) in pr:
            em.e(f"s_add_u32 s33, {sr}, {off}")
            em.e(f"buffer_load_dword v241, off, {S_WS}, s33")
            em.raw("    s_waitcnt vmcnt(0)")
            pls()
        opt["pls"] = 2
    PEEL = opt.get("peel", 0) if not MONO else 0
    P1J = opt.get("p1j", 10)
    PA = opt.get("pa", 3)
    PBLK = [3, 6, 9, 12, 16, 19, 20]
    if PEEL:
        em.e(f"s_lshl_b32 s33, {sG}, 3"); em.e(f"s_lshl_b32 s34, {sW}, 1"); em.e(f"s_add_u32 {sTT2}, s33, s34")
        em.e(f"v_add_u32 {vL16B}, 20480, {vL16}")
        em.e(f"s_mul_i32 {sA}, {sTT2}, 20480"); em.e(f"s_add_u32 {sA}, {sA}, {XB}")
        b0 = 0
        for r in range(PA):
            if opt.get("pao", 0) == 0: ring.emit(em, upto=r)
            for b in range(b0, PBLK[r]):
                if b % 4 == 0 and b > 0: em.e(f"s_add_u32 {sA}, {sA}, 4096")
                for t in range(2):
                    rg = 80 * t + 4 * b
                    em.e(f"buffer_load_dwordx4 a[{rg}:{rg+3}], {vL16 if t == 0 else vL16B}, {S_WS}, {sA} offen offset:{(b % 4) * 1024}", vm=("a", b, t))
            b0 = PBLK[r]
            if opt.get("pao", 0) == 1: ring.emit(em, upto=r)
        ring.emit(em, upto=opt.get("pb", PA - 1))
    elif not MONO: ring.emit(em, upto=2)
    pls()
    AH = opt.get("ah", 0) if not MONO and not PEEL else 0
    def k1_hoist(ld):
        em.e(f"s_mul_i32 {sA}, {sXI}, {X_SZ}"); em.e(f"s_mul_i32 {sT0}, {sTT2}, 20480")
        em.e(f"s_add_u32 {sA}, {sA}, {sT0}"); em.e(f"s_add_u32 {sA}, {sA}, {XB}")
        for b in range(AH):
            if b % 4 == 0 and b > 0: em.e(f"s_add_u32 {sA}, {sA}, 4096")
            for t in range(2):
                r = 80 * t + 4 * b
                em.e(f"buffer_load_dwordx4 a[{r}:{r+3}], {vL16 if t == 0 else vL16B}, {S_WS}, {sA} offen offset:{(b % 4) * 1024}{ld}", vm=("a", b, t))
    if AH:
        assert not opt.get("rot", 0)
        if opt.get("aho", 0) == 0: ring.emit(em, upto=HEAD)
        em.e(f"s_lshl_b32 s33, {sG}, 3"); em.e(f"s_lshl_b32 s34, {sW}, 1"); em.e(f"s_add_u32 {sTT2}, s33, s34")
        em.e(f"s_mov_b32 {sXI}, 0"); em.e(f"v_add_u32 {vL16B}, 20480, {vL16}")
        k1_hoist("")
    em.e(f"s_lshl_b32 s33, {sG}, 7")
    em.e(f"s_add_u32 {sFLINE}, s33, {FLG_G}"); em.e(f"s_lshl_b32 s34, {sM}, 2"); em.e(f"s_add_u32 {sFOWN}, {sFLINE}, s34")
    em.e(f"s_lshl_b32 s33, {sM}, 7"); em.e(f"s_add_u32 {sKLINE}, s33, {FLG_KV}"); em.e(f"s_lshl_b32 s34, {sG}, 2"); em.e(f"s_add_u32 {sKOWN}, {sKLINE}, s34")
    em.e(f"s_lshl_b32 s33, {sG}, 3")
    em.e(f"s_lshl_b32 s34, {sW}, 1"); em.e(f"s_add_u32 {sTT2}, s33, s34")
    em.e(f"s_lshl_b32 s34, {sHALF}, 2"); em.e(f"s_add_u32 s34, s34, {sW}"); em.e(f"s_add_u32 {sTT1}, s33, s34")
    em.e(f"s_cmp_eq_u32 {sW}, 0"); em.e("s_cselect_b32 s44, 1, 0"); em.e("s_mov_b32 s45, 0")
    em.e(f"s_mov_b32 {sLAYER}, 0"); em.e(f"s_mov_b32 {sSTEP}, 0"); em.e(f"s_mov_b32 {sXI}, 0")
    em.e(f"s_mov_b32 {sE6}, {EPS6}")
    em.e(f"s_and_b32 {sODD}, {sC8}, 1")
    em.e(f"s_lshr_b32 s33, {sC8}, 1"); em.e("s_mul_i32 s33, s33, 5")
    em.e(f"s_lshl_b32 s34, {sODD}, 1"); em.e("s_add_u32 s34, s34, s33"); em.e("s_lshl_b32 s34, s34, 10")
    em.e(f"s_add_u32 s33, s33, 4"); em.e("s_lshl_b32 s33, s33, 10"); em.e(f"s_sub_u32 {sXREM}, s33, s34")
    em.e(f"s_mul_i32 s35, {sTT1}, 20480"); em.e(f"s_add_u32 s34, s34, s35"); em.e(f"s_add_u32 {sXOFF}, s34, {XB}")
    em.e(f"s_lshl_b32 s33, {sTT1}, 10"); em.e(f"s_lshl_b32 s34, {sC8}, 7"); em.e("s_add_u32 s33, s33, s34"); em.e(f"s_add_u32 {sSTOFF}, s33, {ST}")
    em.e(f"s_mul_i32 s33, {sTT2}, {54*1024}"); em.e(f"s_add_u32 {sAOFF}, s33, {ACT}")
    em.e(f"s_mul_i32 s33, {sTT2}, 20480"); em.e(f"s_add_u32 {sOOFF}, s33, {OB}")
    def m64(reg, val):
        a = int(reg[2:].split(":")[0])
        em.e(f"s_mov_b32 s{a}, {hex(val & 0xffffffff)}"); em.e(f"s_mov_b32 s{a+1}, {hex(val >> 32)}")
    m64(sMK[0], 0xFFFF); m64(sMK[1], 0xFFFF0000); m64(sMK[2], 0x0F000F000F000F00); m64(sMK[3], 0xF000F000F000F000)
    m64(sMK[4], 0x0F00); m64(sMK[5], 0xF0000000)
    m64(sBIT2, 0xF0F0F0F0F0F0F0F0); m64(sI8, 0x00FF00FF00FF00FF)
    m64(sG23, 0xFFFFFFFF00000000); m64(sG3, 0xFFFF000000000000); m64(sMK32, 0x00000000FFFFFFFF)
    if stamps:
        em.e(f"s_mov_b32 s{sTS+4}, 0"); em.e(f"s_mov_b32 s{sTS+5}, 0"); em.e(f"s_mov_b32 s{sTS+3}, {256 if MONO else 0}")
        em.e(f"s_sub_u32 s33, 0, s44")
        if opt.get("lst", 0) or MONO:
            em.e(f"s_cmp_eq_u32 s2, {opt.get('wg2', 0)}"); em.e(f"s_cselect_b32 s{sTS+4}, s33, 0"); em.e(f"s_mov_b32 s{sTS+5}, s{sTS+4}")
        if opt.get("rt"):
            em.e(f"s_mov_b32 s{sTS+4}, s33"); em.e(f"s_mov_b32 s{sTS+5}, 0"); em.e(f"s_lshl_b32 s{sTS+3}, s2, 7")
        elif not opt.get("lst", 0) and not MONO:
            em.e("s_cmp_eq_u32 s2, 0"); em.e(f"s_cselect_b32 s{sTS+4}, s33, 0")
            em.e(f"s_cmp_eq_u32 s2, {opt.get('wg2', 255)}"); em.e(f"s_cselect_b32 s{sTS+4}, s33, s{sTS+4}"); em.e(f"s_mov_b32 s34, {256 if MONO else 0}"); em.e(f"s_mov_b32 s35, {384 if MONO else 128}"); em.e(f"s_cselect_b32 s{sTS+3}, s35, s34")
    if not MONO:
        em.e(f"s_getreg_b32 {sMODE}, hwreg(HW_REG_XCC_ID)")
        em.e(f"s_and_b32 {sMODE}, {sMODE}, 0xffff"); em.e(f"s_add_u32 {sMODE}, {sMODE}, 1")
        em.e(f"v_mov_b32 v254, {sMODE}"); em.e("v_mov_b32 v255, 0")
        em.e(f"s_add_u32 s33, {sFOWN}, {FLG_XCC - FLG_G}")
        em.e(f"s_mov_b64 exec, {sFEX}")
        em.e(f"buffer_store_dword v254, v255, {S_WS}, s33 offen sc1")
        em.e("s_mov_b64 exec, -1")
    em.e("v_and_b32 v212, 15, v0"); em.e("v_lshrrev_b32 v213, 4, v0")
    em.e(f"v_add_u32 {vR1}, 0x10000, {vL16}"); em.e(f"v_add_u32 {vR2}, 0x20000, {vL16}"); em.e(f"v_add_u32 {vL16B}, 20480, {vL16}")
    em.e(f"v_lshlrev_b32 {vI4}, 2, v212"); em.e(f"v_add_u32 {vI4}, 0x20000, {vI4}")
    em.e(f"s_lshl_b32 s33, {sW}, 8")
    em.e(f"v_add_u32 {vI4W}, s33, {vI4}")
    em.e(f"v_lshlrev_b32 {vG16}, 4, v213"); em.e(f"v_add_u32 {vG16}, 0x20000, {vG16}"); em.e(f"v_add_u32 {vG16W}, s33, {vG16}")
    em.e("v_lshrrev_b32 v214, 5, v0"); em.e("v_bfe_u32 v215, v0, 4, 1")
    em.e("v_lshlrev_b32 v216, 8, v214"); em.e("v_lshlrev_b32 v217, 4, v212"); em.e("v_add_u32 v216, v216, v217")
    em.e(f"v_mul_u32_u24 v217, 20480, v215"); em.e(f"v_add_u32 {vX3}, v216, v217")
    em.e(f"v_mul_u32_u24 v217, {54*1024}, v215"); em.e(f"v_add_u32 {vA3}, v216, v217")
    em.e(f"v_lshlrev_b32 {vH16}, 4, v214"); em.e(f"v_add_u32 {vH16}, 0x20000, {vH16}")
    em.e(f"v_lshlrev_b32 {vL8}, 3, v0"); em.e(f"v_add_u32 {vL8}, 0x20000, {vL8}")
    em.e(f"v_lshlrev_b32 {vSTO}, 8, v213"); em.e("v_lshlrev_b32 v214, 3, v212"); em.e(f"v_add_u32 {vSTO}, {vSTO}, v214")
    em.e(f"s_mul_i32 s33, {sM}, 3"); em.e("v_lshrrev_b32 v214, 5, v0"); em.e("v_add_u32 v214, s33, v214")
    em.e("v_lshrrev_b32 v215, 3, v214"); em.e("v_add_u32 v215, 48, v215"); em.e("v_lshlrev_b32 v215, 10, v215")
    em.e("v_and_b32 v216, 3, v214"); em.e("v_lshlrev_b32 v216, 8, v216"); em.e("v_add_u32 v215, v215, v216")
    em.e("v_lshlrev_b32 v216, 4, v212"); em.e("v_add_u32 v215, v215, v216")
    em.e("v_bfe_u32 v216, v214, 2, 1"); em.e("v_lshlrev_b32 v216, 3, v216"); em.e(f"v_add_u32 v215, v215, v216")
    em.e("v_bfe_u32 v216, v0, 4, 1"); em.e(f"v_mul_u32_u24 v216, {54*1024}, v216"); em.e(f"v_add_u32 {vACT6}, v215, v216")
    em.e(f"s_lshr_b32 s33, {sM}, 2"); em.e("s_add_u32 s33, s33, 16"); em.e("s_lshl_b32 s33, s33, 10")
    em.e(f"s_and_b32 s34, {sM}, 1"); em.e("s_lshl_b32 s34, s34, 9"); em.e("s_add_u32 s33, s33, s34")
    em.e(f"s_bfe_u32 s34, {sM}, 0x10001"); em.e("s_lshl_b32 s34, s34, 3"); em.e("s_add_u32 s33, s33, s34")
    em.e("s_sub_u32 s33, s33, 512")
    em.e("v_lshlrev_b32 v215, 8, v213"); em.e("v_lshlrev_b32 v216, 4, v212"); em.e("v_add_u32 v215, v215, v216")
    em.e(f"v_add_u32 {vOREM}, s33, v215")
    em.e("v_mul_u32_u24 v215, 1280, v212"); em.e("v_lshlrev_b32 v216, 3, v213"); em.e(f"v_add_u32 {vOUT}, v215, v216")
    if MONO:
        em.e(f"s_cmp_lg_u32 {sW}, 0"); em.e("s_cbranch_scc1 Lm_sb_o")
        em.e("v_lshlrev_b32 v252, 2, v0")
        em.e(f"s_mov_b32 {sSPIN}, 0")
        em.label("Lm_sb_p")
        em.e("global_load_dword v253, v252, s[82:83] sc1")
        em.raw("    s_waitcnt vmcnt(0)")
        em.e("v_and_b32 v254, 0x80808080, v253")
        em.e("v_cmp_ne_u32 vcc, 0x80808080, v254")
        em.e(f"s_add_u32 {sSPIN}, {sSPIN}, 1")
        em.e(f"s_cmp_gt_u32 {sSPIN}, 200000")
        em.e("s_cbranch_scc1 Lm_sb_x")
        em.e("s_cbranch_vccnz Lm_sb_p")
        em.label("Lm_sb_x")
        em.e("s_and_b32 s33, s2, 3"); em.e("s_lshl_b32 s33, s33, 3")
        em.e("v_lshrrev_b32 v253, s33, v253"); em.e("v_and_b32 v253, 0xff, v253")
        em.e(f"v_cmp_ne_u32 vcc, {sMODE}, v253")
        em.e("s_bfe_u32 s33, s2, 0x20002"); em.e("s_mov_b32 s34, 0x11111111"); em.e("s_lshl_b32 s34, s34, s33"); em.e("s_mov_b32 s35, s34")
        em.e("s_and_b64 vcc, vcc, s[34:35]")
        em.e("s_cmp_lg_u64 vcc, 0"); em.e("s_cselect_b32 s33, 1, 0")
        if opt.get("force_slow", 0): em.e("s_mov_b32 s33, 1")
        em.e("v_mov_b32 v253, s33"); em.e(f"v_mov_b32 v252, {MISC + 12288}")
        em.e("ds_write_b32 v252, v253")
        em.raw("    s_waitcnt lgkmcnt(0)")
        em.label("Lm_sb_o")
        em.e("s_barrier")
        em.e(f"v_mov_b32 v252, {MISC + 12288}")
        em.e("ds_read_b32 v253, v252")
        ring.emit(em, upto=2)
        em.raw("    s_waitcnt lgkmcnt(0)")
        em.e(f"v_readfirstlane_b32 {sMODE}, v253")
        if opt.get("sst"):
            em.e("s_memrealtime s[76:77]"); em.raw("    s_waitcnt lgkmcnt(0)")
            em.e("v_mov_b32 v236, s101"); em.e("v_mov_b32 v237, s100"); em.e("v_mov_b32 v238, s76"); em.e("v_mov_b32 v239, 0")
            em.e("s_lshl_b32 s33, s2, 4"); em.e("s_add_u32 s33, s33, 0x3000000"); em.e("v_mov_b32 v240, s33")
            em.e("s_mov_b64 exec, 1"); em.e("global_store_dwordx4 v240, v[236:239], s[4:5]"); em.e("s_mov_b64 exec, -1")
        if stamps:
            em.e("s_memtime s[76:77]"); em.raw("    s_waitcnt lgkmcnt(0)"); em.e("s_sub_u32 s97, s76, s92")
    pls()
    em.e(f"s_mul_i32 s33, {sM}, 512"); em.e(f"s_add_u32 s33, s33, {CS1}")
    em.e(f"s_mul_i32 s34, {sM}, 896"); em.e(f"s_add_u32 s34, s34, {CS3}")
    em.e("v_and_b32 v214, 31, v0"); em.e("v_lshlrev_b32 v214, 4, v214"); em.e("v_lshrrev_b32 v215, 5, v0")
    em.e("v_mul_u32_u24 v215, 81920, v215"); em.e("v_add_u32 v214, v214, v215"); em.e("v_add_u32 v214, s33, v214")
    em.e(f"v_add_u32 v215, s34, {vL16}")
    em.e("v_mov_b32 v216, 0x7ffffff0")
    em.e("v_cmp_gt_u32 vcc, 56, v0"); em.e("v_cndmask_b32 v215, v216, v215, vcc")
    em.e(f"s_cmp_eq_u32 {sW}, 0"); em.e("s_mov_b32 s36, 14336"); em.e("s_cselect_b32 s36, 8192, s36"); em.e("s_cselect_b64 vcc, -1, 0")
    em.e("v_cndmask_b32 v214, v215, v214, vcc")
    em.e(f"s_cmp_ge_u32 {sW}, 2"); em.e("s_cselect_b64 vcc, -1, 0")
    em.e("v_cndmask_b32 v214, v214, v216, vcc")
    for k in range(10):
        em.e(f"buffer_load_dwordx4 v[{CSVB+4*k}:{CSVB+4*k+3}], v214, {S_WS}, 0 offen", vm="cs")
        if k < 9: em.e("v_add_u32 v214, s36, v214")
    RL = RLB
    em.e(f"s_lshr_b32 s33, {sC8}, 1"); em.e("s_mul_i32 s33, s33, 5")
    em.e(f"s_lshl_b32 s34, {sODD}, 1"); em.e("s_add_u32 s34, s34, s33")
    em.e(f"s_mul_i32 s35, {sTT1}, 20480"); em.e(f"s_add_u32 s35, s35, {XB}")
    em.e("s_lshl_b32 s34, s34, 10"); em.e("s_add_u32 s34, s34, s35")
    em.e(f"buffer_load_dwordx4 v[{RL}:{RL+3}], {vL16}, {S_WS}, s34 offen", vm="res")
    em.e(f"buffer_load_dwordx4 v[{RL+4}:{RL+7}], {vL16}, {S_WS}, s34 offen offset:1024", vm="res")
    em.e("s_add_u32 s33, s33, 4"); em.e("s_lshl_b32 s33, s33, 10"); em.e("s_add_u32 s33, s33, s35")
    em.e(f"s_lshl_b32 s34, {sODD}, 3"); em.e("s_add_u32 s33, s33, s34")
    em.e(f"buffer_load_dwordx2 v[{RL+8}:{RL+9}], {vL16}, {S_WS}, s33 offen", vm="res")

    def poll(line, target_expr_sreg, lbl):
        em.e(f"s_mov_b32 {sSPIN}, 0")
        em.e(f"v_subrev_u32 v252, 0x20000, {vI4}")
        em.label(lbl)
        em.e(f"buffer_load_dword v253, v252, {S_WS}, {line} offen sc1")
        em.raw("    s_waitcnt vmcnt(0)")
        em.e(f"v_cmp_gt_u32 vcc, {target_expr_sreg}, v253")
        em.e(f"s_add_u32 {sSPIN}, {sSPIN}, 1")
        em.e(f"s_cmp_gt_u32 {sSPIN}, 20000")
        em.e(f"s_cbranch_scc1 {lbl}_x")
        em.e(f"s_cbranch_vccnz {lbl}")
        em.label(lbl + "_x")
    uid = [0]
    def flag_store(own, val_sreg):
        em.e(f"v_mov_b32 v254, {val_sreg}")
        em.e("v_mov_b32 v255, 0")
        em.e(f"s_mov_b64 exec, {sFEX}")
        em.e(f"buffer_store_dword v254, v255, {S_WS}, {own} offen{cur['STO']}")
        em.e("s_mov_b64 exec, -1")
    def transition(pub, wait, last_round, sttags, need, d1, d2, upto2=None, defer0=False):
        uid[0] += 1; u = uid[0]
        if defer0:
            class Rec:
                def __init__(s_): s_.ops = []
                def op(s_, o): s_.ops.append(o)
            c1 = Rec(); ring.emit(c1, d1, upto=upto2)
            em.e(f"s_cmp_lg_u32 {sW}, 0"); em.e(f"s_cbranch_scc1 Lt{u}_a")
            vm0 = list(em.vm)
            em.wait(wvm=sttags)
            em.e(f"s_branch Lt{u}_b")
            em.label(f"Lt{u}_a")
            em.vm = vm0
            for o in c1.ops: em.op(o)
            em.wait(wvm=sttags)
            em.label(f"Lt{u}_b")
            em.e("s_barrier")
            ring.allowed = max(ring.allowed, last_round + NR)
            em.e(f"s_add_u32 {sT0}, {sSTEP}, {pub}")
            flag_store(sFOWN, sT0)
            c2 = Rec(); ring.emit(c2, d2, upto=upto2); ring.emit(c2, upto=need)
            assert ring.issued >= need
            em.e(f"s_cmp_lg_u32 {sW}, 0")
            em.e(f"s_cbranch_scc1 Lt{u}_c")
            em.e(f"s_add_u32 {sT0}, {sSTEP}, {wait}")
            poll(sFLINE, sT0, f"Lt{u}_p")
            for o in c1.ops + c2.ops: em.raw("    " + o.text)
            em.e(f"s_branch Lt{u}_o")
            em.label(f"Lt{u}_c")
            for o in c2.ops: em.op(o)
            em.label(f"Lt{u}_o")
            em.wait(wvm=[("dma", x) for x in range(ring.filled + 1, need + 1)])
            ring.filled = max(ring.filled, need)
            em.e("s_barrier")
            return
        ring.emit(em, d1, upto=upto2)
        em.wait(wvm=sttags)
        em.e("s_barrier")
        ring.allowed = max(ring.allowed, last_round + NR)
        em.e(f"s_add_u32 {sT0}, {sSTEP}, {pub}")
        flag_store(sFOWN, sT0)
        ring.emit(em, d2, upto=upto2)
        ring.emit(em, upto=need)
        assert ring.issued >= need
        em.e(f"s_cmp_lg_u32 {sW}, 0")
        em.e(f"s_cbranch_scc1 Lt{u}_o")
        em.e(f"s_add_u32 {sT0}, {sSTEP}, {wait}")
        poll(sFLINE, sT0, f"Lt{u}_p")
        em.label(f"Lt{u}_o")
        em.wait(wvm=[("dma", x) for x in range(ring.filled + 1, need + 1)], wlg=[("dmal", x) for x in range(ring.filled + 1, need + 1)])
        ring.filled = max(ring.filled, need)
        em.e("s_barrier")

    def a_loads(n_tiles, nblk, ph, tagname, areg, m32=False):
        ops = []
        sR, rset = ROTREG[ph]
        rot = opt.get("rot", 0)
        for b in range(nblk):
            if b == 0 and rot:
                ops += [Op(f"s_lshl_b32 {sRT}, {sR}, 10"), Op(f"s_add_u32 {sA}, {sA}, {sRT}")]
            if b % 4 == 0 and b > 0:
                ops.append(Op(f"s_add_u32 {sA}, {sA}, 4096"))
                if rot and (nblk - b) in rset:
                    ops += [Op(f"s_cmp_eq_u32 {sR}, {nblk - b}"), Op(f"s_cselect_b32 {sRT}, {nblk*1024}, 0"), Op(f"s_sub_u32 {sA}, {sA}, {sRT}")]
            for t in range(n_tiles):
                r = areg(b, t)
                va = vL16 if t == 0 else vL16B
                off = (b % 4) * 1024
                if m32: va = vX3; off += 512 * t
                ops.append(Op(f"buffer_load_dwordx4 a[{r}:{r+3}], {va}, {S_WS}, {sA} offen offset:{off}{cur['LD']}", vm=(tagname, b, t)))
        return ops

    def a_jobs(al, dl):
        jobs = []; pend = []
        for o in al:
            pend.append(o)
            if o.vm is not None:
                jobs.append((pend, dl(o.vm[1]))); pend = []
        return jobs
    def stats_ops(base):
        ops = []
        for t in range(2):
            a = base + 4 * t; nm = base + 8 + 2 * t; rs = nm + 1; x = base + 12; y = base + 13
            ops.append(Op(f"v_add_f32 v{a}, v{a}, v{a+2}", wvm=[("st", t)]))
            ops.append(f"v_add_f32 v{a+1}, v{a+1}, v{a+3}")
            for sw in ("v_permlane32_swap_b32", "v_permlane16_swap_b32"):
                ops.append(f"v_mov_b32 v{x}, v{a}"); ops.append(f"v_mov_b32 v{y}, v{a+1}")
                ops.append(f"{sw} v{a}, v{x}"); ops.append(f"{sw} v{a+1}, v{y}")
                ops.append(f"v_add_f32 v{a}, v{a}, v{x}"); ops.append(f"v_add_f32 v{a+1}, v{a+1}, v{y}")
            ops.append(f"v_mul_f32 v{nm}, {hex(INV640 | 0x80000000)}, v{a}")
            ops.append(f"v_mul_f32 v{a+1}, {hex(INV640)}, v{a+1}")
            ops.append(f"v_fma_f32 v{a+1}, -v{nm}, v{nm}, v{a+1}")
            ops.append(f"v_max_f32 v{a+1}, 0, v{a+1}")
            ops.append(f"v_add_f32 v{a+1}, {hex(EPS5)}, v{a+1}")
            ops.append((Op(f"v_rsq_f32 v{rs}, v{a+1}"), 2))
        return ops
    def stats_loads(base):
        ops = []
        ops.append(Op(f"s_mul_i32 {sST}, {sXI}, {ST_SZ}"))
        ops.append(Op(f"s_lshl_b32 {sST2}, {sTT2}, 10"))
        ops.append(Op(f"s_add_u32 {sST}, {sST}, {sST2}"))
        ops.append(Op(f"s_add_u32 {sST}, {sST}, {ST}"))
        for t in range(2):
            a = base + 4 * t
            ops.append(Op(f"buffer_load_dwordx2 v[{a}:{a+1}], {vSTO}, {S_WS}, {sST} offen offset:{t*1024}{cur['LD']}", vm=("st", t)))
            ops.append(Op(f"buffer_load_dwordx2 v[{a+2}:{a+3}], {vSTO}, {S_WS}, {sST} offen offset:{t*1024+128}{cur['LD']}", vm=("st", t)))
        return ops
    def set_sA_x():
        em.e(f"s_mul_i32 {sA}, {sXI}, {X_SZ}"); em.e(f"s_mul_i32 {sT0}, {sTT2}, 20480")
        em.e(f"s_add_u32 {sA}, {sA}, {sT0}"); em.e(f"s_add_u32 {sA}, {sA}, {XB}")

    def phi_ops(acc, cs, nm, rs, rl, t1, t2):
        return [f"v_fmac_f32 v{acc}, v{nm}, v{cs}",
                f"v_mul_f32 v{t1}, v{acc}, v{rl}",
                (Op(f"v_exp_f32 v{t1}, v{t1} clamp"), 2),
                f"v_max_f32 v{acc}, 0, v{acc}",
                f"v_add_f32 v{t1}, {hex(EPS6)}, v{t1}",
                f"v_fma_f32 v{acc}, v{acc}, v{rs}, v{t1}"]
    def il(lists):
        out = []; k = 0
        while any(k < len(l) for l in lists):
            for l in lists:
                if k < len(l): out.append(l[k])
            k += 1
        return out
    def lin(ops):
        for o in ops:
            if isinstance(o, tuple): o = o[0]
            em.op(o)

    def reuse(): return cur["sfx"] == "F" and opt.get("reuse", 1)
    def LB(): return "0" if reuse() else sLAYER
    def pt(voff, srd, soff, imm=0):
        sc = {0: "", 1: " sc1", 2: " sc0", 3: " nt", 4: " sc0 sc1"}[opt.get("ptsc", 0)]
        if voff is None: return Op(f"buffer_load_dword {PTD}, off, {srd}, {soff} offset:{imm}{sc}", vm="pt")
        return Op(f"buffer_load_dword {PTD}, {voff}, {srd}, {soff} offen offset:{imm}{sc}", vm="pt")
    PTM = opt.get("ptm", 1); PTK = opt.get("ptk", 31)
    def PS(): return S_WSN if PTM == 2 else S_WS
    def pt_x(srd):
        return [f"s_mov_b32 {sP0}, 1" if reuse() else f"s_add_u32 {sP0}, {sXI}, 1", f"s_mul_i32 {sP1}, {sP0}, {X_SZ}", f"s_add_u32 {sP1}, {sP1}, {sXOFF}",
                pt(vL16, srd, sP1), pt(vL16, srd, sP1, 1024),
                f"s_add_u32 {sP1}, {sP1}, {sXREM}", pt(vL16, srd, sP1),
                f"s_mul_i32 {sP0}, {sP0}, {ST_SZ}", f"s_add_u32 {sP0}, {sP0}, {sSTOFF}", pt(None, srd, sP0)]
    def pt_act(p):
        ops = [f"s_mul_i32 {sP0}, {LB()}, {ACT_SZ}", f"s_add_u32 {sP0}, {sP0}, {sAOFF}"]
        if p < 3:
            ops += [f"s_lshl_b32 {sP1}, {sM}, 10", f"s_add_u32 {sP0}, {sP0}, {sP1}"]
            if p: ops.append(f"s_add_u32 {sP0}, {sP0}, {p*16384}")
            ops += [pt(vL16, PS(), sP0), f"s_add_u32 {sP0}, {sP0}, {54*1024}", pt(vL16, PS(), sP0)]
        else:
            ops += [pt(vACT6, PS(), sP0)]
        return ops
    def pt_o():
        return [f"s_mul_i32 {sP0}, {LB()}, {O_SZ}", f"s_add_u32 {sP0}, {sP0}, {sOOFF}",
                pt(vOREM, PS(), sP0), f"s_add_u32 {sP0}, {sP0}, 20480", pt(vOREM, PS(), sP0),
                f"s_lshl_b32 {sP1}, {sM}, 10", f"s_add_u32 {sP0}, {sP0}, {sP1}", pt(vL16, PS(), sP0), f"s_sub_u32 {sP0}, {sP0}, 20480", pt(vL16, PS(), sP0)]
    def pt_place(seg, ops, g):
        if cur["sfx"] != "F" or not opt.get("pt", 1): return g
        for o in ops:
            if isinstance(o, list): g = seg.group(o, g, maxcost=seg.cap - 1)
            else: g = seg.place(o, g)
        return g
    def pt_jobs(ops, earliest, dl):
        if cur["sfx"] != "F" or not opt.get("pt", 1): return []
        jobs = []; pend = []
        for o in ops:
            if isinstance(o, list):
                jobs.append((pend + [x if isinstance(x, Op) else Op(x) for x in o], dl, earliest)); pend = []
            elif isinstance(o, Op) and o.vm is not None:
                jobs.append((pend + [o], dl, earliest)); pend = []
            else: pend.append(o if isinstance(o, Op) else Op(o))
        assert not pend
        return jobs
    pfk = [0]
    def pf3(n, skip0):
        if cur["sfx"] != "F" or not n: return 0
        em.e(f"v_lshlrev_b32 v251, 3, {vL16}")
        em.e(f"s_and_b32 {sP1}, {sG}, 1"); em.e(f"s_lshl_b32 {sP1}, {sP1}, 15"); em.e(f"s_add_u32 {sP1}, {sP1}, {sPW3}"); em.e(f"s_add_u32 {sP1}, {sP1}, {sW4K}")
        uid[0] += 1; u = uid[0]
        if skip0:
            em.e(f"s_cmp_lg_u32 {sW}, 0"); em.e(f"s_cbranch_scc1 Lpf{u}_a")
            em.raw("    s_waitcnt vmcnt(0)")
            em.e(f"s_branch Lpf{u}_b")
            em.label(f"Lpf{u}_a")
        for k in range(n):
            em.e(f"s_add_u32 {sP0}, {sP1}, {opt.get('pfo', 32768) + 65536 * pfk[0]}"); pfk[0] += 1
            em.e(f"buffer_load_dword {PTD}, v251, {S_WS}, {sP0} offen", vm="pt")
        if skip0: em.label(f"Lpf{u}_b")
        return n
    def pf_place(seg, ph, off, key, nxt=False): pass
    def pf_now(ph, off, key, nxt=False): pass
    def prologue_end():
        if opt.get("xh", 1) and not MONO:
            em.e(f"s_add_u32 s33, {sFLINE}, {FLG_XCC - FLG_G}")
            em.e(f"v_subrev_u32 v252, 0x20000, {vI4}")
            em.e(f"buffer_load_dword v251, v252, {S_WS}, s33 offen sc1")
        if PEEL: return
        if PTM == 3 and opt.get("ptpos", 0) == 0: pt_all()
        ring.emit(em, upto=HEAD)
        if PTM == 3 and opt.get("ptpos", 0) == 1: pt_all()
        assert ring.issued == HEAD and not ring.q
    def pt_all():
        ops = (pt_o() if PTK & 1 else []) + (pt_x(S_WS) if PTK & 2 else []) + (pt_act(0) if PTK & 4 else [])
        if PTK & 8: ops += pt_act(1) + pt_act(2) + pt_act(3)
        for o in ops: em.op(o if isinstance(o, Op) else Op(o))
    join_state = [None]
    def K1_p1(peel):
        AX = lambda b, t: 80 * t + 4 * b
        SB = TMP
        NM4 = 226
        P1 = ACC
        nh = PBLK[PA - 1] if peel else AH
        if not nh: set_sA_x()
        seg = Seg(); ws = WStream(ring, seg, "K1", SS=(opt.get("pss", SS) if peel else SS))
        fu = {}; lu = {}
        for b in range(20):
            for t in range(5):
                f = b * 5 + t; wr = ws.wreg(f)
                for tok in range(2):
                    d = P1 + 8 * t + 4 * tok
                    c = "0" if b == 0 else f"v[{d}:{d+3}]"
                    wl = [("w", "K1", b * 5 + 4)] if (t == 0 and tok == 0) else None
                    wv = [("a", b, 1)] if (t == 0 and tok == 0) else None
                    i = seg.mfma(f"v_mfma_f32_16x16x32_bf16 v[{d}:{d+3}], a[{AX(b,tok)}:{AX(b,tok)+3}], v[{wr}:{wr+3}], {c}", wvm=wv, wlg=wl)
                    if t == 0 and tok == 0: g0 = i
                    fu.setdefault(f, g0); lu[f] = i
        if peel: cur["LD"] = ""
        al = a_loads(2, 20, "K1", "a", AX)
        sl = stats_loads(SB)
        for o in sl: seg.put(0, o, 0)
        ws.reads(list(range(100)), fu, lu, force=(6,))
        if peel:
            ws.vmem(a_jobs(al, lambda b: 10 * b - opt.get("pal", 60))[2 * nh:], lambda r: (0 if r <= 6 else opt.get("p7", 0)) if r <= P1J else None, margin=opt.get("pmarg", MARG), qd=opt.get("pqd", QD), rate=opt.get("pr1", 38) / 10.0)
        else:
            ws.vmem(a_jobs(al, lambda b: 10 * b - 30)[2 * nh:], lambda r: 0 if r <= 6 else (opt.get("k1w", 0) if r <= P1J or not PEEL else None), margin=MARG, qd=QD, rate=opt.get("r1", 38) / 10.0)
        so = stats_ops(SB)
        for t in range(2):
            nm = SB + 8 + 2 * t
            so.append(Op(f"ds_write_b32 {vI4W}, v{nm} offset:{L_STAT + t*128}", lg="sw"))
            so.append(Op(f"ds_write_b32 {vI4W}, v{nm+1} offset:{L_STAT + t*128 + 64}", lg="sw"))
        for t in range(2):
            so.append(Op(f"ds_read_b128 v[{NM4+8*t}:{NM4+8*t+3}], {vG16W} offset:{L_STAT + t*128}", lg="sr", wlg=["sw"]))
            so.append(Op(f"ds_read_b128 v[{NM4+8*t+4}:{NM4+8*t+7}], {vG16W} offset:{L_STAT + t*128 + 64}", lg="sr"))
        for t in range(2):
            for r in range(4):
                so.append(Op(f"v_mul_f32 v{242+4*t+r}, {hex(LOG2E)}, v{NM4+8*t+4+r}", wlg=["sr"]))
        seg.stream(so, opt.get("pst0", 100) if peel else 40)
        if peel and opt.get("pcs", 0):
            co = []
            for k in range(1, 10):
                for q in range(4): co.append(Op(f"v_add_f32 v{CSVB+q}, v{CSVB+q}, v{CSVB+4*k+q}", wvm=["cs"] if (k == 1 and q == 0) else None))
            for q in range(4):
                co.append(f"v_mov_b32 v{CSVB+4+q}, v{CSVB+q}"); co.append(f"v_mov_b32 v{CSVB+8+q}, v{CSVB+q}")
            for q in range(4): co.append(f"v_permlane32_swap_b32 v{CSVB+4+q}, v{CSVB+8+q}")
            g = seg.stream(co, opt["pcs"], cap=4); co = []
            g = seg.group([Op(f"s_cmp_eq_u32 {sW}, 0"), Op("s_cselect_b64 vcc, -1, 0")], g, maxcost=10)
            for q in range(4):
                co.append(f"v_add_f32 v{CSVB+4+q}, v{CSVB+4+q}, v{CSVB+8+q}")
                co.append(f"v_cndmask_b32 v{CSVB+q}, v{CSVB+q}, v{CSVB+4+q}, vcc")
            for q in range(10):
                co.append(Op(f"v_lshlrev_b32 v{RES+2*q}, 16, v{RLB+q}", wvm=["res"] if q == 0 else None))
                co.append(f"v_and_b32 v{RES+2*q+1}, 0xffff0000, v{RLB+q}")
            g = seg.stream(co, g, cap=4)
            grp = [f"s_cmp_eq_u32 {sW}, 0", f"s_mov_b32 {sT0}, {L_CS3}", f"s_cselect_b32 {sT0}, {L_CS1}, {sT0}", f"s_cselect_b32 {sT1}, 32, 56",
                   f"s_cmp_ge_u32 {sW}, 2", f"s_cselect_b32 {sT1}, 0, {sT1}", f"v_add_u32 v254, {sT0}, {vR2}", f"v_lshrrev_b32 v255, 4, {vL16}",
                   f"v_cmp_gt_u32 vcc, {sT1}, v255", "s_and_saveexec_b64 s[34:35], vcc", Op(f"ds_write_b128 v254, v[{CSVB}:{CSVB+3}]", lg="csw"), "s_mov_b64 exec, s[34:35]"]
            g = seg.group([o if isinstance(o, Op) else Op(o) for o in grp], g + 1, maxcost=10)
            gl = ws.events[-1][0]
            assert g < gl, (g, gl)
            nb = 0
            for o in seg.gaps[gl]:
                if o.text == "s_barrier": o.wlg = list(o.wlg or []) + ["csw"]; nb += 1
            assert nb == 1
        for g in ((1, 50, 100, 150) if not opt.get('ls2') else range(1, 200, 20)): lstamp(seg, g)
        seg.emit(em)
        if PEEL: ring.emit(em, upto=P1J)
        sys.stderr.write(f"p1 end: issued {ring.issued} q {len(ring.q)} filled {ring.filled} allowed {ring.allowed} vm {em.vm} ev {ws.events}\n")
        return ws
    def K1_first(peel):
        if peel and opt.get("pcs", 0): K1_sel(peel); return
        for k in range(1, 10):
            for q in range(4): em.e(f"v_add_f32 v{CSVB+q}, v{CSVB+q}, v{CSVB+4*k+q}")
        for q in range(4):
            em.e(f"v_mov_b32 v{CSVB+4+q}, v{CSVB+q}"); em.e(f"v_mov_b32 v{CSVB+8+q}, v{CSVB+q}")
        for q in range(4):
            em.e(f"v_permlane32_swap_b32 v{CSVB+4+q}, v{CSVB+8+q}")
        em.e(f"s_cmp_eq_u32 {sW}, 0"); em.e("s_cselect_b64 vcc, -1, 0")
        for q in range(4):
            em.e(f"v_add_f32 v{CSVB+4+q}, v{CSVB+4+q}, v{CSVB+8+q}")
            em.e(f"v_cndmask_b32 v{CSVB+q}, v{CSVB+q}, v{CSVB+4+q}, vcc")
        em.e(f"s_cmp_eq_u32 {sW}, 0"); em.e(f"s_mov_b32 {sT0}, {L_CS3}"); em.e(f"s_cselect_b32 {sT0}, {L_CS1}, {sT0}"); em.e(f"s_cselect_b32 {sT1}, 32, 56")
        em.e(f"s_cmp_ge_u32 {sW}, 2"); em.e(f"s_cselect_b32 {sT1}, 0, {sT1}")
        em.e(f"v_add_u32 v254, {sT0}, {vR2}")
        em.e(f"v_lshrrev_b32 v255, 4, {vL16}")
        em.e(f"v_cmp_gt_u32 vcc, {sT1}, v255")
        em.e("s_and_saveexec_b64 s[34:35], vcc")
        em.e(f"ds_write_b128 v254, v[{CSVB}:{CSVB+3}]")
        em.e("s_mov_b64 exec, s[34:35]")
        for q in range(10):
            em.e(f"v_lshlrev_b32 v{RES+2*q}, 16, v{RLB+q}")
            em.e(f"v_and_b32 v{RES+2*q+1}, 0xffff0000, v{RLB+q}")
        em.raw("    s_waitcnt lgkmcnt(0)")
        em.e("s_barrier")
        K1_sel(peel)
    def K1_sel(peel):
        if cur["sfx"] == "F" and not MONO:
            uid[0] += 1; u = uid[0]
            em.e(f"s_add_u32 {sT1}, {sFLINE}, {FLG_XCC - FLG_G}")
            if opt.get("xh", 1):
                em.e(f"v_mov_b32 v253, v251")
                em.e(f"v_cmp_gt_u32 vcc, 1, v253")
                em.e(f"s_cbranch_vccz Lx{u}_p_x")
            poll(sT1, "1", f"Lx{u}_p")
            em.e(f"v_cmp_ne_u32 vcc, {sMODE}, v253")
            if opt.get("force_slow", 0): em.e("s_branch Lk1_nocsS")
            em.e("s_cbranch_vccnz Lk1_nocsS")
        if peel: em.e("s_branch Lk1_nocsF")
    def K1():
        AX = lambda b, t: 80 * t + 4 * b
        SB = TMP; NM4 = 226; P1 = ACC
        ws = K1_p1(False)
        stamp()
        svm = list(em.vm)
        if PEEL:
            svm = [t for t in svm if isinstance(t, tuple) and t[0] == "dma"]
            js = join_state[0]
            assert (ring.issued, ring.filled, ring.allowed, WStream.cnt) == (js[0], js[1], js[2], js[4]), ((ring.issued, ring.filled, ring.allowed, WStream.cnt), js)
            na, nb_ = len(svm), len(js[3])
            if na <= nb_: assert js[3][nb_ - na:] == svm; svm = list(js[3])
            else: assert svm[na - nb_:] == js[3]
        else:
            em.e(f"s_cmp_lg_u32 {sLAYER}, 0"); em.e(f"s_cbranch_scc1 Lk1_nocs{cur['sfx']}")
            K1_first(False)
        em.label(f"Lk1_nocs{cur['sfx']}")
        em.vm = svm; em.lg = []
        em.raw("    s_waitcnt lgkmcnt(0)")
        if not opt.get('k1n', 1):
            CS = 140
            for t in range(5):
                em.e(f"ds_read_b32 v{CS+t}, {vI4} offset:{L_CS1 + t*64}", lg="cs")
            KF = 148
            T1, T2 = 172, 173
            def nmr(tok, r): return NM4 + 8 * tok + r
            def rsr(tok, r): return NM4 + 8 * tok + 4 + r
            def rlr(tok, r): return 242 + 4 * tok + r
            em.wait(wlg=["cs"])
            XV = 176
            ops = []
            streams = []
            tmpc = [180]
            for (t, fr_) in ((0, KF), (1, KF + 4), (4, KF + 16)):
                for tok in range(2):
                    for r in range(4):
                        a = P1 + 8 * t + 4 * tok + r
                        tt = 184 + (len(streams) % 8)
                        if t == 4:
                            s_ = [f"v_fmac_f32 v{a}, v{nmr(tok,r)}, v{CS+t}",
                                  f"v_mul_f32 v{XV+4*tok+r}, v{a}, v{rsr(tok,r)}",
                                  f"v_mul_f32 v{tt}, v{a}, v{rlr(tok,r)}",
                                  f"v_exp_f32 v{tt}, v{tt} clamp",
                                  f"v_max_f32 v{a}, 0, v{a}",
                                  f"v_add_f32 v{tt}, {hex(EPS6)}, v{tt}",
                                  f"v_fma_f32 v{a}, v{a}, v{rsr(tok,r)}, v{tt}"]
                        else:
                            s_ = [x[0] if isinstance(x, tuple) else x for x in phi_ops(a, CS + t, nmr(tok, r), rsr(tok, r), rlr(tok, r), tt, None)]
                        streams.append(s_)
            for k in range(0, len(streams), 4):
                lin(il(streams[k:k + 4]))
                ring.emit(em, 4)
            for t in (2, 3):
                for tok in range(2):
                    for r in range(4):
                        a = P1 + 8 * t + 4 * tok + r
                        em.e(f"v_fmac_f32 v{a}, v{nmr(tok,r)}, v{CS+t}")
                    for r in range(4):
                        a = P1 + 8 * t + 4 * tok + r
                        em.e(f"v_mul_f32 v{a}, v{a}, v{rsr(tok,r)}")
            for k in range(8):
                em.e(f"v_cndmask_b32 v{XV+k}, v{XV+k}, 1.0, {sI8}")
            def pack(dst, src_tok0, src_tok1):
                em.e(f"v_cvt_pk_bf16_f32 v{dst}, v{src_tok0}, v{src_tok0+1}"); em.e(f"v_cvt_pk_bf16_f32 v{dst+1}, v{src_tok0+2}, v{src_tok0+3}")
                em.e(f"v_cvt_pk_bf16_f32 v{dst+2}, v{src_tok1}, v{src_tok1+1}"); em.e(f"v_cvt_pk_bf16_f32 v{dst+3}, v{src_tok1+2}, v{src_tok1+3}")
            K0f, K1f, V0f, V1f, XKf, XPf = KF, KF + 4, KF + 8, KF + 12, KF + 16, KF + 20
            pack(K0f, P1 + 0, P1 + 4); pack(K1f, P1 + 8, P1 + 12); pack(V0f, P1 + 16, P1 + 20); pack(V1f, P1 + 24, P1 + 28)
            pack(XKf, P1 + 32, P1 + 36); pack(XPf, XV, XV + 4)
            D = 184
            for k, (A_, B_) in enumerate([(K0f, V0f), (K1f, V1f), (XKf, V0f), (XKf, V1f), (K0f, XPf), (K1f, XPf), (XKf, XPf)]):
                em.e(f"v_mfma_f32_16x16x32_bf16 v[{D+4*k}:{D+4*k+3}], v[{A_}:{A_+3}], v[{B_}:{B_+3}], 0")
            D1, D2, D3, D4, D5, D6, D7 = [D + 4 * k for k in range(7)]
            for r in range(4):
                em.e(f"v_cndmask_b32 v{D5+r}, v{D5+r}, v{D6+r}, {sBIT2}")
                em.e(f"v_cndmask_b32 v{D3+r}, v{D3+r}, v{D4+r}, {sMK[1]}")
            for r in range(4):
                em.e(f"v_permlane32_swap_b32 v{D3+r}, v{D7+r}")
            ring.emit(em, upto=13)
            assert ring.issued <= 13 and ring.next_round() <= 14 and not ring.q and ws.lastbar >= 6, (ring.issued, ws.lastbar)
            RP = (14 % NR) * 16384 - 65536
            em.e(f"v_add_u32 v254, {sW1K}, {vR1}"); em.e(f"v_add_u32 v255, {sW4K}, {vR1}")
            for t, src in enumerate((D1, D2, D5, D3)):
                em.e(f"ds_write_b128 v254, v[{src}:{src+3}] offset:{RP + t*4096}", lg="red")
            em.wait_all_lg()
            em.wait(wvm=[("dma", x) for x in range(ring.filled + 1, 9)])
            ring.filled = 8
            em.e("s_barrier")
            for k in range(4):
                em.e(f"ds_read_b128 v[{D+4*k}:{D+4*k+3}], v255 offset:{RP + k*1024}", lg=("rr", k))
            em.e(f"s_mul_i32 {sST}, {sLAYER}, {KVP_L}"); em.e(f"s_lshl_b32 {sST2}, {sM}, 16"); em.e(f"s_add_u32 {sST}, {sST}, {sST2}")
            em.e(f"s_add_u32 {sST}, {sST}, {KVP}"); em.e(f"s_add_u32 {sST}, {sST}, {sW1K}")
            em.e(f"s_lshl_b32 {sST2}, {sG}, 12"); em.e(f"s_add_u32 {sST2}, {sST2}, {sST}")
            for q in range(4): em.e(f"v_add_f32 v{D+q}, v{D+q}, v{D+4+q}", wlg=[("rr", 1)] if q == 0 else None)
            for q in range(4): em.e(f"v_add_f32 v{D+8+q}, v{D+8+q}, v{D+12+q}", wlg=[("rr", 3)] if q == 0 else None)
            for q in range(4): em.e(f"v_add_f32 v{D+q}, v{D+q}, v{D+8+q}")
            em.e(f"buffer_store_dwordx4 v[{D}:{D+3}], {vL16}, {S_WS}, {sST2} offen sc1", vm="kvst")
            stamp()
            P2 = ACC
            seg = Seg(); ws2 = WStream(ring, seg, "K1", SS=SS)
            fu = {}; lu = {}
            for b in range(20):
                for t in range(3):
                    f = 100 + 3 * b + t; wr = ws2.wreg(f)
                    for tok in range(2):
                        d = P2 + 8 * t + 4 * tok
                        c = "0" if b == 0 else f"v[{d}:{d+3}]"
                        wl = [("w", "K1", 100 + 3 * b + 2)] if (t == 0 and tok == 0) else None
                        i = seg.mfma(f"v_mfma_f32_16x16x32_bf16 v[{d}:{d+3}], v[{wr}:{wr+3}], a[{AX(b,tok)}:{AX(b,tok)+3}], {c}", wlg=wl)
                        if t == 0 and tok == 0: g0 = i
                        fu.setdefault(f, g0); lu[f] = i
            ws2.reads(list(range(100, 160)), fu, lu, nobar=(7, 8))
            assert len(ws2.events) == 1
            gb = ws2.events[0][0]
            for o in seg.gaps[gb]:
                if o.text == "s_barrier": o.wvm = list(o.wvm) + ["kvst"]
            pub = [Op(f"s_add_u32 {sT0}, {sLAYER}, 1"),
                   Op(f"v_mov_b32 v254, {sT0}"), Op("v_mov_b32 v255, 0"),
                   Op(f"s_mov_b64 exec, {sFEX}"),
                   Op(f"buffer_store_dword v254, v255, {S_WS}, {sKOWN} offen sc1"),
                   Op("s_mov_b64 exec, -1")]
            g = seg.stream(pub[:3], gb - 6)
            assert g < gb
            for o in pub[3:]: seg.put(gb + 1, o, 1)
            g = pt_place(seg, pt_o(), 2)
            g = pt_place(seg, pt_x(S_WS), g)
            g = pt_place(seg, pt_act(0), g)
            pf_place(seg, "K3", 32768, "pa1"); pf_place(seg, "K3", 32768 + 65536, "pa2"); pf_place(seg, "K3", 32768 + 2*65536, "pa3"); pf_place(seg, "K3", 32768 + 3*65536, "pa4")
            ws2.vmem([], lambda r: 0, margin=MARG, qd=QD, rate=RATE)
            CS4 = 140
            seg.stream([Op(f"ds_read_b128 v[{CS4+4*t}:{CS4+4*t+3}], {vG16} offset:{L_CS1 + (5+t)*64}", lg="cs4") for t in range(3)], 60)
            RLI = 152
            seg.stream([f"v_mul_f32 v{RLI+t}, {hex(LOG2E)}, v{SB+8+2*t+1}" for t in range(2)], 70)
            seg.emit(em)
            stamp()
            em.wait(wlg=["cs4"])
            streams = []
            for t in range(3):
                for tok in range(2):
                    for r in range(4):
                        a = P2 + 8 * t + 4 * tok + r
                        tt = 184 + (len(streams) % 8)
                        streams.append([x[0] if isinstance(x, tuple) else x for x in phi_ops(a, CS4 + 4 * t + r, SB + 8 + 2 * tok, SB + 8 + 2 * tok + 1, RLI + tok, tt, None)])
            for k in range(0, len(streams), 4):
                lin(il(streams[k:k + 4]))
                ring.emit(em, 2)
            F = 156
            for tok in range(2):
                qa = P2 + 4 * tok; qb = P2 + 8 + 4 * tok; qx = P2 + 16 + 4 * tok
                fa = F + 8 * tok; fb = fa + 4
                em.e(f"v_cvt_pk_bf16_f32 v{fa}, v{qa}, v{qa+1}"); em.e(f"v_cvt_pk_bf16_f32 v{fa+1}, v{qa+2}, v{qa+3}")
                em.e(f"v_cvt_pk_bf16_f32 v{fa+2}, v{qx}, v{qx+1}"); em.e(f"v_cvt_pk_bf16_f32 v{fa+3}, v{qx+2}, v{qx+3}")
                em.e(f"v_cvt_pk_bf16_f32 v{fb}, v{qb}, v{qb+1}"); em.e(f"v_cvt_pk_bf16_f32 v{fb+1}, v{qb+2}, v{qb+3}")
                em.e(f"v_mov_b32 v{fb+2}, v{fa+2}"); em.e(f"v_mov_b32 v{fb+3}, v{fa+3}")
            uid[0] += 1; u = uid[0]
            em.e(f"s_cmp_lg_u32 {sW}, 0")
            em.e(f"s_cbranch_scc1 Lkv{u}_o")
            em.e(f"s_add_u32 {sT0}, {sLAYER}, 1")
            poll(sKLINE, sT0, f"Lkv{u}_p")
            em.label(f"Lkv{u}_o")
            em.e("s_barrier")
            ring.allowed = max(ring.allowed, 18)
            KL = 172
            for Gp in range(16):
                if Gp % 1 == 0: em.e(f"s_add_u32 {sST2}, {sST}, {Gp*4096}")
                em.e(f"buffer_load_dwordx4 v[{KL+4*Gp}:{KL+4*Gp+3}], {vL16}, {S_WS}, {sST2} offen sc1", vm=("kl", Gp))
            ring.emit(em, upto=18)
            pf_now("K3", 32768, "pb1"); pf_now("K3", 32768 + 65536, "pb2"); pf_now("K3", 32768 + 2*65536, "pb3"); pf_now("K3", 32768 + 3*65536, "pb4")
            for Gp in range(1, 16):
                for q in range(4):
                    em.e(f"v_add_f32 v{KL+q}, v{KL+q}, v{KL+4*Gp+q}", wvm=[("kl", Gp)] if q == 0 else None)
        else:
            CS = 140
            for t in range(5):
                em.e(f"ds_read_b32 v{CS+t}, {vI4} offset:{L_CS1 + t*64}", lg="cs")
            KF = 148
            def nmr(tok, r): return NM4 + 8 * tok + r
            def rsr(tok, r): return NM4 + 8 * tok + 4 + r
            def rlr(tok, r): return 242 + 4 * tok + r
            XV = 172
            TT = 180
            P2 = 188
            em.e(f"s_mul_i32 {sST}, {sLAYER}, {KVP_L}"); em.e(f"s_lshl_b32 {sST2}, {sM}, 16"); em.e(f"s_add_u32 {sST}, {sST}, {sST2}")
            em.e(f"s_add_u32 {sST}, {sST}, {KVP}"); em.e(f"s_add_u32 {sST}, {sST}, {sW1K}")
            em.e(f"s_lshl_b32 {sST2}, {sG}, 12"); em.e(f"s_add_u32 {sST2}, {sST2}, {sST}")
            em.e(f"v_add_u32 v254, {sW1K}, {vR1}"); em.e(f"v_add_u32 v255, {sW4K}, {vR1}")
            seg = Seg(); ws2 = WStream(ring, seg, "K1", SS=SS)
            fu = {}; lu = {}
            for b in range(20):
                for t in range(3):
                    f = 100 + 3 * b + t; wr = ws2.wreg(f)
                    for tok in range(2):
                        d = P2 + 8 * t + 4 * tok
                        c = "0" if b == 0 else f"v[{d}:{d+3}]"
                        wl = [("w", "K1", 100 + 3 * b + 2)] if (t == 0 and tok == 0) else None
                        i = seg.mfma(f"v_mfma_f32_16x16x32_bf16 v[{d}:{d+3}], v[{wr}:{wr+3}], a[{AX(b,tok)}:{AX(b,tok)+3}], {c}", wlg=wl)
                        if t == 0 and tok == 0: g0 = i
                        fu.setdefault(f, g0); lu[f] = i
            assert ring.filled == 6, ring.filled
            ws2.reads(list(range(100, 144)), fu, lu)
            assert len(ws2.events) == 1 and ws2.events[0][2] == 8, ws2.events
            ws2.events[0] = (ws2.events[0][0], 13, 8)
            streams = []
            def phi_stream(t):
                for tok in range(2):
                    for r in range(4):
                        a = P1 + 8 * t + 4 * tok + r
                        tt = TT + (len(streams) % 8)
                        if t == 4:
                            s_ = [f"v_fmac_f32 v{a}, v{nmr(tok,r)}, v{CS+t}",
                                  f"v_mul_f32 v{XV+4*tok+r}, v{a}, v{rsr(tok,r)}",
                                  f"v_mul_f32 v{tt}, v{a}, v{rlr(tok,r)}",
                                  (Op(f"v_exp_f32 v{tt}, v{tt} clamp"), 2),
                                  f"v_max_f32 v{a}, 0, v{a}",
                                  f"v_add_f32 v{tt}, {hex(EPS6)}, v{tt}",
                                  f"v_fma_f32 v{a}, v{a}, v{rsr(tok,r)}, v{tt}"]
                        else:
                            s_ = phi_ops(a, CS + t, nmr(tok, r), rsr(tok, r), rlr(tok, r), tt, None)
                        streams.append(s_)
            for t in (0, 1, 4): phi_stream(t)
            ko = []
            for k in range(0, len(streams), 4): ko += il(streams[k:k + 4])
            o0 = ko[0]; o0 = Op(o0, wlg=["cs"]); ko[0] = o0
            for t in (2, 3):
                for tok in range(2):
                    for r in range(4):
                        a = P1 + 8 * t + 4 * tok + r
                        ko.append(f"v_fmac_f32 v{a}, v{nmr(tok,r)}, v{CS+t}")
                    for r in range(4):
                        a = P1 + 8 * t + 4 * tok + r
                        ko.append(f"v_mul_f32 v{a}, v{a}, v{rsr(tok,r)}")
            for k in range(8):
                ko.append(f"v_cndmask_b32 v{XV+k}, v{XV+k}, 1.0, {sI8}")
            def pack(dst, src_tok0, src_tok1):
                return [f"v_cvt_pk_bf16_f32 v{dst}, v{src_tok0}, v{src_tok0+1}", f"v_cvt_pk_bf16_f32 v{dst+1}, v{src_tok0+2}, v{src_tok0+3}",
                        f"v_cvt_pk_bf16_f32 v{dst+2}, v{src_tok1}, v{src_tok1+1}", f"v_cvt_pk_bf16_f32 v{dst+3}, v{src_tok1+2}, v{src_tok1+3}"]
            K0f, K1f, V0f, V1f, XKf, XPf = KF, KF + 4, KF + 8, KF + 12, KF + 16, KF + 20
            ko += pack(K0f, P1 + 0, P1 + 4) + pack(K1f, P1 + 8, P1 + 12) + pack(XKf, P1 + 32, P1 + 36) + pack(V0f, P1 + 16, P1 + 20) + pack(V1f, P1 + 24, P1 + 28) + pack(XPf, XV, XV + 4)
            KCAP = opt.get("kcap", 5)
            g = seg.stream(ko, 0, cap=KCAP)
            D = 100
            g += 1
            for k, (A_, B_) in enumerate([(K0f, V0f), (K1f, V1f), (XKf, V0f), (XKf, V1f), (K0f, XPf), (K1f, XPf), (XKf, XPf)]):
                seg.put(g + k // 2, f"v_mfma_f32_16x16x32_bf16 v[{D+4*k}:{D+4*k+3}], v[{A_}:{A_+3}], v[{B_}:{B_+3}], 0", 2)
            g += 5
            D1, D2, D3, D4, D5, D6, D7 = [D + 4 * k for k in range(7)]
            RP = (14 % NR) * 16384 - 65536
            ko = [Op(f"ds_write_b128 v254, v[{D1}:{D1+3}] offset:{RP}", lg="red"), Op(f"ds_write_b128 v254, v[{D2}:{D2+3}] offset:{RP + 4096}", lg="red")]
            for r in range(4):
                ko.append(f"v_cndmask_b32 v{D5+r}, v{D5+r}, v{D6+r}, {sBIT2}")
            for r in range(4):
                ko.append(f"v_cndmask_b32 v{D3+r}, v{D3+r}, v{D4+r}, {sMK[1]}")
            ko.append(Op(f"ds_write_b128 v254, v[{D5}:{D5+3}] offset:{RP + 2*4096}", lg="red"))
            for r in range(4):
                ko.append(f"v_permlane32_swap_b32 v{D3+r}, v{D7+r}")
            g = seg.stream(ko, g, cap=KCAP)
            g = seg.put(g + 1, Op(f"ds_write_b128 v254, v[{D3}:{D3+3}] offset:{RP + 3*4096}", lg="red"), 1)
            gR = g + opt.get("kgb", 3)
            seg.put(gR, Op("s_barrier", wvm=[("dma", 9)], wlg=["red"]), 2)
            for k in range(4):
                seg.put(gR, Op(f"ds_read_b128 v[{D+4*k}:{D+4*k+3}], v255 offset:{RP + k*1024}", lg=("rr", k)), 1)
            assert gR < fu[144] - 1, (gR, fu[144])
            ws2.events.append((gR, 13, 9))
            g = gR + opt.get("kga", 4)
            ko = []
            for q in range(4): ko.append(Op(f"v_add_f32 v{D+q}, v{D+q}, v{D+4+q}", wlg=[("rr", 1)] if q == 0 else None))
            for q in range(4): ko.append(Op(f"v_add_f32 v{D+8+q}, v{D+8+q}, v{D+12+q}", wlg=[("rr", 3)] if q == 0 else None))
            for q in range(4): ko.append(Op(f"v_add_f32 v{D+q}, v{D+q}, v{D+8+q}"))
            KVH = opt.get("kvh", 1)
            if KVH:
                ko.insert(0, Op(f"v_lshrrev_b32 v254, 1, {vL16}"))
                ko += [Op(f"v_cvt_pk_bf16_f32 v{D}, v{D}, v{D+1}"), Op(f"v_cvt_pk_bf16_f32 v{D+1}, v{D+2}, v{D+3}")]
                ko.append(Op(f"buffer_store_dwordx2 v[{D}:{D+1}], v254, {S_WS}, {sST2} offen sc1", vm="kvst"))
            else:
                ko.append(Op(f"buffer_store_dwordx4 v[{D}:{D+3}], {vL16}, {S_WS}, {sST2} offen sc1", vm="kvst"))
            gS = seg.stream(ko, g, cap=4)
            ws2.events.append((g + 4, 14, 9))
            ring.filled = 9
            ev = list(ws2.events)
            ws2.reads(list(range(144, 160)), fu, lu, ming=gR + 1)
            assert ws2.events == ev
            pj = pt_jobs((pt_o() if PTK & 1 else []) + (pt_x(PS()) if PTK & 2 else []) + (pt_act(0) if PTK & 4 else []), opt.get("ptg", 40), 119) if PTM != 3 else []
            pq = []
            if opt.get("ptq", 0): pq = pj; pj = []
            ws2.vmem(pj, lambda r: 0, margin=MARG, qd=opt.get("qs2", 4), rate=opt.get("rs2", 35) / 10.0, cap=KCAP + 2, burst0=False)
            CS4 = 140
            seg.stream([Op(f"ds_read_b128 v[{CS4+4*t}:{CS4+4*t+3}], {vG16} offset:{L_CS1 + (5+t)*64}", lg="cs4") for t in range(3)], gS + 1)
            RLI = 152
            seg.stream([f"v_mul_f32 v{RLI+t}, {hex(LOG2E)}, v{SB+8+2*t+1}" for t in range(2)], gS + 4)
            sys.stderr.write(f"S2: gR {gR} gS {gS} ev {ws2.events}\n")
            if opt.get('ls2'):
                for g in range(1, 108, 7): lstamp(seg, g)
            seg.emit(em)
            stamp()
            KL = WW
            NL = 8 if KVH else 16
            KA = WW + 32
            vKV = "v255" if KVH else vL16
            K1SC = "" if opt.get("kvp", 1) else " sc1"
            if KVH:
                em.e(f"v_and_b32 v254, 0x200, {vL16}"); em.e("v_lshlrev_b32 v254, 3, v254"); em.e(f"v_and_b32 v255, 0x1f0, {vL16}"); em.e("v_add_u32 v255, v255, v254")
            def kl_loads(tag):
                for Gp in range(NL):
                    em.e(f"s_add_u32 {sST2}, {sST}, {Gp*4096*(16//NL)}")
                    em.e(f"buffer_load_dwordx4 v[{KL+4*Gp}:{KL+4*Gp+3}], {vKV}, {S_WS}, {sST2} offen sc1", vm=(tag, Gp) if tag else None)
            streams = []
            for t in range(3):
                for tok in range(2):
                    for r in range(4):
                        a = P2 + 8 * t + 4 * tok + r
                        tt = TT + (len(streams) % 8)
                        streams.append([x[0] if isinstance(x, tuple) else x for x in phi_ops(a, CS4 + 4 * t + r, SB + 8 + 2 * tok, SB + 8 + 2 * tok + 1, RLI + tok, tt, None)])
            qops = []
            for k in range(0, len(streams), 4): qops += il(streams[k:k + 4])
            F = 156
            for tok in range(2):
                qa = P2 + 4 * tok; qb = P2 + 8 + 4 * tok; qx = P2 + 16 + 4 * tok
                fa = F + 8 * tok; fb = fa + 4
                qops += [f"v_cvt_pk_bf16_f32 v{fa}, v{qa}, v{qa+1}", f"v_cvt_pk_bf16_f32 v{fa+1}, v{qa+2}, v{qa+3}",
                         f"v_cvt_pk_bf16_f32 v{fa+2}, v{qx}, v{qx+1}", f"v_cvt_pk_bf16_f32 v{fa+3}, v{qx+2}, v{qx+3}",
                         f"v_cvt_pk_bf16_f32 v{fb}, v{qb}, v{qb+1}", f"v_cvt_pk_bf16_f32 v{fb+1}, v{qb+2}, v{qb+3}",
                         f"v_mov_b32 v{fb+2}, v{fa+2}", f"v_mov_b32 v{fb+3}, v{fa+3}"]
            KLS = opt.get("kls", 6)
            first = True
            for k, o in enumerate(qops):
                if k % KLS == 0 and k // KLS < NL:
                    Gp = k // KLS
                    em.e(f"s_add_u32 {sST2}, {sST}, {Gp*4096*(16//NL)}")
                    em.e(f"buffer_load_dwordx4 v[{KL+4*Gp}:{KL+4*Gp+3}], {vKV}, {S_WS}, {sST2} offen{K1SC}", vm=("kl", Gp))
                elif k % (KLS if not pq else opt.get("ptqs", 3)) == 0 and k // KLS >= NL and pq:
                    for o2 in pq.pop(0)[0]: em.op(o2)
                elif k % KLS == 0: ring.emit(em, 1)
                if first: em.wait(wlg=["cs4"]); first = False
                em.op(o)
            for j in pq:
                for o2 in j[0]: em.op(o2)
            stamp()
            uid[0] += 1; u = uid[0]
            em.e(f"s_mov_b32 {sSPIN}, 0")
            if KVH:
                em.e(f"s_mov_b32 {sP0}, 0x3f80"); em.e(f"s_mov_b32 {sP1}, 0x3f800000")
                em.wait(wvm=[("kl", 0)])
                em.label(f"Lkv{u}_s")
                for q in range(8): em.e(f"v_mov_b32 v{KA+q}, 0")
                for Gp in range(8):
                    for q in range(4):
                        em.e(f"v_dot2c_f32_bf16 v{KA+2*q}, {sP0}, v{KL+4*Gp+q}", wvm=[("kl", Gp)] if q == 0 else None)
                        em.e(f"v_dot2c_f32_bf16 v{KA+2*q+1}, {sP1}, v{KL+4*Gp+q}")
                em.e(f"v_cmp_u_f32 vcc, v{KA}, v{KA+2}"); em.e(f"v_cmp_u_f32 s[34:35], v{KA+4}, v{KA+6}")
            else:
                for Gp in range(1, 16):
                    if Gp == 1:
                        em.wait(wvm=[("kl", 1)])
                        em.label(f"Lkv{u}_s")
                    for q in range(4):
                        em.e(f"v_add_f32 v{KL+q}, v{KL+q}, v{KL+4*Gp+q}", wvm=[("kl", Gp)] if q == 0 else None)
                em.e(f"v_cmp_u_f32 vcc, v{KL}, v{KL+1}"); em.e(f"v_cmp_u_f32 s[34:35], v{KL+2}, v{KL+3}")
            em.e(f"s_or_b64 vcc, vcc, s[34:35]")
            em.e(f"s_cbranch_vccz Lkv{u}_o")
            em.e(f"s_add_u32 {sSPIN}, {sSPIN}, 1"); em.e(f"s_cmp_gt_u32 {sSPIN}, 20000"); em.e(f"s_cbranch_scc1 Lkv{u}_o")
            kl_loads(None)
            em.raw("    s_waitcnt vmcnt(0)")
            em.e(f"s_branch Lkv{u}_s")
            em.label(f"Lkv{u}_o")
        if opt.get('k1n', 1) and KVH:
            for q in range(4): em.e(f"v_permlane32_swap_b32 v{KA+q}, v{KA+4+q}")
            for q in range(4): em.e(f"v_add_f32 v{KA+q}, v{KA+q}, v{KA+4+q}")
            em.e(f"v_cvt_pk_bf16_f32 v{KL}, v{KA}, v{KA+1}"); em.e(f"v_cvt_pk_bf16_f32 v{KL+1}, v{KA+2}, v{KA+3}")
            em.e(f"v_and_b32 v254, 0x1f0, {vL16}"); em.e(f"v_lshrrev_b32 v255, 6, {vL16}"); em.e("v_and_b32 v255, 8, v255"); em.e("v_add_u32 v254, v254, v255")
            em.e(f"s_lshl_b32 {sT0}, {sW}, 9"); em.e(f"s_add_u32 {sT0}, {sT0}, 0x20000"); em.e(f"v_add_u32 v254, {sT0}, v254")
        else:
            em.e(f"v_cvt_pk_bf16_f32 v{KL}, v{KL}, v{KL+1}"); em.e(f"v_cvt_pk_bf16_f32 v{KL+1}, v{KL+2}, v{KL+3}")
            em.e(f"s_lshl_b32 {sT0}, {sW}, 9"); em.e(f"v_add_u32 v254, {sT0}, {vL8}")
        em.e(f"ds_write_b64 v254, v[{KL}:{KL+1}] offset:{L_KVB}", lg="kw")
        em.wait_all_lg()
        em.e("s_barrier")
        if opt.get('k1n', 1):
            ring.allowed = max(ring.allowed, 18)
            ring.emit(em, upto=opt.get("k1e", 18))
            pfk[0] = 0
            pf3(opt.get("pfa", 0), False)
        R_ = 176
        for t in range(4):
            em.e(f"ds_read_b64 v[{R_+2*t}:{R_+2*t+1}], {vL8} offset:{L_KVB + t*512}", lg="kr")
        em.e(f"v_xor_b32 v254, 256, {vL8}")
        em.e(f"ds_read_b64 v[{R_+8}:{R_+9}], v254 offset:{L_KVB + 3*512}", lg="kr")
        em.e(f"v_and_b32 v254, 0xfffffe7f ^ 0, {vL8}" if False else f"v_lshlrev_b32 v254, 3, {vG16}")
        em.e(f"v_and_b32 v254, 0x3ff, v254")
        em.e(f"v_add_u32 v254, 0x20000, v254")
        em.e(f"ds_read_b64 v[{R_+10}:{R_+11}], v254 offset:{L_KVB + 2*512}", lg="kr")
        em.e(f"ds_read_b64 v[{R_+12}:{R_+13}], v254 offset:{L_KVB + 2*512 + 32}", lg="kr")
        em.e("v_mov_b32 v255, 0x20000")
        em.e(f"ds_read_b64 v[{R_+14}:{R_+15}], v255 offset:{L_KVB + 3*512 + 32*8}", lg="kr")
        em.e(f"ds_read_b64 v[{R_+16}:{R_+17}], v255 offset:{L_KVB + 3*512 + 52*8}", lg="kr")
        em.wait_all_lg()
        t1, t2, t3, t4, t4x, za, zb, zxa, zxb = [R_ + 2 * k for k in range(9)]
        AF = 196
        Aa, Ab, Axa, Axb, Aza, Azb = [AF + 4 * k for k in range(6)]
        mg0, mg1, ma, mb, mga, mgb = sMK
        def cp(dst, src):
            em.e(f"v_mov_b32 v{dst}, v{src}"); em.e(f"v_mov_b32 v{dst+1}, v{src+1}")
        def mk(dst, src, m):
            em.e(f"v_cndmask_b32 v{dst}, 0, v{src}, {m}"); em.e(f"v_cndmask_b32 v{dst+1}, 0, v{src+1}, {m}")
        cp(Aa, t1); mk(Aa + 2, t4, mg0)
        cp(Ab, t2); mk(Ab + 2, t4, mg1)
        mk(Axa, t3, ma); mk(Axa + 2, t4x, mga)
        mk(Axb, t3, mb); mk(Axb + 2, t4x, mgb)
        cp(Aza, za); mk(Aza + 2, zxa, mg0)
        cp(Azb, zb); mk(Azb + 2, zxb, mg1)
        O = 100
        for tok in range(2):
            fa = F + 8 * tok; fb = fa + 4; o = O + 20 * tok
            em.e(f"v_mfma_f32_16x16x32_bf16 v[{o+12}:{o+15}], v[{Aza}:{Aza+3}], v[{fa}:{fa+3}], 0")
            em.e(f"v_mfma_f32_16x16x32_bf16 v[{o+16}:{o+19}], v[{Azb}:{Azb+3}], v[{fb}:{fb+3}], 0")
            em.e(f"v_mfma_f32_16x16x32_bf16 v[{o}:{o+3}], v[{Aa}:{Aa+3}], v[{fa}:{fa+3}], 0")
            em.e(f"v_mfma_f32_16x16x32_bf16 v[{o+4}:{o+7}], v[{Ab}:{Ab+3}], v[{fb}:{fb+3}], 0")
            em.e(f"v_mfma_f32_16x16x32_bf16 v[{o+8}:{o+11}], v[{Axa}:{Axa+3}], v[{fa}:{fa+3}], 0")
            em.e(f"v_mfma_f32_16x16x32_bf16 v[{o+8}:{o+11}], v[{Axb}:{Axb+3}], v[{fb}:{fb+3}], v[{o+8}:{o+11}]")
        em.e(f"s_mul_i32 {sST}, {LB()}, {O_SZ}"); em.e(f"s_mul_i32 {sST2}, {sTT2}, 20480"); em.e(f"s_add_u32 {sST}, {sST}, {sST2}")
        em.e(f"s_add_u32 {sST}, {sST}, {OB}")
        em.e(f"s_lshl_b32 {sST2}, {sM}, 10"); em.e(f"s_add_u32 {sST2}, {sST2}, {sST}")
        for tok in range(2):
            o = O + 20 * tok
            em.e(f"v_add_f32 v{o+12}, {hex(EPS6)}, v{o+12}"); em.e(f"v_add_f32 v{o+16}, {hex(EPS6)}, v{o+16}")
            em.e(f"v_rcp_f32 v{o+12}, v{o+12}"); em.e(f"v_rcp_f32 v{o+16}, v{o+16}")
            em.e(f"v_cndmask_b32 v{o+13}, v{o+12}, v{o+16}, {sG3}")
            for r in range(4):
                em.e(f"v_mul_f32 v{o+r}, v{o+r}, v{o+12}"); em.e(f"v_mul_f32 v{o+4+r}, v{o+4+r}, v{o+16}")
                em.e(f"v_mul_f32 v{o+8+r}, v{o+8+r}, v{o+13}")
            em.e(f"v_cvt_pk_bf16_f32 v{o}, v{o}, v{o+1}"); em.e(f"v_cvt_pk_bf16_f32 v{o+1}, v{o+2}, v{o+3}")
            em.e(f"v_cvt_pk_bf16_f32 v{o+2}, v{o+4}, v{o+5}"); em.e(f"v_cvt_pk_bf16_f32 v{o+3}, v{o+6}, v{o+7}")
            em.e(f"v_cvt_pk_bf16_f32 v{o+8}, v{o+8}, v{o+9}"); em.e(f"v_cvt_pk_bf16_f32 v{o+9}, v{o+10}, v{o+11}")
            va = vL16 if tok == 0 else vL16B
            em.e(f"buffer_store_dwordx4 v[{o}:{o+3}], {va}, {S_WS}, {sST2} offen{cur['STO']}", vm="ost")
            if tok == 1: em.e(f"s_add_u32 {sST}, {sST}, 20480")
            em.e(f"s_mov_b64 exec, {sG23}")
            em.e(f"buffer_store_dwordx2 v[{o+8}:{o+9}], {vOREM}, {S_WS}, {sST} offen{cur['STO']}", vm="ost")
            em.e("s_mov_b64 exec, -1")

    def K24(ph, nblk, final_possible):
        AX = lambda b, t: 4 * b
        if ph == "K2":
            em.e(f"s_mul_i32 {sA}, {LB()}, {O_SZ}"); em.e(f"s_mul_i32 {sT0}, {sTT1}, 20480"); em.e(f"s_add_u32 {sA}, {sA}, {sT0}"); em.e(f"s_add_u32 {sA}, {sA}, {OB}")
        else:
            em.e(f"s_mul_i32 {sA}, {LB()}, {ACT_SZ}"); em.e(f"s_mul_i32 {sT0}, {sTT1}, {54*1024}"); em.e(f"s_add_u32 {sA}, {sA}, {sT0}"); em.e(f"s_add_u32 {sA}, {sA}, {ACT}")
        seg = Seg(); ws = WStream(ring, seg, ph, SS=SS, LA=opt.get("la4", 10))
        fu = {}; lu = {}; wa = {}
        for b in range(nblk):
            for t in range(5):
                f = b * 5 + t; wr = ws.wreg(f); d = RES + 4 * t
                wv = [("a", b, 0)] if t == 0 else None
                i = seg.mfma(f"v_mfma_f32_16x16x32_bf16 v[{d}:{d+3}], v[{wr}:{wr+3}], a[{4*b}:{4*b+3}], v[{d}:{d+3}]", wvm=wv, wlg=[("w", ph, b * 5 + 4)] if t == 0 else None)
                fu[f] = i; lu[f] = i; wa[f] = 5 * b
        al = a_loads(1, nblk, ph, "a", AX)
        if ph == "K2" and DBG.get("stg", 0):
            for o in (f"v_add_u32 {vSTG0}, {sW4K}, {vL16}", f"v_add_u32 {vSTG1}, {sW4K}, {vR1}", f"v_add_u32 {vSTG2}, {sW4K}, {vR2}"): seg.put(0, o, 1)
        if ph == "K2":
            ws.reads(list(range(nblk * 5)), fu, lu, nobar=(12, 16), force=(14,), wait_at=wa)
            ws.vmem(a_jobs(al, lambda b: 5 * b - 30), lambda r: opt.get("k2w", 0), margin=MARG, qd=QD, rate=opt.get("r2", 35) / 10.0)
        else:
            ws.reads(list(range(nblk * 5)), fu, lu, wait_at=wa)
            ws.vmem(a_jobs(al, lambda b: 5 * b - 30), lambda r: 0 if r < 52 else opt.get("k4w", 0), margin=MARG, qd=QD, rate=opt.get("r4", 28) / 10.0)
        g = 0
        if ph == "K4":
            if PTK & 16 and PTM != 3: pt_place(seg, pt_x(S_WSN), opt.get("k4pt", 170))
            pf_place(seg, "K1", 0, "pf1", True); pf_place(seg, "K1", 65536, "pf2", True); pf_place(seg, "K1", 131072, "pf3", True)
        else:
            pf_place(seg, "K3", 32768 + 2*65536, "pg3"); pf_place(seg, "K3", 32768 + 3*65536, "pg4")
        if not opt.get('ls2'):
            for g in range(1, nblk * 5 - 13, 30): lstamp(seg, g)
        seg.emit(em)
        stamp()
        P = TMP
        for t in range(5):
            em.e(f"v_cvt_pk_bf16_f32 v{P+2*t}, v{RES+4*t}, v{RES+4*t+1}"); em.e(f"v_cvt_pk_bf16_f32 v{P+2*t+1}, v{RES+4*t+2}, v{RES+4*t+3}")
        uid[0] += 1; u = uid[0]
        if final_possible:
            em.e(f"s_cmp_eq_u32 {sLAYER}, 1"); em.e(f"s_cbranch_scc1 Lfin{u}")
        em.e(f"s_mov_b32 {sXI}, 1" if reuse() else f"s_add_u32 {sXI}, {sXI}, 1")
        em.e(f"s_mul_i32 {sST}, {sXI}, {X_SZ}"); em.e(f"s_mul_i32 {sT0}, {sTT1}, 20480"); em.e(f"s_add_u32 {sST}, {sST}, {sT0}"); em.e(f"s_add_u32 {sST}, {sST}, {XB}")
        em.e(f"s_lshr_b32 {sT0}, {sC8}, 1"); em.e(f"s_mul_i32 {sT0}, {sT0}, 5")
        em.e(f"s_lshl_b32 {sT1}, {sODD}, 1"); em.e(f"s_add_u32 {sT1}, {sT1}, {sT0}"); em.e(f"s_lshl_b32 {sT1}, {sT1}, 10"); em.e(f"s_add_u32 {sT1}, {sT1}, {sST}")
        em.e(f"buffer_store_dwordx4 v[{P}:{P+3}], {vL16}, {S_WS}, {sT1} offen{cur['STO']}", vm="xst")
        em.e(f"buffer_store_dwordx4 v[{P+4}:{P+7}], {vL16}, {S_WS}, {sT1} offen offset:1024{cur['STO']}", vm="xst")
        em.e(f"s_add_u32 {sT0}, {sT0}, 4"); em.e(f"s_lshl_b32 {sT0}, {sT0}, 10"); em.e(f"s_add_u32 {sT0}, {sT0}, {sST}")
        em.e(f"s_lshl_b32 {sT1}, {sODD}, 3"); em.e(f"s_add_u32 {sT0}, {sT0}, {sT1}")
        em.e(f"buffer_store_dwordx2 v[{P+8}:{P+9}], {vL16}, {S_WS}, {sT0} offen{cur['STO']}", vm="xst")
        a, b_, x, y = 224, 225, 226, 227
        em.e(f"v_add_f32 v{a}, v{RES}, v{RES+1}"); em.e(f"v_mul_f32 v{b_}, v{RES}, v{RES}"); em.e(f"v_fmac_f32 v{b_}, v{RES+1}, v{RES+1}")
        em.e(f"v_add_f32 v{x}, v{RES+2}, v{RES+3}"); em.e(f"v_mul_f32 v{y}, v{RES+2}, v{RES+2}"); em.e(f"v_fmac_f32 v{y}, v{RES+3}, v{RES+3}")
        for k in range(4, 20, 2):
            em.e(f"v_add_f32 v{a}, v{a}, v{RES+k}"); em.e(f"v_fmac_f32 v{b_}, v{RES+k}, v{RES+k}")
            em.e(f"v_add_f32 v{x}, v{x}, v{RES+k+1}"); em.e(f"v_fmac_f32 v{y}, v{RES+k+1}, v{RES+k+1}")
        em.e(f"v_add_f32 v{a}, v{a}, v{x}"); em.e(f"v_add_f32 v{b_}, v{b_}, v{y}")
        for sw in ("v_permlane32_swap_b32", "v_permlane16_swap_b32"):
            em.e(f"v_mov_b32 v{x}, v{a}"); em.e(f"v_mov_b32 v{y}, v{b_}")
            em.e(f"{sw} v{a}, v{x}"); em.e(f"{sw} v{b_}, v{y}")
            em.e(f"v_add_f32 v{a}, v{a}, v{x}"); em.e(f"v_add_f32 v{b_}, v{b_}, v{y}")
        em.e(f"s_mul_i32 {sST}, {sXI}, {ST_SZ}"); em.e(f"s_lshl_b32 {sT0}, {sTT1}, 10"); em.e(f"s_add_u32 {sST}, {sST}, {sT0}")
        em.e(f"s_lshl_b32 {sT0}, {sC8}, 7"); em.e(f"s_add_u32 {sST}, {sST}, {sT0}"); em.e(f"s_add_u32 {sST}, {sST}, {ST}")
        em.e(f"s_mov_b64 exec, {sMK[0]}")
        em.e(f"buffer_store_dwordx2 v[{a}:{a+1}], {vSTO}, {S_WS}, {sST} offen{cur['STO']}", vm="xst")
        em.e("s_mov_b64 exec, -1")
        if final_possible:
            em.e(f"s_branch Lfin{u}_x")
            em.label(f"Lfin{u}")
            em.e(f"s_mul_i32 {sST}, {sTT1}, {16*1280}"); em.e(f"s_mul_i32 {sT0}, {sC8}, 160"); em.e(f"s_add_u32 {sST}, {sST}, {sT0}")
            for t in range(5):
                em.e(f"buffer_store_dwordx2 v[{P+2*t}:{P+2*t+1}], {vOUT}, {S_OUT}, {sST} offen offset:{t*32}")
            em.raw("    s_waitcnt vmcnt(0)")
            stamp(); nstamp[0] -= 1
            dump_stamps()
            em.e("s_endpgm")
            em.label(f"Lfin{u}_x")

    def K3():
        AX = lambda b, s_: 8 * b + 4 * s_
        SB = TMP
        NM, C1, KK, VST = 220, 221, 222, 223
        set_sA_x()
        seg = Seg(cap=opt.get("k3cap", 6)); ws = WStream(ring, seg, "K3", SS=SS, LA=opt.get("la3", 5))
        fu = {}; lu = {}
        pend = []
        for f in range(280): ws.wreg(f)
        def acc(t): return ACC + 16 * t
        B1 = opt.get("k3b", 12)
        groups = [(b, p) for b in range(B1) for p in range(3)] + [(b, p) for p in range(3) for b in range(B1, 20)] + [(b, 3) for b in range(20)]
        afirst = {}
        seen_a = set()
        pend = [0, 0, 0, 0]
        for (b, p) in groups:
            ts = (2 * p, 2 * p + 1) if p < 3 else (6,)
            first = True
            for s_ in range(2):
                for t in ts:
                    f = pw3_index(b, t, s_, B1); wr = ws.wreg(f)
                    d = acc(t)
                    c = "0" if (b == 0 and s_ == 0) else f"v[{d}:{d+15}]"
                    wl = [("w", "K3", pw3_index(b, ts[-1], 1, B1))] if first else None
                    wv = [("a", b, 1)] if (b not in seen_a and first) else None
                    i = seg.mfma(f"v_mfma_f32_32x32x16_bf16 v[{d}:{d+15}], v[{wr}:{wr+3}], a[{AX(b,s_)}:{AX(b,s_)+3}], {c}", wvm=wv, wlg=wl)
                    if first: g0 = i
                    if b not in seen_a: seen_a.add(b); afirst[b] = i
                    first = False
                    fu.setdefault(f, g0); lu[f] = i
            pend[p] = seg.n()
        al = a_loads(2, 20, "K3", "a", AX, m32=True)
        ws.reads(list(range(280)), fu, lu)
        ws.vmem(a_jobs(al, lambda b: afirst[b] - opt.get("a3l", 12)), lambda r: opt.get("k3w", 0), margin=opt.get("m3", 70), qd=opt.get("q3", QD // 2), rate=opt.get("r3", 38) / 20.0)
        so = [f"v_and_b32 v{VST}, 0xf0, {vL16}", f"v_lshrrev_b32 v{VST}, 1, v{VST}", f"v_and_b32 v{NM}, 0x200, {vL16}", f"v_add_u32 v{VST}, v{VST}, v{NM}",
              f"v_and_b32 v{NM}, 0x100, {vL16}", f"v_lshlrev_b32 v{NM}, 2, v{NM}", f"v_add_u32 v{VST}, v{VST}, v{NM}",
              f"s_mul_i32 {sST}, {sXI}, {ST_SZ}", f"s_lshl_b32 {sST2}, {sTT2}, 10", f"s_add_u32 {sST}, {sST}, {sST2}", f"s_add_u32 {sST}, {sST}, {ST}"]
        for q in range(4):
            so.append(Op(f"buffer_load_dwordx2 v[{SB+2*q}:{SB+2*q+1}], v{VST}, {S_WS}, {sST} offen offset:{q*128}{cur['LD']}", vm=("st", q)))
        g = seg.stream(so, 2)
        a, b_, x, y = SB, SB + 1, SB + 2, SB + 3
        so = [Op(f"v_add_f32 v{a}, v{a}, v{SB+2}", wvm=[("st", 3)]), f"v_add_f32 v{b_}, v{b_}, v{SB+3}",
              f"v_add_f32 v{SB+4}, v{SB+4}, v{SB+6}", f"v_add_f32 v{SB+5}, v{SB+5}, v{SB+7}",
              f"v_add_f32 v{a}, v{a}, v{SB+4}", f"v_add_f32 v{b_}, v{b_}, v{SB+5}",
              f"v_mov_b32 v{x}, v{a}", f"v_mov_b32 v{y}, v{b_}",
              f"v_permlane32_swap_b32 v{a}, v{x}", f"v_permlane32_swap_b32 v{b_}, v{y}",
              f"v_add_f32 v{a}, v{a}, v{x}", f"v_add_f32 v{b_}, v{b_}, v{y}",
              f"v_mul_f32 v{NM}, {hex(INV640 | 0x80000000)}, v{a}", f"v_mul_f32 v{KK}, {hex(INV640)}, v{b_}",
              f"v_fma_f32 v{KK}, -v{NM}, v{NM}, v{KK}", f"v_max_f32 v{KK}, 0, v{KK}", f"v_add_f32 v{KK}, {hex(EPS5)}, v{KK}",
              (Op(f"v_rsq_f32 v{C1}, v{KK}"), 2), f"v_mul_f32 v{C1}, {hex(LOG2E | 0x80000000)}, v{C1}"]
        g = seg.stream(so, max(g, 30))
        so = [f"s_mul_i32 {sST}, {LB()}, {ACT_SZ}", f"s_mul_i32 {sST2}, {sTT2}, {54*1024}", f"s_add_u32 {sST}, {sST}, {sST2}",
              f"s_add_u32 {sST}, {sST}, {ACT}", f"s_lshl_b32 {sST2}, {sM}, 10", f"s_add_u32 {sST2}, {sST2}, {sST}"]
        g = seg.stream(so, max(g, 50))
        CSR = 226
        ET = 242
        def epi(t):
            ops = []
            for mat in range(2):
                for hh in range(2):
                    r = CSR + 8 * mat + 4 * hh
                    ops.append(Op(f"ds_read_b128 v[{r}:{r+3}], {vH16} offset:{L_CS3 + (2*t+mat)*64 + 32*hh}", lg=("c3", t)))
            d = acc(t)
            first = True
            for e in range(8):
                ops.append(Op(f"v_fmac_f32 v{d+e}, v{NM}, v{CSR+e}", wlg=[("c3", t)] if first else None)); first = False
                ops.append(f"v_fmac_f32 v{d+8+e}, v{NM}, v{CSR+8+e}")
            for k in range(0, 8, 4):
                streams = []
                for e in range(k, k + 4):
                    g_ = d + e; u_ = d + 8 + e; e_ = ET + e
                    streams.append([f"v_mul_f32 v{e_}, v{g_}, v{C1}",
                                    (Op(f"v_exp_f32 v{e_}, v{e_}"), 2),
                                    f"v_mul_f32 v{g_}, v{g_}, v{u_}",
                                    f"v_fma_f32 v{e_}, v{e_}, v{KK}, v{KK}",
                                    (Op(f"v_rcp_f32 v{e_}, v{e_}"), 2),
                                    f"v_mul_f32 v{g_}, v{g_}, v{e_}"])
                ops += il(streams)
            PK = d + 8
            for q in range(4): ops.append(f"v_cvt_pk_bf16_f32 v{PK+q}, v{d+2*q}, v{d+2*q+1}")
            if t < 6:
                ops.append(Op(f"s_add_u32 {sT0}, {sST2}, {(t >> 1) * 16384 + (t & 1) * 512}"))
                ops.append(Op(f"buffer_store_dwordx4 v[{PK}:{PK+3}], {vA3}, {S_WS}, {sT0} offen{cur['STO']}", vm="ast"))
            else:
                ops.append(Op(f"buffer_store_dwordx2 v[{PK}:{PK+1}], {vACT6}, {S_WS}, {sST} offen{cur['STO']}", vm="ast"))
                ops.append(Op(f"s_mov_b64 exec, {sMK32}"))
                ops.append(Op(f"buffer_store_dwordx2 v[{PK+2}:{PK+3}], {vA3}, {S_WS}, {sP2} offen{cur['STO']}", vm="ast"))
                ops.append(Op("s_mov_b64 exec, -1"))
            return ops
        if PTK & 8 and PTM != 3:
            for p in range(1, 4): pt_place(seg, pt_act(p), max(20, pend[p - 1] - opt.get("pt3", 25)))
        ge = 0
        for p in range(3):
            for t in (2 * p, 2 * p + 1):
                ge = seg.stream(epi(t), max(pend[p] + 3, ge))
        so = [f"s_mul_i32 {sP0}, {sM}, 3", f"s_add_u32 {sP0}, {sP0}, 2", f"s_lshr_b32 {sP1}, {sP0}, 3", f"s_add_u32 {sP1}, {sP1}, 48", f"s_lshl_b32 {sP1}, {sP1}, 10",
              f"s_add_u32 {sP2}, {sST}, {sP1}", f"s_and_b32 {sP1}, {sP0}, 3", f"s_lshl_b32 {sP1}, {sP1}, 8", f"s_add_u32 {sP2}, {sP2}, {sP1}",
              f"s_bfe_u32 {sP1}, {sP0}, 0x10002", f"s_lshl_b32 {sP1}, {sP1}, 3", f"s_add_u32 {sP2}, {sP2}, {sP1}"]
        seg.stream(so, 225)
        if not opt.get('ls2'):
            for g in range(1, 268, 20): lstamp(seg, g)
        sys.stderr.write(f"K3: epilogue stream ends at gap {ge}; cost hist {[sum(1 for c in seg.cost if c == k) for k in range(12)]}\n")
        seg.emit(em)
        stamp()
        lin(epi(6))

    def finish_if(p):
        if stop <= 8 and (stop - 1) % 4 + 1 == p:
            lay = (stop - 1) // 4
            em.e(f"s_cmp_lg_u32 {sLAYER}, {lay}"); em.e(f"s_cbranch_scc1 Lstop{p}{cur['sfx']}")
            em.raw("    s_waitcnt vmcnt(0) lgkmcnt(0)")
            dump_stamps()
            em.e("s_endpgm")
            em.label(f"Lstop{p}{cur['sfx']}")
    prologue_end()
    pls()
    if opt.get("pls"):
        for k in range(pln[0]):
            if k > 5: break
            em.e(f"v_readfirstlane_b32 s96, v{236+k}"); em.e("s_nop 3"); em.e(f"v_writelane_b32 v0, s96, {58+k}")
    if PEEL:
        cnt_save = WStream.cnt
        ring.filled = -1
        nstamp[0] = 0; lsn[0] = 0
        stamp()
        K1_p1(True)
        stamp()
        join_state[0] = (ring.issued, ring.filled, ring.allowed, [t for t in em.vm if isinstance(t, tuple) and t[0] == "dma"], WStream.cnt)
        K1_first(True)
        WStream.cnt = cnt_save
        em.vm = [("dma", r) for r in range(HEAD + 1) for _ in range(4)]
    em.vm = [t for t in em.vm if isinstance(t, tuple) and t[0] == "dma"] + [t for t in em.vm if isinstance(t, tuple) and t[0] == "a"]
    head_vm = list(em.vm)
    cnt0 = WStream.cnt
    if MONO and stamps and not opt.get("lst", 0):
        em.e("v_writelane_b32 v0, s96, 62"); em.e("v_writelane_b32 v0, s97, 63")
    if MONO:
        em.e(f"s_cmp_lg_u32 {sMODE}, 0"); em.e("s_cbranch_scc1 Lm_layerS")
    for sfx, sto in (("F", ""), ("S", " sc1")):
        cur["sfx"] = sfx; cur["STO"] = sto; cur["LD"] = sto if not opt.get("ldsc1", 1) else " sc1"
        nstamp[0] = 0; lsn[0] = 0
        WStream.cnt = cnt0
        em.label(f"Lm_layer{sfx}")
        em.vm = list(head_vm); em.lg = []
        ring.filled = -1; ring.issued = HEAD; ring.allowed = 8; ring.q = []
        em.e(f"s_cmp_eq_u32 {sLAYER}, 1"); em.e(f"s_cselect_b32 s14, 0, {WS_END}")
        stamp()
        K1(); stamp(); finish_if(1)
        pf3(opt.get("pfb", 0), True)
        transition(1, 1, 9, ["ost"], 16, opt.get("d11", 0), opt.get("d12", 0), defer0=opt.get("df1", 0)); stamp()
        K24("K2", 20, False); stamp(); finish_if(2)
        pf3(opt.get("pfc", 0), True)
        transition(2, 2, 16, ["xst"], 18, opt.get("d21", 40), opt.get("d22", 0), defer0=opt.get("df2", 0)); stamp()
        K3(); stamp(); finish_if(3)
        transition(4, 4, 34, ["ast"], 36, opt.get("d31", 40), opt.get("d32", 0), defer0=opt.get("df3", 0)); stamp()
        K24("K4", 54, True); stamp(); finish_if(4)
        transition(5, 5, 53, ["xst"], 53, opt.get("d41", 40), 100, upto2=54 + HEAD, defer0=opt.get("df4", 0))
        if AH: k1_hoist(cur["LD"])
        stamp()
        assert ring.issued == 54 + HEAD and not ring.q, (ring.issued, ring.q)
        em.e(f"s_add_u32 {sLAYER}, {sLAYER}, 1"); em.e(f"s_add_u32 {sSTEP}, {sSTEP}, 5")
        em.e(f"s_branch Lm_layer{sfx}")
    em.label("Lm_done")
    em.e("s_endpgm")
    return em.lines


def build(opt):
    if opt.get("mono", 0):
        ml = gen_main(opt)
        ml, n2 = fix_hazards(ml)
        ref = open("interleave_layers__linear_attn_block__swiglu_ffn__prompt.s.ref").read() if opt.get("hdr", False) else ""
        hdr = [l for l in ref.split("\n") if l.startswith(";") and "@launch" not in l and "Override launch" not in l and "grid=ceil" not in l]
        out = hdr + [f"; @launch grid=(256,1,1) block=(256,1,1) lds={MAIN_LDS}",
               '.amdgcn_target "amdgcn-amd-amdhsa--gfx950"', ".text",
               f".globl {KNAME}", ".p2align 8", f".type {KNAME},@function"] + ml + [kdesc(KNAME, 512, 256, 102)]
        sys.stderr.write(f"nops inserted: main {n2}; main lines {len(ml)}\n")
        return "\n".join(out)
    pl = gen_prep("prep_kernel", stamp=opt.get("stamps", 0), k3b=opt.get("k3b", 12), wsoff=opt.get("wsoff", 0) << 20, zf=opt.get("zf", 0), hp=opt.get("hp", 0) and opt.get("kvh", 1))
    if opt.get("pst"):
        sfx = {1: " sc1", 2: " nt", 3: " sc0 sc1", 4: " sc1 nt"}[opt["pst"]]
        pl = [l + sfx if "buffer_store" in l else l for l in pl]
    pl, n1 = fix_hazards(pl)
    ml = gen_main(opt)
    ml, n2 = fix_hazards(ml)
    ref = open("interleave_layers__linear_attn_block__swiglu_ffn__prompt.s.ref").read() if opt.get("hdr", False) else ""
    hdr = [l for l in ref.split("\n") if l.startswith(";") and "@launch" not in l and "Override launch" not in l and "grid=ceil" not in l]
    out = hdr + [f"; @launch kernel=prep_kernel grid=({PREP_WGS},1,1) block=(256,1,1) lds={PREP_LDS}",
           f"; @launch kernel={KNAME} grid=(256,1,1) block=(256,1,1) lds={MAIN_LDS}",
           '.amdgcn_target "amdgcn-amd-amdhsa--gfx950"', ".text",
           ".globl prep_kernel", ".p2align 8", ".type prep_kernel,@function"] + pl + \
          [f".globl {KNAME}", ".p2align 8", f".type {KNAME},@function"] + ml + \
          [kdesc("prep_kernel", 112, 112), kdesc(KNAME, 512, 256, 102)]
    sys.stderr.write(f"nops inserted: prep {n1} main {n2}; main lines {len(ml)}\n")
    return "\n".join(out)


if __name__ == "__main__":
    opt = dict(df2=1, d22=8, df3=1, d32=8, d31=0, d21=0, d41=0, hp=1, df4=1, k4w=240, peel=1, pa=2, pss=1, p1j=10, pcs=110, pst0=60)
    for a in sys.argv[1:]:
        k, v = a.split("="); opt[k] = int(v)
    print(build(opt))
```

```python
import sys
from asmlib import *
from layout import *
from gen_prep import gen_prep, kdesc, PREP_WGS, PREP_LDS

KNAME = "interleave_layers__linear_attn_block__swiglu_ffn__prompt_kernel"
NR = 9
MISC = 147456
MB = 131072
L_CS1 = MISC - MB; L_CS3 = MISC + 512 - MB; L_STAT = MISC + 1536 - MB; L_RED = MISC + 4096 - MB; L_KVB = MISC + 8192 - MB
MAIN_LDS = 163840
PH = {"K1": (0, 160), "K2": (10, 100), "K3": (17, 280), "K4": (35, 270)}
TOT_ROUNDS = 54
LOG2E = 0x3fb8aa3b
EPS6 = 0x358637bd
EPS5 = 0x3727c5ac
INV640 = 0x3acccccd

S_WS = "s[4:7]"; S_OUT = "s[8:11]"; S_WSN = "s[12:15]"
sW, sG, sM, sHALF, sC8, sLAYER = "s16", "s17", "s18", "s19", "s20", "s21"
sW4K, sW1K, sW2K = "s22", "s23", "s24"
sPW1, sPWO, sPW3, sPWD, sPWOp, sPW3p = "s25", "s26", "s27", "s28", "s29", "s30"
sDMA = "s31"; sA = "s32"; sT0, sT1, sT2, sT3 = "s33", "s34", "s35", "s36"
sFOWN, sFLINE, sKOWN, sKLINE = "s37", "s38", "s39", "s40"
sSTEP = "s41"; sTT2 = "s42"; sTT1 = "s43"
sFEX = "s[44:45]"
sMODE = "s46"; sSPIN = "s47"
sMK = ["s[48:49]", "s[50:51]", "s[52:53]", "s[54:55]", "s[56:57]", "s[58:59]"]
sXI = "s60"
sE6 = "s61"
sST = "s62"
sST2 = "s63"
sODD = "s64"
sXOFF, sXREM, sSTOFF, sAOFF, sOOFF = "s65", "s91", "s98", "s99", "s3"
sBIT2 = "s[66:67]"
sI8 = "s[68:69]"
sG23 = "s[70:71]"; sG3 = "s[72:73]"; sMK32 = "s[74:75]"
sTS = 76
sP0, sP1, sP2 = "s88", "s89", "s90"
PTD = "a255"
sR13, sR4, sRB, sRQ, sRT, sRT2 = "s84", "s85", "s86", "s87", "s100", "s101"
R13 = [4, 8, 12, 16]; R4V = [2, 14, 30, 42]
REGIONS = {"K1": [(0, 5, 20), (100, 3, 20)], "K2": [(0, 5, 20)], "K3": [(0, 4, 20), (80, 4, 20), (160, 4, 20), (240, 2, 20)], "K4": [(0, 5, 54)]}
ROTREG = {"K1": (sR13, R13), "K2": (sR13, R13), "K3": (sR13, R13), "K4": (sR4, R4V)}

vL16, vR1, vR2, vL16B = "v1", "v2", "v3", "v4"
vI4, vI4W, vG16, vG16W, vX3, vA3, vL8, vSTO, vACT6, vOREM, vOUT = [f"v{i}" for i in range(5, 16)]
vH16 = "v250"
RES = 16
WW = 36; NW = 16
ACC = 100
TMP = 212
CSVB = 140; RLB = 180


DBG = {}
class Seg:
    def __init__(s, cap=2):
        s.mf = []; s.gaps = [[]]; s.cost = [0]; s.cap = cap
    def n(s): return len(s.mf)
    def mfma(s, text, wvm=None, wlg=None):
        s.mf.append(Op(text, wvm=wvm, wlg=wlg)); s.gaps.append([]); s.cost.append(0)
        if wvm or wlg: s.cost[len(s.mf) - 1] += 1
        return len(s.mf) - 1
    def put(s, gap, op, cost=1):
        if isinstance(op, str): op = Op(op)
        gap = min(gap, len(s.gaps) - 1)
        s.gaps[gap].append(op); s.cost[gap] += cost
        return gap
    def place(s, op, earliest, cost=1, cap=None, latest=None):
        if cap is None: cap = s.cap
        g = max(0, min(earliest, len(s.gaps) - 1))
        last = len(s.gaps) - 1
        while g < last and s.cost[g] + cost > cap:
            if latest is not None and g >= latest: break
            g += 1
        return s.put(g, op, cost)
    def group(s, ops, earliest, maxcost=0):
        g = max(0, min(earliest, len(s.gaps) - 1))
        while g < len(s.gaps) - 1 and s.cost[g] > maxcost: g += 1
        for o in ops: s.put(g, o, 1)
        return g
    def stream(s, ops, earliest, cap=None, spacing=0):
        g = earliest
        for o in ops:
            c = 1
            if isinstance(o, tuple): o, c = o
            g = s.place(o, g, cost=c, cap=cap)
            g += spacing
        return g
    def emit(s, em):
        def keep(o):
            t = o.text
            if DBG.get("skipa") and t.startswith("buffer_load_dwordx4 a["): return False
            if DBG.get("skipw") and t.endswith(" lds"): return False
            if DBG.get("nobar") and t == "s_barrier":
                o.text = "s_nop 0"; return True
            if DBG.get("skipv") and t.startswith("v_") and not t.startswith(("v_mfma", "v_writelane")): return False
            if DBG.get("skipr") and t.startswith("ds_read"): return False
            return True
        for i in range(len(s.gaps)):
            for o in s.gaps[i]:
                if keep(o): em.op(o)
            if i < len(s.mf): em.op(s.mf[i])


STG0 = 160
vSTG0, vSTG1, vSTG2 = "v200", "v201", "v202"
def staged(r):
    n = DBG.get("stg", 0)
    return n and DBG.get("stg0", 26) <= r < DBG.get("stg0", 26) + n
class Ring:
    def __init__(s):
        s.issued = -1
        s.filled = -1
        s.allowed = -1
        s.q = []
    @staticmethod
    def info(r):
        rr = r % TOT_ROUNDS
        nxt = r >= TOT_ROUNDS
        for ph, (r0, nf) in PH.items():
            nrounds = (nf + 15) // 16
            if r0 <= rr < r0 + nrounds:
                k = rr - r0
                return ph, k, min(16, nf - 16 * k), nxt
        return None, 0, 0, nxt
    def jobs(s, r):
        ph, k, n, nxt = s.info(r)
        if ph is None: return []
        srd = S_WSN if nxt else S_WS
        pos = (r % NR) * 16384
        tag = ("dma", r)
        if staged(r):
            a0 = STG0 + 16 * (r - DBG.get("stg0", 26))
            va, off = (vSTG0, pos) if pos < 65536 else ((vSTG1, pos - 65536) if pos < 131072 else (vSTG2, pos - 131072))
            return [[Op(f"ds_write_b128 {va}, a[{a0+4*j}:{a0+4*j+3}] offset:{off + j*1024}", lg=("dmal", r), wvm=[("stg", r)])] for j in range(4)]
        if n > 8: c, m0s, base = 4, sW4K, {"K1": sPW1, "K2": sPWO, "K3": sPW3, "K4": sPWD}[ph]
        elif n > 4: c, m0s, base = 2, sW2K, sPW3p; assert ph == "K3" and n == 8
        else: c, m0s, base = 1, sW1K, sPWOp; assert ph == "K2" and n == 4
        nt = " nt" if (DBG.get("wnt", 0) >> {"K1": 0, "K2": 1, "K3": 2, "K4": 3}[ph]) & 1 else ""
        base4 = {"K1": sPW1, "K2": sPWO, "K3": sPW3, "K4": sPWD}[ph]
        pre = [Op(f"s_add_u32 m0, {m0s}, {pos}")]
        if not DBG.get("rot", 0):
            pre.append(Op(f"s_add_u32 {sDMA}, {base}, {(k % DBG.get('wmod', 1000))*16384}"))
        else:
            sR, rset = ROTREG[ph]
            regs = REGIONS[ph]
            def region(p):
                for i, (P0, cc, nb) in enumerate(regs):
                    if P0 <= p < P0 + cc * nb: return i
                return len(regs) - 1
            def setup(i):
                P0, cc, nb = regs[i]
                return [Op(f"s_mul_i32 {sRT}, {sR}, {cc}"), Op(f"s_lshl_b32 {sRQ}, {sW}, 2"), Op(f"s_add_u32 {sRQ}, {sRQ}, {sRT}"),
                        Op(f"s_lshl_b32 {sRT}, {sRT}, 10"), Op(f"s_add_u32 {sRB}, {base4}, {sRT}")]
            def addr(i, waves, dst):
                P0, cc, nb = regs[i]
                st = set()
                for w in waves:
                    for R in rset: st.add(16 * k + c * w + cc * R >= P0 + cc * nb)
                size = cc * nb * 1024
                if st == {False}: return [Op(f"s_add_u32 {dst}, {sRB}, {16384*k}")], False
                if st == {True}: return [Op(f"s_add_u32 {dst}, {sRB}, {(16384*k - size) & 0xffffffff}")], True
                assert c == 4
                T = P0 + cc * nb - 16 * k
                return [Op(f"s_add_u32 {dst}, {sRB}, {16384*k}"), Op(f"s_cmp_ge_u32 {sRQ}, {T}"), Op(f"s_cselect_b32 {sRT}, {size}, 0"),
                        Op(f"s_sub_u32 {dst}, {dst}, {sRT}")], None
            rw = [region(16 * k + c * w) for w in range(4)]
            prev_reg = region(16 * k - 4) if k > 0 else None
            if len(set(rw)) == 1:
                i = rw[0]
                if prev_reg != i: pre += setup(i)
                o, _ = addr(i, range(4), sDMA)
                pre += o
                if c != 4:
                    pre += [Op(f"s_sub_u32 {sDMA}, {sDMA}, {base4}"), Op(f"s_add_u32 {sDMA}, {sDMA}, {base}")]
            else:
                assert c == 4 and rw[0] == prev_reg and set(rw[1:]) == {rw[0] + 1}, (ph, k, rw)
                o, _ = addr(rw[0], [0], sRT2); pre += o
                pre += setup(rw[1])
                o, _ = addr(rw[1], [1, 2, 3], sDMA); pre += o
                pre += [Op(f"s_cmp_eq_u32 {sW}, 0"), Op(f"s_cselect_b32 {sDMA}, {sRT2}, {sDMA}")]
        out = []
        for j in range(c):
            ops = list(pre) if j == 0 else []
            ops.append(Op(f"buffer_load_dwordx4 {vL16}, {srd}, {sDMA} offen offset:{j*1024}{nt} lds", vm=tag))
            out.append(ops)
        return out
    def skip_virtual(s):
        while not s.q and s.issued < s.allowed and not s.jobs(s.issued + 1): s.issued += 1
    def next_round(s):
        r = s.issued + 1
        while not s.q and not s.jobs(r): r += 1
        return r
    def take(s):
        if not s.q:
            s.skip_virtual()
            if s.issued + 1 > s.allowed: return None
            s.q = s.jobs(s.issued + 1)
        j = s.q.pop(0)
        if not s.q:
            s.issued += 1
            s.skip_virtual()
        return j
    def emit(s, em, n=10**9, upto=None):
        k = 0
        while k < n:
            if upto is not None and s.next_round() > upto: break
            j = s.take()
            if j is None: break
            for o in j: em.op(o)
            k += 1
        return k


def wslot_addr(ph, f):
    r0, nf = PH[ph]
    r = r0 + f // 16
    a = (r % NR) * 16384 + (f % 16) * 1024
    if a < 65536: return vL16, a
    if a < 131072: return vR1, a - 65536
    return vR2, a - 131072


class WStream:
    cnt = 0
    def __init__(s, ring, seg, ph, SS=2, LA=10):
        s.ring = ring; s.seg = seg; s.ph = ph; s.SS = SS; s.LA = LA
        s.reg = {}; s.events = []
    def wreg(s, f):
        if f not in s.reg:
            s.reg[f] = WW + 4 * (WStream.cnt % NW); WStream.cnt += 1
        return s.reg[f]
    def reads(s, frags, first_use, last_use, force=(), nobar=(), wait_at=None, ming=0):
        seg = s.seg; ring = s.ring; r0, nf = PH[s.ph]
        prev = ming
        lastuse_slot = dict(getattr(s, 'lus', {}))
        filled = ring.filled
        lastbar = None
        rlast = r0 + frags[-1] // 16
        for f in frags:
            reg = s.reg[f]
            e = max(prev, first_use[f] - s.LA, lastuse_slot.get(reg, -1) + 1)
            lat = first_use[f] if wait_at is None else wait_at[f]
            e = max(0, min(e, lat))
            r = r0 + f // 16
            va, off = wslot_addr(s.ph, f)
            rd = Op(f"ds_read_b128 v[{reg}:{reg+3}], {va} offset:{off}", lg=("w", s.ph, f))
            need = r > filled
            want = (f % 16 == 0) and (r in force or (lastbar is not None and r - lastbar >= s.SS) or (lastbar is None and r - (r0 + frags[0] // 16) >= s.SS)) and r not in nobar
            if need or want:
                tgt = max(filled, min(r + s.SS - 1, rlast))
                g = e
                last = lat
                while g < last and seg.cost[g] + 1 > seg.cap: g += 1
                wt = [("dma", x) for x in range(filled + 1, tgt + 1) if not staged(x)]
                wl_ = [("dmal", x) for x in range(filled + 1, tgt + 1) if staged(x)]
                seg.put(g, Op("s_barrier", wvm=wt, wlg=wl_), 2)
                seg.put(g, rd, 1)
                filled = tgt
                prev = g
                lastbar = r
                s.events.append((g, r - 2 + NR, tgt))
            else:
                prev = seg.place(rd, e, latest=lat)
            lastuse_slot[reg] = last_use[f]
        s.lastbar = lastbar
        s.lus = lastuse_slot
        ring.filled = filled
    def vmem(s, ajobs, policy, rate=4.5, qd=36, backlog=0, margin=48, cap=None, burst0=True, stop=10**6):
        seg = s.seg; ring = s.ring
        if cap is None: cap = seg.cap
        n = len(seg.gaps)
        path = backlog
        ai = 0
        ev = list(s.events)
        def dma_deadline(r):
            for (g, al, tgt) in ev:
                if tgt >= r: return g
            return None
        evi = 0
        for (g, al, tgt) in ev:
            if g == 0: assert ring.issued >= tgt, ("rounds not issued before seg start", s.ph, tgt, ring.issued)
        for g in range(n):
            placed = 0
            while True:
                cands = []
                if ai < len(ajobs) and (len(ajobs[ai]) < 3 or g >= ajobs[ai][2]): cands.append((ajobs[ai][1], 0))
                r = ring.next_round()
                hard = dma_deadline(r)
                pe = policy(r)
                ok = (ring.q or r <= ring.allowed)
                if ok and (hard is not None or pe is not None):
                    dl = (hard - margin) if hard is not None else 10**6
                    start = pe if pe is not None else 0
                    if (g >= start and (hard is not None or g < stop)) or (hard is not None and g >= hard - 1): cands.append((dl, 1))
                    harddl = hard
                if not cands: break
                cands.sort()
                def isforced(c):
                    return (c[1] == 1 and hard is not None and g >= hard - 1) or (c[1] == 0 and g >= c[0])
                fc = [c for c in cands if isforced(c)]
                forced = bool(fc)
                dl, which = fc[0] if fc else cands[0]
                if not forced:
                    if path - g > qd: break
                    if (g > 0 or not burst0) and (seg.cost[g] + 1 > cap or placed >= 1): break
                if which == 0:
                    ops = ajobs[ai][0]; ai += 1
                else:
                    ops = ring.take(); assert ops is not None
                for o in ops: seg.put(g, o, 1)
                path = max(path, g) + rate
                placed += 1
            while evi < len(ev) and ev[evi][0] <= g:
                (eg, al, tgt) = ev[evi]; evi += 1
                assert ring.issued >= tgt, ("rounds not issued before barrier", s.ph, g, tgt, ring.issued)
                ring.allowed = max(ring.allowed, al)
        assert ai == len(ajobs)
        return path - n


def gen_main(opt):
    stop = opt.get("stop", 99)
    DBG.clear(); DBG.update(opt)
    stamps = opt.get("stamps", False)
    SS = opt.get("SS", 2)
    MARG = opt.get("marg", 72); QD = opt.get("qd", 36); RATE = opt.get("rate10", 45) / 10.0
    cur = {"sfx": "F", "STO": "", "LD": ""}
    em = Em()
    ring = Ring()
    WStream.cnt = 0
    nstamp = [0]
    def stamp():
        if not stamps: return
        k = nstamp[0]; nstamp[0] += 1
        em.raw(f"    s_waitcnt lgkmcnt(0)")
        em.e(f"s_memtime s[{sTS}:{sTS+1}]" if not opt.get("rt") else f"s_memrealtime s[{sTS}:{sTS+1}]")
        em.e(f"s_lshl_b32 s{sTS+2}, {sLAYER}, 4")
        em.e(f"s_add_u32 s{sTS+2}, s{sTS+2}, {k}")
        em.raw("    s_waitcnt lgkmcnt(0)")
        em.lg = []
        em.e(f"s_mov_b32 s{sTS+1}, m0")
        em.e(f"s_mov_b32 m0, s{sTS+2}"); em.e("s_nop 3")
        em.e(f"v_writelane_b32 v0, s{sTS}, m0")
        em.e(f"s_mov_b32 m0, s{sTS+1}")
    lsn = [0]
    def lstamp(seg, gap):
        if not opt.get("lst", 0): return
        lane = 32 + lsn[0]; lsn[0] += 1
        assert lane < 64
        rg = 96 if lane % 2 else 76
        seg.put(gap, f"s_memtime s[{rg}:{rg+1}]", 0)
        seg.put(gap + 12, f"v_writelane_b32 v0, s{rg}, {lane}", 0)
    def dump_stamps():
        if not stamps: return
        em.e("s_memrealtime s[96:97]")
        em.raw("    s_waitcnt lgkmcnt(0)")
        em.e("v_writelane_b32 v0, s92, 15"); em.e("v_writelane_b32 v0, s94, 30"); em.e("v_writelane_b32 v0, s96, 31")
        em.e(f"s_mov_b64 exec, s[{sTS+4}:{sTS+5}]")
        em.e(f"v_lshrrev_b32 v251, 2, {vL16}")
        em.e(f"v_add_u32 v251, s{sTS+3}, v251")
        em.e(f"global_store_dword v251, v0, s[{sTS+6}:{sTS+7}]")
        em.e("s_mov_b64 exec, -1")
        em.raw("    s_waitcnt vmcnt(0)")

    em.label(KNAME)
    em.e("s_cmp_ge_u32 s2, 256")
    em.e("s_cbranch_scc1 Lm_done")
    if stamps:
        em.e("s_memtime s[92:93]"); em.e("s_memrealtime s[94:95]")
    MONO = opt.get("mono", 0)
    if opt.get("sst"):
        em.e("s_memrealtime s[98:99]"); em.raw("    s_waitcnt lgkmcnt(0)"); em.e("s_mov_b32 s101, s98")
    if MONO:
        em.e("s_load_dwordx2 s[82:83], s[0:1], 64")
        MST = opt.get("mst", 0)
        for l in gen_prep("", mono=True, k3b=opt.get("k3b", 12), sfx={0: " sc1", 1: " sc0 sc1", 2: " sc1 nt", 3: "", 4: "", 5: " nt"}[MST], sx=opt.get("sx", 0), skipj=opt.get("skipj", 0)): em.raw(l)
        if opt.get("sx"):
            if opt["sx"] == 1: em.e("s_memrealtime s[78:79]")
            em.raw("    s_waitcnt vmcnt(0) lgkmcnt(0)")
            em.e("s_memrealtime s[76:77]"); em.raw("    s_waitcnt lgkmcnt(0)")
            if opt["sx"] == 1:
                em.e("v_mov_b32 v236, s101"); em.e("v_mov_b32 v237, s96"); em.e("v_mov_b32 v238, s78"); em.e("v_mov_b32 v239, s76")
            else:
                em.e("v_mov_b32 v236, s101"); em.e("v_mov_b32 v237, s80"); em.e("v_mov_b32 v238, s78"); em.e("v_mov_b32 v239, s96")
            em.e("s_lshl_b32 s33, s2, 4"); em.e("s_add_u32 s33, s33, 0x3000000"); em.e("v_mov_b32 v240, s33")
            em.e("s_cmp_lg_u32 s18, 0"); em.e("s_cbranch_scc1 Lm_done")
            em.e("s_mov_b64 exec, 1"); em.e("global_store_dwordx4 v240, v[236:239], s[16:17]"); em.e("s_endpgm")
        em.e(f"s_getreg_b32 {sMODE}, hwreg(HW_REG_XCC_ID)")
        em.e(f"s_lshr_b32 s33, {sMODE}, 12"); em.e("s_and_b32 s33, s33, 0x70"); em.e(f"s_and_b32 {sMODE}, {sMODE}, 15")
        em.e(f"s_or_b32 {sMODE}, {sMODE}, s33"); em.e(f"s_or_b32 {sMODE}, {sMODE}, 0x80")
        em.e(f"v_mov_b32 v254, {sMODE}"); em.e("v_mov_b32 v255, s2")
        em.raw("    s_waitcnt vmcnt(0) lgkmcnt(0)")
        em.e("s_barrier")
        em.e("s_cmp_lg_u32 s18, 0"); em.e("s_cbranch_scc1 Lm_nofl")
        if MST in (3, 5):
            em.e("buffer_wbl2 sc1"); em.raw("    s_waitcnt vmcnt(0)")
        em.e("s_mov_b64 exec, 1")
        em.e("global_store_byte v255, v254, s[82:83] sc1")
        em.e("s_mov_b64 exec, -1")
        em.label("Lm_nofl")
        if opt.get("sst"):
            em.e("s_memrealtime s[98:99]"); em.raw("    s_waitcnt lgkmcnt(0)"); em.e("s_mov_b32 s100, s98")
        if stamps:
            em.e("s_memtime s[96:97]"); em.raw("    s_waitcnt lgkmcnt(0)"); em.e("s_sub_u32 s96, s96, s92")
    pln = [0]
    def pls():
        if opt.get("pls") != 1: return
        em.e("s_memtime s[96:97]"); em.raw("    s_waitcnt lgkmcnt(0)"); em.e(f"v_mov_b32 v{236 + pln[0]}, s96"); pln[0] += 1
    em.e("s_load_dwordx2 s[8:9], s[0:1], 56"); em.e("s_load_dwordx2 s[10:11], s[0:1], 64")
    em.e("s_load_dwordx2 s[4:5], s[0:1], 72")
    em.e("v_lshrrev_b32 v2, 6, v0")
    em.e("v_and_b32 v0, 63, v0")
    em.e(f"v_readfirstlane_b32 {sW}, v2")
    em.e(f"v_lshlrev_b32 {vL16}, 4, v0")
    em.e("s_and_b32 s33, s2, 7"); em.e("s_lshr_b32 s34, s2, 3")
    em.e("s_and_b32 s35, s34, 1"); em.e(f"s_lshr_b32 {sM}, s34, 1")
    em.e("s_lshl_b32 s33, s33, 1"); em.e(f"s_add_u32 {sG}, s33, s35")
    em.e(f"s_and_b32 {sHALF}, {sM}, 1"); em.e(f"s_lshr_b32 {sC8}, {sM}, 1")
    em.e(f"s_lshl_b32 {sW4K}, {sW}, 12"); em.e(f"s_lshl_b32 {sW1K}, {sW}, 10"); em.e(f"s_lshl_b32 {sW2K}, {sW}, 11")
    def base(dst, reg0, sz, idx, wk, extra=0):
        em.e(f"s_mul_i32 {dst}, {idx}, {sz}"); em.e(f"s_add_u32 {dst}, {dst}, {reg0 + extra}"); em.e(f"s_add_u32 {dst}, {dst}, {wk}")
    base(sPW1, PW1, PW1_SZ, sM, sW4K); base(sPWO, PWO, PWO_SZ, sC8, sW4K)
    base(sPW3, PW3, PW3_SZ, sM, sW4K); base(sPWD, PWD, PWD_SZ, sC8, sW4K)
    base(sPWOp, PWO, PWO_SZ, sC8, sW1K); base(sPW3p, PW3, PW3_SZ, sM, sW2K)
    if opt.get("same", 0) & 1: base(sPW1, PW1, 0, sM, sW4K)
    if opt.get("same", 0) & 4: base(sPW3, PW3, 0, sM, sW4K); base(sPW3p, PW3, 0, sM, sW2K)
    if opt.get("same", 0) & 8: base(sPWD, PWD, 0, sC8, sW4K)
    em.e("s_waitcnt lgkmcnt(0)")
    pls()
    if stamps and not opt.get("rt") and not MONO:
        em.e(f"s_mov_b32 s{sTS+6}, s10"); em.e(f"s_mov_b32 s{sTS+7}, s11")
    if stamps and opt.get("rt"):
        em.e(f"s_add_u32 s{sTS+6}, s4, 0x3000000"); em.e(f"s_addc_u32 s{sTS+7}, s5, 0")
    if opt.get("wsoff", 0): em.e(f"s_add_u32 s4, s4, {opt['wsoff'] << 20}"); em.e("s_addc_u32 s5, s5, 0")
    em.e(f"s_mov_b32 s6, {WS_END}"); em.e("s_mov_b32 s7, 0x20000")
    em.e(f"s_mov_b32 s10, {2048*640*2}"); em.e("s_mov_b32 s11, 0x20000")
    em.e("s_mov_b32 s12, s4"); em.e("s_mov_b32 s13, s5"); em.e(f"s_mov_b32 s14, {WS_END}"); em.e("s_mov_b32 s15, 0x20000")
    em.e(f"s_and_b32 s33, {sG}, 1"); em.e(f"s_lshl_b32 s33, s33, 1"); em.e(f"s_add_u32 s33, s33, {sHALF}")
    if opt.get("rot", 0) == 2: em.e("s_mov_b32 s33, 0")
    em.e(f"s_lshl_b32 {sR13}, s33, 2"); em.e(f"s_add_u32 {sR13}, {sR13}, 4")
    em.e(f"s_mul_i32 {sR4}, s33, 12"); em.e(f"s_add_u32 {sR4}, {sR4}, 2"); em.e(f"s_cmp_ge_u32 s33, 2"); em.e(f"s_cselect_b32 s33, 4, 0"); em.e(f"s_add_u32 {sR4}, {sR4}, s33")
    HEAD = opt.get("head", 4)
    ring.allowed = 8
    if opt.get("probe"):
        pr = {1: [(sPW1, 0), (sPW1, 65536), (sOOFF, XB + 4096), (sPW1, 65536 + 64)],
              2: [(sOOFF, XB + 4096), (sOOFF, XB + 8192), (sPW3, 0), (sPWD, 0)],
              3: [(sOOFF, FLG_XCC), (sOOFF, ST), (sPW1, 0), (sPW1, 65536)]}[opt["probe"]]
        em.e(f"s_mul_i32 {sOOFF}, s2, 0")
        if opt["probe"] != 3: em.e(f"s_mul_i32 {sOOFF}, {sG}, {8*20480}")
        for (sr, off) in pr:
            em.e(f"s_add_u32 s33, {sr}, {off}")
            em.e(f"buffer_load_dword v241, off, {S_WS}, s33")
            em.raw("    s_waitcnt vmcnt(0)")
            pls()
        opt["pls"] = 2
    PEEL = opt.get("peel", 0) if not MONO else 0
    P1J = opt.get("p1j", 10)
    PA = opt.get("pa", 3)
    PBLK = [3, 6, 9, 12, 16, 19, 20]
    if PEEL:
        em.e(f"s_lshl_b32 s33, {sG}, 3"); em.e(f"s_lshl_b32 s34, {sW}, 1"); em.e(f"s_add_u32 {sTT2}, s33, s34")
        em.e(f"v_add_u32 {vL16B}, 20480, {vL16}")
        em.e(f"s_mul_i32 {sA}, {sTT2}, 20480"); em.e(f"s_add_u32 {sA}, {sA}, {XB}")
        b0 = 0
        for r in range(PA):
            if opt.get("pao", 0) == 0: ring.emit(em, upto=r)
            for b in range(b0, PBLK[r]):
                if b % 4 == 0 and b > 0: em.e(f"s_add_u32 {sA}, {sA}, 4096")
                for t in range(2):
                    rg = 80 * t + 4 * b
                    em.e(f"buffer_load_dwordx4 a[{rg}:{rg+3}], {vL16 if t == 0 else vL16B}, {S_WS}, {sA} offen offset:{(b % 4) * 1024}", vm=("a", b, t))
            b0 = PBLK[r]
            if opt.get("pao", 0) == 1: ring.emit(em, upto=r)
        ring.emit(em, upto=opt.get("pb", PA - 1))
    elif not MONO: ring.emit(em, upto=2)
    pls()
    AH = opt.get("ah", 0) if not MONO and not PEEL else 0
    def k1_hoist(ld):
        em.e(f"s_mul_i32 {sA}, {sXI}, {X_SZ}"); em.e(f"s_mul_i32 {sT0}, {sTT2}, 20480")
        em.e(f"s_add_u32 {sA}, {sA}, {sT0}"); em.e(f"s_add_u32 {sA}, {sA}, {XB}")
        for b in range(AH):
            if b % 4 == 0 and b > 0: em.e(f"s_add_u32 {sA}, {sA}, 4096")
            for t in range(2):
                r = 80 * t + 4 * b
                em.e(f"buffer_load_dwordx4 a[{r}:{r+3}], {vL16 if t == 0 else vL16B}, {S_WS}, {sA} offen offset:{(b % 4) * 1024}{ld}", vm=("a", b, t))
    if AH:
        assert not opt.get("rot", 0)
        if opt.get("aho", 0) == 0: ring.emit(em, upto=HEAD)
        em.e(f"s_lshl_b32 s33, {sG}, 3"); em.e(f"s_lshl_b32 s34, {sW}, 1"); em.e(f"s_add_u32 {sTT2}, s33, s34")
        em.e(f"s_mov_b32 {sXI}, 0"); em.e(f"v_add_u32 {vL16B}, 20480, {vL16}")
        k1_hoist("")
    em.e(f"s_lshl_b32 s33, {sG}, 7")
    em.e(f"s_add_u32 {sFLINE}, s33, {FLG_G}"); em.e(f"s_lshl_b32 s34, {sM}, 2"); em.e(f"s_add_u32 {sFOWN}, {sFLINE}, s34")
    em.e(f"s_lshl_b32 s33, {sM}, 7"); em.e(f"s_add_u32 {sKLINE}, s33, {FLG_KV}"); em.e(f"s_lshl_b32 s34, {sG}, 2"); em.e(f"s_add_u32 {sKOWN}, {sKLINE}, s34")
    em.e(f"s_lshl_b32 s33, {sG}, 3")
    em.e(f"s_lshl_b32 s34, {sW}, 1"); em.e(f"s_add_u32 {sTT2}, s33, s34")
    em.e(f"s_lshl_b32 s34, {sHALF}, 2"); em.e(f"s_add_u32 s34, s34, {sW}"); em.e(f"s_add_u32 {sTT1}, s33, s34")
    em.e(f"s_cmp_eq_u32 {sW}, 0"); em.e("s_cselect_b32 s44, 1, 0"); em.e("s_mov_b32 s45, 0")
    em.e(f"s_mov_b32 {sLAYER}, 0"); em.e(f"s_mov_b32 {sSTEP}, 0"); em.e(f"s_mov_b32 {sXI}, 0")
    em.e(f"s_mov_b32 {sE6}, {EPS6}")
    em.e(f"s_and_b32 {sODD}, {sC8}, 1")
    em.e(f"s_lshr_b32 s33, {sC8}, 1"); em.e("s_mul_i32 s33, s33, 5")
    em.e(f"s_lshl_b32 s34, {sODD}, 1"); em.e("s_add_u32 s34, s34, s33"); em.e("s_lshl_b32 s34, s34, 10")
    em.e(f"s_add_u32 s33, s33, 4"); em.e("s_lshl_b32 s33, s33, 10"); em.e(f"s_sub_u32 {sXREM}, s33, s34")
    em.e(f"s_mul_i32 s35, {sTT1}, 20480"); em.e(f"s_add_u32 s34, s34, s35"); em.e(f"s_add_u32 {sXOFF}, s34, {XB}")
    em.e(f"s_lshl_b32 s33, {sTT1}, 10"); em.e(f"s_lshl_b32 s34, {sC8}, 7"); em.e("s_add_u32 s33, s33, s34"); em.e(f"s_add_u32 {sSTOFF}, s33, {ST}")
    em.e(f"s_mul_i32 s33, {sTT2}, {54*1024}"); em.e(f"s_add_u32 {sAOFF}, s33, {ACT}")
    em.e(f"s_mul_i32 s33, {sTT2}, 20480"); em.e(f"s_add_u32 {sOOFF}, s33, {OB}")
    def m64(reg, val):
        a = int(reg[2:].split(":")[0])
        em.e(f"s_mov_b32 s{a}, {hex(val & 0xffffffff)}"); em.e(f"s_mov_b32 s{a+1}, {hex(val >> 32)}")
    m64(sMK[0], 0xFFFF); m64(sMK[1], 0xFFFF0000); m64(sMK[2], 0x0F000F000F000F00); m64(sMK[3], 0xF000F000F000F000)
    m64(sMK[4], 0x0F00); m64(sMK[5], 0xF0000000)
    m64(sBIT2, 0xF0F0F0F0F0F0F0F0); m64(sI8, 0x00FF00FF00FF00FF)
    m64(sG23, 0xFFFFFFFF00000000); m64(sG3, 0xFFFF000000000000); m64(sMK32, 0x00000000FFFFFFFF)
    if stamps:
        em.e(f"s_mov_b32 s{sTS+4}, 0"); em.e(f"s_mov_b32 s{sTS+5}, 0"); em.e(f"s_mov_b32 s{sTS+3}, {256 if MONO else 0}")
        em.e(f"s_sub_u32 s33, 0, s44")
        if opt.get("lst", 0) or MONO:
            em.e(f"s_cmp_eq_u32 s2, {opt.get('wg2', 0)}"); em.e(f"s_cselect_b32 s{sTS+4}, s33, 0"); em.e(f"s_mov_b32 s{sTS+5}, s{sTS+4}")
        if opt.get("rt"):
            em.e(f"s_mov_b32 s{sTS+4}, s33"); em.e(f"s_mov_b32 s{sTS+5}, 0"); em.e(f"s_lshl_b32 s{sTS+3}, s2, 7")
        elif not opt.get("lst", 0) and not MONO:
            em.e("s_cmp_eq_u32 s2, 0"); em.e(f"s_cselect_b32 s{sTS+4}, s33, 0")
            em.e(f"s_cmp_eq_u32 s2, {opt.get('wg2', 255)}"); em.e(f"s_cselect_b32 s{sTS+4}, s33, s{sTS+4}"); em.e(f"s_mov_b32 s34, {256 if MONO else 0}"); em.e(f"s_mov_b32 s35, {384 if MONO else 128}"); em.e(f"s_cselect_b32 s{sTS+3}, s35, s34")
    if not MONO:
        em.e(f"s_getreg_b32 {sMODE}, hwreg(HW_REG_XCC_ID)")
        em.e(f"s_and_b32 {sMODE}, {sMODE}, 0xffff"); em.e(f"s_add_u32 {sMODE}, {sMODE}, 1")
        em.e(f"v_mov_b32 v254, {sMODE}"); em.e("v_mov_b32 v255, 0")
        em.e(f"s_add_u32 s33, {sFOWN}, {FLG_XCC - FLG_G}")
        em.e(f"s_mov_b64 exec, {sFEX}")
        em.e(f"buffer_store_dword v254, v255, {S_WS}, s33 offen sc1")
        em.e("s_mov_b64 exec, -1")
    em.e("v_and_b32 v212, 15, v0"); em.e("v_lshrrev_b32 v213, 4, v0")
    em.e(f"v_add_u32 {vR1}, 0x10000, {vL16}"); em.e(f"v_add_u32 {vR2}, 0x20000, {vL16}"); em.e(f"v_add_u32 {vL16B}, 20480, {vL16}")
    em.e(f"v_lshlrev_b32 {vI4}, 2, v212"); em.e(f"v_add_u32 {vI4}, 0x20000, {vI4}")
    em.e(f"s_lshl_b32 s33, {sW}, 8")
    em.e(f"v_add_u32 {vI4W}, s33, {vI4}")
    em.e(f"v_lshlrev_b32 {vG16}, 4, v213"); em.e(f"v_add_u32 {vG16}, 0x20000, {vG16}"); em.e(f"v_add_u32 {vG16W}, s33, {vG16}")
    em.e("v_lshrrev_b32 v214, 5, v0"); em.e("v_bfe_u32 v215, v0, 4, 1")
    em.e("v_lshlrev_b32 v216, 8, v214"); em.e("v_lshlrev_b32 v217, 4, v212"); em.e("v_add_u32 v216, v216, v217")
    em.e(f"v_mul_u32_u24 v217, 20480, v215"); em.e(f"v_add_u32 {vX3}, v216, v217")
    em.e(f"v_mul_u32_u24 v217, {54*1024}, v215"); em.e(f"v_add_u32 {vA3}, v216, v217")
    em.e(f"v_lshlrev_b32 {vH16}, 4, v214"); em.e(f"v_add_u32 {vH16}, 0x20000, {vH16}")
    em.e(f"v_lshlrev_b32 {vL8}, 3, v0"); em.e(f"v_add_u32 {vL8}, 0x20000, {vL8}")
    em.e(f"v_lshlrev_b32 {vSTO}, 8, v213"); em.e("v_lshlrev_b32 v214, 3, v212"); em.e(f"v_add_u32 {vSTO}, {vSTO}, v214")
    em.e(f"s_mul_i32 s33, {sM}, 3"); em.e("v_lshrrev_b32 v214, 5, v0"); em.e("v_add_u32 v214, s33, v214")
    em.e("v_lshrrev_b32 v215, 3, v214"); em.e("v_add_u32 v215, 48, v215"); em.e("v_lshlrev_b32 v215, 10, v215")
    em.e("v_and_b32 v216, 3, v214"); em.e("v_lshlrev_b32 v216, 8, v216"); em.e("v_add_u32 v215, v215, v216")
    em.e("v_lshlrev_b32 v216, 4, v212"); em.e("v_add_u32 v215, v215, v216")
    em.e("v_bfe_u32 v216, v214, 2, 1"); em.e("v_lshlrev_b32 v216, 3, v216"); em.e(f"v_add_u32 v215, v215, v216")
    em.e("v_bfe_u32 v216, v0, 4, 1"); em.e(f"v_mul_u32_u24 v216, {54*1024}, v216"); em.e(f"v_add_u32 {vACT6}, v215, v216")
    em.e(f"s_lshr_b32 s33, {sM}, 2"); em.e("s_add_u32 s33, s33, 16"); em.e("s_lshl_b32 s33, s33, 10")
    em.e(f"s_and_b32 s34, {sM}, 1"); em.e("s_lshl_b32 s34, s34, 9"); em.e("s_add_u32 s33, s33, s34")
    em.e(f"s_bfe_u32 s34, {sM}, 0x10001"); em.e("s_lshl_b32 s34, s34, 3"); em.e("s_add_u32 s33, s33, s34")
    em.e("s_sub_u32 s33, s33, 512")
    em.e("v_lshlrev_b32 v215, 8, v213"); em.e("v_lshlrev_b32 v216, 4, v212"); em.e("v_add_u32 v215, v215, v216")
    em.e(f"v_add_u32 {vOREM}, s33, v215")
    em.e("v_mul_u32_u24 v215, 1280, v212"); em.e("v_lshlrev_b32 v216, 3, v213"); em.e(f"v_add_u32 {vOUT}, v215, v216")
    if MONO:
        em.e(f"s_cmp_lg_u32 {sW}, 0"); em.e("s_cbranch_scc1 Lm_sb_o")
        em.e("v_lshlrev_b32 v252, 2, v0")
        em.e(f"s_mov_b32 {sSPIN}, 0")
        em.label("Lm_sb_p")
        em.e("global_load_dword v253, v252, s[82:83] sc1")
        em.raw("    s_waitcnt vmcnt(0)")
        em.e("v_and_b32 v254, 0x80808080, v253")
        em.e("v_cmp_ne_u32 vcc, 0x80808080, v254")
        em.e(f"s_add_u32 {sSPIN}, {sSPIN}, 1")
        em.e(f"s_cmp_gt_u32 {sSPIN}, 200000")
        em.e("s_cbranch_scc1 Lm_sb_x")
        em.e("s_cbranch_vccnz Lm_sb_p")
        em.label("Lm_sb_x")
        em.e("s_and_b32 s33, s2, 3"); em.e("s_lshl_b32 s33, s33, 3")
        em.e("v_lshrrev_b32 v253, s33, v253"); em.e("v_and_b32 v253, 0xff, v253")
        em.e(f"v_cmp_ne_u32 vcc, {sMODE}, v253")
        em.e("s_bfe_u32 s33, s2, 0x20002"); em.e("s_mov_b32 s34, 0x11111111"); em.e("s_lshl_b32 s34, s34, s33"); em.e("s_mov_b32 s35, s34")
        em.e("s_and_b64 vcc, vcc, s[34:35]")
        em.e("s_cmp_lg_u64 vcc, 0"); em.e("s_cselect_b32 s33, 1, 0")
        if opt.get("force_slow", 0): em.e("s_mov_b32 s33, 1")
        em.e("v_mov_b32 v253, s33"); em.e(f"v_mov_b32 v252, {MISC + 12288}")
        em.e("ds_write_b32 v252, v253")
        em.raw("    s_waitcnt lgkmcnt(0)")
        em.label("Lm_sb_o")
        em.e("s_barrier")
        em.e(f"v_mov_b32 v252, {MISC + 12288}")
        em.e("ds_read_b32 v253, v252")
        ring.emit(em, upto=2)
        em.raw("    s_waitcnt lgkmcnt(0)")
        em.e(f"v_readfirstlane_b32 {sMODE}, v253")
        if opt.get("sst"):
            em.e("s_memrealtime s[76:77]"); em.raw("    s_waitcnt lgkmcnt(0)")
            em.e("v_mov_b32 v236, s101"); em.e("v_mov_b32 v237, s100"); em.e("v_mov_b32 v238, s76"); em.e("v_mov_b32 v239, 0")
            em.e("s_lshl_b32 s33, s2, 4"); em.e("s_add_u32 s33, s33, 0x3000000"); em.e("v_mov_b32 v240, s33")
            em.e("s_mov_b64 exec, 1"); em.e("global_store_dwordx4 v240, v[236:239], s[4:5]"); em.e("s_mov_b64 exec, -1")
        if stamps:
            em.e("s_memtime s[76:77]"); em.raw("    s_waitcnt lgkmcnt(0)"); em.e("s_sub_u32 s97, s76, s92")
    pls()
    em.e(f"s_mul_i32 s33, {sM}, 512"); em.e(f"s_add_u32 s33, s33, {CS1}")
    em.e(f"s_mul_i32 s34, {sM}, 896"); em.e(f"s_add_u32 s34, s34, {CS3}")
    em.e("v_and_b32 v214, 31, v0"); em.e("v_lshlrev_b32 v214, 4, v214"); em.e("v_lshrrev_b32 v215, 5, v0")
    em.e("v_mul_u32_u24 v215, 81920, v215"); em.e("v_add_u32 v214, v214, v215"); em.e("v_add_u32 v214, s33, v214")
    em.e(f"v_add_u32 v215, s34, {vL16}")
    em.e("v_mov_b32 v216, 0x7ffffff0")
    em.e("v_cmp_gt_u32 vcc, 56, v0"); em.e("v_cndmask_b32 v215, v216, v215, vcc")
    em.e(f"s_cmp_eq_u32 {sW}, 0"); em.e("s_mov_b32 s36, 14336"); em.e("s_cselect_b32 s36, 8192, s36"); em.e("s_cselect_b64 vcc, -1, 0")
    em.e("v_cndmask_b32 v214, v215, v214, vcc")
    em.e(f"s_cmp_ge_u32 {sW}, 2"); em.e("s_cselect_b64 vcc, -1, 0")
    em.e("v_cndmask_b32 v214, v214, v216, vcc")
    for k in range(10):
        em.e(f"buffer_load_dwordx4 v[{CSVB+4*k}:{CSVB+4*k+3}], v214, {S_WS}, 0 offen", vm="cs")
        if k < 9: em.e("v_add_u32 v214, s36, v214")
    RL = RLB
    em.e(f"s_lshr_b32 s33, {sC8}, 1"); em.e("s_mul_i32 s33, s33, 5")
    em.e(f"s_lshl_b32 s34, {sODD}, 1"); em.e("s_add_u32 s34, s34, s33")
    em.e(f"s_mul_i32 s35, {sTT1}, 20480"); em.e(f"s_add_u32 s35, s35, {XB}")
    em.e("s_lshl_b32 s34, s34, 10"); em.e("s_add_u32 s34, s34, s35")
    em.e(f"buffer_load_dwordx4 v[{RL}:{RL+3}], {vL16}, {S_WS}, s34 offen", vm="res")
    em.e(f"buffer_load_dwordx4 v[{RL+4}:{RL+7}], {vL16}, {S_WS}, s34 offen offset:1024", vm="res")
    em.e("s_add_u32 s33, s33, 4"); em.e("s_lshl_b32 s33, s33, 10"); em.e("s_add_u32 s33, s33, s35")
    em.e(f"s_lshl_b32 s34, {sODD}, 3"); em.e("s_add_u32 s33, s33, s34")
    em.e(f"buffer_load_dwordx2 v[{RL+8}:{RL+9}], {vL16}, {S_WS}, s33 offen", vm="res")

    def poll(line, target_expr_sreg, lbl):
        em.e(f"s_mov_b32 {sSPIN}, 0")
        em.e(f"v_subrev_u32 v252, 0x20000, {vI4}")
        em.label(lbl)
        em.e(f"buffer_load_dword v253, v252, {S_WS}, {line} offen sc1")
        em.raw("    s_waitcnt vmcnt(0)")
        em.e(f"v_cmp_gt_u32 vcc, {target_expr_sreg}, v253")
        em.e(f"s_add_u32 {sSPIN}, {sSPIN}, 1")
        em.e(f"s_cmp_gt_u32 {sSPIN}, 20000")
        em.e(f"s_cbranch_scc1 {lbl}_x")
        em.e(f"s_cbranch_vccnz {lbl}")
        em.label(lbl + "_x")
    uid = [0]
    def flag_store(own, val_sreg):
        em.e(f"v_mov_b32 v254, {val_sreg}")
        em.e("v_mov_b32 v255, 0")
        em.e(f"s_mov_b64 exec, {sFEX}")
        em.e(f"buffer_store_dword v254, v255, {S_WS}, {own} offen{cur['STO']}")
        em.e("s_mov_b64 exec, -1")
    def transition(pub, wait, last_round, sttags, need, d1, d2, upto2=None, defer0=False):
        uid[0] += 1; u = uid[0]
        if defer0:
            class Rec:
                def __init__(s_): s_.ops = []
                def op(s_, o): s_.ops.append(o)
            c1 = Rec(); ring.emit(c1, d1, upto=upto2)
            em.e(f"s_cmp_lg_u32 {sW}, 0"); em.e(f"s_cbranch_scc1 Lt{u}_a")
            vm0 = list(em.vm)
            em.wait(wvm=sttags)
            em.e(f"s_branch Lt{u}_b")
            em.label(f"Lt{u}_a")
            em.vm = vm0
            for o in c1.ops: em.op(o)
            em.wait(wvm=sttags)
            em.label(f"Lt{u}_b")
            em.e("s_barrier")
            ring.allowed = max(ring.allowed, last_round + NR)
            em.e(f"s_add_u32 {sT0}, {sSTEP}, {pub}")
            flag_store(sFOWN, sT0)
            c2 = Rec(); ring.emit(c2, d2, upto=upto2); ring.emit(c2, upto=need)
            assert ring.issued >= need
            em.e(f"s_cmp_lg_u32 {sW}, 0")
            em.e(f"s_cbranch_scc1 Lt{u}_c")
            em.e(f"s_add_u32 {sT0}, {sSTEP}, {wait}")
            poll(sFLINE, sT0, f"Lt{u}_p")
            if not (opt.get("dfskip", 0) and pub != 5):
                for o in c1.ops + c2.ops: em.raw("    " + o.text)
            em.e(f"s_branch Lt{u}_o")
            em.label(f"Lt{u}_c")
            for o in c2.ops: em.op(o)
            em.label(f"Lt{u}_o")
            em.wait(wvm=[("dma", x) for x in range(ring.filled + 1, need + 1)])
            ring.filled = max(ring.filled, need)
            em.e("s_barrier")
            return
        ring.emit(em, d1, upto=upto2)
        em.wait(wvm=sttags)
        em.e("s_barrier")
        ring.allowed = max(ring.allowed, last_round + NR)
        em.e(f"s_add_u32 {sT0}, {sSTEP}, {pub}")
        flag_store(sFOWN, sT0)
        ring.emit(em, d2, upto=upto2)
        ring.emit(em, upto=need)
        assert ring.issued >= need
        em.e(f"s_cmp_lg_u32 {sW}, 0")
        em.e(f"s_cbranch_scc1 Lt{u}_o")
        em.e(f"s_add_u32 {sT0}, {sSTEP}, {wait}")
        poll(sFLINE, sT0, f"Lt{u}_p")
        em.label(f"Lt{u}_o")
        em.wait(wvm=[("dma", x) for x in range(ring.filled + 1, need + 1)], wlg=[("dmal", x) for x in range(ring.filled + 1, need + 1)])
        ring.filled = max(ring.filled, need)
        em.e("s_barrier")

    def a_loads(n_tiles, nblk, ph, tagname, areg, m32=False):
        ops = []
        sR, rset = ROTREG[ph]
        rot = opt.get("rot", 0)
        for b in range(nblk):
            if b == 0 and rot:
                ops += [Op(f"s_lshl_b32 {sRT}, {sR}, 10"), Op(f"s_add_u32 {sA}, {sA}, {sRT}")]
            if b % 4 == 0 and b > 0:
                ops.append(Op(f"s_add_u32 {sA}, {sA}, 4096"))
                if rot and (nblk - b) in rset:
                    ops += [Op(f"s_cmp_eq_u32 {sR}, {nblk - b}"), Op(f"s_cselect_b32 {sRT}, {nblk*1024}, 0"), Op(f"s_sub_u32 {sA}, {sA}, {sRT}")]
            for t in range(n_tiles):
                r = areg(b, t)
                va = vL16 if t == 0 else vL16B
                off = (b % 4) * 1024
                if m32: va = vX3; off += 512 * t
                ops.append(Op(f"buffer_load_dwordx4 a[{r}:{r+3}], {va}, {S_WS}, {sA} offen offset:{off}{cur['LD']}", vm=(tagname, b, t)))
        return ops

    def a_jobs(al, dl):
        jobs = []; pend = []
        for o in al:
            pend.append(o)
            if o.vm is not None:
                jobs.append((pend, dl(o.vm[1]))); pend = []
        return jobs
    def stats_ops(base):
        ops = []
        for t in range(2):
            a = base + 4 * t; nm = base + 8 + 2 * t; rs = nm + 1; x = base + 12; y = base + 13
            ops.append(Op(f"v_add_f32 v{a}, v{a}, v{a+2}", wvm=[("st", t)]))
            ops.append(f"v_add_f32 v{a+1}, v{a+1}, v{a+3}")
            for sw in ("v_permlane32_swap_b32", "v_permlane16_swap_b32"):
                ops.append(f"v_mov_b32 v{x}, v{a}"); ops.append(f"v_mov_b32 v{y}, v{a+1}")
                ops.append(f"{sw} v{a}, v{x}"); ops.append(f"{sw} v{a+1}, v{y}")
                ops.append(f"v_add_f32 v{a}, v{a}, v{x}"); ops.append(f"v_add_f32 v{a+1}, v{a+1}, v{y}")
            ops.append(f"v_mul_f32 v{nm}, {hex(INV640 | 0x80000000)}, v{a}")
            ops.append(f"v_mul_f32 v{a+1}, {hex(INV640)}, v{a+1}")
            ops.append(f"v_fma_f32 v{a+1}, -v{nm}, v{nm}, v{a+1}")
            ops.append(f"v_max_f32 v{a+1}, 0, v{a+1}")
            ops.append(f"v_add_f32 v{a+1}, {hex(EPS5)}, v{a+1}")
            ops.append((Op(f"v_rsq_f32 v{rs}, v{a+1}"), 2))
        return ops
    def stats_loads(base):
        ops = []
        ops.append(Op(f"s_mul_i32 {sST}, {sXI}, {ST_SZ}"))
        ops.append(Op(f"s_lshl_b32 {sST2}, {sTT2}, 10"))
        ops.append(Op(f"s_add_u32 {sST}, {sST}, {sST2}"))
        ops.append(Op(f"s_add_u32 {sST}, {sST}, {ST}"))
        for t in range(2):
            a = base + 4 * t
            ops.append(Op(f"buffer_load_dwordx2 v[{a}:{a+1}], {vSTO}, {S_WS}, {sST} offen offset:{t*1024}{cur['LD']}", vm=("st", t)))
            ops.append(Op(f"buffer_load_dwordx2 v[{a+2}:{a+3}], {vSTO}, {S_WS}, {sST} offen offset:{t*1024+128}{cur['LD']}", vm=("st", t)))
        return ops
    def set_sA_x():
        em.e(f"s_mul_i32 {sA}, {sXI}, {X_SZ}"); em.e(f"s_mul_i32 {sT0}, {sTT2}, 20480")
        em.e(f"s_add_u32 {sA}, {sA}, {sT0}"); em.e(f"s_add_u32 {sA}, {sA}, {XB}")

    def phi_ops(acc, cs, nm, rs, rl, t1, t2):
        return [f"v_fmac_f32 v{acc}, v{nm}, v{cs}",
                f"v_mul_f32 v{t1}, v{acc}, v{rl}",
                (Op(f"v_exp_f32 v{t1}, v{t1} clamp"), 2),
                f"v_max_f32 v{acc}, 0, v{acc}",
                f"v_add_f32 v{t1}, {hex(EPS6)}, v{t1}",
                f"v_fma_f32 v{acc}, v{acc}, v{rs}, v{t1}"]
    def il(lists):
        out = []; k = 0
        while any(k < len(l) for l in lists):
            for l in lists:
                if k < len(l): out.append(l[k])
            k += 1
        return out
    def lin(ops):
        for o in ops:
            if isinstance(o, tuple): o = o[0]
            em.op(o)

    def reuse(): return cur["sfx"] == "F" and opt.get("reuse", 1)
    def LB(): return "0" if reuse() else sLAYER
    def pt(voff, srd, soff, imm=0):
        sc = {0: "", 1: " sc1", 2: " sc0", 3: " nt", 4: " sc0 sc1"}[opt.get("ptsc", 0)]
        if voff is None: return Op(f"buffer_load_dword {PTD}, off, {srd}, {soff} offset:{imm}{sc}", vm="pt")
        return Op(f"buffer_load_dword {PTD}, {voff}, {srd}, {soff} offen offset:{imm}{sc}", vm="pt")
    PTM = opt.get("ptm", 1); PTK = opt.get("ptk", 31)
    def PS(): return S_WSN if PTM == 2 else S_WS
    def pt_x(srd):
        return [f"s_mov_b32 {sP0}, 1" if reuse() else f"s_add_u32 {sP0}, {sXI}, 1", f"s_mul_i32 {sP1}, {sP0}, {X_SZ}", f"s_add_u32 {sP1}, {sP1}, {sXOFF}",
                pt(vL16, srd, sP1), pt(vL16, srd, sP1, 1024),
                f"s_add_u32 {sP1}, {sP1}, {sXREM}", pt(vL16, srd, sP1),
                f"s_mul_i32 {sP0}, {sP0}, {ST_SZ}", f"s_add_u32 {sP0}, {sP0}, {sSTOFF}", pt(None, srd, sP0)]
    def pt_act(p):
        ops = [f"s_mul_i32 {sP0}, {LB()}, {ACT_SZ}", f"s_add_u32 {sP0}, {sP0}, {sAOFF}"]
        if p < 3:
            ops += [f"s_lshl_b32 {sP1}, {sM}, 10", f"s_add_u32 {sP0}, {sP0}, {sP1}"]
            if p: ops.append(f"s_add_u32 {sP0}, {sP0}, {p*16384}")
            ops += [pt(vL16, PS(), sP0), f"s_add_u32 {sP0}, {sP0}, {54*1024}", pt(vL16, PS(), sP0)]
        else:
            ops += [pt(vACT6, PS(), sP0)]
        return ops
    def pt_o():
        return [f"s_mul_i32 {sP0}, {LB()}, {O_SZ}", f"s_add_u32 {sP0}, {sP0}, {sOOFF}",
                pt(vOREM, PS(), sP0), f"s_add_u32 {sP0}, {sP0}, 20480", pt(vOREM, PS(), sP0),
                f"s_lshl_b32 {sP1}, {sM}, 10", f"s_add_u32 {sP0}, {sP0}, {sP1}", pt(vL16, PS(), sP0), f"s_sub_u32 {sP0}, {sP0}, 20480", pt(vL16, PS(), sP0)]
    def pt_place(seg, ops, g):
        if cur["sfx"] != "F" or not opt.get("pt", 1): return g
        for o in ops:
            if isinstance(o, list): g = seg.group(o, g, maxcost=seg.cap - 1)
            else: g = seg.place(o, g)
        return g
    def pt_jobs(ops, earliest, dl):
        if cur["sfx"] != "F" or not opt.get("pt", 1): return []
        jobs = []; pend = []
        for o in ops:
            if isinstance(o, list):
                jobs.append((pend + [x if isinstance(x, Op) else Op(x) for x in o], dl, earliest)); pend = []
            elif isinstance(o, Op) and o.vm is not None:
                jobs.append((pend + [o], dl, earliest)); pend = []
            else: pend.append(o if isinstance(o, Op) else Op(o))
        assert not pend
        return jobs
    pfk = [0]
    def pf3(n, skip0):
        if cur["sfx"] != "F" or not n: return 0
        em.e(f"v_lshlrev_b32 v251, 3, {vL16}")
        em.e(f"s_and_b32 {sP1}, {sG}, 1"); em.e(f"s_lshl_b32 {sP1}, {sP1}, 15"); em.e(f"s_add_u32 {sP1}, {sP1}, {sPW3}"); em.e(f"s_add_u32 {sP1}, {sP1}, {sW4K}")
        uid[0] += 1; u = uid[0]
        if skip0:
            em.e(f"s_cmp_lg_u32 {sW}, 0"); em.e(f"s_cbranch_scc1 Lpf{u}_a")
            em.raw("    s_waitcnt vmcnt(0)")
            em.e(f"s_branch Lpf{u}_b")
            em.label(f"Lpf{u}_a")
        for k in range(n):
            em.e(f"s_add_u32 {sP0}, {sP1}, {opt.get('pfo', 32768) + 65536 * pfk[0]}"); pfk[0] += 1
            em.e(f"buffer_load_dword {PTD}, v251, {S_WS}, {sP0} offen", vm="pt")
        if skip0: em.label(f"Lpf{u}_b")
        return n
    def pf_place(seg, ph, off, key, nxt=False): pass
    def pf_now(ph, off, key, nxt=False): pass
    def prologue_end():
        if opt.get("xh", 1) and not MONO:
            em.e(f"s_add_u32 s33, {sFLINE}, {FLG_XCC - FLG_G}")
            em.e(f"v_subrev_u32 v252, 0x20000, {vI4}")
            em.e(f"buffer_load_dword v251, v252, {S_WS}, s33 offen sc1")
        if PEEL: return
        if PTM == 3 and opt.get("ptpos", 0) == 0: pt_all()
        ring.emit(em, upto=HEAD)
        if PTM == 3 and opt.get("ptpos", 0) == 1: pt_all()
        assert ring.issued == HEAD and not ring.q
    def pt_all():
        ops = (pt_o() if PTK & 1 else []) + (pt_x(S_WS) if PTK & 2 else []) + (pt_act(0) if PTK & 4 else [])
        if PTK & 8: ops += pt_act(1) + pt_act(2) + pt_act(3)
        for o in ops: em.op(o if isinstance(o, Op) else Op(o))
    join_state = [None]
    def K1_p1(peel):
        AX = lambda b, t: 80 * t + 4 * b
        SB = TMP
        NM4 = 226
        P1 = ACC
        nh = PBLK[PA - 1] if peel else AH
        if not nh: set_sA_x()
        seg = Seg(); ws = WStream(ring, seg, "K1", SS=(opt.get("pss", SS) if peel else SS))
        fu = {}; lu = {}
        for b in range(20):
            for t in range(5):
                f = b * 5 + t; wr = ws.wreg(f)
                for tok in range(2):
                    d = P1 + 8 * t + 4 * tok
                    c = "0" if b == 0 else f"v[{d}:{d+3}]"
                    wl = [("w", "K1", b * 5 + 4)] if (t == 0 and tok == 0) else None
                    wv = [("a", b, 1)] if (t == 0 and tok == 0) else None
                    i = seg.mfma(f"v_mfma_f32_16x16x32_bf16 v[{d}:{d+3}], a[{AX(b,tok)}:{AX(b,tok)+3}], v[{wr}:{wr+3}], {c}", wvm=wv, wlg=wl)
                    if t == 0 and tok == 0: g0 = i
                    fu.setdefault(f, g0); lu[f] = i
        if peel: cur["LD"] = ""
        al = a_loads(2, 20, "K1", "a", AX)
        sl = stats_loads(SB)
        for o in sl: seg.put(0, o, 0)
        ws.reads(list(range(100)), fu, lu, force=(6,))
        if peel:
            ws.vmem(a_jobs(al, lambda b: 10 * b - opt.get("pal", 60))[2 * nh:], lambda r: (0 if r <= 6 else opt.get("p7", 0)) if r <= P1J else None, margin=opt.get("pmarg", MARG), qd=opt.get("pqd", QD), rate=opt.get("pr1", 38) / 10.0)
        else:
            ws.vmem(a_jobs(al, lambda b: 10 * b - 30)[2 * nh:], lambda r: 0 if r <= 6 else (opt.get("k1w", 0) if r <= P1J or not PEEL else None), margin=MARG, qd=QD, rate=opt.get("r1", 38) / 10.0)
        so = stats_ops(SB)
        for t in range(2):
            nm = SB + 8 + 2 * t
            so.append(Op(f"ds_write_b32 {vI4W}, v{nm} offset:{L_STAT + t*128}", lg="sw"))
            so.append(Op(f"ds_write_b32 {vI4W}, v{nm+1} offset:{L_STAT + t*128 + 64}", lg="sw"))
        for t in range(2):
            so.append(Op(f"ds_read_b128 v[{NM4+8*t}:{NM4+8*t+3}], {vG16W} offset:{L_STAT + t*128}", lg="sr", wlg=["sw"]))
            so.append(Op(f"ds_read_b128 v[{NM4+8*t+4}:{NM4+8*t+7}], {vG16W} offset:{L_STAT + t*128 + 64}", lg="sr"))
        for t in range(2):
            for r in range(4):
                so.append(Op(f"v_mul_f32 v{242+4*t+r}, {hex(LOG2E)}, v{NM4+8*t+4+r}", wlg=["sr"]))
        seg.stream(so, opt.get("pst0", 100) if peel else 40)
        if peel and opt.get("pcs", 0):
            co = []
            for k in range(1, 10):
                for q in range(4): co.append(Op(f"v_add_f32 v{CSVB+q}, v{CSVB+q}, v{CSVB+4*k+q}", wvm=["cs"] if (k == 1 and q == 0) else None))
            for q in range(4):
                co.append(f"v_mov_b32 v{CSVB+4+q}, v{CSVB+q}"); co.append(f"v_mov_b32 v{CSVB+8+q}, v{CSVB+q}")
            for q in range(4): co.append(f"v_permlane32_swap_b32 v{CSVB+4+q}, v{CSVB+8+q}")
            g = seg.stream(co, opt["pcs"], cap=4); co = []
            g = seg.group([Op(f"s_cmp_eq_u32 {sW}, 0"), Op("s_cselect_b64 vcc, -1, 0")], g, maxcost=10)
            for q in range(4):
                co.append(f"v_add_f32 v{CSVB+4+q}, v{CSVB+4+q}, v{CSVB+8+q}")
                co.append(f"v_cndmask_b32 v{CSVB+q}, v{CSVB+q}, v{CSVB+4+q}, vcc")
            for q in range(10):
                co.append(Op(f"v_lshlrev_b32 v{RES+2*q}, 16, v{RLB+q}", wvm=["res"] if q == 0 else None))
                co.append(f"v_and_b32 v{RES+2*q+1}, 0xffff0000, v{RLB+q}")
            g = seg.stream(co, g, cap=4)
            grp = [f"s_cmp_eq_u32 {sW}, 0", f"s_mov_b32 {sT0}, {L_CS3}", f"s_cselect_b32 {sT0}, {L_CS1}, {sT0}", f"s_cselect_b32 {sT1}, 32, 56",
                   f"s_cmp_ge_u32 {sW}, 2", f"s_cselect_b32 {sT1}, 0, {sT1}", f"v_add_u32 v254, {sT0}, {vR2}", f"v_lshrrev_b32 v255, 4, {vL16}",
                   f"v_cmp_gt_u32 vcc, {sT1}, v255", "s_and_saveexec_b64 s[34:35], vcc", Op(f"ds_write_b128 v254, v[{CSVB}:{CSVB+3}]", lg="csw"), "s_mov_b64 exec, s[34:35]"]
            g = seg.group([o if isinstance(o, Op) else Op(o) for o in grp], g + 1, maxcost=10)
            gl = ws.events[-1][0]
            assert g < gl, (g, gl)
            nb = 0
            for o in seg.gaps[gl]:
                if o.text == "s_barrier": o.wlg = list(o.wlg or []) + ["csw"]; nb += 1
            assert nb == 1
        for g in ((1, 50, 100, 150) if not opt.get('ls2') else range(1, 200, 20)): lstamp(seg, g)
        seg.emit(em)
        if PEEL: ring.emit(em, upto=P1J)
        sys.stderr.write(f"p1 end: issued {ring.issued} q {len(ring.q)} filled {ring.filled} allowed {ring.allowed} vm {em.vm} ev {ws.events}\n")
        return ws
    def K1_first(peel):
        if peel and opt.get("pcs", 0): K1_sel(peel); return
        for k in range(1, 10):
            for q in range(4): em.e(f"v_add_f32 v{CSVB+q}, v{CSVB+q}, v{CSVB+4*k+q}")
        for q in range(4):
            em.e(f"v_mov_b32 v{CSVB+4+q}, v{CSVB+q}"); em.e(f"v_mov_b32 v{CSVB+8+q}, v{CSVB+q}")
        for q in range(4):
            em.e(f"v_permlane32_swap_b32 v{CSVB+4+q}, v{CSVB+8+q}")
        em.e(f"s_cmp_eq_u32 {sW}, 0"); em.e("s_cselect_b64 vcc, -1, 0")
        for q in range(4):
            em.e(f"v_add_f32 v{CSVB+4+q}, v{CSVB+4+q}, v{CSVB+8+q}")
            em.e(f"v_cndmask_b32 v{CSVB+q}, v{CSVB+q}, v{CSVB+4+q}, vcc")
        em.e(f"s_cmp_eq_u32 {sW}, 0"); em.e(f"s_mov_b32 {sT0}, {L_CS3}"); em.e(f"s_cselect_b32 {sT0}, {L_CS1}, {sT0}"); em.e(f"s_cselect_b32 {sT1}, 32, 56")
        em.e(f"s_cmp_ge_u32 {sW}, 2"); em.e(f"s_cselect_b32 {sT1}, 0, {sT1}")
        em.e(f"v_add_u32 v254, {sT0}, {vR2}")
        em.e(f"v_lshrrev_b32 v255, 4, {vL16}")
        em.e(f"v_cmp_gt_u32 vcc, {sT1}, v255")
        em.e("s_and_saveexec_b64 s[34:35], vcc")
        em.e(f"ds_write_b128 v254, v[{CSVB}:{CSVB+3}]")
        em.e("s_mov_b64 exec, s[34:35]")
        for q in range(10):
            em.e(f"v_lshlrev_b32 v{RES+2*q}, 16, v{RLB+q}")
            em.e(f"v_and_b32 v{RES+2*q+1}, 0xffff0000, v{RLB+q}")
        em.raw("    s_waitcnt lgkmcnt(0)")
        em.e("s_barrier")
        K1_sel(peel)
    def K1_sel(peel):
        if cur["sfx"] == "F" and not MONO:
            uid[0] += 1; u = uid[0]
            em.e(f"s_add_u32 {sT1}, {sFLINE}, {FLG_XCC - FLG_G}")
            if opt.get("xh", 1):
                em.e(f"v_mov_b32 v253, v251")
                em.e(f"v_cmp_gt_u32 vcc, 1, v253")
                em.e(f"s_cbranch_vccz Lx{u}_p_x")
            poll(sT1, "1", f"Lx{u}_p")
            em.e(f"v_cmp_ne_u32 vcc, {sMODE}, v253")
            if opt.get("force_slow", 0): em.e("s_branch Lk1_nocsS")
            em.e("s_cbranch_vccnz Lk1_nocsS")
        if peel: em.e("s_branch Lk1_nocsF")
    def K1():
        AX = lambda b, t: 80 * t + 4 * b
        SB = TMP; NM4 = 226; P1 = ACC
        ws = K1_p1(False)
        stamp()
        svm = list(em.vm)
        if PEEL:
            svm = [t for t in svm if isinstance(t, tuple) and t[0] == "dma"]
            js = join_state[0]
            assert (ring.issued, ring.filled, ring.allowed, WStream.cnt) == (js[0], js[1], js[2], js[4]), ((ring.issued, ring.filled, ring.allowed, WStream.cnt), js)
            na, nb_ = len(svm), len(js[3])
            if na <= nb_: assert js[3][nb_ - na:] == svm; svm = list(js[3])
            else: assert svm[na - nb_:] == js[3]
        else:
            em.e(f"s_cmp_lg_u32 {sLAYER}, 0"); em.e(f"s_cbranch_scc1 Lk1_nocs{cur['sfx']}")
            K1_first(False)
        em.label(f"Lk1_nocs{cur['sfx']}")
        em.vm = svm; em.lg = []
        em.raw("    s_waitcnt lgkmcnt(0)")
        if not opt.get('k1n', 1):
            CS = 140
            for t in range(5):
                em.e(f"ds_read_b32 v{CS+t}, {vI4} offset:{L_CS1 + t*64}", lg="cs")
            KF = 148
            T1, T2 = 172, 173
            def nmr(tok, r): return NM4 + 8 * tok + r
            def rsr(tok, r): return NM4 + 8 * tok + 4 + r
            def rlr(tok, r): return 242 + 4 * tok + r
            em.wait(wlg=["cs"])
            XV = 176
            ops = []
            streams = []
            tmpc = [180]
            for (t, fr_) in ((0, KF), (1, KF + 4), (4, KF + 16)):
                for tok in range(2):
                    for r in range(4):
                        a = P1 + 8 * t + 4 * tok + r
                        tt = 184 + (len(streams) % 8)
                        if t == 4:
                            s_ = [f"v_fmac_f32 v{a}, v{nmr(tok,r)}, v{CS+t}",
                                  f"v_mul_f32 v{XV+4*tok+r}, v{a}, v{rsr(tok,r)}",
                                  f"v_mul_f32 v{tt}, v{a}, v{rlr(tok,r)}",
                                  f"v_exp_f32 v{tt}, v{tt} clamp",
                                  f"v_max_f32 v{a}, 0, v{a}",
                                  f"v_add_f32 v{tt}, {hex(EPS6)}, v{tt}",
                                  f"v_fma_f32 v{a}, v{a}, v{rsr(tok,r)}, v{tt}"]
                        else:
                            s_ = [x[0] if isinstance(x, tuple) else x for x in phi_ops(a, CS + t, nmr(tok, r), rsr(tok, r), rlr(tok, r), tt, None)]
                        streams.append(s_)
            for k in range(0, len(streams), 4):
                lin(il(streams[k:k + 4]))
                ring.emit(em, 4)
            for t in (2, 3):
                for tok in range(2):
                    for r in range(4):
                        a = P1 + 8 * t + 4 * tok + r
                        em.e(f"v_fmac_f32 v{a}, v{nmr(tok,r)}, v{CS+t}")
                    for r in range(4):
                        a = P1 + 8 * t + 4 * tok + r
                        em.e(f"v_mul_f32 v{a}, v{a}, v{rsr(tok,r)}")
            for k in range(8):
                em.e(f"v_cndmask_b32 v{XV+k}, v{XV+k}, 1.0, {sI8}")
            def pack(dst, src_tok0, src_tok1):
                em.e(f"v_cvt_pk_bf16_f32 v{dst}, v{src_tok0}, v{src_tok0+1}"); em.e(f"v_cvt_pk_bf16_f32 v{dst+1}, v{src_tok0+2}, v{src_tok0+3}")
                em.e(f"v_cvt_pk_bf16_f32 v{dst+2}, v{src_tok1}, v{src_tok1+1}"); em.e(f"v_cvt_pk_bf16_f32 v{dst+3}, v{src_tok1+2}, v{src_tok1+3}")
            K0f, K1f, V0f, V1f, XKf, XPf = KF, KF + 4, KF + 8, KF + 12, KF + 16, KF + 20
            pack(K0f, P1 + 0, P1 + 4); pack(K1f, P1 + 8, P1 + 12); pack(V0f, P1 + 16, P1 + 20); pack(V1f, P1 + 24, P1 + 28)
            pack(XKf, P1 + 32, P1 + 36); pack(XPf, XV, XV + 4)
            D = 184
            for k, (A_, B_) in enumerate([(K0f, V0f), (K1f, V1f), (XKf, V0f), (XKf, V1f), (K0f, XPf), (K1f, XPf), (XKf, XPf)]):
                em.e(f"v_mfma_f32_16x16x32_bf16 v[{D+4*k}:{D+4*k+3}], v[{A_}:{A_+3}], v[{B_}:{B_+3}], 0")
            D1, D2, D3, D4, D5, D6, D7 = [D + 4 * k for k in range(7)]
            for r in range(4):
                em.e(f"v_cndmask_b32 v{D5+r}, v{D5+r}, v{D6+r}, {sBIT2}")
                em.e(f"v_cndmask_b32 v{D3+r}, v{D3+r}, v{D4+r}, {sMK[1]}")
            for r in range(4):
                em.e(f"v_permlane32_swap_b32 v{D3+r}, v{D7+r}")
            ring.emit(em, upto=13)
            assert ring.issued <= 13 and ring.next_round() <= 14 and not ring.q and ws.lastbar >= 6, (ring.issued, ws.lastbar)
            RP = (14 % NR) * 16384 - 65536
            em.e(f"v_add_u32 v254, {sW1K}, {vR1}"); em.e(f"v_add_u32 v255, {sW4K}, {vR1}")
            for t, src in enumerate((D1, D2, D5, D3)):
                em.e(f"ds_write_b128 v254, v[{src}:{src+3}] offset:{RP + t*4096}", lg="red")
            em.wait_all_lg()
            em.wait(wvm=[("dma", x) for x in range(ring.filled + 1, 9)])
            ring.filled = 8
            em.e("s_barrier")
            for k in range(4):
                em.e(f"ds_read_b128 v[{D+4*k}:{D+4*k+3}], v255 offset:{RP + k*1024}", lg=("rr", k))
            em.e(f"s_mul_i32 {sST}, {sLAYER}, {KVP_L}"); em.e(f"s_lshl_b32 {sST2}, {sM}, 16"); em.e(f"s_add_u32 {sST}, {sST}, {sST2}")
            em.e(f"s_add_u32 {sST}, {sST}, {KVP}"); em.e(f"s_add_u32 {sST}, {sST}, {sW1K}")
            em.e(f"s_lshl_b32 {sST2}, {sG}, 12"); em.e(f"s_add_u32 {sST2}, {sST2}, {sST}")
            for q in range(4): em.e(f"v_add_f32 v{D+q}, v{D+q}, v{D+4+q}", wlg=[("rr", 1)] if q == 0 else None)
            for q in range(4): em.e(f"v_add_f32 v{D+8+q}, v{D+8+q}, v{D+12+q}", wlg=[("rr", 3)] if q == 0 else None)
            for q in range(4): em.e(f"v_add_f32 v{D+q}, v{D+q}, v{D+8+q}")
            em.e(f"buffer_store_dwordx4 v[{D}:{D+3}], {vL16}, {S_WS}, {sST2} offen sc1", vm="kvst")
            stamp()
            P2 = ACC
            seg = Seg(); ws2 = WStream(ring, seg, "K1", SS=SS)
            fu = {}; lu = {}
            for b in range(20):
                for t in range(3):
                    f = 100 + 3 * b + t; wr = ws2.wreg(f)
                    for tok in range(2):
                        d = P2 + 8 * t + 4 * tok
                        c = "0" if b == 0 else f"v[{d}:{d+3}]"
                        wl = [("w", "K1", 100 + 3 * b + 2)] if (t == 0 and tok == 0) else None
                        i = seg.mfma(f"v_mfma_f32_16x16x32_bf16 v[{d}:{d+3}], v[{wr}:{wr+3}], a[{AX(b,tok)}:{AX(b,tok)+3}], {c}", wlg=wl)
                        if t == 0 and tok == 0: g0 = i
                        fu.setdefault(f, g0); lu[f] = i
            ws2.reads(list(range(100, 160)), fu, lu, nobar=(7, 8))
            assert len(ws2.events) == 1
            gb = ws2.events[0][0]
            for o in seg.gaps[gb]:
                if o.text == "s_barrier": o.wvm = list(o.wvm) + ["kvst"]
            pub = [Op(f"s_add_u32 {sT0}, {sLAYER}, 1"),
                   Op(f"v_mov_b32 v254, {sT0}"), Op("v_mov_b32 v255, 0"),
                   Op(f"s_mov_b64 exec, {sFEX}"),
                   Op(f"buffer_store_dword v254, v255, {S_WS}, {sKOWN} offen sc1"),
                   Op("s_mov_b64 exec, -1")]
            g = seg.stream(pub[:3], gb - 6)
            assert g < gb
            for o in pub[3:]: seg.put(gb + 1, o, 1)
            g = pt_place(seg, pt_o(), 2)
            g = pt_place(seg, pt_x(S_WS), g)
            g = pt_place(seg, pt_act(0), g)
            pf_place(seg, "K3", 32768, "pa1"); pf_place(seg, "K3", 32768 + 65536, "pa2"); pf_place(seg, "K3", 32768 + 2*65536, "pa3"); pf_place(seg, "K3", 32768 + 3*65536, "pa4")
            ws2.vmem([], lambda r: 0, margin=MARG, qd=QD, rate=RATE)
            CS4 = 140
            seg.stream([Op(f"ds_read_b128 v[{CS4+4*t}:{CS4+4*t+3}], {vG16} offset:{L_CS1 + (5+t)*64}", lg="cs4") for t in range(3)], 60)
            RLI = 152
            seg.stream([f"v_mul_f32 v{RLI+t}, {hex(LOG2E)}, v{SB+8+2*t+1}" for t in range(2)], 70)
            seg.emit(em)
            stamp()
            em.wait(wlg=["cs4"])
            streams = []
            for t in range(3):
                for tok in range(2):
                    for r in range(4):
                        a = P2 + 8 * t + 4 * tok + r
                        tt = 184 + (len(streams) % 8)
                        streams.append([x[0] if isinstance(x, tuple) else x for x in phi_ops(a, CS4 + 4 * t + r, SB + 8 + 2 * tok, SB + 8 + 2 * tok + 1, RLI + tok, tt, None)])
            for k in range(0, len(streams), 4):
                lin(il(streams[k:k + 4]))
                ring.emit(em, 2)
            F = 156
            for tok in range(2):
                qa = P2 + 4 * tok; qb = P2 + 8 + 4 * tok; qx = P2 + 16 + 4 * tok
                fa = F + 8 * tok; fb = fa + 4
                em.e(f"v_cvt_pk_bf16_f32 v{fa}, v{qa}, v{qa+1}"); em.e(f"v_cvt_pk_bf16_f32 v{fa+1}, v{qa+2}, v{qa+3}")
                em.e(f"v_cvt_pk_bf16_f32 v{fa+2}, v{qx}, v{qx+1}"); em.e(f"v_cvt_pk_bf16_f32 v{fa+3}, v{qx+2}, v{qx+3}")
                em.e(f"v_cvt_pk_bf16_f32 v{fb}, v{qb}, v{qb+1}"); em.e(f"v_cvt_pk_bf16_f32 v{fb+1}, v{qb+2}, v{qb+3}")
                em.e(f"v_mov_b32 v{fb+2}, v{fa+2}"); em.e(f"v_mov_b32 v{fb+3}, v{fa+3}")
            uid[0] += 1; u = uid[0]
            em.e(f"s_cmp_lg_u32 {sW}, 0")
            em.e(f"s_cbranch_scc1 Lkv{u}_o")
            em.e(f"s_add_u32 {sT0}, {sLAYER}, 1")
            poll(sKLINE, sT0, f"Lkv{u}_p")
            em.label(f"Lkv{u}_o")
            em.e("s_barrier")
            ring.allowed = max(ring.allowed, 18)
            KL = 172
            for Gp in range(16):
                if Gp % 1 == 0: em.e(f"s_add_u32 {sST2}, {sST}, {Gp*4096}")
                em.e(f"buffer_load_dwordx4 v[{KL+4*Gp}:{KL+4*Gp+3}], {vL16}, {S_WS}, {sST2} offen sc1", vm=("kl", Gp))
            ring.emit(em, upto=18)
            pf_now("K3", 32768, "pb1"); pf_now("K3", 32768 + 65536, "pb2"); pf_now("K3", 32768 + 2*65536, "pb3"); pf_now("K3", 32768 + 3*65536, "pb4")
            for Gp in range(1, 16):
                for q in range(4):
                    em.e(f"v_add_f32 v{KL+q}, v{KL+q}, v{KL+4*Gp+q}", wvm=[("kl", Gp)] if q == 0 else None)
        else:
            CS = 140
            for t in range(5):
                em.e(f"ds_read_b32 v{CS+t}, {vI4} offset:{L_CS1 + t*64}", lg="cs")
            KF = 148
            def nmr(tok, r): return NM4 + 8 * tok + r
            def rsr(tok, r): return NM4 + 8 * tok + 4 + r
            def rlr(tok, r): return 242 + 4 * tok + r
            XV = 172
            TT = 180
            P2 = 188
            em.e(f"s_mul_i32 {sST}, {sLAYER}, {KVP_L}"); em.e(f"s_lshl_b32 {sST2}, {sM}, 16"); em.e(f"s_add_u32 {sST}, {sST}, {sST2}")
            em.e(f"s_add_u32 {sST}, {sST}, {KVP}"); em.e(f"s_add_u32 {sST}, {sST}, {sW1K}")
            em.e(f"s_lshl_b32 {sST2}, {sG}, 12"); em.e(f"s_add_u32 {sST2}, {sST2}, {sST}")
            em.e(f"v_add_u32 v254, {sW1K}, {vR1}"); em.e(f"v_add_u32 v255, {sW4K}, {vR1}")
            seg = Seg(); ws2 = WStream(ring, seg, "K1", SS=SS)
            fu = {}; lu = {}
            for b in range(20):
                for t in range(3):
                    f = 100 + 3 * b + t; wr = ws2.wreg(f)
                    for tok in range(2):
                        d = P2 + 8 * t + 4 * tok
                        c = "0" if b == 0 else f"v[{d}:{d+3}]"
                        wl = [("w", "K1", 100 + 3 * b + 2)] if (t == 0 and tok == 0) else None
                        i = seg.mfma(f"v_mfma_f32_16x16x32_bf16 v[{d}:{d+3}], v[{wr}:{wr+3}], a[{AX(b,tok)}:{AX(b,tok)+3}], {c}", wlg=wl)
                        if t == 0 and tok == 0: g0 = i
                        fu.setdefault(f, g0); lu[f] = i
            assert ring.filled == 6, ring.filled
            ws2.reads(list(range(100, 144)), fu, lu)
            assert len(ws2.events) == 1 and ws2.events[0][2] == 8, ws2.events
            ws2.events[0] = (ws2.events[0][0], 13, 8)
            streams = []
            def phi_stream(t):
                for tok in range(2):
                    for r in range(4):
                        a = P1 + 8 * t + 4 * tok + r
                        tt = TT + (len(streams) % 8)
                        if t == 4:
                            s_ = [f"v_fmac_f32 v{a}, v{nmr(tok,r)}, v{CS+t}",
                                  f"v_mul_f32 v{XV+4*tok+r}, v{a}, v{rsr(tok,r)}",
                                  f"v_mul_f32 v{tt}, v{a}, v{rlr(tok,r)}",
                                  (Op(f"v_exp_f32 v{tt}, v{tt} clamp"), 2),
                                  f"v_max_f32 v{a}, 0, v{a}",
                                  f"v_add_f32 v{tt}, {hex(EPS6)}, v{tt}",
                                  f"v_fma_f32 v{a}, v{a}, v{rsr(tok,r)}, v{tt}"]
                        else:
                            s_ = phi_ops(a, CS + t, nmr(tok, r), rsr(tok, r), rlr(tok, r), tt, None)
                        streams.append(s_)
            for t in (0, 1, 4): phi_stream(t)
            ko = []
            for k in range(0, len(streams), 4): ko += il(streams[k:k + 4])
            o0 = ko[0]; o0 = Op(o0, wlg=["cs"]); ko[0] = o0
            for t in (2, 3):
                for tok in range(2):
                    for r in range(4):
                        a = P1 + 8 * t + 4 * tok + r
                        ko.append(f"v_fmac_f32 v{a}, v{nmr(tok,r)}, v{CS+t}")
                    for r in range(4):
                        a = P1 + 8 * t + 4 * tok + r
                        ko.append(f"v_mul_f32 v{a}, v{a}, v{rsr(tok,r)}")
            for k in range(8):
                ko.append(f"v_cndmask_b32 v{XV+k}, v{XV+k}, 1.0, {sI8}")
            def pack(dst, src_tok0, src_tok1):
                return [f"v_cvt_pk_bf16_f32 v{dst}, v{src_tok0}, v{src_tok0+1}", f"v_cvt_pk_bf16_f32 v{dst+1}, v{src_tok0+2}, v{src_tok0+3}",
                        f"v_cvt_pk_bf16_f32 v{dst+2}, v{src_tok1}, v{src_tok1+1}", f"v_cvt_pk_bf16_f32 v{dst+3}, v{src_tok1+2}, v{src_tok1+3}"]
            K0f, K1f, V0f, V1f, XKf, XPf = KF, KF + 4, KF + 8, KF + 12, KF + 16, KF + 20
            ko += pack(K0f, P1 + 0, P1 + 4) + pack(K1f, P1 + 8, P1 + 12) + pack(XKf, P1 + 32, P1 + 36) + pack(V0f, P1 + 16, P1 + 20) + pack(V1f, P1 + 24, P1 + 28) + pack(XPf, XV, XV + 4)
            KCAP = opt.get("kcap", 5)
            g = seg.stream(ko, 0, cap=KCAP)
            D = 100
            g += 1
            for k, (A_, B_) in enumerate([(K0f, V0f), (K1f, V1f), (XKf, V0f), (XKf, V1f), (K0f, XPf), (K1f, XPf), (XKf, XPf)]):
                seg.put(g + k // 2, f"v_mfma_f32_16x16x32_bf16 v[{D+4*k}:{D+4*k+3}], v[{A_}:{A_+3}], v[{B_}:{B_+3}], 0", 2)
            g += 5
            D1, D2, D3, D4, D5, D6, D7 = [D + 4 * k for k in range(7)]
            RP = (14 % NR) * 16384 - 65536
            ko = [Op(f"ds_write_b128 v254, v[{D1}:{D1+3}] offset:{RP}", lg="red"), Op(f"ds_write_b128 v254, v[{D2}:{D2+3}] offset:{RP + 4096}", lg="red")]
            for r in range(4):
                ko.append(f"v_cndmask_b32 v{D5+r}, v{D5+r}, v{D6+r}, {sBIT2}")
            for r in range(4):
                ko.append(f"v_cndmask_b32 v{D3+r}, v{D3+r}, v{D4+r}, {sMK[1]}")
            ko.append(Op(f"ds_write_b128 v254, v[{D5}:{D5+3}] offset:{RP + 2*4096}", lg="red"))
            for r in range(4):
                ko.append(f"v_permlane32_swap_b32 v{D3+r}, v{D7+r}")
            g = seg.stream(ko, g, cap=KCAP)
            g = seg.put(g + 1, Op(f"ds_write_b128 v254, v[{D3}:{D3+3}] offset:{RP + 3*4096}", lg="red"), 1)
            gR = g + opt.get("kgb", 3)
            seg.put(gR, Op("s_barrier", wvm=[("dma", 9)], wlg=["red"]), 2)
            for k in range(4):
                seg.put(gR, Op(f"ds_read_b128 v[{D+4*k}:{D+4*k+3}], v255 offset:{RP + k*1024}", lg=("rr", k)), 1)
            assert gR < fu[144] - 1, (gR, fu[144])
            ws2.events.append((gR, 13, 9))
            g = gR + opt.get("kga", 4)
            ko = []
            for q in range(4): ko.append(Op(f"v_add_f32 v{D+q}, v{D+q}, v{D+4+q}", wlg=[("rr", 1)] if q == 0 else None))
            for q in range(4): ko.append(Op(f"v_add_f32 v{D+8+q}, v{D+8+q}, v{D+12+q}", wlg=[("rr", 3)] if q == 0 else None))
            for q in range(4): ko.append(Op(f"v_add_f32 v{D+q}, v{D+q}, v{D+8+q}"))
            KVH = opt.get("kvh", 1)
            if KVH:
                ko.insert(0, Op(f"v_lshrrev_b32 v254, 1, {vL16}"))
                ko += [Op(f"v_cvt_pk_bf16_f32 v{D}, v{D}, v{D+1}"), Op(f"v_cvt_pk_bf16_f32 v{D+1}, v{D+2}, v{D+3}")]
                ko.append(Op(f"buffer_store_dwordx2 v[{D}:{D+1}], v254, {S_WS}, {sST2} offen sc1", vm="kvst"))
            else:
                ko.append(Op(f"buffer_store_dwordx4 v[{D}:{D+3}], {vL16}, {S_WS}, {sST2} offen sc1", vm="kvst"))
            gS = seg.stream(ko, g, cap=4)
            ws2.events.append((g + 4, 14, 9))
            ring.filled = 9
            ev = list(ws2.events)
            ws2.reads(list(range(144, 160)), fu, lu, ming=gR + 1)
            assert ws2.events == ev
            pj = pt_jobs((pt_o() if PTK & 1 else []) + (pt_x(PS()) if PTK & 2 else []) + (pt_act(0) if PTK & 4 else []), opt.get("ptg", 40), 119) if PTM != 3 else []
            pq = []
            if opt.get("ptq", 0): pq = pj; pj = []
            ws2.vmem(pj, lambda r: 0, margin=MARG, qd=opt.get("qs2", 4), rate=opt.get("rs2", 35) / 10.0, cap=KCAP + 2, burst0=False)
            CS4 = 140
            seg.stream([Op(f"ds_read_b128 v[{CS4+4*t}:{CS4+4*t+3}], {vG16} offset:{L_CS1 + (5+t)*64}", lg="cs4") for t in range(3)], gS + 1)
            RLI = 152
            seg.stream([f"v_mul_f32 v{RLI+t}, {hex(LOG2E)}, v{SB+8+2*t+1}" for t in range(2)], gS + 4)
            sys.stderr.write(f"S2: gR {gR} gS {gS} ev {ws2.events}\n")
            if opt.get('ls2'):
                for g in range(1, 108, 7): lstamp(seg, g)
            seg.emit(em)
            stamp()
            KL = WW
            NL = 8 if KVH else 16
            KA = WW + 32
            vKV = "v255" if KVH else vL16
            K1SC = "" if opt.get("kvp", 1) else " sc1"
            if KVH:
                em.e(f"v_and_b32 v254, 0x200, {vL16}"); em.e("v_lshlrev_b32 v254, 3, v254"); em.e(f"v_and_b32 v255, 0x1f0, {vL16}"); em.e("v_add_u32 v255, v255, v254")
            def kl_loads(tag):
                for Gp in range(NL):
                    em.e(f"s_add_u32 {sST2}, {sST}, {Gp*4096*(16//NL)}")
                    em.e(f"buffer_load_dwordx4 v[{KL+4*Gp}:{KL+4*Gp+3}], {vKV}, {S_WS}, {sST2} offen sc1", vm=(tag, Gp) if tag else None)
            streams = []
            for t in range(3):
                for tok in range(2):
                    for r in range(4):
                        a = P2 + 8 * t + 4 * tok + r
                        tt = TT + (len(streams) % 8)
                        streams.append([x[0] if isinstance(x, tuple) else x for x in phi_ops(a, CS4 + 4 * t + r, SB + 8 + 2 * tok, SB + 8 + 2 * tok + 1, RLI + tok, tt, None)])
            qops = []
            for k in range(0, len(streams), 4): qops += il(streams[k:k + 4])
            F = 156
            for tok in range(2):
                qa = P2 + 4 * tok; qb = P2 + 8 + 4 * tok; qx = P2 + 16 + 4 * tok
                fa = F + 8 * tok; fb = fa + 4
                qops += [f"v_cvt_pk_bf16_f32 v{fa}, v{qa}, v{qa+1}", f"v_cvt_pk_bf16_f32 v{fa+1}, v{qa+2}, v{qa+3}",
                         f"v_cvt_pk_bf16_f32 v{fa+2}, v{qx}, v{qx+1}", f"v_cvt_pk_bf16_f32 v{fa+3}, v{qx+2}, v{qx+3}",
                         f"v_cvt_pk_bf16_f32 v{fb}, v{qb}, v{qb+1}", f"v_cvt_pk_bf16_f32 v{fb+1}, v{qb+2}, v{qb+3}",
                         f"v_mov_b32 v{fb+2}, v{fa+2}", f"v_mov_b32 v{fb+3}, v{fa+3}"]
            KLS = opt.get("kls", 6)
            first = True
            for k, o in enumerate(qops):
                if k % KLS == 0 and k // KLS < NL:
                    Gp = k // KLS
                    em.e(f"s_add_u32 {sST2}, {sST}, {Gp*4096*(16//NL)}")
                    em.e(f"buffer_load_dwordx4 v[{KL+4*Gp}:{KL+4*Gp+3}], {vKV}, {S_WS}, {sST2} offen{K1SC}", vm=("kl", Gp))
                elif k % (KLS if not pq else opt.get("ptqs", 3)) == 0 and k // KLS >= NL and pq:
                    for o2 in pq.pop(0)[0]: em.op(o2)
                elif k % KLS == 0: ring.emit(em, 1)
                if first: em.wait(wlg=["cs4"]); first = False
                em.op(o)
            for j in pq:
                for o2 in j[0]: em.op(o2)
            stamp()
            uid[0] += 1; u = uid[0]
            em.e(f"s_mov_b32 {sSPIN}, 0")
            if KVH:
                em.e(f"s_mov_b32 {sP0}, 0x3f80"); em.e(f"s_mov_b32 {sP1}, 0x3f800000")
                em.wait(wvm=[("kl", 0)])
                em.label(f"Lkv{u}_s")
                for q in range(8): em.e(f"v_mov_b32 v{KA+q}, 0")
                for Gp in range(8):
                    for q in range(4):
                        em.e(f"v_dot2c_f32_bf16 v{KA+2*q}, {sP0}, v{KL+4*Gp+q}", wvm=[("kl", Gp)] if q == 0 else None)
                        em.e(f"v_dot2c_f32_bf16 v{KA+2*q+1}, {sP1}, v{KL+4*Gp+q}")
                em.e(f"v_cmp_u_f32 vcc, v{KA}, v{KA+2}"); em.e(f"v_cmp_u_f32 s[34:35], v{KA+4}, v{KA+6}")
            else:
                for Gp in range(1, 16):
                    if Gp == 1:
                        em.wait(wvm=[("kl", 1)])
                        em.label(f"Lkv{u}_s")
                    for q in range(4):
                        em.e(f"v_add_f32 v{KL+q}, v{KL+q}, v{KL+4*Gp+q}", wvm=[("kl", Gp)] if q == 0 else None)
                em.e(f"v_cmp_u_f32 vcc, v{KL}, v{KL+1}"); em.e(f"v_cmp_u_f32 s[34:35], v{KL+2}, v{KL+3}")
            em.e(f"s_or_b64 vcc, vcc, s[34:35]")
            em.e(f"s_cbranch_vccz Lkv{u}_o")
            em.e(f"s_add_u32 {sSPIN}, {sSPIN}, 1"); em.e(f"s_cmp_gt_u32 {sSPIN}, 20000"); em.e(f"s_cbranch_scc1 Lkv{u}_o")
            kl_loads(None)
            em.raw("    s_waitcnt vmcnt(0)")
            em.e(f"s_branch Lkv{u}_s")
            em.label(f"Lkv{u}_o")
        if opt.get('k1n', 1) and KVH:
            for q in range(4): em.e(f"v_permlane32_swap_b32 v{KA+q}, v{KA+4+q}")
            for q in range(4): em.e(f"v_add_f32 v{KA+q}, v{KA+q}, v{KA+4+q}")
            em.e(f"v_cvt_pk_bf16_f32 v{KL}, v{KA}, v{KA+1}"); em.e(f"v_cvt_pk_bf16_f32 v{KL+1}, v{KA+2}, v{KA+3}")
            em.e(f"v_and_b32 v254, 0x1f0, {vL16}"); em.e(f"v_lshrrev_b32 v255, 6, {vL16}"); em.e("v_and_b32 v255, 8, v255"); em.e("v_add_u32 v254, v254, v255")
            em.e(f"s_lshl_b32 {sT0}, {sW}, 9"); em.e(f"s_add_u32 {sT0}, {sT0}, 0x20000"); em.e(f"v_add_u32 v254, {sT0}, v254")
        else:
            em.e(f"v_cvt_pk_bf16_f32 v{KL}, v{KL}, v{KL+1}"); em.e(f"v_cvt_pk_bf16_f32 v{KL+1}, v{KL+2}, v{KL+3}")
            em.e(f"s_lshl_b32 {sT0}, {sW}, 9"); em.e(f"v_add_u32 v254, {sT0}, {vL8}")
        em.e(f"ds_write_b64 v254, v[{KL}:{KL+1}] offset:{L_KVB}", lg="kw")
        em.wait_all_lg()
        em.e("s_barrier")
        if opt.get('k1n', 1):
            ring.allowed = max(ring.allowed, 18)
            ring.emit(em, upto=opt.get("k1e", 18))
            pfk[0] = 0
            pf3(opt.get("pfa", 0), False)
        R_ = 176
        for t in range(4):
            em.e(f"ds_read_b64 v[{R_+2*t}:{R_+2*t+1}], {vL8} offset:{L_KVB + t*512}", lg="kr")
        em.e(f"v_xor_b32 v254, 256, {vL8}")
        em.e(f"ds_read_b64 v[{R_+8}:{R_+9}], v254 offset:{L_KVB + 3*512}", lg="kr")
        em.e(f"v_and_b32 v254, 0xfffffe7f ^ 0, {vL8}" if False else f"v_lshlrev_b32 v254, 3, {vG16}")
        em.e(f"v_and_b32 v254, 0x3ff, v254")
        em.e(f"v_add_u32 v254, 0x20000, v254")
        em.e(f"ds_read_b64 v[{R_+10}:{R_+11}], v254 offset:{L_KVB + 2*512}", lg="kr")
        em.e(f"ds_read_b64 v[{R_+12}:{R_+13}], v254 offset:{L_KVB + 2*512 + 32}", lg="kr")
        em.e("v_mov_b32 v255, 0x20000")
        em.e(f"ds_read_b64 v[{R_+14}:{R_+15}], v255 offset:{L_KVB + 3*512 + 32*8}", lg="kr")
        em.e(f"ds_read_b64 v[{R_+16}:{R_+17}], v255 offset:{L_KVB + 3*512 + 52*8}", lg="kr")
        em.wait_all_lg()
        t1, t2, t3, t4, t4x, za, zb, zxa, zxb = [R_ + 2 * k for k in range(9)]
        AF = 196
        Aa, Ab, Axa, Axb, Aza, Azb = [AF + 4 * k for k in range(6)]
        mg0, mg1, ma, mb, mga, mgb = sMK
        def cp(dst, src):
            em.e(f"v_mov_b32 v{dst}, v{src}"); em.e(f"v_mov_b32 v{dst+1}, v{src+1}")
        def mk(dst, src, m):
            em.e(f"v_cndmask_b32 v{dst}, 0, v{src}, {m}"); em.e(f"v_cndmask_b32 v{dst+1}, 0, v{src+1}, {m}")
        cp(Aa, t1); mk(Aa + 2, t4, mg0)
        cp(Ab, t2); mk(Ab + 2, t4, mg1)
        mk(Axa, t3, ma); mk(Axa + 2, t4x, mga)
        mk(Axb, t3, mb); mk(Axb + 2, t4x, mgb)
        cp(Aza, za); mk(Aza + 2, zxa, mg0)
        cp(Azb, zb); mk(Azb + 2, zxb, mg1)
        O = 100
        for tok in range(2):
            fa = F + 8 * tok; fb = fa + 4; o = O + 20 * tok
            em.e(f"v_mfma_f32_16x16x32_bf16 v[{o+12}:{o+15}], v[{Aza}:{Aza+3}], v[{fa}:{fa+3}], 0")
            em.e(f"v_mfma_f32_16x16x32_bf16 v[{o+16}:{o+19}], v[{Azb}:{Azb+3}], v[{fb}:{fb+3}], 0")
            em.e(f"v_mfma_f32_16x16x32_bf16 v[{o}:{o+3}], v[{Aa}:{Aa+3}], v[{fa}:{fa+3}], 0")
            em.e(f"v_mfma_f32_16x16x32_bf16 v[{o+4}:{o+7}], v[{Ab}:{Ab+3}], v[{fb}:{fb+3}], 0")
            em.e(f"v_mfma_f32_16x16x32_bf16 v[{o+8}:{o+11}], v[{Axa}:{Axa+3}], v[{fa}:{fa+3}], 0")
            em.e(f"v_mfma_f32_16x16x32_bf16 v[{o+8}:{o+11}], v[{Axb}:{Axb+3}], v[{fb}:{fb+3}], v[{o+8}:{o+11}]")
        em.e(f"s_mul_i32 {sST}, {LB()}, {O_SZ}"); em.e(f"s_mul_i32 {sST2}, {sTT2}, 20480"); em.e(f"s_add_u32 {sST}, {sST}, {sST2}")
        em.e(f"s_add_u32 {sST}, {sST}, {OB}")
        em.e(f"s_lshl_b32 {sST2}, {sM}, 10"); em.e(f"s_add_u32 {sST2}, {sST2}, {sST}")
        for tok in range(2):
            o = O + 20 * tok
            em.e(f"v_add_f32 v{o+12}, {hex(EPS6)}, v{o+12}"); em.e(f"v_add_f32 v{o+16}, {hex(EPS6)}, v{o+16}")
            em.e(f"v_rcp_f32 v{o+12}, v{o+12}"); em.e(f"v_rcp_f32 v{o+16}, v{o+16}")
            em.e(f"v_cndmask_b32 v{o+13}, v{o+12}, v{o+16}, {sG3}")
            for r in range(4):
                em.e(f"v_mul_f32 v{o+r}, v{o+r}, v{o+12}"); em.e(f"v_mul_f32 v{o+4+r}, v{o+4+r}, v{o+16}")
                em.e(f"v_mul_f32 v{o+8+r}, v{o+8+r}, v{o+13}")
            em.e(f"v_cvt_pk_bf16_f32 v{o}, v{o}, v{o+1}"); em.e(f"v_cvt_pk_bf16_f32 v{o+1}, v{o+2}, v{o+3}")
            em.e(f"v_cvt_pk_bf16_f32 v{o+2}, v{o+4}, v{o+5}"); em.e(f"v_cvt_pk_bf16_f32 v{o+3}, v{o+6}, v{o+7}")
            em.e(f"v_cvt_pk_bf16_f32 v{o+8}, v{o+8}, v{o+9}"); em.e(f"v_cvt_pk_bf16_f32 v{o+9}, v{o+10}, v{o+11}")
            va = vL16 if tok == 0 else vL16B
            em.e(f"buffer_store_dwordx4 v[{o}:{o+3}], {va}, {S_WS}, {sST2} offen{cur['STO']}", vm="ost")
            if tok == 1: em.e(f"s_add_u32 {sST}, {sST}, 20480")
            em.e(f"s_mov_b64 exec, {sG23}")
            em.e(f"buffer_store_dwordx2 v[{o+8}:{o+9}], {vOREM}, {S_WS}, {sST} offen{cur['STO']}", vm="ost")
            em.e("s_mov_b64 exec, -1")

    def K24(ph, nblk, final_possible):
        AX = lambda b, t: 4 * b
        if ph == "K2":
            em.e(f"s_mul_i32 {sA}, {LB()}, {O_SZ}"); em.e(f"s_mul_i32 {sT0}, {sTT1}, 20480"); em.e(f"s_add_u32 {sA}, {sA}, {sT0}"); em.e(f"s_add_u32 {sA}, {sA}, {OB}")
        else:
            em.e(f"s_mul_i32 {sA}, {LB()}, {ACT_SZ}"); em.e(f"s_mul_i32 {sT0}, {sTT1}, {54*1024}"); em.e(f"s_add_u32 {sA}, {sA}, {sT0}"); em.e(f"s_add_u32 {sA}, {sA}, {ACT}")
        seg = Seg(); ws = WStream(ring, seg, ph, SS=SS, LA=opt.get("la4", 10))
        fu = {}; lu = {}; wa = {}
        for b in range(nblk):
            for t in range(5):
                f = b * 5 + t; wr = ws.wreg(f); d = RES + 4 * t
                wv = [("a", b, 0)] if t == 0 else None
                i = seg.mfma(f"v_mfma_f32_16x16x32_bf16 v[{d}:{d+3}], v[{wr}:{wr+3}], a[{4*b}:{4*b+3}], v[{d}:{d+3}]", wvm=wv, wlg=[("w", ph, b * 5 + 4)] if t == 0 else None)
                fu[f] = i; lu[f] = i; wa[f] = 5 * b
        al = a_loads(1, nblk, ph, "a", AX)
        if ph == "K2" and DBG.get("stg", 0):
            for o in (f"v_add_u32 {vSTG0}, {sW4K}, {vL16}", f"v_add_u32 {vSTG1}, {sW4K}, {vR1}", f"v_add_u32 {vSTG2}, {sW4K}, {vR2}"): seg.put(0, o, 1)
        if ph == "K2":
            ws.reads(list(range(nblk * 5)), fu, lu, nobar=(12, 16), force=(14,), wait_at=wa)
            ws.vmem(a_jobs(al, lambda b: 5 * b - 30), lambda r: opt.get("k2w", 0), margin=MARG, qd=QD, rate=opt.get("r2", 35) / 10.0, stop=opt.get("k2s", 10**6))
        else:
            ws.reads(list(range(nblk * 5)), fu, lu, wait_at=wa)
            ws.vmem(a_jobs(al, lambda b: 5 * b - 30), lambda r: 0 if r < 52 else opt.get("k4w", 0), margin=MARG, qd=QD, rate=opt.get("r4", 28) / 10.0)
        g = 0
        if ph == "K4":
            if PTK & 16 and PTM != 3: pt_place(seg, pt_x(S_WSN), opt.get("k4pt", 170))
            pf_place(seg, "K1", 0, "pf1", True); pf_place(seg, "K1", 65536, "pf2", True); pf_place(seg, "K1", 131072, "pf3", True)
        else:
            pf_place(seg, "K3", 32768 + 2*65536, "pg3"); pf_place(seg, "K3", 32768 + 3*65536, "pg4")
        if not opt.get('ls2'):
            for g in range(1, nblk * 5 - 13, 30): lstamp(seg, g)
        seg.emit(em)
        stamp()
        P = TMP
        for t in range(5):
            em.e(f"v_cvt_pk_bf16_f32 v{P+2*t}, v{RES+4*t}, v{RES+4*t+1}"); em.e(f"v_cvt_pk_bf16_f32 v{P+2*t+1}, v{RES+4*t+2}, v{RES+4*t+3}")
        uid[0] += 1; u = uid[0]
        if final_possible:
            em.e(f"s_cmp_eq_u32 {sLAYER}, 1"); em.e(f"s_cbranch_scc1 Lfin{u}")
        em.e(f"s_mov_b32 {sXI}, 1" if reuse() else f"s_add_u32 {sXI}, {sXI}, 1")
        em.e(f"s_mul_i32 {sST}, {sXI}, {X_SZ}"); em.e(f"s_mul_i32 {sT0}, {sTT1}, 20480"); em.e(f"s_add_u32 {sST}, {sST}, {sT0}"); em.e(f"s_add_u32 {sST}, {sST}, {XB}")
        em.e(f"s_lshr_b32 {sT0}, {sC8}, 1"); em.e(f"s_mul_i32 {sT0}, {sT0}, 5")
        em.e(f"s_lshl_b32 {sT1}, {sODD}, 1"); em.e(f"s_add_u32 {sT1}, {sT1}, {sT0}"); em.e(f"s_lshl_b32 {sT1}, {sT1}, 10"); em.e(f"s_add_u32 {sT1}, {sT1}, {sST}")
        em.e(f"buffer_store_dwordx4 v[{P}:{P+3}], {vL16}, {S_WS}, {sT1} offen{cur['STO']}", vm="xst")
        em.e(f"buffer_store_dwordx4 v[{P+4}:{P+7}], {vL16}, {S_WS}, {sT1} offen offset:1024{cur['STO']}", vm="xst")
        em.e(f"s_add_u32 {sT0}, {sT0}, 4"); em.e(f"s_lshl_b32 {sT0}, {sT0}, 10"); em.e(f"s_add_u32 {sT0}, {sT0}, {sST}")
        em.e(f"s_lshl_b32 {sT1}, {sODD}, 3"); em.e(f"s_add_u32 {sT0}, {sT0}, {sT1}")
        em.e(f"buffer_store_dwordx2 v[{P+8}:{P+9}], {vL16}, {S_WS}, {sT0} offen{cur['STO']}", vm="xst")
        a, b_, x, y = 224, 225, 226, 227
        em.e(f"v_add_f32 v{a}, v{RES}, v{RES+1}"); em.e(f"v_mul_f32 v{b_}, v{RES}, v{RES}"); em.e(f"v_fmac_f32 v{b_}, v{RES+1}, v{RES+1}")
        em.e(f"v_add_f32 v{x}, v{RES+2}, v{RES+3}"); em.e(f"v_mul_f32 v{y}, v{RES+2}, v{RES+2}"); em.e(f"v_fmac_f32 v{y}, v{RES+3}, v{RES+3}")
        for k in range(4, 20, 2):
            em.e(f"v_add_f32 v{a}, v{a}, v{RES+k}"); em.e(f"v_fmac_f32 v{b_}, v{RES+k}, v{RES+k}")
            em.e(f"v_add_f32 v{x}, v{x}, v{RES+k+1}"); em.e(f"v_fmac_f32 v{y}, v{RES+k+1}, v{RES+k+1}")
        em.e(f"v_add_f32 v{a}, v{a}, v{x}"); em.e(f"v_add_f32 v{b_}, v{b_}, v{y}")
        for sw in ("v_permlane32_swap_b32", "v_permlane16_swap_b32"):
            em.e(f"v_mov_b32 v{x}, v{a}"); em.e(f"v_mov_b32 v{y}, v{b_}")
            em.e(f"{sw} v{a}, v{x}"); em.e(f"{sw} v{b_}, v{y}")
            em.e(f"v_add_f32 v{a}, v{a}, v{x}"); em.e(f"v_add_f32 v{b_}, v{b_}, v{y}")
        em.e(f"s_mul_i32 {sST}, {sXI}, {ST_SZ}"); em.e(f"s_lshl_b32 {sT0}, {sTT1}, 10"); em.e(f"s_add_u32 {sST}, {sST}, {sT0}")
        em.e(f"s_lshl_b32 {sT0}, {sC8}, 7"); em.e(f"s_add_u32 {sST}, {sST}, {sT0}"); em.e(f"s_add_u32 {sST}, {sST}, {ST}")
        em.e(f"s_mov_b64 exec, {sMK[0]}")
        em.e(f"buffer_store_dwordx2 v[{a}:{a+1}], {vSTO}, {S_WS}, {sST} offen{cur['STO']}", vm="xst")
        em.e("s_mov_b64 exec, -1")
        if final_possible:
            em.e(f"s_branch Lfin{u}_x")
            em.label(f"Lfin{u}")
            em.e(f"s_mul_i32 {sST}, {sTT1}, {16*1280}"); em.e(f"s_mul_i32 {sT0}, {sC8}, 160"); em.e(f"s_add_u32 {sST}, {sST}, {sT0}")
            for t in range(5):
                em.e(f"buffer_store_dwordx2 v[{P+2*t}:{P+2*t+1}], {vOUT}, {S_OUT}, {sST} offen offset:{t*32}")
            em.raw("    s_waitcnt vmcnt(0)")
            stamp(); nstamp[0] -= 1
            dump_stamps()
            em.e("s_endpgm")
            em.label(f"Lfin{u}_x")

    def K3():
        AX = lambda b, s_: 8 * b + 4 * s_
        SB = TMP
        NM, C1, KK, VST = 220, 221, 222, 223
        set_sA_x()
        seg = Seg(cap=opt.get("k3cap", 6)); ws = WStream(ring, seg, "K3", SS=SS, LA=opt.get("la3", 5))
        fu = {}; lu = {}
        pend = []
        for f in range(280): ws.wreg(f)
        def acc(t): return ACC + 16 * t
        B1 = opt.get("k3b", 12)
        groups = [(b, p) for b in range(B1) for p in range(3)] + [(b, p) for p in range(3) for b in range(B1, 20)] + [(b, 3) for b in range(20)]
        afirst = {}
        seen_a = set()
        pend = [0, 0, 0, 0]
        for (b, p) in groups:
            ts = (2 * p, 2 * p + 1) if p < 3 else (6,)
            first = True
            for s_ in range(2):
                for t in ts:
                    f = pw3_index(b, t, s_, B1); wr = ws.wreg(f)
                    d = acc(t)
                    c = "0" if (b == 0 and s_ == 0) else f"v[{d}:{d+15}]"
                    wl = [("w", "K3", pw3_index(b, ts[-1], 1, B1))] if first else None
                    wv = [("a", b, 1)] if (b not in seen_a and first) else None
                    i = seg.mfma(f"v_mfma_f32_32x32x16_bf16 v[{d}:{d+15}], v[{wr}:{wr+3}], a[{AX(b,s_)}:{AX(b,s_)+3}], {c}", wvm=wv, wlg=wl)
                    if first: g0 = i
                    if b not in seen_a: seen_a.add(b); afirst[b] = i
                    first = False
                    fu.setdefault(f, g0); lu[f] = i
            pend[p] = seg.n()
        al = a_loads(2, 20, "K3", "a", AX, m32=True)
        ws.reads(list(range(280)), fu, lu)
        ws.vmem(a_jobs(al, lambda b: afirst[b] - opt.get("a3l", 12)), lambda r: opt.get("k3w", 0), margin=opt.get("m3", 70), qd=opt.get("q3", QD // 2), rate=opt.get("r3", 38) / 20.0, stop=opt.get("k3s", 10**6))
        so = [f"v_and_b32 v{VST}, 0xf0, {vL16}", f"v_lshrrev_b32 v{VST}, 1, v{VST}", f"v_and_b32 v{NM}, 0x200, {vL16}", f"v_add_u32 v{VST}, v{VST}, v{NM}",
              f"v_and_b32 v{NM}, 0x100, {vL16}", f"v_lshlrev_b32 v{NM}, 2, v{NM}", f"v_add_u32 v{VST}, v{VST}, v{NM}",
              f"s_mul_i32 {sST}, {sXI}, {ST_SZ}", f"s_lshl_b32 {sST2}, {sTT2}, 10", f"s_add_u32 {sST}, {sST}, {sST2}", f"s_add_u32 {sST}, {sST}, {ST}"]
        for q in range(4):
            so.append(Op(f"buffer_load_dwordx2 v[{SB+2*q}:{SB+2*q+1}], v{VST}, {S_WS}, {sST} offen offset:{q*128}{cur['LD']}", vm=("st", q)))
        g = seg.stream(so, 2)
        a, b_, x, y = SB, SB + 1, SB + 2, SB + 3
        so = [Op(f"v_add_f32 v{a}, v{a}, v{SB+2}", wvm=[("st", 3)]), f"v_add_f32 v{b_}, v{b_}, v{SB+3}",
              f"v_add_f32 v{SB+4}, v{SB+4}, v{SB+6}", f"v_add_f32 v{SB+5}, v{SB+5}, v{SB+7}",
              f"v_add_f32 v{a}, v{a}, v{SB+4}", f"v_add_f32 v{b_}, v{b_}, v{SB+5}",
              f"v_mov_b32 v{x}, v{a}", f"v_mov_b32 v{y}, v{b_}",
              f"v_permlane32_swap_b32 v{a}, v{x}", f"v_permlane32_swap_b32 v{b_}, v{y}",
              f"v_add_f32 v{a}, v{a}, v{x}", f"v_add_f32 v{b_}, v{b_}, v{y}",
              f"v_mul_f32 v{NM}, {hex(INV640 | 0x80000000)}, v{a}", f"v_mul_f32 v{KK}, {hex(INV640)}, v{b_}",
              f"v_fma_f32 v{KK}, -v{NM}, v{NM}, v{KK}", f"v_max_f32 v{KK}, 0, v{KK}", f"v_add_f32 v{KK}, {hex(EPS5)}, v{KK}",
              (Op(f"v_rsq_f32 v{C1}, v{KK}"), 2), f"v_mul_f32 v{C1}, {hex(LOG2E | 0x80000000)}, v{C1}"]
        g = seg.stream(so, max(g, 30))
        so = [f"s_mul_i32 {sST}, {LB()}, {ACT_SZ}", f"s_mul_i32 {sST2}, {sTT2}, {54*1024}", f"s_add_u32 {sST}, {sST}, {sST2}",
              f"s_add_u32 {sST}, {sST}, {ACT}", f"s_lshl_b32 {sST2}, {sM}, 10", f"s_add_u32 {sST2}, {sST2}, {sST}"]
        g = seg.stream(so, max(g, 50))
        CSR = 226
        ET = 242
        def epi(t):
            ops = []
            for mat in range(2):
                for hh in range(2):
                    r = CSR + 8 * mat + 4 * hh
                    ops.append(Op(f"ds_read_b128 v[{r}:{r+3}], {vH16} offset:{L_CS3 + (2*t+mat)*64 + 32*hh}", lg=("c3", t)))
            d = acc(t)
            first = True
            for e in range(8):
                ops.append(Op(f"v_fmac_f32 v{d+e}, v{NM}, v{CSR+e}", wlg=[("c3", t)] if first else None)); first = False
                ops.append(f"v_fmac_f32 v{d+8+e}, v{NM}, v{CSR+8+e}")
            for k in range(0, 8, 4):
                streams = []
                for e in range(k, k + 4):
                    g_ = d + e; u_ = d + 8 + e; e_ = ET + e
                    streams.append([f"v_mul_f32 v{e_}, v{g_}, v{C1}",
                                    (Op(f"v_exp_f32 v{e_}, v{e_}"), 2),
                                    f"v_mul_f32 v{g_}, v{g_}, v{u_}",
                                    f"v_fma_f32 v{e_}, v{e_}, v{KK}, v{KK}",
                                    (Op(f"v_rcp_f32 v{e_}, v{e_}"), 2),
                                    f"v_mul_f32 v{g_}, v{g_}, v{e_}"])
                ops += il(streams)
            PK = d + 8
            for q in range(4): ops.append(f"v_cvt_pk_bf16_f32 v{PK+q}, v{d+2*q}, v{d+2*q+1}")
            if t < 6:
                ops.append(Op(f"s_add_u32 {sT0}, {sST2}, {(t >> 1) * 16384 + (t & 1) * 512}"))
                ops.append(Op(f"buffer_store_dwordx4 v[{PK}:{PK+3}], {vA3}, {S_WS}, {sT0} offen{cur['STO']}", vm="ast"))
            else:
                ops.append(Op(f"buffer_store_dwordx2 v[{PK}:{PK+1}], {vACT6}, {S_WS}, {sST} offen{cur['STO']}", vm="ast"))
                ops.append(Op(f"s_mov_b64 exec, {sMK32}"))
                ops.append(Op(f"buffer_store_dwordx2 v[{PK+2}:{PK+3}], {vA3}, {S_WS}, {sP2} offen{cur['STO']}", vm="ast"))
                ops.append(Op("s_mov_b64 exec, -1"))
            return ops
        if PTK & 8 and PTM != 3:
            for p in range(1, 4): pt_place(seg, pt_act(p), max(20, pend[p - 1] - opt.get("pt3", 25)))
        ge = 0
        for p in range(3):
            for t in (2 * p, 2 * p + 1):
                ge = seg.stream(epi(t), max(pend[p] + 3, ge))
        so = [f"s_mul_i32 {sP0}, {sM}, 3", f"s_add_u32 {sP0}, {sP0}, 2", f"s_lshr_b32 {sP1}, {sP0}, 3", f"s_add_u32 {sP1}, {sP1}, 48", f"s_lshl_b32 {sP1}, {sP1}, 10",
              f"s_add_u32 {sP2}, {sST}, {sP1}", f"s_and_b32 {sP1}, {sP0}, 3", f"s_lshl_b32 {sP1}, {sP1}, 8", f"s_add_u32 {sP2}, {sP2}, {sP1}",
              f"s_bfe_u32 {sP1}, {sP0}, 0x10002", f"s_lshl_b32 {sP1}, {sP1}, 3", f"s_add_u32 {sP2}, {sP2}, {sP1}"]
        seg.stream(so, 225)
        if not opt.get('ls2'):
            for g in range(1, 268, 20): lstamp(seg, g)
        sys.stderr.write(f"K3: epilogue stream ends at gap {ge}; cost hist {[sum(1 for c in seg.cost if c == k) for k in range(12)]}\n")
        seg.emit(em)
        stamp()
        lin(epi(6))

    def finish_if(p):
        if stop <= 8 and (stop - 1) % 4 + 1 == p:
            lay = (stop - 1) // 4
            em.e(f"s_cmp_lg_u32 {sLAYER}, {lay}"); em.e(f"s_cbranch_scc1 Lstop{p}{cur['sfx']}")
            em.raw("    s_waitcnt vmcnt(0) lgkmcnt(0)")
            dump_stamps()
            em.e("s_endpgm")
            em.label(f"Lstop{p}{cur['sfx']}")
    prologue_end()
    pls()
    if opt.get("pls"):
        for k in range(pln[0]):
            if k > 5: break
            em.e(f"v_readfirstlane_b32 s96, v{236+k}"); em.e("s_nop 3"); em.e(f"v_writelane_b32 v0, s96, {58+k}")
    if PEEL:
        cnt_save = WStream.cnt
        ring.filled = -1
        nstamp[0] = 0; lsn[0] = 0
        stamp()
        K1_p1(True)
        stamp()
        join_state[0] = (ring.issued, ring.filled, ring.allowed, [t for t in em.vm if isinstance(t, tuple) and t[0] == "dma"], WStream.cnt)
        K1_first(True)
        WStream.cnt = cnt_save
        em.vm = [("dma", r) for r in range(HEAD + 1) for _ in range(4)]
    em.vm = [t for t in em.vm if isinstance(t, tuple) and t[0] == "dma"] + [t for t in em.vm if isinstance(t, tuple) and t[0] == "a"]
    head_vm = list(em.vm)
    cnt0 = WStream.cnt
    if MONO and stamps and not opt.get("lst", 0):
        em.e("v_writelane_b32 v0, s96, 62"); em.e("v_writelane_b32 v0, s97, 63")
    if MONO:
        em.e(f"s_cmp_lg_u32 {sMODE}, 0"); em.e("s_cbranch_scc1 Lm_layerS")
    for sfx, sto in (("F", ""), ("S", " sc1")):
        cur["sfx"] = sfx; cur["STO"] = sto; cur["LD"] = sto if not opt.get("ldsc1", 1) else " sc1"
        nstamp[0] = 0; lsn[0] = 0
        WStream.cnt = cnt0
        em.label(f"Lm_layer{sfx}")
        em.vm = list(head_vm); em.lg = []
        ring.filled = -1; ring.issued = HEAD; ring.allowed = 8; ring.q = []
        em.e(f"s_cmp_eq_u32 {sLAYER}, 1"); em.e(f"s_cselect_b32 s14, 0, {WS_END}")
        stamp()
        K1(); stamp(); finish_if(1)
        pf3(opt.get("pfb", 0), True)
        transition(1, 1, 9, ["ost"], 16, opt.get("d11", 0), opt.get("d12", 0), defer0=opt.get("df1", 0)); stamp()
        K24("K2", 20, False); stamp(); finish_if(2)
        pf3(opt.get("pfc", 0), True)
        transition(2, 2, 16, ["xst"], 18, opt.get("d21", 40), opt.get("d22", 0), defer0=opt.get("df2", 0)); stamp()
        K3(); stamp(); finish_if(3)
        transition(4, 4, 34, ["ast"], 36, opt.get("d31", 40), opt.get("d32", 0), defer0=opt.get("df3", 0)); stamp()
        K24("K4", 54, True); stamp(); finish_if(4)
        transition(5, 5, 53, ["xst"], 53, opt.get("d41", 40), 100, upto2=54 + HEAD, defer0=opt.get("df4", 0))
        if AH: k1_hoist(cur["LD"])
        stamp()
        assert ring.issued == 54 + HEAD and not ring.q, (ring.issued, ring.q)
        em.e(f"s_add_u32 {sLAYER}, {sLAYER}, 1"); em.e(f"s_add_u32 {sSTEP}, {sSTEP}, 5")
        em.e(f"s_branch Lm_layer{sfx}")
    em.label("Lm_done")
    em.e("s_endpgm")
    return em.lines


def build(opt):
    if opt.get("mono", 0):
        ml = gen_main(opt)
        ml, n2 = fix_hazards(ml)
        ref = open("interleave_layers__linear_attn_block__swiglu_ffn__prompt.s.ref").read() if opt.get("hdr", False) else ""
        hdr = [l for l in ref.split("\n") if l.startswith(";") and "@launch" not in l and "Override launch" not in l and "grid=ceil" not in l]
        out = hdr + [f"; @launch grid=(256,1,1) block=(256,1,1) lds={MAIN_LDS}",
               '.amdgcn_target "amdgcn-amd-amdhsa--gfx950"', ".text",
               f".globl {KNAME}", ".p2align 8", f".type {KNAME},@function"] + ml + [kdesc(KNAME, 512, 256, 102)]
        sys.stderr.write(f"nops inserted: main {n2}; main lines {len(ml)}\n")
        return "\n".join(out)
    pl = gen_prep("prep_kernel", stamp=opt.get("stamps", 0), k3b=opt.get("k3b", 12), wsoff=opt.get("wsoff", 0) << 20, zf=opt.get("zf", 0), hp=opt.get("hp", 0) and opt.get("kvh", 1))
    if opt.get("pst"):
        sfx = {1: " sc1", 2: " nt", 3: " sc0 sc1", 4: " sc1 nt"}[opt["pst"]]
        pl = [l + sfx if "buffer_store" in l else l for l in pl]
    pl, n1 = fix_hazards(pl)
    ml = gen_main(opt)
    ml, n2 = fix_hazards(ml)
    ref = open("interleave_layers__linear_attn_block__swiglu_ffn__prompt.s.ref").read() if opt.get("hdr", False) else ""
    hdr = [l for l in ref.split("\n") if l.startswith(";") and "@launch" not in l and "Override launch" not in l and "grid=ceil" not in l]
    out = hdr + [f"; @launch kernel=prep_kernel grid=({PREP_WGS},1,1) block=(256,1,1) lds={PREP_LDS}",
           f"; @launch kernel={KNAME} grid=(256,1,1) block=(256,1,1) lds={MAIN_LDS}",
           '.amdgcn_target "amdgcn-amd-amdhsa--gfx950"', ".text",
           ".globl prep_kernel", ".p2align 8", ".type prep_kernel,@function"] + pl + \
          [f".globl {KNAME}", ".p2align 8", f".type {KNAME},@function"] + ml + \
          [kdesc("prep_kernel", 112, 112), kdesc(KNAME, 512, 256, 102)]
    sys.stderr.write(f"nops inserted: prep {n1} main {n2}; main lines {len(ml)}\n")
    return "\n".join(out)


if __name__ == "__main__":
    opt = dict(ptk=15, k2s=70, df2=1, d22=4, df3=1, d32=4, d31=0, d21=0, d41=0, hp=1, df4=1, k4w=150, peel=1, pa=2, pss=1, p1j=10, pcs=110, pst0=60)
    for a in sys.argv[1:]:
        k, v = a.split("="); opt[k] = int(v)
    print(build(opt))
```

```python
import sys
from asmlib import *
from layout import *
from gen_prep import gen_prep, kdesc, PREP_WGS, PREP_LDS

KNAME = "interleave_layers__linear_attn_block__swiglu_ffn__prompt_kernel"
NR = 9
MISC = 147456
MB = 131072
L_CS1 = MISC - MB; L_CS3 = MISC + 512 - MB; L_STAT = MISC + 1536 - MB; L_RED = MISC + 4096 - MB; L_KVB = MISC + 8192 - MB
MAIN_LDS = 163840
PH = {"K1": (0, 160), "K2": (10, 100), "K3": (17, 280), "K4": (35, 270)}
TOT_ROUNDS = 54
LOG2E = 0x3fb8aa3b
EPS6 = 0x358637bd
EPS5 = 0x3727c5ac
INV640 = 0x3acccccd

S_WS = "s[4:7]"; S_OUT = "s[8:11]"; S_WSN = "s[12:15]"
sW, sG, sM, sHALF, sC8, sLAYER = "s16", "s17", "s18", "s19", "s20", "s21"
sW4K, sW1K, sW2K = "s22", "s23", "s24"
sPW1, sPWO, sPW3, sPWD, sPWOp, sPW3p = "s25", "s26", "s27", "s28", "s29", "s30"
sDMA = "s31"; sA = "s32"; sT0, sT1, sT2, sT3 = "s33", "s34", "s35", "s36"
sFOWN, sFLINE, sKOWN, sKLINE = "s37", "s38", "s39", "s40"
sSTEP = "s41"; sTT2 = "s42"; sTT1 = "s43"
sFEX = "s[44:45]"
sMODE = "s46"; sSPIN = "s47"
sMK = ["s[48:49]", "s[50:51]", "s[52:53]", "s[54:55]", "s[56:57]", "s[58:59]"]
sXI = "s60"
sE6 = "s61"
sST = "s62"
sST2 = "s63"
sODD = "s64"
sXOFF, sXREM, sSTOFF, sAOFF, sOOFF = "s65", "s91", "s98", "s99", "s3"
sBIT2 = "s[66:67]"
sI8 = "s[68:69]"
sG23 = "s[70:71]"; sG3 = "s[72:73]"; sMK32 = "s[74:75]"
sTS = 76
sP0, sP1, sP2 = "s88", "s89", "s90"
PTD = "a255"
sR13, sR4, sRB, sRQ, sRT, sRT2 = "s84", "s85", "s86", "s87", "s100", "s101"
R13 = [4, 8, 12, 16]; R4V = [2, 14, 30, 42]
REGIONS = {"K1": [(0, 5, 20), (100, 3, 20)], "K2": [(0, 5, 20)], "K3": [(0, 4, 20), (80, 4, 20), (160, 4, 20), (240, 2, 20)], "K4": [(0, 5, 54)]}
ROTREG = {"K1": (sR13, R13), "K2": (sR13, R13), "K3": (sR13, R13), "K4": (sR4, R4V)}

vL16, vR1, vR2, vL16B = "v1", "v2", "v3", "v4"
vI4, vI4W, vG16, vG16W, vX3, vA3, vL8, vSTO, vACT6, vOREM, vOUT = [f"v{i}" for i in range(5, 16)]
vH16 = "v250"
RES = 16
WW = 36; NW = 16
ACC = 100
TMP = 212
CSVB = 140; RLB = 180


DBG = {}
class Seg:
    def __init__(s, cap=2):
        s.mf = []; s.gaps = [[]]; s.cost = [0]; s.cap = cap
    def n(s): return len(s.mf)
    def mfma(s, text, wvm=None, wlg=None):
        s.mf.append(Op(text, wvm=wvm, wlg=wlg)); s.gaps.append([]); s.cost.append(0)
        if wvm or wlg: s.cost[len(s.mf) - 1] += 1
        return len(s.mf) - 1
    def put(s, gap, op, cost=1):
        if isinstance(op, str): op = Op(op)
        gap = min(gap, len(s.gaps) - 1)
        s.gaps[gap].append(op); s.cost[gap] += cost
        return gap
    def place(s, op, earliest, cost=1, cap=None, latest=None):
        if cap is None: cap = s.cap
        g = max(0, min(earliest, len(s.gaps) - 1))
        last = len(s.gaps) - 1
        while g < last and s.cost[g] + cost > cap:
            if latest is not None and g >= latest: break
            g += 1
        return s.put(g, op, cost)
    def group(s, ops, earliest, maxcost=0):
        g = max(0, min(earliest, len(s.gaps) - 1))
        while g < len(s.gaps) - 1 and s.cost[g] > maxcost: g += 1
        for o in ops: s.put(g, o, 1)
        return g
    def stream(s, ops, earliest, cap=None, spacing=0):
        g = earliest
        for o in ops:
            c = 1
            if isinstance(o, tuple): o, c = o
            g = s.place(o, g, cost=c, cap=cap)
            g += spacing
        return g
    def emit(s, em):
        def keep(o):
            t = o.text
            if DBG.get("skipa") and t.startswith("buffer_load_dwordx4 a["): return False
            if DBG.get("skipw") and t.endswith(" lds"): return False
            if DBG.get("nobar") and t == "s_barrier":
                o.text = "s_nop 0"; return True
            if DBG.get("skipv") and t.startswith("v_") and not t.startswith(("v_mfma", "v_writelane")): return False
            if DBG.get("skipr") and t.startswith("ds_read"): return False
            return True
        for i in range(len(s.gaps)):
            for o in s.gaps[i]:
                if keep(o): em.op(o)
            if i < len(s.mf): em.op(s.mf[i])


STG0 = 160
vSTG0, vSTG1, vSTG2 = "v200", "v201", "v202"
def staged(r):
    n = DBG.get("stg", 0)
    return n and DBG.get("stg0", 26) <= r < DBG.get("stg0", 26) + n
class Ring:
    def __init__(s):
        s.issued = -1
        s.filled = -1
        s.allowed = -1
        s.q = []
    @staticmethod
    def info(r):
        rr = r % TOT_ROUNDS
        nxt = r >= TOT_ROUNDS
        for ph, (r0, nf) in PH.items():
            nrounds = (nf + 15) // 16
            if r0 <= rr < r0 + nrounds:
                k = rr - r0
                return ph, k, min(16, nf - 16 * k), nxt
        return None, 0, 0, nxt
    def jobs(s, r):
        ph, k, n, nxt = s.info(r)
        if ph is None: return []
        srd = S_WSN if nxt else S_WS
        pos = (r % NR) * 16384
        tag = ("dma", r)
        if staged(r):
            a0 = STG0 + 16 * (r - DBG.get("stg0", 26))
            va, off = (vSTG0, pos) if pos < 65536 else ((vSTG1, pos - 65536) if pos < 131072 else (vSTG2, pos - 131072))
            return [[Op(f"ds_write_b128 {va}, a[{a0+4*j}:{a0+4*j+3}] offset:{off + j*1024}", lg=("dmal", r), wvm=[("stg", r)])] for j in range(4)]
        if n > 8: c, m0s, base = 4, sW4K, {"K1": sPW1, "K2": sPWO, "K3": sPW3, "K4": sPWD}[ph]
        elif n > 4: c, m0s, base = 2, sW2K, sPW3p; assert ph == "K3" and n == 8
        else: c, m0s, base = 1, sW1K, sPWOp; assert ph == "K2" and n == 4
        nt = " nt" if (DBG.get("wnt", 0) >> {"K1": 0, "K2": 1, "K3": 2, "K4": 3}[ph]) & 1 else ""
        base4 = {"K1": sPW1, "K2": sPWO, "K3": sPW3, "K4": sPWD}[ph]
        pre = [Op(f"s_add_u32 m0, {m0s}, {pos}")]
        if not DBG.get("rot", 0):
            pre.append(Op(f"s_add_u32 {sDMA}, {base}, {(k % DBG.get('wmod', 1000))*16384}"))
        else:
            sR, rset = ROTREG[ph]
            regs = REGIONS[ph]
            def region(p):
                for i, (P0, cc, nb) in enumerate(regs):
                    if P0 <= p < P0 + cc * nb: return i
                return len(regs) - 1
            def setup(i):
                P0, cc, nb = regs[i]
                return [Op(f"s_mul_i32 {sRT}, {sR}, {cc}"), Op(f"s_lshl_b32 {sRQ}, {sW}, 2"), Op(f"s_add_u32 {sRQ}, {sRQ}, {sRT}"),
                        Op(f"s_lshl_b32 {sRT}, {sRT}, 10"), Op(f"s_add_u32 {sRB}, {base4}, {sRT}")]
            def addr(i, waves, dst):
                P0, cc, nb = regs[i]
                st = set()
                for w in waves:
                    for R in rset: st.add(16 * k + c * w + cc * R >= P0 + cc * nb)
                size = cc * nb * 1024
                if st == {False}: return [Op(f"s_add_u32 {dst}, {sRB}, {16384*k}")], False
                if st == {True}: return [Op(f"s_add_u32 {dst}, {sRB}, {(16384*k - size) & 0xffffffff}")], True
                assert c == 4
                T = P0 + cc * nb - 16 * k
                return [Op(f"s_add_u32 {dst}, {sRB}, {16384*k}"), Op(f"s_cmp_ge_u32 {sRQ}, {T}"), Op(f"s_cselect_b32 {sRT}, {size}, 0"),
                        Op(f"s_sub_u32 {dst}, {dst}, {sRT}")], None
            rw = [region(16 * k + c * w) for w in range(4)]
            prev_reg = region(16 * k - 4) if k > 0 else None
            if len(set(rw)) == 1:
                i = rw[0]
                if prev_reg != i: pre += setup(i)
                o, _ = addr(i, range(4), sDMA)
                pre += o
                if c != 4:
                    pre += [Op(f"s_sub_u32 {sDMA}, {sDMA}, {base4}"), Op(f"s_add_u32 {sDMA}, {sDMA}, {base}")]
            else:
                assert c == 4 and rw[0] == prev_reg and set(rw[1:]) == {rw[0] + 1}, (ph, k, rw)
                o, _ = addr(rw[0], [0], sRT2); pre += o
                pre += setup(rw[1])
                o, _ = addr(rw[1], [1, 2, 3], sDMA); pre += o
                pre += [Op(f"s_cmp_eq_u32 {sW}, 0"), Op(f"s_cselect_b32 {sDMA}, {sRT2}, {sDMA}")]
        out = []
        for j in range(c):
            ops = list(pre) if j == 0 else []
            ops.append(Op(f"buffer_load_dwordx4 {vL16}, {srd}, {sDMA} offen offset:{j*1024}{nt} lds", vm=tag))
            out.append(ops)
        return out
    def skip_virtual(s):
        while not s.q and s.issued < s.allowed and not s.jobs(s.issued + 1): s.issued += 1
    def next_round(s):
        r = s.issued + 1
        while not s.q and not s.jobs(r): r += 1
        return r
    def take(s):
        if not s.q:
            s.skip_virtual()
            if s.issued + 1 > s.allowed: return None
            s.q = s.jobs(s.issued + 1)
        j = s.q.pop(0)
        if not s.q:
            s.issued += 1
            s.skip_virtual()
        return j
    def emit(s, em, n=10**9, upto=None):
        k = 0
        while k < n:
            if upto is not None and s.next_round() > upto: break
            j = s.take()
            if j is None: break
            for o in j: em.op(o)
            k += 1
        return k


def wslot_addr(ph, f):
    r0, nf = PH[ph]
    r = r0 + f // 16
    a = (r % NR) * 16384 + (f % 16) * 1024
    if a < 65536: return vL16, a
    if a < 131072: return vR1, a - 65536
    return vR2, a - 131072


class WStream:
    cnt = 0
    def __init__(s, ring, seg, ph, SS=2, LA=10):
        s.ring = ring; s.seg = seg; s.ph = ph; s.SS = SS; s.LA = LA
        s.reg = {}; s.events = []
    def wreg(s, f):
        if f not in s.reg:
            s.reg[f] = WW + 4 * (WStream.cnt % NW); WStream.cnt += 1
        return s.reg[f]
    def reads(s, frags, first_use, last_use, force=(), nobar=(), wait_at=None, ming=0):
        seg = s.seg; ring = s.ring; r0, nf = PH[s.ph]
        prev = ming
        lastuse_slot = dict(getattr(s, 'lus', {}))
        filled = ring.filled
        lastbar = None
        rlast = r0 + frags[-1] // 16
        for f in frags:
            reg = s.reg[f]
            e = max(prev, first_use[f] - s.LA, lastuse_slot.get(reg, -1) + 1)
            lat = first_use[f] if wait_at is None else wait_at[f]
            e = max(0, min(e, lat))
            r = r0 + f // 16
            va, off = wslot_addr(s.ph, f)
            rd = Op(f"ds_read_b128 v[{reg}:{reg+3}], {va} offset:{off}", lg=("w", s.ph, f))
            need = r > filled
            want = (f % 16 == 0) and (r in force or (lastbar is not None and r - lastbar >= s.SS) or (lastbar is None and r - (r0 + frags[0] // 16) >= s.SS)) and r not in nobar
            if need or want:
                tgt = max(filled, min(r + s.SS - 1, rlast))
                g = e
                last = lat
                while g < last and seg.cost[g] + 1 > seg.cap: g += 1
                wt = [("dma", x) for x in range(filled + 1, tgt + 1) if not staged(x)]
                wl_ = [("dmal", x) for x in range(filled + 1, tgt + 1) if staged(x)]
                seg.put(g, Op("s_barrier", wvm=wt, wlg=wl_), 2)
                seg.put(g, rd, 1)
                filled = tgt
                prev = g
                lastbar = r
                s.events.append((g, r - 2 + NR, tgt))
            else:
                prev = seg.place(rd, e, latest=lat)
            lastuse_slot[reg] = last_use[f]
        s.lastbar = lastbar
        s.lus = lastuse_slot
        ring.filled = filled
    def vmem(s, ajobs, policy, rate=4.5, qd=36, backlog=0, margin=48, cap=None, burst0=True, stop=10**6):
        seg = s.seg; ring = s.ring
        if cap is None: cap = seg.cap
        n = len(seg.gaps)
        path = backlog
        ai = 0
        ev = list(s.events)
        def dma_deadline(r):
            for (g, al, tgt) in ev:
                if tgt >= r: return g
            return None
        evi = 0
        for (g, al, tgt) in ev:
            if g == 0: assert ring.issued >= tgt, ("rounds not issued before seg start", s.ph, tgt, ring.issued)
        for g in range(n):
            placed = 0
            while True:
                cands = []
                if ai < len(ajobs) and (len(ajobs[ai]) < 3 or g >= ajobs[ai][2]): cands.append((ajobs[ai][1], 0))
                r = ring.next_round()
                hard = dma_deadline(r)
                pe = policy(r)
                ok = (ring.q or r <= ring.allowed)
                if ok and (hard is not None or pe is not None):
                    dl = (hard - margin) if hard is not None else 10**6
                    start = pe if pe is not None else 0
                    if (g >= start and (hard is not None or g < stop)) or (hard is not None and g >= hard - 1): cands.append((dl, 1))
                    harddl = hard
                if not cands: break
                cands.sort()
                def isforced(c):
                    return (c[1] == 1 and hard is not None and g >= hard - 1) or (c[1] == 0 and g >= c[0])
                fc = [c for c in cands if isforced(c)]
                forced = bool(fc)
                dl, which = fc[0] if fc else cands[0]
                if not forced:
                    if path - g > qd: break
                    if (g > 0 or not burst0) and (seg.cost[g] + 1 > cap or placed >= 1): break
                if which == 0:
                    ops = ajobs[ai][0]; ai += 1
                else:
                    ops = ring.take(); assert ops is not None
                for o in ops: seg.put(g, o, 1)
                path = max(path, g) + rate
                placed += 1
            while evi < len(ev) and ev[evi][0] <= g:
                (eg, al, tgt) = ev[evi]; evi += 1
                assert ring.issued >= tgt, ("rounds not issued before barrier", s.ph, g, tgt, ring.issued)
                ring.allowed = max(ring.allowed, al)
        assert ai == len(ajobs)
        return path - n


def gen_main(opt):
    stop = opt.get("stop", 99)
    DBG.clear(); DBG.update(opt)
    stamps = opt.get("stamps", False)
    SS = opt.get("SS", 2)
    MARG = opt.get("marg", 72); QD = opt.get("qd", 36); RATE = opt.get("rate10", 45) / 10.0
    cur = {"sfx": "F", "STO": "", "LD": ""}
    em = Em()
    ring = Ring()
    WStream.cnt = 0
    nstamp = [0]
    def stamp():
        if not stamps: return
        k = nstamp[0]; nstamp[0] += 1
        em.raw(f"    s_waitcnt lgkmcnt(0)")
        em.e(f"s_memtime s[{sTS}:{sTS+1}]" if not opt.get("rt") else f"s_memrealtime s[{sTS}:{sTS+1}]")
        em.e(f"s_lshl_b32 s{sTS+2}, {sLAYER}, 4")
        em.e(f"s_add_u32 s{sTS+2}, s{sTS+2}, {k}")
        em.raw("    s_waitcnt lgkmcnt(0)")
        em.lg = []
        em.e(f"s_mov_b32 s{sTS+1}, m0")
        em.e(f"s_mov_b32 m0, s{sTS+2}"); em.e("s_nop 3")
        em.e(f"v_writelane_b32 v0, s{sTS}, m0")
        em.e(f"s_mov_b32 m0, s{sTS+1}")
    lsn = [0]
    def lstamp(seg, gap):
        if not opt.get("lst", 0): return
        lane = 32 + lsn[0]; lsn[0] += 1
        assert lane < 64
        rg = 96 if lane % 2 else 76
        seg.put(gap, f"s_memtime s[{rg}:{rg+1}]", 0)
        seg.put(gap + 12, f"v_writelane_b32 v0, s{rg}, {lane}", 0)
    def dump_stamps():
        if not stamps: return
        em.e("s_memrealtime s[96:97]")
        em.raw("    s_waitcnt lgkmcnt(0)")
        em.e("v_writelane_b32 v0, s92, 15"); em.e("v_writelane_b32 v0, s94, 30"); em.e("v_writelane_b32 v0, s96, 31")
        em.e(f"s_mov_b64 exec, s[{sTS+4}:{sTS+5}]")
        em.e(f"v_lshrrev_b32 v251, 2, {vL16}")
        em.e(f"v_add_u32 v251, s{sTS+3}, v251")
        em.e(f"global_store_dword v251, v0, s[{sTS+6}:{sTS+7}]")
        em.e("s_mov_b64 exec, -1")
        em.raw("    s_waitcnt vmcnt(0)")

    em.label(KNAME)
    em.e("s_cmp_ge_u32 s2, 256")
    em.e("s_cbranch_scc1 Lm_done")
    if stamps:
        em.e("s_memtime s[92:93]"); em.e("s_memrealtime s[94:95]")
    MONO = opt.get("mono", 0)
    if opt.get("sst"):
        em.e("s_memrealtime s[98:99]"); em.raw("    s_waitcnt lgkmcnt(0)"); em.e("s_mov_b32 s101, s98")
    if MONO:
        em.e("s_load_dwordx2 s[82:83], s[0:1], 64")
        MST = opt.get("mst", 0)
        for l in gen_prep("", mono=True, k3b=opt.get("k3b", 12), sfx={0: " sc1", 1: " sc0 sc1", 2: " sc1 nt", 3: "", 4: "", 5: " nt"}[MST], sx=opt.get("sx", 0), skipj=opt.get("skipj", 0)): em.raw(l)
        if opt.get("sx"):
            if opt["sx"] == 1: em.e("s_memrealtime s[78:79]")
            em.raw("    s_waitcnt vmcnt(0) lgkmcnt(0)")
            em.e("s_memrealtime s[76:77]"); em.raw("    s_waitcnt lgkmcnt(0)")
            if opt["sx"] == 1:
                em.e("v_mov_b32 v236, s101"); em.e("v_mov_b32 v237, s96"); em.e("v_mov_b32 v238, s78"); em.e("v_mov_b32 v239, s76")
            else:
                em.e("v_mov_b32 v236, s101"); em.e("v_mov_b32 v237, s80"); em.e("v_mov_b32 v238, s78"); em.e("v_mov_b32 v239, s96")
            em.e("s_lshl_b32 s33, s2, 4"); em.e("s_add_u32 s33, s33, 0x3000000"); em.e("v_mov_b32 v240, s33")
            em.e("s_cmp_lg_u32 s18, 0"); em.e("s_cbranch_scc1 Lm_done")
            em.e("s_mov_b64 exec, 1"); em.e("global_store_dwordx4 v240, v[236:239], s[16:17]"); em.e("s_endpgm")
        em.e(f"s_getreg_b32 {sMODE}, hwreg(HW_REG_XCC_ID)")
        em.e(f"s_lshr_b32 s33, {sMODE}, 12"); em.e("s_and_b32 s33, s33, 0x70"); em.e(f"s_and_b32 {sMODE}, {sMODE}, 15")
        em.e(f"s_or_b32 {sMODE}, {sMODE}, s33"); em.e(f"s_or_b32 {sMODE}, {sMODE}, 0x80")
        em.e(f"v_mov_b32 v254, {sMODE}"); em.e("v_mov_b32 v255, s2")
        em.raw("    s_waitcnt vmcnt(0) lgkmcnt(0)")
        em.e("s_barrier")
        em.e("s_cmp_lg_u32 s18, 0"); em.e("s_cbranch_scc1 Lm_nofl")
        if MST in (3, 5):
            em.e("buffer_wbl2 sc1"); em.raw("    s_waitcnt vmcnt(0)")
        em.e("s_mov_b64 exec, 1")
        em.e("global_store_byte v255, v254, s[82:83] sc1")
        em.e("s_mov_b64 exec, -1")
        em.label("Lm_nofl")
        if opt.get("sst"):
            em.e("s_memrealtime s[98:99]"); em.raw("    s_waitcnt lgkmcnt(0)"); em.e("s_mov_b32 s100, s98")
        if stamps:
            em.e("s_memtime s[96:97]"); em.raw("    s_waitcnt lgkmcnt(0)"); em.e("s_sub_u32 s96, s96, s92")
    pln = [0]
    def pls():
        if opt.get("pls") != 1: return
        em.e("s_memtime s[96:97]"); em.raw("    s_waitcnt lgkmcnt(0)"); em.e(f"v_mov_b32 v{236 + pln[0]}, s96"); pln[0] += 1
    em.e("s_load_dwordx2 s[8:9], s[0:1], 56"); em.e("s_load_dwordx2 s[10:11], s[0:1], 64")
    em.e("s_load_dwordx2 s[4:5], s[0:1], 72")
    em.e("v_lshrrev_b32 v2, 6, v0")
    em.e("v_and_b32 v0, 63, v0")
    em.e(f"v_readfirstlane_b32 {sW}, v2")
    em.e(f"v_lshlrev_b32 {vL16}, 4, v0")
    em.e("s_and_b32 s33, s2, 7"); em.e("s_lshr_b32 s34, s2, 3")
    em.e("s_and_b32 s35, s34, 1"); em.e(f"s_lshr_b32 {sM}, s34, 1")
    em.e("s_lshl_b32 s33, s33, 1"); em.e(f"s_add_u32 {sG}, s33, s35")
    em.e(f"s_and_b32 {sHALF}, {sM}, 1"); em.e(f"s_lshr_b32 {sC8}, {sM}, 1")
    em.e(f"s_lshl_b32 {sW4K}, {sW}, 12"); em.e(f"s_lshl_b32 {sW1K}, {sW}, 10"); em.e(f"s_lshl_b32 {sW2K}, {sW}, 11")
    def base(dst, reg0, sz, idx, wk, extra=0):
        em.e(f"s_mul_i32 {dst}, {idx}, {sz}"); em.e(f"s_add_u32 {dst}, {dst}, {reg0 + extra}"); em.e(f"s_add_u32 {dst}, {dst}, {wk}")
    base(sPW1, PW1, PW1_SZ, sM, sW4K); base(sPWO, PWO, PWO_SZ, sC8, sW4K)
    base(sPW3, PW3, PW3_SZ, sM, sW4K); base(sPWD, PWD, PWD_SZ, sC8, sW4K)
    base(sPWOp, PWO, PWO_SZ, sC8, sW1K); base(sPW3p, PW3, PW3_SZ, sM, sW2K)
    if opt.get("same", 0) & 1: base(sPW1, PW1, 0, sM, sW4K)
    if opt.get("same", 0) & 4: base(sPW3, PW3, 0, sM, sW4K); base(sPW3p, PW3, 0, sM, sW2K)
    if opt.get("same", 0) & 8: base(sPWD, PWD, 0, sC8, sW4K)
    em.e("s_waitcnt lgkmcnt(0)")
    pls()
    if stamps and not opt.get("rt") and not MONO:
        em.e(f"s_mov_b32 s{sTS+6}, s10"); em.e(f"s_mov_b32 s{sTS+7}, s11")
    if stamps and opt.get("rt"):
        em.e(f"s_add_u32 s{sTS+6}, s4, 0x3000000"); em.e(f"s_addc_u32 s{sTS+7}, s5, 0")
    if opt.get("wsoff", 0): em.e(f"s_add_u32 s4, s4, {opt['wsoff'] << 20}"); em.e("s_addc_u32 s5, s5, 0")
    em.e(f"s_mov_b32 s6, {WS_END}"); em.e("s_mov_b32 s7, 0x20000")
    em.e(f"s_mov_b32 s10, {2048*640*2}"); em.e("s_mov_b32 s11, 0x20000")
    em.e("s_mov_b32 s12, s4"); em.e("s_mov_b32 s13, s5"); em.e(f"s_mov_b32 s14, {WS_END}"); em.e("s_mov_b32 s15, 0x20000")
    em.e(f"s_and_b32 s33, {sG}, 1"); em.e(f"s_lshl_b32 s33, s33, 1"); em.e(f"s_add_u32 s33, s33, {sHALF}")
    if opt.get("rot", 0) == 2: em.e("s_mov_b32 s33, 0")
    em.e(f"s_lshl_b32 {sR13}, s33, 2"); em.e(f"s_add_u32 {sR13}, {sR13}, 4")
    em.e(f"s_mul_i32 {sR4}, s33, 12"); em.e(f"s_add_u32 {sR4}, {sR4}, 2"); em.e(f"s_cmp_ge_u32 s33, 2"); em.e(f"s_cselect_b32 s33, 4, 0"); em.e(f"s_add_u32 {sR4}, {sR4}, s33")
    HEAD = opt.get("head", 4)
    ring.allowed = 8
    if opt.get("probe"):
        pr = {1: [(sPW1, 0), (sPW1, 65536), (sOOFF, XB + 4096), (sPW1, 65536 + 64)],
              2: [(sOOFF, XB + 4096), (sOOFF, XB + 8192), (sPW3, 0), (sPWD, 0)],
              3: [(sOOFF, FLG_XCC), (sOOFF, ST), (sPW1, 0), (sPW1, 65536)]}[opt["probe"]]
        em.e(f"s_mul_i32 {sOOFF}, s2, 0")
        if opt["probe"] != 3: em.e(f"s_mul_i32 {sOOFF}, {sG}, {8*20480}")
        for (sr, off) in pr:
            em.e(f"s_add_u32 s33, {sr}, {off}")
            em.e(f"buffer_load_dword v241, off, {S_WS}, s33")
            em.raw("    s_waitcnt vmcnt(0)")
            pls()
        opt["pls"] = 2
    PEEL = opt.get("peel", 0) if not MONO else 0
    P1J = opt.get("p1j", 10)
    PA = opt.get("pa", 3)
    PBLK = [3, 6, 9, 12, 16, 19, 20]
    if PEEL:
        em.e(f"s_lshl_b32 s33, {sG}, 3"); em.e(f"s_lshl_b32 s34, {sW}, 1"); em.e(f"s_add_u32 {sTT2}, s33, s34")
        em.e(f"v_add_u32 {vL16B}, 20480, {vL16}")
        em.e(f"s_mul_i32 {sA}, {sTT2}, 20480"); em.e(f"s_add_u32 {sA}, {sA}, {XB}")
        b0 = 0
        for r in range(PA):
            if opt.get("pao", 0) == 0: ring.emit(em, upto=r)
            for b in range(b0, PBLK[r]):
                if b % 4 == 0 and b > 0: em.e(f"s_add_u32 {sA}, {sA}, 4096")
                for t in range(2):
                    rg = 80 * t + 4 * b
                    em.e(f"buffer_load_dwordx4 a[{rg}:{rg+3}], {vL16 if t == 0 else vL16B}, {S_WS}, {sA} offen offset:{(b % 4) * 1024}", vm=("a", b, t))
            b0 = PBLK[r]
            if opt.get("pao", 0) == 1: ring.emit(em, upto=r)
        ring.emit(em, upto=opt.get("pb", PA - 1))
    elif not MONO: ring.emit(em, upto=2)
    pls()
    AH = opt.get("ah", 0) if not MONO and not PEEL else 0
    def k1_hoist(ld):
        em.e(f"s_mul_i32 {sA}, {sXI}, {X_SZ}"); em.e(f"s_mul_i32 {sT0}, {sTT2}, 20480")
        em.e(f"s_add_u32 {sA}, {sA}, {sT0}"); em.e(f"s_add_u32 {sA}, {sA}, {XB}")
        for b in range(AH):
            if b % 4 == 0 and b > 0: em.e(f"s_add_u32 {sA}, {sA}, 4096")
            for t in range(2):
                r = 80 * t + 4 * b
                em.e(f"buffer_load_dwordx4 a[{r}:{r+3}], {vL16 if t == 0 else vL16B}, {S_WS}, {sA} offen offset:{(b % 4) * 1024}{ld}", vm=("a", b, t))
    if AH:
        assert not opt.get("rot", 0)
        if opt.get("aho", 0) == 0: ring.emit(em, upto=HEAD)
        em.e(f"s_lshl_b32 s33, {sG}, 3"); em.e(f"s_lshl_b32 s34, {sW}, 1"); em.e(f"s_add_u32 {sTT2}, s33, s34")
        em.e(f"s_mov_b32 {sXI}, 0"); em.e(f"v_add_u32 {vL16B}, 20480, {vL16}")
        k1_hoist("")
    em.e(f"s_lshl_b32 s33, {sG}, 7")
    em.e(f"s_add_u32 {sFLINE}, s33, {FLG_G}"); em.e(f"s_lshl_b32 s34, {sM}, 2"); em.e(f"s_add_u32 {sFOWN}, {sFLINE}, s34")
    em.e(f"s_lshl_b32 s33, {sM}, 7"); em.e(f"s_add_u32 {sKLINE}, s33, {FLG_KV}"); em.e(f"s_lshl_b32 s34, {sG}, 2"); em.e(f"s_add_u32 {sKOWN}, {sKLINE}, s34")
    em.e(f"s_lshl_b32 s33, {sG}, 3")
    em.e(f"s_lshl_b32 s34, {sW}, 1"); em.e(f"s_add_u32 {sTT2}, s33, s34")
    em.e(f"s_lshl_b32 s34, {sHALF}, 2"); em.e(f"s_add_u32 s34, s34, {sW}"); em.e(f"s_add_u32 {sTT1}, s33, s34")
    em.e(f"s_cmp_eq_u32 {sW}, 0"); em.e("s_cselect_b32 s44, 1, 0"); em.e("s_mov_b32 s45, 0")
    em.e(f"s_mov_b32 {sLAYER}, 0"); em.e(f"s_mov_b32 {sSTEP}, 0"); em.e(f"s_mov_b32 {sXI}, 0")
    em.e(f"s_mov_b32 {sE6}, {EPS6}")
    em.e(f"s_and_b32 {sODD}, {sC8}, 1")
    em.e(f"s_lshr_b32 s33, {sC8}, 1"); em.e("s_mul_i32 s33, s33, 5")
    em.e(f"s_lshl_b32 s34, {sODD}, 1"); em.e("s_add_u32 s34, s34, s33"); em.e("s_lshl_b32 s34, s34, 10")
    em.e(f"s_add_u32 s33, s33, 4"); em.e("s_lshl_b32 s33, s33, 10"); em.e(f"s_sub_u32 {sXREM}, s33, s34")
    em.e(f"s_mul_i32 s35, {sTT1}, 20480"); em.e(f"s_add_u32 s34, s34, s35"); em.e(f"s_add_u32 {sXOFF}, s34, {XB}")
    em.e(f"s_lshl_b32 s33, {sTT1}, 10"); em.e(f"s_lshl_b32 s34, {sC8}, 7"); em.e("s_add_u32 s33, s33, s34"); em.e(f"s_add_u32 {sSTOFF}, s33, {ST}")
    em.e(f"s_mul_i32 s33, {sTT2}, {54*1024}"); em.e(f"s_add_u32 {sAOFF}, s33, {ACT}")
    em.e(f"s_mul_i32 s33, {sTT2}, 20480"); em.e(f"s_add_u32 {sOOFF}, s33, {OB}")
    def m64(reg, val):
        a = int(reg[2:].split(":")[0])
        em.e(f"s_mov_b32 s{a}, {hex(val & 0xffffffff)}"); em.e(f"s_mov_b32 s{a+1}, {hex(val >> 32)}")
    m64(sMK[0], 0xFFFF); m64(sMK[1], 0xFFFF0000); m64(sMK[2], 0x0F000F000F000F00); m64(sMK[3], 0xF000F000F000F000)
    m64(sMK[4], 0x0F00); m64(sMK[5], 0xF0000000)
    m64(sBIT2, 0xF0F0F0F0F0F0F0F0); m64(sI8, 0x00FF00FF00FF00FF)
    m64(sG23, 0xFFFFFFFF00000000); m64(sG3, 0xFFFF000000000000); m64(sMK32, 0x00000000FFFFFFFF)
    if stamps:
        em.e(f"s_mov_b32 s{sTS+4}, 0"); em.e(f"s_mov_b32 s{sTS+5}, 0"); em.e(f"s_mov_b32 s{sTS+3}, {256 if MONO else 0}")
        em.e(f"s_sub_u32 s33, 0, s44")
        if opt.get("lst", 0) or MONO:
            em.e(f"s_cmp_eq_u32 s2, {opt.get('wg2', 0)}"); em.e(f"s_cselect_b32 s{sTS+4}, s33, 0"); em.e(f"s_mov_b32 s{sTS+5}, s{sTS+4}")
        if opt.get("rt"):
            em.e(f"s_mov_b32 s{sTS+4}, s33"); em.e(f"s_mov_b32 s{sTS+5}, 0"); em.e(f"s_lshl_b32 s{sTS+3}, s2, 7")
        elif not opt.get("lst", 0) and not MONO:
            em.e("s_cmp_eq_u32 s2, 0"); em.e(f"s_cselect_b32 s{sTS+4}, s33, 0")
            em.e(f"s_cmp_eq_u32 s2, {opt.get('wg2', 255)}"); em.e(f"s_cselect_b32 s{sTS+4}, s33, s{sTS+4}"); em.e(f"s_mov_b32 s34, {256 if MONO else 0}"); em.e(f"s_mov_b32 s35, {384 if MONO else 128}"); em.e(f"s_cselect_b32 s{sTS+3}, s35, s34")
    if not MONO:
        em.e(f"s_getreg_b32 {sMODE}, hwreg(HW_REG_XCC_ID)")
        em.e(f"s_and_b32 {sMODE}, {sMODE}, 0xffff"); em.e(f"s_add_u32 {sMODE}, {sMODE}, 1")
        em.e(f"v_mov_b32 v254, {sMODE}"); em.e("v_mov_b32 v255, 0")
        em.e(f"s_add_u32 s33, {sFOWN}, {FLG_XCC - FLG_G}")
        em.e(f"s_mov_b64 exec, {sFEX}")
        em.e(f"buffer_store_dword v254, v255, {S_WS}, s33 offen sc1")
        em.e("s_mov_b64 exec, -1")
    em.e("v_and_b32 v212, 15, v0"); em.e("v_lshrrev_b32 v213, 4, v0")
    em.e(f"v_add_u32 {vR1}, 0x10000, {vL16}"); em.e(f"v_add_u32 {vR2}, 0x20000, {vL16}"); em.e(f"v_add_u32 {vL16B}, 20480, {vL16}")
    em.e(f"v_lshlrev_b32 {vI4}, 2, v212"); em.e(f"v_add_u32 {vI4}, 0x20000, {vI4}")
    em.e(f"s_lshl_b32 s33, {sW}, 8")
    em.e(f"v_add_u32 {vI4W}, s33, {vI4}")
    em.e(f"v_lshlrev_b32 {vG16}, 4, v213"); em.e(f"v_add_u32 {vG16}, 0x20000, {vG16}"); em.e(f"v_add_u32 {vG16W}, s33, {vG16}")
    em.e("v_lshrrev_b32 v214, 5, v0"); em.e("v_bfe_u32 v215, v0, 4, 1")
    em.e("v_lshlrev_b32 v216, 8, v214"); em.e("v_lshlrev_b32 v217, 4, v212"); em.e("v_add_u32 v216, v216, v217")
    em.e(f"v_mul_u32_u24 v217, 20480, v215"); em.e(f"v_add_u32 {vX3}, v216, v217")
    em.e(f"v_mul_u32_u24 v217, {54*1024}, v215"); em.e(f"v_add_u32 {vA3}, v216, v217")
    em.e(f"v_lshlrev_b32 {vH16}, 4, v214"); em.e(f"v_add_u32 {vH16}, 0x20000, {vH16}")
    em.e(f"v_lshlrev_b32 {vL8}, 3, v0"); em.e(f"v_add_u32 {vL8}, 0x20000, {vL8}")
    em.e(f"v_lshlrev_b32 {vSTO}, 8, v213"); em.e("v_lshlrev_b32 v214, 3, v212"); em.e(f"v_add_u32 {vSTO}, {vSTO}, v214")
    em.e(f"s_mul_i32 s33, {sM}, 3"); em.e("v_lshrrev_b32 v214, 5, v0"); em.e("v_add_u32 v214, s33, v214")
    em.e("v_lshrrev_b32 v215, 3, v214"); em.e("v_add_u32 v215, 48, v215"); em.e("v_lshlrev_b32 v215, 10, v215")
    em.e("v_and_b32 v216, 3, v214"); em.e("v_lshlrev_b32 v216, 8, v216"); em.e("v_add_u32 v215, v215, v216")
    em.e("v_lshlrev_b32 v216, 4, v212"); em.e("v_add_u32 v215, v215, v216")
    em.e("v_bfe_u32 v216, v214, 2, 1"); em.e("v_lshlrev_b32 v216, 3, v216"); em.e(f"v_add_u32 v215, v215, v216")
    em.e("v_bfe_u32 v216, v0, 4, 1"); em.e(f"v_mul_u32_u24 v216, {54*1024}, v216"); em.e(f"v_add_u32 {vACT6}, v215, v216")
    em.e(f"s_lshr_b32 s33, {sM}, 2"); em.e("s_add_u32 s33, s33, 16"); em.e("s_lshl_b32 s33, s33, 10")
    em.e(f"s_and_b32 s34, {sM}, 1"); em.e("s_lshl_b32 s34, s34, 9"); em.e("s_add_u32 s33, s33, s34")
    em.e(f"s_bfe_u32 s34, {sM}, 0x10001"); em.e("s_lshl_b32 s34, s34, 3"); em.e("s_add_u32 s33, s33, s34")
    em.e("s_sub_u32 s33, s33, 512")
    em.e("v_lshlrev_b32 v215, 8, v213"); em.e("v_lshlrev_b32 v216, 4, v212"); em.e("v_add_u32 v215, v215, v216")
    em.e(f"v_add_u32 {vOREM}, s33, v215")
    em.e("v_mul_u32_u24 v215, 1280, v212"); em.e("v_lshlrev_b32 v216, 3, v213"); em.e(f"v_add_u32 {vOUT}, v215, v216")
    if MONO:
        em.e(f"s_cmp_lg_u32 {sW}, 0"); em.e("s_cbranch_scc1 Lm_sb_o")
        em.e("v_lshlrev_b32 v252, 2, v0")
        em.e(f"s_mov_b32 {sSPIN}, 0")
        em.label("Lm_sb_p")
        em.e("global_load_dword v253, v252, s[82:83] sc1")
        em.raw("    s_waitcnt vmcnt(0)")
        em.e("v_and_b32 v254, 0x80808080, v253")
        em.e("v_cmp_ne_u32 vcc, 0x80808080, v254")
        em.e(f"s_add_u32 {sSPIN}, {sSPIN}, 1")
        em.e(f"s_cmp_gt_u32 {sSPIN}, 200000")
        em.e("s_cbranch_scc1 Lm_sb_x")
        em.e("s_cbranch_vccnz Lm_sb_p")
        em.label("Lm_sb_x")
        em.e("s_and_b32 s33, s2, 3"); em.e("s_lshl_b32 s33, s33, 3")
        em.e("v_lshrrev_b32 v253, s33, v253"); em.e("v_and_b32 v253, 0xff, v253")
        em.e(f"v_cmp_ne_u32 vcc, {sMODE}, v253")
        em.e("s_bfe_u32 s33, s2, 0x20002"); em.e("s_mov_b32 s34, 0x11111111"); em.e("s_lshl_b32 s34, s34, s33"); em.e("s_mov_b32 s35, s34")
        em.e("s_and_b64 vcc, vcc, s[34:35]")
        em.e("s_cmp_lg_u64 vcc, 0"); em.e("s_cselect_b32 s33, 1, 0")
        if opt.get("force_slow", 0): em.e("s_mov_b32 s33, 1")
        em.e("v_mov_b32 v253, s33"); em.e(f"v_mov_b32 v252, {MISC + 12288}")
        em.e("ds_write_b32 v252, v253")
        em.raw("    s_waitcnt lgkmcnt(0)")
        em.label("Lm_sb_o")
        em.e("s_barrier")
        em.e(f"v_mov_b32 v252, {MISC + 12288}")
        em.e("ds_read_b32 v253, v252")
        ring.emit(em, upto=2)
        em.raw("    s_waitcnt lgkmcnt(0)")
        em.e(f"v_readfirstlane_b32 {sMODE}, v253")
        if opt.get("sst"):
            em.e("s_memrealtime s[76:77]"); em.raw("    s_waitcnt lgkmcnt(0)")
            em.e("v_mov_b32 v236, s101"); em.e("v_mov_b32 v237, s100"); em.e("v_mov_b32 v238, s76"); em.e("v_mov_b32 v239, 0")
            em.e("s_lshl_b32 s33, s2, 4"); em.e("s_add_u32 s33, s33, 0x3000000"); em.e("v_mov_b32 v240, s33")
            em.e("s_mov_b64 exec, 1"); em.e("global_store_dwordx4 v240, v[236:239], s[4:5]"); em.e("s_mov_b64 exec, -1")
        if stamps:
            em.e("s_memtime s[76:77]"); em.raw("    s_waitcnt lgkmcnt(0)"); em.e("s_sub_u32 s97, s76, s92")
    pls()
    em.e(f"s_mul_i32 s33, {sM}, 512"); em.e(f"s_add_u32 s33, s33, {CS1}")
    em.e(f"s_mul_i32 s34, {sM}, 896"); em.e(f"s_add_u32 s34, s34, {CS3}")
    em.e("v_and_b32 v214, 31, v0"); em.e("v_lshlrev_b32 v214, 4, v214"); em.e("v_lshrrev_b32 v215, 5, v0")
    em.e("v_mul_u32_u24 v215, 81920, v215"); em.e("v_add_u32 v214, v214, v215"); em.e("v_add_u32 v214, s33, v214")
    em.e(f"v_add_u32 v215, s34, {vL16}")
    em.e("v_mov_b32 v216, 0x7ffffff0")
    em.e("v_cmp_gt_u32 vcc, 56, v0"); em.e("v_cndmask_b32 v215, v216, v215, vcc")
    em.e(f"s_cmp_eq_u32 {sW}, 0"); em.e("s_mov_b32 s36, 14336"); em.e("s_cselect_b32 s36, 8192, s36"); em.e("s_cselect_b64 vcc, -1, 0")
    em.e("v_cndmask_b32 v214, v215, v214, vcc")
    em.e(f"s_cmp_ge_u32 {sW}, 2"); em.e("s_cselect_b64 vcc, -1, 0")
    em.e("v_cndmask_b32 v214, v214, v216, vcc")
    for k in range(10):
        em.e(f"buffer_load_dwordx4 v[{CSVB+4*k}:{CSVB+4*k+3}], v214, {S_WS}, 0 offen", vm="cs")
        if k < 9: em.e("v_add_u32 v214, s36, v214")
    RL = RLB
    em.e(f"s_lshr_b32 s33, {sC8}, 1"); em.e("s_mul_i32 s33, s33, 5")
    em.e(f"s_lshl_b32 s34, {sODD}, 1"); em.e("s_add_u32 s34, s34, s33")
    em.e(f"s_mul_i32 s35, {sTT1}, 20480"); em.e(f"s_add_u32 s35, s35, {XB}")
    em.e("s_lshl_b32 s34, s34, 10"); em.e("s_add_u32 s34, s34, s35")
    em.e(f"buffer_load_dwordx4 v[{RL}:{RL+3}], {vL16}, {S_WS}, s34 offen", vm="res")
    em.e(f"buffer_load_dwordx4 v[{RL+4}:{RL+7}], {vL16}, {S_WS}, s34 offen offset:1024", vm="res")
    em.e("s_add_u32 s33, s33, 4"); em.e("s_lshl_b32 s33, s33, 10"); em.e("s_add_u32 s33, s33, s35")
    em.e(f"s_lshl_b32 s34, {sODD}, 3"); em.e("s_add_u32 s33, s33, s34")
    em.e(f"buffer_load_dwordx2 v[{RL+8}:{RL+9}], {vL16}, {S_WS}, s33 offen", vm="res")

    def poll(line, target_expr_sreg, lbl):
        em.e(f"s_mov_b32 {sSPIN}, 0")
        em.e(f"v_subrev_u32 v252, 0x20000, {vI4}")
        em.label(lbl)
        em.e(f"buffer_load_dword v253, v252, {S_WS}, {line} offen sc1")
        em.raw("    s_waitcnt vmcnt(0)")
        em.e(f"v_cmp_gt_u32 vcc, {target_expr_sreg}, v253")
        em.e(f"s_add_u32 {sSPIN}, {sSPIN}, 1")
        em.e(f"s_cmp_gt_u32 {sSPIN}, 20000")
        em.e(f"s_cbranch_scc1 {lbl}_x")
        em.e(f"s_cbranch_vccnz {lbl}")
        em.label(lbl + "_x")
    uid = [0]
    def wt(name, bit): return cur['STO'] or (" sc1" if opt.get(name, 0) & bit else "")
    def flag_store(own, val_sreg):
        em.e(f"v_mov_b32 v254, {val_sreg}")
        em.e("v_mov_b32 v255, 0")
        em.e(f"s_mov_b64 exec, {sFEX}")
        em.e(f"buffer_store_dword v254, v255, {S_WS}, {own} offen{cur['STO']}")
        em.e("s_mov_b64 exec, -1")
    def transition(pub, wait, last_round, sttags, need, d1, d2, upto2=None, defer0=False):
        uid[0] += 1; u = uid[0]
        if defer0:
            class Rec:
                def __init__(s_): s_.ops = []
                def op(s_, o): s_.ops.append(o)
            c1 = Rec(); ring.emit(c1, d1, upto=upto2)
            em.e(f"s_cmp_lg_u32 {sW}, 0"); em.e(f"s_cbranch_scc1 Lt{u}_a")
            vm0 = list(em.vm)
            em.wait(wvm=sttags)
            em.e(f"s_branch Lt{u}_b")
            em.label(f"Lt{u}_a")
            em.vm = vm0
            for o in c1.ops: em.op(o)
            em.wait(wvm=sttags)
            em.label(f"Lt{u}_b")
            em.e("s_barrier")
            ring.allowed = max(ring.allowed, last_round + NR)
            em.e(f"s_add_u32 {sT0}, {sSTEP}, {pub}")
            flag_store(sFOWN, sT0)
            c2 = Rec(); ring.emit(c2, d2, upto=upto2); ring.emit(c2, upto=need)
            assert ring.issued >= need
            em.e(f"s_cmp_lg_u32 {sW}, 0")
            em.e(f"s_cbranch_scc1 Lt{u}_c")
            em.e(f"s_add_u32 {sT0}, {sSTEP}, {wait}")
            poll(sFLINE, sT0, f"Lt{u}_p")
            if not (opt.get("dfskip", 0) and pub != 5):
                for o in c1.ops + c2.ops: em.raw("    " + o.text)
            em.e(f"s_branch Lt{u}_o")
            em.label(f"Lt{u}_c")
            for o in c2.ops: em.op(o)
            em.label(f"Lt{u}_o")
            em.wait(wvm=[("dma", x) for x in range(ring.filled + 1, need + 1)])
            ring.filled = max(ring.filled, need)
            em.e("s_barrier")
            return
        ring.emit(em, d1, upto=upto2)
        em.wait(wvm=sttags)
        em.e("s_barrier")
        ring.allowed = max(ring.allowed, last_round + NR)
        em.e(f"s_add_u32 {sT0}, {sSTEP}, {pub}")
        flag_store(sFOWN, sT0)
        ring.emit(em, d2, upto=upto2)
        ring.emit(em, upto=need)
        assert ring.issued >= need
        em.e(f"s_cmp_lg_u32 {sW}, 0")
        em.e(f"s_cbranch_scc1 Lt{u}_o")
        em.e(f"s_add_u32 {sT0}, {sSTEP}, {wait}")
        poll(sFLINE, sT0, f"Lt{u}_p")
        em.label(f"Lt{u}_o")
        em.wait(wvm=[("dma", x) for x in range(ring.filled + 1, need + 1)], wlg=[("dmal", x) for x in range(ring.filled + 1, need + 1)])
        ring.filled = max(ring.filled, need)
        em.e("s_barrier")

    def a_loads(n_tiles, nblk, ph, tagname, areg, m32=False):
        ops = []
        sR, rset = ROTREG[ph]
        rot = opt.get("rot", 0)
        for b in range(nblk):
            if b == 0 and rot:
                ops += [Op(f"s_lshl_b32 {sRT}, {sR}, 10"), Op(f"s_add_u32 {sA}, {sA}, {sRT}")]
            if b % 4 == 0 and b > 0:
                ops.append(Op(f"s_add_u32 {sA}, {sA}, 4096"))
                if rot and (nblk - b) in rset:
                    ops += [Op(f"s_cmp_eq_u32 {sR}, {nblk - b}"), Op(f"s_cselect_b32 {sRT}, {nblk*1024}, 0"), Op(f"s_sub_u32 {sA}, {sA}, {sRT}")]
            for t in range(n_tiles):
                r = areg(b, t)
                va = vL16 if t == 0 else vL16B
                off = (b % 4) * 1024
                if m32: va = vX3; off += 512 * t
                ops.append(Op(f"buffer_load_dwordx4 a[{r}:{r+3}], {va}, {S_WS}, {sA} offen offset:{off}{cur['LD']}", vm=(tagname, b, t)))
        return ops

    def a_jobs(al, dl):
        jobs = []; pend = []
        for o in al:
            pend.append(o)
            if o.vm is not None:
                jobs.append((pend, dl(o.vm[1]))); pend = []
        return jobs
    def stats_ops(base):
        ops = []
        for t in range(2):
            a = base + 4 * t; nm = base + 8 + 2 * t; rs = nm + 1; x = base + 12; y = base + 13
            ops.append(Op(f"v_add_f32 v{a}, v{a}, v{a+2}", wvm=[("st", t)]))
            ops.append(f"v_add_f32 v{a+1}, v{a+1}, v{a+3}")
            for sw in ("v_permlane32_swap_b32", "v_permlane16_swap_b32"):
                ops.append(f"v_mov_b32 v{x}, v{a}"); ops.append(f"v_mov_b32 v{y}, v{a+1}")
                ops.append(f"{sw} v{a}, v{x}"); ops.append(f"{sw} v{a+1}, v{y}")
                ops.append(f"v_add_f32 v{a}, v{a}, v{x}"); ops.append(f"v_add_f32 v{a+1}, v{a+1}, v{y}")
            ops.append(f"v_mul_f32 v{nm}, {hex(INV640 | 0x80000000)}, v{a}")
            ops.append(f"v_mul_f32 v{a+1}, {hex(INV640)}, v{a+1}")
            ops.append(f"v_fma_f32 v{a+1}, -v{nm}, v{nm}, v{a+1}")
            ops.append(f"v_max_f32 v{a+1}, 0, v{a+1}")
            ops.append(f"v_add_f32 v{a+1}, {hex(EPS5)}, v{a+1}")
            ops.append((Op(f"v_rsq_f32 v{rs}, v{a+1}"), 2))
        return ops
    def stats_loads(base):
        ops = []
        ops.append(Op(f"s_mul_i32 {sST}, {sXI}, {ST_SZ}"))
        ops.append(Op(f"s_lshl_b32 {sST2}, {sTT2}, 10"))
        ops.append(Op(f"s_add_u32 {sST}, {sST}, {sST2}"))
        ops.append(Op(f"s_add_u32 {sST}, {sST}, {ST}"))
        for t in range(2):
            a = base + 4 * t
            ops.append(Op(f"buffer_load_dwordx2 v[{a}:{a+1}], {vSTO}, {S_WS}, {sST} offen offset:{t*1024}{cur['LD']}", vm=("st", t)))
            ops.append(Op(f"buffer_load_dwordx2 v[{a+2}:{a+3}], {vSTO}, {S_WS}, {sST} offen offset:{t*1024+128}{cur['LD']}", vm=("st", t)))
        return ops
    def set_sA_x():
        em.e(f"s_mul_i32 {sA}, {sXI}, {X_SZ}"); em.e(f"s_mul_i32 {sT0}, {sTT2}, 20480")
        em.e(f"s_add_u32 {sA}, {sA}, {sT0}"); em.e(f"s_add_u32 {sA}, {sA}, {XB}")

    def phi_ops(acc, cs, nm, rs, rl, t1, t2):
        return [f"v_fmac_f32 v{acc}, v{nm}, v{cs}",
                f"v_mul_f32 v{t1}, v{acc}, v{rl}",
                (Op(f"v_exp_f32 v{t1}, v{t1} clamp"), 2),
                f"v_max_f32 v{acc}, 0, v{acc}",
                f"v_add_f32 v{t1}, {hex(EPS6)}, v{t1}",
                f"v_fma_f32 v{acc}, v{acc}, v{rs}, v{t1}"]
    def il(lists):
        out = []; k = 0
        while any(k < len(l) for l in lists):
            for l in lists:
                if k < len(l): out.append(l[k])
            k += 1
        return out
    def lin(ops):
        for o in ops:
            if isinstance(o, tuple): o = o[0]
            em.op(o)

    def reuse(): return cur["sfx"] == "F" and opt.get("reuse", 1)
    def LB(): return "0" if reuse() else sLAYER
    def pt(voff, srd, soff, imm=0):
        sc = {0: "", 1: " sc1", 2: " sc0", 3: " nt", 4: " sc0 sc1"}[opt.get("ptsc", 0)]
        if voff is None: return Op(f"buffer_load_dword {PTD}, off, {srd}, {soff} offset:{imm}{sc}", vm="pt")
        return Op(f"buffer_load_dword {PTD}, {voff}, {srd}, {soff} offen offset:{imm}{sc}", vm="pt")
    PTM = opt.get("ptm", 1); PTK = opt.get("ptk", 31)
    def PS(): return S_WSN if PTM == 2 else S_WS
    def pt_x(srd):
        return [f"s_mov_b32 {sP0}, 1" if reuse() else f"s_add_u32 {sP0}, {sXI}, 1", f"s_mul_i32 {sP1}, {sP0}, {X_SZ}", f"s_add_u32 {sP1}, {sP1}, {sXOFF}",
                pt(vL16, srd, sP1), pt(vL16, srd, sP1, 1024),
                f"s_add_u32 {sP1}, {sP1}, {sXREM}", pt(vL16, srd, sP1),
                f"s_mul_i32 {sP0}, {sP0}, {ST_SZ}", f"s_add_u32 {sP0}, {sP0}, {sSTOFF}", pt(None, srd, sP0)]
    def pt_act(p):
        ops = [f"s_mul_i32 {sP0}, {LB()}, {ACT_SZ}", f"s_add_u32 {sP0}, {sP0}, {sAOFF}"]
        if p < 3:
            ops += [f"s_lshl_b32 {sP1}, {sM}, 10", f"s_add_u32 {sP0}, {sP0}, {sP1}"]
            if p: ops.append(f"s_add_u32 {sP0}, {sP0}, {p*16384}")
            ops += [pt(vL16, PS(), sP0), f"s_add_u32 {sP0}, {sP0}, {54*1024}", pt(vL16, PS(), sP0)]
        else:
            ops += [pt(vACT6, PS(), sP0)]
        return ops
    def pt_o():
        return [f"s_mul_i32 {sP0}, {LB()}, {O_SZ}", f"s_add_u32 {sP0}, {sP0}, {sOOFF}",
                pt(vOREM, PS(), sP0), f"s_add_u32 {sP0}, {sP0}, 20480", pt(vOREM, PS(), sP0),
                f"s_lshl_b32 {sP1}, {sM}, 10", f"s_add_u32 {sP0}, {sP0}, {sP1}", pt(vL16, PS(), sP0), f"s_sub_u32 {sP0}, {sP0}, 20480", pt(vL16, PS(), sP0)]
    def pt_place(seg, ops, g):
        if cur["sfx"] != "F" or not opt.get("pt", 1): return g
        for o in ops:
            if isinstance(o, list): g = seg.group(o, g, maxcost=seg.cap - 1)
            else: g = seg.place(o, g)
        return g
    def pt_jobs(ops, earliest, dl):
        if cur["sfx"] != "F" or not opt.get("pt", 1): return []
        jobs = []; pend = []
        for o in ops:
            if isinstance(o, list):
                jobs.append((pend + [x if isinstance(x, Op) else Op(x) for x in o], dl, earliest)); pend = []
            elif isinstance(o, Op) and o.vm is not None:
                jobs.append((pend + [o], dl, earliest)); pend = []
            else: pend.append(o if isinstance(o, Op) else Op(o))
        assert not pend
        return jobs
    pfk = [0]
    def pf3(n, skip0):
        if cur["sfx"] != "F" or not n: return 0
        em.e(f"v_lshlrev_b32 v251, 3, {vL16}")
        em.e(f"s_and_b32 {sP1}, {sG}, 1"); em.e(f"s_lshl_b32 {sP1}, {sP1}, 15"); em.e(f"s_add_u32 {sP1}, {sP1}, {sPW3}"); em.e(f"s_add_u32 {sP1}, {sP1}, {sW4K}")
        uid[0] += 1; u = uid[0]
        if skip0:
            em.e(f"s_cmp_lg_u32 {sW}, 0"); em.e(f"s_cbranch_scc1 Lpf{u}_a")
            em.raw("    s_waitcnt vmcnt(0)")
            em.e(f"s_branch Lpf{u}_b")
            em.label(f"Lpf{u}_a")
        for k in range(n):
            em.e(f"s_add_u32 {sP0}, {sP1}, {opt.get('pfo', 32768) + 65536 * pfk[0]}"); pfk[0] += 1
            em.e(f"buffer_load_dword {PTD}, v251, {S_WS}, {sP0} offen", vm="pt")
        if skip0: em.label(f"Lpf{u}_b")
        return n
    def pf_place(seg, ph, off, key, nxt=False): pass
    def pf_now(ph, off, key, nxt=False): pass
    def prologue_end():
        if opt.get("xh", 1) and not MONO:
            em.e(f"s_add_u32 s33, {sFLINE}, {FLG_XCC - FLG_G}")
            em.e(f"v_subrev_u32 v252, 0x20000, {vI4}")
            em.e(f"buffer_load_dword v251, v252, {S_WS}, s33 offen sc1")
        if PEEL: return
        if PTM == 3 and opt.get("ptpos", 0) == 0: pt_all()
        ring.emit(em, upto=HEAD)
        if PTM == 3 and opt.get("ptpos", 0) == 1: pt_all()
        assert ring.issued == HEAD and not ring.q
    def pt_all():
        ops = (pt_o() if PTK & 1 else []) + (pt_x(S_WS) if PTK & 2 else []) + (pt_act(0) if PTK & 4 else [])
        if PTK & 8: ops += pt_act(1) + pt_act(2) + pt_act(3)
        for o in ops: em.op(o if isinstance(o, Op) else Op(o))
    join_state = [None]
    def K1_p1(peel):
        AX = lambda b, t: 80 * t + 4 * b
        SB = TMP
        NM4 = 226
        P1 = ACC
        nh = PBLK[PA - 1] if peel else AH
        if not nh: set_sA_x()
        seg = Seg(); ws = WStream(ring, seg, "K1", SS=(opt.get("pss", SS) if peel else SS))
        fu = {}; lu = {}
        for b in range(20):
            for t in range(5):
                f = b * 5 + t; wr = ws.wreg(f)
                for tok in range(2):
                    d = P1 + 8 * t + 4 * tok
                    c = "0" if b == 0 else f"v[{d}:{d+3}]"
                    wl = [("w", "K1", b * 5 + 4)] if (t == 0 and tok == 0) else None
                    wv = [("a", b, 1)] if (t == 0 and tok == 0) else None
                    i = seg.mfma(f"v_mfma_f32_16x16x32_bf16 v[{d}:{d+3}], a[{AX(b,tok)}:{AX(b,tok)+3}], v[{wr}:{wr+3}], {c}", wvm=wv, wlg=wl)
                    if t == 0 and tok == 0: g0 = i
                    fu.setdefault(f, g0); lu[f] = i
        if peel: cur["LD"] = ""
        al = a_loads(2, 20, "K1", "a", AX)
        sl = stats_loads(SB)
        for o in sl: seg.put(0, o, 0)
        ws.reads(list(range(100)), fu, lu, force=(6,))
        if peel:
            ws.vmem(a_jobs(al, lambda b: 10 * b - opt.get("pal", 60))[2 * nh:], lambda r: (0 if r <= 6 else opt.get("p7", 0)) if r <= P1J else None, margin=opt.get("pmarg", MARG), qd=opt.get("pqd", QD), rate=opt.get("pr1", 38) / 10.0)
        else:
            ws.vmem(a_jobs(al, lambda b: 10 * b - 30)[2 * nh:], lambda r: 0 if r <= 6 else (opt.get("k1w", 0) if r <= P1J or not PEEL else None), margin=MARG, qd=QD, rate=opt.get("r1", 38) / 10.0)
        so = stats_ops(SB)
        for t in range(2):
            nm = SB + 8 + 2 * t
            so.append(Op(f"ds_write_b32 {vI4W}, v{nm} offset:{L_STAT + t*128}", lg="sw"))
            so.append(Op(f"ds_write_b32 {vI4W}, v{nm+1} offset:{L_STAT + t*128 + 64}", lg="sw"))
        for t in range(2):
            so.append(Op(f"ds_read_b128 v[{NM4+8*t}:{NM4+8*t+3}], {vG16W} offset:{L_STAT + t*128}", lg="sr", wlg=["sw"]))
            so.append(Op(f"ds_read_b128 v[{NM4+8*t+4}:{NM4+8*t+7}], {vG16W} offset:{L_STAT + t*128 + 64}", lg="sr"))
        for t in range(2):
            for r in range(4):
                so.append(Op(f"v_mul_f32 v{242+4*t+r}, {hex(LOG2E)}, v{NM4+8*t+4+r}", wlg=["sr"]))
        seg.stream(so, opt.get("pst0", 100) if peel else 40)
        if peel and opt.get("pcs", 0):
            co = []
            for k in range(1, 10):
                for q in range(4): co.append(Op(f"v_add_f32 v{CSVB+q}, v{CSVB+q}, v{CSVB+4*k+q}", wvm=["cs"] if (k == 1 and q == 0) else None))
            for q in range(4):
                co.append(f"v_mov_b32 v{CSVB+4+q}, v{CSVB+q}"); co.append(f"v_mov_b32 v{CSVB+8+q}, v{CSVB+q}")
            for q in range(4): co.append(f"v_permlane32_swap_b32 v{CSVB+4+q}, v{CSVB+8+q}")
            g = seg.stream(co, opt["pcs"], cap=4); co = []
            g = seg.group([Op(f"s_cmp_eq_u32 {sW}, 0"), Op("s_cselect_b64 vcc, -1, 0")], g, maxcost=10)
            for q in range(4):
                co.append(f"v_add_f32 v{CSVB+4+q}, v{CSVB+4+q}, v{CSVB+8+q}")
                co.append(f"v_cndmask_b32 v{CSVB+q}, v{CSVB+q}, v{CSVB+4+q}, vcc")
            for q in range(10):
                co.append(Op(f"v_lshlrev_b32 v{RES+2*q}, 16, v{RLB+q}", wvm=["res"] if q == 0 else None))
                co.append(f"v_and_b32 v{RES+2*q+1}, 0xffff0000, v{RLB+q}")
            g = seg.stream(co, g, cap=4)
            grp = [f"s_cmp_eq_u32 {sW}, 0", f"s_mov_b32 {sT0}, {L_CS3}", f"s_cselect_b32 {sT0}, {L_CS1}, {sT0}", f"s_cselect_b32 {sT1}, 32, 56",
                   f"s_cmp_ge_u32 {sW}, 2", f"s_cselect_b32 {sT1}, 0, {sT1}", f"v_add_u32 v254, {sT0}, {vR2}", f"v_lshrrev_b32 v255, 4, {vL16}",
                   f"v_cmp_gt_u32 vcc, {sT1}, v255", "s_and_saveexec_b64 s[34:35], vcc", Op(f"ds_write_b128 v254, v[{CSVB}:{CSVB+3}]", lg="csw"), "s_mov_b64 exec, s[34:35]"]
            g = seg.group([o if isinstance(o, Op) else Op(o) for o in grp], g + 1, maxcost=10)
            gl = ws.events[-1][0]
            assert g < gl, (g, gl)
            nb = 0
            for o in seg.gaps[gl]:
                if o.text == "s_barrier": o.wlg = list(o.wlg or []) + ["csw"]; nb += 1
            assert nb == 1
        for g in ((1, 50, 100, 150) if not opt.get('ls2') else range(1, 200, 20)): lstamp(seg, g)
        seg.emit(em)
        if PEEL: ring.emit(em, upto=P1J)
        sys.stderr.write(f"p1 end: issued {ring.issued} q {len(ring.q)} filled {ring.filled} allowed {ring.allowed} vm {em.vm} ev {ws.events}\n")
        return ws
    def K1_first(peel):
        if peel and opt.get("pcs", 0): K1_sel(peel); return
        for k in range(1, 10):
            for q in range(4): em.e(f"v_add_f32 v{CSVB+q}, v{CSVB+q}, v{CSVB+4*k+q}")
        for q in range(4):
            em.e(f"v_mov_b32 v{CSVB+4+q}, v{CSVB+q}"); em.e(f"v_mov_b32 v{CSVB+8+q}, v{CSVB+q}")
        for q in range(4):
            em.e(f"v_permlane32_swap_b32 v{CSVB+4+q}, v{CSVB+8+q}")
        em.e(f"s_cmp_eq_u32 {sW}, 0"); em.e("s_cselect_b64 vcc, -1, 0")
        for q in range(4):
            em.e(f"v_add_f32 v{CSVB+4+q}, v{CSVB+4+q}, v{CSVB+8+q}")
            em.e(f"v_cndmask_b32 v{CSVB+q}, v{CSVB+q}, v{CSVB+4+q}, vcc")
        em.e(f"s_cmp_eq_u32 {sW}, 0"); em.e(f"s_mov_b32 {sT0}, {L_CS3}"); em.e(f"s_cselect_b32 {sT0}, {L_CS1}, {sT0}"); em.e(f"s_cselect_b32 {sT1}, 32, 56")
        em.e(f"s_cmp_ge_u32 {sW}, 2"); em.e(f"s_cselect_b32 {sT1}, 0, {sT1}")
        em.e(f"v_add_u32 v254, {sT0}, {vR2}")
        em.e(f"v_lshrrev_b32 v255, 4, {vL16}")
        em.e(f"v_cmp_gt_u32 vcc, {sT1}, v255")
        em.e("s_and_saveexec_b64 s[34:35], vcc")
        em.e(f"ds_write_b128 v254, v[{CSVB}:{CSVB+3}]")
        em.e("s_mov_b64 exec, s[34:35]")
        for q in range(10):
            em.e(f"v_lshlrev_b32 v{RES+2*q}, 16, v{RLB+q}")
            em.e(f"v_and_b32 v{RES+2*q+1}, 0xffff0000, v{RLB+q}")
        em.raw("    s_waitcnt lgkmcnt(0)")
        em.e("s_barrier")
        K1_sel(peel)
    def K1_sel(peel):
        if cur["sfx"] == "F" and not MONO:
            uid[0] += 1; u = uid[0]
            em.e(f"s_add_u32 {sT1}, {sFLINE}, {FLG_XCC - FLG_G}")
            if opt.get("xh", 1):
                em.e(f"v_mov_b32 v253, v251")
                em.e(f"v_cmp_gt_u32 vcc, 1, v253")
                em.e(f"s_cbranch_vccz Lx{u}_p_x")
            poll(sT1, "1", f"Lx{u}_p")
            em.e(f"v_cmp_ne_u32 vcc, {sMODE}, v253")
            if opt.get("force_slow", 0): em.e("s_branch Lk1_nocsS")
            em.e("s_cbranch_vccnz Lk1_nocsS")
        if peel: em.e("s_branch Lk1_nocsF")
    def K1():
        AX = lambda b, t: 80 * t + 4 * b
        SB = TMP; NM4 = 226; P1 = ACC
        ws = K1_p1(False)
        stamp()
        svm = list(em.vm)
        if PEEL:
            svm = [t for t in svm if isinstance(t, tuple) and t[0] == "dma"]
            js = join_state[0]
            assert (ring.issued, ring.filled, ring.allowed, WStream.cnt) == (js[0], js[1], js[2], js[4]), ((ring.issued, ring.filled, ring.allowed, WStream.cnt), js)
            na, nb_ = len(svm), len(js[3])
            if na <= nb_: assert js[3][nb_ - na:] == svm; svm = list(js[3])
            else: assert svm[na - nb_:] == js[3]
        else:
            em.e(f"s_cmp_lg_u32 {sLAYER}, 0"); em.e(f"s_cbranch_scc1 Lk1_nocs{cur['sfx']}")
            K1_first(False)
        em.label(f"Lk1_nocs{cur['sfx']}")
        em.vm = svm; em.lg = []
        em.raw("    s_waitcnt lgkmcnt(0)")
        if not opt.get('k1n', 1):
            CS = 140
            for t in range(5):
                em.e(f"ds_read_b32 v{CS+t}, {vI4} offset:{L_CS1 + t*64}", lg="cs")
            KF = 148
            T1, T2 = 172, 173
            def nmr(tok, r): return NM4 + 8 * tok + r
            def rsr(tok, r): return NM4 + 8 * tok + 4 + r
            def rlr(tok, r): return 242 + 4 * tok + r
            em.wait(wlg=["cs"])
            XV = 176
            ops = []
            streams = []
            tmpc = [180]
            for (t, fr_) in ((0, KF), (1, KF + 4), (4, KF + 16)):
                for tok in range(2):
                    for r in range(4):
                        a = P1 + 8 * t + 4 * tok + r
                        tt = 184 + (len(streams) % 8)
                        if t == 4:
                            s_ = [f"v_fmac_f32 v{a}, v{nmr(tok,r)}, v{CS+t}",
                                  f"v_mul_f32 v{XV+4*tok+r}, v{a}, v{rsr(tok,r)}",
                                  f"v_mul_f32 v{tt}, v{a}, v{rlr(tok,r)}",
                                  f"v_exp_f32 v{tt}, v{tt} clamp",
                                  f"v_max_f32 v{a}, 0, v{a}",
                                  f"v_add_f32 v{tt}, {hex(EPS6)}, v{tt}",
                                  f"v_fma_f32 v{a}, v{a}, v{rsr(tok,r)}, v{tt}"]
                        else:
                            s_ = [x[0] if isinstance(x, tuple) else x for x in phi_ops(a, CS + t, nmr(tok, r), rsr(tok, r), rlr(tok, r), tt, None)]
                        streams.append(s_)
            for k in range(0, len(streams), 4):
                lin(il(streams[k:k + 4]))
                ring.emit(em, 4)
            for t in (2, 3):
                for tok in range(2):
                    for r in range(4):
                        a = P1 + 8 * t + 4 * tok + r
                        em.e(f"v_fmac_f32 v{a}, v{nmr(tok,r)}, v{CS+t}")
                    for r in range(4):
                        a = P1 + 8 * t + 4 * tok + r
                        em.e(f"v_mul_f32 v{a}, v{a}, v{rsr(tok,r)}")
            for k in range(8):
                em.e(f"v_cndmask_b32 v{XV+k}, v{XV+k}, 1.0, {sI8}")
            def pack(dst, src_tok0, src_tok1):
                em.e(f"v_cvt_pk_bf16_f32 v{dst}, v{src_tok0}, v{src_tok0+1}"); em.e(f"v_cvt_pk_bf16_f32 v{dst+1}, v{src_tok0+2}, v{src_tok0+3}")
                em.e(f"v_cvt_pk_bf16_f32 v{dst+2}, v{src_tok1}, v{src_tok1+1}"); em.e(f"v_cvt_pk_bf16_f32 v{dst+3}, v{src_tok1+2}, v{src_tok1+3}")
            K0f, K1f, V0f, V1f, XKf, XPf = KF, KF + 4, KF + 8, KF + 12, KF + 16, KF + 20
            pack(K0f, P1 + 0, P1 + 4); pack(K1f, P1 + 8, P1 + 12); pack(V0f, P1 + 16, P1 + 20); pack(V1f, P1 + 24, P1 + 28)
            pack(XKf, P1 + 32, P1 + 36); pack(XPf, XV, XV + 4)
            D = 184
            for k, (A_, B_) in enumerate([(K0f, V0f), (K1f, V1f), (XKf, V0f), (XKf, V1f), (K0f, XPf), (K1f, XPf), (XKf, XPf)]):
                em.e(f"v_mfma_f32_16x16x32_bf16 v[{D+4*k}:{D+4*k+3}], v[{A_}:{A_+3}], v[{B_}:{B_+3}], 0")
            D1, D2, D3, D4, D5, D6, D7 = [D + 4 * k for k in range(7)]
            for r in range(4):
                em.e(f"v_cndmask_b32 v{D5+r}, v{D5+r}, v{D6+r}, {sBIT2}")
                em.e(f"v_cndmask_b32 v{D3+r}, v{D3+r}, v{D4+r}, {sMK[1]}")
            for r in range(4):
                em.e(f"v_permlane32_swap_b32 v{D3+r}, v{D7+r}")
            ring.emit(em, upto=13)
            assert ring.issued <= 13 and ring.next_round() <= 14 and not ring.q and ws.lastbar >= 6, (ring.issued, ws.lastbar)
            RP = (14 % NR) * 16384 - 65536
            em.e(f"v_add_u32 v254, {sW1K}, {vR1}"); em.e(f"v_add_u32 v255, {sW4K}, {vR1}")
            for t, src in enumerate((D1, D2, D5, D3)):
                em.e(f"ds_write_b128 v254, v[{src}:{src+3}] offset:{RP + t*4096}", lg="red")
            em.wait_all_lg()
            em.wait(wvm=[("dma", x) for x in range(ring.filled + 1, 9)])
            ring.filled = 8
            em.e("s_barrier")
            for k in range(4):
                em.e(f"ds_read_b128 v[{D+4*k}:{D+4*k+3}], v255 offset:{RP + k*1024}", lg=("rr", k))
            em.e(f"s_mul_i32 {sST}, {sLAYER}, {KVP_L}"); em.e(f"s_lshl_b32 {sST2}, {sM}, 16"); em.e(f"s_add_u32 {sST}, {sST}, {sST2}")
            em.e(f"s_add_u32 {sST}, {sST}, {KVP}"); em.e(f"s_add_u32 {sST}, {sST}, {sW1K}")
            em.e(f"s_lshl_b32 {sST2}, {sG}, 12"); em.e(f"s_add_u32 {sST2}, {sST2}, {sST}")
            for q in range(4): em.e(f"v_add_f32 v{D+q}, v{D+q}, v{D+4+q}", wlg=[("rr", 1)] if q == 0 else None)
            for q in range(4): em.e(f"v_add_f32 v{D+8+q}, v{D+8+q}, v{D+12+q}", wlg=[("rr", 3)] if q == 0 else None)
            for q in range(4): em.e(f"v_add_f32 v{D+q}, v{D+q}, v{D+8+q}")
            em.e(f"buffer_store_dwordx4 v[{D}:{D+3}], {vL16}, {S_WS}, {sST2} offen sc1", vm="kvst")
            stamp()
            P2 = ACC
            seg = Seg(); ws2 = WStream(ring, seg, "K1", SS=SS)
            fu = {}; lu = {}
            for b in range(20):
                for t in range(3):
                    f = 100 + 3 * b + t; wr = ws2.wreg(f)
                    for tok in range(2):
                        d = P2 + 8 * t + 4 * tok
                        c = "0" if b == 0 else f"v[{d}:{d+3}]"
                        wl = [("w", "K1", 100 + 3 * b + 2)] if (t == 0 and tok == 0) else None
                        i = seg.mfma(f"v_mfma_f32_16x16x32_bf16 v[{d}:{d+3}], v[{wr}:{wr+3}], a[{AX(b,tok)}:{AX(b,tok)+3}], {c}", wlg=wl)
                        if t == 0 and tok == 0: g0 = i
                        fu.setdefault(f, g0); lu[f] = i
            ws2.reads(list(range(100, 160)), fu, lu, nobar=(7, 8))
            assert len(ws2.events) == 1
            gb = ws2.events[0][0]
            for o in seg.gaps[gb]:
                if o.text == "s_barrier": o.wvm = list(o.wvm) + ["kvst"]
            pub = [Op(f"s_add_u32 {sT0}, {sLAYER}, 1"),
                   Op(f"v_mov_b32 v254, {sT0}"), Op("v_mov_b32 v255, 0"),
                   Op(f"s_mov_b64 exec, {sFEX}"),
                   Op(f"buffer_store_dword v254, v255, {S_WS}, {sKOWN} offen sc1"),
                   Op("s_mov_b64 exec, -1")]
            g = seg.stream(pub[:3], gb - 6)
            assert g < gb
            for o in pub[3:]: seg.put(gb + 1, o, 1)
            g = pt_place(seg, pt_o(), 2)
            g = pt_place(seg, pt_x(S_WS), g)
            g = pt_place(seg, pt_act(0), g)
            pf_place(seg, "K3", 32768, "pa1"); pf_place(seg, "K3", 32768 + 65536, "pa2"); pf_place(seg, "K3", 32768 + 2*65536, "pa3"); pf_place(seg, "K3", 32768 + 3*65536, "pa4")
            ws2.vmem([], lambda r: 0, margin=MARG, qd=QD, rate=RATE)
            CS4 = 140
            seg.stream([Op(f"ds_read_b128 v[{CS4+4*t}:{CS4+4*t+3}], {vG16} offset:{L_CS1 + (5+t)*64}", lg="cs4") for t in range(3)], 60)
            RLI = 152
            seg.stream([f"v_mul_f32 v{RLI+t}, {hex(LOG2E)}, v{SB+8+2*t+1}" for t in range(2)], 70)
            seg.emit(em)
            stamp()
            em.wait(wlg=["cs4"])
            streams = []
            for t in range(3):
                for tok in range(2):
                    for r in range(4):
                        a = P2 + 8 * t + 4 * tok + r
                        tt = 184 + (len(streams) % 8)
                        streams.append([x[0] if isinstance(x, tuple) else x for x in phi_ops(a, CS4 + 4 * t + r, SB + 8 + 2 * tok, SB + 8 + 2 * tok + 1, RLI + tok, tt, None)])
            for k in range(0, len(streams), 4):
                lin(il(streams[k:k + 4]))
                ring.emit(em, 2)
            F = 156
            for tok in range(2):
                qa = P2 + 4 * tok; qb = P2 + 8 + 4 * tok; qx = P2 + 16 + 4 * tok
                fa = F + 8 * tok; fb = fa + 4
                em.e(f"v_cvt_pk_bf16_f32 v{fa}, v{qa}, v{qa+1}"); em.e(f"v_cvt_pk_bf16_f32 v{fa+1}, v{qa+2}, v{qa+3}")
                em.e(f"v_cvt_pk_bf16_f32 v{fa+2}, v{qx}, v{qx+1}"); em.e(f"v_cvt_pk_bf16_f32 v{fa+3}, v{qx+2}, v{qx+3}")
                em.e(f"v_cvt_pk_bf16_f32 v{fb}, v{qb}, v{qb+1}"); em.e(f"v_cvt_pk_bf16_f32 v{fb+1}, v{qb+2}, v{qb+3}")
                em.e(f"v_mov_b32 v{fb+2}, v{fa+2}"); em.e(f"v_mov_b32 v{fb+3}, v{fa+3}")
            uid[0] += 1; u = uid[0]
            em.e(f"s_cmp_lg_u32 {sW}, 0")
            em.e(f"s_cbranch_scc1 Lkv{u}_o")
            em.e(f"s_add_u32 {sT0}, {sLAYER}, 1")
            poll(sKLINE, sT0, f"Lkv{u}_p")
            em.label(f"Lkv{u}_o")
            em.e("s_barrier")
            ring.allowed = max(ring.allowed, 18)
            KL = 172
            for Gp in range(16):
                if Gp % 1 == 0: em.e(f"s_add_u32 {sST2}, {sST}, {Gp*4096}")
                em.e(f"buffer_load_dwordx4 v[{KL+4*Gp}:{KL+4*Gp+3}], {vL16}, {S_WS}, {sST2} offen sc1", vm=("kl", Gp))
            ring.emit(em, upto=18)
            pf_now("K3", 32768, "pb1"); pf_now("K3", 32768 + 65536, "pb2"); pf_now("K3", 32768 + 2*65536, "pb3"); pf_now("K3", 32768 + 3*65536, "pb4")
            for Gp in range(1, 16):
                for q in range(4):
                    em.e(f"v_add_f32 v{KL+q}, v{KL+q}, v{KL+4*Gp+q}", wvm=[("kl", Gp)] if q == 0 else None)
        else:
            CS = 140
            for t in range(5):
                em.e(f"ds_read_b32 v{CS+t}, {vI4} offset:{L_CS1 + t*64}", lg="cs")
            KF = 148
            def nmr(tok, r): return NM4 + 8 * tok + r
            def rsr(tok, r): return NM4 + 8 * tok + 4 + r
            def rlr(tok, r): return 242 + 4 * tok + r
            XV = 172
            TT = 180
            P2 = 188
            em.e(f"s_mul_i32 {sST}, {sLAYER}, {KVP_L}"); em.e(f"s_lshl_b32 {sST2}, {sM}, 16"); em.e(f"s_add_u32 {sST}, {sST}, {sST2}")
            em.e(f"s_add_u32 {sST}, {sST}, {KVP}"); em.e(f"s_add_u32 {sST}, {sST}, {sW1K}")
            em.e(f"s_lshl_b32 {sST2}, {sG}, 12"); em.e(f"s_add_u32 {sST2}, {sST2}, {sST}")
            em.e(f"v_add_u32 v254, {sW1K}, {vR1}"); em.e(f"v_add_u32 v255, {sW4K}, {vR1}")
            seg = Seg(); ws2 = WStream(ring, seg, "K1", SS=SS)
            fu = {}; lu = {}
            for b in range(20):
                for t in range(3):
                    f = 100 + 3 * b + t; wr = ws2.wreg(f)
                    for tok in range(2):
                        d = P2 + 8 * t + 4 * tok
                        c = "0" if b == 0 else f"v[{d}:{d+3}]"
                        wl = [("w", "K1", 100 + 3 * b + 2)] if (t == 0 and tok == 0) else None
                        i = seg.mfma(f"v_mfma_f32_16x16x32_bf16 v[{d}:{d+3}], v[{wr}:{wr+3}], a[{AX(b,tok)}:{AX(b,tok)+3}], {c}", wlg=wl)
                        if t == 0 and tok == 0: g0 = i
                        fu.setdefault(f, g0); lu[f] = i
            assert ring.filled == 6, ring.filled
            ws2.reads(list(range(100, 144)), fu, lu)
            assert len(ws2.events) == 1 and ws2.events[0][2] == 8, ws2.events
            ws2.events[0] = (ws2.events[0][0], 13, 8)
            streams = []
            def phi_stream(t):
                for tok in range(2):
                    for r in range(4):
                        a = P1 + 8 * t + 4 * tok + r
                        tt = TT + (len(streams) % 8)
                        if t == 4:
                            s_ = [f"v_fmac_f32 v{a}, v{nmr(tok,r)}, v{CS+t}",
                                  f"v_mul_f32 v{XV+4*tok+r}, v{a}, v{rsr(tok,r)}",
                                  f"v_mul_f32 v{tt}, v{a}, v{rlr(tok,r)}",
                                  (Op(f"v_exp_f32 v{tt}, v{tt} clamp"), 2),
                                  f"v_max_f32 v{a}, 0, v{a}",
                                  f"v_add_f32 v{tt}, {hex(EPS6)}, v{tt}",
                                  f"v_fma_f32 v{a}, v{a}, v{rsr(tok,r)}, v{tt}"]
                        else:
                            s_ = phi_ops(a, CS + t, nmr(tok, r), rsr(tok, r), rlr(tok, r), tt, None)
                        streams.append(s_)
            for t in (0, 1, 4): phi_stream(t)
            ko = []
            for k in range(0, len(streams), 4): ko += il(streams[k:k + 4])
            o0 = ko[0]; o0 = Op(o0, wlg=["cs"]); ko[0] = o0
            for t in (2, 3):
                for tok in range(2):
                    for r in range(4):
                        a = P1 + 8 * t + 4 * tok + r
                        ko.append(f"v_fmac_f32 v{a}, v{nmr(tok,r)}, v{CS+t}")
                    for r in range(4):
                        a = P1 + 8 * t + 4 * tok + r
                        ko.append(f"v_mul_f32 v{a}, v{a}, v{rsr(tok,r)}")
            for k in range(8):
                ko.append(f"v_cndmask_b32 v{XV+k}, v{XV+k}, 1.0, {sI8}")
            def pack(dst, src_tok0, src_tok1):
                return [f"v_cvt_pk_bf16_f32 v{dst}, v{src_tok0}, v{src_tok0+1}", f"v_cvt_pk_bf16_f32 v{dst+1}, v{src_tok0+2}, v{src_tok0+3}",
                        f"v_cvt_pk_bf16_f32 v{dst+2}, v{src_tok1}, v{src_tok1+1}", f"v_cvt_pk_bf16_f32 v{dst+3}, v{src_tok1+2}, v{src_tok1+3}"]
            K0f, K1f, V0f, V1f, XKf, XPf = KF, KF + 4, KF + 8, KF + 12, KF + 16, KF + 20
            ko += pack(K0f, P1 + 0, P1 + 4) + pack(K1f, P1 + 8, P1 + 12) + pack(XKf, P1 + 32, P1 + 36) + pack(V0f, P1 + 16, P1 + 20) + pack(V1f, P1 + 24, P1 + 28) + pack(XPf, XV, XV + 4)
            KCAP = opt.get("kcap", 5)
            g = seg.stream(ko, 0, cap=KCAP)
            D = 100
            g += 1
            for k, (A_, B_) in enumerate([(K0f, V0f), (K1f, V1f), (XKf, V0f), (XKf, V1f), (K0f, XPf), (K1f, XPf), (XKf, XPf)]):
                seg.put(g + k // 2, f"v_mfma_f32_16x16x32_bf16 v[{D+4*k}:{D+4*k+3}], v[{A_}:{A_+3}], v[{B_}:{B_+3}], 0", 2)
            g += 5
            D1, D2, D3, D4, D5, D6, D7 = [D + 4 * k for k in range(7)]
            RP = (14 % NR) * 16384 - 65536
            ko = [Op(f"ds_write_b128 v254, v[{D1}:{D1+3}] offset:{RP}", lg="red"), Op(f"ds_write_b128 v254, v[{D2}:{D2+3}] offset:{RP + 4096}", lg="red")]
            for r in range(4):
                ko.append(f"v_cndmask_b32 v{D5+r}, v{D5+r}, v{D6+r}, {sBIT2}")
            for r in range(4):
                ko.append(f"v_cndmask_b32 v{D3+r}, v{D3+r}, v{D4+r}, {sMK[1]}")
            ko.append(Op(f"ds_write_b128 v254, v[{D5}:{D5+3}] offset:{RP + 2*4096}", lg="red"))
            for r in range(4):
                ko.append(f"v_permlane32_swap_b32 v{D3+r}, v{D7+r}")
            g = seg.stream(ko, g, cap=KCAP)
            g = seg.put(g + 1, Op(f"ds_write_b128 v254, v[{D3}:{D3+3}] offset:{RP + 3*4096}", lg="red"), 1)
            gR = g + opt.get("kgb", 3)
            seg.put(gR, Op("s_barrier", wvm=[("dma", 9)], wlg=["red"]), 2)
            for k in range(4):
                seg.put(gR, Op(f"ds_read_b128 v[{D+4*k}:{D+4*k+3}], v255 offset:{RP + k*1024}", lg=("rr", k)), 1)
            assert gR < fu[144] - 1, (gR, fu[144])
            ws2.events.append((gR, 13, 9))
            g = gR + opt.get("kga", 4)
            ko = []
            for q in range(4): ko.append(Op(f"v_add_f32 v{D+q}, v{D+q}, v{D+4+q}", wlg=[("rr", 1)] if q == 0 else None))
            for q in range(4): ko.append(Op(f"v_add_f32 v{D+8+q}, v{D+8+q}, v{D+12+q}", wlg=[("rr", 3)] if q == 0 else None))
            for q in range(4): ko.append(Op(f"v_add_f32 v{D+q}, v{D+q}, v{D+8+q}"))
            KVH = opt.get("kvh", 1)
            if KVH:
                ko.insert(0, Op(f"v_lshrrev_b32 v254, 1, {vL16}"))
                ko += [Op(f"v_cvt_pk_bf16_f32 v{D}, v{D}, v{D+1}"), Op(f"v_cvt_pk_bf16_f32 v{D+1}, v{D+2}, v{D+3}")]
                ko.append(Op(f"buffer_store_dwordx2 v[{D}:{D+1}], v254, {S_WS}, {sST2} offen sc1", vm="kvst"))
            else:
                ko.append(Op(f"buffer_store_dwordx4 v[{D}:{D+3}], {vL16}, {S_WS}, {sST2} offen sc1", vm="kvst"))
            gS = seg.stream(ko, g, cap=4)
            ws2.events.append((g + 4, 14, 9))
            ring.filled = 9
            ev = list(ws2.events)
            ws2.reads(list(range(144, 160)), fu, lu, ming=gR + 1)
            assert ws2.events == ev
            pj = pt_jobs((pt_o() if PTK & 1 else []) + (pt_x(PS()) if PTK & 2 else []) + (pt_act(0) if PTK & 4 else []), opt.get("ptg", 40), 119) if PTM != 3 else []
            pq = []
            if opt.get("ptq", 0): pq = pj; pj = []
            ws2.vmem(pj, lambda r: 0, margin=MARG, qd=opt.get("qs2", 4), rate=opt.get("rs2", 35) / 10.0, cap=KCAP + 2, burst0=False)
            CS4 = 140
            seg.stream([Op(f"ds_read_b128 v[{CS4+4*t}:{CS4+4*t+3}], {vG16} offset:{L_CS1 + (5+t)*64}", lg="cs4") for t in range(3)], gS + 1)
            RLI = 152
            seg.stream([f"v_mul_f32 v{RLI+t}, {hex(LOG2E)}, v{SB+8+2*t+1}" for t in range(2)], gS + 4)
            sys.stderr.write(f"S2: gR {gR} gS {gS} ev {ws2.events}\n")
            if opt.get('ls2'):
                for g in range(1, 108, 7): lstamp(seg, g)
            seg.emit(em)
            stamp()
            KL = WW
            NL = 8 if KVH else 16
            KA = WW + 32
            vKV = "v255" if KVH else vL16
            K1SC = "" if opt.get("kvp", 1) else " sc1"
            if KVH:
                em.e(f"v_and_b32 v254, 0x200, {vL16}"); em.e("v_lshlrev_b32 v254, 3, v254"); em.e(f"v_and_b32 v255, 0x1f0, {vL16}"); em.e("v_add_u32 v255, v255, v254")
            def kl_loads(tag):
                for Gp in range(NL):
                    em.e(f"s_add_u32 {sST2}, {sST}, {Gp*4096*(16//NL)}")
                    em.e(f"buffer_load_dwordx4 v[{KL+4*Gp}:{KL+4*Gp+3}], {vKV}, {S_WS}, {sST2} offen sc1", vm=(tag, Gp) if tag else None)
            streams = []
            for t in range(3):
                for tok in range(2):
                    for r in range(4):
                        a = P2 + 8 * t + 4 * tok + r
                        tt = TT + (len(streams) % 8)
                        streams.append([x[0] if isinstance(x, tuple) else x for x in phi_ops(a, CS4 + 4 * t + r, SB + 8 + 2 * tok, SB + 8 + 2 * tok + 1, RLI + tok, tt, None)])
            qops = []
            for k in range(0, len(streams), 4): qops += il(streams[k:k + 4])
            F = 156
            for tok in range(2):
                qa = P2 + 4 * tok; qb = P2 + 8 + 4 * tok; qx = P2 + 16 + 4 * tok
                fa = F + 8 * tok; fb = fa + 4
                qops += [f"v_cvt_pk_bf16_f32 v{fa}, v{qa}, v{qa+1}", f"v_cvt_pk_bf16_f32 v{fa+1}, v{qa+2}, v{qa+3}",
                         f"v_cvt_pk_bf16_f32 v{fa+2}, v{qx}, v{qx+1}", f"v_cvt_pk_bf16_f32 v{fa+3}, v{qx+2}, v{qx+3}",
                         f"v_cvt_pk_bf16_f32 v{fb}, v{qb}, v{qb+1}", f"v_cvt_pk_bf16_f32 v{fb+1}, v{qb+2}, v{qb+3}",
                         f"v_mov_b32 v{fb+2}, v{fa+2}", f"v_mov_b32 v{fb+3}, v{fa+3}"]
            KLS = opt.get("kls", 6)
            first = True
            for k, o in enumerate(qops):
                if k % KLS == 0 and k // KLS < NL:
                    Gp = k // KLS
                    em.e(f"s_add_u32 {sST2}, {sST}, {Gp*4096*(16//NL)}")
                    em.e(f"buffer_load_dwordx4 v[{KL+4*Gp}:{KL+4*Gp+3}], {vKV}, {S_WS}, {sST2} offen{K1SC}", vm=("kl", Gp))
                elif k % (KLS if not pq else opt.get("ptqs", 3)) == 0 and k // KLS >= NL and pq:
                    for o2 in pq.pop(0)[0]: em.op(o2)
                elif k % KLS == 0: ring.emit(em, 1)
                if first: em.wait(wlg=["cs4"]); first = False
                em.op(o)
            for j in pq:
                for o2 in j[0]: em.op(o2)
            stamp()
            uid[0] += 1; u = uid[0]
            em.e(f"s_mov_b32 {sSPIN}, 0")
            if KVH:
                em.e(f"s_mov_b32 {sP0}, 0x3f80"); em.e(f"s_mov_b32 {sP1}, 0x3f800000")
                em.wait(wvm=[("kl", 0)])
                em.label(f"Lkv{u}_s")
                for q in range(8): em.e(f"v_mov_b32 v{KA+q}, 0")
                for Gp in range(8):
                    for q in range(4):
                        em.e(f"v_dot2c_f32_bf16 v{KA+2*q}, {sP0}, v{KL+4*Gp+q}", wvm=[("kl", Gp)] if q == 0 else None)
                        em.e(f"v_dot2c_f32_bf16 v{KA+2*q+1}, {sP1}, v{KL+4*Gp+q}")
                em.e(f"v_cmp_u_f32 vcc, v{KA}, v{KA+2}"); em.e(f"v_cmp_u_f32 s[34:35], v{KA+4}, v{KA+6}")
            else:
                for Gp in range(1, 16):
                    if Gp == 1:
                        em.wait(wvm=[("kl", 1)])
                        em.label(f"Lkv{u}_s")
                    for q in range(4):
                        em.e(f"v_add_f32 v{KL+q}, v{KL+q}, v{KL+4*Gp+q}", wvm=[("kl", Gp)] if q == 0 else None)
                em.e(f"v_cmp_u_f32 vcc, v{KL}, v{KL+1}"); em.e(f"v_cmp_u_f32 s[34:35], v{KL+2}, v{KL+3}")
            em.e(f"s_or_b64 vcc, vcc, s[34:35]")
            em.e(f"s_cbranch_vccz Lkv{u}_o")
            em.e(f"s_add_u32 {sSPIN}, {sSPIN}, 1"); em.e(f"s_cmp_gt_u32 {sSPIN}, 20000"); em.e(f"s_cbranch_scc1 Lkv{u}_o")
            kl_loads(None)
            em.raw("    s_waitcnt vmcnt(0)")
            em.e(f"s_branch Lkv{u}_s")
            em.label(f"Lkv{u}_o")
        if opt.get('k1n', 1) and KVH:
            for q in range(4): em.e(f"v_permlane32_swap_b32 v{KA+q}, v{KA+4+q}")
            for q in range(4): em.e(f"v_add_f32 v{KA+q}, v{KA+q}, v{KA+4+q}")
            em.e(f"v_cvt_pk_bf16_f32 v{KL}, v{KA}, v{KA+1}"); em.e(f"v_cvt_pk_bf16_f32 v{KL+1}, v{KA+2}, v{KA+3}")
            em.e(f"v_and_b32 v254, 0x1f0, {vL16}"); em.e(f"v_lshrrev_b32 v255, 6, {vL16}"); em.e("v_and_b32 v255, 8, v255"); em.e("v_add_u32 v254, v254, v255")
            em.e(f"s_lshl_b32 {sT0}, {sW}, 9"); em.e(f"s_add_u32 {sT0}, {sT0}, 0x20000"); em.e(f"v_add_u32 v254, {sT0}, v254")
        else:
            em.e(f"v_cvt_pk_bf16_f32 v{KL}, v{KL}, v{KL+1}"); em.e(f"v_cvt_pk_bf16_f32 v{KL+1}, v{KL+2}, v{KL+3}")
            em.e(f"s_lshl_b32 {sT0}, {sW}, 9"); em.e(f"v_add_u32 v254, {sT0}, {vL8}")
        em.e(f"ds_write_b64 v254, v[{KL}:{KL+1}] offset:{L_KVB}", lg="kw")
        em.wait_all_lg()
        em.e("s_barrier")
        if opt.get('k1n', 1):
            ring.allowed = max(ring.allowed, 18)
            ring.emit(em, upto=opt.get("k1e", 18))
            pfk[0] = 0
            pf3(opt.get("pfa", 0), False)
        R_ = 176
        for t in range(4):
            em.e(f"ds_read_b64 v[{R_+2*t}:{R_+2*t+1}], {vL8} offset:{L_KVB + t*512}", lg="kr")
        em.e(f"v_xor_b32 v254, 256, {vL8}")
        em.e(f"ds_read_b64 v[{R_+8}:{R_+9}], v254 offset:{L_KVB + 3*512}", lg="kr")
        em.e(f"v_and_b32 v254, 0xfffffe7f ^ 0, {vL8}" if False else f"v_lshlrev_b32 v254, 3, {vG16}")
        em.e(f"v_and_b32 v254, 0x3ff, v254")
        em.e(f"v_add_u32 v254, 0x20000, v254")
        em.e(f"ds_read_b64 v[{R_+10}:{R_+11}], v254 offset:{L_KVB + 2*512}", lg="kr")
        em.e(f"ds_read_b64 v[{R_+12}:{R_+13}], v254 offset:{L_KVB + 2*512 + 32}", lg="kr")
        em.e("v_mov_b32 v255, 0x20000")
        em.e(f"ds_read_b64 v[{R_+14}:{R_+15}], v255 offset:{L_KVB + 3*512 + 32*8}", lg="kr")
        em.e(f"ds_read_b64 v[{R_+16}:{R_+17}], v255 offset:{L_KVB + 3*512 + 52*8}", lg="kr")
        em.wait_all_lg()
        t1, t2, t3, t4, t4x, za, zb, zxa, zxb = [R_ + 2 * k for k in range(9)]
        AF = 196
        Aa, Ab, Axa, Axb, Aza, Azb = [AF + 4 * k for k in range(6)]
        mg0, mg1, ma, mb, mga, mgb = sMK
        def cp(dst, src):
            em.e(f"v_mov_b32 v{dst}, v{src}"); em.e(f"v_mov_b32 v{dst+1}, v{src+1}")
        def mk(dst, src, m):
            em.e(f"v_cndmask_b32 v{dst}, 0, v{src}, {m}"); em.e(f"v_cndmask_b32 v{dst+1}, 0, v{src+1}, {m}")
        cp(Aa, t1); mk(Aa + 2, t4, mg0)
        cp(Ab, t2); mk(Ab + 2, t4, mg1)
        mk(Axa, t3, ma); mk(Axa + 2, t4x, mga)
        mk(Axb, t3, mb); mk(Axb + 2, t4x, mgb)
        cp(Aza, za); mk(Aza + 2, zxa, mg0)
        cp(Azb, zb); mk(Azb + 2, zxb, mg1)
        O = 100
        for tok in range(2):
            fa = F + 8 * tok; fb = fa + 4; o = O + 20 * tok
            em.e(f"v_mfma_f32_16x16x32_bf16 v[{o+12}:{o+15}], v[{Aza}:{Aza+3}], v[{fa}:{fa+3}], 0")
            em.e(f"v_mfma_f32_16x16x32_bf16 v[{o+16}:{o+19}], v[{Azb}:{Azb+3}], v[{fb}:{fb+3}], 0")
            em.e(f"v_mfma_f32_16x16x32_bf16 v[{o}:{o+3}], v[{Aa}:{Aa+3}], v[{fa}:{fa+3}], 0")
            em.e(f"v_mfma_f32_16x16x32_bf16 v[{o+4}:{o+7}], v[{Ab}:{Ab+3}], v[{fb}:{fb+3}], 0")
            em.e(f"v_mfma_f32_16x16x32_bf16 v[{o+8}:{o+11}], v[{Axa}:{Axa+3}], v[{fa}:{fa+3}], 0")
            em.e(f"v_mfma_f32_16x16x32_bf16 v[{o+8}:{o+11}], v[{Axb}:{Axb+3}], v[{fb}:{fb+3}], v[{o+8}:{o+11}]")
        em.e(f"s_mul_i32 {sST}, {LB()}, {O_SZ}"); em.e(f"s_mul_i32 {sST2}, {sTT2}, 20480"); em.e(f"s_add_u32 {sST}, {sST}, {sST2}")
        em.e(f"s_add_u32 {sST}, {sST}, {OB}")
        em.e(f"s_lshl_b32 {sST2}, {sM}, 10"); em.e(f"s_add_u32 {sST2}, {sST2}, {sST}")
        for tok in range(2):
            o = O + 20 * tok
            em.e(f"v_add_f32 v{o+12}, {hex(EPS6)}, v{o+12}"); em.e(f"v_add_f32 v{o+16}, {hex(EPS6)}, v{o+16}")
            em.e(f"v_rcp_f32 v{o+12}, v{o+12}"); em.e(f"v_rcp_f32 v{o+16}, v{o+16}")
            em.e(f"v_cndmask_b32 v{o+13}, v{o+12}, v{o+16}, {sG3}")
            for r in range(4):
                em.e(f"v_mul_f32 v{o+r}, v{o+r}, v{o+12}"); em.e(f"v_mul_f32 v{o+4+r}, v{o+4+r}, v{o+16}")
                em.e(f"v_mul_f32 v{o+8+r}, v{o+8+r}, v{o+13}")
            em.e(f"v_cvt_pk_bf16_f32 v{o}, v{o}, v{o+1}"); em.e(f"v_cvt_pk_bf16_f32 v{o+1}, v{o+2}, v{o+3}")
            em.e(f"v_cvt_pk_bf16_f32 v{o+2}, v{o+4}, v{o+5}"); em.e(f"v_cvt_pk_bf16_f32 v{o+3}, v{o+6}, v{o+7}")
            em.e(f"v_cvt_pk_bf16_f32 v{o+8}, v{o+8}, v{o+9}"); em.e(f"v_cvt_pk_bf16_f32 v{o+9}, v{o+10}, v{o+11}")
            va = vL16 if tok == 0 else vL16B
            em.e(f"buffer_store_dwordx4 v[{o}:{o+3}], {va}, {S_WS}, {sST2} offen{wt('osw', 1)}", vm="ost")
            if tok == 1: em.e(f"s_add_u32 {sST}, {sST}, 20480")
            em.e(f"s_mov_b64 exec, {sG23}")
            em.e(f"buffer_store_dwordx2 v[{o+8}:{o+9}], {vOREM}, {S_WS}, {sST} offen{wt('osw', 2)}", vm="ost")
            em.e("s_mov_b64 exec, -1")

    def K24(ph, nblk, final_possible):
        AX = lambda b, t: 4 * b
        if ph == "K2":
            em.e(f"s_mul_i32 {sA}, {LB()}, {O_SZ}"); em.e(f"s_mul_i32 {sT0}, {sTT1}, 20480"); em.e(f"s_add_u32 {sA}, {sA}, {sT0}"); em.e(f"s_add_u32 {sA}, {sA}, {OB}")
        else:
            em.e(f"s_mul_i32 {sA}, {LB()}, {ACT_SZ}"); em.e(f"s_mul_i32 {sT0}, {sTT1}, {54*1024}"); em.e(f"s_add_u32 {sA}, {sA}, {sT0}"); em.e(f"s_add_u32 {sA}, {sA}, {ACT}")
        seg = Seg(); ws = WStream(ring, seg, ph, SS=SS, LA=opt.get("la4", 10))
        fu = {}; lu = {}; wa = {}
        for b in range(nblk):
            for t in range(5):
                f = b * 5 + t; wr = ws.wreg(f); d = RES + 4 * t
                wv = [("a", b, 0)] if t == 0 else None
                i = seg.mfma(f"v_mfma_f32_16x16x32_bf16 v[{d}:{d+3}], v[{wr}:{wr+3}], a[{4*b}:{4*b+3}], v[{d}:{d+3}]", wvm=wv, wlg=[("w", ph, b * 5 + 4)] if t == 0 else None)
                fu[f] = i; lu[f] = i; wa[f] = 5 * b
        al = a_loads(1, nblk, ph, "a", AX)
        if ph == "K2" and DBG.get("stg", 0):
            for o in (f"v_add_u32 {vSTG0}, {sW4K}, {vL16}", f"v_add_u32 {vSTG1}, {sW4K}, {vR1}", f"v_add_u32 {vSTG2}, {sW4K}, {vR2}"): seg.put(0, o, 1)
        if ph == "K2":
            ws.reads(list(range(nblk * 5)), fu, lu, nobar=(12, 16), force=(14,), wait_at=wa)
            ws.vmem(a_jobs(al, lambda b: 5 * b - 30), lambda r: opt.get("k2w", 0), margin=MARG, qd=QD, rate=opt.get("r2", 35) / 10.0, stop=opt.get("k2s", 10**6))
        else:
            ws.reads(list(range(nblk * 5)), fu, lu, wait_at=wa)
            ws.vmem(a_jobs(al, lambda b: 5 * b - 30), lambda r: 0 if r < 52 else opt.get("k4w", 0), margin=MARG, qd=QD, rate=opt.get("r4", 28) / 10.0)
        g = 0
        if ph == "K4":
            if PTK & 16 and PTM != 3: pt_place(seg, pt_x(S_WSN), opt.get("k4pt", 170))
            pf_place(seg, "K1", 0, "pf1", True); pf_place(seg, "K1", 65536, "pf2", True); pf_place(seg, "K1", 131072, "pf3", True)
        else:
            pf_place(seg, "K3", 32768 + 2*65536, "pg3"); pf_place(seg, "K3", 32768 + 3*65536, "pg4")
        if not opt.get('ls2'):
            for g in range(1, nblk * 5 - 13, 30): lstamp(seg, g)
        seg.emit(em)
        stamp()
        P = TMP
        for t in range(5):
            em.e(f"v_cvt_pk_bf16_f32 v{P+2*t}, v{RES+4*t}, v{RES+4*t+1}"); em.e(f"v_cvt_pk_bf16_f32 v{P+2*t+1}, v{RES+4*t+2}, v{RES+4*t+3}")
        uid[0] += 1; u = uid[0]
        if final_possible:
            em.e(f"s_cmp_eq_u32 {sLAYER}, 1"); em.e(f"s_cbranch_scc1 Lfin{u}")
        em.e(f"s_mov_b32 {sXI}, 1" if reuse() else f"s_add_u32 {sXI}, {sXI}, 1")
        em.e(f"s_mul_i32 {sST}, {sXI}, {X_SZ}"); em.e(f"s_mul_i32 {sT0}, {sTT1}, 20480"); em.e(f"s_add_u32 {sST}, {sST}, {sT0}"); em.e(f"s_add_u32 {sST}, {sST}, {XB}")
        em.e(f"s_lshr_b32 {sT0}, {sC8}, 1"); em.e(f"s_mul_i32 {sT0}, {sT0}, 5")
        em.e(f"s_lshl_b32 {sT1}, {sODD}, 1"); em.e(f"s_add_u32 {sT1}, {sT1}, {sT0}"); em.e(f"s_lshl_b32 {sT1}, {sT1}, 10"); em.e(f"s_add_u32 {sT1}, {sT1}, {sST}")
        em.e(f"buffer_store_dwordx4 v[{P}:{P+3}], {vL16}, {S_WS}, {sT1} offen{wt('xsw', 1)}", vm="xst")
        em.e(f"buffer_store_dwordx4 v[{P+4}:{P+7}], {vL16}, {S_WS}, {sT1} offen offset:1024{wt('xsw', 1)}", vm="xst")
        em.e(f"s_add_u32 {sT0}, {sT0}, 4"); em.e(f"s_lshl_b32 {sT0}, {sT0}, 10"); em.e(f"s_add_u32 {sT0}, {sT0}, {sST}")
        em.e(f"s_lshl_b32 {sT1}, {sODD}, 3"); em.e(f"s_add_u32 {sT0}, {sT0}, {sT1}")
        em.e(f"buffer_store_dwordx2 v[{P+8}:{P+9}], {vL16}, {S_WS}, {sT0} offen{wt('xsw', 2)}", vm="xst")
        a, b_, x, y = 224, 225, 226, 227
        em.e(f"v_add_f32 v{a}, v{RES}, v{RES+1}"); em.e(f"v_mul_f32 v{b_}, v{RES}, v{RES}"); em.e(f"v_fmac_f32 v{b_}, v{RES+1}, v{RES+1}")
        em.e(f"v_add_f32 v{x}, v{RES+2}, v{RES+3}"); em.e(f"v_mul_f32 v{y}, v{RES+2}, v{RES+2}"); em.e(f"v_fmac_f32 v{y}, v{RES+3}, v{RES+3}")
        for k in range(4, 20, 2):
            em.e(f"v_add_f32 v{a}, v{a}, v{RES+k}"); em.e(f"v_fmac_f32 v{b_}, v{RES+k}, v{RES+k}")
            em.e(f"v_add_f32 v{x}, v{x}, v{RES+k+1}"); em.e(f"v_fmac_f32 v{y}, v{RES+k+1}, v{RES+k+1}")
        em.e(f"v_add_f32 v{a}, v{a}, v{x}"); em.e(f"v_add_f32 v{b_}, v{b_}, v{y}")
        for sw in ("v_permlane32_swap_b32", "v_permlane16_swap_b32"):
            em.e(f"v_mov_b32 v{x}, v{a}"); em.e(f"v_mov_b32 v{y}, v{b_}")
            em.e(f"{sw} v{a}, v{x}"); em.e(f"{sw} v{b_}, v{y}")
            em.e(f"v_add_f32 v{a}, v{a}, v{x}"); em.e(f"v_add_f32 v{b_}, v{b_}, v{y}")
        em.e(f"s_mul_i32 {sST}, {sXI}, {ST_SZ}"); em.e(f"s_lshl_b32 {sT0}, {sTT1}, 10"); em.e(f"s_add_u32 {sST}, {sST}, {sT0}")
        em.e(f"s_lshl_b32 {sT0}, {sC8}, 7"); em.e(f"s_add_u32 {sST}, {sST}, {sT0}"); em.e(f"s_add_u32 {sST}, {sST}, {ST}")
        em.e(f"s_mov_b64 exec, {sMK[0]}")
        em.e(f"buffer_store_dwordx2 v[{a}:{a+1}], {vSTO}, {S_WS}, {sST} offen{wt('xsw', 4)}", vm="xst")
        em.e("s_mov_b64 exec, -1")
        if final_possible:
            em.e(f"s_branch Lfin{u}_x")
            em.label(f"Lfin{u}")
            em.e(f"s_mul_i32 {sST}, {sTT1}, {16*1280}"); em.e(f"s_mul_i32 {sT0}, {sC8}, 160"); em.e(f"s_add_u32 {sST}, {sST}, {sT0}")
            for t in range(5):
                em.e(f"buffer_store_dwordx2 v[{P+2*t}:{P+2*t+1}], {vOUT}, {S_OUT}, {sST} offen offset:{t*32}" + {0: "", 1: " sc1", 2: " sc0 sc1", 3: " nt", 4: " sc1 nt"}[opt.get("osc", 0)])
            em.raw("    s_waitcnt vmcnt(0)")
            stamp(); nstamp[0] -= 1
            dump_stamps()
            em.e("s_endpgm")
            em.label(f"Lfin{u}_x")

    def K3():
        AX = lambda b, s_: 8 * b + 4 * s_
        SB = TMP
        NM, C1, KK, VST = 220, 221, 222, 223
        set_sA_x()
        seg = Seg(cap=opt.get("k3cap", 6)); ws = WStream(ring, seg, "K3", SS=SS, LA=opt.get("la3", 5))
        fu = {}; lu = {}
        pend = []
        for f in range(280): ws.wreg(f)
        def acc(t): return ACC + 16 * t
        B1 = opt.get("k3b", 12)
        groups = [(b, p) for b in range(B1) for p in range(3)] + [(b, p) for p in range(3) for b in range(B1, 20)] + [(b, 3) for b in range(20)]
        afirst = {}
        seen_a = set()
        pend = [0, 0, 0, 0]
        for (b, p) in groups:
            ts = (2 * p, 2 * p + 1) if p < 3 else (6,)
            first = True
            for s_ in range(2):
                for t in ts:
                    f = pw3_index(b, t, s_, B1); wr = ws.wreg(f)
                    d = acc(t)
                    c = "0" if (b == 0 and s_ == 0) else f"v[{d}:{d+15}]"
                    wl = [("w", "K3", pw3_index(b, ts[-1], 1, B1))] if first else None
                    wv = [("a", b, 1)] if (b not in seen_a and first) else None
                    i = seg.mfma(f"v_mfma_f32_32x32x16_bf16 v[{d}:{d+15}], v[{wr}:{wr+3}], a[{AX(b,s_)}:{AX(b,s_)+3}], {c}", wvm=wv, wlg=wl)
                    if first: g0 = i
                    if b not in seen_a: seen_a.add(b); afirst[b] = i
                    first = False
                    fu.setdefault(f, g0); lu[f] = i
            pend[p] = seg.n()
        al = a_loads(2, 20, "K3", "a", AX, m32=True)
        ws.reads(list(range(280)), fu, lu)
        ws.vmem(a_jobs(al, lambda b: afirst[b] - opt.get("a3l", 12)), lambda r: opt.get("k3w", 0), margin=opt.get("m3", 70), qd=opt.get("q3", QD // 2), rate=opt.get("r3", 38) / 20.0, stop=opt.get("k3s", 10**6))
        so = [f"v_and_b32 v{VST}, 0xf0, {vL16}", f"v_lshrrev_b32 v{VST}, 1, v{VST}", f"v_and_b32 v{NM}, 0x200, {vL16}", f"v_add_u32 v{VST}, v{VST}, v{NM}",
              f"v_and_b32 v{NM}, 0x100, {vL16}", f"v_lshlrev_b32 v{NM}, 2, v{NM}", f"v_add_u32 v{VST}, v{VST}, v{NM}",
              f"s_mul_i32 {sST}, {sXI}, {ST_SZ}", f"s_lshl_b32 {sST2}, {sTT2}, 10", f"s_add_u32 {sST}, {sST}, {sST2}", f"s_add_u32 {sST}, {sST}, {ST}"]
        for q in range(4):
            so.append(Op(f"buffer_load_dwordx2 v[{SB+2*q}:{SB+2*q+1}], v{VST}, {S_WS}, {sST} offen offset:{q*128}{cur['LD']}", vm=("st", q)))
        g = seg.stream(so, 2)
        a, b_, x, y = SB, SB + 1, SB + 2, SB + 3
        so = [Op(f"v_add_f32 v{a}, v{a}, v{SB+2}", wvm=[("st", 3)]), f"v_add_f32 v{b_}, v{b_}, v{SB+3}",
              f"v_add_f32 v{SB+4}, v{SB+4}, v{SB+6}", f"v_add_f32 v{SB+5}, v{SB+5}, v{SB+7}",
              f"v_add_f32 v{a}, v{a}, v{SB+4}", f"v_add_f32 v{b_}, v{b_}, v{SB+5}",
              f"v_mov_b32 v{x}, v{a}", f"v_mov_b32 v{y}, v{b_}",
              f"v_permlane32_swap_b32 v{a}, v{x}", f"v_permlane32_swap_b32 v{b_}, v{y}",
              f"v_add_f32 v{a}, v{a}, v{x}", f"v_add_f32 v{b_}, v{b_}, v{y}",
              f"v_mul_f32 v{NM}, {hex(INV640 | 0x80000000)}, v{a}", f"v_mul_f32 v{KK}, {hex(INV640)}, v{b_}",
              f"v_fma_f32 v{KK}, -v{NM}, v{NM}, v{KK}", f"v_max_f32 v{KK}, 0, v{KK}", f"v_add_f32 v{KK}, {hex(EPS5)}, v{KK}",
              (Op(f"v_rsq_f32 v{C1}, v{KK}"), 2), f"v_mul_f32 v{C1}, {hex(LOG2E | 0x80000000)}, v{C1}"]
        g = seg.stream(so, max(g, 30))
        so = [f"s_mul_i32 {sST}, {LB()}, {ACT_SZ}", f"s_mul_i32 {sST2}, {sTT2}, {54*1024}", f"s_add_u32 {sST}, {sST}, {sST2}",
              f"s_add_u32 {sST}, {sST}, {ACT}", f"s_lshl_b32 {sST2}, {sM}, 10", f"s_add_u32 {sST2}, {sST2}, {sST}"]
        g = seg.stream(so, max(g, 50))
        CSR = 226
        ET = 242
        def epi(t):
            ops = []
            for mat in range(2):
                for hh in range(2):
                    r = CSR + 8 * mat + 4 * hh
                    ops.append(Op(f"ds_read_b128 v[{r}:{r+3}], {vH16} offset:{L_CS3 + (2*t+mat)*64 + 32*hh}", lg=("c3", t)))
            d = acc(t)
            first = True
            for e in range(8):
                ops.append(Op(f"v_fmac_f32 v{d+e}, v{NM}, v{CSR+e}", wlg=[("c3", t)] if first else None)); first = False
                ops.append(f"v_fmac_f32 v{d+8+e}, v{NM}, v{CSR+8+e}")
            for k in range(0, 8, 4):
                streams = []
                for e in range(k, k + 4):
                    g_ = d + e; u_ = d + 8 + e; e_ = ET + e
                    streams.append([f"v_mul_f32 v{e_}, v{g_}, v{C1}",
                                    (Op(f"v_exp_f32 v{e_}, v{e_}"), 2),
                                    f"v_mul_f32 v{g_}, v{g_}, v{u_}",
                                    f"v_fma_f32 v{e_}, v{e_}, v{KK}, v{KK}",
                                    (Op(f"v_rcp_f32 v{e_}, v{e_}"), 2),
                                    f"v_mul_f32 v{g_}, v{g_}, v{e_}"])
                ops += il(streams)
            PK = d + 8
            for q in range(4): ops.append(f"v_cvt_pk_bf16_f32 v{PK+q}, v{d+2*q}, v{d+2*q+1}")
            if t < 6:
                ops.append(Op(f"s_add_u32 {sT0}, {sST2}, {(t >> 1) * 16384 + (t & 1) * 512}"))
                sto = cur['STO'] or ({1: " sc1", 2: " sc0 sc1", 3: " nt"}[opt.get("asm", 1)] if (opt.get("asc", 0) >> (t >> 1)) & 1 else "")
                ops.append(Op(f"buffer_store_dwordx4 v[{PK}:{PK+3}], {vA3}, {S_WS}, {sT0} offen{sto}", vm="ast"))
            else:
                sto = cur['STO'] or (" sc1" if (opt.get("asc", 0) >> 3) & 1 else "")
                ops.append(Op(f"buffer_store_dwordx2 v[{PK}:{PK+1}], {vACT6}, {S_WS}, {sST} offen{sto}", vm="ast"))
                ops.append(Op(f"s_mov_b64 exec, {sMK32}"))
                ops.append(Op(f"buffer_store_dwordx2 v[{PK+2}:{PK+3}], {vA3}, {S_WS}, {sP2} offen{sto}", vm="ast"))
                ops.append(Op("s_mov_b64 exec, -1"))
            return ops
        if PTK & 8 and PTM != 3:
            for p in range(1, 4): pt_place(seg, pt_act(p), max(20, pend[p - 1] - opt.get("pt3", 25)))
        ge = 0
        for p in range(3):
            for t in (2 * p, 2 * p + 1):
                ge = seg.stream(epi(t), max(pend[p] + 3, ge))
        so = [f"s_mul_i32 {sP0}, {sM}, 3", f"s_add_u32 {sP0}, {sP0}, 2", f"s_lshr_b32 {sP1}, {sP0}, 3", f"s_add_u32 {sP1}, {sP1}, 48", f"s_lshl_b32 {sP1}, {sP1}, 10",
              f"s_add_u32 {sP2}, {sST}, {sP1}", f"s_and_b32 {sP1}, {sP0}, 3", f"s_lshl_b32 {sP1}, {sP1}, 8", f"s_add_u32 {sP2}, {sP2}, {sP1}",
              f"s_bfe_u32 {sP1}, {sP0}, 0x10002", f"s_lshl_b32 {sP1}, {sP1}, 3", f"s_add_u32 {sP2}, {sP2}, {sP1}"]
        seg.stream(so, 225)
        if not opt.get('ls2'):
            for g in range(1, 268, 20): lstamp(seg, g)
        sys.stderr.write(f"K3: epilogue stream ends at gap {ge}; cost hist {[sum(1 for c in seg.cost if c == k) for k in range(12)]}\n")
        seg.emit(em)
        stamp()
        lin(epi(6))

    def finish_if(p):
        if stop <= 8 and (stop - 1) % 4 + 1 == p:
            lay = (stop - 1) // 4
            em.e(f"s_cmp_lg_u32 {sLAYER}, {lay}"); em.e(f"s_cbranch_scc1 Lstop{p}{cur['sfx']}")
            em.raw("    s_waitcnt vmcnt(0) lgkmcnt(0)")
            dump_stamps()
            em.e("s_endpgm")
            em.label(f"Lstop{p}{cur['sfx']}")
    prologue_end()
    pls()
    if opt.get("pls"):
        for k in range(pln[0]):
            if k > 5: break
            em.e(f"v_readfirstlane_b32 s96, v{236+k}"); em.e("s_nop 3"); em.e(f"v_writelane_b32 v0, s96, {58+k}")
    if PEEL:
        cnt_save = WStream.cnt
        ring.filled = -1
        nstamp[0] = 0; lsn[0] = 0
        stamp()
        K1_p1(True)
        stamp()
        join_state[0] = (ring.issued, ring.filled, ring.allowed, [t for t in em.vm if isinstance(t, tuple) and t[0] == "dma"], WStream.cnt)
        K1_first(True)
        WStream.cnt = cnt_save
        em.vm = [("dma", r) for r in range(HEAD + 1) for _ in range(4)]
    em.vm = [t for t in em.vm if isinstance(t, tuple) and t[0] == "dma"] + [t for t in em.vm if isinstance(t, tuple) and t[0] == "a"]
    head_vm = list(em.vm)
    cnt0 = WStream.cnt
    if MONO and stamps and not opt.get("lst", 0):
        em.e("v_writelane_b32 v0, s96, 62"); em.e("v_writelane_b32 v0, s97, 63")
    if MONO:
        em.e(f"s_cmp_lg_u32 {sMODE}, 0"); em.e("s_cbranch_scc1 Lm_layerS")
    for sfx, sto in (("F", ""), ("S", " sc1")):
        cur["sfx"] = sfx; cur["STO"] = sto; cur["LD"] = sto if not opt.get("ldsc1", 1) else " sc1"
        nstamp[0] = 0; lsn[0] = 0
        WStream.cnt = cnt0
        em.label(f"Lm_layer{sfx}")
        em.vm = list(head_vm); em.lg = []
        ring.filled = -1; ring.issued = HEAD; ring.allowed = 8; ring.q = []
        em.e(f"s_cmp_eq_u32 {sLAYER}, 1"); em.e(f"s_cselect_b32 s14, 0, {WS_END}")
        stamp()
        K1(); stamp(); finish_if(1)
        pf3(opt.get("pfb", 0), True)
        transition(1, 1, 9, ["ost"], 16, opt.get("d11", 0), opt.get("d12", 0), defer0=opt.get("df1", 0)); stamp()
        K24("K2", 20, False); stamp(); finish_if(2)
        pf3(opt.get("pfc", 0), True)
        transition(2, 2, 16, ["xst"], 18, opt.get("d21", 40), opt.get("d22", 0), defer0=opt.get("df2", 0)); stamp()
        K3(); stamp(); finish_if(3)
        transition(4, 4, 34, ["ast"], 36, opt.get("d31", 40), opt.get("d32", 0), defer0=opt.get("df3", 0)); stamp()
        K24("K4", 54, True); stamp(); finish_if(4)
        transition(5, 5, 53, ["xst"], 53, opt.get("d41", 40), 100, upto2=54 + HEAD, defer0=opt.get("df4", 0))
        if AH: k1_hoist(cur["LD"])
        stamp()
        assert ring.issued == 54 + HEAD and not ring.q, (ring.issued, ring.q)
        em.e(f"s_add_u32 {sLAYER}, {sLAYER}, 1"); em.e(f"s_add_u32 {sSTEP}, {sSTEP}, 5")
        em.e(f"s_branch Lm_layer{sfx}")
    em.label("Lm_done")
    em.e("s_endpgm")
    return em.lines


def build(opt):
    if opt.get("mono", 0):
        ml = gen_main(opt)
        ml, n2 = fix_hazards(ml)
        ref = open("interleave_layers__linear_attn_block__swiglu_ffn__prompt.s.ref").read() if opt.get("hdr", False) else ""
        hdr = [l for l in ref.split("\n") if l.startswith(";") and "@launch" not in l and "Override launch" not in l and "grid=ceil" not in l]
        out = hdr + [f"; @launch grid=(256,1,1) block=(256,1,1) lds={MAIN_LDS}",
               '.amdgcn_target "amdgcn-amd-amdhsa--gfx950"', ".text",
               f".globl {KNAME}", ".p2align 8", f".type {KNAME},@function"] + ml + [kdesc(KNAME, 512, 256, 102)]
        sys.stderr.write(f"nops inserted: main {n2}; main lines {len(ml)}\n")
        return "\n".join(out)
    pl = gen_prep("prep_kernel", stamp=opt.get("stamps", 0), k3b=opt.get("k3b", 12), wsoff=opt.get("wsoff", 0) << 20, zf=opt.get("zf", 0), hp=opt.get("hp", 0) and opt.get("kvh", 1))
    if opt.get("pst"):
        sfx = {1: " sc1", 2: " nt", 3: " sc0 sc1", 4: " sc1 nt"}[opt["pst"]]
        pl = [l + sfx if "buffer_store" in l else l for l in pl]
    pl, n1 = fix_hazards(pl)
    ml = gen_main(opt)
    ml, n2 = fix_hazards(ml)
    ref = open("interleave_layers__linear_attn_block__swiglu_ffn__prompt.s.ref").read() if opt.get("hdr", False) else ""
    hdr = [l for l in ref.split("\n") if l.startswith(";") and "@launch" not in l and "Override launch" not in l and "grid=ceil" not in l]
    out = hdr + [f"; @launch kernel=prep_kernel grid=({PREP_WGS},1,1) block=(256,1,1) lds={PREP_LDS}",
           f"; @launch kernel={KNAME} grid=(256,1,1) block=(256,1,1) lds={MAIN_LDS}",
           '.amdgcn_target "amdgcn-amd-amdhsa--gfx950"', ".text",
           ".globl prep_kernel", ".p2align 8", ".type prep_kernel,@function"] + pl + \
          [f".globl {KNAME}", ".p2align 8", f".type {KNAME},@function"] + ml + \
          [kdesc("prep_kernel", 112, 112), kdesc(KNAME, 512, 256, 102)]
    sys.stderr.write(f"nops inserted: prep {n1} main {n2}; main lines {len(ml)}\n")
    return "\n".join(out)


if __name__ == "__main__":
    opt = dict(asc=7, ptk=3, k2s=70, df2=1, d22=4, df3=1, d32=4, d31=0, d21=0, d41=0, hp=1, df4=1, k4w=150, peel=1, pa=2, pss=1, p1j=10, pcs=110, pst0=60)
    for a in sys.argv[1:]:
        k, v = a.split("="); opt[k] = int(v)
    print(build(opt))
```

```python
import sys
from asmlib import *
from layout import *
from gen_prep import gen_prep, kdesc, PREP_WGS, PREP_LDS

KNAME = "interleave_layers__linear_attn_block__swiglu_ffn__prompt_kernel"
NR = 9
MISC = 147456
MB = 131072
L_CS1 = MISC - MB; L_CS3 = MISC + 512 - MB; L_STAT = MISC + 1536 - MB; L_RED = MISC + 4096 - MB; L_KVB = MISC + 8192 - MB
MAIN_LDS = 163840
PH = {"K1": (0, 160), "K2": (10, 100), "K3": (17, 280), "K4": (35, 270)}
TOT_ROUNDS = 54
LOG2E = 0x3fb8aa3b
EPS6 = 0x358637bd
EPS5 = 0x3727c5ac
INV640 = 0x3acccccd

S_WS = "s[4:7]"; S_OUT = "s[8:11]"; S_WSN = "s[12:15]"
sW, sG, sM, sHALF, sC8, sLAYER = "s16", "s17", "s18", "s19", "s20", "s21"
sW4K, sW1K, sW2K = "s22", "s23", "s24"
sPW1, sPWO, sPW3, sPWD, sPWOp, sPW3p = "s25", "s26", "s27", "s28", "s29", "s30"
sDMA = "s31"; sA = "s32"; sT0, sT1, sT2, sT3 = "s33", "s34", "s35", "s36"
sFOWN, sFLINE, sKOWN, sKLINE = "s37", "s38", "s39", "s40"
sSTEP = "s41"; sTT2 = "s42"; sTT1 = "s43"
sFEX = "s[44:45]"
sMODE = "s46"; sSPIN = "s47"
sMK = ["s[48:49]", "s[50:51]", "s[52:53]", "s[54:55]", "s[56:57]", "s[58:59]"]
sXI = "s60"
sE6 = "s61"
sST = "s62"
sST2 = "s63"
sODD = "s64"
sXOFF, sXREM, sSTOFF, sAOFF, sOOFF = "s65", "s91", "s98", "s99", "s3"
sBIT2 = "s[66:67]"
sI8 = "s[68:69]"
sG23 = "s[70:71]"; sG3 = "s[72:73]"; sMK32 = "s[74:75]"
sTS = 76
sP0, sP1, sP2 = "s88", "s89", "s90"
PTD = "a255"
sR13, sR4, sRB, sRQ, sRT, sRT2 = "s84", "s85", "s86", "s87", "s100", "s101"
R13 = [4, 8, 12, 16]; R4V = [2, 14, 30, 42]
REGIONS = {"K1": [(0, 5, 20), (100, 3, 20)], "K2": [(0, 5, 20)], "K3": [(0, 4, 20), (80, 4, 20), (160, 4, 20), (240, 2, 20)], "K4": [(0, 5, 54)]}
ROTREG = {"K1": (sR13, R13), "K2": (sR13, R13), "K3": (sR13, R13), "K4": (sR4, R4V)}

vL16, vR1, vR2, vL16B = "v1", "v2", "v3", "v4"
vI4, vI4W, vG16, vG16W, vX3, vA3, vL8, vSTO, vACT6, vOREM, vOUT = [f"v{i}" for i in range(5, 16)]
vH16 = "v250"
RES = 16
WW = 36; NW = 16
ACC = 100
TMP = 212
CSVB = 140; RLB = 180


DBG = {}
class Seg:
    def __init__(s, cap=2):
        s.mf = []; s.gaps = [[]]; s.cost = [0]; s.cap = cap
    def n(s): return len(s.mf)
    def mfma(s, text, wvm=None, wlg=None):
        s.mf.append(Op(text, wvm=wvm, wlg=wlg)); s.gaps.append([]); s.cost.append(0)
        if wvm or wlg: s.cost[len(s.mf) - 1] += 1
        return len(s.mf) - 1
    def put(s, gap, op, cost=1):
        if isinstance(op, str): op = Op(op)
        gap = min(gap, len(s.gaps) - 1)
        s.gaps[gap].append(op); s.cost[gap] += cost
        return gap
    def place(s, op, earliest, cost=1, cap=None, latest=None):
        if cap is None: cap = s.cap
        g = max(0, min(earliest, len(s.gaps) - 1))
        last = len(s.gaps) - 1
        while g < last and s.cost[g] + cost > cap:
            if latest is not None and g >= latest: break
            g += 1
        return s.put(g, op, cost)
    def group(s, ops, earliest, maxcost=0):
        g = max(0, min(earliest, len(s.gaps) - 1))
        while g < len(s.gaps) - 1 and s.cost[g] > maxcost: g += 1
        for o in ops: s.put(g, o, 1)
        return g
    def stream(s, ops, earliest, cap=None, spacing=0):
        g = earliest
        for o in ops:
            c = 1
            if isinstance(o, tuple): o, c = o
            g = s.place(o, g, cost=c, cap=cap)
            g += spacing
        return g
    def emit(s, em):
        def keep(o):
            t = o.text
            if DBG.get("skipa") and t.startswith("buffer_load_dwordx4 a["): return False
            if DBG.get("skipw") and t.endswith(" lds"): return False
            if DBG.get("nobar") and t == "s_barrier":
                o.text = "s_nop 0"; return True
            if DBG.get("skipv") and t.startswith("v_") and not t.startswith(("v_mfma", "v_writelane")): return False
            if DBG.get("skipr") and t.startswith("ds_read"): return False
            return True
        for i in range(len(s.gaps)):
            for o in s.gaps[i]:
                if keep(o): em.op(o)
            if i < len(s.mf): em.op(s.mf[i])


STG0 = 160
vSTG0, vSTG1, vSTG2 = "v200", "v201", "v202"
def staged(r):
    n = DBG.get("stg", 0)
    return n and DBG.get("stg0", 26) <= r < DBG.get("stg0", 26) + n
class Ring:
    def __init__(s):
        s.issued = -1
        s.filled = -1
        s.allowed = -1
        s.q = []
    @staticmethod
    def info(r):
        rr = r % TOT_ROUNDS
        nxt = r >= TOT_ROUNDS
        for ph, (r0, nf) in PH.items():
            nrounds = (nf + 15) // 16
            if r0 <= rr < r0 + nrounds:
                k = rr - r0
                return ph, k, min(16, nf - 16 * k), nxt
        return None, 0, 0, nxt
    def jobs(s, r):
        ph, k, n, nxt = s.info(r)
        if ph is None: return []
        srd = S_WSN if nxt else S_WS
        pos = (r % NR) * 16384
        tag = ("dma", r)
        if staged(r):
            a0 = STG0 + 16 * (r - DBG.get("stg0", 26))
            va, off = (vSTG0, pos) if pos < 65536 else ((vSTG1, pos - 65536) if pos < 131072 else (vSTG2, pos - 131072))
            return [[Op(f"ds_write_b128 {va}, a[{a0+4*j}:{a0+4*j+3}] offset:{off + j*1024}", lg=("dmal", r), wvm=[("stg", r)])] for j in range(4)]
        if n > 8: c, m0s, base = 4, sW4K, {"K1": sPW1, "K2": sPWO, "K3": sPW3, "K4": sPWD}[ph]
        elif n > 4: c, m0s, base = 2, sW2K, sPW3p; assert ph == "K3" and n == 8
        else: c, m0s, base = 1, sW1K, sPWOp; assert ph == "K2" and n == 4
        nt = " nt" if (DBG.get("wnt", 0) >> {"K1": 0, "K2": 1, "K3": 2, "K4": 3}[ph]) & 1 else ""
        base4 = {"K1": sPW1, "K2": sPWO, "K3": sPW3, "K4": sPWD}[ph]
        pre = [Op(f"s_add_u32 m0, {m0s}, {pos}")]
        if not DBG.get("rot", 0):
            pre.append(Op(f"s_add_u32 {sDMA}, {base}, {(k % DBG.get('wmod', 1000))*16384}"))
        else:
            sR, rset = ROTREG[ph]
            regs = REGIONS[ph]
            def region(p):
                for i, (P0, cc, nb) in enumerate(regs):
                    if P0 <= p < P0 + cc * nb: return i
                return len(regs) - 1
            def setup(i):
                P0, cc, nb = regs[i]
                return [Op(f"s_mul_i32 {sRT}, {sR}, {cc}"), Op(f"s_lshl_b32 {sRQ}, {sW}, 2"), Op(f"s_add_u32 {sRQ}, {sRQ}, {sRT}"),
                        Op(f"s_lshl_b32 {sRT}, {sRT}, 10"), Op(f"s_add_u32 {sRB}, {base4}, {sRT}")]
            def addr(i, waves, dst):
                P0, cc, nb = regs[i]
                st = set()
                for w in waves:
                    for R in rset: st.add(16 * k + c * w + cc * R >= P0 + cc * nb)
                size = cc * nb * 1024
                if st == {False}: return [Op(f"s_add_u32 {dst}, {sRB}, {16384*k}")], False
                if st == {True}: return [Op(f"s_add_u32 {dst}, {sRB}, {(16384*k - size) & 0xffffffff}")], True
                assert c == 4
                T = P0 + cc * nb - 16 * k
                return [Op(f"s_add_u32 {dst}, {sRB}, {16384*k}"), Op(f"s_cmp_ge_u32 {sRQ}, {T}"), Op(f"s_cselect_b32 {sRT}, {size}, 0"),
                        Op(f"s_sub_u32 {dst}, {dst}, {sRT}")], None
            rw = [region(16 * k + c * w) for w in range(4)]
            prev_reg = region(16 * k - 4) if k > 0 else None
            if len(set(rw)) == 1:
                i = rw[0]
                if prev_reg != i: pre += setup(i)
                o, _ = addr(i, range(4), sDMA)
                pre += o
                if c != 4:
                    pre += [Op(f"s_sub_u32 {sDMA}, {sDMA}, {base4}"), Op(f"s_add_u32 {sDMA}, {sDMA}, {base}")]
            else:
                assert c == 4 and rw[0] == prev_reg and set(rw[1:]) == {rw[0] + 1}, (ph, k, rw)
                o, _ = addr(rw[0], [0], sRT2); pre += o
                pre += setup(rw[1])
                o, _ = addr(rw[1], [1, 2, 3], sDMA); pre += o
                pre += [Op(f"s_cmp_eq_u32 {sW}, 0"), Op(f"s_cselect_b32 {sDMA}, {sRT2}, {sDMA}")]
        out = []
        for j in range(c):
            ops = list(pre) if j == 0 else []
            ops.append(Op(f"buffer_load_dwordx4 {vL16}, {srd}, {sDMA} offen offset:{j*1024}{nt} lds", vm=tag))
            out.append(ops)
        return out
    def skip_virtual(s):
        while not s.q and s.issued < s.allowed and not s.jobs(s.issued + 1): s.issued += 1
    def next_round(s):
        r = s.issued + 1
        while not s.q and not s.jobs(r): r += 1
        return r
    def take(s):
        if not s.q:
            s.skip_virtual()
            if s.issued + 1 > s.allowed: return None
            s.q = s.jobs(s.issued + 1)
        j = s.q.pop(0)
        if not s.q:
            s.issued += 1
            s.skip_virtual()
        return j
    def emit(s, em, n=10**9, upto=None):
        k = 0
        while k < n:
            if upto is not None and s.next_round() > upto: break
            j = s.take()
            if j is None: break
            for o in j: em.op(o)
            k += 1
        return k


def wslot_addr(ph, f):
    r0, nf = PH[ph]
    r = r0 + f // 16
    a = (r % NR) * 16384 + (f % 16) * 1024
    if a < 65536: return vL16, a
    if a < 131072: return vR1, a - 65536
    return vR2, a - 131072


class WStream:
    cnt = 0
    def __init__(s, ring, seg, ph, SS=2, LA=10):
        s.ring = ring; s.seg = seg; s.ph = ph; s.SS = SS; s.LA = LA
        s.reg = {}; s.events = []
    def wreg(s, f):
        if f not in s.reg:
            s.reg[f] = WW + 4 * (WStream.cnt % NW); WStream.cnt += 1
        return s.reg[f]
    def reads(s, frags, first_use, last_use, force=(), nobar=(), wait_at=None, ming=0):
        seg = s.seg; ring = s.ring; r0, nf = PH[s.ph]
        prev = ming
        lastuse_slot = dict(getattr(s, 'lus', {}))
        filled = ring.filled
        lastbar = None
        rlast = r0 + frags[-1] // 16
        for f in frags:
            reg = s.reg[f]
            e = max(prev, first_use[f] - s.LA, lastuse_slot.get(reg, -1) + 1)
            lat = first_use[f] if wait_at is None else wait_at[f]
            e = max(0, min(e, lat))
            r = r0 + f // 16
            va, off = wslot_addr(s.ph, f)
            rd = Op(f"ds_read_b128 v[{reg}:{reg+3}], {va} offset:{off}", lg=("w", s.ph, f))
            need = r > filled
            want = (f % 16 == 0) and (r in force or (lastbar is not None and r - lastbar >= s.SS) or (lastbar is None and r - (r0 + frags[0] // 16) >= s.SS)) and r not in nobar
            if need or want:
                tgt = max(filled, min(r + s.SS - 1, rlast))
                g = e
                last = lat
                while g < last and seg.cost[g] + 1 > seg.cap: g += 1
                wt = [("dma", x) for x in range(filled + 1, tgt + 1) if not staged(x)]
                wl_ = [("dmal", x) for x in range(filled + 1, tgt + 1) if staged(x)]
                seg.put(g, Op("s_barrier", wvm=wt, wlg=wl_), 2)
                seg.put(g, rd, 1)
                filled = tgt
                prev = g
                lastbar = r
                s.events.append((g, r - 2 + NR, tgt))
            else:
                prev = seg.place(rd, e, latest=lat)
            lastuse_slot[reg] = last_use[f]
        s.lastbar = lastbar
        s.lus = lastuse_slot
        ring.filled = filled
    def vmem(s, ajobs, policy, rate=4.5, qd=36, backlog=0, margin=48, cap=None, burst0=True, stop=10**6):
        seg = s.seg; ring = s.ring
        if cap is None: cap = seg.cap
        n = len(seg.gaps)
        path = backlog
        ai = 0
        ev = list(s.events)
        def dma_deadline(r):
            for (g, al, tgt) in ev:
                if tgt >= r: return g
            return None
        evi = 0
        for (g, al, tgt) in ev:
            if g == 0: assert ring.issued >= tgt, ("rounds not issued before seg start", s.ph, tgt, ring.issued)
        for g in range(n):
            placed = 0
            while True:
                cands = []
                if ai < len(ajobs) and (len(ajobs[ai]) < 3 or g >= ajobs[ai][2]): cands.append((ajobs[ai][1], 0))
                r = ring.next_round()
                hard = dma_deadline(r)
                pe = policy(r)
                ok = (ring.q or r <= ring.allowed)
                if ok and (hard is not None or pe is not None):
                    dl = (hard - margin) if hard is not None else 10**6
                    start = pe if pe is not None else 0
                    if (g >= start and (hard is not None or g < stop)) or (hard is not None and g >= hard - 1): cands.append((dl, 1))
                    harddl = hard
                if not cands: break
                cands.sort()
                def isforced(c):
                    return (c[1] == 1 and hard is not None and g >= hard - 1) or (c[1] == 0 and g >= c[0])
                fc = [c for c in cands if isforced(c)]
                forced = bool(fc)
                dl, which = fc[0] if fc else cands[0]
                if not forced:
                    if path - g > qd: break
                    if (g > 0 or not burst0) and (seg.cost[g] + 1 > cap or placed >= 1): break
                if which == 0:
                    ops = ajobs[ai][0]; ai += 1
                else:
                    ops = ring.take(); assert ops is not None
                for o in ops: seg.put(g, o, 1)
                path = max(path, g) + rate
                placed += 1
            while evi < len(ev) and ev[evi][0] <= g:
                (eg, al, tgt) = ev[evi]; evi += 1
                assert ring.issued >= tgt, ("rounds not issued before barrier", s.ph, g, tgt, ring.issued)
                ring.allowed = max(ring.allowed, al)
        assert ai == len(ajobs)
        return path - n


def gen_main(opt):
    stop = opt.get("stop", 99)
    DBG.clear(); DBG.update(opt)
    stamps = opt.get("stamps", False)
    SS = opt.get("SS", 2)
    MARG = opt.get("marg", 72); QD = opt.get("qd", 36); RATE = opt.get("rate10", 45) / 10.0
    cur = {"sfx": "F", "STO": "", "LD": ""}
    em = Em()
    ring = Ring()
    WStream.cnt = 0
    nstamp = [0]
    def stamp():
        if not stamps: return
        k = nstamp[0]; nstamp[0] += 1
        em.raw(f"    s_waitcnt lgkmcnt(0)")
        em.e(f"s_memtime s[{sTS}:{sTS+1}]" if not opt.get("rt") else f"s_memrealtime s[{sTS}:{sTS+1}]")
        em.e(f"s_lshl_b32 s{sTS+2}, {sLAYER}, 4")
        em.e(f"s_add_u32 s{sTS+2}, s{sTS+2}, {k}")
        em.raw("    s_waitcnt lgkmcnt(0)")
        em.lg = []
        em.e(f"s_mov_b32 s{sTS+1}, m0")
        em.e(f"s_mov_b32 m0, s{sTS+2}"); em.e("s_nop 3")
        em.e(f"v_writelane_b32 v0, s{sTS}, m0")
        em.e(f"s_mov_b32 m0, s{sTS+1}")
    lsn = [0]
    def lstamp(seg, gap):
        if not opt.get("lst", 0): return
        lane = 32 + lsn[0]; lsn[0] += 1
        assert lane < 64
        rg = 96 if lane % 2 else 76
        seg.put(gap, f"s_memtime s[{rg}:{rg+1}]", 0)
        seg.put(gap + 12, f"v_writelane_b32 v0, s{rg}, {lane}", 0)
    def dump_stamps():
        if not stamps: return
        em.e("s_memrealtime s[96:97]")
        em.raw("    s_waitcnt lgkmcnt(0)")
        em.e("v_writelane_b32 v0, s92, 15"); em.e("v_writelane_b32 v0, s94, 30"); em.e("v_writelane_b32 v0, s96, 31")
        em.e(f"s_mov_b64 exec, s[{sTS+4}:{sTS+5}]")
        em.e(f"v_lshrrev_b32 v251, 2, {vL16}")
        em.e(f"v_add_u32 v251, s{sTS+3}, v251")
        em.e(f"global_store_dword v251, v0, s[{sTS+6}:{sTS+7}]")
        em.e("s_mov_b64 exec, -1")
        em.raw("    s_waitcnt vmcnt(0)")

    em.label(KNAME)
    em.e("s_cmp_ge_u32 s2, 256")
    em.e("s_cbranch_scc1 Lm_done")
    if stamps:
        em.e("s_memtime s[92:93]"); em.e("s_memrealtime s[94:95]")
    MONO = opt.get("mono", 0)
    if opt.get("sst"):
        em.e("s_memrealtime s[98:99]"); em.raw("    s_waitcnt lgkmcnt(0)"); em.e("s_mov_b32 s101, s98")
    if MONO:
        em.e("s_load_dwordx2 s[82:83], s[0:1], 64")
        MST = opt.get("mst", 0)
        for l in gen_prep("", mono=True, k3b=opt.get("k3b", 12), sfx={0: " sc1", 1: " sc0 sc1", 2: " sc1 nt", 3: "", 4: "", 5: " nt"}[MST], sx=opt.get("sx", 0), skipj=opt.get("skipj", 0)): em.raw(l)
        if opt.get("sx"):
            if opt["sx"] == 1: em.e("s_memrealtime s[78:79]")
            em.raw("    s_waitcnt vmcnt(0) lgkmcnt(0)")
            em.e("s_memrealtime s[76:77]"); em.raw("    s_waitcnt lgkmcnt(0)")
            if opt["sx"] == 1:
                em.e("v_mov_b32 v236, s101"); em.e("v_mov_b32 v237, s96"); em.e("v_mov_b32 v238, s78"); em.e("v_mov_b32 v239, s76")
            else:
                em.e("v_mov_b32 v236, s101"); em.e("v_mov_b32 v237, s80"); em.e("v_mov_b32 v238, s78"); em.e("v_mov_b32 v239, s96")
            em.e("s_lshl_b32 s33, s2, 4"); em.e("s_add_u32 s33, s33, 0x3000000"); em.e("v_mov_b32 v240, s33")
            em.e("s_cmp_lg_u32 s18, 0"); em.e("s_cbranch_scc1 Lm_done")
            em.e("s_mov_b64 exec, 1"); em.e("global_store_dwordx4 v240, v[236:239], s[16:17]"); em.e("s_endpgm")
        em.e(f"s_getreg_b32 {sMODE}, hwreg(HW_REG_XCC_ID)")
        em.e(f"s_lshr_b32 s33, {sMODE}, 12"); em.e("s_and_b32 s33, s33, 0x70"); em.e(f"s_and_b32 {sMODE}, {sMODE}, 15")
        em.e(f"s_or_b32 {sMODE}, {sMODE}, s33"); em.e(f"s_or_b32 {sMODE}, {sMODE}, 0x80")
        em.e(f"v_mov_b32 v254, {sMODE}"); em.e("v_mov_b32 v255, s2")
        em.raw("    s_waitcnt vmcnt(0) lgkmcnt(0)")
        em.e("s_barrier")
        em.e("s_cmp_lg_u32 s18, 0"); em.e("s_cbranch_scc1 Lm_nofl")
        if MST in (3, 5):
            em.e("buffer_wbl2 sc1"); em.raw("    s_waitcnt vmcnt(0)")
        em.e("s_mov_b64 exec, 1")
        em.e("global_store_byte v255, v254, s[82:83] sc1")
        em.e("s_mov_b64 exec, -1")
        em.label("Lm_nofl")
        if opt.get("sst"):
            em.e("s_memrealtime s[98:99]"); em.raw("    s_waitcnt lgkmcnt(0)"); em.e("s_mov_b32 s100, s98")
        if stamps:
            em.e("s_memtime s[96:97]"); em.raw("    s_waitcnt lgkmcnt(0)"); em.e("s_sub_u32 s96, s96, s92")
    pln = [0]
    def pls():
        if opt.get("pls") != 1: return
        em.e("s_memtime s[96:97]"); em.raw("    s_waitcnt lgkmcnt(0)"); em.e(f"v_mov_b32 v{236 + pln[0]}, s96"); pln[0] += 1
    em.e("s_load_dwordx2 s[8:9], s[0:1], 56"); em.e("s_load_dwordx2 s[10:11], s[0:1], 64")
    em.e("s_load_dwordx2 s[4:5], s[0:1], 72")
    em.e("v_lshrrev_b32 v2, 6, v0")
    em.e("v_and_b32 v0, 63, v0")
    em.e(f"v_readfirstlane_b32 {sW}, v2")
    em.e(f"v_lshlrev_b32 {vL16}, 4, v0")
    em.e("s_and_b32 s33, s2, 7"); em.e("s_lshr_b32 s34, s2, 3")
    em.e("s_and_b32 s35, s34, 1"); em.e(f"s_lshr_b32 {sM}, s34, 1")
    em.e("s_lshl_b32 s33, s33, 1"); em.e(f"s_add_u32 {sG}, s33, s35")
    em.e(f"s_and_b32 {sHALF}, {sM}, 1"); em.e(f"s_lshr_b32 {sC8}, {sM}, 1")
    em.e(f"s_lshl_b32 {sW4K}, {sW}, 12"); em.e(f"s_lshl_b32 {sW1K}, {sW}, 10"); em.e(f"s_lshl_b32 {sW2K}, {sW}, 11")
    def base(dst, reg0, sz, idx, wk, extra=0):
        em.e(f"s_mul_i32 {dst}, {idx}, {sz}"); em.e(f"s_add_u32 {dst}, {dst}, {reg0 + extra}"); em.e(f"s_add_u32 {dst}, {dst}, {wk}")
    base(sPW1, PW1, PW1_SZ, sM, sW4K); base(sPWO, PWO, PWO_SZ, sC8, sW4K)
    base(sPW3, PW3, PW3_SZ, sM, sW4K); base(sPWD, PWD, PWD_SZ, sC8, sW4K)
    base(sPWOp, PWO, PWO_SZ, sC8, sW1K); base(sPW3p, PW3, PW3_SZ, sM, sW2K)
    if opt.get("same", 0) & 1: base(sPW1, PW1, 0, sM, sW4K)
    if opt.get("same", 0) & 4: base(sPW3, PW3, 0, sM, sW4K); base(sPW3p, PW3, 0, sM, sW2K)
    if opt.get("same", 0) & 8: base(sPWD, PWD, 0, sC8, sW4K)
    em.e("s_waitcnt lgkmcnt(0)")
    pls()
    if stamps and not opt.get("rt") and not MONO:
        em.e(f"s_mov_b32 s{sTS+6}, s10"); em.e(f"s_mov_b32 s{sTS+7}, s11")
    if stamps and opt.get("rt"):
        em.e(f"s_add_u32 s{sTS+6}, s4, 0x3000000"); em.e(f"s_addc_u32 s{sTS+7}, s5, 0")
    if opt.get("wsoff", 0): em.e(f"s_add_u32 s4, s4, {opt['wsoff'] << 20}"); em.e("s_addc_u32 s5, s5, 0")
    em.e(f"s_mov_b32 s6, {WS_END}"); em.e("s_mov_b32 s7, 0x20000")
    em.e(f"s_mov_b32 s10, {0 if (opt.get('opt', 0) and opt.get('peel', 0)) else 2048*640*2}"); em.e("s_mov_b32 s11, 0x20000")
    em.e("s_mov_b32 s12, s4"); em.e("s_mov_b32 s13, s5"); em.e(f"s_mov_b32 s14, {WS_END}"); em.e("s_mov_b32 s15, 0x20000")
    em.e(f"s_and_b32 s33, {sG}, 1"); em.e(f"s_lshl_b32 s33, s33, 1"); em.e(f"s_add_u32 s33, s33, {sHALF}")
    if opt.get("rot", 0) == 2: em.e("s_mov_b32 s33, 0")
    em.e(f"s_lshl_b32 {sR13}, s33, 2"); em.e(f"s_add_u32 {sR13}, {sR13}, 4")
    em.e(f"s_mul_i32 {sR4}, s33, 12"); em.e(f"s_add_u32 {sR4}, {sR4}, 2"); em.e(f"s_cmp_ge_u32 s33, 2"); em.e(f"s_cselect_b32 s33, 4, 0"); em.e(f"s_add_u32 {sR4}, {sR4}, s33")
    HEAD = opt.get("head", 4)
    ring.allowed = 8
    if opt.get("probe"):
        pr = {1: [(sPW1, 0), (sPW1, 65536), (sOOFF, XB + 4096), (sPW1, 65536 + 64)],
              2: [(sOOFF, XB + 4096), (sOOFF, XB + 8192), (sPW3, 0), (sPWD, 0)],
              3: [(sOOFF, FLG_XCC), (sOOFF, ST), (sPW1, 0), (sPW1, 65536)]}[opt["probe"]]
        em.e(f"s_mul_i32 {sOOFF}, s2, 0")
        if opt["probe"] != 3: em.e(f"s_mul_i32 {sOOFF}, {sG}, {8*20480}")
        for (sr, off) in pr:
            em.e(f"s_add_u32 s33, {sr}, {off}")
            em.e(f"buffer_load_dword v241, off, {S_WS}, s33")
            em.raw("    s_waitcnt vmcnt(0)")
            pls()
        opt["pls"] = 2
    PEEL = opt.get("peel", 0) if not MONO else 0
    P1J = opt.get("p1j", 10)
    PA = opt.get("pa", 3)
    PBLK = [3, 6, 9, 12, 16, 19, 20]
    if PEEL:
        em.e(f"s_lshl_b32 s33, {sG}, 3"); em.e(f"s_lshl_b32 s34, {sW}, 1"); em.e(f"s_add_u32 {sTT2}, s33, s34")
        em.e(f"v_add_u32 {vL16B}, 20480, {vL16}")
        em.e(f"s_mul_i32 {sA}, {sTT2}, 20480"); em.e(f"s_add_u32 {sA}, {sA}, {XB}")
        b0 = 0
        for r in range(PA):
            if opt.get("pao", 0) == 0: ring.emit(em, upto=r)
            for b in range(b0, PBLK[r]):
                if b % 4 == 0 and b > 0: em.e(f"s_add_u32 {sA}, {sA}, 4096")
                for t in range(2):
                    rg = 80 * t + 4 * b
                    em.e(f"buffer_load_dwordx4 a[{rg}:{rg+3}], {vL16 if t == 0 else vL16B}, {S_WS}, {sA} offen offset:{(b % 4) * 1024}", vm=("a", b, t))
            b0 = PBLK[r]
            if opt.get("pao", 0) == 1: ring.emit(em, upto=r)
        ring.emit(em, upto=opt.get("pb", PA - 1))
    elif not MONO: ring.emit(em, upto=2)
    pls()
    AH = opt.get("ah", 0) if not MONO and not PEEL else 0
    def k1_hoist(ld):
        em.e(f"s_mul_i32 {sA}, {sXI}, {X_SZ}"); em.e(f"s_mul_i32 {sT0}, {sTT2}, 20480")
        em.e(f"s_add_u32 {sA}, {sA}, {sT0}"); em.e(f"s_add_u32 {sA}, {sA}, {XB}")
        for b in range(AH):
            if b % 4 == 0 and b > 0: em.e(f"s_add_u32 {sA}, {sA}, 4096")
            for t in range(2):
                r = 80 * t + 4 * b
                em.e(f"buffer_load_dwordx4 a[{r}:{r+3}], {vL16 if t == 0 else vL16B}, {S_WS}, {sA} offen offset:{(b % 4) * 1024}{ld}", vm=("a", b, t))
    if AH:
        assert not opt.get("rot", 0)
        if opt.get("aho", 0) == 0: ring.emit(em, upto=HEAD)
        em.e(f"s_lshl_b32 s33, {sG}, 3"); em.e(f"s_lshl_b32 s34, {sW}, 1"); em.e(f"s_add_u32 {sTT2}, s33, s34")
        em.e(f"s_mov_b32 {sXI}, 0"); em.e(f"v_add_u32 {vL16B}, 20480, {vL16}")
        k1_hoist("")
    em.e(f"s_lshl_b32 s33, {sG}, 7")
    em.e(f"s_add_u32 {sFLINE}, s33, {FLG_G}"); em.e(f"s_lshl_b32 s34, {sM}, 2"); em.e(f"s_add_u32 {sFOWN}, {sFLINE}, s34")
    em.e(f"s_lshl_b32 s33, {sM}, 7"); em.e(f"s_add_u32 {sKLINE}, s33, {FLG_KV}"); em.e(f"s_lshl_b32 s34, {sG}, 2"); em.e(f"s_add_u32 {sKOWN}, {sKLINE}, s34")
    em.e(f"s_lshl_b32 s33, {sG}, 3")
    em.e(f"s_lshl_b32 s34, {sW}, 1"); em.e(f"s_add_u32 {sTT2}, s33, s34")
    em.e(f"s_lshl_b32 s34, {sHALF}, 2"); em.e(f"s_add_u32 s34, s34, {sW}"); em.e(f"s_add_u32 {sTT1}, s33, s34")
    em.e(f"s_cmp_eq_u32 {sW}, 0"); em.e("s_cselect_b32 s44, 1, 0"); em.e("s_mov_b32 s45, 0")
    em.e(f"s_mov_b32 {sLAYER}, 0"); em.e(f"s_mov_b32 {sSTEP}, 0"); em.e(f"s_mov_b32 {sXI}, 0")
    em.e(f"s_mov_b32 {sE6}, {EPS6}")
    em.e(f"s_and_b32 {sODD}, {sC8}, 1")
    em.e(f"s_lshr_b32 s33, {sC8}, 1"); em.e("s_mul_i32 s33, s33, 5")
    em.e(f"s_lshl_b32 s34, {sODD}, 1"); em.e("s_add_u32 s34, s34, s33"); em.e("s_lshl_b32 s34, s34, 10")
    em.e(f"s_add_u32 s33, s33, 4"); em.e("s_lshl_b32 s33, s33, 10"); em.e(f"s_sub_u32 {sXREM}, s33, s34")
    em.e(f"s_mul_i32 s35, {sTT1}, 20480"); em.e(f"s_add_u32 s34, s34, s35"); em.e(f"s_add_u32 {sXOFF}, s34, {XB}")
    em.e(f"s_lshl_b32 s33, {sTT1}, 10"); em.e(f"s_lshl_b32 s34, {sC8}, 7"); em.e("s_add_u32 s33, s33, s34"); em.e(f"s_add_u32 {sSTOFF}, s33, {ST}")
    em.e(f"s_mul_i32 s33, {sTT2}, {54*1024}"); em.e(f"s_add_u32 {sAOFF}, s33, {ACT}")
    em.e(f"s_mul_i32 s33, {sTT2}, 20480"); em.e(f"s_add_u32 {sOOFF}, s33, {OB}")
    def m64(reg, val):
        a = int(reg[2:].split(":")[0])
        em.e(f"s_mov_b32 s{a}, {hex(val & 0xffffffff)}"); em.e(f"s_mov_b32 s{a+1}, {hex(val >> 32)}")
    m64(sMK[0], 0xFFFF); m64(sMK[1], 0xFFFF0000); m64(sMK[2], 0x0F000F000F000F00); m64(sMK[3], 0xF000F000F000F000)
    m64(sMK[4], 0x0F00); m64(sMK[5], 0xF0000000)
    m64(sBIT2, 0xF0F0F0F0F0F0F0F0); m64(sI8, 0x00FF00FF00FF00FF)
    m64(sG23, 0xFFFFFFFF00000000); m64(sG3, 0xFFFF000000000000); m64(sMK32, 0x00000000FFFFFFFF)
    if stamps:
        em.e(f"s_mov_b32 s{sTS+4}, 0"); em.e(f"s_mov_b32 s{sTS+5}, 0"); em.e(f"s_mov_b32 s{sTS+3}, {256 if MONO else 0}")
        em.e(f"s_sub_u32 s33, 0, s44")
        if opt.get("lst", 0) or MONO:
            em.e(f"s_cmp_eq_u32 s2, {opt.get('wg2', 0)}"); em.e(f"s_cselect_b32 s{sTS+4}, s33, 0"); em.e(f"s_mov_b32 s{sTS+5}, s{sTS+4}")
        if opt.get("rt"):
            em.e(f"s_mov_b32 s{sTS+4}, s33"); em.e(f"s_mov_b32 s{sTS+5}, 0"); em.e(f"s_lshl_b32 s{sTS+3}, s2, 7")
        elif not opt.get("lst", 0) and not MONO:
            em.e("s_cmp_eq_u32 s2, 0"); em.e(f"s_cselect_b32 s{sTS+4}, s33, 0")
            em.e(f"s_cmp_eq_u32 s2, {opt.get('wg2', 255)}"); em.e(f"s_cselect_b32 s{sTS+4}, s33, s{sTS+4}"); em.e(f"s_mov_b32 s34, {256 if MONO else 0}"); em.e(f"s_mov_b32 s35, {384 if MONO else 128}"); em.e(f"s_cselect_b32 s{sTS+3}, s35, s34")
    if not MONO:
        em.e(f"s_getreg_b32 {sMODE}, hwreg(HW_REG_XCC_ID)")
        em.e(f"s_and_b32 {sMODE}, {sMODE}, 0xffff"); em.e(f"s_add_u32 {sMODE}, {sMODE}, 1")
        em.e(f"v_mov_b32 v254, {sMODE}"); em.e("v_mov_b32 v255, 0")
        em.e(f"s_add_u32 s33, {sFOWN}, {FLG_XCC - FLG_G}")
        em.e(f"s_mov_b64 exec, {sFEX}")
        em.e(f"buffer_store_dword v254, v255, {S_WS}, s33 offen sc1")
        em.e("s_mov_b64 exec, -1")
    em.e("v_and_b32 v212, 15, v0"); em.e("v_lshrrev_b32 v213, 4, v0")
    em.e(f"v_add_u32 {vR1}, 0x10000, {vL16}"); em.e(f"v_add_u32 {vR2}, 0x20000, {vL16}"); em.e(f"v_add_u32 {vL16B}, 20480, {vL16}")
    em.e(f"v_lshlrev_b32 {vI4}, 2, v212"); em.e(f"v_add_u32 {vI4}, 0x20000, {vI4}")
    em.e(f"s_lshl_b32 s33, {sW}, 8")
    em.e(f"v_add_u32 {vI4W}, s33, {vI4}")
    em.e(f"v_lshlrev_b32 {vG16}, 4, v213"); em.e(f"v_add_u32 {vG16}, 0x20000, {vG16}"); em.e(f"v_add_u32 {vG16W}, s33, {vG16}")
    em.e("v_lshrrev_b32 v214, 5, v0"); em.e("v_bfe_u32 v215, v0, 4, 1")
    em.e("v_lshlrev_b32 v216, 8, v214"); em.e("v_lshlrev_b32 v217, 4, v212"); em.e("v_add_u32 v216, v216, v217")
    em.e(f"v_mul_u32_u24 v217, 20480, v215"); em.e(f"v_add_u32 {vX3}, v216, v217")
    em.e(f"v_mul_u32_u24 v217, {54*1024}, v215"); em.e(f"v_add_u32 {vA3}, v216, v217")
    em.e(f"v_lshlrev_b32 {vH16}, 4, v214"); em.e(f"v_add_u32 {vH16}, 0x20000, {vH16}")
    em.e(f"v_lshlrev_b32 {vL8}, 3, v0"); em.e(f"v_add_u32 {vL8}, 0x20000, {vL8}")
    em.e(f"v_lshlrev_b32 {vSTO}, 8, v213"); em.e("v_lshlrev_b32 v214, 3, v212"); em.e(f"v_add_u32 {vSTO}, {vSTO}, v214")
    em.e(f"s_mul_i32 s33, {sM}, 3"); em.e("v_lshrrev_b32 v214, 5, v0"); em.e("v_add_u32 v214, s33, v214")
    em.e("v_lshrrev_b32 v215, 3, v214"); em.e("v_add_u32 v215, 48, v215"); em.e("v_lshlrev_b32 v215, 10, v215")
    em.e("v_and_b32 v216, 3, v214"); em.e("v_lshlrev_b32 v216, 8, v216"); em.e("v_add_u32 v215, v215, v216")
    em.e("v_lshlrev_b32 v216, 4, v212"); em.e("v_add_u32 v215, v215, v216")
    em.e("v_bfe_u32 v216, v214, 2, 1"); em.e("v_lshlrev_b32 v216, 3, v216"); em.e(f"v_add_u32 v215, v215, v216")
    em.e("v_bfe_u32 v216, v0, 4, 1"); em.e(f"v_mul_u32_u24 v216, {54*1024}, v216"); em.e(f"v_add_u32 {vACT6}, v215, v216")
    em.e(f"s_lshr_b32 s33, {sM}, 2"); em.e("s_add_u32 s33, s33, 16"); em.e("s_lshl_b32 s33, s33, 10")
    em.e(f"s_and_b32 s34, {sM}, 1"); em.e("s_lshl_b32 s34, s34, 9"); em.e("s_add_u32 s33, s33, s34")
    em.e(f"s_bfe_u32 s34, {sM}, 0x10001"); em.e("s_lshl_b32 s34, s34, 3"); em.e("s_add_u32 s33, s33, s34")
    em.e("s_sub_u32 s33, s33, 512")
    em.e("v_lshlrev_b32 v215, 8, v213"); em.e("v_lshlrev_b32 v216, 4, v212"); em.e("v_add_u32 v215, v215, v216")
    em.e(f"v_add_u32 {vOREM}, s33, v215")
    em.e("v_mul_u32_u24 v215, 1280, v212"); em.e("v_lshlrev_b32 v216, 3, v213"); em.e(f"v_add_u32 {vOUT}, v215, v216")
    if MONO:
        em.e(f"s_cmp_lg_u32 {sW}, 0"); em.e("s_cbranch_scc1 Lm_sb_o")
        em.e("v_lshlrev_b32 v252, 2, v0")
        em.e(f"s_mov_b32 {sSPIN}, 0")
        em.label("Lm_sb_p")
        em.e("global_load_dword v253, v252, s[82:83] sc1")
        em.raw("    s_waitcnt vmcnt(0)")
        em.e("v_and_b32 v254, 0x80808080, v253")
        em.e("v_cmp_ne_u32 vcc, 0x80808080, v254")
        em.e(f"s_add_u32 {sSPIN}, {sSPIN}, 1")
        em.e(f"s_cmp_gt_u32 {sSPIN}, 200000")
        em.e("s_cbranch_scc1 Lm_sb_x")
        em.e("s_cbranch_vccnz Lm_sb_p")
        em.label("Lm_sb_x")
        em.e("s_and_b32 s33, s2, 3"); em.e("s_lshl_b32 s33, s33, 3")
        em.e("v_lshrrev_b32 v253, s33, v253"); em.e("v_and_b32 v253, 0xff, v253")
        em.e(f"v_cmp_ne_u32 vcc, {sMODE}, v253")
        em.e("s_bfe_u32 s33, s2, 0x20002"); em.e("s_mov_b32 s34, 0x11111111"); em.e("s_lshl_b32 s34, s34, s33"); em.e("s_mov_b32 s35, s34")
        em.e("s_and_b64 vcc, vcc, s[34:35]")
        em.e("s_cmp_lg_u64 vcc, 0"); em.e("s_cselect_b32 s33, 1, 0")
        if opt.get("force_slow", 0): em.e("s_mov_b32 s33, 1")
        em.e("v_mov_b32 v253, s33"); em.e(f"v_mov_b32 v252, {MISC + 12288}")
        em.e("ds_write_b32 v252, v253")
        em.raw("    s_waitcnt lgkmcnt(0)")
        em.label("Lm_sb_o")
        em.e("s_barrier")
        em.e(f"v_mov_b32 v252, {MISC + 12288}")
        em.e("ds_read_b32 v253, v252")
        ring.emit(em, upto=2)
        em.raw("    s_waitcnt lgkmcnt(0)")
        em.e(f"v_readfirstlane_b32 {sMODE}, v253")
        if opt.get("sst"):
            em.e("s_memrealtime s[76:77]"); em.raw("    s_waitcnt lgkmcnt(0)")
            em.e("v_mov_b32 v236, s101"); em.e("v_mov_b32 v237, s100"); em.e("v_mov_b32 v238, s76"); em.e("v_mov_b32 v239, 0")
            em.e("s_lshl_b32 s33, s2, 4"); em.e("s_add_u32 s33, s33, 0x3000000"); em.e("v_mov_b32 v240, s33")
            em.e("s_mov_b64 exec, 1"); em.e("global_store_dwordx4 v240, v[236:239], s[4:5]"); em.e("s_mov_b64 exec, -1")
        if stamps:
            em.e("s_memtime s[76:77]"); em.raw("    s_waitcnt lgkmcnt(0)"); em.e("s_sub_u32 s97, s76, s92")
    pls()
    em.e(f"s_mul_i32 s33, {sM}, 512"); em.e(f"s_add_u32 s33, s33, {CS1}")
    em.e(f"s_mul_i32 s34, {sM}, 896"); em.e(f"s_add_u32 s34, s34, {CS3}")
    em.e("v_and_b32 v214, 31, v0"); em.e("v_lshlrev_b32 v214, 4, v214"); em.e("v_lshrrev_b32 v215, 5, v0")
    em.e("v_mul_u32_u24 v215, 81920, v215"); em.e("v_add_u32 v214, v214, v215"); em.e("v_add_u32 v214, s33, v214")
    em.e(f"v_add_u32 v215, s34, {vL16}")
    em.e("v_mov_b32 v216, 0x7ffffff0")
    em.e("v_cmp_gt_u32 vcc, 56, v0"); em.e("v_cndmask_b32 v215, v216, v215, vcc")
    em.e(f"s_cmp_eq_u32 {sW}, 0"); em.e("s_mov_b32 s36, 14336"); em.e("s_cselect_b32 s36, 8192, s36"); em.e("s_cselect_b64 vcc, -1, 0")
    em.e("v_cndmask_b32 v214, v215, v214, vcc")
    em.e(f"s_cmp_ge_u32 {sW}, 2"); em.e("s_cselect_b64 vcc, -1, 0")
    em.e("v_cndmask_b32 v214, v214, v216, vcc")
    for k in range(10):
        em.e(f"buffer_load_dwordx4 v[{CSVB+4*k}:{CSVB+4*k+3}], v214, {S_WS}, 0 offen", vm="cs")
        if k < 9: em.e("v_add_u32 v214, s36, v214")
    RL = RLB
    em.e(f"s_lshr_b32 s33, {sC8}, 1"); em.e("s_mul_i32 s33, s33, 5")
    em.e(f"s_lshl_b32 s34, {sODD}, 1"); em.e("s_add_u32 s34, s34, s33")
    em.e(f"s_mul_i32 s35, {sTT1}, 20480"); em.e(f"s_add_u32 s35, s35, {XB}")
    em.e("s_lshl_b32 s34, s34, 10"); em.e("s_add_u32 s34, s34, s35")
    em.e(f"buffer_load_dwordx4 v[{RL}:{RL+3}], {vL16}, {S_WS}, s34 offen", vm="res")
    em.e(f"buffer_load_dwordx4 v[{RL+4}:{RL+7}], {vL16}, {S_WS}, s34 offen offset:1024", vm="res")
    em.e("s_add_u32 s33, s33, 4"); em.e("s_lshl_b32 s33, s33, 10"); em.e("s_add_u32 s33, s33, s35")
    em.e(f"s_lshl_b32 s34, {sODD}, 3"); em.e("s_add_u32 s33, s33, s34")
    em.e(f"buffer_load_dwordx2 v[{RL+8}:{RL+9}], {vL16}, {S_WS}, s33 offen", vm="res")

    def poll(line, target_expr_sreg, lbl):
        em.e(f"s_mov_b32 {sSPIN}, 0")
        em.e(f"v_subrev_u32 v252, 0x20000, {vI4}")
        em.label(lbl)
        em.e(f"buffer_load_dword v253, v252, {S_WS}, {line} offen sc1")
        em.raw("    s_waitcnt vmcnt(0)")
        em.e(f"v_cmp_gt_u32 vcc, {target_expr_sreg}, v253")
        em.e(f"s_add_u32 {sSPIN}, {sSPIN}, 1")
        em.e(f"s_cmp_gt_u32 {sSPIN}, 20000")
        em.e(f"s_cbranch_scc1 {lbl}_x")
        em.e(f"s_cbranch_vccnz {lbl}")
        em.label(lbl + "_x")
    uid = [0]
    def wt(name, bit): return cur['STO'] or (" sc1" if opt.get(name, 0) & bit else "")
    def flag_store(own, val_sreg):
        em.e(f"v_mov_b32 v254, {val_sreg}")
        em.e("v_mov_b32 v255, 0")
        em.e(f"s_mov_b64 exec, {sFEX}")
        em.e(f"buffer_store_dword v254, v255, {S_WS}, {own} offen{cur['STO']}")
        em.e("s_mov_b64 exec, -1")
    def transition(pub, wait, last_round, sttags, need, d1, d2, upto2=None, defer0=False):
        uid[0] += 1; u = uid[0]
        if defer0:
            class Rec:
                def __init__(s_): s_.ops = []
                def op(s_, o): s_.ops.append(o)
            c1 = Rec(); ring.emit(c1, d1, upto=upto2)
            em.e(f"s_cmp_lg_u32 {sW}, 0"); em.e(f"s_cbranch_scc1 Lt{u}_a")
            vm0 = list(em.vm)
            em.wait(wvm=sttags)
            em.e(f"s_branch Lt{u}_b")
            em.label(f"Lt{u}_a")
            em.vm = vm0
            for o in c1.ops: em.op(o)
            em.wait(wvm=sttags)
            em.label(f"Lt{u}_b")
            em.e("s_barrier")
            ring.allowed = max(ring.allowed, last_round + NR)
            em.e(f"s_add_u32 {sT0}, {sSTEP}, {pub}")
            flag_store(sFOWN, sT0)
            c2 = Rec(); ring.emit(c2, d2, upto=upto2); ring.emit(c2, upto=need)
            assert ring.issued >= need
            em.e(f"s_cmp_lg_u32 {sW}, 0")
            em.e(f"s_cbranch_scc1 Lt{u}_c")
            em.e(f"s_add_u32 {sT0}, {sSTEP}, {wait}")
            poll(sFLINE, sT0, f"Lt{u}_p")
            if not (opt.get("dfskip", 0) and pub != 5):
                for o in c1.ops + c2.ops: em.raw("    " + o.text)
            em.e(f"s_branch Lt{u}_o")
            em.label(f"Lt{u}_c")
            for o in c2.ops: em.op(o)
            em.label(f"Lt{u}_o")
            em.wait(wvm=[("dma", x) for x in range(ring.filled + 1, need + 1)])
            ring.filled = max(ring.filled, need)
            em.e("s_barrier")
            return
        ring.emit(em, d1, upto=upto2)
        em.wait(wvm=sttags)
        em.e("s_barrier")
        ring.allowed = max(ring.allowed, last_round + NR)
        em.e(f"s_add_u32 {sT0}, {sSTEP}, {pub}")
        flag_store(sFOWN, sT0)
        ring.emit(em, d2, upto=upto2)
        ring.emit(em, upto=need)
        assert ring.issued >= need
        em.e(f"s_cmp_lg_u32 {sW}, 0")
        em.e(f"s_cbranch_scc1 Lt{u}_o")
        em.e(f"s_add_u32 {sT0}, {sSTEP}, {wait}")
        poll(sFLINE, sT0, f"Lt{u}_p")
        em.label(f"Lt{u}_o")
        em.wait(wvm=[("dma", x) for x in range(ring.filled + 1, need + 1)], wlg=[("dmal", x) for x in range(ring.filled + 1, need + 1)])
        ring.filled = max(ring.filled, need)
        em.e("s_barrier")

    def a_loads(n_tiles, nblk, ph, tagname, areg, m32=False):
        ops = []
        sR, rset = ROTREG[ph]
        rot = opt.get("rot", 0)
        for b in range(nblk):
            if b == 0 and rot:
                ops += [Op(f"s_lshl_b32 {sRT}, {sR}, 10"), Op(f"s_add_u32 {sA}, {sA}, {sRT}")]
            if b % 4 == 0 and b > 0:
                ops.append(Op(f"s_add_u32 {sA}, {sA}, 4096"))
                if rot and (nblk - b) in rset:
                    ops += [Op(f"s_cmp_eq_u32 {sR}, {nblk - b}"), Op(f"s_cselect_b32 {sRT}, {nblk*1024}, 0"), Op(f"s_sub_u32 {sA}, {sA}, {sRT}")]
            for t in range(n_tiles):
                r = areg(b, t)
                va = vL16 if t == 0 else vL16B
                off = (b % 4) * 1024
                if m32: va = vX3; off += 512 * t
                ops.append(Op(f"buffer_load_dwordx4 a[{r}:{r+3}], {va}, {S_WS}, {sA} offen offset:{off}{cur['LD']}", vm=(tagname, b, t)))
        return ops

    def a_jobs(al, dl):
        jobs = []; pend = []
        for o in al:
            pend.append(o)
            if o.vm is not None:
                jobs.append((pend, dl(o.vm[1]))); pend = []
        return jobs
    def stats_ops(base):
        ops = []
        for t in range(2):
            a = base + 4 * t; nm = base + 8 + 2 * t; rs = nm + 1; x = base + 12; y = base + 13
            ops.append(Op(f"v_add_f32 v{a}, v{a}, v{a+2}", wvm=[("st", t)]))
            ops.append(f"v_add_f32 v{a+1}, v{a+1}, v{a+3}")
            for sw in ("v_permlane32_swap_b32", "v_permlane16_swap_b32"):
                ops.append(f"v_mov_b32 v{x}, v{a}"); ops.append(f"v_mov_b32 v{y}, v{a+1}")
                ops.append(f"{sw} v{a}, v{x}"); ops.append(f"{sw} v{a+1}, v{y}")
                ops.append(f"v_add_f32 v{a}, v{a}, v{x}"); ops.append(f"v_add_f32 v{a+1}, v{a+1}, v{y}")
            ops.append(f"v_mul_f32 v{nm}, {hex(INV640 | 0x80000000)}, v{a}")
            ops.append(f"v_mul_f32 v{a+1}, {hex(INV640)}, v{a+1}")
            ops.append(f"v_fma_f32 v{a+1}, -v{nm}, v{nm}, v{a+1}")
            ops.append(f"v_max_f32 v{a+1}, 0, v{a+1}")
            ops.append(f"v_add_f32 v{a+1}, {hex(EPS5)}, v{a+1}")
            ops.append((Op(f"v_rsq_f32 v{rs}, v{a+1}"), 2))
        return ops
    def stats_loads(base):
        ops = []
        ops.append(Op(f"s_mul_i32 {sST}, {sXI}, {ST_SZ}"))
        ops.append(Op(f"s_lshl_b32 {sST2}, {sTT2}, 10"))
        ops.append(Op(f"s_add_u32 {sST}, {sST}, {sST2}"))
        ops.append(Op(f"s_add_u32 {sST}, {sST}, {ST}"))
        for t in range(2):
            a = base + 4 * t
            ops.append(Op(f"buffer_load_dwordx2 v[{a}:{a+1}], {vSTO}, {S_WS}, {sST} offen offset:{t*1024}{cur['LD']}", vm=("st", t)))
            ops.append(Op(f"buffer_load_dwordx2 v[{a+2}:{a+3}], {vSTO}, {S_WS}, {sST} offen offset:{t*1024+128}{cur['LD']}", vm=("st", t)))
        return ops
    def set_sA_x():
        em.e(f"s_mul_i32 {sA}, {sXI}, {X_SZ}"); em.e(f"s_mul_i32 {sT0}, {sTT2}, 20480")
        em.e(f"s_add_u32 {sA}, {sA}, {sT0}"); em.e(f"s_add_u32 {sA}, {sA}, {XB}")

    def phi_ops(acc, cs, nm, rs, rl, t1, t2):
        return [f"v_fmac_f32 v{acc}, v{nm}, v{cs}",
                f"v_mul_f32 v{t1}, v{acc}, v{rl}",
                (Op(f"v_exp_f32 v{t1}, v{t1} clamp"), 2),
                f"v_max_f32 v{acc}, 0, v{acc}",
                f"v_add_f32 v{t1}, {hex(EPS6)}, v{t1}",
                f"v_fma_f32 v{acc}, v{acc}, v{rs}, v{t1}"]
    def il(lists):
        out = []; k = 0
        while any(k < len(l) for l in lists):
            for l in lists:
                if k < len(l): out.append(l[k])
            k += 1
        return out
    def lin(ops):
        for o in ops:
            if isinstance(o, tuple): o = o[0]
            em.op(o)

    def reuse(): return cur["sfx"] == "F" and opt.get("reuse", 1)
    def LB(): return "0" if reuse() else sLAYER
    def pt(voff, srd, soff, imm=0):
        sc = {0: "", 1: " sc1", 2: " sc0", 3: " nt", 4: " sc0 sc1"}[opt.get("ptsc", 0)]
        if voff is None or opt.get("ptl", 0): return Op(f"buffer_load_dword {PTD}, off, {srd}, {soff} offset:{imm}{sc}", vm="pt")
        return Op(f"buffer_load_dword {PTD}, {voff}, {srd}, {soff} offen offset:{imm}{sc}", vm="pt")
    PTM = opt.get("ptm", 1); PTK = opt.get("ptk", 31)
    def PS(): return S_WSN if PTM == 2 else S_WS
    def pt_x(srd):
        return [f"s_mov_b32 {sP0}, 1" if reuse() else f"s_add_u32 {sP0}, {sXI}, 1", f"s_mul_i32 {sP1}, {sP0}, {X_SZ}", f"s_add_u32 {sP1}, {sP1}, {sXOFF}",
                pt(vL16, srd, sP1), pt(vL16, srd, sP1, 1024),
                f"s_add_u32 {sP1}, {sP1}, {sXREM}", pt(vL16, srd, sP1),
                f"s_mul_i32 {sP0}, {sP0}, {ST_SZ}", f"s_add_u32 {sP0}, {sP0}, {sSTOFF}", pt(None, srd, sP0)]
    def pt_act(p):
        ops = [f"s_mul_i32 {sP0}, {LB()}, {ACT_SZ}", f"s_add_u32 {sP0}, {sP0}, {sAOFF}"]
        if p < 3:
            ops += [f"s_lshl_b32 {sP1}, {sM}, 10", f"s_add_u32 {sP0}, {sP0}, {sP1}"]
            if p: ops.append(f"s_add_u32 {sP0}, {sP0}, {p*16384}")
            ops += [pt(vL16, PS(), sP0), f"s_add_u32 {sP0}, {sP0}, {54*1024}", pt(vL16, PS(), sP0)]
        else:
            ops += [pt(vACT6, PS(), sP0)]
        return ops
    def pt_o():
        return [f"s_mul_i32 {sP0}, {LB()}, {O_SZ}", f"s_add_u32 {sP0}, {sP0}, {sOOFF}",
                pt(vOREM, PS(), sP0), f"s_add_u32 {sP0}, {sP0}, 20480", pt(vOREM, PS(), sP0),
                f"s_lshl_b32 {sP1}, {sM}, 10", f"s_add_u32 {sP0}, {sP0}, {sP1}", pt(vL16, PS(), sP0), f"s_sub_u32 {sP0}, {sP0}, 20480", pt(vL16, PS(), sP0)]
    def pt_place(seg, ops, g):
        if cur["sfx"] != "F" or not opt.get("pt", 1): return g
        for o in ops:
            if isinstance(o, list): g = seg.group(o, g, maxcost=seg.cap - 1)
            else: g = seg.place(o, g)
        return g
    def pt_jobs(ops, earliest, dl):
        if cur["sfx"] != "F" or not opt.get("pt", 1): return []
        jobs = []; pend = []
        for o in ops:
            if isinstance(o, list):
                jobs.append((pend + [x if isinstance(x, Op) else Op(x) for x in o], dl, earliest)); pend = []
            elif isinstance(o, Op) and o.vm is not None:
                jobs.append((pend + [o], dl, earliest)); pend = []
            else: pend.append(o if isinstance(o, Op) else Op(o))
        assert not pend
        return jobs
    pfk = [0]
    def pf3(n, skip0):
        if cur["sfx"] != "F" or not n: return 0
        em.e(f"v_lshlrev_b32 v251, 3, {vL16}")
        em.e(f"s_and_b32 {sP1}, {sG}, 1"); em.e(f"s_lshl_b32 {sP1}, {sP1}, 15"); em.e(f"s_add_u32 {sP1}, {sP1}, {sPW3}"); em.e(f"s_add_u32 {sP1}, {sP1}, {sW4K}")
        uid[0] += 1; u = uid[0]
        if skip0:
            em.e(f"s_cmp_lg_u32 {sW}, 0"); em.e(f"s_cbranch_scc1 Lpf{u}_a")
            em.raw("    s_waitcnt vmcnt(0)")
            em.e(f"s_branch Lpf{u}_b")
            em.label(f"Lpf{u}_a")
        for k in range(n):
            em.e(f"s_add_u32 {sP0}, {sP1}, {opt.get('pfo', 32768) + 65536 * pfk[0]}"); pfk[0] += 1
            em.e(f"buffer_load_dword {PTD}, v251, {S_WS}, {sP0} offen", vm="pt")
        if skip0: em.label(f"Lpf{u}_b")
        return n
    def pf_place(seg, ph, off, key, nxt=False): pass
    def pf_now(ph, off, key, nxt=False): pass
    def prologue_end():
        if opt.get("xh", 1) and not MONO:
            em.e(f"s_add_u32 s33, {sFLINE}, {FLG_XCC - FLG_G}")
            em.e(f"v_subrev_u32 v252, 0x20000, {vI4}")
            em.e(f"buffer_load_dword v251, v252, {S_WS}, s33 offen sc1")
        if opt.get("fpt", 0): em.e(f"buffer_load_dword {PTD}, off, {S_WS}, {sFLINE}", vm="pt")
        if PEEL: return
        if PTM == 3 and opt.get("ptpos", 0) == 0: pt_all()
        ring.emit(em, upto=HEAD)
        if PTM == 3 and opt.get("ptpos", 0) == 1: pt_all()
        assert ring.issued == HEAD and not ring.q
    def pt_all():
        ops = (pt_o() if PTK & 1 else []) + (pt_x(S_WS) if PTK & 2 else []) + (pt_act(0) if PTK & 4 else [])
        if PTK & 8: ops += pt_act(1) + pt_act(2) + pt_act(3)
        for o in ops: em.op(o if isinstance(o, Op) else Op(o))
    join_state = [None]
    def K1_p1(peel):
        AX = lambda b, t: 80 * t + 4 * b
        SB = TMP
        NM4 = 226
        P1 = ACC
        nh = PBLK[PA - 1] if peel else AH
        if not nh: set_sA_x()
        seg = Seg(); ws = WStream(ring, seg, "K1", SS=(opt.get("pss", SS) if peel else SS))
        fu = {}; lu = {}
        for b in range(20):
            for t in range(5):
                f = b * 5 + t; wr = ws.wreg(f)
                for tok in range(2):
                    d = P1 + 8 * t + 4 * tok
                    c = "0" if b == 0 else f"v[{d}:{d+3}]"
                    wl = [("w", "K1", b * 5 + 4)] if (t == 0 and tok == 0) else None
                    wv = [("a", b, 1)] if (t == 0 and tok == 0) else None
                    i = seg.mfma(f"v_mfma_f32_16x16x32_bf16 v[{d}:{d+3}], a[{AX(b,tok)}:{AX(b,tok)+3}], v[{wr}:{wr+3}], {c}", wvm=wv, wlg=wl)
                    if t == 0 and tok == 0: g0 = i
                    fu.setdefault(f, g0); lu[f] = i
        if peel: cur["LD"] = ""
        al = a_loads(2, 20, "K1", "a", AX)
        sl = stats_loads(SB)
        for o in sl: seg.put(0, o, 0)
        ws.reads(list(range(100)), fu, lu, force=(6,))
        if peel:
            ws.vmem(a_jobs(al, lambda b: 10 * b - opt.get("pal", 60))[2 * nh:], lambda r: (0 if r <= 6 else opt.get("p7", 0)) if r <= P1J else None, margin=opt.get("pmarg", MARG), qd=opt.get("pqd", QD), rate=opt.get("pr1", 38) / 10.0)
        else:
            ws.vmem(a_jobs(al, lambda b: 10 * b - 30)[2 * nh:], lambda r: 0 if r <= 6 else (opt.get("k1w", 0) if r <= P1J or not PEEL else None), margin=MARG, qd=QD, rate=opt.get("r1", 38) / 10.0)
        so = stats_ops(SB)
        for t in range(2):
            nm = SB + 8 + 2 * t
            so.append(Op(f"ds_write_b32 {vI4W}, v{nm} offset:{L_STAT + t*128}", lg="sw"))
            so.append(Op(f"ds_write_b32 {vI4W}, v{nm+1} offset:{L_STAT + t*128 + 64}", lg="sw"))
        for t in range(2):
            so.append(Op(f"ds_read_b128 v[{NM4+8*t}:{NM4+8*t+3}], {vG16W} offset:{L_STAT + t*128}", lg="sr", wlg=["sw"]))
            so.append(Op(f"ds_read_b128 v[{NM4+8*t+4}:{NM4+8*t+7}], {vG16W} offset:{L_STAT + t*128 + 64}", lg="sr"))
        for t in range(2):
            for r in range(4):
                so.append(Op(f"v_mul_f32 v{242+4*t+r}, {hex(LOG2E)}, v{NM4+8*t+4+r}", wlg=["sr"]))
        seg.stream(so, opt.get("pst0", 100) if peel else 40)
        if peel and opt.get("pcs", 0):
            co = []
            for k in range(1, 10):
                for q in range(4): co.append(Op(f"v_add_f32 v{CSVB+q}, v{CSVB+q}, v{CSVB+4*k+q}", wvm=["cs"] if (k == 1 and q == 0) else None))
            for q in range(4):
                co.append(f"v_mov_b32 v{CSVB+4+q}, v{CSVB+q}"); co.append(f"v_mov_b32 v{CSVB+8+q}, v{CSVB+q}")
            for q in range(4): co.append(f"v_permlane32_swap_b32 v{CSVB+4+q}, v{CSVB+8+q}")
            g = seg.stream(co, opt["pcs"], cap=4); co = []
            g = seg.group([Op(f"s_cmp_eq_u32 {sW}, 0"), Op("s_cselect_b64 vcc, -1, 0")], g, maxcost=10)
            for q in range(4):
                co.append(f"v_add_f32 v{CSVB+4+q}, v{CSVB+4+q}, v{CSVB+8+q}")
                co.append(f"v_cndmask_b32 v{CSVB+q}, v{CSVB+q}, v{CSVB+4+q}, vcc")
            for q in range(10):
                co.append(Op(f"v_lshlrev_b32 v{RES+2*q}, 16, v{RLB+q}", wvm=["res"] if q == 0 else None))
                co.append(f"v_and_b32 v{RES+2*q+1}, 0xffff0000, v{RLB+q}")
            g = seg.stream(co, g, cap=4)
            grp = [f"s_cmp_eq_u32 {sW}, 0", f"s_mov_b32 {sT0}, {L_CS3}", f"s_cselect_b32 {sT0}, {L_CS1}, {sT0}", f"s_cselect_b32 {sT1}, 32, 56",
                   f"s_cmp_ge_u32 {sW}, 2", f"s_cselect_b32 {sT1}, 0, {sT1}", f"v_add_u32 v254, {sT0}, {vR2}", f"v_lshrrev_b32 v255, 4, {vL16}",
                   f"v_cmp_gt_u32 vcc, {sT1}, v255", "s_and_saveexec_b64 s[34:35], vcc", Op(f"ds_write_b128 v254, v[{CSVB}:{CSVB+3}]", lg="csw"), "s_mov_b64 exec, s[34:35]"]
            g = seg.group([o if isinstance(o, Op) else Op(o) for o in grp], g + 1, maxcost=10)
            gl = ws.events[-1][0]
            assert g < gl, (g, gl)
            nb = 0
            for o in seg.gaps[gl]:
                if o.text == "s_barrier": o.wlg = list(o.wlg or []) + ["csw"]; nb += 1
            assert nb == 1
        for g in ((1, 50, 100, 150) if not opt.get('ls2') else range(1, 200, 20)): lstamp(seg, g)
        seg.emit(em)
        if PEEL: ring.emit(em, upto=P1J)
        sys.stderr.write(f"p1 end: issued {ring.issued} q {len(ring.q)} filled {ring.filled} allowed {ring.allowed} vm {em.vm} ev {ws.events}\n")
        return ws
    def K1_first(peel):
        if peel and opt.get("pcs", 0): K1_sel(peel); return
        for k in range(1, 10):
            for q in range(4): em.e(f"v_add_f32 v{CSVB+q}, v{CSVB+q}, v{CSVB+4*k+q}")
        for q in range(4):
            em.e(f"v_mov_b32 v{CSVB+4+q}, v{CSVB+q}"); em.e(f"v_mov_b32 v{CSVB+8+q}, v{CSVB+q}")
        for q in range(4):
            em.e(f"v_permlane32_swap_b32 v{CSVB+4+q}, v{CSVB+8+q}")
        em.e(f"s_cmp_eq_u32 {sW}, 0"); em.e("s_cselect_b64 vcc, -1, 0")
        for q in range(4):
            em.e(f"v_add_f32 v{CSVB+4+q}, v{CSVB+4+q}, v{CSVB+8+q}")
            em.e(f"v_cndmask_b32 v{CSVB+q}, v{CSVB+q}, v{CSVB+4+q}, vcc")
        em.e(f"s_cmp_eq_u32 {sW}, 0"); em.e(f"s_mov_b32 {sT0}, {L_CS3}"); em.e(f"s_cselect_b32 {sT0}, {L_CS1}, {sT0}"); em.e(f"s_cselect_b32 {sT1}, 32, 56")
        em.e(f"s_cmp_ge_u32 {sW}, 2"); em.e(f"s_cselect_b32 {sT1}, 0, {sT1}")
        em.e(f"v_add_u32 v254, {sT0}, {vR2}")
        em.e(f"v_lshrrev_b32 v255, 4, {vL16}")
        em.e(f"v_cmp_gt_u32 vcc, {sT1}, v255")
        em.e("s_and_saveexec_b64 s[34:35], vcc")
        em.e(f"ds_write_b128 v254, v[{CSVB}:{CSVB+3}]")
        em.e("s_mov_b64 exec, s[34:35]")
        for q in range(10):
            em.e(f"v_lshlrev_b32 v{RES+2*q}, 16, v{RLB+q}")
            em.e(f"v_and_b32 v{RES+2*q+1}, 0xffff0000, v{RLB+q}")
        em.raw("    s_waitcnt lgkmcnt(0)")
        em.e("s_barrier")
        K1_sel(peel)
    def K1_sel(peel):
        if cur["sfx"] == "F" and not MONO:
            uid[0] += 1; u = uid[0]
            em.e(f"s_add_u32 {sT1}, {sFLINE}, {FLG_XCC - FLG_G}")
            if opt.get("xh", 1):
                em.e(f"v_mov_b32 v253, v251")
                em.e(f"v_cmp_gt_u32 vcc, 1, v253")
                em.e(f"s_cbranch_vccz Lx{u}_p_x")
            poll(sT1, "1", f"Lx{u}_p")
            em.e(f"v_cmp_ne_u32 vcc, {sMODE}, v253")
            if opt.get("force_slow", 0): em.e("s_branch Lk1_nocsS")
            em.e("s_cbranch_vccnz Lk1_nocsS")
        if peel: em.e("s_branch Lk1_nocsF")
    def K1():
        AX = lambda b, t: 80 * t + 4 * b
        SB = TMP; NM4 = 226; P1 = ACC
        ws = K1_p1(False)
        stamp()
        svm = list(em.vm)
        if PEEL:
            svm = [t for t in svm if isinstance(t, tuple) and t[0] == "dma"]
            js = join_state[0]
            assert (ring.issued, ring.filled, ring.allowed, WStream.cnt) == (js[0], js[1], js[2], js[4]), ((ring.issued, ring.filled, ring.allowed, WStream.cnt), js)
            na, nb_ = len(svm), len(js[3])
            if na <= nb_: assert js[3][nb_ - na:] == svm; svm = list(js[3])
            else: assert svm[na - nb_:] == js[3]
        else:
            em.e(f"s_cmp_lg_u32 {sLAYER}, 0"); em.e(f"s_cbranch_scc1 Lk1_nocs{cur['sfx']}")
            K1_first(False)
        em.label(f"Lk1_nocs{cur['sfx']}")
        em.vm = svm; em.lg = []
        em.raw("    s_waitcnt lgkmcnt(0)")
        if not opt.get('k1n', 1):
            CS = 140
            for t in range(5):
                em.e(f"ds_read_b32 v{CS+t}, {vI4} offset:{L_CS1 + t*64}", lg="cs")
            KF = 148
            T1, T2 = 172, 173
            def nmr(tok, r): return NM4 + 8 * tok + r
            def rsr(tok, r): return NM4 + 8 * tok + 4 + r
            def rlr(tok, r): return 242 + 4 * tok + r
            em.wait(wlg=["cs"])
            XV = 176
            ops = []
            streams = []
            tmpc = [180]
            for (t, fr_) in ((0, KF), (1, KF + 4), (4, KF + 16)):
                for tok in range(2):
                    for r in range(4):
                        a = P1 + 8 * t + 4 * tok + r
                        tt = 184 + (len(streams) % 8)
                        if t == 4:
                            s_ = [f"v_fmac_f32 v{a}, v{nmr(tok,r)}, v{CS+t}",
                                  f"v_mul_f32 v{XV+4*tok+r}, v{a}, v{rsr(tok,r)}",
                                  f"v_mul_f32 v{tt}, v{a}, v{rlr(tok,r)}",
                                  f"v_exp_f32 v{tt}, v{tt} clamp",
                                  f"v_max_f32 v{a}, 0, v{a}",
                                  f"v_add_f32 v{tt}, {hex(EPS6)}, v{tt}",
                                  f"v_fma_f32 v{a}, v{a}, v{rsr(tok,r)}, v{tt}"]
                        else:
                            s_ = [x[0] if isinstance(x, tuple) else x for x in phi_ops(a, CS + t, nmr(tok, r), rsr(tok, r), rlr(tok, r), tt, None)]
                        streams.append(s_)
            for k in range(0, len(streams), 4):
                lin(il(streams[k:k + 4]))
                ring.emit(em, 4)
            for t in (2, 3):
                for tok in range(2):
                    for r in range(4):
                        a = P1 + 8 * t + 4 * tok + r
                        em.e(f"v_fmac_f32 v{a}, v{nmr(tok,r)}, v{CS+t}")
                    for r in range(4):
                        a = P1 + 8 * t + 4 * tok + r
                        em.e(f"v_mul_f32 v{a}, v{a}, v{rsr(tok,r)}")
            for k in range(8):
                em.e(f"v_cndmask_b32 v{XV+k}, v{XV+k}, 1.0, {sI8}")
            def pack(dst, src_tok0, src_tok1):
                em.e(f"v_cvt_pk_bf16_f32 v{dst}, v{src_tok0}, v{src_tok0+1}"); em.e(f"v_cvt_pk_bf16_f32 v{dst+1}, v{src_tok0+2}, v{src_tok0+3}")
                em.e(f"v_cvt_pk_bf16_f32 v{dst+2}, v{src_tok1}, v{src_tok1+1}"); em.e(f"v_cvt_pk_bf16_f32 v{dst+3}, v{src_tok1+2}, v{src_tok1+3}")
            K0f, K1f, V0f, V1f, XKf, XPf = KF, KF + 4, KF + 8, KF + 12, KF + 16, KF + 20
            pack(K0f, P1 + 0, P1 + 4); pack(K1f, P1 + 8, P1 + 12); pack(V0f, P1 + 16, P1 + 20); pack(V1f, P1 + 24, P1 + 28)
            pack(XKf, P1 + 32, P1 + 36); pack(XPf, XV, XV + 4)
            D = 184
            for k, (A_, B_) in enumerate([(K0f, V0f), (K1f, V1f), (XKf, V0f), (XKf, V1f), (K0f, XPf), (K1f, XPf), (XKf, XPf)]):
                em.e(f"v_mfma_f32_16x16x32_bf16 v[{D+4*k}:{D+4*k+3}], v[{A_}:{A_+3}], v[{B_}:{B_+3}], 0")
            D1, D2, D3, D4, D5, D6, D7 = [D + 4 * k for k in range(7)]
            for r in range(4):
                em.e(f"v_cndmask_b32 v{D5+r}, v{D5+r}, v{D6+r}, {sBIT2}")
                em.e(f"v_cndmask_b32 v{D3+r}, v{D3+r}, v{D4+r}, {sMK[1]}")
            for r in range(4):
                em.e(f"v_permlane32_swap_b32 v{D3+r}, v{D7+r}")
            ring.emit(em, upto=13)
            assert ring.issued <= 13 and ring.next_round() <= 14 and not ring.q and ws.lastbar >= 6, (ring.issued, ws.lastbar)
            RP = (14 % NR) * 16384 - 65536
            em.e(f"v_add_u32 v254, {sW1K}, {vR1}"); em.e(f"v_add_u32 v255, {sW4K}, {vR1}")
            for t, src in enumerate((D1, D2, D5, D3)):
                em.e(f"ds_write_b128 v254, v[{src}:{src+3}] offset:{RP + t*4096}", lg="red")
            em.wait_all_lg()
            em.wait(wvm=[("dma", x) for x in range(ring.filled + 1, 9)])
            ring.filled = 8
            em.e("s_barrier")
            for k in range(4):
                em.e(f"ds_read_b128 v[{D+4*k}:{D+4*k+3}], v255 offset:{RP + k*1024}", lg=("rr", k))
            em.e(f"s_mul_i32 {sST}, {sLAYER}, {KVP_L}"); em.e(f"s_lshl_b32 {sST2}, {sM}, 16"); em.e(f"s_add_u32 {sST}, {sST}, {sST2}")
            em.e(f"s_add_u32 {sST}, {sST}, {KVP}"); em.e(f"s_add_u32 {sST}, {sST}, {sW1K}")
            em.e(f"s_lshl_b32 {sST2}, {sG}, 12"); em.e(f"s_add_u32 {sST2}, {sST2}, {sST}")
            for q in range(4): em.e(f"v_add_f32 v{D+q}, v{D+q}, v{D+4+q}", wlg=[("rr", 1)] if q == 0 else None)
            for q in range(4): em.e(f"v_add_f32 v{D+8+q}, v{D+8+q}, v{D+12+q}", wlg=[("rr", 3)] if q == 0 else None)
            for q in range(4): em.e(f"v_add_f32 v{D+q}, v{D+q}, v{D+8+q}")
            em.e(f"buffer_store_dwordx4 v[{D}:{D+3}], {vL16}, {S_WS}, {sST2} offen sc1", vm="kvst")
            stamp()
            P2 = ACC
            seg = Seg(); ws2 = WStream(ring, seg, "K1", SS=SS)
            fu = {}; lu = {}
            for b in range(20):
                for t in range(3):
                    f = 100 + 3 * b + t; wr = ws2.wreg(f)
                    for tok in range(2):
                        d = P2 + 8 * t + 4 * tok
                        c = "0" if b == 0 else f"v[{d}:{d+3}]"
                        wl = [("w", "K1", 100 + 3 * b + 2)] if (t == 0 and tok == 0) else None
                        i = seg.mfma(f"v_mfma_f32_16x16x32_bf16 v[{d}:{d+3}], v[{wr}:{wr+3}], a[{AX(b,tok)}:{AX(b,tok)+3}], {c}", wlg=wl)
                        if t == 0 and tok == 0: g0 = i
                        fu.setdefault(f, g0); lu[f] = i
            ws2.reads(list(range(100, 160)), fu, lu, nobar=(7, 8))
            assert len(ws2.events) == 1
            gb = ws2.events[0][0]
            for o in seg.gaps[gb]:
                if o.text == "s_barrier": o.wvm = list(o.wvm) + ["kvst"]
            pub = [Op(f"s_add_u32 {sT0}, {sLAYER}, 1"),
                   Op(f"v_mov_b32 v254, {sT0}"), Op("v_mov_b32 v255, 0"),
                   Op(f"s_mov_b64 exec, {sFEX}"),
                   Op(f"buffer_store_dword v254, v255, {S_WS}, {sKOWN} offen sc1"),
                   Op("s_mov_b64 exec, -1")]
            g = seg.stream(pub[:3], gb - 6)
            assert g < gb
            for o in pub[3:]: seg.put(gb + 1, o, 1)
            g = pt_place(seg, pt_o(), 2)
            g = pt_place(seg, pt_x(S_WS), g)
            g = pt_place(seg, pt_act(0), g)
            pf_place(seg, "K3", 32768, "pa1"); pf_place(seg, "K3", 32768 + 65536, "pa2"); pf_place(seg, "K3", 32768 + 2*65536, "pa3"); pf_place(seg, "K3", 32768 + 3*65536, "pa4")
            ws2.vmem([], lambda r: 0, margin=MARG, qd=QD, rate=RATE)
            CS4 = 140
            seg.stream([Op(f"ds_read_b128 v[{CS4+4*t}:{CS4+4*t+3}], {vG16} offset:{L_CS1 + (5+t)*64}", lg="cs4") for t in range(3)], 60)
            RLI = 152
            seg.stream([f"v_mul_f32 v{RLI+t}, {hex(LOG2E)}, v{SB+8+2*t+1}" for t in range(2)], 70)
            seg.emit(em)
            stamp()
            em.wait(wlg=["cs4"])
            streams = []
            for t in range(3):
                for tok in range(2):
                    for r in range(4):
                        a = P2 + 8 * t + 4 * tok + r
                        tt = 184 + (len(streams) % 8)
                        streams.append([x[0] if isinstance(x, tuple) else x for x in phi_ops(a, CS4 + 4 * t + r, SB + 8 + 2 * tok, SB + 8 + 2 * tok + 1, RLI + tok, tt, None)])
            for k in range(0, len(streams), 4):
                lin(il(streams[k:k + 4]))
                ring.emit(em, 2)
            F = 156
            for tok in range(2):
                qa = P2 + 4 * tok; qb = P2 + 8 + 4 * tok; qx = P2 + 16 + 4 * tok
                fa = F + 8 * tok; fb = fa + 4
                em.e(f"v_cvt_pk_bf16_f32 v{fa}, v{qa}, v{qa+1}"); em.e(f"v_cvt_pk_bf16_f32 v{fa+1}, v{qa+2}, v{qa+3}")
                em.e(f"v_cvt_pk_bf16_f32 v{fa+2}, v{qx}, v{qx+1}"); em.e(f"v_cvt_pk_bf16_f32 v{fa+3}, v{qx+2}, v{qx+3}")
                em.e(f"v_cvt_pk_bf16_f32 v{fb}, v{qb}, v{qb+1}"); em.e(f"v_cvt_pk_bf16_f32 v{fb+1}, v{qb+2}, v{qb+3}")
                em.e(f"v_mov_b32 v{fb+2}, v{fa+2}"); em.e(f"v_mov_b32 v{fb+3}, v{fa+3}")
            uid[0] += 1; u = uid[0]
            em.e(f"s_cmp_lg_u32 {sW}, 0")
            em.e(f"s_cbranch_scc1 Lkv{u}_o")
            em.e(f"s_add_u32 {sT0}, {sLAYER}, 1")
            poll(sKLINE, sT0, f"Lkv{u}_p")
            em.label(f"Lkv{u}_o")
            em.e("s_barrier")
            ring.allowed = max(ring.allowed, 18)
            KL = 172
            for Gp in range(16):
                if Gp % 1 == 0: em.e(f"s_add_u32 {sST2}, {sST}, {Gp*4096}")
                em.e(f"buffer_load_dwordx4 v[{KL+4*Gp}:{KL+4*Gp+3}], {vL16}, {S_WS}, {sST2} offen sc1", vm=("kl", Gp))
            ring.emit(em, upto=18)
            pf_now("K3", 32768, "pb1"); pf_now("K3", 32768 + 65536, "pb2"); pf_now("K3", 32768 + 2*65536, "pb3"); pf_now("K3", 32768 + 3*65536, "pb4")
            for Gp in range(1, 16):
                for q in range(4):
                    em.e(f"v_add_f32 v{KL+q}, v{KL+q}, v{KL+4*Gp+q}", wvm=[("kl", Gp)] if q == 0 else None)
        else:
            CS = 140
            for t in range(5):
                em.e(f"ds_read_b32 v{CS+t}, {vI4} offset:{L_CS1 + t*64}", lg="cs")
            KF = 148
            def nmr(tok, r): return NM4 + 8 * tok + r
            def rsr(tok, r): return NM4 + 8 * tok + 4 + r
            def rlr(tok, r): return 242 + 4 * tok + r
            XV = 172
            TT = 180
            P2 = 188
            em.e(f"s_mul_i32 {sST}, {sLAYER}, {KVP_L}"); em.e(f"s_lshl_b32 {sST2}, {sM}, 16"); em.e(f"s_add_u32 {sST}, {sST}, {sST2}")
            em.e(f"s_add_u32 {sST}, {sST}, {KVP}"); em.e(f"s_add_u32 {sST}, {sST}, {sW1K}")
            em.e(f"s_lshl_b32 {sST2}, {sG}, 12"); em.e(f"s_add_u32 {sST2}, {sST2}, {sST}")
            em.e(f"v_add_u32 v254, {sW1K}, {vR1}"); em.e(f"v_add_u32 v255, {sW4K}, {vR1}")
            seg = Seg(); ws2 = WStream(ring, seg, "K1", SS=SS)
            fu = {}; lu = {}
            for b in range(20):
                for t in range(3):
                    f = 100 + 3 * b + t; wr = ws2.wreg(f)
                    for tok in range(2):
                        d = P2 + 8 * t + 4 * tok
                        c = "0" if b == 0 else f"v[{d}:{d+3}]"
                        wl = [("w", "K1", 100 + 3 * b + 2)] if (t == 0 and tok == 0) else None
                        i = seg.mfma(f"v_mfma_f32_16x16x32_bf16 v[{d}:{d+3}], v[{wr}:{wr+3}], a[{AX(b,tok)}:{AX(b,tok)+3}], {c}", wlg=wl)
                        if t == 0 and tok == 0: g0 = i
                        fu.setdefault(f, g0); lu[f] = i
            assert ring.filled == 6, ring.filled
            ws2.reads(list(range(100, 144)), fu, lu)
            assert len(ws2.events) == 1 and ws2.events[0][2] == 8, ws2.events
            ws2.events[0] = (ws2.events[0][0], 13, 8)
            streams = []
            def phi_stream(t):
                for tok in range(2):
                    for r in range(4):
                        a = P1 + 8 * t + 4 * tok + r
                        tt = TT + (len(streams) % 8)
                        if t == 4:
                            s_ = [f"v_fmac_f32 v{a}, v{nmr(tok,r)}, v{CS+t}",
                                  f"v_mul_f32 v{XV+4*tok+r}, v{a}, v{rsr(tok,r)}",
                                  f"v_mul_f32 v{tt}, v{a}, v{rlr(tok,r)}",
                                  (Op(f"v_exp_f32 v{tt}, v{tt} clamp"), 2),
                                  f"v_max_f32 v{a}, 0, v{a}",
                                  f"v_add_f32 v{tt}, {hex(EPS6)}, v{tt}",
                                  f"v_fma_f32 v{a}, v{a}, v{rsr(tok,r)}, v{tt}"]
                        else:
                            s_ = phi_ops(a, CS + t, nmr(tok, r), rsr(tok, r), rlr(tok, r), tt, None)
                        streams.append(s_)
            for t in (0, 1, 4): phi_stream(t)
            ko = []
            for k in range(0, len(streams), 4): ko += il(streams[k:k + 4])
            o0 = ko[0]; o0 = Op(o0, wlg=["cs"]); ko[0] = o0
            for t in (2, 3):
                for tok in range(2):
                    for r in range(4):
                        a = P1 + 8 * t + 4 * tok + r
                        ko.append(f"v_fmac_f32 v{a}, v{nmr(tok,r)}, v{CS+t}")
                    for r in range(4):
                        a = P1 + 8 * t + 4 * tok + r
                        ko.append(f"v_mul_f32 v{a}, v{a}, v{rsr(tok,r)}")
            for k in range(8):
                ko.append(f"v_cndmask_b32 v{XV+k}, v{XV+k}, 1.0, {sI8}")
            def pack(dst, src_tok0, src_tok1):
                return [f"v_cvt_pk_bf16_f32 v{dst}, v{src_tok0}, v{src_tok0+1}", f"v_cvt_pk_bf16_f32 v{dst+1}, v{src_tok0+2}, v{src_tok0+3}",
                        f"v_cvt_pk_bf16_f32 v{dst+2}, v{src_tok1}, v{src_tok1+1}", f"v_cvt_pk_bf16_f32 v{dst+3}, v{src_tok1+2}, v{src_tok1+3}"]
            K0f, K1f, V0f, V1f, XKf, XPf = KF, KF + 4, KF + 8, KF + 12, KF + 16, KF + 20
            ko += pack(K0f, P1 + 0, P1 + 4) + pack(K1f, P1 + 8, P1 + 12) + pack(XKf, P1 + 32, P1 + 36) + pack(V0f, P1 + 16, P1 + 20) + pack(V1f, P1 + 24, P1 + 28) + pack(XPf, XV, XV + 4)
            KCAP = opt.get("kcap", 5)
            g = seg.stream(ko, 0, cap=KCAP)
            D = 100
            g += 1
            for k, (A_, B_) in enumerate([(K0f, V0f), (K1f, V1f), (XKf, V0f), (XKf, V1f), (K0f, XPf), (K1f, XPf), (XKf, XPf)]):
                seg.put(g + k // 2, f"v_mfma_f32_16x16x32_bf16 v[{D+4*k}:{D+4*k+3}], v[{A_}:{A_+3}], v[{B_}:{B_+3}], 0", 2)
            g += 5
            D1, D2, D3, D4, D5, D6, D7 = [D + 4 * k for k in range(7)]
            RP = (14 % NR) * 16384 - 65536
            ko = [Op(f"ds_write_b128 v254, v[{D1}:{D1+3}] offset:{RP}", lg="red"), Op(f"ds_write_b128 v254, v[{D2}:{D2+3}] offset:{RP + 4096}", lg="red")]
            for r in range(4):
                ko.append(f"v_cndmask_b32 v{D5+r}, v{D5+r}, v{D6+r}, {sBIT2}")
            for r in range(4):
                ko.append(f"v_cndmask_b32 v{D3+r}, v{D3+r}, v{D4+r}, {sMK[1]}")
            ko.append(Op(f"ds_write_b128 v254, v[{D5}:{D5+3}] offset:{RP + 2*4096}", lg="red"))
            for r in range(4):
                ko.append(f"v_permlane32_swap_b32 v{D3+r}, v{D7+r}")
            g = seg.stream(ko, g, cap=KCAP)
            g = seg.put(g + 1, Op(f"ds_write_b128 v254, v[{D3}:{D3+3}] offset:{RP + 3*4096}", lg="red"), 1)
            gR = g + opt.get("kgb", 3)
            seg.put(gR, Op("s_barrier", wvm=[("dma", 9)], wlg=["red"]), 2)
            for k in range(4):
                seg.put(gR, Op(f"ds_read_b128 v[{D+4*k}:{D+4*k+3}], v255 offset:{RP + k*1024}", lg=("rr", k)), 1)
            assert gR < fu[144] - 1, (gR, fu[144])
            ws2.events.append((gR, 13, 9))
            g = gR + opt.get("kga", 4)
            ko = []
            for q in range(4): ko.append(Op(f"v_add_f32 v{D+q}, v{D+q}, v{D+4+q}", wlg=[("rr", 1)] if q == 0 else None))
            for q in range(4): ko.append(Op(f"v_add_f32 v{D+8+q}, v{D+8+q}, v{D+12+q}", wlg=[("rr", 3)] if q == 0 else None))
            for q in range(4): ko.append(Op(f"v_add_f32 v{D+q}, v{D+q}, v{D+8+q}"))
            KVH = opt.get("kvh", 1)
            if KVH:
                ko.insert(0, Op(f"v_lshrrev_b32 v254, 1, {vL16}"))
                ko += [Op(f"v_cvt_pk_bf16_f32 v{D}, v{D}, v{D+1}"), Op(f"v_cvt_pk_bf16_f32 v{D+1}, v{D+2}, v{D+3}")]
                ko.append(Op(f"buffer_store_dwordx2 v[{D}:{D+1}], v254, {S_WS}, {sST2} offen sc1", vm="kvst"))
            else:
                ko.append(Op(f"buffer_store_dwordx4 v[{D}:{D+3}], {vL16}, {S_WS}, {sST2} offen sc1", vm="kvst"))
            gS = seg.stream(ko, g, cap=4)
            ws2.events.append((g + 4, 14, 9))
            ring.filled = 9
            ev = list(ws2.events)
            ws2.reads(list(range(144, 160)), fu, lu, ming=gR + 1)
            assert ws2.events == ev
            pj = pt_jobs((pt_o() if PTK & 1 else []) + (pt_x(PS()) if PTK & 2 else []) + (pt_act(0) if PTK & 4 else []), opt.get("ptg", 40), 119) if PTM != 3 else []
            pq = []
            if opt.get("ptq", 0): pq = pj; pj = []
            ws2.vmem(pj, lambda r: 0, margin=MARG, qd=opt.get("qs2", 4), rate=opt.get("rs2", 35) / 10.0, cap=KCAP + 2, burst0=False)
            CS4 = 140
            seg.stream([Op(f"ds_read_b128 v[{CS4+4*t}:{CS4+4*t+3}], {vG16} offset:{L_CS1 + (5+t)*64}", lg="cs4") for t in range(3)], gS + 1)
            RLI = 152
            seg.stream([f"v_mul_f32 v{RLI+t}, {hex(LOG2E)}, v{SB+8+2*t+1}" for t in range(2)], gS + 4)
            sys.stderr.write(f"S2: gR {gR} gS {gS} ev {ws2.events}\n")
            if opt.get('ls2'):
                for g in range(1, 108, 7): lstamp(seg, g)
            seg.emit(em)
            stamp()
            KL = WW
            NL = 8 if KVH else 16
            KA = WW + 32
            vKV = "v255" if KVH else vL16
            K1SC = "" if opt.get("kvp", 1) else " sc1"
            if KVH:
                em.e(f"v_and_b32 v254, 0x200, {vL16}"); em.e("v_lshlrev_b32 v254, 3, v254"); em.e(f"v_and_b32 v255, 0x1f0, {vL16}"); em.e("v_add_u32 v255, v255, v254")
            def kl_loads(tag):
                for Gp in range(NL):
                    em.e(f"s_add_u32 {sST2}, {sST}, {Gp*4096*(16//NL)}")
                    em.e(f"buffer_load_dwordx4 v[{KL+4*Gp}:{KL+4*Gp+3}], {vKV}, {S_WS}, {sST2} offen sc1", vm=(tag, Gp) if tag else None)
            streams = []
            for t in range(3):
                for tok in range(2):
                    for r in range(4):
                        a = P2 + 8 * t + 4 * tok + r
                        tt = TT + (len(streams) % 8)
                        streams.append([x[0] if isinstance(x, tuple) else x for x in phi_ops(a, CS4 + 4 * t + r, SB + 8 + 2 * tok, SB + 8 + 2 * tok + 1, RLI + tok, tt, None)])
            qops = []
            for k in range(0, len(streams), 4): qops += il(streams[k:k + 4])
            F = 156
            for tok in range(2):
                qa = P2 + 4 * tok; qb = P2 + 8 + 4 * tok; qx = P2 + 16 + 4 * tok
                fa = F + 8 * tok; fb = fa + 4
                qops += [f"v_cvt_pk_bf16_f32 v{fa}, v{qa}, v{qa+1}", f"v_cvt_pk_bf16_f32 v{fa+1}, v{qa+2}, v{qa+3}",
                         f"v_cvt_pk_bf16_f32 v{fa+2}, v{qx}, v{qx+1}", f"v_cvt_pk_bf16_f32 v{fa+3}, v{qx+2}, v{qx+3}",
                         f"v_cvt_pk_bf16_f32 v{fb}, v{qb}, v{qb+1}", f"v_cvt_pk_bf16_f32 v{fb+1}, v{qb+2}, v{qb+3}",
                         f"v_mov_b32 v{fb+2}, v{fa+2}", f"v_mov_b32 v{fb+3}, v{fa+3}"]
            KLS = opt.get("kls", 6)
            first = True
            for k, o in enumerate(qops):
                if k % KLS == 0 and k // KLS < NL:
                    Gp = k // KLS
                    em.e(f"s_add_u32 {sST2}, {sST}, {Gp*4096*(16//NL)}")
                    em.e(f"buffer_load_dwordx4 v[{KL+4*Gp}:{KL+4*Gp+3}], {vKV}, {S_WS}, {sST2} offen{K1SC}", vm=("kl", Gp))
                elif k % (KLS if not pq else opt.get("ptqs", 3)) == 0 and k // KLS >= NL and pq:
                    for o2 in pq.pop(0)[0]: em.op(o2)
                elif k % KLS == 0: ring.emit(em, 1)
                if first: em.wait(wlg=["cs4"]); first = False
                em.op(o)
            for j in pq:
                for o2 in j[0]: em.op(o2)
            stamp()
            uid[0] += 1; u = uid[0]
            em.e(f"s_mov_b32 {sSPIN}, 0")
            if KVH:
                em.e(f"s_mov_b32 {sP0}, 0x3f80"); em.e(f"s_mov_b32 {sP1}, 0x3f800000")
                em.wait(wvm=[("kl", 0)])
                em.label(f"Lkv{u}_s")
                for q in range(8): em.e(f"v_mov_b32 v{KA+q}, 0")
                for Gp in range(8):
                    for q in range(4):
                        em.e(f"v_dot2c_f32_bf16 v{KA+2*q}, {sP0}, v{KL+4*Gp+q}", wvm=[("kl", Gp)] if q == 0 else None)
                        em.e(f"v_dot2c_f32_bf16 v{KA+2*q+1}, {sP1}, v{KL+4*Gp+q}")
                em.e(f"v_cmp_u_f32 vcc, v{KA}, v{KA+2}"); em.e(f"v_cmp_u_f32 s[34:35], v{KA+4}, v{KA+6}")
            else:
                for Gp in range(1, 16):
                    if Gp == 1:
                        em.wait(wvm=[("kl", 1)])
                        em.label(f"Lkv{u}_s")
                    for q in range(4):
                        em.e(f"v_add_f32 v{KL+q}, v{KL+q}, v{KL+4*Gp+q}", wvm=[("kl", Gp)] if q == 0 else None)
                em.e(f"v_cmp_u_f32 vcc, v{KL}, v{KL+1}"); em.e(f"v_cmp_u_f32 s[34:35], v{KL+2}, v{KL+3}")
            em.e(f"s_or_b64 vcc, vcc, s[34:35]")
            em.e(f"s_cbranch_vccz Lkv{u}_o")
            em.e(f"s_add_u32 {sSPIN}, {sSPIN}, 1"); em.e(f"s_cmp_gt_u32 {sSPIN}, 20000"); em.e(f"s_cbranch_scc1 Lkv{u}_o")
            kl_loads(None)
            em.raw("    s_waitcnt vmcnt(0)")
            em.e(f"s_branch Lkv{u}_s")
            em.label(f"Lkv{u}_o")
        if opt.get('k1n', 1) and KVH:
            for q in range(4): em.e(f"v_permlane32_swap_b32 v{KA+q}, v{KA+4+q}")
            for q in range(4): em.e(f"v_add_f32 v{KA+q}, v{KA+q}, v{KA+4+q}")
            em.e(f"v_cvt_pk_bf16_f32 v{KL}, v{KA}, v{KA+1}"); em.e(f"v_cvt_pk_bf16_f32 v{KL+1}, v{KA+2}, v{KA+3}")
            em.e(f"v_and_b32 v254, 0x1f0, {vL16}"); em.e(f"v_lshrrev_b32 v255, 6, {vL16}"); em.e("v_and_b32 v255, 8, v255"); em.e("v_add_u32 v254, v254, v255")
            em.e(f"s_lshl_b32 {sT0}, {sW}, 9"); em.e(f"s_add_u32 {sT0}, {sT0}, 0x20000"); em.e(f"v_add_u32 v254, {sT0}, v254")
        else:
            em.e(f"v_cvt_pk_bf16_f32 v{KL}, v{KL}, v{KL+1}"); em.e(f"v_cvt_pk_bf16_f32 v{KL+1}, v{KL+2}, v{KL+3}")
            em.e(f"s_lshl_b32 {sT0}, {sW}, 9"); em.e(f"v_add_u32 v254, {sT0}, {vL8}")
        em.e(f"ds_write_b64 v254, v[{KL}:{KL+1}] offset:{L_KVB}", lg="kw")
        em.wait_all_lg()
        em.e("s_barrier")
        if opt.get('k1n', 1):
            ring.allowed = max(ring.allowed, 18)
            ring.emit(em, upto=opt.get("k1e", 18))
            pfk[0] = 0
            pf3(opt.get("pfa", 0), False)
        R_ = 176
        for t in range(4):
            em.e(f"ds_read_b64 v[{R_+2*t}:{R_+2*t+1}], {vL8} offset:{L_KVB + t*512}", lg="kr")
        em.e(f"v_xor_b32 v254, 256, {vL8}")
        em.e(f"ds_read_b64 v[{R_+8}:{R_+9}], v254 offset:{L_KVB + 3*512}", lg="kr")
        em.e(f"v_and_b32 v254, 0xfffffe7f ^ 0, {vL8}" if False else f"v_lshlrev_b32 v254, 3, {vG16}")
        em.e(f"v_and_b32 v254, 0x3ff, v254")
        em.e(f"v_add_u32 v254, 0x20000, v254")
        em.e(f"ds_read_b64 v[{R_+10}:{R_+11}], v254 offset:{L_KVB + 2*512}", lg="kr")
        em.e(f"ds_read_b64 v[{R_+12}:{R_+13}], v254 offset:{L_KVB + 2*512 + 32}", lg="kr")
        em.e("v_mov_b32 v255, 0x20000")
        em.e(f"ds_read_b64 v[{R_+14}:{R_+15}], v255 offset:{L_KVB + 3*512 + 32*8}", lg="kr")
        em.e(f"ds_read_b64 v[{R_+16}:{R_+17}], v255 offset:{L_KVB + 3*512 + 52*8}", lg="kr")
        em.wait_all_lg()
        t1, t2, t3, t4, t4x, za, zb, zxa, zxb = [R_ + 2 * k for k in range(9)]
        AF = 196
        Aa, Ab, Axa, Axb, Aza, Azb = [AF + 4 * k for k in range(6)]
        mg0, mg1, ma, mb, mga, mgb = sMK
        def cp(dst, src):
            em.e(f"v_mov_b32 v{dst}, v{src}"); em.e(f"v_mov_b32 v{dst+1}, v{src+1}")
        def mk(dst, src, m):
            em.e(f"v_cndmask_b32 v{dst}, 0, v{src}, {m}"); em.e(f"v_cndmask_b32 v{dst+1}, 0, v{src+1}, {m}")
        cp(Aa, t1); mk(Aa + 2, t4, mg0)
        cp(Ab, t2); mk(Ab + 2, t4, mg1)
        mk(Axa, t3, ma); mk(Axa + 2, t4x, mga)
        mk(Axb, t3, mb); mk(Axb + 2, t4x, mgb)
        cp(Aza, za); mk(Aza + 2, zxa, mg0)
        cp(Azb, zb); mk(Azb + 2, zxb, mg1)
        O = 100
        for tok in range(2):
            fa = F + 8 * tok; fb = fa + 4; o = O + 20 * tok
            em.e(f"v_mfma_f32_16x16x32_bf16 v[{o+12}:{o+15}], v[{Aza}:{Aza+3}], v[{fa}:{fa+3}], 0")
            em.e(f"v_mfma_f32_16x16x32_bf16 v[{o+16}:{o+19}], v[{Azb}:{Azb+3}], v[{fb}:{fb+3}], 0")
            em.e(f"v_mfma_f32_16x16x32_bf16 v[{o}:{o+3}], v[{Aa}:{Aa+3}], v[{fa}:{fa+3}], 0")
            em.e(f"v_mfma_f32_16x16x32_bf16 v[{o+4}:{o+7}], v[{Ab}:{Ab+3}], v[{fb}:{fb+3}], 0")
            em.e(f"v_mfma_f32_16x16x32_bf16 v[{o+8}:{o+11}], v[{Axa}:{Axa+3}], v[{fa}:{fa+3}], 0")
            em.e(f"v_mfma_f32_16x16x32_bf16 v[{o+8}:{o+11}], v[{Axb}:{Axb+3}], v[{fb}:{fb+3}], v[{o+8}:{o+11}]")
        em.e(f"s_mul_i32 {sST}, {LB()}, {O_SZ}"); em.e(f"s_mul_i32 {sST2}, {sTT2}, 20480"); em.e(f"s_add_u32 {sST}, {sST}, {sST2}")
        em.e(f"s_add_u32 {sST}, {sST}, {OB}")
        em.e(f"s_lshl_b32 {sST2}, {sM}, 10"); em.e(f"s_add_u32 {sST2}, {sST2}, {sST}")
        for tok in range(2):
            o = O + 20 * tok
            em.e(f"v_add_f32 v{o+12}, {hex(EPS6)}, v{o+12}"); em.e(f"v_add_f32 v{o+16}, {hex(EPS6)}, v{o+16}")
            em.e(f"v_rcp_f32 v{o+12}, v{o+12}"); em.e(f"v_rcp_f32 v{o+16}, v{o+16}")
            em.e(f"v_cndmask_b32 v{o+13}, v{o+12}, v{o+16}, {sG3}")
            for r in range(4):
                em.e(f"v_mul_f32 v{o+r}, v{o+r}, v{o+12}"); em.e(f"v_mul_f32 v{o+4+r}, v{o+4+r}, v{o+16}")
                em.e(f"v_mul_f32 v{o+8+r}, v{o+8+r}, v{o+13}")
            em.e(f"v_cvt_pk_bf16_f32 v{o}, v{o}, v{o+1}"); em.e(f"v_cvt_pk_bf16_f32 v{o+1}, v{o+2}, v{o+3}")
            em.e(f"v_cvt_pk_bf16_f32 v{o+2}, v{o+4}, v{o+5}"); em.e(f"v_cvt_pk_bf16_f32 v{o+3}, v{o+6}, v{o+7}")
            em.e(f"v_cvt_pk_bf16_f32 v{o+8}, v{o+8}, v{o+9}"); em.e(f"v_cvt_pk_bf16_f32 v{o+9}, v{o+10}, v{o+11}")
            va = vL16 if tok == 0 else vL16B
            em.e(f"buffer_store_dwordx4 v[{o}:{o+3}], {va}, {S_WS}, {sST2} offen{wt('osw', 1)}", vm="ost")
            if tok == 1: em.e(f"s_add_u32 {sST}, {sST}, 20480")
            em.e(f"s_mov_b64 exec, {sG23}")
            em.e(f"buffer_store_dwordx2 v[{o+8}:{o+9}], {vOREM}, {S_WS}, {sST} offen{wt('osw', 2)}", vm="ost")
            em.e("s_mov_b64 exec, -1")

    def K24(ph, nblk, final_possible):
        AX = lambda b, t: 4 * b
        if ph == "K2":
            em.e(f"s_mul_i32 {sA}, {LB()}, {O_SZ}"); em.e(f"s_mul_i32 {sT0}, {sTT1}, 20480"); em.e(f"s_add_u32 {sA}, {sA}, {sT0}"); em.e(f"s_add_u32 {sA}, {sA}, {OB}")
        else:
            em.e(f"s_mul_i32 {sA}, {LB()}, {ACT_SZ}"); em.e(f"s_mul_i32 {sT0}, {sTT1}, {54*1024}"); em.e(f"s_add_u32 {sA}, {sA}, {sT0}"); em.e(f"s_add_u32 {sA}, {sA}, {ACT}")
        seg = Seg(); ws = WStream(ring, seg, ph, SS=SS, LA=opt.get("la4", 10))
        fu = {}; lu = {}; wa = {}
        for b in range(nblk):
            for t in range(5):
                f = b * 5 + t; wr = ws.wreg(f); d = RES + 4 * t
                wv = [("a", b, 0)] if t == 0 else None
                i = seg.mfma(f"v_mfma_f32_16x16x32_bf16 v[{d}:{d+3}], v[{wr}:{wr+3}], a[{4*b}:{4*b+3}], v[{d}:{d+3}]", wvm=wv, wlg=[("w", ph, b * 5 + 4)] if t == 0 else None)
                fu[f] = i; lu[f] = i; wa[f] = 5 * b
        al = a_loads(1, nblk, ph, "a", AX)
        if ph == "K2" and DBG.get("stg", 0):
            for o in (f"v_add_u32 {vSTG0}, {sW4K}, {vL16}", f"v_add_u32 {vSTG1}, {sW4K}, {vR1}", f"v_add_u32 {vSTG2}, {sW4K}, {vR2}"): seg.put(0, o, 1)
        if ph == "K2":
            ws.reads(list(range(nblk * 5)), fu, lu, nobar=(12, 16), force=(14,), wait_at=wa)
            ws.vmem(a_jobs(al, lambda b: 5 * b - 30), lambda r: opt.get("k2w", 0), margin=MARG, qd=QD, rate=opt.get("r2", 35) / 10.0, stop=opt.get("k2s", 10**6))
        else:
            ws.reads(list(range(nblk * 5)), fu, lu, wait_at=wa)
            ws.vmem(a_jobs(al, lambda b: 5 * b - 30), lambda r: 0 if r < 52 else opt.get("k4w", 0), margin=MARG, qd=QD, rate=opt.get("r4", 28) / 10.0)
        g = 0
        if ph == "K4":
            if PTK & 16 and PTM != 3: pt_place(seg, pt_x(S_WSN), opt.get("k4pt", 170))
            if opt.get("opt", 0):
                g_ = seg.stream([f"s_mul_i32 {sP0}, {sTT1}, {16*1280}", f"s_mul_i32 {sP1}, {sC8}, 160", f"s_add_u32 {sP0}, {sP0}, {sP1}"], opt["opt"])
                g_ = seg.place(Op(f"buffer_load_dword {PTD}, {vOUT}, {S_OUT}, {sP0} offen", vm="pt"), g_)
                g_ = seg.place(Op(f"buffer_load_dword {PTD}, {vOUT}, {S_OUT}, {sP0} offen offset:128", vm="pt"), g_)
            pf_place(seg, "K1", 0, "pf1", True); pf_place(seg, "K1", 65536, "pf2", True); pf_place(seg, "K1", 131072, "pf3", True)
        else:
            pf_place(seg, "K3", 32768 + 2*65536, "pg3"); pf_place(seg, "K3", 32768 + 3*65536, "pg4")
        if not opt.get('ls2'):
            for g in range(1, nblk * 5 - 13, 30): lstamp(seg, g)
        seg.emit(em)
        stamp()
        P = TMP
        for t in range(5):
            em.e(f"v_cvt_pk_bf16_f32 v{P+2*t}, v{RES+4*t}, v{RES+4*t+1}"); em.e(f"v_cvt_pk_bf16_f32 v{P+2*t+1}, v{RES+4*t+2}, v{RES+4*t+3}")
        uid[0] += 1; u = uid[0]
        if final_possible:
            em.e(f"s_cmp_eq_u32 {sLAYER}, 1"); em.e(f"s_cbranch_scc1 Lfin{u}")
        em.e(f"s_mov_b32 {sXI}, 1" if reuse() else f"s_add_u32 {sXI}, {sXI}, 1")
        em.e(f"s_mul_i32 {sST}, {sXI}, {X_SZ}"); em.e(f"s_mul_i32 {sT0}, {sTT1}, 20480"); em.e(f"s_add_u32 {sST}, {sST}, {sT0}"); em.e(f"s_add_u32 {sST}, {sST}, {XB}")
        em.e(f"s_lshr_b32 {sT0}, {sC8}, 1"); em.e(f"s_mul_i32 {sT0}, {sT0}, 5")
        em.e(f"s_lshl_b32 {sT1}, {sODD}, 1"); em.e(f"s_add_u32 {sT1}, {sT1}, {sT0}"); em.e(f"s_lshl_b32 {sT1}, {sT1}, 10"); em.e(f"s_add_u32 {sT1}, {sT1}, {sST}")
        em.e(f"buffer_store_dwordx4 v[{P}:{P+3}], {vL16}, {S_WS}, {sT1} offen{wt('xsw', 1)}", vm="xst")
        em.e(f"buffer_store_dwordx4 v[{P+4}:{P+7}], {vL16}, {S_WS}, {sT1} offen offset:1024{wt('xsw', 1)}", vm="xst")
        em.e(f"s_add_u32 {sT0}, {sT0}, 4"); em.e(f"s_lshl_b32 {sT0}, {sT0}, 10"); em.e(f"s_add_u32 {sT0}, {sT0}, {sST}")
        em.e(f"s_lshl_b32 {sT1}, {sODD}, 3"); em.e(f"s_add_u32 {sT0}, {sT0}, {sT1}")
        em.e(f"buffer_store_dwordx2 v[{P+8}:{P+9}], {vL16}, {S_WS}, {sT0} offen{wt('xsw', 2)}", vm="xst")
        a, b_, x, y = 224, 225, 226, 227
        em.e(f"v_add_f32 v{a}, v{RES}, v{RES+1}"); em.e(f"v_mul_f32 v{b_}, v{RES}, v{RES}"); em.e(f"v_fmac_f32 v{b_}, v{RES+1}, v{RES+1}")
        em.e(f"v_add_f32 v{x}, v{RES+2}, v{RES+3}"); em.e(f"v_mul_f32 v{y}, v{RES+2}, v{RES+2}"); em.e(f"v_fmac_f32 v{y}, v{RES+3}, v{RES+3}")
        for k in range(4, 20, 2):
            em.e(f"v_add_f32 v{a}, v{a}, v{RES+k}"); em.e(f"v_fmac_f32 v{b_}, v{RES+k}, v{RES+k}")
            em.e(f"v_add_f32 v{x}, v{x}, v{RES+k+1}"); em.e(f"v_fmac_f32 v{y}, v{RES+k+1}, v{RES+k+1}")
        em.e(f"v_add_f32 v{a}, v{a}, v{x}"); em.e(f"v_add_f32 v{b_}, v{b_}, v{y}")
        for sw in ("v_permlane32_swap_b32", "v_permlane16_swap_b32"):
            em.e(f"v_mov_b32 v{x}, v{a}"); em.e(f"v_mov_b32 v{y}, v{b_}")
            em.e(f"{sw} v{a}, v{x}"); em.e(f"{sw} v{b_}, v{y}")
            em.e(f"v_add_f32 v{a}, v{a}, v{x}"); em.e(f"v_add_f32 v{b_}, v{b_}, v{y}")
        em.e(f"s_mul_i32 {sST}, {sXI}, {ST_SZ}"); em.e(f"s_lshl_b32 {sT0}, {sTT1}, 10"); em.e(f"s_add_u32 {sST}, {sST}, {sT0}")
        em.e(f"s_lshl_b32 {sT0}, {sC8}, 7"); em.e(f"s_add_u32 {sST}, {sST}, {sT0}"); em.e(f"s_add_u32 {sST}, {sST}, {ST}")
        em.e(f"s_mov_b64 exec, {sMK[0]}")
        em.e(f"buffer_store_dwordx2 v[{a}:{a+1}], {vSTO}, {S_WS}, {sST} offen{wt('xsw', 4)}", vm="xst")
        em.e("s_mov_b64 exec, -1")
        if final_possible:
            em.e(f"s_branch Lfin{u}_x")
            em.label(f"Lfin{u}")
            em.e(f"s_mul_i32 {sST}, {sTT1}, {16*1280}"); em.e(f"s_mul_i32 {sT0}, {sC8}, 160"); em.e(f"s_add_u32 {sST}, {sST}, {sT0}")
            for t in range(5):
                em.e(f"buffer_store_dwordx2 v[{P+2*t}:{P+2*t+1}], {vOUT}, {S_OUT}, {sST} offen offset:{t*32}" + {0: "", 1: " sc1", 2: " sc0 sc1", 3: " nt", 4: " sc1 nt"}[opt.get("osc", 0)])
            em.raw("    s_waitcnt vmcnt(0)")
            stamp(); nstamp[0] -= 1
            dump_stamps()
            em.e("s_endpgm")
            em.label(f"Lfin{u}_x")

    def K3():
        AX = lambda b, s_: 8 * b + 4 * s_
        SB = TMP
        NM, C1, KK, VST = 220, 221, 222, 223
        set_sA_x()
        seg = Seg(cap=opt.get("k3cap", 6)); ws = WStream(ring, seg, "K3", SS=SS, LA=opt.get("la3", 5))
        fu = {}; lu = {}
        pend = []
        for f in range(280): ws.wreg(f)
        def acc(t): return ACC + 16 * t
        B1 = opt.get("k3b", 12)
        groups = [(b, p) for b in range(B1) for p in range(3)] + [(b, p) for p in range(3) for b in range(B1, 20)] + [(b, 3) for b in range(20)]
        afirst = {}
        seen_a = set()
        pend = [0, 0, 0, 0]
        for (b, p) in groups:
            ts = (2 * p, 2 * p + 1) if p < 3 else (6,)
            first = True
            for s_ in range(2):
                for t in ts:
                    f = pw3_index(b, t, s_, B1); wr = ws.wreg(f)
                    d = acc(t)
                    c = "0" if (b == 0 and s_ == 0) else f"v[{d}:{d+15}]"
                    wl = [("w", "K3", pw3_index(b, ts[-1], 1, B1))] if first else None
                    wv = [("a", b, 1)] if (b not in seen_a and first) else None
                    i = seg.mfma(f"v_mfma_f32_32x32x16_bf16 v[{d}:{d+15}], v[{wr}:{wr+3}], a[{AX(b,s_)}:{AX(b,s_)+3}], {c}", wvm=wv, wlg=wl)
                    if first: g0 = i
                    if b not in seen_a: seen_a.add(b); afirst[b] = i
                    first = False
                    fu.setdefault(f, g0); lu[f] = i
            pend[p] = seg.n()
        al = a_loads(2, 20, "K3", "a", AX, m32=True)
        ws.reads(list(range(280)), fu, lu)
        ws.vmem(a_jobs(al, lambda b: afirst[b] - opt.get("a3l", 12)), lambda r: opt.get("k3w", 0), margin=opt.get("m3", 70), qd=opt.get("q3", QD // 2), rate=opt.get("r3", 38) / 20.0, stop=opt.get("k3s", 10**6))
        so = [f"v_and_b32 v{VST}, 0xf0, {vL16}", f"v_lshrrev_b32 v{VST}, 1, v{VST}", f"v_and_b32 v{NM}, 0x200, {vL16}", f"v_add_u32 v{VST}, v{VST}, v{NM}",
              f"v_and_b32 v{NM}, 0x100, {vL16}", f"v_lshlrev_b32 v{NM}, 2, v{NM}", f"v_add_u32 v{VST}, v{VST}, v{NM}",
              f"s_mul_i32 {sST}, {sXI}, {ST_SZ}", f"s_lshl_b32 {sST2}, {sTT2}, 10", f"s_add_u32 {sST}, {sST}, {sST2}", f"s_add_u32 {sST}, {sST}, {ST}"]
        for q in range(4):
            so.append(Op(f"buffer_load_dwordx2 v[{SB+2*q}:{SB+2*q+1}], v{VST}, {S_WS}, {sST} offen offset:{q*128}{cur['LD']}", vm=("st", q)))
        g = seg.stream(so, 2)
        a, b_, x, y = SB, SB + 1, SB + 2, SB + 3
        so = [Op(f"v_add_f32 v{a}, v{a}, v{SB+2}", wvm=[("st", 3)]), f"v_add_f32 v{b_}, v{b_}, v{SB+3}",
              f"v_add_f32 v{SB+4}, v{SB+4}, v{SB+6}", f"v_add_f32 v{SB+5}, v{SB+5}, v{SB+7}",
              f"v_add_f32 v{a}, v{a}, v{SB+4}", f"v_add_f32 v{b_}, v{b_}, v{SB+5}",
              f"v_mov_b32 v{x}, v{a}", f"v_mov_b32 v{y}, v{b_}",
              f"v_permlane32_swap_b32 v{a}, v{x}", f"v_permlane32_swap_b32 v{b_}, v{y}",
              f"v_add_f32 v{a}, v{a}, v{x}", f"v_add_f32 v{b_}, v{b_}, v{y}",
              f"v_mul_f32 v{NM}, {hex(INV640 | 0x80000000)}, v{a}", f"v_mul_f32 v{KK}, {hex(INV640)}, v{b_}",
              f"v_fma_f32 v{KK}, -v{NM}, v{NM}, v{KK}", f"v_max_f32 v{KK}, 0, v{KK}", f"v_add_f32 v{KK}, {hex(EPS5)}, v{KK}",
              (Op(f"v_rsq_f32 v{C1}, v{KK}"), 2), f"v_mul_f32 v{C1}, {hex(LOG2E | 0x80000000)}, v{C1}"]
        g = seg.stream(so, max(g, 30))
        so = [f"s_mul_i32 {sST}, {LB()}, {ACT_SZ}", f"s_mul_i32 {sST2}, {sTT2}, {54*1024}", f"s_add_u32 {sST}, {sST}, {sST2}",
              f"s_add_u32 {sST}, {sST}, {ACT}", f"s_lshl_b32 {sST2}, {sM}, 10", f"s_add_u32 {sST2}, {sST2}, {sST}"]
        g = seg.stream(so, max(g, 50))
        CSR = 226
        ET = 242
        def epi(t):
            ops = []
            for mat in range(2):
                for hh in range(2):
                    r = CSR + 8 * mat + 4 * hh
                    ops.append(Op(f"ds_read_b128 v[{r}:{r+3}], {vH16} offset:{L_CS3 + (2*t+mat)*64 + 32*hh}", lg=("c3", t)))
            d = acc(t)
            first = True
            for e in range(8):
                ops.append(Op(f"v_fmac_f32 v{d+e}, v{NM}, v{CSR+e}", wlg=[("c3", t)] if first else None)); first = False
                ops.append(f"v_fmac_f32 v{d+8+e}, v{NM}, v{CSR+8+e}")
            for k in range(0, 8, 4):
                streams = []
                for e in range(k, k + 4):
                    g_ = d + e; u_ = d + 8 + e; e_ = ET + e
                    streams.append([f"v_mul_f32 v{e_}, v{g_}, v{C1}",
                                    (Op(f"v_exp_f32 v{e_}, v{e_}"), 2),
                                    f"v_mul_f32 v{g_}, v{g_}, v{u_}",
                                    f"v_fma_f32 v{e_}, v{e_}, v{KK}, v{KK}",
                                    (Op(f"v_rcp_f32 v{e_}, v{e_}"), 2),
                                    f"v_mul_f32 v{g_}, v{g_}, v{e_}"])
                ops += il(streams)
            PK = d + 8
            for q in range(4): ops.append(f"v_cvt_pk_bf16_f32 v{PK+q}, v{d+2*q}, v{d+2*q+1}")
            if t < 6:
                ops.append(Op(f"s_add_u32 {sT0}, {sST2}, {(t >> 1) * 16384 + (t & 1) * 512}"))
                sto = cur['STO'] or ({1: " sc1", 2: " sc0 sc1", 3: " nt"}[opt.get("asm", 1)] if (opt.get("asc", 0) >> (t >> 1)) & 1 else "")
                ops.append(Op(f"buffer_store_dwordx4 v[{PK}:{PK+3}], {vA3}, {S_WS}, {sT0} offen{sto}", vm="ast"))
            else:
                sto = cur['STO'] or (" sc1" if (opt.get("asc", 0) >> 3) & 1 else "")
                ops.append(Op(f"buffer_store_dwordx2 v[{PK}:{PK+1}], {vACT6}, {S_WS}, {sST} offen{sto}", vm="ast"))
                ops.append(Op(f"s_mov_b64 exec, {sMK32}"))
                ops.append(Op(f"buffer_store_dwordx2 v[{PK+2}:{PK+3}], {vA3}, {S_WS}, {sP2} offen{sto}", vm="ast"))
                ops.append(Op("s_mov_b64 exec, -1"))
            return ops
        if PTK & 8 and PTM != 3:
            for p in range(1, 4): pt_place(seg, pt_act(p), max(20, pend[p - 1] - opt.get("pt3", 25)))
        ge = 0
        for p in range(3):
            for t in (2 * p, 2 * p + 1):
                ge = seg.stream(epi(t), max(pend[p] + 3, ge))
        so = [f"s_mul_i32 {sP0}, {sM}, 3", f"s_add_u32 {sP0}, {sP0}, 2", f"s_lshr_b32 {sP1}, {sP0}, 3", f"s_add_u32 {sP1}, {sP1}, 48", f"s_lshl_b32 {sP1}, {sP1}, 10",
              f"s_add_u32 {sP2}, {sST}, {sP1}", f"s_and_b32 {sP1}, {sP0}, 3", f"s_lshl_b32 {sP1}, {sP1}, 8", f"s_add_u32 {sP2}, {sP2}, {sP1}",
              f"s_bfe_u32 {sP1}, {sP0}, 0x10002", f"s_lshl_b32 {sP1}, {sP1}, 3", f"s_add_u32 {sP2}, {sP2}, {sP1}"]
        seg.stream(so, 225)
        if not opt.get('ls2'):
            for g in range(1, 268, 20): lstamp(seg, g)
        sys.stderr.write(f"K3: epilogue stream ends at gap {ge}; cost hist {[sum(1 for c in seg.cost if c == k) for k in range(12)]}\n")
        seg.emit(em)
        stamp()
        lin(epi(6))

    def finish_if(p):
        if stop <= 8 and (stop - 1) % 4 + 1 == p:
            lay = (stop - 1) // 4
            em.e(f"s_cmp_lg_u32 {sLAYER}, {lay}"); em.e(f"s_cbranch_scc1 Lstop{p}{cur['sfx']}")
            em.raw("    s_waitcnt vmcnt(0) lgkmcnt(0)")
            dump_stamps()
            em.e("s_endpgm")
            em.label(f"Lstop{p}{cur['sfx']}")
    prologue_end()
    pls()
    if opt.get("pls"):
        for k in range(pln[0]):
            if k > 5: break
            em.e(f"v_readfirstlane_b32 s96, v{236+k}"); em.e("s_nop 3"); em.e(f"v_writelane_b32 v0, s96, {58+k}")
    if PEEL:
        cnt_save = WStream.cnt
        ring.filled = -1
        nstamp[0] = 0; lsn[0] = 0
        stamp()
        K1_p1(True)
        stamp()
        join_state[0] = (ring.issued, ring.filled, ring.allowed, [t for t in em.vm if isinstance(t, tuple) and t[0] == "dma"], WStream.cnt)
        K1_first(True)
        WStream.cnt = cnt_save
        em.vm = [("dma", r) for r in range(HEAD + 1) for _ in range(4)]
    em.vm = [t for t in em.vm if isinstance(t, tuple) and t[0] == "dma"] + [t for t in em.vm if isinstance(t, tuple) and t[0] == "a"]
    head_vm = list(em.vm)
    cnt0 = WStream.cnt
    if MONO and stamps and not opt.get("lst", 0):
        em.e("v_writelane_b32 v0, s96, 62"); em.e("v_writelane_b32 v0, s97, 63")
    if MONO:
        em.e(f"s_cmp_lg_u32 {sMODE}, 0"); em.e("s_cbranch_scc1 Lm_layerS")
    for sfx, sto in (("F", ""), ("S", " sc1")):
        cur["sfx"] = sfx; cur["STO"] = sto; cur["LD"] = sto if not opt.get("ldsc1", 1) else " sc1"
        nstamp[0] = 0; lsn[0] = 0
        WStream.cnt = cnt0
        em.label(f"Lm_layer{sfx}")
        em.vm = list(head_vm); em.lg = []
        ring.filled = -1; ring.issued = HEAD; ring.allowed = 8; ring.q = []
        em.e(f"s_cmp_eq_u32 {sLAYER}, 1"); em.e(f"s_cselect_b32 s14, 0, {WS_END}")
        if opt.get("opt", 0): em.e(f"s_cselect_b32 s10, {2048*640*2}, 0")
        stamp()
        K1(); stamp(); finish_if(1)
        pf3(opt.get("pfb", 0), True)
        transition(1, 1, 9, ["ost"], 16, opt.get("d11", 0), opt.get("d12", 0), defer0=opt.get("df1", 0)); stamp()
        K24("K2", 20, False); stamp(); finish_if(2)
        pf3(opt.get("pfc", 0), True)
        transition(2, 2, 16, ["xst"], 18, opt.get("d21", 40), opt.get("d22", 0), defer0=opt.get("df2", 0)); stamp()
        K3(); stamp(); finish_if(3)
        transition(4, 4, 34, ["ast"], 36, opt.get("d31", 40), opt.get("d32", 0), defer0=opt.get("df3", 0)); stamp()
        K24("K4", 54, True); stamp(); finish_if(4)
        transition(5, 5, 53, ["xst"], 53, opt.get("d41", 40), 100, upto2=54 + HEAD, defer0=opt.get("df4", 0))
        if AH: k1_hoist(cur["LD"])
        stamp()
        assert ring.issued == 54 + HEAD and not ring.q, (ring.issued, ring.q)
        em.e(f"s_add_u32 {sLAYER}, {sLAYER}, 1"); em.e(f"s_add_u32 {sSTEP}, {sSTEP}, 5")
        em.e(f"s_branch Lm_layer{sfx}")
    em.label("Lm_done")
    em.e("s_endpgm")
    return em.lines


def build(opt):
    if opt.get("mono", 0):
        ml = gen_main(opt)
        ml, n2 = fix_hazards(ml)
        ref = open("interleave_layers__linear_attn_block__swiglu_ffn__prompt.s.ref").read() if opt.get("hdr", False) else ""
        hdr = [l for l in ref.split("\n") if l.startswith(";") and "@launch" not in l and "Override launch" not in l and "grid=ceil" not in l]
        out = hdr + [f"; @launch grid=(256,1,1) block=(256,1,1) lds={MAIN_LDS}",
               '.amdgcn_target "amdgcn-amd-amdhsa--gfx950"', ".text",
               f".globl {KNAME}", ".p2align 8", f".type {KNAME},@function"] + ml + [kdesc(KNAME, 512, 256, 102)]
        sys.stderr.write(f"nops inserted: main {n2}; main lines {len(ml)}\n")
        return "\n".join(out)
    pl = gen_prep("prep_kernel", stamp=opt.get("stamps", 0), k3b=opt.get("k3b", 12), wsoff=opt.get("wsoff", 0) << 20, zf=opt.get("zf", 0), hp=opt.get("hp", 0) and opt.get("kvh", 1))
    if opt.get("pst"):
        sfx = {1: " sc1", 2: " nt", 3: " sc0 sc1", 4: " sc1 nt"}[opt["pst"]]
        pl = [l + sfx if "buffer_store" in l else l for l in pl]
    pl, n1 = fix_hazards(pl)
    ml = gen_main(opt)
    ml, n2 = fix_hazards(ml)
    ref = open("interleave_layers__linear_attn_block__swiglu_ffn__prompt.s.ref").read() if opt.get("hdr", False) else ""
    hdr = [l for l in ref.split("\n") if l.startswith(";") and "@launch" not in l and "Override launch" not in l and "grid=ceil" not in l]
    out = hdr + [f"; @launch kernel=prep_kernel grid=({PREP_WGS},1,1) block=(256,1,1) lds={PREP_LDS}",
           f"; @launch kernel={KNAME} grid=(256,1,1) block=(256,1,1) lds={MAIN_LDS}",
           '.amdgcn_target "amdgcn-amd-amdhsa--gfx950"', ".text",
           ".globl prep_kernel", ".p2align 8", ".type prep_kernel,@function"] + pl + \
          [f".globl {KNAME}", ".p2align 8", f".type {KNAME},@function"] + ml + \
          [kdesc("prep_kernel", 112, 112), kdesc(KNAME, 512, 256, 102)]
    sys.stderr.write(f"nops inserted: prep {n1} main {n2}; main lines {len(ml)}\n")
    return "\n".join(out)


if __name__ == "__main__":
    opt = dict(k3b=10, asc=7, ptk=3, k2s=70, df2=1, d22=0, df3=1, d32=4, d31=0, d21=0, d41=0, hp=1, df4=1, k4w=150, peel=1, pa=2, pss=1, p1j=10, pcs=110, pst0=60)
    for a in sys.argv[1:]:
        k, v = a.split("="); opt[k] = int(v)
    print(build(opt))
```

```python
import sys
from asmlib import *
from layout import *
from gen_prep import gen_prep, kdesc, PREP_WGS, PREP_LDS

KNAME = "interleave_layers__linear_attn_block__swiglu_ffn__prompt_kernel"
NR = 9
MISC = 147456
MB = 131072
L_CS1 = MISC - MB; L_CS3 = MISC + 512 - MB; L_STAT = MISC + 1536 - MB; L_RED = MISC + 4096 - MB; L_KVB = MISC + 8192 - MB
MAIN_LDS = 163840
PH = {"K1": (0, 160), "K2": (10, 100), "K3": (17, 280), "K4": (35, 270)}
TOT_ROUNDS = 54
LOG2E = 0x3fb8aa3b
EPS6 = 0x358637bd
EPS5 = 0x3727c5ac
INV640 = 0x3acccccd

S_WS = "s[4:7]"; S_OUT = "s[8:11]"; S_WSN = "s[12:15]"
sW, sG, sM, sHALF, sC8, sLAYER = "s16", "s17", "s18", "s19", "s20", "s21"
sW4K, sW1K, sW2K = "s22", "s23", "s24"
sPW1, sPWO, sPW3, sPWD, sPWOp, sPW3p = "s25", "s26", "s27", "s28", "s29", "s30"
sDMA = "s31"; sA = "s32"; sT0, sT1, sT2, sT3 = "s33", "s34", "s35", "s36"
sFOWN, sFLINE, sKOWN, sKLINE = "s37", "s38", "s39", "s40"
sSTEP = "s41"; sTT2 = "s42"; sTT1 = "s43"
sFEX = "s[44:45]"
sMODE = "s46"; sSPIN = "s47"
sMK = ["s[48:49]", "s[50:51]", "s[52:53]", "s[54:55]", "s[56:57]", "s[58:59]"]
sXI = "s60"
sE6 = "s61"
sST = "s62"
sST2 = "s63"
sODD = "s64"
sXOFF, sXREM, sSTOFF, sAOFF, sOOFF = "s65", "s91", "s98", "s99", "s3"
sBIT2 = "s[66:67]"
sI8 = "s[68:69]"
sG23 = "s[70:71]"; sG3 = "s[72:73]"; sMK32 = "s[74:75]"
sTS = 76
sP0, sP1, sP2 = "s88", "s89", "s90"
PTD = "a255"
sR13, sR4, sRB, sRQ, sRT, sRT2 = "s84", "s85", "s86", "s87", "s100", "s101"
R13 = [4, 8, 12, 16]; R4V = [2, 14, 30, 42]
REGIONS = {"K1": [(0, 5, 20), (100, 3, 20)], "K2": [(0, 5, 20)], "K3": [(0, 4, 20), (80, 4, 20), (160, 4, 20), (240, 2, 20)], "K4": [(0, 5, 54)]}
ROTREG = {"K1": (sR13, R13), "K2": (sR13, R13), "K3": (sR13, R13), "K4": (sR4, R4V)}

vL16, vR1, vR2, vL16B = "v1", "v2", "v3", "v4"
vI4, vI4W, vG16, vG16W, vX3, vA3, vL8, vSTO, vACT6, vOREM, vOUT = [f"v{i}" for i in range(5, 16)]
vH16 = "v250"
RES = 16
WW = 36; NW = 16
ACC = 100
TMP = 212
CSVB = 140; RLB = 180


DBG = {}
class Seg:
    def __init__(s, cap=2):
        s.mf = []; s.gaps = [[]]; s.cost = [0]; s.cap = cap
    def n(s): return len(s.mf)
    def mfma(s, text, wvm=None, wlg=None):
        s.mf.append(Op(text, wvm=wvm, wlg=wlg)); s.gaps.append([]); s.cost.append(0)
        if wvm or wlg: s.cost[len(s.mf) - 1] += 1
        return len(s.mf) - 1
    def put(s, gap, op, cost=1):
        if isinstance(op, str): op = Op(op)
        gap = min(gap, len(s.gaps) - 1)
        s.gaps[gap].append(op); s.cost[gap] += cost
        return gap
    def place(s, op, earliest, cost=1, cap=None, latest=None):
        if cap is None: cap = s.cap
        g = max(0, min(earliest, len(s.gaps) - 1))
        last = len(s.gaps) - 1
        while g < last and s.cost[g] + cost > cap:
            if latest is not None and g >= latest: break
            g += 1
        return s.put(g, op, cost)
    def group(s, ops, earliest, maxcost=0):
        g = max(0, min(earliest, len(s.gaps) - 1))
        while g < len(s.gaps) - 1 and s.cost[g] > maxcost: g += 1
        for o in ops: s.put(g, o, 1)
        return g
    def stream(s, ops, earliest, cap=None, spacing=0):
        g = earliest
        for o in ops:
            c = 1
            if isinstance(o, tuple): o, c = o
            g = s.place(o, g, cost=c, cap=cap)
            g += spacing
        return g
    def emit(s, em):
        def keep(o):
            t = o.text
            if DBG.get("skipa") and t.startswith("buffer_load_dwordx4 a["): return False
            if DBG.get("skipw") and t.endswith(" lds"): return False
            if DBG.get("nobar") and t == "s_barrier":
                o.text = "s_nop 0"; return True
            if DBG.get("skipv") and t.startswith("v_") and not t.startswith(("v_mfma", "v_writelane")): return False
            if DBG.get("skipr") and t.startswith("ds_read"): return False
            return True
        for i in range(len(s.gaps)):
            for o in s.gaps[i]:
                if keep(o): em.op(o)
            if i < len(s.mf): em.op(s.mf[i])


STG0 = 160
vSTG0, vSTG1, vSTG2 = "v200", "v201", "v202"
def staged(r):
    n = DBG.get("stg", 0)
    return n and DBG.get("stg0", 26) <= r < DBG.get("stg0", 26) + n
class Ring:
    def __init__(s):
        s.issued = -1
        s.filled = -1
        s.allowed = -1
        s.q = []
    @staticmethod
    def info(r):
        rr = r % TOT_ROUNDS
        nxt = r >= TOT_ROUNDS
        for ph, (r0, nf) in PH.items():
            nrounds = (nf + 15) // 16
            if r0 <= rr < r0 + nrounds:
                k = rr - r0
                return ph, k, min(16, nf - 16 * k), nxt
        return None, 0, 0, nxt
    def jobs(s, r):
        ph, k, n, nxt = s.info(r)
        if ph is None: return []
        srd = S_WSN if nxt else S_WS
        pos = (r % NR) * 16384
        tag = ("dma", r)
        if staged(r):
            a0 = STG0 + 16 * (r - DBG.get("stg0", 26))
            va, off = (vSTG0, pos) if pos < 65536 else ((vSTG1, pos - 65536) if pos < 131072 else (vSTG2, pos - 131072))
            return [[Op(f"ds_write_b128 {va}, a[{a0+4*j}:{a0+4*j+3}] offset:{off + j*1024}", lg=("dmal", r), wvm=[("stg", r)])] for j in range(4)]
        if n > 8: c, m0s, base = 4, sW4K, {"K1": sPW1, "K2": sPWO, "K3": sPW3, "K4": sPWD}[ph]
        elif n > 4: c, m0s, base = 2, sW2K, sPW3p; assert ph == "K3" and n == 8
        else: c, m0s, base = 1, sW1K, sPWOp; assert ph == "K2" and n == 4
        nt = " nt" if (DBG.get("wnt", 0) >> {"K1": 0, "K2": 1, "K3": 2, "K4": 3}[ph]) & 1 else ""
        base4 = {"K1": sPW1, "K2": sPWO, "K3": sPW3, "K4": sPWD}[ph]
        pre = [Op(f"s_add_u32 m0, {m0s}, {pos}")]
        if not DBG.get("rot", 0):
            pre.append(Op(f"s_add_u32 {sDMA}, {base}, {(k % DBG.get('wmod', 1000))*16384}"))
        else:
            sR, rset = ROTREG[ph]
            regs = REGIONS[ph]
            def region(p):
                for i, (P0, cc, nb) in enumerate(regs):
                    if P0 <= p < P0 + cc * nb: return i
                return len(regs) - 1
            def setup(i):
                P0, cc, nb = regs[i]
                return [Op(f"s_mul_i32 {sRT}, {sR}, {cc}"), Op(f"s_lshl_b32 {sRQ}, {sW}, 2"), Op(f"s_add_u32 {sRQ}, {sRQ}, {sRT}"),
                        Op(f"s_lshl_b32 {sRT}, {sRT}, 10"), Op(f"s_add_u32 {sRB}, {base4}, {sRT}")]
            def addr(i, waves, dst):
                P0, cc, nb = regs[i]
                st = set()
                for w in waves:
                    for R in rset: st.add(16 * k + c * w + cc * R >= P0 + cc * nb)
                size = cc * nb * 1024
                if st == {False}: return [Op(f"s_add_u32 {dst}, {sRB}, {16384*k}")], False
                if st == {True}: return [Op(f"s_add_u32 {dst}, {sRB}, {(16384*k - size) & 0xffffffff}")], True
                assert c == 4
                T = P0 + cc * nb - 16 * k
                return [Op(f"s_add_u32 {dst}, {sRB}, {16384*k}"), Op(f"s_cmp_ge_u32 {sRQ}, {T}"), Op(f"s_cselect_b32 {sRT}, {size}, 0"),
                        Op(f"s_sub_u32 {dst}, {dst}, {sRT}")], None
            rw = [region(16 * k + c * w) for w in range(4)]
            prev_reg = region(16 * k - 4) if k > 0 else None
            if len(set(rw)) == 1:
                i = rw[0]
                if prev_reg != i: pre += setup(i)
                o, _ = addr(i, range(4), sDMA)
                pre += o
                if c != 4:
                    pre += [Op(f"s_sub_u32 {sDMA}, {sDMA}, {base4}"), Op(f"s_add_u32 {sDMA}, {sDMA}, {base}")]
            else:
                assert c == 4 and rw[0] == prev_reg and set(rw[1:]) == {rw[0] + 1}, (ph, k, rw)
                o, _ = addr(rw[0], [0], sRT2); pre += o
                pre += setup(rw[1])
                o, _ = addr(rw[1], [1, 2, 3], sDMA); pre += o
                pre += [Op(f"s_cmp_eq_u32 {sW}, 0"), Op(f"s_cselect_b32 {sDMA}, {sRT2}, {sDMA}")]
        out = []
        for j in range(c):
            ops = list(pre) if j == 0 else []
            ops.append(Op(f"buffer_load_dwordx4 {vL16}, {srd}, {sDMA} offen offset:{j*1024}{nt} lds", vm=tag))
            out.append(ops)
        return out
    def skip_virtual(s):
        while not s.q and s.issued < s.allowed and not s.jobs(s.issued + 1): s.issued += 1
    def next_round(s):
        r = s.issued + 1
        while not s.q and not s.jobs(r): r += 1
        return r
    def take(s):
        if not s.q:
            s.skip_virtual()
            if s.issued + 1 > s.allowed: return None
            s.q = s.jobs(s.issued + 1)
        j = s.q.pop(0)
        if not s.q:
            s.issued += 1
            s.skip_virtual()
        return j
    def emit(s, em, n=10**9, upto=None):
        k = 0
        while k < n:
            if upto is not None and s.next_round() > upto: break
            j = s.take()
            if j is None: break
            for o in j: em.op(o)
            k += 1
        return k


def wslot_addr(ph, f):
    r0, nf = PH[ph]
    r = r0 + f // 16
    a = (r % NR) * 16384 + (f % 16) * 1024
    if a < 65536: return vL16, a
    if a < 131072: return vR1, a - 65536
    return vR2, a - 131072


class WStream:
    cnt = 0
    def __init__(s, ring, seg, ph, SS=2, LA=10):
        s.ring = ring; s.seg = seg; s.ph = ph; s.SS = SS; s.LA = LA
        s.reg = {}; s.events = []
    def wreg(s, f):
        if f not in s.reg:
            s.reg[f] = WW + 4 * (WStream.cnt % NW); WStream.cnt += 1
        return s.reg[f]
    def reads(s, frags, first_use, last_use, force=(), nobar=(), wait_at=None, ming=0):
        seg = s.seg; ring = s.ring; r0, nf = PH[s.ph]
        prev = ming
        lastuse_slot = dict(getattr(s, 'lus', {}))
        filled = ring.filled
        lastbar = None
        rlast = r0 + frags[-1] // 16
        for f in frags:
            reg = s.reg[f]
            e = max(prev, first_use[f] - s.LA, lastuse_slot.get(reg, -1) + 1)
            lat = first_use[f] if wait_at is None else wait_at[f]
            e = max(0, min(e, lat))
            r = r0 + f // 16
            va, off = wslot_addr(s.ph, f)
            rd = Op(f"ds_read_b128 v[{reg}:{reg+3}], {va} offset:{off}", lg=("w", s.ph, f))
            need = r > filled
            want = (f % 16 == 0) and (r in force or (lastbar is not None and r - lastbar >= s.SS) or (lastbar is None and r - (r0 + frags[0] // 16) >= s.SS)) and r not in nobar
            if need or want:
                tgt = max(filled, min(r + s.SS - 1, rlast))
                g = e
                last = lat
                while g < last and seg.cost[g] + 1 > seg.cap: g += 1
                wt = [("dma", x) for x in range(filled + 1, tgt + 1) if not staged(x)]
                wl_ = [("dmal", x) for x in range(filled + 1, tgt + 1) if staged(x)]
                seg.put(g, Op("s_barrier", wvm=wt, wlg=wl_), 2)
                seg.put(g, rd, 1)
                filled = tgt
                prev = g
                lastbar = r
                s.events.append((g, r - 2 + NR, tgt))
            else:
                prev = seg.place(rd, e, latest=lat)
            lastuse_slot[reg] = last_use[f]
        s.lastbar = lastbar
        s.lus = lastuse_slot
        ring.filled = filled
    def vmem(s, ajobs, policy, rate=4.5, qd=36, backlog=0, margin=48, cap=None, burst0=True, stop=10**6):
        seg = s.seg; ring = s.ring
        if cap is None: cap = seg.cap
        n = len(seg.gaps)
        path = backlog
        ai = 0
        ev = list(s.events)
        def dma_deadline(r):
            for (g, al, tgt) in ev:
                if tgt >= r: return g
            return None
        evi = 0
        for (g, al, tgt) in ev:
            if g == 0: assert ring.issued >= tgt, ("rounds not issued before seg start", s.ph, tgt, ring.issued)
        for g in range(n):
            placed = 0
            while True:
                cands = []
                if ai < len(ajobs) and (len(ajobs[ai]) < 3 or g >= ajobs[ai][2]): cands.append((ajobs[ai][1], 0))
                r = ring.next_round()
                hard = dma_deadline(r)
                pe = policy(r)
                ok = (ring.q or r <= ring.allowed)
                if ok and (hard is not None or pe is not None):
                    dl = (hard - margin) if hard is not None else 10**6
                    start = pe if pe is not None else 0
                    if (g >= start and (hard is not None or g < stop)) or (hard is not None and g >= hard - 1): cands.append((dl, 1))
                    harddl = hard
                if not cands: break
                cands.sort()
                def isforced(c):
                    return (c[1] == 1 and hard is not None and g >= hard - 1) or (c[1] == 0 and g >= c[0])
                fc = [c for c in cands if isforced(c)]
                forced = bool(fc)
                dl, which = fc[0] if fc else cands[0]
                if not forced:
                    if path - g > qd: break
                    if (g > 0 or not burst0) and (seg.cost[g] + 1 > cap or placed >= 1): break
                if which == 0:
                    ops = ajobs[ai][0]; ai += 1
                else:
                    ops = ring.take(); assert ops is not None
                for o in ops: seg.put(g, o, 1)
                path = max(path, g) + rate
                placed += 1
            while evi < len(ev) and ev[evi][0] <= g:
                (eg, al, tgt) = ev[evi]; evi += 1
                assert ring.issued >= tgt, ("rounds not issued before barrier", s.ph, g, tgt, ring.issued)
                ring.allowed = max(ring.allowed, al)
        assert ai == len(ajobs)
        return path - n


def gen_main(opt):
    stop = opt.get("stop", 99)
    DBG.clear(); DBG.update(opt)
    stamps = opt.get("stamps", False)
    SS = opt.get("SS", 2)
    MARG = opt.get("marg", 72); QD = opt.get("qd", 36); RATE = opt.get("rate10", 45) / 10.0
    cur = {"sfx": "F", "STO": "", "LD": ""}
    em = Em()
    ring = Ring()
    WStream.cnt = 0
    nstamp = [0]
    def stamp():
        if not stamps: return
        k = nstamp[0]; nstamp[0] += 1
        em.raw(f"    s_waitcnt lgkmcnt(0)")
        em.e(f"s_memtime s[{sTS}:{sTS+1}]" if not opt.get("rt") else f"s_memrealtime s[{sTS}:{sTS+1}]")
        em.e(f"s_lshl_b32 s{sTS+2}, {sLAYER}, 4")
        em.e(f"s_add_u32 s{sTS+2}, s{sTS+2}, {k}")
        em.raw("    s_waitcnt lgkmcnt(0)")
        em.lg = []
        em.e(f"s_mov_b32 s{sTS+1}, m0")
        em.e(f"s_mov_b32 m0, s{sTS+2}"); em.e("s_nop 3")
        em.e(f"v_writelane_b32 v0, s{sTS}, m0")
        em.e(f"s_mov_b32 m0, s{sTS+1}")
    lsn = [0]
    def lstamp(seg, gap):
        if not opt.get("lst", 0): return
        lane = 32 + lsn[0]; lsn[0] += 1
        assert lane < 64
        rg = 96 if lane % 2 else 76
        seg.put(gap, f"s_memtime s[{rg}:{rg+1}]", 0)
        seg.put(gap + 12, f"v_writelane_b32 v0, s{rg}, {lane}", 0)
    def dump_stamps():
        if not stamps: return
        em.e("s_memrealtime s[96:97]")
        em.raw("    s_waitcnt lgkmcnt(0)")
        em.e("v_writelane_b32 v0, s92, 15"); em.e("v_writelane_b32 v0, s94, 30"); em.e("v_writelane_b32 v0, s96, 31")
        em.e(f"s_mov_b64 exec, s[{sTS+4}:{sTS+5}]")
        em.e(f"v_lshrrev_b32 v251, 2, {vL16}")
        em.e(f"v_add_u32 v251, s{sTS+3}, v251")
        em.e(f"global_store_dword v251, v0, s[{sTS+6}:{sTS+7}]")
        em.e("s_mov_b64 exec, -1")
        em.raw("    s_waitcnt vmcnt(0)")

    em.label(KNAME)
    em.e("s_cmp_ge_u32 s2, 256")
    em.e("s_cbranch_scc1 Lm_done")
    if stamps:
        em.e("s_memtime s[92:93]"); em.e("s_memrealtime s[94:95]")
    MONO = opt.get("mono", 0)
    if opt.get("sst"):
        em.e("s_memrealtime s[98:99]"); em.raw("    s_waitcnt lgkmcnt(0)"); em.e("s_mov_b32 s101, s98")
    if MONO:
        em.e("s_load_dwordx2 s[82:83], s[0:1], 64")
        MST = opt.get("mst", 0)
        for l in gen_prep("", mono=True, k3b=opt.get("k3b", 12), sfx={0: " sc1", 1: " sc0 sc1", 2: " sc1 nt", 3: "", 4: "", 5: " nt"}[MST], sx=opt.get("sx", 0), skipj=opt.get("skipj", 0)): em.raw(l)
        if opt.get("sx"):
            if opt["sx"] == 1: em.e("s_memrealtime s[78:79]")
            em.raw("    s_waitcnt vmcnt(0) lgkmcnt(0)")
            em.e("s_memrealtime s[76:77]"); em.raw("    s_waitcnt lgkmcnt(0)")
            if opt["sx"] == 1:
                em.e("v_mov_b32 v236, s101"); em.e("v_mov_b32 v237, s96"); em.e("v_mov_b32 v238, s78"); em.e("v_mov_b32 v239, s76")
            else:
                em.e("v_mov_b32 v236, s101"); em.e("v_mov_b32 v237, s80"); em.e("v_mov_b32 v238, s78"); em.e("v_mov_b32 v239, s96")
            em.e("s_lshl_b32 s33, s2, 4"); em.e("s_add_u32 s33, s33, 0x3000000"); em.e("v_mov_b32 v240, s33")
            em.e("s_cmp_lg_u32 s18, 0"); em.e("s_cbranch_scc1 Lm_done")
            em.e("s_mov_b64 exec, 1"); em.e("global_store_dwordx4 v240, v[236:239], s[16:17]"); em.e("s_endpgm")
        em.e(f"s_getreg_b32 {sMODE}, hwreg(HW_REG_XCC_ID)")
        em.e(f"s_lshr_b32 s33, {sMODE}, 12"); em.e("s_and_b32 s33, s33, 0x70"); em.e(f"s_and_b32 {sMODE}, {sMODE}, 15")
        em.e(f"s_or_b32 {sMODE}, {sMODE}, s33"); em.e(f"s_or_b32 {sMODE}, {sMODE}, 0x80")
        em.e(f"v_mov_b32 v254, {sMODE}"); em.e("v_mov_b32 v255, s2")
        em.raw("    s_waitcnt vmcnt(0) lgkmcnt(0)")
        em.e("s_barrier")
        em.e("s_cmp_lg_u32 s18, 0"); em.e("s_cbranch_scc1 Lm_nofl")
        if MST in (3, 5):
            em.e("buffer_wbl2 sc1"); em.raw("    s_waitcnt vmcnt(0)")
        em.e("s_mov_b64 exec, 1")
        em.e("global_store_byte v255, v254, s[82:83] sc1")
        em.e("s_mov_b64 exec, -1")
        em.label("Lm_nofl")
        if opt.get("sst"):
            em.e("s_memrealtime s[98:99]"); em.raw("    s_waitcnt lgkmcnt(0)"); em.e("s_mov_b32 s100, s98")
        if stamps:
            em.e("s_memtime s[96:97]"); em.raw("    s_waitcnt lgkmcnt(0)"); em.e("s_sub_u32 s96, s96, s92")
    pln = [0]
    def pls():
        if opt.get("pls") != 1: return
        em.e("s_memtime s[96:97]"); em.raw("    s_waitcnt lgkmcnt(0)"); em.e(f"v_mov_b32 v{236 + pln[0]}, s96"); pln[0] += 1
    em.e("s_load_dwordx2 s[8:9], s[0:1], 56"); em.e("s_load_dwordx2 s[10:11], s[0:1], 64")
    em.e("s_load_dwordx2 s[4:5], s[0:1], 72")
    em.e("v_lshrrev_b32 v2, 6, v0")
    em.e("v_and_b32 v0, 63, v0")
    em.e(f"v_readfirstlane_b32 {sW}, v2")
    em.e(f"v_lshlrev_b32 {vL16}, 4, v0")
    em.e("s_and_b32 s33, s2, 7"); em.e("s_lshr_b32 s34, s2, 3")
    em.e("s_and_b32 s35, s34, 1"); em.e(f"s_lshr_b32 {sM}, s34, 1")
    em.e("s_lshl_b32 s33, s33, 1"); em.e(f"s_add_u32 {sG}, s33, s35")
    em.e(f"s_and_b32 {sHALF}, {sM}, 1"); em.e(f"s_lshr_b32 {sC8}, {sM}, 1")
    em.e(f"s_lshl_b32 {sW4K}, {sW}, 12"); em.e(f"s_lshl_b32 {sW1K}, {sW}, 10"); em.e(f"s_lshl_b32 {sW2K}, {sW}, 11")
    def base(dst, reg0, sz, idx, wk, extra=0):
        em.e(f"s_mul_i32 {dst}, {idx}, {sz}"); em.e(f"s_add_u32 {dst}, {dst}, {reg0 + extra}"); em.e(f"s_add_u32 {dst}, {dst}, {wk}")
    base(sPW1, PW1, PW1_SZ, sM, sW4K); base(sPWO, PWO, PWO_SZ, sC8, sW4K)
    base(sPW3, PW3, PW3_SZ, sM, sW4K); base(sPWD, PWD, PWD_SZ, sC8, sW4K)
    base(sPWOp, PWO, PWO_SZ, sC8, sW1K); base(sPW3p, PW3, PW3_SZ, sM, sW2K)
    if opt.get("same", 0) & 1: base(sPW1, PW1, 0, sM, sW4K)
    if opt.get("same", 0) & 4: base(sPW3, PW3, 0, sM, sW4K); base(sPW3p, PW3, 0, sM, sW2K)
    if opt.get("same", 0) & 8: base(sPWD, PWD, 0, sC8, sW4K)
    em.e("s_waitcnt lgkmcnt(0)")
    pls()
    if stamps and not opt.get("rt") and not MONO:
        em.e(f"s_mov_b32 s{sTS+6}, s10"); em.e(f"s_mov_b32 s{sTS+7}, s11")
    if stamps and opt.get("rt"):
        em.e(f"s_add_u32 s{sTS+6}, s4, 0x3000000"); em.e(f"s_addc_u32 s{sTS+7}, s5, 0")
    if opt.get("wsoff", 0): em.e(f"s_add_u32 s4, s4, {opt['wsoff'] << 20}"); em.e("s_addc_u32 s5, s5, 0")
    em.e(f"s_mov_b32 s6, {WS_END}"); em.e("s_mov_b32 s7, 0x20000")
    em.e(f"s_mov_b32 s10, {0 if (opt.get('opt', 0) and opt.get('peel', 0)) else 2048*640*2}"); em.e("s_mov_b32 s11, 0x20000")
    em.e("s_mov_b32 s12, s4"); em.e("s_mov_b32 s13, s5"); em.e(f"s_mov_b32 s14, {WS_END}"); em.e("s_mov_b32 s15, 0x20000")
    em.e(f"s_and_b32 s33, {sG}, 1"); em.e(f"s_lshl_b32 s33, s33, 1"); em.e(f"s_add_u32 s33, s33, {sHALF}")
    if opt.get("rot", 0) == 2: em.e("s_mov_b32 s33, 0")
    em.e(f"s_lshl_b32 {sR13}, s33, 2"); em.e(f"s_add_u32 {sR13}, {sR13}, 4")
    em.e(f"s_mul_i32 {sR4}, s33, 12"); em.e(f"s_add_u32 {sR4}, {sR4}, 2"); em.e(f"s_cmp_ge_u32 s33, 2"); em.e(f"s_cselect_b32 s33, 4, 0"); em.e(f"s_add_u32 {sR4}, {sR4}, s33")
    HEAD = opt.get("head", 4)
    ring.allowed = 8
    if opt.get("probe"):
        pr = {1: [(sPW1, 0), (sPW1, 65536), (sOOFF, XB + 4096), (sPW1, 65536 + 64)],
              2: [(sOOFF, XB + 4096), (sOOFF, XB + 8192), (sPW3, 0), (sPWD, 0)],
              3: [(sOOFF, FLG_XCC), (sOOFF, ST), (sPW1, 0), (sPW1, 65536)]}[opt["probe"]]
        em.e(f"s_mul_i32 {sOOFF}, s2, 0")
        if opt["probe"] != 3: em.e(f"s_mul_i32 {sOOFF}, {sG}, {8*20480}")
        for (sr, off) in pr:
            em.e(f"s_add_u32 s33, {sr}, {off}")
            em.e(f"buffer_load_dword v241, off, {S_WS}, s33")
            em.raw("    s_waitcnt vmcnt(0)")
            pls()
        opt["pls"] = 2
    PEEL = opt.get("peel", 0) if not MONO else 0
    P1J = opt.get("p1j", 10)
    PA = opt.get("pa", 3)
    PBLK = [3, 6, 9, 12, 16, 19, 20]
    if PEEL:
        em.e(f"s_lshl_b32 s33, {sG}, 3"); em.e(f"s_lshl_b32 s34, {sW}, 1"); em.e(f"s_add_u32 {sTT2}, s33, s34")
        em.e(f"v_add_u32 {vL16B}, 20480, {vL16}")
        em.e(f"s_mul_i32 {sA}, {sTT2}, 20480"); em.e(f"s_add_u32 {sA}, {sA}, {XB}")
        b0 = 0
        for r in range(PA):
            if opt.get("pao", 0) == 0: ring.emit(em, upto=r)
            for b in range(b0, PBLK[r]):
                if b % 4 == 0 and b > 0: em.e(f"s_add_u32 {sA}, {sA}, 4096")
                for t in range(2):
                    rg = 80 * t + 4 * b
                    em.e(f"buffer_load_dwordx4 a[{rg}:{rg+3}], {vL16 if t == 0 else vL16B}, {S_WS}, {sA} offen offset:{(b % 4) * 1024}", vm=("a", b, t))
            b0 = PBLK[r]
            if opt.get("pao", 0) == 1: ring.emit(em, upto=r)
        ring.emit(em, upto=opt.get("pb", PA - 1))
    elif not MONO: ring.emit(em, upto=2)
    if opt.get("cpf", 0):
        NCH = opt["cpf"]
        em.e("s_lshr_b32 s33, s2, 3"); em.e("s_lshl_b32 s33, s33, 2"); em.e(f"s_add_u32 s33, s33, {sW}")
        em.e(f"s_cmp_ge_u32 s33, {NCH}"); em.e("s_cbranch_scc1 Lcpf_x")
        em.e("s_getpc_b64 s[86:87]")
        em.label("Lcpf_pc")
        em.e("s_lshl_b32 s33, s33, 13")
        em.e("v_lshlrev_b32 v252, 7, v0"); em.e("v_add_u32 v252, s33, v252")
        em.e("v_mov_b32 v253, s87"); em.e("v_add_co_u32 v252, vcc, s86, v252"); em.e("v_addc_co_u32 v253, vcc, 0, v253, vcc")
        em.e(f"global_load_dword {PTD}, v[252:253], off")
        em.label("Lcpf_x")
    pls()
    AH = opt.get("ah", 0) if not MONO and not PEEL else 0
    def k1_hoist(ld):
        em.e(f"s_mul_i32 {sA}, {sXI}, {X_SZ}"); em.e(f"s_mul_i32 {sT0}, {sTT2}, 20480")
        em.e(f"s_add_u32 {sA}, {sA}, {sT0}"); em.e(f"s_add_u32 {sA}, {sA}, {XB}")
        for b in range(AH):
            if b % 4 == 0 and b > 0: em.e(f"s_add_u32 {sA}, {sA}, 4096")
            for t in range(2):
                r = 80 * t + 4 * b
                em.e(f"buffer_load_dwordx4 a[{r}:{r+3}], {vL16 if t == 0 else vL16B}, {S_WS}, {sA} offen offset:{(b % 4) * 1024}{ld}", vm=("a", b, t))
    if AH:
        assert not opt.get("rot", 0)
        if opt.get("aho", 0) == 0: ring.emit(em, upto=HEAD)
        em.e(f"s_lshl_b32 s33, {sG}, 3"); em.e(f"s_lshl_b32 s34, {sW}, 1"); em.e(f"s_add_u32 {sTT2}, s33, s34")
        em.e(f"s_mov_b32 {sXI}, 0"); em.e(f"v_add_u32 {vL16B}, 20480, {vL16}")
        k1_hoist("")
    em.e(f"s_lshl_b32 s33, {sG}, 7")
    em.e(f"s_add_u32 {sFLINE}, s33, {FLG_G}"); em.e(f"s_lshl_b32 s34, {sM}, 2"); em.e(f"s_add_u32 {sFOWN}, {sFLINE}, s34")
    em.e(f"s_lshl_b32 s33, {sM}, 7"); em.e(f"s_add_u32 {sKLINE}, s33, {FLG_KV}"); em.e(f"s_lshl_b32 s34, {sG}, 2"); em.e(f"s_add_u32 {sKOWN}, {sKLINE}, s34")
    em.e(f"s_lshl_b32 s33, {sG}, 3")
    em.e(f"s_lshl_b32 s34, {sW}, 1"); em.e(f"s_add_u32 {sTT2}, s33, s34")
    em.e(f"s_lshl_b32 s34, {sHALF}, 2"); em.e(f"s_add_u32 s34, s34, {sW}"); em.e(f"s_add_u32 {sTT1}, s33, s34")
    em.e(f"s_cmp_eq_u32 {sW}, 0"); em.e("s_cselect_b32 s44, 1, 0"); em.e("s_mov_b32 s45, 0")
    em.e(f"s_mov_b32 {sLAYER}, 0"); em.e(f"s_mov_b32 {sSTEP}, 0"); em.e(f"s_mov_b32 {sXI}, 0")
    em.e(f"s_mov_b32 {sE6}, {EPS6}")
    em.e(f"s_and_b32 {sODD}, {sC8}, 1")
    em.e(f"s_lshr_b32 s33, {sC8}, 1"); em.e("s_mul_i32 s33, s33, 5")
    em.e(f"s_lshl_b32 s34, {sODD}, 1"); em.e("s_add_u32 s34, s34, s33"); em.e("s_lshl_b32 s34, s34, 10")
    em.e(f"s_add_u32 s33, s33, 4"); em.e("s_lshl_b32 s33, s33, 10"); em.e(f"s_sub_u32 {sXREM}, s33, s34")
    em.e(f"s_mul_i32 s35, {sTT1}, 20480"); em.e(f"s_add_u32 s34, s34, s35"); em.e(f"s_add_u32 {sXOFF}, s34, {XB}")
    em.e(f"s_lshl_b32 s33, {sTT1}, 10"); em.e(f"s_lshl_b32 s34, {sC8}, 7"); em.e("s_add_u32 s33, s33, s34"); em.e(f"s_add_u32 {sSTOFF}, s33, {ST}")
    em.e(f"s_mul_i32 s33, {sTT2}, {54*1024}"); em.e(f"s_add_u32 {sAOFF}, s33, {ACT}")
    em.e(f"s_mul_i32 s33, {sTT2}, 20480"); em.e(f"s_add_u32 {sOOFF}, s33, {OB}")
    def m64(reg, val):
        a = int(reg[2:].split(":")[0])
        em.e(f"s_mov_b32 s{a}, {hex(val & 0xffffffff)}"); em.e(f"s_mov_b32 s{a+1}, {hex(val >> 32)}")
    m64(sMK[0], 0xFFFF); m64(sMK[1], 0xFFFF0000); m64(sMK[2], 0x0F000F000F000F00); m64(sMK[3], 0xF000F000F000F000)
    m64(sMK[4], 0x0F00); m64(sMK[5], 0xF0000000)
    m64(sBIT2, 0xF0F0F0F0F0F0F0F0); m64(sI8, 0x00FF00FF00FF00FF)
    m64(sG23, 0xFFFFFFFF00000000); m64(sG3, 0xFFFF000000000000); m64(sMK32, 0x00000000FFFFFFFF)
    if stamps:
        em.e(f"s_mov_b32 s{sTS+4}, 0"); em.e(f"s_mov_b32 s{sTS+5}, 0"); em.e(f"s_mov_b32 s{sTS+3}, {256 if MONO else 0}")
        em.e(f"s_sub_u32 s33, 0, s44")
        if opt.get("lst", 0) or MONO:
            em.e(f"s_cmp_eq_u32 s2, {opt.get('wg2', 0)}"); em.e(f"s_cselect_b32 s{sTS+4}, s33, 0"); em.e(f"s_mov_b32 s{sTS+5}, s{sTS+4}")
        if opt.get("rt"):
            em.e(f"s_mov_b32 s{sTS+4}, s33"); em.e(f"s_mov_b32 s{sTS+5}, 0"); em.e(f"s_lshl_b32 s{sTS+3}, s2, 7")
        elif not opt.get("lst", 0) and not MONO:
            em.e("s_cmp_eq_u32 s2, 0"); em.e(f"s_cselect_b32 s{sTS+4}, s33, 0")
            em.e(f"s_cmp_eq_u32 s2, {opt.get('wg2', 255)}"); em.e(f"s_cselect_b32 s{sTS+4}, s33, s{sTS+4}"); em.e(f"s_mov_b32 s34, {256 if MONO else 0}"); em.e(f"s_mov_b32 s35, {384 if MONO else 128}"); em.e(f"s_cselect_b32 s{sTS+3}, s35, s34")
    if not MONO:
        em.e(f"s_getreg_b32 {sMODE}, hwreg(HW_REG_XCC_ID)")
        em.e(f"s_and_b32 {sMODE}, {sMODE}, 0xffff"); em.e(f"s_add_u32 {sMODE}, {sMODE}, 1")
        em.e(f"v_mov_b32 v254, {sMODE}"); em.e("v_mov_b32 v255, 0")
        em.e(f"s_add_u32 s33, {sFOWN}, {FLG_XCC - FLG_G}")
        em.e(f"s_mov_b64 exec, {sFEX}")
        em.e(f"buffer_store_dword v254, v255, {S_WS}, s33 offen sc1")
        em.e("s_mov_b64 exec, -1")
    em.e("v_and_b32 v212, 15, v0"); em.e("v_lshrrev_b32 v213, 4, v0")
    em.e(f"v_add_u32 {vR1}, 0x10000, {vL16}"); em.e(f"v_add_u32 {vR2}, 0x20000, {vL16}"); em.e(f"v_add_u32 {vL16B}, 20480, {vL16}")
    em.e(f"v_lshlrev_b32 {vI4}, 2, v212"); em.e(f"v_add_u32 {vI4}, 0x20000, {vI4}")
    em.e(f"s_lshl_b32 s33, {sW}, 8")
    em.e(f"v_add_u32 {vI4W}, s33, {vI4}")
    em.e(f"v_lshlrev_b32 {vG16}, 4, v213"); em.e(f"v_add_u32 {vG16}, 0x20000, {vG16}"); em.e(f"v_add_u32 {vG16W}, s33, {vG16}")
    em.e("v_lshrrev_b32 v214, 5, v0"); em.e("v_bfe_u32 v215, v0, 4, 1")
    em.e("v_lshlrev_b32 v216, 8, v214"); em.e("v_lshlrev_b32 v217, 4, v212"); em.e("v_add_u32 v216, v216, v217")
    em.e(f"v_mul_u32_u24 v217, 20480, v215"); em.e(f"v_add_u32 {vX3}, v216, v217")
    em.e(f"v_mul_u32_u24 v217, {54*1024}, v215"); em.e(f"v_add_u32 {vA3}, v216, v217")
    em.e(f"v_lshlrev_b32 {vH16}, 4, v214"); em.e(f"v_add_u32 {vH16}, 0x20000, {vH16}")
    em.e(f"v_lshlrev_b32 {vL8}, 3, v0"); em.e(f"v_add_u32 {vL8}, 0x20000, {vL8}")
    em.e(f"v_lshlrev_b32 {vSTO}, 8, v213"); em.e("v_lshlrev_b32 v214, 3, v212"); em.e(f"v_add_u32 {vSTO}, {vSTO}, v214")
    em.e(f"s_mul_i32 s33, {sM}, 3"); em.e("v_lshrrev_b32 v214, 5, v0"); em.e("v_add_u32 v214, s33, v214")
    em.e("v_lshrrev_b32 v215, 3, v214"); em.e("v_add_u32 v215, 48, v215"); em.e("v_lshlrev_b32 v215, 10, v215")
    em.e("v_and_b32 v216, 3, v214"); em.e("v_lshlrev_b32 v216, 8, v216"); em.e("v_add_u32 v215, v215, v216")
    em.e("v_lshlrev_b32 v216, 4, v212"); em.e("v_add_u32 v215, v215, v216")
    em.e("v_bfe_u32 v216, v214, 2, 1"); em.e("v_lshlrev_b32 v216, 3, v216"); em.e(f"v_add_u32 v215, v215, v216")
    em.e("v_bfe_u32 v216, v0, 4, 1"); em.e(f"v_mul_u32_u24 v216, {54*1024}, v216"); em.e(f"v_add_u32 {vACT6}, v215, v216")
    em.e(f"s_lshr_b32 s33, {sM}, 2"); em.e("s_add_u32 s33, s33, 16"); em.e("s_lshl_b32 s33, s33, 10")
    em.e(f"s_and_b32 s34, {sM}, 1"); em.e("s_lshl_b32 s34, s34, 9"); em.e("s_add_u32 s33, s33, s34")
    em.e(f"s_bfe_u32 s34, {sM}, 0x10001"); em.e("s_lshl_b32 s34, s34, 3"); em.e("s_add_u32 s33, s33, s34")
    em.e("s_sub_u32 s33, s33, 512")
    em.e("v_lshlrev_b32 v215, 8, v213"); em.e("v_lshlrev_b32 v216, 4, v212"); em.e("v_add_u32 v215, v215, v216")
    em.e(f"v_add_u32 {vOREM}, s33, v215")
    em.e("v_mul_u32_u24 v215, 1280, v212"); em.e("v_lshlrev_b32 v216, 3, v213"); em.e(f"v_add_u32 {vOUT}, v215, v216")
    if MONO:
        em.e(f"s_cmp_lg_u32 {sW}, 0"); em.e("s_cbranch_scc1 Lm_sb_o")
        em.e("v_lshlrev_b32 v252, 2, v0")
        em.e(f"s_mov_b32 {sSPIN}, 0")
        em.label("Lm_sb_p")
        em.e("global_load_dword v253, v252, s[82:83] sc1")
        em.raw("    s_waitcnt vmcnt(0)")
        em.e("v_and_b32 v254, 0x80808080, v253")
        em.e("v_cmp_ne_u32 vcc, 0x80808080, v254")
        em.e(f"s_add_u32 {sSPIN}, {sSPIN}, 1")
        em.e(f"s_cmp_gt_u32 {sSPIN}, 200000")
        em.e("s_cbranch_scc1 Lm_sb_x")
        em.e("s_cbranch_vccnz Lm_sb_p")
        em.label("Lm_sb_x")
        em.e("s_and_b32 s33, s2, 3"); em.e("s_lshl_b32 s33, s33, 3")
        em.e("v_lshrrev_b32 v253, s33, v253"); em.e("v_and_b32 v253, 0xff, v253")
        em.e(f"v_cmp_ne_u32 vcc, {sMODE}, v253")
        em.e("s_bfe_u32 s33, s2, 0x20002"); em.e("s_mov_b32 s34, 0x11111111"); em.e("s_lshl_b32 s34, s34, s33"); em.e("s_mov_b32 s35, s34")
        em.e("s_and_b64 vcc, vcc, s[34:35]")
        em.e("s_cmp_lg_u64 vcc, 0"); em.e("s_cselect_b32 s33, 1, 0")
        if opt.get("force_slow", 0): em.e("s_mov_b32 s33, 1")
        em.e("v_mov_b32 v253, s33"); em.e(f"v_mov_b32 v252, {MISC + 12288}")
        em.e("ds_write_b32 v252, v253")
        em.raw("    s_waitcnt lgkmcnt(0)")
        em.label("Lm_sb_o")
        em.e("s_barrier")
        em.e(f"v_mov_b32 v252, {MISC + 12288}")
        em.e("ds_read_b32 v253, v252")
        ring.emit(em, upto=2)
        em.raw("    s_waitcnt lgkmcnt(0)")
        em.e(f"v_readfirstlane_b32 {sMODE}, v253")
        if opt.get("sst"):
            em.e("s_memrealtime s[76:77]"); em.raw("    s_waitcnt lgkmcnt(0)")
            em.e("v_mov_b32 v236, s101"); em.e("v_mov_b32 v237, s100"); em.e("v_mov_b32 v238, s76"); em.e("v_mov_b32 v239, 0")
            em.e("s_lshl_b32 s33, s2, 4"); em.e("s_add_u32 s33, s33, 0x3000000"); em.e("v_mov_b32 v240, s33")
            em.e("s_mov_b64 exec, 1"); em.e("global_store_dwordx4 v240, v[236:239], s[4:5]"); em.e("s_mov_b64 exec, -1")
        if stamps:
            em.e("s_memtime s[76:77]"); em.raw("    s_waitcnt lgkmcnt(0)"); em.e("s_sub_u32 s97, s76, s92")
    pls()
    em.e(f"s_mul_i32 s33, {sM}, 512"); em.e(f"s_add_u32 s33, s33, {CS1}")
    em.e(f"s_mul_i32 s34, {sM}, 896"); em.e(f"s_add_u32 s34, s34, {CS3}")
    em.e("v_and_b32 v214, 31, v0"); em.e("v_lshlrev_b32 v214, 4, v214"); em.e("v_lshrrev_b32 v215, 5, v0")
    em.e("v_mul_u32_u24 v215, 81920, v215"); em.e("v_add_u32 v214, v214, v215"); em.e("v_add_u32 v214, s33, v214")
    em.e(f"v_add_u32 v215, s34, {vL16}")
    em.e("v_mov_b32 v216, 0x7ffffff0")
    em.e("v_cmp_gt_u32 vcc, 56, v0"); em.e("v_cndmask_b32 v215, v216, v215, vcc")
    em.e(f"s_cmp_eq_u32 {sW}, 0"); em.e("s_mov_b32 s36, 14336"); em.e("s_cselect_b32 s36, 8192, s36"); em.e("s_cselect_b64 vcc, -1, 0")
    em.e("v_cndmask_b32 v214, v215, v214, vcc")
    em.e(f"s_cmp_ge_u32 {sW}, 2"); em.e("s_cselect_b64 vcc, -1, 0")
    em.e("v_cndmask_b32 v214, v214, v216, vcc")
    for k in range(10):
        em.e(f"buffer_load_dwordx4 v[{CSVB+4*k}:{CSVB+4*k+3}], v214, {S_WS}, 0 offen", vm="cs")
        if k < 9: em.e("v_add_u32 v214, s36, v214")
    RL = RLB
    em.e(f"s_lshr_b32 s33, {sC8}, 1"); em.e("s_mul_i32 s33, s33, 5")
    em.e(f"s_lshl_b32 s34, {sODD}, 1"); em.e("s_add_u32 s34, s34, s33")
    em.e(f"s_mul_i32 s35, {sTT1}, 20480"); em.e(f"s_add_u32 s35, s35, {XB}")
    em.e("s_lshl_b32 s34, s34, 10"); em.e("s_add_u32 s34, s34, s35")
    em.e(f"buffer_load_dwordx4 v[{RL}:{RL+3}], {vL16}, {S_WS}, s34 offen", vm="res")
    em.e(f"buffer_load_dwordx4 v[{RL+4}:{RL+7}], {vL16}, {S_WS}, s34 offen offset:1024", vm="res")
    em.e("s_add_u32 s33, s33, 4"); em.e("s_lshl_b32 s33, s33, 10"); em.e("s_add_u32 s33, s33, s35")
    em.e(f"s_lshl_b32 s34, {sODD}, 3"); em.e("s_add_u32 s33, s33, s34")
    em.e(f"buffer_load_dwordx2 v[{RL+8}:{RL+9}], {vL16}, {S_WS}, s33 offen", vm="res")

    def poll(line, target_expr_sreg, lbl):
        em.e(f"s_mov_b32 {sSPIN}, 0")
        em.e(f"v_subrev_u32 v252, 0x20000, {vI4}")
        em.label(lbl)
        em.e(f"buffer_load_dword v253, v252, {S_WS}, {line} offen sc1")
        em.raw("    s_waitcnt vmcnt(0)")
        em.e(f"v_cmp_gt_u32 vcc, {target_expr_sreg}, v253")
        em.e(f"s_add_u32 {sSPIN}, {sSPIN}, 1")
        em.e(f"s_cmp_gt_u32 {sSPIN}, 20000")
        em.e(f"s_cbranch_scc1 {lbl}_x")
        em.e(f"s_cbranch_vccnz {lbl}")
        em.label(lbl + "_x")
    uid = [0]
    def wt(name, bit): return cur['STO'] or (" sc1" if opt.get(name, 0) & bit else "")
    def flag_store(own, val_sreg):
        em.e(f"v_mov_b32 v254, {val_sreg}")
        em.e("v_mov_b32 v255, 0")
        em.e(f"s_mov_b64 exec, {sFEX}")
        em.e(f"buffer_store_dword v254, v255, {S_WS}, {own} offen{cur['STO']}")
        em.e("s_mov_b64 exec, -1")
    def transition(pub, wait, last_round, sttags, need, d1, d2, upto2=None, defer0=False):
        uid[0] += 1; u = uid[0]
        if defer0:
            class Rec:
                def __init__(s_): s_.ops = []
                def op(s_, o): s_.ops.append(o)
            c1 = Rec(); ring.emit(c1, d1, upto=upto2)
            em.e(f"s_cmp_lg_u32 {sW}, 0"); em.e(f"s_cbranch_scc1 Lt{u}_a")
            vm0 = list(em.vm)
            em.wait(wvm=sttags)
            em.e(f"s_branch Lt{u}_b")
            em.label(f"Lt{u}_a")
            em.vm = vm0
            for o in c1.ops: em.op(o)
            em.wait(wvm=sttags)
            em.label(f"Lt{u}_b")
            em.e("s_barrier")
            ring.allowed = max(ring.allowed, last_round + NR)
            em.e(f"s_add_u32 {sT0}, {sSTEP}, {pub}")
            flag_store(sFOWN, sT0)
            c2 = Rec(); ring.emit(c2, d2, upto=upto2); ring.emit(c2, upto=need)
            assert ring.issued >= need
            em.e(f"s_cmp_lg_u32 {sW}, 0")
            em.e(f"s_cbranch_scc1 Lt{u}_c")
            em.e(f"s_add_u32 {sT0}, {sSTEP}, {wait}")
            poll(sFLINE, sT0, f"Lt{u}_p")
            if not (opt.get("dfskip", 0) and pub != 5):
                for o in c1.ops + c2.ops: em.raw("    " + o.text)
            em.e(f"s_branch Lt{u}_o")
            em.label(f"Lt{u}_c")
            for o in c2.ops: em.op(o)
            em.label(f"Lt{u}_o")
            em.wait(wvm=[("dma", x) for x in range(ring.filled + 1, need + 1)])
            ring.filled = max(ring.filled, need)
            em.e("s_barrier")
            return
        ring.emit(em, d1, upto=upto2)
        em.wait(wvm=sttags)
        em.e("s_barrier")
        ring.allowed = max(ring.allowed, last_round + NR)
        em.e(f"s_add_u32 {sT0}, {sSTEP}, {pub}")
        flag_store(sFOWN, sT0)
        ring.emit(em, d2, upto=upto2)
        ring.emit(em, upto=need)
        assert ring.issued >= need
        em.e(f"s_cmp_lg_u32 {sW}, 0")
        em.e(f"s_cbranch_scc1 Lt{u}_o")
        em.e(f"s_add_u32 {sT0}, {sSTEP}, {wait}")
        poll(sFLINE, sT0, f"Lt{u}_p")
        em.label(f"Lt{u}_o")
        em.wait(wvm=[("dma", x) for x in range(ring.filled + 1, need + 1)], wlg=[("dmal", x) for x in range(ring.filled + 1, need + 1)])
        ring.filled = max(ring.filled, need)
        em.e("s_barrier")

    def a_loads(n_tiles, nblk, ph, tagname, areg, m32=False):
        ops = []
        sR, rset = ROTREG[ph]
        rot = opt.get("rot", 0)
        for b in range(nblk):
            if b == 0 and rot:
                ops += [Op(f"s_lshl_b32 {sRT}, {sR}, 10"), Op(f"s_add_u32 {sA}, {sA}, {sRT}")]
            if b % 4 == 0 and b > 0:
                ops.append(Op(f"s_add_u32 {sA}, {sA}, 4096"))
                if rot and (nblk - b) in rset:
                    ops += [Op(f"s_cmp_eq_u32 {sR}, {nblk - b}"), Op(f"s_cselect_b32 {sRT}, {nblk*1024}, 0"), Op(f"s_sub_u32 {sA}, {sA}, {sRT}")]
            for t in range(n_tiles):
                r = areg(b, t)
                va = vL16 if t == 0 else vL16B
                off = (b % 4) * 1024
                if m32: va = vX3; off += 512 * t
                ops.append(Op(f"buffer_load_dwordx4 a[{r}:{r+3}], {va}, {S_WS}, {sA} offen offset:{off}{cur['LD']}", vm=(tagname, b, t)))
        return ops

    def a_jobs(al, dl):
        jobs = []; pend = []
        for o in al:
            pend.append(o)
            if o.vm is not None:
                jobs.append((pend, dl(o.vm[1]))); pend = []
        return jobs
    def stats_ops(base):
        ops = []
        for t in range(2):
            a = base + 4 * t; nm = base + 8 + 2 * t; rs = nm + 1; x = base + 12; y = base + 13
            ops.append(Op(f"v_add_f32 v{a}, v{a}, v{a+2}", wvm=[("st", t)]))
            ops.append(f"v_add_f32 v{a+1}, v{a+1}, v{a+3}")
            for sw in ("v_permlane32_swap_b32", "v_permlane16_swap_b32"):
                ops.append(f"v_mov_b32 v{x}, v{a}"); ops.append(f"v_mov_b32 v{y}, v{a+1}")
                ops.append(f"{sw} v{a}, v{x}"); ops.append(f"{sw} v{a+1}, v{y}")
                ops.append(f"v_add_f32 v{a}, v{a}, v{x}"); ops.append(f"v_add_f32 v{a+1}, v{a+1}, v{y}")
            ops.append(f"v_mul_f32 v{nm}, {hex(INV640 | 0x80000000)}, v{a}")
            ops.append(f"v_mul_f32 v{a+1}, {hex(INV640)}, v{a+1}")
            ops.append(f"v_fma_f32 v{a+1}, -v{nm}, v{nm}, v{a+1}")
            ops.append(f"v_max_f32 v{a+1}, 0, v{a+1}")
            ops.append(f"v_add_f32 v{a+1}, {hex(EPS5)}, v{a+1}")
            ops.append((Op(f"v_rsq_f32 v{rs}, v{a+1}"), 2))
        return ops
    def stats_loads(base):
        ops = []
        ops.append(Op(f"s_mul_i32 {sST}, {sXI}, {ST_SZ}"))
        ops.append(Op(f"s_lshl_b32 {sST2}, {sTT2}, 10"))
        ops.append(Op(f"s_add_u32 {sST}, {sST}, {sST2}"))
        ops.append(Op(f"s_add_u32 {sST}, {sST}, {ST}"))
        for t in range(2):
            a = base + 4 * t
            ops.append(Op(f"buffer_load_dwordx2 v[{a}:{a+1}], {vSTO}, {S_WS}, {sST} offen offset:{t*1024}{cur['LD']}", vm=("st", t)))
            ops.append(Op(f"buffer_load_dwordx2 v[{a+2}:{a+3}], {vSTO}, {S_WS}, {sST} offen offset:{t*1024+128}{cur['LD']}", vm=("st", t)))
        return ops
    def set_sA_x():
        em.e(f"s_mul_i32 {sA}, {sXI}, {X_SZ}"); em.e(f"s_mul_i32 {sT0}, {sTT2}, 20480")
        em.e(f"s_add_u32 {sA}, {sA}, {sT0}"); em.e(f"s_add_u32 {sA}, {sA}, {XB}")

    def phi_ops(acc, cs, nm, rs, rl, t1, t2):
        return [f"v_fmac_f32 v{acc}, v{nm}, v{cs}",
                f"v_mul_f32 v{t1}, v{acc}, v{rl}",
                (Op(f"v_exp_f32 v{t1}, v{t1} clamp"), 2),
                f"v_max_f32 v{acc}, 0, v{acc}",
                f"v_add_f32 v{t1}, {hex(EPS6)}, v{t1}",
                f"v_fma_f32 v{acc}, v{acc}, v{rs}, v{t1}"]
    def il(lists):
        out = []; k = 0
        while any(k < len(l) for l in lists):
            for l in lists:
                if k < len(l): out.append(l[k])
            k += 1
        return out
    def lin(ops):
        for o in ops:
            if isinstance(o, tuple): o = o[0]
            em.op(o)

    def reuse(): return cur["sfx"] == "F" and opt.get("reuse", 1)
    def LB(): return "0" if reuse() else sLAYER
    def pt(voff, srd, soff, imm=0):
        sc = {0: "", 1: " sc1", 2: " sc0", 3: " nt", 4: " sc0 sc1"}[opt.get("ptsc", 0)]
        if voff is None or opt.get("ptl", 0): return Op(f"buffer_load_dword {PTD}, off, {srd}, {soff} offset:{imm}{sc}", vm="pt")
        return Op(f"buffer_load_dword {PTD}, {voff}, {srd}, {soff} offen offset:{imm}{sc}", vm="pt")
    PTM = opt.get("ptm", 1); PTK = opt.get("ptk", 31)
    def PS(): return S_WSN if PTM == 2 else S_WS
    def pt_x(srd):
        return [f"s_mov_b32 {sP0}, 1" if reuse() else f"s_add_u32 {sP0}, {sXI}, 1", f"s_mul_i32 {sP1}, {sP0}, {X_SZ}", f"s_add_u32 {sP1}, {sP1}, {sXOFF}",
                pt(vL16, srd, sP1), pt(vL16, srd, sP1, 1024),
                f"s_add_u32 {sP1}, {sP1}, {sXREM}", pt(vL16, srd, sP1),
                f"s_mul_i32 {sP0}, {sP0}, {ST_SZ}", f"s_add_u32 {sP0}, {sP0}, {sSTOFF}", pt(None, srd, sP0)]
    def pt_act(p):
        ops = [f"s_mul_i32 {sP0}, {LB()}, {ACT_SZ}", f"s_add_u32 {sP0}, {sP0}, {sAOFF}"]
        if p < 3:
            ops += [f"s_lshl_b32 {sP1}, {sM}, 10", f"s_add_u32 {sP0}, {sP0}, {sP1}"]
            if p: ops.append(f"s_add_u32 {sP0}, {sP0}, {p*16384}")
            ops += [pt(vL16, PS(), sP0), f"s_add_u32 {sP0}, {sP0}, {54*1024}", pt(vL16, PS(), sP0)]
        else:
            ops += [pt(vACT6, PS(), sP0)]
        return ops
    def pt_o():
        return [f"s_mul_i32 {sP0}, {LB()}, {O_SZ}", f"s_add_u32 {sP0}, {sP0}, {sOOFF}",
                pt(vOREM, PS(), sP0), f"s_add_u32 {sP0}, {sP0}, 20480", pt(vOREM, PS(), sP0),
                f"s_lshl_b32 {sP1}, {sM}, 10", f"s_add_u32 {sP0}, {sP0}, {sP1}", pt(vL16, PS(), sP0), f"s_sub_u32 {sP0}, {sP0}, 20480", pt(vL16, PS(), sP0)]
    def pt_place(seg, ops, g):
        if cur["sfx"] != "F" or not opt.get("pt", 1): return g
        for o in ops:
            if isinstance(o, list): g = seg.group(o, g, maxcost=seg.cap - 1)
            else: g = seg.place(o, g)
        return g
    def pt_jobs(ops, earliest, dl):
        if cur["sfx"] != "F" or not opt.get("pt", 1): return []
        jobs = []; pend = []
        for o in ops:
            if isinstance(o, list):
                jobs.append((pend + [x if isinstance(x, Op) else Op(x) for x in o], dl, earliest)); pend = []
            elif isinstance(o, Op) and o.vm is not None:
                jobs.append((pend + [o], dl, earliest)); pend = []
            else: pend.append(o if isinstance(o, Op) else Op(o))
        assert not pend
        return jobs
    pfk = [0]
    def pf3(n, skip0):
        if cur["sfx"] != "F" or not n: return 0
        em.e(f"v_lshlrev_b32 v251, 3, {vL16}")
        em.e(f"s_and_b32 {sP1}, {sG}, 1"); em.e(f"s_lshl_b32 {sP1}, {sP1}, 15"); em.e(f"s_add_u32 {sP1}, {sP1}, {sPW3}"); em.e(f"s_add_u32 {sP1}, {sP1}, {sW4K}")
        uid[0] += 1; u = uid[0]
        if skip0:
            em.e(f"s_cmp_lg_u32 {sW}, 0"); em.e(f"s_cbranch_scc1 Lpf{u}_a")
            em.raw("    s_waitcnt vmcnt(0)")
            em.e(f"s_branch Lpf{u}_b")
            em.label(f"Lpf{u}_a")
        for k in range(n):
            em.e(f"s_add_u32 {sP0}, {sP1}, {opt.get('pfo', 32768) + 65536 * pfk[0]}"); pfk[0] += 1
            em.e(f"buffer_load_dword {PTD}, v251, {S_WS}, {sP0} offen", vm="pt")
        if skip0: em.label(f"Lpf{u}_b")
        return n
    def pf_place(seg, ph, off, key, nxt=False): pass
    def pf_now(ph, off, key, nxt=False): pass
    def prologue_end():
        if opt.get("xh", 1) and not MONO:
            em.e(f"s_add_u32 s33, {sFLINE}, {FLG_XCC - FLG_G}")
            em.e(f"v_subrev_u32 v252, 0x20000, {vI4}")
            em.e(f"buffer_load_dword v251, v252, {S_WS}, s33 offen sc1")
        if opt.get("fpt", 0): em.e(f"buffer_load_dword {PTD}, off, {S_WS}, {sFLINE}", vm="pt")
        if PEEL: return
        if PTM == 3 and opt.get("ptpos", 0) == 0: pt_all()
        ring.emit(em, upto=HEAD)
        if PTM == 3 and opt.get("ptpos", 0) == 1: pt_all()
        assert ring.issued == HEAD and not ring.q
    def pt_all():
        ops = (pt_o() if PTK & 1 else []) + (pt_x(S_WS) if PTK & 2 else []) + (pt_act(0) if PTK & 4 else [])
        if PTK & 8: ops += pt_act(1) + pt_act(2) + pt_act(3)
        for o in ops: em.op(o if isinstance(o, Op) else Op(o))
    join_state = [None]
    def K1_p1(peel):
        AX = lambda b, t: 80 * t + 4 * b
        SB = TMP
        NM4 = 226
        P1 = ACC
        nh = PBLK[PA - 1] if peel else AH
        if not nh: set_sA_x()
        seg = Seg(); ws = WStream(ring, seg, "K1", SS=(opt.get("pss", SS) if peel else SS))
        fu = {}; lu = {}
        for b in range(20):
            for t in range(5):
                f = b * 5 + t; wr = ws.wreg(f)
                for tok in range(2):
                    d = P1 + 8 * t + 4 * tok
                    c = "0" if b == 0 else f"v[{d}:{d+3}]"
                    wl = [("w", "K1", b * 5 + 4)] if (t == 0 and tok == 0) else None
                    wv = [("a", b, 1)] if (t == 0 and tok == 0) else None
                    i = seg.mfma(f"v_mfma_f32_16x16x32_bf16 v[{d}:{d+3}], a[{AX(b,tok)}:{AX(b,tok)+3}], v[{wr}:{wr+3}], {c}", wvm=wv, wlg=wl)
                    if t == 0 and tok == 0: g0 = i
                    fu.setdefault(f, g0); lu[f] = i
        if peel: cur["LD"] = ""
        al = a_loads(2, 20, "K1", "a", AX)
        sl = stats_loads(SB)
        for o in sl: seg.put(0, o, 0)
        ws.reads(list(range(100)), fu, lu, force=(6,))
        if peel:
            ws.vmem(a_jobs(al, lambda b: 10 * b - opt.get("pal", 60))[2 * nh:], lambda r: (0 if r <= 6 else opt.get("p7", 0)) if r <= P1J else None, margin=opt.get("pmarg", MARG), qd=opt.get("pqd", QD), rate=opt.get("pr1", 38) / 10.0)
        else:
            ws.vmem(a_jobs(al, lambda b: 10 * b - 30)[2 * nh:], lambda r: 0 if r <= 6 else (opt.get("k1w", 0) if r <= P1J or not PEEL else None), margin=MARG, qd=QD, rate=opt.get("r1", 38) / 10.0)
        so = stats_ops(SB)
        for t in range(2):
            nm = SB + 8 + 2 * t
            so.append(Op(f"ds_write_b32 {vI4W}, v{nm} offset:{L_STAT + t*128}", lg="sw"))
            so.append(Op(f"ds_write_b32 {vI4W}, v{nm+1} offset:{L_STAT + t*128 + 64}", lg="sw"))
        for t in range(2):
            so.append(Op(f"ds_read_b128 v[{NM4+8*t}:{NM4+8*t+3}], {vG16W} offset:{L_STAT + t*128}", lg="sr", wlg=["sw"]))
            so.append(Op(f"ds_read_b128 v[{NM4+8*t+4}:{NM4+8*t+7}], {vG16W} offset:{L_STAT + t*128 + 64}", lg="sr"))
        for t in range(2):
            for r in range(4):
                so.append(Op(f"v_mul_f32 v{242+4*t+r}, {hex(LOG2E)}, v{NM4+8*t+4+r}", wlg=["sr"]))
        seg.stream(so, opt.get("pst0", 100) if peel else 40)
        if peel and opt.get("pcs", 0):
            co = []
            for k in range(1, 10):
                for q in range(4): co.append(Op(f"v_add_f32 v{CSVB+q}, v{CSVB+q}, v{CSVB+4*k+q}", wvm=["cs"] if (k == 1 and q == 0) else None))
            for q in range(4):
                co.append(f"v_mov_b32 v{CSVB+4+q}, v{CSVB+q}"); co.append(f"v_mov_b32 v{CSVB+8+q}, v{CSVB+q}")
            for q in range(4): co.append(f"v_permlane32_swap_b32 v{CSVB+4+q}, v{CSVB+8+q}")
            g = seg.stream(co, opt["pcs"], cap=4); co = []
            g = seg.group([Op(f"s_cmp_eq_u32 {sW}, 0"), Op("s_cselect_b64 vcc, -1, 0")], g, maxcost=10)
            for q in range(4):
                co.append(f"v_add_f32 v{CSVB+4+q}, v{CSVB+4+q}, v{CSVB+8+q}")
                co.append(f"v_cndmask_b32 v{CSVB+q}, v{CSVB+q}, v{CSVB+4+q}, vcc")
            for q in range(10):
                co.append(Op(f"v_lshlrev_b32 v{RES+2*q}, 16, v{RLB+q}", wvm=["res"] if q == 0 else None))
                co.append(f"v_and_b32 v{RES+2*q+1}, 0xffff0000, v{RLB+q}")
            g = seg.stream(co, g, cap=4)
            grp = [f"s_cmp_eq_u32 {sW}, 0", f"s_mov_b32 {sT0}, {L_CS3}", f"s_cselect_b32 {sT0}, {L_CS1}, {sT0}", f"s_cselect_b32 {sT1}, 32, 56",
                   f"s_cmp_ge_u32 {sW}, 2", f"s_cselect_b32 {sT1}, 0, {sT1}", f"v_add_u32 v254, {sT0}, {vR2}", f"v_lshrrev_b32 v255, 4, {vL16}",
                   f"v_cmp_gt_u32 vcc, {sT1}, v255", "s_and_saveexec_b64 s[34:35], vcc", Op(f"ds_write_b128 v254, v[{CSVB}:{CSVB+3}]", lg="csw"), "s_mov_b64 exec, s[34:35]"]
            g = seg.group([o if isinstance(o, Op) else Op(o) for o in grp], g + 1, maxcost=10)
            gl = ws.events[-1][0]
            assert g < gl, (g, gl)
            nb = 0
            for o in seg.gaps[gl]:
                if o.text == "s_barrier": o.wlg = list(o.wlg or []) + ["csw"]; nb += 1
            assert nb == 1
        for g in ((1, 50, 100, 150) if not opt.get('ls2') else range(1, 200, 20)): lstamp(seg, g)
        seg.emit(em)
        if PEEL: ring.emit(em, upto=P1J)
        sys.stderr.write(f"p1 end: issued {ring.issued} q {len(ring.q)} filled {ring.filled} allowed {ring.allowed} vm {em.vm} ev {ws.events}\n")
        return ws
    def K1_first(peel):
        if peel and opt.get("pcs", 0): K1_sel(peel); return
        for k in range(1, 10):
            for q in range(4): em.e(f"v_add_f32 v{CSVB+q}, v{CSVB+q}, v{CSVB+4*k+q}")
        for q in range(4):
            em.e(f"v_mov_b32 v{CSVB+4+q}, v{CSVB+q}"); em.e(f"v_mov_b32 v{CSVB+8+q}, v{CSVB+q}")
        for q in range(4):
            em.e(f"v_permlane32_swap_b32 v{CSVB+4+q}, v{CSVB+8+q}")
        em.e(f"s_cmp_eq_u32 {sW}, 0"); em.e("s_cselect_b64 vcc, -1, 0")
        for q in range(4):
            em.e(f"v_add_f32 v{CSVB+4+q}, v{CSVB+4+q}, v{CSVB+8+q}")
            em.e(f"v_cndmask_b32 v{CSVB+q}, v{CSVB+q}, v{CSVB+4+q}, vcc")
        em.e(f"s_cmp_eq_u32 {sW}, 0"); em.e(f"s_mov_b32 {sT0}, {L_CS3}"); em.e(f"s_cselect_b32 {sT0}, {L_CS1}, {sT0}"); em.e(f"s_cselect_b32 {sT1}, 32, 56")
        em.e(f"s_cmp_ge_u32 {sW}, 2"); em.e(f"s_cselect_b32 {sT1}, 0, {sT1}")
        em.e(f"v_add_u32 v254, {sT0}, {vR2}")
        em.e(f"v_lshrrev_b32 v255, 4, {vL16}")
        em.e(f"v_cmp_gt_u32 vcc, {sT1}, v255")
        em.e("s_and_saveexec_b64 s[34:35], vcc")
        em.e(f"ds_write_b128 v254, v[{CSVB}:{CSVB+3}]")
        em.e("s_mov_b64 exec, s[34:35]")
        for q in range(10):
            em.e(f"v_lshlrev_b32 v{RES+2*q}, 16, v{RLB+q}")
            em.e(f"v_and_b32 v{RES+2*q+1}, 0xffff0000, v{RLB+q}")
        em.raw("    s_waitcnt lgkmcnt(0)")
        em.e("s_barrier")
        K1_sel(peel)
    def K1_sel(peel):
        if cur["sfx"] == "F" and not MONO:
            uid[0] += 1; u = uid[0]
            em.e(f"s_add_u32 {sT1}, {sFLINE}, {FLG_XCC - FLG_G}")
            if opt.get("xh", 1):
                em.e(f"v_mov_b32 v253, v251")
                em.e(f"v_cmp_gt_u32 vcc, 1, v253")
                em.e(f"s_cbranch_vccz Lx{u}_p_x")
            poll(sT1, "1", f"Lx{u}_p")
            em.e(f"v_cmp_ne_u32 vcc, {sMODE}, v253")
            if opt.get("force_slow", 0): em.e("s_branch Lk1_nocsS")
            em.e("s_cbranch_vccnz Lk1_nocsS")
        if peel: em.e("s_branch Lk1_nocsF")
    def K1():
        AX = lambda b, t: 80 * t + 4 * b
        SB = TMP; NM4 = 226; P1 = ACC
        ws = K1_p1(False)
        stamp()
        svm = list(em.vm)
        if PEEL:
            svm = [t for t in svm if isinstance(t, tuple) and t[0] == "dma"]
            js = join_state[0]
            assert (ring.issued, ring.filled, ring.allowed, WStream.cnt) == (js[0], js[1], js[2], js[4]), ((ring.issued, ring.filled, ring.allowed, WStream.cnt), js)
            na, nb_ = len(svm), len(js[3])
            if na <= nb_: assert js[3][nb_ - na:] == svm; svm = list(js[3])
            else: assert svm[na - nb_:] == js[3]
        else:
            em.e(f"s_cmp_lg_u32 {sLAYER}, 0"); em.e(f"s_cbranch_scc1 Lk1_nocs{cur['sfx']}")
            K1_first(False)
        em.label(f"Lk1_nocs{cur['sfx']}")
        em.vm = svm; em.lg = []
        em.raw("    s_waitcnt lgkmcnt(0)")
        if not opt.get('k1n', 1):
            CS = 140
            for t in range(5):
                em.e(f"ds_read_b32 v{CS+t}, {vI4} offset:{L_CS1 + t*64}", lg="cs")
            KF = 148
            T1, T2 = 172, 173
            def nmr(tok, r): return NM4 + 8 * tok + r
            def rsr(tok, r): return NM4 + 8 * tok + 4 + r
            def rlr(tok, r): return 242 + 4 * tok + r
            em.wait(wlg=["cs"])
            XV = 176
            ops = []
            streams = []
            tmpc = [180]
            for (t, fr_) in ((0, KF), (1, KF + 4), (4, KF + 16)):
                for tok in range(2):
                    for r in range(4):
                        a = P1 + 8 * t + 4 * tok + r
                        tt = 184 + (len(streams) % 8)
                        if t == 4:
                            s_ = [f"v_fmac_f32 v{a}, v{nmr(tok,r)}, v{CS+t}",
                                  f"v_mul_f32 v{XV+4*tok+r}, v{a}, v{rsr(tok,r)}",
                                  f"v_mul_f32 v{tt}, v{a}, v{rlr(tok,r)}",
                                  f"v_exp_f32 v{tt}, v{tt} clamp",
                                  f"v_max_f32 v{a}, 0, v{a}",
                                  f"v_add_f32 v{tt}, {hex(EPS6)}, v{tt}",
                                  f"v_fma_f32 v{a}, v{a}, v{rsr(tok,r)}, v{tt}"]
                        else:
                            s_ = [x[0] if isinstance(x, tuple) else x for x in phi_ops(a, CS + t, nmr(tok, r), rsr(tok, r), rlr(tok, r), tt, None)]
                        streams.append(s_)
            for k in range(0, len(streams), 4):
                lin(il(streams[k:k + 4]))
                ring.emit(em, 4)
            for t in (2, 3):
                for tok in range(2):
                    for r in range(4):
                        a = P1 + 8 * t + 4 * tok + r
                        em.e(f"v_fmac_f32 v{a}, v{nmr(tok,r)}, v{CS+t}")
                    for r in range(4):
                        a = P1 + 8 * t + 4 * tok + r
                        em.e(f"v_mul_f32 v{a}, v{a}, v{rsr(tok,r)}")
            for k in range(8):
                em.e(f"v_cndmask_b32 v{XV+k}, v{XV+k}, 1.0, {sI8}")
            def pack(dst, src_tok0, src_tok1):
                em.e(f"v_cvt_pk_bf16_f32 v{dst}, v{src_tok0}, v{src_tok0+1}"); em.e(f"v_cvt_pk_bf16_f32 v{dst+1}, v{src_tok0+2}, v{src_tok0+3}")
                em.e(f"v_cvt_pk_bf16_f32 v{dst+2}, v{src_tok1}, v{src_tok1+1}"); em.e(f"v_cvt_pk_bf16_f32 v{dst+3}, v{src_tok1+2}, v{src_tok1+3}")
            K0f, K1f, V0f, V1f, XKf, XPf = KF, KF + 4, KF + 8, KF + 12, KF + 16, KF + 20
            pack(K0f, P1 + 0, P1 + 4); pack(K1f, P1 + 8, P1 + 12); pack(V0f, P1 + 16, P1 + 20); pack(V1f, P1 + 24, P1 + 28)
            pack(XKf, P1 + 32, P1 + 36); pack(XPf, XV, XV + 4)
            D = 184
            for k, (A_, B_) in enumerate([(K0f, V0f), (K1f, V1f), (XKf, V0f), (XKf, V1f), (K0f, XPf), (K1f, XPf), (XKf, XPf)]):
                em.e(f"v_mfma_f32_16x16x32_bf16 v[{D+4*k}:{D+4*k+3}], v[{A_}:{A_+3}], v[{B_}:{B_+3}], 0")
            D1, D2, D3, D4, D5, D6, D7 = [D + 4 * k for k in range(7)]
            for r in range(4):
                em.e(f"v_cndmask_b32 v{D5+r}, v{D5+r}, v{D6+r}, {sBIT2}")
                em.e(f"v_cndmask_b32 v{D3+r}, v{D3+r}, v{D4+r}, {sMK[1]}")
            for r in range(4):
                em.e(f"v_permlane32_swap_b32 v{D3+r}, v{D7+r}")
            ring.emit(em, upto=13)
            assert ring.issued <= 13 and ring.next_round() <= 14 and not ring.q and ws.lastbar >= 6, (ring.issued, ws.lastbar)
            RP = (14 % NR) * 16384 - 65536
            em.e(f"v_add_u32 v254, {sW1K}, {vR1}"); em.e(f"v_add_u32 v255, {sW4K}, {vR1}")
            for t, src in enumerate((D1, D2, D5, D3)):
                em.e(f"ds_write_b128 v254, v[{src}:{src+3}] offset:{RP + t*4096}", lg="red")
            em.wait_all_lg()
            em.wait(wvm=[("dma", x) for x in range(ring.filled + 1, 9)])
            ring.filled = 8
            em.e("s_barrier")
            for k in range(4):
                em.e(f"ds_read_b128 v[{D+4*k}:{D+4*k+3}], v255 offset:{RP + k*1024}", lg=("rr", k))
            em.e(f"s_mul_i32 {sST}, {sLAYER}, {KVP_L}"); em.e(f"s_lshl_b32 {sST2}, {sM}, 16"); em.e(f"s_add_u32 {sST}, {sST}, {sST2}")
            em.e(f"s_add_u32 {sST}, {sST}, {KVP}"); em.e(f"s_add_u32 {sST}, {sST}, {sW1K}")
            em.e(f"s_lshl_b32 {sST2}, {sG}, 12"); em.e(f"s_add_u32 {sST2}, {sST2}, {sST}")
            for q in range(4): em.e(f"v_add_f32 v{D+q}, v{D+q}, v{D+4+q}", wlg=[("rr", 1)] if q == 0 else None)
            for q in range(4): em.e(f"v_add_f32 v{D+8+q}, v{D+8+q}, v{D+12+q}", wlg=[("rr", 3)] if q == 0 else None)
            for q in range(4): em.e(f"v_add_f32 v{D+q}, v{D+q}, v{D+8+q}")
            em.e(f"buffer_store_dwordx4 v[{D}:{D+3}], {vL16}, {S_WS}, {sST2} offen sc1", vm="kvst")
            stamp()
            P2 = ACC
            seg = Seg(); ws2 = WStream(ring, seg, "K1", SS=SS)
            fu = {}; lu = {}
            for b in range(20):
                for t in range(3):
                    f = 100 + 3 * b + t; wr = ws2.wreg(f)
                    for tok in range(2):
                        d = P2 + 8 * t + 4 * tok
                        c = "0" if b == 0 else f"v[{d}:{d+3}]"
                        wl = [("w", "K1", 100 + 3 * b + 2)] if (t == 0 and tok == 0) else None
                        i = seg.mfma(f"v_mfma_f32_16x16x32_bf16 v[{d}:{d+3}], v[{wr}:{wr+3}], a[{AX(b,tok)}:{AX(b,tok)+3}], {c}", wlg=wl)
                        if t == 0 and tok == 0: g0 = i
                        fu.setdefault(f, g0); lu[f] = i
            ws2.reads(list(range(100, 160)), fu, lu, nobar=(7, 8))
            assert len(ws2.events) == 1
            gb = ws2.events[0][0]
            for o in seg.gaps[gb]:
                if o.text == "s_barrier": o.wvm = list(o.wvm) + ["kvst"]
            pub = [Op(f"s_add_u32 {sT0}, {sLAYER}, 1"),
                   Op(f"v_mov_b32 v254, {sT0}"), Op("v_mov_b32 v255, 0"),
                   Op(f"s_mov_b64 exec, {sFEX}"),
                   Op(f"buffer_store_dword v254, v255, {S_WS}, {sKOWN} offen sc1"),
                   Op("s_mov_b64 exec, -1")]
            g = seg.stream(pub[:3], gb - 6)
            assert g < gb
            for o in pub[3:]: seg.put(gb + 1, o, 1)
            g = pt_place(seg, pt_o(), 2)
            g = pt_place(seg, pt_x(S_WS), g)
            g = pt_place(seg, pt_act(0), g)
            pf_place(seg, "K3", 32768, "pa1"); pf_place(seg, "K3", 32768 + 65536, "pa2"); pf_place(seg, "K3", 32768 + 2*65536, "pa3"); pf_place(seg, "K3", 32768 + 3*65536, "pa4")
            ws2.vmem([], lambda r: 0, margin=MARG, qd=QD, rate=RATE)
            CS4 = 140
            seg.stream([Op(f"ds_read_b128 v[{CS4+4*t}:{CS4+4*t+3}], {vG16} offset:{L_CS1 + (5+t)*64}", lg="cs4") for t in range(3)], 60)
            RLI = 152
            seg.stream([f"v_mul_f32 v{RLI+t}, {hex(LOG2E)}, v{SB+8+2*t+1}" for t in range(2)], 70)
            seg.emit(em)
            stamp()
            em.wait(wlg=["cs4"])
            streams = []
            for t in range(3):
                for tok in range(2):
                    for r in range(4):
                        a = P2 + 8 * t + 4 * tok + r
                        tt = 184 + (len(streams) % 8)
                        streams.append([x[0] if isinstance(x, tuple) else x for x in phi_ops(a, CS4 + 4 * t + r, SB + 8 + 2 * tok, SB + 8 + 2 * tok + 1, RLI + tok, tt, None)])
            for k in range(0, len(streams), 4):
                lin(il(streams[k:k + 4]))
                ring.emit(em, 2)
            F = 156
            for tok in range(2):
                qa = P2 + 4 * tok; qb = P2 + 8 + 4 * tok; qx = P2 + 16 + 4 * tok
                fa = F + 8 * tok; fb = fa + 4
                em.e(f"v_cvt_pk_bf16_f32 v{fa}, v{qa}, v{qa+1}"); em.e(f"v_cvt_pk_bf16_f32 v{fa+1}, v{qa+2}, v{qa+3}")
                em.e(f"v_cvt_pk_bf16_f32 v{fa+2}, v{qx}, v{qx+1}"); em.e(f"v_cvt_pk_bf16_f32 v{fa+3}, v{qx+2}, v{qx+3}")
                em.e(f"v_cvt_pk_bf16_f32 v{fb}, v{qb}, v{qb+1}"); em.e(f"v_cvt_pk_bf16_f32 v{fb+1}, v{qb+2}, v{qb+3}")
                em.e(f"v_mov_b32 v{fb+2}, v{fa+2}"); em.e(f"v_mov_b32 v{fb+3}, v{fa+3}")
            uid[0] += 1; u = uid[0]
            em.e(f"s_cmp_lg_u32 {sW}, 0")
            em.e(f"s_cbranch_scc1 Lkv{u}_o")
            em.e(f"s_add_u32 {sT0}, {sLAYER}, 1")
            poll(sKLINE, sT0, f"Lkv{u}_p")
            em.label(f"Lkv{u}_o")
            em.e("s_barrier")
            ring.allowed = max(ring.allowed, 18)
            KL = 172
            for Gp in range(16):
                if Gp % 1 == 0: em.e(f"s_add_u32 {sST2}, {sST}, {Gp*4096}")
                em.e(f"buffer_load_dwordx4 v[{KL+4*Gp}:{KL+4*Gp+3}], {vL16}, {S_WS}, {sST2} offen sc1", vm=("kl", Gp))
            ring.emit(em, upto=18)
            pf_now("K3", 32768, "pb1"); pf_now("K3", 32768 + 65536, "pb2"); pf_now("K3", 32768 + 2*65536, "pb3"); pf_now("K3", 32768 + 3*65536, "pb4")
            for Gp in range(1, 16):
                for q in range(4):
                    em.e(f"v_add_f32 v{KL+q}, v{KL+q}, v{KL+4*Gp+q}", wvm=[("kl", Gp)] if q == 0 else None)
        else:
            CS = 140
            for t in range(5):
                em.e(f"ds_read_b32 v{CS+t}, {vI4} offset:{L_CS1 + t*64}", lg="cs")
            KF = 148
            def nmr(tok, r): return NM4 + 8 * tok + r
            def rsr(tok, r): return NM4 + 8 * tok + 4 + r
            def rlr(tok, r): return 242 + 4 * tok + r
            XV = 172
            TT = 180
            P2 = 188
            em.e(f"s_mul_i32 {sST}, {sLAYER}, {KVP_L}"); em.e(f"s_lshl_b32 {sST2}, {sM}, 16"); em.e(f"s_add_u32 {sST}, {sST}, {sST2}")
            em.e(f"s_add_u32 {sST}, {sST}, {KVP}"); em.e(f"s_add_u32 {sST}, {sST}, {sW1K}")
            em.e(f"s_lshl_b32 {sST2}, {sG}, 12"); em.e(f"s_add_u32 {sST2}, {sST2}, {sST}")
            em.e(f"v_add_u32 v254, {sW1K}, {vR1}"); em.e(f"v_add_u32 v255, {sW4K}, {vR1}")
            seg = Seg(); ws2 = WStream(ring, seg, "K1", SS=SS)
            fu = {}; lu = {}
            for b in range(20):
                for t in range(3):
                    f = 100 + 3 * b + t; wr = ws2.wreg(f)
                    for tok in range(2):
                        d = P2 + 8 * t + 4 * tok
                        c = "0" if b == 0 else f"v[{d}:{d+3}]"
                        wl = [("w", "K1", 100 + 3 * b + 2)] if (t == 0 and tok == 0) else None
                        i = seg.mfma(f"v_mfma_f32_16x16x32_bf16 v[{d}:{d+3}], v[{wr}:{wr+3}], a[{AX(b,tok)}:{AX(b,tok)+3}], {c}", wlg=wl)
                        if t == 0 and tok == 0: g0 = i
                        fu.setdefault(f, g0); lu[f] = i
            assert ring.filled == 6, ring.filled
            ws2.reads(list(range(100, 144)), fu, lu)
            assert len(ws2.events) == 1 and ws2.events[0][2] == 8, ws2.events
            ws2.events[0] = (ws2.events[0][0], 13, 8)
            streams = []
            def phi_stream(t):
                for tok in range(2):
                    for r in range(4):
                        a = P1 + 8 * t + 4 * tok + r
                        tt = TT + (len(streams) % 8)
                        if t == 4:
                            s_ = [f"v_fmac_f32 v{a}, v{nmr(tok,r)}, v{CS+t}",
                                  f"v_mul_f32 v{XV+4*tok+r}, v{a}, v{rsr(tok,r)}",
                                  f"v_mul_f32 v{tt}, v{a}, v{rlr(tok,r)}",
                                  (Op(f"v_exp_f32 v{tt}, v{tt} clamp"), 2),
                                  f"v_max_f32 v{a}, 0, v{a}",
                                  f"v_add_f32 v{tt}, {hex(EPS6)}, v{tt}",
                                  f"v_fma_f32 v{a}, v{a}, v{rsr(tok,r)}, v{tt}"]
                        else:
                            s_ = phi_ops(a, CS + t, nmr(tok, r), rsr(tok, r), rlr(tok, r), tt, None)
                        streams.append(s_)
            for t in (0, 1, 4): phi_stream(t)
            ko = []
            for k in range(0, len(streams), 4): ko += il(streams[k:k + 4])
            o0 = ko[0]; o0 = Op(o0, wlg=["cs"]); ko[0] = o0
            for t in (2, 3):
                for tok in range(2):
                    for r in range(4):
                        a = P1 + 8 * t + 4 * tok + r
                        ko.append(f"v_fmac_f32 v{a}, v{nmr(tok,r)}, v{CS+t}")
                    for r in range(4):
                        a = P1 + 8 * t + 4 * tok + r
                        ko.append(f"v_mul_f32 v{a}, v{a}, v{rsr(tok,r)}")
            for k in range(8):
                ko.append(f"v_cndmask_b32 v{XV+k}, v{XV+k}, 1.0, {sI8}")
            def pack(dst, src_tok0, src_tok1):
                return [f"v_cvt_pk_bf16_f32 v{dst}, v{src_tok0}, v{src_tok0+1}", f"v_cvt_pk_bf16_f32 v{dst+1}, v{src_tok0+2}, v{src_tok0+3}",
                        f"v_cvt_pk_bf16_f32 v{dst+2}, v{src_tok1}, v{src_tok1+1}", f"v_cvt_pk_bf16_f32 v{dst+3}, v{src_tok1+2}, v{src_tok1+3}"]
            K0f, K1f, V0f, V1f, XKf, XPf = KF, KF + 4, KF + 8, KF + 12, KF + 16, KF + 20
            ko += pack(K0f, P1 + 0, P1 + 4) + pack(K1f, P1 + 8, P1 + 12) + pack(XKf, P1 + 32, P1 + 36) + pack(V0f, P1 + 16, P1 + 20) + pack(V1f, P1 + 24, P1 + 28) + pack(XPf, XV, XV + 4)
            KCAP = opt.get("kcap", 5)
            g = seg.stream(ko, 0, cap=KCAP)
            D = 100
            g += 1
            for k, (A_, B_) in enumerate([(K0f, V0f), (K1f, V1f), (XKf, V0f), (XKf, V1f), (K0f, XPf), (K1f, XPf), (XKf, XPf)]):
                seg.put(g + k // 2, f"v_mfma_f32_16x16x32_bf16 v[{D+4*k}:{D+4*k+3}], v[{A_}:{A_+3}], v[{B_}:{B_+3}], 0", 2)
            g += 5
            D1, D2, D3, D4, D5, D6, D7 = [D + 4 * k for k in range(7)]
            RP = (14 % NR) * 16384 - 65536
            ko = [Op(f"ds_write_b128 v254, v[{D1}:{D1+3}] offset:{RP}", lg="red"), Op(f"ds_write_b128 v254, v[{D2}:{D2+3}] offset:{RP + 4096}", lg="red")]
            for r in range(4):
                ko.append(f"v_cndmask_b32 v{D5+r}, v{D5+r}, v{D6+r}, {sBIT2}")
            for r in range(4):
                ko.append(f"v_cndmask_b32 v{D3+r}, v{D3+r}, v{D4+r}, {sMK[1]}")
            ko.append(Op(f"ds_write_b128 v254, v[{D5}:{D5+3}] offset:{RP + 2*4096}", lg="red"))
            for r in range(4):
                ko.append(f"v_permlane32_swap_b32 v{D3+r}, v{D7+r}")
            g = seg.stream(ko, g, cap=KCAP)
            g = seg.put(g + 1, Op(f"ds_write_b128 v254, v[{D3}:{D3+3}] offset:{RP + 3*4096}", lg="red"), 1)
            gR = g + opt.get("kgb", 3)
            seg.put(gR, Op("s_barrier", wvm=[("dma", 9)], wlg=["red"]), 2)
            for k in range(4):
                seg.put(gR, Op(f"ds_read_b128 v[{D+4*k}:{D+4*k+3}], v255 offset:{RP + k*1024}", lg=("rr", k)), 1)
            assert gR < fu[144] - 1, (gR, fu[144])
            ws2.events.append((gR, 13, 9))
            g = gR + opt.get("kga", 4)
            ko = []
            for q in range(4): ko.append(Op(f"v_add_f32 v{D+q}, v{D+q}, v{D+4+q}", wlg=[("rr", 1)] if q == 0 else None))
            for q in range(4): ko.append(Op(f"v_add_f32 v{D+8+q}, v{D+8+q}, v{D+12+q}", wlg=[("rr", 3)] if q == 0 else None))
            for q in range(4): ko.append(Op(f"v_add_f32 v{D+q}, v{D+q}, v{D+8+q}"))
            KVH = opt.get("kvh", 1)
            if KVH:
                ko.insert(0, Op(f"v_lshrrev_b32 v254, 1, {vL16}"))
                ko += [Op(f"v_cvt_pk_bf16_f32 v{D}, v{D}, v{D+1}"), Op(f"v_cvt_pk_bf16_f32 v{D+1}, v{D+2}, v{D+3}")]
                ko.append(Op(f"buffer_store_dwordx2 v[{D}:{D+1}], v254, {S_WS}, {sST2} offen sc1", vm="kvst"))
            else:
                ko.append(Op(f"buffer_store_dwordx4 v[{D}:{D+3}], {vL16}, {S_WS}, {sST2} offen sc1", vm="kvst"))
            gS = seg.stream(ko, g, cap=4)
            ws2.events.append((g + 4, 14, 9))
            ring.filled = 9
            ev = list(ws2.events)
            ws2.reads(list(range(144, 160)), fu, lu, ming=gR + 1)
            assert ws2.events == ev
            pj = pt_jobs((pt_o() if PTK & 1 else []) + (pt_x(PS()) if PTK & 2 else []) + (pt_act(0) if PTK & 4 else []), opt.get("ptg", 40), 119) if PTM != 3 else []
            pq = []
            if opt.get("ptq", 0): pq = pj; pj = []
            ws2.vmem(pj, lambda r: 0, margin=MARG, qd=opt.get("qs2", 4), rate=opt.get("rs2", 35) / 10.0, cap=KCAP + 2, burst0=False)
            CS4 = 140
            seg.stream([Op(f"ds_read_b128 v[{CS4+4*t}:{CS4+4*t+3}], {vG16} offset:{L_CS1 + (5+t)*64}", lg="cs4") for t in range(3)], gS + 1)
            RLI = 152
            seg.stream([f"v_mul_f32 v{RLI+t}, {hex(LOG2E)}, v{SB+8+2*t+1}" for t in range(2)], gS + 4)
            sys.stderr.write(f"S2: gR {gR} gS {gS} ev {ws2.events}\n")
            if opt.get('ls2'):
                for g in range(1, 108, 7): lstamp(seg, g)
            seg.emit(em)
            stamp()
            KL = WW
            NL = 8 if KVH else 16
            KA = WW + 32
            vKV = "v255" if KVH else vL16
            K1SC = "" if opt.get("kvp", 1) else " sc1"
            if KVH:
                em.e(f"v_and_b32 v254, 0x200, {vL16}"); em.e("v_lshlrev_b32 v254, 3, v254"); em.e(f"v_and_b32 v255, 0x1f0, {vL16}"); em.e("v_add_u32 v255, v255, v254")
            def kl_loads(tag):
                for Gp in range(NL):
                    em.e(f"s_add_u32 {sST2}, {sST}, {Gp*4096*(16//NL)}")
                    em.e(f"buffer_load_dwordx4 v[{KL+4*Gp}:{KL+4*Gp+3}], {vKV}, {S_WS}, {sST2} offen sc1", vm=(tag, Gp) if tag else None)
            streams = []
            for t in range(3):
                for tok in range(2):
                    for r in range(4):
                        a = P2 + 8 * t + 4 * tok + r
                        tt = TT + (len(streams) % 8)
                        streams.append([x[0] if isinstance(x, tuple) else x for x in phi_ops(a, CS4 + 4 * t + r, SB + 8 + 2 * tok, SB + 8 + 2 * tok + 1, RLI + tok, tt, None)])
            qops = []
            for k in range(0, len(streams), 4): qops += il(streams[k:k + 4])
            F = 156
            for tok in range(2):
                qa = P2 + 4 * tok; qb = P2 + 8 + 4 * tok; qx = P2 + 16 + 4 * tok
                fa = F + 8 * tok; fb = fa + 4
                qops += [f"v_cvt_pk_bf16_f32 v{fa}, v{qa}, v{qa+1}", f"v_cvt_pk_bf16_f32 v{fa+1}, v{qa+2}, v{qa+3}",
                         f"v_cvt_pk_bf16_f32 v{fa+2}, v{qx}, v{qx+1}", f"v_cvt_pk_bf16_f32 v{fa+3}, v{qx+2}, v{qx+3}",
                         f"v_cvt_pk_bf16_f32 v{fb}, v{qb}, v{qb+1}", f"v_cvt_pk_bf16_f32 v{fb+1}, v{qb+2}, v{qb+3}",
                         f"v_mov_b32 v{fb+2}, v{fa+2}", f"v_mov_b32 v{fb+3}, v{fa+3}"]
            KLS = opt.get("kls", 6)
            first = True
            for k, o in enumerate(qops):
                if k % KLS == 0 and k // KLS < NL:
                    Gp = k // KLS
                    em.e(f"s_add_u32 {sST2}, {sST}, {Gp*4096*(16//NL)}")
                    em.e(f"buffer_load_dwordx4 v[{KL+4*Gp}:{KL+4*Gp+3}], {vKV}, {S_WS}, {sST2} offen{K1SC}", vm=("kl", Gp))
                elif k % (KLS if not pq else opt.get("ptqs", 3)) == 0 and k // KLS >= NL and pq:
                    for o2 in pq.pop(0)[0]: em.op(o2)
                elif k % KLS == 0: ring.emit(em, 1)
                if first: em.wait(wlg=["cs4"]); first = False
                em.op(o)
            for j in pq:
                for o2 in j[0]: em.op(o2)
            stamp()
            uid[0] += 1; u = uid[0]
            em.e(f"s_mov_b32 {sSPIN}, 0")
            if KVH:
                em.e(f"s_mov_b32 {sP0}, 0x3f80"); em.e(f"s_mov_b32 {sP1}, 0x3f800000")
                em.wait(wvm=[("kl", 0)])
                em.label(f"Lkv{u}_s")
                for q in range(8): em.e(f"v_mov_b32 v{KA+q}, 0")
                for Gp in range(8):
                    for q in range(4):
                        em.e(f"v_dot2c_f32_bf16 v{KA+2*q}, {sP0}, v{KL+4*Gp+q}", wvm=[("kl", Gp)] if q == 0 else None)
                        em.e(f"v_dot2c_f32_bf16 v{KA+2*q+1}, {sP1}, v{KL+4*Gp+q}")
                em.e(f"v_cmp_u_f32 vcc, v{KA}, v{KA+2}"); em.e(f"v_cmp_u_f32 s[34:35], v{KA+4}, v{KA+6}")
            else:
                for Gp in range(1, 16):
                    if Gp == 1:
                        em.wait(wvm=[("kl", 1)])
                        em.label(f"Lkv{u}_s")
                    for q in range(4):
                        em.e(f"v_add_f32 v{KL+q}, v{KL+q}, v{KL+4*Gp+q}", wvm=[("kl", Gp)] if q == 0 else None)
                em.e(f"v_cmp_u_f32 vcc, v{KL}, v{KL+1}"); em.e(f"v_cmp_u_f32 s[34:35], v{KL+2}, v{KL+3}")
            em.e(f"s_or_b64 vcc, vcc, s[34:35]")
            em.e(f"s_cbranch_vccz Lkv{u}_o")
            em.e(f"s_add_u32 {sSPIN}, {sSPIN}, 1"); em.e(f"s_cmp_gt_u32 {sSPIN}, 20000"); em.e(f"s_cbranch_scc1 Lkv{u}_o")
            kl_loads(None)
            em.raw("    s_waitcnt vmcnt(0)")
            em.e(f"s_branch Lkv{u}_s")
            em.label(f"Lkv{u}_o")
        if opt.get('k1n', 1) and KVH:
            for q in range(4): em.e(f"v_permlane32_swap_b32 v{KA+q}, v{KA+4+q}")
            for q in range(4): em.e(f"v_add_f32 v{KA+q}, v{KA+q}, v{KA+4+q}")
            em.e(f"v_cvt_pk_bf16_f32 v{KL}, v{KA}, v{KA+1}"); em.e(f"v_cvt_pk_bf16_f32 v{KL+1}, v{KA+2}, v{KA+3}")
            em.e(f"v_and_b32 v254, 0x1f0, {vL16}"); em.e(f"v_lshrrev_b32 v255, 6, {vL16}"); em.e("v_and_b32 v255, 8, v255"); em.e("v_add_u32 v254, v254, v255")
            em.e(f"s_lshl_b32 {sT0}, {sW}, 9"); em.e(f"s_add_u32 {sT0}, {sT0}, 0x20000"); em.e(f"v_add_u32 v254, {sT0}, v254")
        else:
            em.e(f"v_cvt_pk_bf16_f32 v{KL}, v{KL}, v{KL+1}"); em.e(f"v_cvt_pk_bf16_f32 v{KL+1}, v{KL+2}, v{KL+3}")
            em.e(f"s_lshl_b32 {sT0}, {sW}, 9"); em.e(f"v_add_u32 v254, {sT0}, {vL8}")
        em.e(f"ds_write_b64 v254, v[{KL}:{KL+1}] offset:{L_KVB}", lg="kw")
        em.wait_all_lg()
        em.e("s_barrier")
        if opt.get('k1n', 1):
            ring.allowed = max(ring.allowed, 18)
            ring.emit(em, upto=opt.get("k1e", 18))
            pfk[0] = 0
            pf3(opt.get("pfa", 0), False)
        R_ = 176
        for t in range(4):
            em.e(f"ds_read_b64 v[{R_+2*t}:{R_+2*t+1}], {vL8} offset:{L_KVB + t*512}", lg="kr")
        em.e(f"v_xor_b32 v254, 256, {vL8}")
        em.e(f"ds_read_b64 v[{R_+8}:{R_+9}], v254 offset:{L_KVB + 3*512}", lg="kr")
        em.e(f"v_and_b32 v254, 0xfffffe7f ^ 0, {vL8}" if False else f"v_lshlrev_b32 v254, 3, {vG16}")
        em.e(f"v_and_b32 v254, 0x3ff, v254")
        em.e(f"v_add_u32 v254, 0x20000, v254")
        em.e(f"ds_read_b64 v[{R_+10}:{R_+11}], v254 offset:{L_KVB + 2*512}", lg="kr")
        em.e(f"ds_read_b64 v[{R_+12}:{R_+13}], v254 offset:{L_KVB + 2*512 + 32}", lg="kr")
        em.e("v_mov_b32 v255, 0x20000")
        em.e(f"ds_read_b64 v[{R_+14}:{R_+15}], v255 offset:{L_KVB + 3*512 + 32*8}", lg="kr")
        em.e(f"ds_read_b64 v[{R_+16}:{R_+17}], v255 offset:{L_KVB + 3*512 + 52*8}", lg="kr")
        em.wait_all_lg()
        t1, t2, t3, t4, t4x, za, zb, zxa, zxb = [R_ + 2 * k for k in range(9)]
        AF = 196
        Aa, Ab, Axa, Axb, Aza, Azb = [AF + 4 * k for k in range(6)]
        mg0, mg1, ma, mb, mga, mgb = sMK
        def cp(dst, src):
            em.e(f"v_mov_b32 v{dst}, v{src}"); em.e(f"v_mov_b32 v{dst+1}, v{src+1}")
        def mk(dst, src, m):
            em.e(f"v_cndmask_b32 v{dst}, 0, v{src}, {m}"); em.e(f"v_cndmask_b32 v{dst+1}, 0, v{src+1}, {m}")
        cp(Aa, t1); mk(Aa + 2, t4, mg0)
        cp(Ab, t2); mk(Ab + 2, t4, mg1)
        mk(Axa, t3, ma); mk(Axa + 2, t4x, mga)
        mk(Axb, t3, mb); mk(Axb + 2, t4x, mgb)
        cp(Aza, za); mk(Aza + 2, zxa, mg0)
        cp(Azb, zb); mk(Azb + 2, zxb, mg1)
        O = 100
        for tok in range(2):
            fa = F + 8 * tok; fb = fa + 4; o = O + 20 * tok
            em.e(f"v_mfma_f32_16x16x32_bf16 v[{o+12}:{o+15}], v[{Aza}:{Aza+3}], v[{fa}:{fa+3}], 0")
            em.e(f"v_mfma_f32_16x16x32_bf16 v[{o+16}:{o+19}], v[{Azb}:{Azb+3}], v[{fb}:{fb+3}], 0")
            em.e(f"v_mfma_f32_16x16x32_bf16 v[{o}:{o+3}], v[{Aa}:{Aa+3}], v[{fa}:{fa+3}], 0")
            em.e(f"v_mfma_f32_16x16x32_bf16 v[{o+4}:{o+7}], v[{Ab}:{Ab+3}], v[{fb}:{fb+3}], 0")
            em.e(f"v_mfma_f32_16x16x32_bf16 v[{o+8}:{o+11}], v[{Axa}:{Axa+3}], v[{fa}:{fa+3}], 0")
            em.e(f"v_mfma_f32_16x16x32_bf16 v[{o+8}:{o+11}], v[{Axb}:{Axb+3}], v[{fb}:{fb+3}], v[{o+8}:{o+11}]")
        em.e(f"s_mul_i32 {sST}, {LB()}, {O_SZ}"); em.e(f"s_mul_i32 {sST2}, {sTT2}, 20480"); em.e(f"s_add_u32 {sST}, {sST}, {sST2}")
        em.e(f"s_add_u32 {sST}, {sST}, {OB}")
        em.e(f"s_lshl_b32 {sST2}, {sM}, 10"); em.e(f"s_add_u32 {sST2}, {sST2}, {sST}")
        for tok in range(2):
            o = O + 20 * tok
            em.e(f"v_add_f32 v{o+12}, {hex(EPS6)}, v{o+12}"); em.e(f"v_add_f32 v{o+16}, {hex(EPS6)}, v{o+16}")
            em.e(f"v_rcp_f32 v{o+12}, v{o+12}"); em.e(f"v_rcp_f32 v{o+16}, v{o+16}")
            em.e(f"v_cndmask_b32 v{o+13}, v{o+12}, v{o+16}, {sG3}")
            for r in range(4):
                em.e(f"v_mul_f32 v{o+r}, v{o+r}, v{o+12}"); em.e(f"v_mul_f32 v{o+4+r}, v{o+4+r}, v{o+16}")
                em.e(f"v_mul_f32 v{o+8+r}, v{o+8+r}, v{o+13}")
            em.e(f"v_cvt_pk_bf16_f32 v{o}, v{o}, v{o+1}"); em.e(f"v_cvt_pk_bf16_f32 v{o+1}, v{o+2}, v{o+3}")
            em.e(f"v_cvt_pk_bf16_f32 v{o+2}, v{o+4}, v{o+5}"); em.e(f"v_cvt_pk_bf16_f32 v{o+3}, v{o+6}, v{o+7}")
            em.e(f"v_cvt_pk_bf16_f32 v{o+8}, v{o+8}, v{o+9}"); em.e(f"v_cvt_pk_bf16_f32 v{o+9}, v{o+10}, v{o+11}")
            va = vL16 if tok == 0 else vL16B
            em.e(f"buffer_store_dwordx4 v[{o}:{o+3}], {va}, {S_WS}, {sST2} offen{wt('osw', 1)}", vm="ost")
            if tok == 1: em.e(f"s_add_u32 {sST}, {sST}, 20480")
            em.e(f"s_mov_b64 exec, {sG23}")
            em.e(f"buffer_store_dwordx2 v[{o+8}:{o+9}], {vOREM}, {S_WS}, {sST} offen{wt('osw', 2)}", vm="ost")
            em.e("s_mov_b64 exec, -1")

    def K24(ph, nblk, final_possible):
        AX = lambda b, t: 4 * b
        if ph == "K2":
            em.e(f"s_mul_i32 {sA}, {LB()}, {O_SZ}"); em.e(f"s_mul_i32 {sT0}, {sTT1}, 20480"); em.e(f"s_add_u32 {sA}, {sA}, {sT0}"); em.e(f"s_add_u32 {sA}, {sA}, {OB}")
        else:
            em.e(f"s_mul_i32 {sA}, {LB()}, {ACT_SZ}"); em.e(f"s_mul_i32 {sT0}, {sTT1}, {54*1024}"); em.e(f"s_add_u32 {sA}, {sA}, {sT0}"); em.e(f"s_add_u32 {sA}, {sA}, {ACT}")
        seg = Seg(); ws = WStream(ring, seg, ph, SS=SS, LA=opt.get("la4", 10))
        fu = {}; lu = {}; wa = {}
        for b in range(nblk):
            for t in range(5):
                f = b * 5 + t; wr = ws.wreg(f); d = RES + 4 * t
                wv = [("a", b, 0)] if t == 0 else None
                i = seg.mfma(f"v_mfma_f32_16x16x32_bf16 v[{d}:{d+3}], v[{wr}:{wr+3}], a[{4*b}:{4*b+3}], v[{d}:{d+3}]", wvm=wv, wlg=[("w", ph, b * 5 + 4)] if t == 0 else None)
                fu[f] = i; lu[f] = i; wa[f] = 5 * b
        al = a_loads(1, nblk, ph, "a", AX)
        if ph == "K2" and DBG.get("stg", 0):
            for o in (f"v_add_u32 {vSTG0}, {sW4K}, {vL16}", f"v_add_u32 {vSTG1}, {sW4K}, {vR1}", f"v_add_u32 {vSTG2}, {sW4K}, {vR2}"): seg.put(0, o, 1)
        if ph == "K2":
            ws.reads(list(range(nblk * 5)), fu, lu, nobar=(12, 16), force=(14,), wait_at=wa)
            ws.vmem(a_jobs(al, lambda b: 5 * b - 30), lambda r: opt.get("k2w", 0), margin=MARG, qd=QD, rate=opt.get("r2", 35) / 10.0, stop=opt.get("k2s", 10**6))
        else:
            ws.reads(list(range(nblk * 5)), fu, lu, wait_at=wa)
            ws.vmem(a_jobs(al, lambda b: 5 * b - 30), lambda r: 0 if r < 52 else opt.get("k4w", 0), margin=MARG, qd=QD, rate=opt.get("r4", 28) / 10.0)
        g = 0
        if ph == "K4":
            if PTK & 16 and PTM != 3: pt_place(seg, pt_x(S_WSN), opt.get("k4pt", 170))
            if opt.get("opt", 0):
                g_ = seg.stream([f"s_mul_i32 {sP0}, {sTT1}, {16*1280}", f"s_mul_i32 {sP1}, {sC8}, 160", f"s_add_u32 {sP0}, {sP0}, {sP1}"], opt["opt"])
                g_ = seg.place(Op(f"buffer_load_dword {PTD}, {vOUT}, {S_OUT}, {sP0} offen", vm="pt"), g_)
                g_ = seg.place(Op(f"buffer_load_dword {PTD}, {vOUT}, {S_OUT}, {sP0} offen offset:128", vm="pt"), g_)
            pf_place(seg, "K1", 0, "pf1", True); pf_place(seg, "K1", 65536, "pf2", True); pf_place(seg, "K1", 131072, "pf3", True)
        else:
            pf_place(seg, "K3", 32768 + 2*65536, "pg3"); pf_place(seg, "K3", 32768 + 3*65536, "pg4")
        if not opt.get('ls2'):
            for g in range(1, nblk * 5 - 13, 30): lstamp(seg, g)
        seg.emit(em)
        stamp()
        P = TMP
        for t in range(5):
            em.e(f"v_cvt_pk_bf16_f32 v{P+2*t}, v{RES+4*t}, v{RES+4*t+1}"); em.e(f"v_cvt_pk_bf16_f32 v{P+2*t+1}, v{RES+4*t+2}, v{RES+4*t+3}")
        uid[0] += 1; u = uid[0]
        if final_possible:
            em.e(f"s_cmp_eq_u32 {sLAYER}, 1"); em.e(f"s_cbranch_scc1 Lfin{u}")
        em.e(f"s_mov_b32 {sXI}, 1" if reuse() else f"s_add_u32 {sXI}, {sXI}, 1")
        em.e(f"s_mul_i32 {sST}, {sXI}, {X_SZ}"); em.e(f"s_mul_i32 {sT0}, {sTT1}, 20480"); em.e(f"s_add_u32 {sST}, {sST}, {sT0}"); em.e(f"s_add_u32 {sST}, {sST}, {XB}")
        em.e(f"s_lshr_b32 {sT0}, {sC8}, 1"); em.e(f"s_mul_i32 {sT0}, {sT0}, 5")
        em.e(f"s_lshl_b32 {sT1}, {sODD}, 1"); em.e(f"s_add_u32 {sT1}, {sT1}, {sT0}"); em.e(f"s_lshl_b32 {sT1}, {sT1}, 10"); em.e(f"s_add_u32 {sT1}, {sT1}, {sST}")
        em.e(f"buffer_store_dwordx4 v[{P}:{P+3}], {vL16}, {S_WS}, {sT1} offen{wt('xsw', 1)}", vm="xst")
        em.e(f"buffer_store_dwordx4 v[{P+4}:{P+7}], {vL16}, {S_WS}, {sT1} offen offset:1024{wt('xsw', 1)}", vm="xst")
        em.e(f"s_add_u32 {sT0}, {sT0}, 4"); em.e(f"s_lshl_b32 {sT0}, {sT0}, 10"); em.e(f"s_add_u32 {sT0}, {sT0}, {sST}")
        em.e(f"s_lshl_b32 {sT1}, {sODD}, 3"); em.e(f"s_add_u32 {sT0}, {sT0}, {sT1}")
        em.e(f"buffer_store_dwordx2 v[{P+8}:{P+9}], {vL16}, {S_WS}, {sT0} offen{wt('xsw', 2)}", vm="xst")
        a, b_, x, y = 224, 225, 226, 227
        em.e(f"v_add_f32 v{a}, v{RES}, v{RES+1}"); em.e(f"v_mul_f32 v{b_}, v{RES}, v{RES}"); em.e(f"v_fmac_f32 v{b_}, v{RES+1}, v{RES+1}")
        em.e(f"v_add_f32 v{x}, v{RES+2}, v{RES+3}"); em.e(f"v_mul_f32 v{y}, v{RES+2}, v{RES+2}"); em.e(f"v_fmac_f32 v{y}, v{RES+3}, v{RES+3}")
        for k in range(4, 20, 2):
            em.e(f"v_add_f32 v{a}, v{a}, v{RES+k}"); em.e(f"v_fmac_f32 v{b_}, v{RES+k}, v{RES+k}")
            em.e(f"v_add_f32 v{x}, v{x}, v{RES+k+1}"); em.e(f"v_fmac_f32 v{y}, v{RES+k+1}, v{RES+k+1}")
        em.e(f"v_add_f32 v{a}, v{a}, v{x}"); em.e(f"v_add_f32 v{b_}, v{b_}, v{y}")
        for sw in ("v_permlane32_swap_b32", "v_permlane16_swap_b32"):
            em.e(f"v_mov_b32 v{x}, v{a}"); em.e(f"v_mov_b32 v{y}, v{b_}")
            em.e(f"{sw} v{a}, v{x}"); em.e(f"{sw} v{b_}, v{y}")
            em.e(f"v_add_f32 v{a}, v{a}, v{x}"); em.e(f"v_add_f32 v{b_}, v{b_}, v{y}")
        em.e(f"s_mul_i32 {sST}, {sXI}, {ST_SZ}"); em.e(f"s_lshl_b32 {sT0}, {sTT1}, 10"); em.e(f"s_add_u32 {sST}, {sST}, {sT0}")
        em.e(f"s_lshl_b32 {sT0}, {sC8}, 7"); em.e(f"s_add_u32 {sST}, {sST}, {sT0}"); em.e(f"s_add_u32 {sST}, {sST}, {ST}")
        em.e(f"s_mov_b64 exec, {sMK[0]}")
        em.e(f"buffer_store_dwordx2 v[{a}:{a+1}], {vSTO}, {S_WS}, {sST} offen{wt('xsw', 4)}", vm="xst")
        em.e("s_mov_b64 exec, -1")
        if final_possible:
            em.e(f"s_branch Lfin{u}_x")
            em.label(f"Lfin{u}")
            em.e(f"s_mul_i32 {sST}, {sTT1}, {16*1280}"); em.e(f"s_mul_i32 {sT0}, {sC8}, 160"); em.e(f"s_add_u32 {sST}, {sST}, {sT0}")
            for t in range(5):
                em.e(f"buffer_store_dwordx2 v[{P+2*t}:{P+2*t+1}], {vOUT}, {S_OUT}, {sST} offen offset:{t*32}" + {0: "", 1: " sc1", 2: " sc0 sc1", 3: " nt", 4: " sc1 nt"}[opt.get("osc", 0)])
            em.raw("    s_waitcnt vmcnt(0)")
            stamp(); nstamp[0] -= 1
            dump_stamps()
            em.e("s_endpgm")
            em.label(f"Lfin{u}_x")

    def K3():
        AX = lambda b, s_: 8 * b + 4 * s_
        SB = TMP
        NM, C1, KK, VST = 220, 221, 222, 223
        set_sA_x()
        seg = Seg(cap=opt.get("k3cap", 6)); ws = WStream(ring, seg, "K3", SS=SS, LA=opt.get("la3", 5))
        fu = {}; lu = {}
        pend = []
        for f in range(280): ws.wreg(f)
        def acc(t): return ACC + 16 * t
        B1 = opt.get("k3b", 12)
        groups = [(b, p) for b in range(B1) for p in range(3)] + [(b, p) for p in range(3) for b in range(B1, 20)] + [(b, 3) for b in range(20)]
        afirst = {}
        seen_a = set()
        pend = [0, 0, 0, 0]
        for (b, p) in groups:
            ts = (2 * p, 2 * p + 1) if p < 3 else (6,)
            first = True
            for s_ in range(2):
                for t in ts:
                    f = pw3_index(b, t, s_, B1); wr = ws.wreg(f)
                    d = acc(t)
                    c = "0" if (b == 0 and s_ == 0) else f"v[{d}:{d+15}]"
                    wl = [("w", "K3", pw3_index(b, ts[-1], 1, B1))] if first else None
                    wv = [("a", b, 1)] if (b not in seen_a and first) else None
                    i = seg.mfma(f"v_mfma_f32_32x32x16_bf16 v[{d}:{d+15}], v[{wr}:{wr+3}], a[{AX(b,s_)}:{AX(b,s_)+3}], {c}", wvm=wv, wlg=wl)
                    if first: g0 = i
                    if b not in seen_a: seen_a.add(b); afirst[b] = i
                    first = False
                    fu.setdefault(f, g0); lu[f] = i
            pend[p] = seg.n()
        al = a_loads(2, 20, "K3", "a", AX, m32=True)
        ws.reads(list(range(280)), fu, lu)
        ws.vmem(a_jobs(al, lambda b: afirst[b] - opt.get("a3l", 12)), lambda r: opt.get("k3w", 0), margin=opt.get("m3", 70), qd=opt.get("q3", QD // 2), rate=opt.get("r3", 38) / 20.0, stop=opt.get("k3s", 10**6))
        so = [f"v_and_b32 v{VST}, 0xf0, {vL16}", f"v_lshrrev_b32 v{VST}, 1, v{VST}", f"v_and_b32 v{NM}, 0x200, {vL16}", f"v_add_u32 v{VST}, v{VST}, v{NM}",
              f"v_and_b32 v{NM}, 0x100, {vL16}", f"v_lshlrev_b32 v{NM}, 2, v{NM}", f"v_add_u32 v{VST}, v{VST}, v{NM}",
              f"s_mul_i32 {sST}, {sXI}, {ST_SZ}", f"s_lshl_b32 {sST2}, {sTT2}, 10", f"s_add_u32 {sST}, {sST}, {sST2}", f"s_add_u32 {sST}, {sST}, {ST}"]
        for q in range(4):
            so.append(Op(f"buffer_load_dwordx2 v[{SB+2*q}:{SB+2*q+1}], v{VST}, {S_WS}, {sST} offen offset:{q*128}{cur['LD']}", vm=("st", q)))
        g = seg.stream(so, 2)
        a, b_, x, y = SB, SB + 1, SB + 2, SB + 3
        so = [Op(f"v_add_f32 v{a}, v{a}, v{SB+2}", wvm=[("st", 3)]), f"v_add_f32 v{b_}, v{b_}, v{SB+3}",
              f"v_add_f32 v{SB+4}, v{SB+4}, v{SB+6}", f"v_add_f32 v{SB+5}, v{SB+5}, v{SB+7}",
              f"v_add_f32 v{a}, v{a}, v{SB+4}", f"v_add_f32 v{b_}, v{b_}, v{SB+5}",
              f"v_mov_b32 v{x}, v{a}", f"v_mov_b32 v{y}, v{b_}",
              f"v_permlane32_swap_b32 v{a}, v{x}", f"v_permlane32_swap_b32 v{b_}, v{y}",
              f"v_add_f32 v{a}, v{a}, v{x}", f"v_add_f32 v{b_}, v{b_}, v{y}",
              f"v_mul_f32 v{NM}, {hex(INV640 | 0x80000000)}, v{a}", f"v_mul_f32 v{KK}, {hex(INV640)}, v{b_}",
              f"v_fma_f32 v{KK}, -v{NM}, v{NM}, v{KK}", f"v_max_f32 v{KK}, 0, v{KK}", f"v_add_f32 v{KK}, {hex(EPS5)}, v{KK}",
              (Op(f"v_rsq_f32 v{C1}, v{KK}"), 2), f"v_mul_f32 v{C1}, {hex(LOG2E | 0x80000000)}, v{C1}"]
        g = seg.stream(so, max(g, 30))
        so = [f"s_mul_i32 {sST}, {LB()}, {ACT_SZ}", f"s_mul_i32 {sST2}, {sTT2}, {54*1024}", f"s_add_u32 {sST}, {sST}, {sST2}",
              f"s_add_u32 {sST}, {sST}, {ACT}", f"s_lshl_b32 {sST2}, {sM}, 10", f"s_add_u32 {sST2}, {sST2}, {sST}"]
        g = seg.stream(so, max(g, 50))
        CSR = 226
        ET = 242
        def epi(t):
            ops = []
            for mat in range(2):
                for hh in range(2):
                    r = CSR + 8 * mat + 4 * hh
                    ops.append(Op(f"ds_read_b128 v[{r}:{r+3}], {vH16} offset:{L_CS3 + (2*t+mat)*64 + 32*hh}", lg=("c3", t)))
            d = acc(t)
            first = True
            for e in range(8):
                ops.append(Op(f"v_fmac_f32 v{d+e}, v{NM}, v{CSR+e}", wlg=[("c3", t)] if first else None)); first = False
                ops.append(f"v_fmac_f32 v{d+8+e}, v{NM}, v{CSR+8+e}")
            for k in range(0, 8, 4):
                streams = []
                for e in range(k, k + 4):
                    g_ = d + e; u_ = d + 8 + e; e_ = ET + e
                    streams.append([f"v_mul_f32 v{e_}, v{g_}, v{C1}",
                                    (Op(f"v_exp_f32 v{e_}, v{e_}"), 2),
                                    f"v_mul_f32 v{g_}, v{g_}, v{u_}",
                                    f"v_fma_f32 v{e_}, v{e_}, v{KK}, v{KK}",
                                    (Op(f"v_rcp_f32 v{e_}, v{e_}"), 2),
                                    f"v_mul_f32 v{g_}, v{g_}, v{e_}"])
                ops += il(streams)
            PK = d + 8
            for q in range(4): ops.append(f"v_cvt_pk_bf16_f32 v{PK+q}, v{d+2*q}, v{d+2*q+1}")
            if t < 6:
                ops.append(Op(f"s_add_u32 {sT0}, {sST2}, {(t >> 1) * 16384 + (t & 1) * 512}"))
                sto = cur['STO'] or ({1: " sc1", 2: " sc0 sc1", 3: " nt"}[opt.get("asm", 1)] if (opt.get("asc", 0) >> (t >> 1)) & 1 else "")
                ops.append(Op(f"buffer_store_dwordx4 v[{PK}:{PK+3}], {vA3}, {S_WS}, {sT0} offen{sto}", vm="ast"))
            else:
                sto = cur['STO'] or (" sc1" if (opt.get("asc", 0) >> 3) & 1 else "")
                ops.append(Op(f"buffer_store_dwordx2 v[{PK}:{PK+1}], {vACT6}, {S_WS}, {sST} offen{sto}", vm="ast"))
                ops.append(Op(f"s_mov_b64 exec, {sMK32}"))
                ops.append(Op(f"buffer_store_dwordx2 v[{PK+2}:{PK+3}], {vA3}, {S_WS}, {sP2} offen{sto}", vm="ast"))
                ops.append(Op("s_mov_b64 exec, -1"))
            return ops
        if PTK & 8 and PTM != 3:
            for p in range(1, 4): pt_place(seg, pt_act(p), max(20, pend[p - 1] - opt.get("pt3", 25)))
        ge = 0
        for p in range(3):
            for t in (2 * p, 2 * p + 1):
                ge = seg.stream(epi(t), max(pend[p] + 3, ge))
        so = [f"s_mul_i32 {sP0}, {sM}, 3", f"s_add_u32 {sP0}, {sP0}, 2", f"s_lshr_b32 {sP1}, {sP0}, 3", f"s_add_u32 {sP1}, {sP1}, 48", f"s_lshl_b32 {sP1}, {sP1}, 10",
              f"s_add_u32 {sP2}, {sST}, {sP1}", f"s_and_b32 {sP1}, {sP0}, 3", f"s_lshl_b32 {sP1}, {sP1}, 8", f"s_add_u32 {sP2}, {sP2}, {sP1}",
              f"s_bfe_u32 {sP1}, {sP0}, 0x10002", f"s_lshl_b32 {sP1}, {sP1}, 3", f"s_add_u32 {sP2}, {sP2}, {sP1}"]
        seg.stream(so, 225)
        if not opt.get('ls2'):
            for g in range(1, 268, 20): lstamp(seg, g)
        sys.stderr.write(f"K3: epilogue stream ends at gap {ge}; cost hist {[sum(1 for c in seg.cost if c == k) for k in range(12)]}\n")
        seg.emit(em)
        stamp()
        lin(epi(6))

    def finish_if(p):
        if stop <= 8 and (stop - 1) % 4 + 1 == p:
            lay = (stop - 1) // 4
            em.e(f"s_cmp_lg_u32 {sLAYER}, {lay}"); em.e(f"s_cbranch_scc1 Lstop{p}{cur['sfx']}")
            em.raw("    s_waitcnt vmcnt(0) lgkmcnt(0)")
            dump_stamps()
            em.e("s_endpgm")
            em.label(f"Lstop{p}{cur['sfx']}")
    prologue_end()
    pls()
    if opt.get("pls"):
        for k in range(pln[0]):
            if k > 5: break
            em.e(f"v_readfirstlane_b32 s96, v{236+k}"); em.e("s_nop 3"); em.e(f"v_writelane_b32 v0, s96, {58+k}")
    if PEEL:
        cnt_save = WStream.cnt
        ring.filled = -1
        nstamp[0] = 0; lsn[0] = 0
        stamp()
        K1_p1(True)
        stamp()
        join_state[0] = (ring.issued, ring.filled, ring.allowed, [t for t in em.vm if isinstance(t, tuple) and t[0] == "dma"], WStream.cnt)
        K1_first(True)
        WStream.cnt = cnt_save
        em.vm = [("dma", r) for r in range(HEAD + 1) for _ in range(4)]
    em.vm = [t for t in em.vm if isinstance(t, tuple) and t[0] == "dma"] + [t for t in em.vm if isinstance(t, tuple) and t[0] == "a"]
    head_vm = list(em.vm)
    cnt0 = WStream.cnt
    if MONO and stamps and not opt.get("lst", 0):
        em.e("v_writelane_b32 v0, s96, 62"); em.e("v_writelane_b32 v0, s97, 63")
    if MONO:
        em.e(f"s_cmp_lg_u32 {sMODE}, 0"); em.e("s_cbranch_scc1 Lm_layerS")
    for sfx, sto in (("F", ""), ("S", " sc1")):
        cur["sfx"] = sfx; cur["STO"] = sto; cur["LD"] = sto if not opt.get("ldsc1", 1) else " sc1"
        nstamp[0] = 0; lsn[0] = 0
        WStream.cnt = cnt0
        em.label(f"Lm_layer{sfx}")
        em.vm = list(head_vm); em.lg = []
        ring.filled = -1; ring.issued = HEAD; ring.allowed = 8; ring.q = []
        em.e(f"s_cmp_eq_u32 {sLAYER}, 1"); em.e(f"s_cselect_b32 s14, 0, {WS_END}")
        if opt.get("opt", 0): em.e(f"s_cselect_b32 s10, {2048*640*2}, 0")
        stamp()
        K1(); stamp(); finish_if(1)
        pf3(opt.get("pfb", 0), True)
        transition(1, 1, 9, ["ost"], 16, opt.get("d11", 0), opt.get("d12", 0), defer0=opt.get("df1", 0)); stamp()
        K24("K2", 20, False); stamp(); finish_if(2)
        pf3(opt.get("pfc", 0), True)
        transition(2, 2, 16, ["xst"], 18, opt.get("d21", 40), opt.get("d22", 0), defer0=opt.get("df2", 0)); stamp()
        K3(); stamp(); finish_if(3)
        transition(4, 4, 34, ["ast"], 36, opt.get("d31", 40), opt.get("d32", 0), defer0=opt.get("df3", 0)); stamp()
        K24("K4", 54, True); stamp(); finish_if(4)
        transition(5, 5, 53, ["xst"], 53, opt.get("d41", 40), 100, upto2=54 + HEAD, defer0=opt.get("df4", 0))
        if AH: k1_hoist(cur["LD"])
        stamp()
        assert ring.issued == 54 + HEAD and not ring.q, (ring.issued, ring.q)
        em.e(f"s_add_u32 {sLAYER}, {sLAYER}, 1"); em.e(f"s_add_u32 {sSTEP}, {sSTEP}, 5")
        em.e(f"s_branch Lm_layer{sfx}")
    em.label("Lm_done")
    em.e("s_endpgm")
    return em.lines


def build(opt):
    if opt.get("mono", 0):
        ml = gen_main(opt)
        ml, n2 = fix_hazards(ml)
        ref = open("interleave_layers__linear_attn_block__swiglu_ffn__prompt.s.ref").read() if opt.get("hdr", False) else ""
        hdr = [l for l in ref.split("\n") if l.startswith(";") and "@launch" not in l and "Override launch" not in l and "grid=ceil" not in l]
        out = hdr + [f"; @launch grid=(256,1,1) block=(256,1,1) lds={MAIN_LDS}",
               '.amdgcn_target "amdgcn-amd-amdhsa--gfx950"', ".text",
               f".globl {KNAME}", ".p2align 8", f".type {KNAME},@function"] + ml + [kdesc(KNAME, 512, 256, 102)]
        sys.stderr.write(f"nops inserted: main {n2}; main lines {len(ml)}\n")
        return "\n".join(out)
    pl = gen_prep("prep_kernel", stamp=opt.get("stamps", 0), k3b=opt.get("k3b", 12), wsoff=opt.get("wsoff", 0) << 20, zf=opt.get("zf", 0), hp=opt.get("hp", 0) and opt.get("kvh", 1))
    if opt.get("pst"):
        sfx = {1: " sc1", 2: " nt", 3: " sc0 sc1", 4: " sc1 nt"}[opt["pst"]]
        pl = [l + sfx if "buffer_store" in l else l for l in pl]
    pl, n1 = fix_hazards(pl)
    ml = gen_main(opt)
    ml, n2 = fix_hazards(ml)
    ref = open("interleave_layers__linear_attn_block__swiglu_ffn__prompt.s.ref").read() if opt.get("hdr", False) else ""
    hdr = [l for l in ref.split("\n") if l.startswith(";") and "@launch" not in l and "Override launch" not in l and "grid=ceil" not in l]
    out = hdr + [f"; @launch kernel=prep_kernel grid=({PREP_WGS},1,1) block=(256,1,1) lds={PREP_LDS}",
           f"; @launch kernel={KNAME} grid=(256,1,1) block=(256,1,1) lds={MAIN_LDS}",
           '.amdgcn_target "amdgcn-amd-amdhsa--gfx950"', ".text",
           ".globl prep_kernel", ".p2align 8", ".type prep_kernel,@function"] + pl + \
          [f".globl {KNAME}", ".p2align 8", f".type {KNAME},@function"] + ml + \
          [kdesc("prep_kernel", 112, 112), kdesc(KNAME, 512, 256, 102)]
    sys.stderr.write(f"nops inserted: prep {n1} main {n2}; main lines {len(ml)}\n")
    return "\n".join(out)


if __name__ == "__main__":
    opt = dict(k3b=10, asc=7, ptk=3, k2s=70, df2=1, d22=0, df3=1, d32=4, d31=0, d21=0, d41=0, hp=1, df4=1, k4w=150, peel=1, pa=2, pss=1, p1j=10, pcs=110, pst0=60)
    for a in sys.argv[1:]:
        k, v = a.split("="); opt[k] = int(v)
    print(build(opt))
```
